```python
import torch

def _softmax(x, axis=-1):
    return torch.softmax(x, dim=axis)

def _gelu(x):
    return torch.nn.functional.gelu(x, approximate='tanh')

def _silu(x):
    return torch.nn.functional.silu(x)

def _sigmoid(x):
    return torch.sigmoid(x)

def _layernorm(x, axis=-1, eps=1e-05):
    m = x.mean(dim=axis, keepdim=True)
    v = x.var(dim=axis, keepdim=True, unbiased=False)
    return (x - m) / torch.sqrt(v + eps)

def _scatter_add(tgt, idx, src, axis=0):
    return tgt.clone().index_add_(axis, idx, src)

def _segment_sum(src, seg, n):
    out = torch.zeros((n,) + src.shape[1:], dtype=src.dtype)
    return out.index_add_(0, seg, src)

def _pad(x, pw):
    flat = tuple((v for pair in reversed(pw) for v in pair))
    return torch.nn.functional.pad(x, flat)
kernel_name = 'adaLN_cond__spectral_fnet__moe_arch_mod__prompt'

def setup_inputs():

    _w = lambda a: (lambda t: t.to(torch.bfloat16) if t.is_floating_point() else t)(torch.as_tensor(a))

    def _A_setup():
        B, S, D = (1, 2048, 1024)
        ns = torch.arange(S)[:, None] * torch.arange(S)[None, :]
        nd = torch.arange(D)[:, None] * torch.arange(D)[None, :]
        Ws_re = torch.cos(-2.0 * torch.pi * ns / S).to(float)
        Ws_im = torch.sin(-2.0 * torch.pi * ns / S).to(float)
        Wd_re = torch.cos(-2.0 * torch.pi * nd / D).to(float)
        Wd_im = torch.sin(-2.0 * torch.pi * nd / D).to(float)
        return {'x': _w((lambda *s: torch.randn(*s, dtype=torch.bfloat16) * 0.1)(B, S, D)), 'dft_seq_re': _w(Ws_re), 'dft_seq_im': _w(Ws_im), 'dft_hid_re': _w(Wd_re), 'dft_hid_im': _w(Wd_im)}
    _A_in = _A_setup()

    def _B_setup():
        B, S, D, F, C = (1, 2048, 1024, 3584, 2)
        return {'x': _w((lambda *s: torch.randn(*s, dtype=torch.bfloat16) * 0.1)(B, S, D)), 'w_r': _w((lambda *s: torch.randn(*s, dtype=torch.bfloat16) * 1.6)(D)), 'w_gate': _w((lambda *s: torch.randn(*s, dtype=torch.bfloat16) * 0.8)(D, F)), 'w_up': _w((lambda *s: torch.randn(*s, dtype=torch.bfloat16) * 0.8)(D, F)), 'w_down': _w((lambda *s: torch.randn(*s, dtype=torch.bfloat16) * 0.8)(F, D))}
    _B_in = _B_setup()
    return {'A_x': _A_in['x'], 'A_dft_seq_re': _A_in['dft_seq_re'], 'A_dft_seq_im': _A_in['dft_seq_im'], 'A_dft_hid_re': _A_in['dft_hid_re'], 'A_dft_hid_im': _A_in['dft_hid_im'], 'B_x': _B_in['x'], 'B_w_r': _B_in['w_r'], 'B_w_gate': _B_in['w_gate'], 'B_w_up': _B_in['w_up'], 'B_w_down': _B_in['w_down'], 'c': _w((lambda *s: torch.randn(*s, dtype=torch.bfloat16) * 0.1)(1, 1024) * 8.0), 'w_mod': _w((lambda *s: torch.randn(*s, dtype=torch.bfloat16) * 0.1)(1024, 6 * 1024) * 1024 ** (-0.5) * 8.0)}

def reference(A_x, A_dft_seq_re, A_dft_seq_im, A_dft_hid_re, A_dft_hid_im, B_x, B_w_r, B_w_gate, B_w_up, B_w_down, c, w_mod):

    def _A_ref(x, dft_seq_re, dft_seq_im, dft_hid_re, dft_hid_im):
        a = torch.einsum('bsd,ed->bse', x, dft_hid_re)
        b = torch.einsum('bsd,ed->bse', x, dft_hid_im)
        y = torch.einsum('ts,bse->bte', dft_seq_re, a) - torch.einsum('ts,bse->bte', dft_seq_im, b)
        return y

    def _B_ref(x, w_r, w_gate, w_up, w_down):
        B, S, D = x.shape
        C = 2
        r = x @ w_r
        idx = torch.argsort(-r, axis=-1)[:, :C]
        idx_e = (lambda x, n, axis: torch.repeat_interleave(x, n, dim=axis))(idx.reshape(B, C, 1), D, axis=2)
        x_sel = (lambda x, i, axis: torch.take_along_dim(x, i, dim=axis))(x, idx_e, axis=1)
        g = _silu(x_sel @ w_gate)
        u = x_sel @ w_up
        y = g * u @ w_down
        r_sel = _sigmoid((lambda x, i, axis: torch.take_along_dim(x, i, dim=axis))(r, idx, axis=1))
        y = y * r_sel.reshape(B, C, 1)
        b_off = (torch.arange(B) * S).reshape(B, 1)
        flat_idx = (idx + b_off).reshape(B * C)
        zero = (x * 0.0).reshape(B * S, D)
        upd = _scatter_add(zero, flat_idx, y.reshape(B * C, D), axis=0)
        return x + upd.reshape(B, S, D)
    x = A_x
    mod = (_silu(c) @ w_mod).reshape(c.shape[0], 6, 1, -1)
    sa, ca, ga, sb, cb, gb = (mod[:, 0].clone(), mod[:, 1].clone(), mod[:, 2].clone(), mod[:, 3].clone(), mod[:, 4].clone(), mod[:, 5].clone())
    h = _layernorm(x, axis=-1) * (1 + ca) + sa
    x = x + ga * _A_ref(h, A_dft_seq_re, A_dft_seq_im, A_dft_hid_re, A_dft_hid_im)
    h = _layernorm(x, axis=-1) * (1 + cb) + sb
    x = x + gb * _B_ref(h, B_w_r, B_w_gate, B_w_up, B_w_down)
    return x
```

```python
import re

TRANS = ("v_exp_f32", "v_log_f32", "v_rcp_f32", "v_rsq_f32", "v_sqrt_f32", "v_sin_f32", "v_cos_f32",
         "v_rcp_iflag_f32")

def _regs(tok):
    tok = tok.strip()
    tok = tok.lstrip("-")
    m = re.match(r"^(?:abs\(|\|)(.*?)(?:\)|\|)$", tok)
    if m:
        tok = m.group(1)
    m = re.match(r"^([vsa])(\d+)$", tok)
    if m:
        return {m.group(1) + m.group(2)}
    m = re.match(r"^([vsa])\[(\d+):(\d+)\]$", tok)
    if m:
        return {m.group(1) + str(i) for i in range(int(m.group(2)), int(m.group(3)) + 1)}
    if tok in ("vcc", "vcc_lo", "vcc_hi"):
        return {"vcc"}
    if tok in ("exec", "exec_lo", "exec_hi"):
        return {"exec"}
    if tok == "m0":
        return {"m0"}
    return set()

class Ins:
    def __init__(self, text):
        self.text = text
        t = text.split(";")[0].strip()
        self.label = t.endswith(":")
        self.directive = t.startswith(".") or t == ""
        self.op = ""
        self.w = set(); self.r = set()
        self.kind = "other"
        self.states = 1
        if self.label or self.directive:
            self.states = 0
            return
        parts = t.split(None, 1)
        op = parts[0]; self.op = op
        rest = parts[1] if len(parts) > 1 else ""
        ops = []; depth = 0; cur = ""
        for ch in rest:
            if ch in "[(": depth += 1
            if ch in "])": depth -= 1
            if ch == "," and depth == 0:
                ops.append(cur); cur = ""
            else:
                cur += ch
        ops.append(cur)
        mods = ""
        if ops:
            last = ops[-1].strip().split(None, 1)
            if last:
                ops[-1] = last[0]
                mods = last[1] if len(last) > 1 else ""
        ops = [o.strip() for o in ops if o.strip() != ""]
        self.ops = ops; self.mods = mods
        R = [_regs(o) for o in ops]
        self.dpp = ("_dpp" in op) or any(k in mods for k in ("row_", "quad_perm", "wave_"))
        if op == "s_nop":
            self.states = int(ops[0], 0) + 1
            self.kind = "nop"
        elif op.startswith("v_mfma"):
            self.kind = "mfma"
            self.w = R[0]; self.ra = R[1] | R[2]; self.rc = R[3]; self.r = self.ra | self.rc
            self.passes = 8 if "32x32" in op else 4
        elif op.startswith("v_"):
            self.kind = "valu"
            base = op.replace("_e32", "").replace("_e64", "").replace("_dpp", "").replace("_sdwa", "")
            self.base = base
            if base in ("v_swap_b32", "v_permlane16_swap_b32", "v_permlane32_swap_b32"):
                self.w = R[0] | R[1]; self.r = R[0] | R[1]
            elif base.startswith("v_cmpx"):
                self.w = R[0] | {"exec"}; self.r = set().union(*R[1:])
            elif base in ("v_add_co_u32", "v_sub_co_u32", "v_addc_co_u32", "v_subb_co_u32"):
                self.w = R[0] | R[1]; self.r = set().union(*R[2:])
            else:
                self.w = R[0]; self.r = set().union(*R[1:]) if len(R) > 1 else set()
                if base.startswith(("v_fmac", "v_dot2c", "v_fma_mixlo", "v_fma_mixhi", "v_writelane")) or self.dpp:
                    self.r |= R[0]
            self.trans = base in TRANS
            self.opsel_dst = base in ("v_fma_mixhi_f16", "v_fma_mixlo_f16") or "dst_sel:WORD" in mods or "dst_sel:BYTE" in mods
        elif op.startswith(("buffer_", "global_")):
            self.kind = "vmem"
            self.lds = (" lds" in (" " + mods)) or "_lds_" in op
            self.wide_store = False
            if "load" in op and not self.lds:
                self.w = R[0]; self.r = set().union(*R[1:])
            elif "atomic" in op:
                self.r = set().union(*R)
                if "sc0" in mods and op.startswith("buffer_"): self.w = R[0]
            else:
                self.r = set().union(*R) if R else set()
                if "store" in op and ("x4" in op or "x3" in op):
                    self.wide_store = True
                    self.sdata = R[0] if op.startswith("buffer_") else R[1]
            if self.lds: self.r |= {"m0"}
        elif op.startswith("ds_"):
            self.kind = "ds"
            if op.startswith(("ds_read", "ds_bpermute", "ds_permute", "ds_swizzle")):
                self.w = R[0]; self.r = set().union(*R[1:])
            else:
                self.r = set().union(*R)
        elif op.startswith("s_"):
            self.kind = "salu"
            if op.startswith(("s_cmp", "s_cbranch", "s_branch", "s_waitcnt", "s_barrier", "s_endpgm", "s_sleep", "s_setprio", "s_bitcmp")):
                self.r = set().union(*R) if R else set()
            else:
                self.w = R[0] if R else set(); self.r = set().union(*R[1:]) if len(R) > 1 else set()
                if "saveexec" in op: self.w |= {"exec"}

def _need(p, c):
    n = 0
    vw = {x for x in p.w if x[0] in "va" and x != "vcc"}
    sw = {x for x in p.w if x[0] == "s" or x == "vcc"}
    if p.kind == "valu":
        if c.kind == "mfma" and (vw & c.r): n = max(n, 2)
        if c.kind == "mfma" and "exec" in p.w: n = max(n, 4)
        if c.kind == "valu":
            if c.dpp and (vw & c.r): n = max(n, 2)
            if c.dpp and "exec" in p.w: n = max(n, 5)
            if c.base.startswith("v_permlane") and (vw & c.r): n = max(n, 2)
            if c.base.startswith("v_permlane") and "exec" in p.w: n = max(n, 4)
            if c.base in ("v_readlane_b32", "v_readfirstlane_b32") and (vw & c.r): n = max(n, 1)
            if c.base in ("v_readlane_b32", "v_readfirstlane_b32", "v_writelane_b32") and "exec" in p.w: n = max(n, 4)
            if sw & c.r:
                n = max(n, 4 if c.base in ("v_readlane_b32", "v_writelane_b32") else 2)
            if p.trans and (vw & c.r) : n = max(n, 1)
            if p.opsel_dst and (vw & (c.r | c.w)): n = max(n, 1)
        if c.kind == "vmem" and (sw & c.r): n = max(n, 5)
        if c.kind == "mfma" and p.trans and (vw & c.r): n = max(n, 2)
        if c.kind in ("vmem", "ds") and p.trans and (vw & c.r): n = max(n, 1)
    if p.kind == "mfma":
        big = {4: 8, 8: 12}[p.passes]
        if c.kind == "mfma":
            if p.w & c.ra: n = max(n, big)
            if p.w & c.rc:
                if not (p.w == c.rc and p.passes == c.passes): n = max(n, {4: 6, 8: 10}[p.passes])
            elif p.w & c.w: n = max(n, big)
        elif c.kind in ("valu", "vmem", "ds"):
            if p.w & (c.r | c.w): n = max(n, big)
        if c.kind == "valu" and (p.rc & c.w): n = max(n, {4: 3, 8: 7}[p.passes])
    if p.kind == "vmem" and p.wide_store:
        if p.sdata & c.w: n = max(n, 2 if c.kind in ("valu", "mfma") else 1)
    if p.kind == "salu" and "m0" in p.w and c.kind == "vmem" and c.lds: n = max(n, 1)
    return n

def fix_hazards(lines):
    out = []
    hist = []
    for ln in lines:
        ins = Ins(ln)
        if ins.label or ins.directive:
            out.append(ln)
            continue
        need = 0
        for p, dist in hist:
            k = _need(p, ins) - dist
            if k > need: need = k
        while need > 0:
            k = min(need, 16)
            out.append(f"    s_nop {k-1}")
            hist = [(p, d + k) for p, d in hist]
            need -= k
        out.append(ln)
        hist = [(p, d + ins.states) for p, d in hist if d + ins.states < 24]
        if ins.op == "s_endpgm":
            hist = []
        else:
            hist.append((ins, 0))
    return out

class K:
    def __init__(self, name):
        self.name = name
        self.lines = []
    def __call__(self, s):
        for ln in s.strip("\n").split("\n"):
            ln = ln.strip()
            if ln == "": continue
            if ln.endswith(":") and not ln.startswith(";"):
                self.lines.append(ln)
            else:
                self.lines.append("    " + ln)
    def c(self, s):
        self.lines.append("    ; " + s)
    def text(self):
        body = fix_hazards(self.lines)
        body = [l + "    ; poll back-off (reads of a line that is still being written slow its writers)" if l.strip().startswith("s_sleep") else l for l in body]
        return (f".globl {self.name}\n.p2align 8\n.type {self.name},@function\n{self.name}:\n" + "\n".join(body) + "\n")
    def maxreg(self, kind):
        mx = -1
        for ln in self.lines:
            t = ln.split(";")[0]
            for m in re.finditer(r"\b%s(\d+)\b" % kind, t): mx = max(mx, int(m.group(1)))
            for m in re.finditer(r"\b%s\[(\d+):(\d+)\]" % kind, t): mx = max(mx, int(m.group(2)))
        return mx
    def desc(self):
        nv = self.maxreg("v") + 1
        na = self.maxreg("a") + 1
        ns = self.maxreg("s") + 1
        acc = max(4, (nv + 3) // 4 * 4)
        nfv = acc + na if na else nv
        return f""".p2align 6
.amdhsa_kernel {self.name}
  .amdhsa_next_free_vgpr {nfv}
  .amdhsa_next_free_sgpr {max(ns, 16)}
  .amdhsa_accum_offset {acc}
  .amdhsa_group_segment_fixed_size 0
  .amdhsa_kernarg_size 120
  .amdhsa_user_sgpr_count 2
  .amdhsa_user_sgpr_kernarg_segment_ptr 1
  .amdhsa_system_sgpr_workgroup_id_x 1
  .amdhsa_float_denorm_mode_32 3
  .amdhsa_float_denorm_mode_16_64 3
.end_amdhsa_kernel
"""

def v(a, n=1):
    return f"v{a}" if n == 1 else f"v[{a}:{a+n-1}]"
def s(a, n=1):
    return f"s{a}" if n == 1 else f"s[{a}:{a+n-1}]"
import struct
def f32(x):
    return "0x%08x" % struct.unpack("<I", struct.pack("<f", x))[0]
```

```python
import math, sys
from asmgen import K, v, s, f32

WS_Z1   = 0x0100000
WS_ZF   = 0x0600000
WS_H2   = 0x0B00000
WS_MODP = 0x1000000
WS_CS   = 0x1040000
WS_SAS  = 0x1040800
WS_MAXP = 0x1041000
WS_PAR  = 0x1042000
WS_SENT = 0x1100000
WS_PART = WS_SENT
WS_XA   = WS_SENT + 0x80000
WS_XB   = WS_SENT + 0xC0000
WS_FLAG = WS_SENT + 0xF8000
WS_KEY  = WS_SENT + 0xFC000
WS_SIZE = 0x10000000

A_X, A_WR, A_WG, A_WU, A_WD, A_C, A_WM, A_OUT, A_DBG, A_WS = 0, 48, 56, 64, 72, 80, 88, 96, 104, 112

import os
STAMPS = int(os.environ.get("STAMPS", "0"))
WS_STAMP = 0x2000000
def _slot(i):
    if STAMPS == 1: return i if i < 7 else None
    if STAMPS == 2: return 0 if i == 0 else (i - 6 if 7 <= i < 13 else None)
    if STAMPS == 3: return 0 if i == 0 else (i - 12 if 13 <= i < 19 else None)
    if STAMPS == 4: return 0 if i == 0 else (i - 19 if 20 <= i < 26 else None)
    if STAMPS == 6: return 0 if i == 0 else (i - 39 if 40 <= i < 46 else None)
    if STAMPS == 5: return 0 if i == 0 else (i - 29 if 30 <= i < 36 else None)
    return None
def stamp(k, i):
    j = _slot(i)
    if j is not None: k(f"s_memrealtime s[{84+2*j}:{85+2*j}]")
def stamp_init(k):
    if STAMPS:
        for j in range(8): k(f"s_mov_b32 s{84+2*j}, 0")
def stamp_out(k, kid, n=7, srdb=12):
    if not STAMPS: return
    k("s_mov_b64 exec, -1")
    k("s_waitcnt vmcnt(0)")
    k("s_memrealtime s[98:99]")
    k("s_waitcnt lgkmcnt(0)")
    k(f"v_lshrrev_b32 v248, 6, v0")
    k(f"v_lshlrev_b32 v248, 5, v248")
    k(f"s_lshl_b32 s100, s2, 8")
    k(f"s_add_u32 s100, s100, {WS_STAMP + kid * 0x40000}")
    for i in range(8):
        k(f"v_mov_b32 v{240+i}, s{84+2*i}")
    k("s_mov_b64 exec, 1")
    k(f"buffer_store_dwordx4 v[240:243], v248, s[{srdb}:{srdb+3}], s100 offen")
    k(f"buffer_store_dwordx4 v[244:247], v248, s[{srdb}:{srdb+3}], s100 offen offset:16")

K1ST = os.environ.get("K1ST", "")
K2ST = os.environ.get("K2ST", "")
K3ST = os.environ.get("K3ST", "")
K4ST = os.environ.get("K4ST", "")
NT1 = os.environ.get("NT1", "")
NT2 = os.environ.get("NT2", "")
class RA:
    def __init__(self, base): self.n = base
    def __call__(self, n=1, align=None):
        if align is None: align = 2 if n >= 2 else 1
        self.n = (self.n + align - 1) // align * align
        b = self.n; self.n += n
        return b

def srd(k, d, src, nbytes):
    k(f"""s_mov_b32 s{d}, s{src}
    s_mov_b32 s{d+1}, s{src+1}
    s_mov_b32 s{d+2}, {nbytes}
    s_mov_b32 s{d+3}, 0x00020000""")

def P(a): return f"v[{a}:{a+1}]"
def padd(k, d, a, b): k(f"v_pk_add_f32 {P(d)}, {P(a)}, {P(b)}")
def psub(k, d, a, b): k(f"v_pk_add_f32 {P(d)}, {P(a)}, {P(b)} neg_lo:[0,1] neg_hi:[0,1]")
def pmul(k, d, a, b): k(f"v_pk_mul_f32 {P(d)}, {P(a)}, {P(b)}")
def pfma(k, d, a, b, c, nega=False):
    k(f"v_pk_fma_f32 {P(d)}, {P(a)}, {P(b)}, {P(c)}" + (" neg_lo:[1,0,0] neg_hi:[1,0,0]" if nega else ""))
def spair(sr):
    return f"s[{sr & ~1}:{(sr & ~1) + 1}]", sr & 1
def pmul_s(k, d, a, sr):
    p, b = spair(sr)
    k(f"v_pk_mul_f32 {P(d)}, {P(a)}, {p} op_sel:[0,{b}] op_sel_hi:[1,{b}]")
def pfma_s(k, d, a, sr, c, nega=False):
    p, b = spair(sr)
    k(f"v_pk_fma_f32 {P(d)}, {P(a)}, {p}, {P(c)} op_sel:[0,{b},0] op_sel_hi:[1,{b},1]" + (" neg_lo:[1,0,0] neg_hi:[1,0,0]" if nega else ""))
def psub_s(k, d, a, sr):
    p, b = spair(sr)
    k(f"v_pk_add_f32 {P(d)}, {P(a)}, {p} op_sel:[0,{b}] op_sel_hi:[1,{b}] neg_lo:[0,1] neg_hi:[0,1]")
def unpack_bf16(k, d, src):
    k(f"v_lshlrev_b32 v{d}, 16, v{src}")
    k(f"v_and_b32 v{d+1}, 0xffff0000, v{src}")
def round_bf16(k, d, a):
    k(f"v_cvt_pk_bf16_f32 v{d}, v{a}, v{a}")
    k(f"v_lshlrev_b32 v{d}, 16, v{d}")
DPPM = "row_mask:0xf bank_mask:0xf"
def row_allreduce(k, regs, op="v_add_f32"):
    for sh in (8, 4, 2, 1):
        for r in regs:
            k(f"{op}_dpp v{r}, v{r}, v{r} row_ror:{sh} {DPPM}")
def wave_reduce_to63(k, regs, op="v_add_f32"):
    row_allreduce(k, regs, op)
    for r in regs:
        k(f"{op}_dpp v{r}, v{r}, v{r} row_bcast:15 row_mask:0xa bank_mask:0xf")
    for r in regs:
        k(f"{op}_dpp v{r}, v{r}, v{r} row_bcast:31 row_mask:0xc bank_mask:0xf")

def rho_map(k, dst, t1, t2):
    k(f"""s_and_b32 s{dst}, s2, 7
    s_lshr_b32 s{t1}, s2, 4
    s_xor_b32 s{t1}, s{t1}, 15
    s_lshl_b32 s{t1}, s{t1}, 3
    s_add_u32 s{dst}, s{dst}, s{t1}
    s_sub_u32 s{t1}, 256, s{dst}
    s_cmp_eq_u32 s{dst}, 0
    s_cselect_b32 s{t1}, 128, s{t1}
    s_bitcmp1_b32 s2, 3
    s_cselect_b32 s{dst}, s{t1}, s{dst}""")

def code_prefetch(k, vaddr, vdst, sp):
    k(f"""s_getpc_b64 s[{sp}:{sp+1}]
    cpf_base:
    v_lshlrev_b32 v{vaddr}, 7, v0
    v_min_u32 v{vaddr}, code_end-cpf_base-4, v{vaddr}
    global_load_dword v{vdst}, v{vaddr}, s[{sp}:{sp+1}]""")

def pos32(k, d, e, t):
    k(f"""v_lshrrev_b32 v{d}, 9, v{e}
    v_lshlrev_b32 v{d}, 11, v{d}
    v_bfe_u32 v{t}, v{e}, 2, 1
    v_lshl_add_u32 v{d}, v{t}, 10, v{d}
    v_bfe_u32 v{t}, v{e}, 3, 6
    v_lshl_add_u32 v{d}, v{t}, 4, v{d}
    v_and_b32 v{t}, 3, v{e}
    v_lshl_add_u32 v{d}, v{t}, 2, v{d}""")
def pos16(k, d, e, t):
    k(f"""v_bfe_u32 v{d}, v{e}, 7, 1
    v_lshlrev_b32 v{d}, 9, v{d}
    v_and_b32 v{t}, 31, v{e}
    v_lshl_add_u32 v{d}, v{t}, 4, v{d}
    v_bfe_u32 v{t}, v{e}, 8, 1
    v_lshl_add_u32 v{d}, v{t}, 3, v{d}
    v_lshrrev_b32 v{t}, 9, v{e}
    v_lshl_add_u32 v{d}, v{t}, 10, v{d}
    v_bfe_u32 v{t}, v{e}, 5, 2
    v_lshl_add_u32 v{d}, v{t}, 1, v{d}""")

def gen_k1():
    k = K("k1_kernel")
    stamp_init(k)
    k("""s_cmp_ge_u32 s2, 512
    s_cbranch_scc1 k1_done
    s_cmp_ge_u32 s2, 256
    s_cbranch_scc1 k1_gemv""")
    k.c("---------------- LN1 + radix-8 over rows r+256j ----------------")
    stamp(k, 0)
    k(f"""s_load_dwordx2 s[4:5], s[0:1], {A_X}
    s_load_dwordx2 s[6:7], s[0:1], {A_WS}
    s_load_dwordx2 s[28:29], s[0:1], {A_WR}""")
    code_prefetch(k, 1, 200, 20)
    rho_map(k, 3, 16, 17)
    k(f"""v_lshlrev_b32 v1, 2, v0
    v_and_b32 v2, 7, v0
    v_mul_u32_u24 v3, s3, v2
    v_cvt_f32_u32 v3, v3
    v_mul_f32 v3, {f32(1.0/2048)}, v3
    v_cos_f32 v4, v3
    v_sin_f32 v5, v3
    s_lshl_b32 s16, s3, 11
    s_waitcnt lgkmcnt(0)""")
    srd(k, 8, 4, 2048 * 1024 * 2)
    srd(k, 12, 6, WS_SIZE)
    stamp(k, 1)
    ra = RA(8)
    XR = ra(8); XI = ra(8)
    for j in range(8):
        k(f"buffer_load_dword v{XR+j}, v1, s[8:11], s16 offen {NT1}")
        k(f"buffer_load_dword v{XI+j}, v1, s[8:11], s16 offen offset:1024 {NT1}")
        if j < 7: k(f"s_add_u32 s16, s16, {256*2048}")
    k(f"""v_mov_b32 v192, -1
    v_mov_b32 v193, -1
    v_mov_b32 v194, -1
    v_mov_b32 v195, -1
    v_lshlrev_b32 v196, 4, v0
    s_lshl_b32 s22, s2, 12
    s_add_u32 s22, s22, {WS_SENT}
    buffer_store_dwordx4 v[192:195], v196, s[12:15], s22 offen sc1""")
    TW = 40
    for kk in range(1, 8):
        k(f"v_readlane_b32 s{TW+2*kk}, v4, {kk}")
        k(f"v_readlane_b32 s{TW+2*kk+1}, v5, {kk}")
    KAP = 38
    k(f"s_mov_b32 s{KAP}, {f32(math.sqrt(0.5))}")
    k("""v_lshrrev_b32 v6, 6, v0
    v_lshlrev_b32 v6, 2, v6
    v_bfe_u32 v7, v0, 4, 2
    v_lshl_add_u32 v6, v7, 5, v6
    v_lshlrev_b32 v2, 4, v2""")
    VO = ra()
    k(f"""v_lshlrev_b32 v{VO}, 20, v7
    v_lshrrev_b32 v3, 6, v0
    v_lshl_add_u32 v{VO}, v3, 17, v{VO}
    v_bfe_u32 v3, v0, 2, 2
    v_lshl_add_u32 v{VO}, v3, 15, v{VO}
    v_and_b32 v3, 3, v0
    v_lshl_add_u32 v{VO}, v3, 4, v{VO}
    s_lshl_b32 s24, s3, 6
    s_add_u32 s24, s24, {WS_Z1}
    s_add_u32 s25, s24, 16384
    s_add_u32 s26, s24, 524288
    s_add_u32 s27, s24, {524288+16384}""")
    RE = ra(16); IM = ra(16); SS = ra(8); T = ra(16)
    for j in range(8):
        k(f"s_waitcnt vmcnt({15-2*j})")
        unpack_bf16(k, RE + 2*j, XR + j)
        unpack_bf16(k, IM + 2*j, XI + j)
        padd(k, T + 2*j, RE + 2*j, IM + 2*j)
        k(f"v_add_f32 v{SS+j}, v{T+2*j}, v{T+2*j+1}")
    stamp(k, 2)
    def reduce8(ldsoff, dst4):
        for j in range(4): k(f"v_permlane32_swap_b32 v{SS+j}, v{SS+j+4}")
        for j in range(4): k(f"v_add_f32 v{SS+j}, v{SS+j}, v{SS+j+4}")
        for j in range(2): k(f"v_permlane16_swap_b32 v{SS+j}, v{SS+j+2}")
        for j in range(2): k(f"v_add_f32 v{SS+j}, v{SS+j}, v{SS+j+2}")
        row_allreduce(k, [SS, SS + 1])
        k(f"ds_write2_b32 v6, v{SS}, v{SS+1} offset0:{ldsoff//4} offset1:{ldsoff//4+4}")
        k("s_waitcnt lgkmcnt(0)\ns_barrier")
        k(f"ds_read_b128 v[{dst4}:{dst4+3}], v2 offset:{ldsoff}")
        k("s_waitcnt lgkmcnt(0)")
        padd(k, dst4, dst4, dst4 + 2)
        k(f"v_add_f32 v{dst4}, v{dst4}, v{dst4+1}")
        k(f"v_mul_f32 v{dst4}, {f32(1.0/1024)}, v{dst4}")
    R4 = ra(4, 4); MB = ra(); DM = ra()
    reduce8(0, R4)
    round_bf16(k, MB, R4)
    k(f"v_sub_f32 v{DM}, v{R4}, v{MB}")
    SM = 56
    for j in range(8): k(f"v_readlane_b32 s{SM+j}, v{MB}, {j}")
    for j in range(8):
        psub_s(k, RE + 2*j, RE + 2*j, SM + j)
        psub_s(k, IM + 2*j, IM + 2*j, SM + j)
    for j in range(8):
        pmul(k, T + 2*j, RE + 2*j, RE + 2*j)
    for j in range(8):
        pfma(k, T + 2*j, IM + 2*j, IM + 2*j, T + 2*j)
    for j in range(8):
        k(f"v_add_f32 v{SS+j}, v{T+2*j}, v{T+2*j+1}")
    reduce8(128, R4)
    k(f"v_fma_f32 v{R4}, -v{DM}, v{DM}, v{R4}")
    k(f"v_max_f32 v{R4}, 0, v{R4}")
    round_bf16(k, R4, R4)
    k(f"v_add_f32 v{R4}, {f32(1e-5)}, v{R4}")
    round_bf16(k, R4, R4)
    k(f"v_sqrt_f32 v{R4}, v{R4}")
    round_bf16(k, R4, R4)
    k(f"v_rcp_f32 v{R4}, v{R4}")
    k(f"v_mul_f32 v{R4}, {f32(1.0/32)}, v{R4}")
    SR = 64
    for j in range(8): k(f"v_readlane_b32 s{SR+j}, v{R4}, {j}")
    for j in range(4):
        for ci, A in enumerate((RE, IM)):
            t = T + 2 * (2*j + ci)
            pmul_s(k, t, A + 2*j, SR + j)
    for j in range(4):
        for ci, A in enumerate((RE, IM)):
            t = T + 2 * (2*j + ci)
            pfma_s(k, A + 2*j, A + 2*(j+4), SR + j + 4, t)
            pfma_s(k, A + 2*(j+4), A + 2*(j+4), SR + j + 4, t, nega=True)
    b = [(RE + 2*j, IM + 2*j) for j in range(4)]
    c = [(RE + 2*(j+4), IM + 2*(j+4)) for j in range(4)]
    def cv(): return (ra(2), ra(2))
    X = [cv() for _ in range(8)]
    p, q, ss_, w = cv(), cv(), cv(), cv()
    for i in range(2):
        padd(k, p[i], b[0][i], b[2][i]); psub(k, q[i], b[0][i], b[2][i])
        padd(k, ss_[i], b[1][i], b[3][i]); psub(k, w[i], b[1][i], b[3][i])
    for i in range(2):
        padd(k, X[0][i], p[i], ss_[i]); psub(k, X[4][i], p[i], ss_[i])
    padd(k, X[2][0], q[0], w[1]); psub(k, X[2][1], q[1], w[0])
    psub(k, X[6][0], q[0], w[1]); padd(k, X[6][1], q[1], w[0])
    p, q, ss_, w, u1, u3 = cv(), cv(), cv(), cv(), cv(), cv()
    padd(k, p[0], c[0][0], c[2][1]); psub(k, p[1], c[0][1], c[2][0])
    psub(k, q[0], c[0][0], c[2][1]); padd(k, q[1], c[0][1], c[2][0])
    padd(k, u1[0], c[1][0], c[1][1]); psub(k, u1[1], c[1][1], c[1][0])
    psub(k, u3[0], c[3][1], c[3][0]); padd(k, u3[1], c[3][0], c[3][1])
    padd(k, ss_[0], u1[0], u3[0]); psub(k, ss_[1], u1[1], u3[1])
    psub(k, w[0], u1[0], u3[0]); padd(k, w[1], u1[1], u3[1])
    for i in range(2):
        pfma_s(k, X[1][i], ss_[i], KAP, p[i]); pfma_s(k, X[5][i], ss_[i], KAP, p[i], nega=True)
    pfma_s(k, X[3][0], w[1], KAP, q[0]); pfma_s(k, X[3][1], w[0], KAP, q[1], nega=True)
    pfma_s(k, X[7][0], w[1], KAP, q[0], nega=True); pfma_s(k, X[7][1], w[0], KAP, q[1])
    Y = [X[0]] + [(RE + 2*j, IM + 2*j) for j in range(1, 8)]
    for kk in range(1, 8):
        pmul_s(k, Y[kk][0], X[kk][0], TW + 2*kk)
        pmul_s(k, Y[kk][1], X[kk][1], TW + 2*kk)
    for kk in range(1, 8):
        pfma_s(k, Y[kk][0], X[kk][1], TW + 2*kk + 1, Y[kk][0])
        pfma_s(k, Y[kk][1], X[kk][0], TW + 2*kk + 1, Y[kk][1], nega=True)
    OB = ra(16, 4)
    for kk in range(8):
        for cc in range(2):
            k(f"v_cvt_pk_f16_f32 v{OB + ((kk&1)*2+cc)*4 + (kk>>1)}, v{Y[kk][0]+cc}, v{Y[kk][1]+cc}")
    for g in range(4):
        G = OB + 4*g
        k(f"v_permlane32_swap_b32 v{G}, v{G+2}")
        k(f"v_permlane32_swap_b32 v{G+1}, v{G+3}")
    for g in range(4):
        G = OB + 4*g
        k(f"v_permlane16_swap_b32 v{G}, v{G+1}")
        k(f"v_permlane16_swap_b32 v{G+2}, v{G+3}")
    stamp(k, 3)
    for g in range(4):
        k(f"buffer_store_dwordx4 v[{OB+4*g}:{OB+4*g+3}], v{VO}, s[12:15], s{24+g} offen {K1ST}")
    k.c("WGs 0..3: w_r -> fp32, permuted")
    k("s_cmp_ge_u32 s2, 4\ns_cbranch_scc1 k1_lnd")
    srd(k, 32, 28, 2048)
    k(f"""s_lshl_b32 s22, s2, 8
    v_add_u32 v1, s22, v0
    v_lshlrev_b32 v2, 1, v1
    buffer_load_ushort v6, v2, s[32:35], 0 offen""")
    pos32(k, 5, 1, 4)
    k(f"""s_mov_b32 s22, {WS_PAR + 4*4096}
    s_waitcnt vmcnt(0)
    v_lshlrev_b32 v6, 16, v6
    buffer_store_dword v6, v5, s[12:15], s22 offen
    k1_lnd:""")
    stamp_out(k, 0)
    k("s_endpgm")
    k.c("---------------- mod GEMV partials ----------------")
    k("k1_gemv:")
    stamp(k, 0)
    k(f"""s_load_dwordx4 s[4:7], s[0:1], {A_C}
    s_load_dwordx2 s[20:21], s[0:1], {A_WS}
    s_sub_u32 s3, s2, 256
    s_lshr_b32 s16, s3, 5
    s_and_b32 s17, s3, 31""")
    k.c("s16 = ks (0..7), s17 = nchunk (0..31), tile [128 k][192 n]")
    k(f"""v_lshrrev_b32 v1, 6, v0
    v_bfe_u32 v2, v0, 5, 1
    v_lshl_add_u32 v3, v1, 5, v2
    v_mul_u32_u24 v4, 12288, v3
    v_and_b32 v5, 31, v0
    v_lshl_add_u32 v4, v5, 4, v4
    v_cmp_gt_u32 vcc, 24, v5
    v_mov_b32 v7, 0x7ff00000
    v_cndmask_b32 v4, v7, v4, vcc
    v_and_b32 v5, 15, v0
    v_lshl_add_u32 v5, v5, 1, v3
    v_lshlrev_b32 v5, 1, v5
    s_mul_i32 s18, s16, {128*12288}
    s_mul_i32 s19, s17, 384
    s_add_u32 s18, s18, s19
    s_lshl_b32 s19, s16, 8
    s_waitcnt lgkmcnt(0)""")
    srd(k, 8, 6, 1024 * 6144 * 2)
    srd(k, 12, 4, 2048)
    srd(k, 24, 20, WS_SIZE)
    stamp(k, 1)
    k("buffer_load_ushort v6, v5, s[12:15], s19 offen")
    W = 16
    for i in range(16):
        k(f"buffer_load_dwordx4 v[{W+4*i}:{W+4*i+3}], v4, s[8:11], s18 offen {NT1}")
        if i < 15: k("s_add_u32 s18, s18, 24576")
    ACC = 80; U = 88; SB = 8
    for i in range(8): k(f"v_mov_b32 v{ACC+i}, 0")
    k(f"""s_waitcnt vmcnt(16)
    v_lshlrev_b32 v6, 16, v6
    v_mul_f32 v7, {f32(-math.log2(math.e))}, v6
    v_exp_f32 v7, v7
    v_add_f32 v7, 1.0, v7
    v_rcp_f32 v7, v7
    v_mul_f32 v6, v6, v7""")
    round_bf16(k, 6, 6)
    stamp(k, 2)
    for i in range(16):
        sb = SB + 2 * (i & 1)
        k(f"v_mov_b32_dpp v{sb}, v6 row_newbcast:{i} {DPPM}")
        k(f"s_waitcnt vmcnt({15-i})")
        u = U + 8 * (i & 1)
        for j in range(4): unpack_bf16(k, u + 2*j, W + 4*i + j)
        for j in range(4):
            k(f"v_pk_fma_f32 {P(ACC+2*j)}, {P(u+2*j)}, {P(sb)}, {P(ACC+2*j)} op_sel_hi:[1,0,1]")
    for j in range(4): k(f"v_permlane32_swap_b32 v{ACC+j}, v{ACC+j+4}")
    for j in range(2): padd(k, ACC + 2*j, ACC + 2*j, ACC + 4 + 2*j)
    stamp(k, 3)
    k.c("lane<32: cols 8*cl+0..3 ; lane>=32: cols 8*cl+4..7")
    k(f"""v_and_b32 v5, 31, v0
    v_lshlrev_b32 v5, 5, v5
    v_lshl_add_u32 v5, v2, 4, v5
    v_lshl_add_u32 v5, v1, 10, v5
    ds_write_b128 v5, v[{ACC}:{ACC+3}]
    v_lshlrev_b32 v5, 2, v0
    s_mul_i32 s18, s16, 24576
    s_mul_i32 s19, s17, 768
    s_add_u32 s18, s18, s19
    s_add_u32 s18, s18, {WS_MODP}
    v_cmp_gt_u32 vcc, 192, v0
    v_mov_b32 v7, 0x7ff00000
    v_cndmask_b32 v7, v7, v5, vcc
    s_lshl_b32 s19, s16, 4
    s_add_u32 s19, s19, s17
    s_lshl_b32 s19, s19, 4
    s_add_u32 s19, s19, {WS_MAXP}
    s_cmp_lt_u32 s17, 11
    s_cselect_b32 s22, 0x7fffffff, 0
    v_lshlrev_b32 v1, 2, v1
    s_waitcnt lgkmcnt(0)
    s_barrier
    ds_read2st64_b32 v[8:9], v5 offset0:0 offset1:4
    ds_read2st64_b32 v[10:11], v5 offset0:8 offset1:12
    s_waitcnt lgkmcnt(0)
    v_pk_add_f32 v[8:9], v[8:9], v[10:11]
    v_add_f32 v8, v8, v9
    buffer_store_dword v8, v7, s[24:27], s18 offen
    s_cmp_ge_u32 s17, 16
    s_cbranch_scc1 k1_gdone
    v_and_b32 v9, s22, v8""")
    wave_reduce_to63(k, [9], "v_max_u32")
    k("""s_mov_b32 exec_lo, 0
    s_mov_b32 exec_hi, 0x80000000
    buffer_store_dword v9, v1, s[24:27], s19 offen
    k1_gdone:""")
    stamp_out(k, 0, 7, 24)
    k("""k1_done:
    s_endpgm""")
    return k

def top2(k, KB, s1, s2, tmp):
    m1, m2, c = tmp, tmp + 1, tmp + 2
    k(f"v_max_u32 v{m1}, v{KB}, v{KB+1}")
    k(f"v_min_u32 v{m2}, v{KB}, v{KB+1}")
    for i in range(2, 8):
        k(f"v_med3_u32 v{m2}, v{m1}, v{m2}, v{KB+i}")
        k(f"v_max_u32 v{m1}, v{m1}, v{KB+i}")
    k(f"v_mov_b32 v{c}, v{m1}")
    wave_reduce_to63(k, [c], "v_max_u32")
    k(f"v_readlane_b32 s{s1}, v{c}, 63")
    k(f"v_cmp_eq_u32 vcc, s{s1}, v{m1}")
    k(f"v_cndmask_b32 v{c}, v{m1}, v{m2}, vcc")
    wave_reduce_to63(k, [c], "v_max_u32")
    k(f"v_readlane_b32 s{s2}, v{c}, 63")


L_C = 0
L_P = 16384
L_Y = 36864
L_KEY = L_Y + 5 * 4608
L_W = 60416
KB_LDS = L_W + 65536
SL1 = int(os.environ.get("SL1", "6"))
SL2 = int(os.environ.get("SL2", "4"))
XFAST = int(os.environ.get("XFAST", "3"))
B2AT = int(os.environ.get("B2AT", "2"))
LDF = os.environ.get("LDF", "sc1")
SPIN = "0x40000"

def chk_sent(k, regs, tmp):
    regs = list(regs)
    k(f"v_max3_u32 v{tmp}, v{regs[0]}, v{regs[1]}, v{regs[2]}")
    regs = regs[3:]
    while len(regs) >= 2:
        k(f"v_max3_u32 v{tmp}, v{tmp}, v{regs[0]}, v{regs[1]}"); regs = regs[2:]
    if regs: k(f"v_max_u32 v{tmp}, v{tmp}, v{regs[0]}")
    k(f"v_cmp_eq_u32 vcc, -1, v{tmp}")

def poll_records(k, lab, base, soff, tmp):
    k(f"s_mov_b32 s83, 0\n{lab}:")
    for j in range(2):
        k(f"buffer_load_dwordx4 v[{base+4*j}:{base+4*j+3}], v3, s[12:15], s{soff} offen offset:{j*1024} sc1")
    k("s_waitcnt vmcnt(0)")
    chk_sent(k, range(base, base + 8), tmp)
    k(f"""s_cbranch_vccz {lab}x
    s_sleep {SL2}
    s_add_u32 s83, s83, 1
    s_cmp_lt_u32 s83, {SPIN}
    s_cbranch_scc1 {lab}
    {lab}x:""")

def gen_kb():
    k = K("kb_kernel")
    stamp_init(k)
    k(f"""s_cmp_ge_u32 s2, 256
    s_cbranch_scc1 kb_done""")
    stamp(k, 0)
    k(f"""s_load_dwordx2 s[4:5], s[0:1], {A_X}
    s_load_dwordx2 s[6:7], s[0:1], {A_WS}
    s_load_dwordx2 s[20:21], s[0:1], {A_OUT}
    s_load_dwordx4 s[48:51], s[0:1], {A_WG}
    s_load_dwordx2 s[56:57], s[0:1], {A_WD}
    s_load_dwordx2 s[58:59], s[0:1], {A_WR}
    v_lshrrev_b32 v1, 6, v0
    v_and_b32 v2, 63, v0
    v_readfirstlane_b32 s16, v1
    v_lshlrev_b32 v3, 4, v2""")
    XR, ZA, ZB, CS, SAR = 8, 16, 24, 32, 40
    ZAD, YW, YRA, YRB, YRC, FA, DMA = 48, 49, 50, 51, 52, 53, 54
    BRE, BIM, TC, TS, W, D1R, D1I = 56, 72, 88, 104, 120, 136, 152
    GA, SBv, C1, GBv, WR = 168, 184, 200, 216, 232
    k.c("phase-B load address (A waves) / finalize address (wave 4)")
    k(f"""v_and_b32 v5, 15, v0
    v_bfe_u32 v6, v0, 4, 2
    v_lshlrev_b32 v4, 12, v6
    v_lshl_add_u32 v4, v5, 6, v4
    v_lshl_add_u32 v4, v1, 4, v4
    s_and_b32 s40, s2, 7
    s_lshr_b32 s41, s2, 3
    s_lshl_b32 s42, s40, 19
    s_lshl_b32 s43, s41, 14
    s_add_u32 s42, s42, s43
    s_add_u32 s42, s42, {WS_Z1}
    v_lshrrev_b32 v7, 3, v2
    v_mul_u32_u24 v7, 24576, v7
    v_and_b32 v16, 7, v0
    v_lshl_add_u32 v7, v16, 4, v7
    s_lshl_b32 s43, s2, 7
    s_add_u32 s43, s43, {WS_MODP}
    s_mov_b32 s46, {WS_MAXP}""")
    rho_map(k, 3, 17, 18)
    k.c("s16 = wave ; s17 = row ; s44 = 1 if this wave runs an FFT ; s45 = y slot")
    k(f"""s_and_b32 s45, s16, 3
    s_lshl_b32 s17, s45, 8
    s_add_u32 s17, s17, s3
    s_sub_u32 s18, 2048, s17
    s_cmp_eq_u32 s17, 0
    s_cselect_b32 s18, 1024, s18
    s_cselect_b32 s44, 1, 0
    s_cselect_b32 s19, s16, s45
    s_mov_b32 s45, s19
    s_cmp_ge_u32 s16, 4
    s_cselect_b32 s17, s18, s17
    s_cselect_b32 s44, s44, 1
    s_lshl_b32 s19, s17, 11""")
    k.c("shared FFT constants: wave w computes i = 2w, 2w+1 ; idx = 8*(w>>1) + 2*(w&1) + 4h + {0,1}")
    c = 120
    k(f"""v_and_b32 v{c}, 31, v0
    v_cvt_f32_u32 v{c}, v{c}
    v_mul_f32 v{c}, {f32(1.0/1024)}, v{c}
    v_lshrrev_b32 v{c+1}, 7, v0
    v_lshlrev_b32 v{c+1}, 3, v{c+1}
    v_bfe_u32 v{c+2}, v0, 6, 1
    v_lshl_add_u32 v{c+1}, v{c+2}, 1, v{c+1}
    v_bfe_u32 v{c+2}, v0, 5, 1
    v_lshl_add_u32 v{c+1}, v{c+2}, 2, v{c+1}
    v_cvt_f32_u32 v{c+1}, v{c+1}
    v_mul_f32 v{c+4}, v{c}, v{c+1}
    v_add_f32 v{c+5}, v{c+4}, v{c}
    v_mul_f32 v{c+6}, {f32(32.0)}, v{c+4}
    v_mul_f32 v{c+7}, {f32(32.0)}, v{c+5}
    v_fract_f32 v{c+6}, v{c+6}
    v_fract_f32 v{c+7}, v{c+7}
    v_cos_f32 v{c+8}, v{c+4}
    v_cos_f32 v{c+9}, v{c+5}
    v_sin_f32 v{c+10}, v{c+4}
    v_sin_f32 v{c+11}, v{c+5}
    v_cos_f32 v{c+12}, v{c+6}
    v_cos_f32 v{c+13}, v{c+7}
    v_sin_f32 v{c+14}, v{c+6}
    v_sin_f32 v{c+15}, v{c+7}
    s_waitcnt lgkmcnt(0)""")
    srd(k, 12, 6, WS_SIZE)
    srd(k, 8, 4, 2048 * 1024 * 2)
    stamp(k, 1)
    L = 16
    k("s_cmp_ge_u32 s16, 4\ns_cbranch_scc1 kb_l1")
    for j in range(4):
        k(f"buffer_load_dwordx4 v[{L+4*j}:{L+4*j+3}], v4, s[12:15], s42 offen offset:{j*1024}")
    k(f"""s_branch kb_l2
    kb_l1:
    s_cmp_lg_u32 s16, 4
    s_cbranch_scc1 kb_l2
    s_cmp_ge_u32 s2, 192
    s_cbranch_scc1 kb_l2
    buffer_load_dwordx4 v[16:19], v7, s[12:15], s43 offen
    buffer_load_dwordx4 v[20:23], v3, s[12:15], s46 offen
    buffer_load_dwordx4 v[24:27], v3, s[12:15], s46 offen offset:1024
    kb_l2:""")
    for j in range(2):
        k(f"buffer_load_dwordx4 v[{XR+4*j}:{XR+4*j+3}], v3, s[8:11], s19 offen offset:{j*1024}")
    k(f"""v_lshrrev_b32 v{c+1}, 7, v0
    v_lshl_add_u32 v{c+1}, v{c+1}, 10, v3
    v_bfe_u32 v{c+2}, v0, 6, 1
    v_lshl_add_u32 v{c+1}, v{c+2}, 3, v{c+1}
    v_cvt_pk_f16_f32 v{c+4}, v{c+12}, v{c+14}
    v_cvt_pk_f16_f32 v{c+5}, v{c+13}, v{c+15}
    v_cvt_pk_f16_f32 v{c+6}, -v{c+14}, v{c+12}
    v_cvt_pk_f16_f32 v{c+7}, -v{c+15}, v{c+13}
    ds_write_b64 v{c+1}, v[{c+4}:{c+5}] offset:{L_C}
    ds_write_b64 v{c+1}, v[{c+6}:{c+7}] offset:{L_C+4096}
    ds_write_b64 v{c+1}, v[{c+8}:{c+9}] offset:{L_C+8192}
    ds_write_b64 v{c+1}, v[{c+10}:{c+11}] offset:{L_C+12288}""")
    srd(k, 24, 20, 2048 * 1024 * 2)
    srd(k, 36, 50, 1024 * 3584 * 2)
    srd(k, 52, 48, 1024 * 3584 * 2)
    srd(k, 60, 56, 1024 * 3584 * 2)
    k.c("MoE mapping: s64 = lg, s65 = kq, s66 = w&3 ; DMA source: row 8*(l>>5) + ((l>>3)&3), piece (l&7) ^ (2*((l>>4)&3))")
    k(f"""s_mul_i32 s64, s40, 28
    s_add_u32 s64, s64, s41
    s_and_b32 s65, s64, 3
    s_lshr_b32 s64, s64, 2
    s_and_b32 s66, s16, 3
    v_bfe_u32 v{DMA}, v0, 5, 1
    v_lshlrev_b32 v{DMA}, 3, v{DMA}
    v_bfe_u32 v248, v0, 3, 2
    v_add_u32 v{DMA}, v{DMA}, v248
    v_mul_u32_u24 v{DMA}, 7168, v{DMA}
    v_bfe_u32 v248, v0, 4, 2
    v_lshlrev_b32 v248, 1, v248
    v_xor_b32 v248, v248, v0
    v_and_b32 v248, 7, v248
    v_lshl_add_u32 v{DMA}, v248, 4, v{DMA}
    s_lshl_b32 s67, s65, 2
    s_add_u32 s67, s67, s66
    s_mul_i32 s67, s67, {64*7168}
    s_lshl_b32 s68, s64, 7
    s_add_u32 s67, s67, s68
    s_lshl_b32 s68, s66, 14
    s_add_u32 s68, s68, {L_W}
    s_waitcnt lgkmcnt(0)
    s_barrier""")
    def slab():
        for ks in range(2):
            for d in range(4):
                rows = 32 * ks + 16 * (d & 1) + 4 * (d >> 1)
                k(f"s_add_u32 s34, s67, {rows*7168}")
                k(f"s_add_u32 s35, s68, {ks*4096 + d*1024}")
                k(f"s_mov_b32 m0, s35")
                k(f"s_add_u32 s35, s35, 8192")
                k(f"buffer_load_dwordx4 v{DMA}, s[52:55], s34 offen lds")
                k(f"s_mov_b32 m0, s35")
                k(f"buffer_load_dwordx4 v{DMA}, s[36:39], s34 offen lds")
    k("s_cmp_ge_u32 s16, 4\ns_cbranch_scc1 kb_b1")
    k.c("================= phase B (A waves): 256-pt DFT over r =================")
    B2R, B2I, T2C, T2S, TMP = 32, 36, 40, 44, 120
    k(f"""v_cvt_f32_u32 v248, v5
    v_mul_f32 v248, {f32(1.0/256)}, v248
    v_cvt_f32_u32 v249, v6
    v_mul_f32 v249, 4.0, v249
    v_mul_f32 v249, v248, v249""")
    for j in range(4):
        if j == 0: k(f"v_mov_b32 v{TMP}, v249")
        else: k(f"v_fmamk_f32 v{TMP+j}, v248, {f32(float(j))}, v249")
    for j in range(4):
        k(f"v_cos_f32 v{T2C+j}, v{TMP+j}")
        k(f"v_sin_f32 v{T2S+j}, v{TMP+j}")
    for j in range(4):
        k(f"v_mul_f32 v{TMP+j}, {f32(16.0)}, v{TMP+j}")
        k(f"v_fract_f32 v{TMP+j}, v{TMP+j}")
    for j in range(4):
        k(f"v_cos_f32 v{TMP+4+j}, v{TMP+j}")
        k(f"v_sin_f32 v{TMP+8+j}, v{TMP+j}")
    for j in range(4):
        k(f"v_cvt_pk_f16_f32 v{B2R+j}, v{TMP+4+j}, v{TMP+8+j}")
        k(f"v_cvt_pk_f16_f32 v{B2I+j}, -v{TMP+8+j}, v{TMP+4+j}")
    k(f"""v_bfe_u32 v5, v0, 1, 2
    v_xor_b32 v5, v5, v1
    v_lshlrev_b32 v5, 4, v5
    v_lshl_add_u32 v5, v2, 6, v5
    v_lshlrev_b32 v6, 4, v0
    v_bfe_u32 v7, v0, 2, 4
    v_lshlrev_b32 v7, 18, v7
    v_lshl_add_u32 v7, v1, 16, v7
    v_bfe_u32 v4, v0, 3, 2
    v_xor_b32 v4, v4, v0
    v_and_b32 v4, 3, v4
    v_lshl_add_u32 v7, v4, 4, v7
    s_lshl_b32 s70, s40, 11
    s_lshl_b32 s71, s41, 6
    s_add_u32 s70, s70, s71
    s_add_u32 s70, s70, {WS_ZF}
    s_add_u32 s71, s70, 16384
    s_add_u32 s72, s70, 32768
    s_add_u32 s73, s70, 49152
    s_waitcnt vmcnt(2)""")
    stamp(k, 2)
    for j in range(4):
        for cc in range(j + 1, 4):
            k(f"v_swap_b32 v{L+4*j+cc}, v{L+4*cc+j}")
    D1 = 136
    for cc in range(4):
        k(f"v_mfma_f32_16x16x32_f16 v[{D1+8*cc}:{D1+8*cc+3}], v[{L+4*cc}:{L+4*cc+3}], v[{B2R}:{B2R+3}], 0")
        k(f"v_mfma_f32_16x16x32_f16 v[{D1+8*cc+4}:{D1+8*cc+7}], v[{L+4*cc}:{L+4*cc+3}], v[{B2I}:{B2I+3}], 0")
    V = 168; VT = 184; D2 = 200; O = L
    for cc in range(4):
        re, im = D1 + 8*cc, D1 + 8*cc + 4
        t = VT + 8 * (cc & 1)
        for h in range(2):
            pmul(k, t + 2*h, re + 2*h, T2C + 2*h)
            pmul(k, t + 4 + 2*h, im + 2*h, T2C + 2*h)
        for h in range(2):
            pfma(k, t + 2*h, im + 2*h, T2S + 2*h, t + 2*h)
            pfma(k, t + 4 + 2*h, re + 2*h, T2S + 2*h, t + 4 + 2*h, nega=True)
        for i in range(4):
            k(f"v_cvt_pk_f16_f32 v{V+4*cc+i}, v{t+i}, v{t+4+i}")
        k(f"v_mfma_f32_16x16x32_f16 v[{D2+8*cc}:{D2+8*cc+3}], v[{V+4*cc}:{V+4*cc+3}], v[{B2R}:{B2R+3}], 0")
        k(f"v_mfma_f32_16x16x32_f16 v[{D2+8*cc+4}:{D2+8*cc+7}], v[{V+4*cc}:{V+4*cc+3}], v[{B2I}:{B2I+3}], 0")
    for cc in range(4):
        for i in range(4):
            k(f"v_cvt_pk_f16_f32 v{O+4*i+cc}, v{D2+8*cc+i}, v{D2+8*cc+4+i}")
    for i in range(4):
        k(f"ds_write_b128 v5, v[{O+4*i}:{O+4*i+3}] offset:{L_P+i*4096}")
    k("s_waitcnt lgkmcnt(0)\ns_barrier")
    O2 = 168
    for i in range(4):
        k(f"ds_read_b128 v[{O2+4*i}:{O2+4*i+3}], v6 offset:{L_P+i*4096}")
    for i in range(4):
        k(f"s_waitcnt lgkmcnt({3-i})")
        k(f"buffer_store_dwordx4 v[{O2+4*i}:{O2+4*i+3}], v7, s[12:15], s{70+i} offen sc1")
    stamp(k, 3)
    k("s_branch kb_j1")
    k.c("================= B waves: weight stream (5..7) / mod finalize (4) =================")
    k(f"""kb_b1:
    s_cmp_eq_u32 s16, 4
    s_cbranch_scc1 kb_fin
    s_cmp_ge_u32 s2, 224
    s_cbranch_scc1 kb_b2""")
    slab()
    k(f"""s_branch kb_b2
    kb_fin:
    s_cmp_ge_u32 s2, 192
    s_cbranch_scc1 kb_b2
    s_lshr_b32 s70, s2, 5
    s_and_b32 s71, s2, 31
    s_lshl_b32 s71, s71, 5
    v_and_b32 v4, 7, v0
    v_lshlrev_b32 v4, 2, v4
    v_bfe_u32 v5, v0, 4, 2
    v_add3_u32 v4, v4, v5, s71""")
    k.c("s70 = vec, v4 = column")
    pos16(k, 5, 4, 7)
    pos32(k, 6, 4, 7)
    k(f"""s_cmp_eq_u32 s70, 1
    s_cselect_b32 s72, 1.0, 0
    s_cmp_eq_u32 s70, 4
    s_cselect_b32 s72, 1.0, s72
    s_waitcnt vmcnt(2)
    v_max3_u32 v20, v20, v21, v22
    v_max3_u32 v23, v23, v24, v25
    v_max3_u32 v20, v20, v26, v27
    v_max_u32 v20, v20, v23
    v_permlane32_swap_b32 v16, v18
    v_permlane32_swap_b32 v17, v19""")
    padd(k, 16, 16, 18)
    k("v_permlane16_swap_b32 v16, v17")
    k("v_add_f32 v16, v16, v17")
    k(f"v_add_f32_dpp v16, v16, v16 row_ror:8 {DPPM}")
    wave_reduce_to63(k, [20], "v_max_u32")
    round_bf16(k, 16, 16)
    k(f"""v_mul_f32 v20, {f32(8.25)}, v20
    v_add_f32 v16, s72, v16
    v_add_f32 v20, 1.0, v20
    v_frexp_exp_i32_f32 v20, v20
    v_readlane_b32 s73, v20, 63""")
    round_bf16(k, 16, 16)
    k.c("K = e+1 ; exponent: sa 7-K, ca -K, ga K+4, others 0")
    k(f"""s_sub_u32 s74, 6, s73
    s_sub_u32 s75, -1, s73
    s_add_u32 s76, s73, 5
    s_cmp_eq_u32 s70, 0
    s_cselect_b32 s74, s74, 0
    s_cmp_eq_u32 s70, 1
    s_cselect_b32 s74, s75, s74
    s_cmp_eq_u32 s70, 2
    s_cselect_b32 s74, s76, s74
    v_ldexp_f32 v16, v16, s74
    s_mov_b32 exec_lo, 0x00ff00ff
    s_mov_b32 exec_hi, 0x00ff00ff
    s_cmp_ge_u32 s70, 2
    s_cbranch_scc1 kb_fin32
    v_cvt_f16_f32 v16, v16
    s_xor_b32 s75, s70, 1
    s_lshl_b32 s75, s75, 11
    s_add_u32 s75, s75, {WS_CS}
    buffer_store_short v16, v5, s[12:15], s75 offen sc1
    s_branch kb_find
    kb_fin32:
    s_lshl_b32 s75, s70, 12
    s_add_u32 s75, s75, {WS_PAR - 2*4096}
    buffer_store_dword v16, v6, s[12:15], s75 offen sc1
    kb_find:
    s_mov_b64 exec, -1
    kb_b2:""")
    stamp(k, 3)
    k("s_barrier")
    k("kb_j1:")
    k.c("addresses for phase C")
    k(f"""s_mul_i32 s45, s45, 4608
    s_add_u32 s45, s45, {L_Y}
    s_sub_u32 s18, 2048, s17
    s_and_b32 s18, s18, 2047
    s_lshl_b32 s18, s18, 11
    s_add_u32 s28, s19, {WS_ZF}
    s_add_u32 s29, s18, {WS_ZF}
    s_mov_b32 s30, {WS_CS}
    s_lshl_b32 s77, s40, 11
    s_add_u32 s78, s77, {WS_KEY}
    s_add_u32 s77, s77, {WS_FLAG}
    s_lshl_b32 s79, s2, 3
    s_add_u32 s80, s79, {WS_KEY}
    s_add_u32 s79, s79, {WS_FLAG}
    v_lshlrev_b32 v{FA}, 11, v2
    v_and_b32 v248, 0x38, v0
    v_lshlrev_b32 v{ZAD}, 4, v248
    v_and_b32 v248, 1, v0
    v_lshl_add_u32 v{ZAD}, v248, 6, v{ZAD}
    v_bfe_u32 v248, v0, 1, 2
    v_lshl_add_u32 v{ZAD}, v248, 4, v{ZAD}
    v_and_b32 v248, 31, v0
    v_mul_u32_u24 v248, 144, v248
    v_bfe_u32 v249, v0, 5, 1
    v_lshl_add_u32 v248, v249, 4, v248
    v_add_u32 v{YW}, s45, v248
    v_sub_u32 v248, 63, v2
    s_cmp_eq_u32 s44, 1
    s_cselect_b64 vcc, -1, 0
    v_cndmask_b32 v248, v248, v2, vcc
    v_lshrrev_b32 v249, 2, v248
    v_mul_u32_u24 v249, 144, v249
    v_and_b32 v248, 3, v248
    v_lshl_add_u32 v248, v248, 5, v249
    v_add_u32 v{YRA}, s45, v248
    v_sub_u32 v248, 128, v2
    v_and_b32 v248, 127, v248
    v_lshrrev_b32 v249, 2, v248
    v_mul_u32_u24 v249, 144, v249
    v_and_b32 v248, 3, v248
    v_lshl_add_u32 v248, v248, 5, v249
    v_add_u32 v{YRB}, s45, v248
    v_sub_u32 v248, 64, v2
    v_lshrrev_b32 v249, 2, v248
    v_mul_u32_u24 v249, 144, v249
    v_and_b32 v248, 3, v248
    v_lshl_add_u32 v248, v248, 5, v249
    v_add_u32 v{YRC}, s45, v248
    v_mov_b32 v4, 1
    v_mov_b32 v5, 1
    s_cmp_eq_u32 s44, 0
    s_cbranch_scc1 kb_nc""")
    for a, base in enumerate((BRE, BIM, TC, TS)):
        for q in range(4):
            k(f"ds_read_b128 v[{base+4*q}:{base+4*q+3}], v3 offset:{L_C+a*4096+q*1024}")
    k(f"""kb_nc:
    s_cmp_gt_u32 s16, 4
    s_cbranch_scc1 kb_nw
    s_waitcnt vmcnt(0)
    kb_nw:""")
    stamp(k, 4)
    k(f"""s_barrier
    s_cmp_lg_u32 s16, 0
    s_cbranch_scc1 kb_np
    s_mov_b64 exec, 0xff
    buffer_store_dwordx2 v[4:5], v{FA}, s[12:15], s79 offen sc1
    s_mov_b64 exec, -1
    s_sleep {SL1}""")
    poll_records(k, "kb_pf", 16, 77, 6)
    k("kb_np:")
    k("s_barrier")
    stamp(k, 5)
    k.c("================= phase C: hidden-dim DFT + LN2 =================")
    k("""s_cmp_eq_u32 s44, 0
    s_cbranch_scc1 kb_noz""")
    for j in range(2):
        k(f"buffer_load_dwordx4 v[{ZA+4*j}:{ZA+4*j+3}], v{ZAD}, s[12:15], s28 offen offset:{j*1024} {LDF}")
        k(f"buffer_load_dwordx4 v[{ZB+4*j}:{ZB+4*j+3}], v{ZAD}, s[12:15], s29 offen offset:{j*1024} {LDF}")
    for j in range(2):
        k(f"buffer_load_dwordx4 v[{CS+4*j}:{CS+4*j+3}], v3, s[12:15], s30 offen offset:{j*1024} {LDF}")
    k("s_cmp_lg_u32 s17, 0\ns_cbranch_scc1 kb_noz")
    for j in range(2):
        k(f"buffer_load_dwordx4 v[{SAR+4*j}:{SAR+4*j+3}], v3, s[12:15], s30 offen offset:{2048+j*1024} {LDF}")
    k(f"""kb_noz:
    s_barrier
    s_cmp_lt_u32 s16, 4
    s_cbranch_scc1 kb_nodma
    s_lshl_b32 s31, s66, 10
    s_add_u32 s32, s31, {WS_PAR}
    s_add_u32 s31, s31, {L_P}""")
    for vec in range(5):
        k("s_mov_b32 m0, s31")
        k("s_add_u32 s31, s31, 4096")
        k(f"buffer_load_dwordx4 v3, s[12:15], s32 offen {LDF} lds")
        if vec < 4: k("s_add_u32 s32, s32, 4096")
    WD = BRE
    k(f"""kb_nodma:
    s_barrier
    s_cmp_lt_u32 s16, 4
    s_cbranch_scc1 kb_w0
    s_cmp_ge_u32 s2, 224
    s_cbranch_scc1 kb_w0
    v_lshlrev_b32 v4, 3, v2
    s_lshl_b32 s18, s64, 2
    s_add_u32 s18, s18, s66
    s_lshl_b32 s18, s18, 15
    s_lshl_b32 s31, s65, 9
    s_add_u32 s18, s18, s31
    s_cmp_lg_u32 s16, 4
    s_cbranch_scc1 kb_s2""")
    slab()
    k("s_waitcnt vmcnt(16)\nkb_s2:")
    k.c("w_down rows (lg*64 + w*16 + f), cols kq*256 + 4*lane")
    for f in range(16):
        off = (f & 1) * 2048
        k(f"buffer_load_dwordx2 v[{WD+2*f}:{WD+2*f+1}], v4, s[60:63], s18 offen offset:{off}")
        if f & 1 and f < 15: k("s_add_u32 s18, s18, 4096")
    k("""s_cmp_eq_u32 s16, 4
    s_cbranch_scc1 kb_nofft
    s_waitcnt vmcnt(16)
    s_branch kb_nofft
    kb_w0:
    s_waitcnt vmcnt(0)
    s_cmp_eq_u32 s44, 0
    s_cbranch_scc1 kb_nofft""")
    stamp(k, 6)
    preads = []
    for vec, base in enumerate((GA, SBv, C1, GBv, WR)):
        for q in range(4):
            preads.append(f"ds_read_b128 v[{base+4*q}:{base+4*q+3}], v3 offset:{L_P+vec*4096+q*1024}")
    for i in range(8):
        k(f"v_pk_add_f16 v{W+i}, v{ZA+i}, v{ZB+i} neg_hi:[0,1]")
    for i in range(8):
        k(f"v_pk_add_f16 v{W+8+i}, v{ZA+i}, v{ZB+i} op_sel:[1,1] op_sel_hi:[0,0] neg_hi:[1,0]")
    k(f"""s_waitcnt lgkmcnt(0)
    s_cmp_eq_u32 s17, 0
    s_cbranch_scc1 kb_sa""")
    def modul(j):
        for i in range(4*j, 4*j + 4):
            b = i & 1
            k(f"v_pk_mul_f16 v{W+i}, v{W+i}, v{CS+(i>>1)} op_sel:[0,{b}] op_sel_hi:[1,{b}]")
    def st1(j, part):
        D, B = (D1R, BRE) if part == 0 else (D1I, BIM)
        cc = "0" if j == 0 else f"v[{D}:{D+15}]"
        k(f"v_mfma_f32_32x32x16_f16 v[{D}:{D+15}], v[{W+4*j}:{W+4*j+3}], v[{B+4*j}:{B+4*j+3}], {cc}")
    modul(0); modul(1)
    st1(0, 0); modul(2); st1(0, 1); modul(3)
    k("kb_st1:")
    pr = list(preads)
    for j in range(1, 4):
        for part in range(2): st1(j, part)
    VR = ZA; VI = BIM; Y = CS
    for j in range(4):
        for i in range(2*j, 2*j + 2):
            pmul(k, VR + 2*i, D1R + 2*i, TC + 2*i)
            pmul(k, VI + 2*i, D1I + 2*i, TC + 2*i)
        for i in range(2*j, 2*j + 2):
            pfma(k, VR + 2*i, D1I + 2*i, TS + 2*i, VR + 2*i)
            pfma(k, VI + 2*i, D1R + 2*i, TS + 2*i, VI + 2*i, nega=True)
        for i in range(4*j, 4*j + 4):
            k(f"v_cvt_pk_f16_f32 v{W+i}, v{VR+i}, v{VI+i}")
        if j > 0:
            jj = j - 1
            cr = "0" if jj == 0 else f"v[{Y}:{Y+15}]"
            k(f"v_mfma_f32_32x32x16_f16 v[{Y}:{Y+15}], v[{W+4*jj}:{W+4*jj+3}], v[{BRE+4*jj}:{BRE+4*jj+3}], {cr}")
        if j == B2AT: k("s_barrier")
        if j >= B2AT and j < 3:
            for _ in range(20 // (4 - B2AT)): k(pr.pop(0))
    k(f"v_mfma_f32_32x32x16_f16 v[{Y}:{Y+15}], v[{W+12}:{W+15}], v[{BRE+12}:{BRE+15}], v[{Y}:{Y+15}]")
    for x in pr: k(x)
    XF = D1I; YN = D1R; YE = ZA; X2 = XF
    for q in range(4):
        k(f"ds_write_b128 v{YW}, v[{Y+4*q}:{Y+4*q+3}] offset:{q*32}")
    stamp(k, 7)
    k("s_waitcnt lgkmcnt(0)\ns_barrier")
    for q in range(4):
        k(f"ds_read_b128 v[{YN+4*q}:{YN+4*q+3}], v{YRA} offset:{(q>>1)*2304 + (q&1)*16}")
    for i in range(8): unpack_bf16(k, XF + 2*i, XR + i)
    k("s_waitcnt lgkmcnt(0)")
    for i in range(8): pfma(k, X2 + 2*i, GA + 2*i, YN + 2*i, XF + 2*i)
    k("s_branch kb_join")
    k.c("row 0: add the sa term (rare path)")
    k("kb_sa:")
    for j in range(4): modul(j)
    for i in range(8):
        k(f"v_and_b32 v{ZA+i}, 0xffff, v{SAR+i}")
        k(f"v_lshrrev_b32 v{ZB+i}, 16, v{SAR+i}")
    for i in range(8):
        k(f"v_pk_add_f16 v{W+2*i}, v{W+2*i}, v{ZA+i}")
        k(f"v_pk_add_f16 v{W+2*i+1}, v{W+2*i+1}, v{ZB+i}")
    st1(0, 0); st1(0, 1)
    k("s_branch kb_st1")
    k.c("mirror waves")
    k("kb_nofft:")
    stamp(k, 6)
    for i in range(8): unpack_bf16(k, XF + 2*i, XR + i)
    k("s_barrier")
    for x in preads: k(x)
    stamp(k, 7)
    k("s_barrier")
    for q in range(4):
        k(f"ds_read_b128 v[{YN+4*q}:{YN+4*q+3}], v{YRA} offset:{(q>>1)*2304 + (q&1)*16}")
    k(f"""ds_read_b32 v{YE}, v{YRB}
    ds_read_b32 v{YE+1}, v{YRC}
    s_waitcnt lgkmcnt(0)""")
    for hf in range(2):
        for j in range(8):
            src = YE + hf if j == 0 else YN + 8 * (1 - hf) + 8 - j
            k(f"v_fmac_f32 v{X2+8*hf+j}, v{GA+8*hf+j}, v{src}")
    k("kb_join:")
    T = W
    for i in range(4): padd(k, T + 2*i, X2 + 4*i, X2 + 4*i + 2)
    padd(k, T, T, T + 2); padd(k, T + 4, T + 4, T + 6); padd(k, T, T, T + 4)
    k(f"v_add_f32 v5, v{T}, v{T+1}")
    k(f"v_mul_f32 v5, {f32(1.0/1024)}, v5")
    wave_reduce_to63(k, [5])
    k("v_readlane_b32 s40, v5, 63")
    Dd = GA
    for i in range(8): psub_s(k, Dd + 2*i, X2 + 2*i, 40)
    for i in range(8): pmul(k, C1 + 2*i, Dd + 2*i, C1 + 2*i)
    A0, A1, A2, A3 = T, T + 2, T + 4, T + 6
    pmul(k, A0, Dd, Dd); pmul(k, A1, Dd + 2, Dd + 2); pmul(k, A2, C1, WR); pmul(k, A3, C1 + 2, WR + 2)
    for i in range(1, 4):
        pfma(k, A0, Dd + 4*i, Dd + 4*i, A0); pfma(k, A1, Dd + 4*i + 2, Dd + 4*i + 2, A1)
        pfma(k, A2, C1 + 4*i, WR + 4*i, A2); pfma(k, A3, C1 + 4*i + 2, WR + 4*i + 2, A3)
    padd(k, A0, A0, A1); padd(k, A2, A2, A3)
    k(f"v_add_f32 v5, v{A0}, v{A0+1}")
    k(f"v_add_f32 v6, v{A2}, v{A2+1}")
    wave_reduce_to63(k, [5, 6])
    k(f"v_mul_f32 v5, {f32(1.0/1024)}, v5")
    round_bf16(k, 5, 5)
    k(f"v_add_f32 v5, {f32(1e-5)}, v5")
    round_bf16(k, 5, 5)
    k("v_sqrt_f32 v5, v5")
    round_bf16(k, 5, 5)
    k("v_rcp_f32 v5, v5")
    k("v_mul_f32 v6, v6, v5")
    k("v_readlane_b32 s40, v5, 63")
    k("v_readlane_b32 s41, v6, 63")
    k(f"""s_ashr_i32 s42, s41, 31
    s_or_b32 s42, s42, 0x80000000
    s_xor_b32 s41, s41, s42
    s_min_u32 s41, s41, 0xfffff000
    s_and_b32 s41, s41, 0xfffff800
    s_or_b32 s41, s41, s17
    v_mov_b32 v5, s41
    v_lshlrev_b32 v6, 2, v1
    ds_write_b32 v6, v5 offset:{L_KEY}""")
    stamp(k, 8)
    H2 = C1; HP = CS
    for i in range(8): pfma_s(k, H2 + 2*i, C1 + 2*i, 40, SBv + 2*i)
    for i in range(8): k(f"v_cvt_pk_bf16_f32 v{HP+i}, v{H2+2*i}, v{H2+2*i+1}")
    k(f"""v_and_b32 v6, 7, v0
    v_lshlrev_b32 v6, 2, v6
    s_add_u32 s43, s19, {WS_H2}
    s_waitcnt lgkmcnt(0)
    s_barrier
    ds_read_b32 v7, v6 offset:{L_KEY}""")
    for i in range(8): pfma(k, X2 + 2*i, GBv + 2*i, H2 + 2*i, X2 + 2*i)
    k(f"""s_waitcnt lgkmcnt(0)
    v_cmp_lt_u32 vcc, s41, v7
    s_and_b32 s42, vcc_lo, 0xff
    s_bcnt1_i32_b32 s42, s42
    s_cmp_ge_u32 s42, 2
    s_cbranch_scc1 kb_nocand""")
    for j in range(2):
        k(f"buffer_store_dwordx4 v[{HP+4*j}:{HP+4*j+3}], v3, s[12:15], s43 offen offset:{j*1024} sc1")
    k(f"""s_lshl_b32 s42, s42, 2
    v_mov_b32 v6, s42
    ds_write_b32 v6, v5 offset:{L_KEY+32}
    kb_nocand:""")
    for i in range(8): k(f"v_cvt_pk_bf16_f32 v{XR+i}, v{X2+2*i}, v{X2+2*i+1}")
    for j in range(2):
        k(f"buffer_store_dwordx4 v[{XR+4*j}:{XR+4*j+3}], v3, s[24:27], s19 offen offset:{j*1024} sc1")
    stamp(k, 9)
    k.c("================= phase D: routed FFN =================")
    KB, TA, HA, BF, AC, PB = 16, 28, 32, 56, 120, 152
    k(f"""v_lshrrev_b32 v6, 2, v2
    v_lshlrev_b32 v6, 7, v6
    v_and_b32 v7, 3, v0
    v_lshl_add_u32 v6, v7, 3, v6
    v_add_u32 v6, s68, v6
    v_bfe_u32 v7, v0, 3, 2
    v_lshl_add_u32 v{TA}, v7, 5, v6""")
    for sub in range(1, 4):
        k(f"v_xor_b32 v{TA+sub}, {sub*32}, v{TA}")
    k(f"""v_bfe_u32 v7, v0, 4, 2
    v_lshlrev_b32 v156, 4, v7
    v_lshl_add_u32 v156, v1, 7, v156
    s_lshl_b32 s70, s65, 9
    s_add_u32 s70, s70, {WS_H2}
    v_and_b32 v6, 1, v0
    v_cmp_eq_u32 s[46:47], 1, v6
    v_cmp_eq_u32 s[72:73], 1, v7
    v_cmp_eq_u32 s[74:75], 2, v7
    v_cmp_eq_u32 s[48:49], 3, v7
    v_lshl_add_u32 v157, v1, 10, v3
    v_lshlrev_b32 v158, 10, v7
    v_and_b32 v6, 15, v0
    v_lshl_add_u32 v158, v6, 4, v158
    s_lshl_b32 s71, s64, 12
    s_lshl_b32 s76, s65, 8
    s_add_u32 s76, s76, s71
    s_add_u32 s76, s76, {WS_XA}
    s_add_u32 s77, s76, {WS_XB - WS_XA}
    s_lshl_b32 s81, s66, 10
    s_add_u32 s81, s81, s71
    s_add_u32 s81, s81, {WS_XA}
    s_add_u32 s82, s81, {WS_XB - WS_XA}
    v_mov_b32 v6, 0
    s_waitcnt vmcnt(0) lgkmcnt(0)""")
    stamp(k, 10)
    k(f"""s_barrier
    s_cmp_ge_u32 s16, 4
    s_cbranch_scc1 kb_dB
    s_cmp_lg_u32 s16, 0
    s_cbranch_scc1 kb_nk
    ds_read_b64 v[4:5], v6 offset:{L_KEY+32}
    s_waitcnt lgkmcnt(0)
    s_mov_b64 exec, 0xff
    buffer_store_dwordx2 v[4:5], v{FA}, s[12:15], s80 offen sc1
    s_mov_b64 exec, -1
    kb_nk:
    s_cmp_ge_u32 s2, 224
    s_cbranch_scc1 kb_red""")
    for mat in range(2):
        for ks in range(2):
            for sub in range(4):
                b = BF + ((mat*2 + ks)*4 + sub)*4
                off = mat*8192 + ks*4096
                k(f"ds_read_b64_tr_b16 v[{b}:{b+1}], v{TA+sub} offset:{off}")
                k(f"ds_read_b64_tr_b16 v[{b+2}:{b+3}], v{TA+sub} offset:{off+2048}")
    k(f"s_sleep {SL1}")
    poll_records(k, "kb_pk", KB, 78, 6)
    stamp(k, 11)
    top2(k, KB, 40, 41, 24)
    k(f"""s_and_b32 s40, s40, 0x7ff
    s_and_b32 s41, s41, 0x7ff
    s_lshl_b32 s40, s40, 11
    s_lshl_b32 s41, s41, 11
    v_add_u32 v7, s40, v156
    v_add_u32 v6, s41, v156
    v_cndmask_b32 v6, v7, v6, s[46:47]""")
    for ks in range(2):
        k(f"buffer_load_dwordx4 v[{HA+4*ks}:{HA+4*ks+3}], v6, s[12:15], s70 offen offset:{ks*64} sc1")
    k("s_waitcnt vmcnt(0) lgkmcnt(0)")
    stamp(k, 12)
    for ks in range(2):
        for mat in range(2):
            for sub in range(4):
                a = AC + (mat*4 + sub)*4
                b = BF + ((mat*2 + ks)*4 + sub)*4
                cc = "0" if ks == 0 else f"v[{a}:{a+3}]"
                k(f"v_mfma_f32_16x16x32_bf16 v[{a}:{a+3}], v[{HA+4*ks}:{HA+4*ks+3}], v[{b}:{b+3}], {cc}")
    for mat in range(2):
        for row in range(2):
            k(f"v_cndmask_b32 v{PB+2*mat+row}, v{AC+(mat*4)*4+row}, v{AC+(mat*4+1)*4+row}, s[72:73]")
    for sub, m in ((2, "s[74:75]"), (3, "s[48:49]")):
        for mat in range(2):
            for row in range(2):
                d = PB + 2*mat + row
                k(f"v_cndmask_b32 v{d}, v{d}, v{AC+(mat*4+sub)*4+row}, {m}")
    k(f"""ds_write_b128 v157, v[{PB}:{PB+3}] offset:{L_C}
    s_waitcnt lgkmcnt(0)
    s_barrier
    s_cmp_lg_u32 s16, 0
    s_cbranch_scc1 kb_fin_a""")
    for w in range(1, 4):
        k(f"ds_read_b128 v[{AC+4*w}:{AC+4*w+3}], v3 offset:{L_C+w*1024}")
    k("s_waitcnt lgkmcnt(0)")
    for h in range(2):
        padd(k, PB + 2*h, PB + 2*h, AC + 4 + 2*h); padd(k, AC + 8 + 2*h, AC + 8 + 2*h, AC + 12 + 2*h)
    for h in range(2): padd(k, PB + 2*h, PB + 2*h, AC + 8 + 2*h)
    for i in range(4): k(f"v_min_u32 v{PB+i}, -2, v{PB+i}")
    k(f"""buffer_store_dwordx4 v[{PB}:{PB+3}], v158, s[12:15], s76 offen
    buffer_store_dwordx4 v[{PB}:{PB+3}], v158, s[12:15], s77 offen sc1
    kb_fin_a:""")
    stamp(k, 13)
    stamp_out(k, 1)
    k("s_endpgm")
    k.c("----- B waves: activation + down projection -----")
    k(f"""kb_dB:
    s_cmp_ge_u32 s2, 224
    s_cbranch_scc1 kb_fin_a""")
    WF = 160
    for i in range(32): unpack_bf16(k, WF + 2*i, WD + i)
    k(f"""v_bfe_u32 v5, v0, 7, 1
    v_lshlrev_b32 v5, 18, v5
    v_bfe_u32 v7, v0, 3, 4
    v_lshl_add_u32 v5, v7, 12, v5
    v_and_b32 v7, 7, v0
    v_lshl_add_u32 v5, v7, 3, v5
    s_lshl_b32 s18, s65, 16
    s_lshl_b32 s19, s64, 6
    s_add_u32 s18, s18, s19
    s_add_u32 s18, s18, {WS_PART}
    v_and_b32 v6, 3, v1
    v_lshl_add_u32 v6, v6, 11, v3
    v_and_b32 v7, 255, v0
    v_lshlrev_b32 v7, 3, v7
    s_barrier
    s_sleep {int(os.environ.get("SL3", "2"))}
    s_mov_b32 s83, 0
    kb_px:""")
    R = 16
    for rep in range(XFAST + 1):
        so = 81 if rep < XFAST else 82
        k(f"buffer_load_dwordx4 v[{R}:{R+3}], v3, s[12:15], s{so} offen sc1")
        k("s_waitcnt vmcnt(0)")
        chk_sent(k, range(R, R + 4), 4)
        k("s_cbranch_vccz kb_pxx")
    k(f"""s_add_u32 s83, s83, 1
    s_cmp_lt_u32 s83, {SPIN}
    s_cbranch_scc1 kb_px
    kb_pxx:""")
    stamp(k, 13)
    k(f"v_permlane32_swap_b32 v{R}, v{R+2}")
    k(f"v_permlane32_swap_b32 v{R+1}, v{R+3}")
    padd(k, R, R, R + 2)
    k(f"v_permlane16_swap_b32 v{R}, v{R+1}")
    k(f"v_add_f32 v{R}, v{R}, v{R+1}")
    round_bf16(k, R, R)
    k(f"""v_mul_f32 v{R+1}, {f32(-math.log2(math.e))}, v{R}
    v_exp_f32 v{R+1}, v{R+1}
    v_mov_b32 v{R+2}, v{R}
    v_add_f32 v{R+1}, 1.0, v{R+1}
    v_rcp_f32 v{R+1}, v{R+1}
    v_mov_b32 v{R+3}, v{R}
    v_mul_f32 v{R+1}, v{R}, v{R+1}
    v_permlane32_swap_b32 v{R+2}, v{R+3}""")
    round_bf16(k, R + 1, R + 1)
    k(f"v_mul_f32 v{R+1}, v{R+1}, v{R+3}")
    round_bf16(k, R + 1, R + 1)
    SA = 24
    for f in range(16):
        k(f"v_readlane_b32 s{SA+2*f}, v{R+1}, {f}")
        k(f"v_readlane_b32 s{SA+2*f+1}, v{R+1}, {16+f}")
    Y = 24
    for f in range(16):
        for row in range(2):
            for h in range(2):
                if f == 0: pmul_s(k, Y + 4*row + 2*h, WF + 4*f + 2*h, SA + 2*f + row)
                else: pfma_s(k, Y + 4*row + 2*h, WF + 4*f + 2*h, SA + 2*f + row, Y + 4*row + 2*h)
    for row in range(2):
        k(f"ds_write_b128 v6, v[{Y+4*row}:{Y+4*row+3}] offset:{L_P+row*1024}")
    k("s_waitcnt lgkmcnt(0)\ns_barrier")
    for w in range(4):
        k(f"ds_read_b64 v[{32+2*w}:{33+2*w}], v7 offset:{L_P+w*2048}")
    k("s_waitcnt lgkmcnt(0)")
    padd(k, 32, 32, 34); padd(k, 36, 36, 38); padd(k, 32, 32, 36)
    k("""v_min_u32 v32, -2, v32
    v_min_u32 v33, -2, v33
    buffer_store_dwordx2 v[32:33], v5, s[12:15], s18 offen sc1""")
    stamp(k, 14)
    stamp_out(k, 1)
    k("s_endpgm")
    k.c("----- reducer waves: j = (wg-224)*4 + wave -> row j>>6, 16 columns -----")
    k("kb_red:")
    srd(k, 8, 58, 2048)
    k(f"""s_sub_u32 s17, s2, 224
    s_lshl_b32 s17, s17, 2
    s_add_u32 s17, s17, s16
    s_and_b32 s18, s17, 63
    v_and_b32 v5, 3, v0
    v_lshlrev_b32 v5, 3, v5
    v_and_b32 v6, 1, v0
    v_lshlrev_b32 v6, 10, v6
    v_bfe_u32 v7, v0, 1, 1
    v_lshl_add_u32 v6, v7, 4, v6
    s_lshr_b32 s19, s18, 5
    s_lshl_b32 s19, s19, 11
    s_and_b32 s31, s18, 31
    s_lshl_b32 s31, s31, 5
    s_add_u32 s19, s19, s31
    s_add_u32 s19, s19, {L_P + 3*4096}
    v_add_u32 v6, s19, v6
    ds_read_b128 v[80:83], v6""")
    for j in range(2):
        k(f"buffer_load_dwordx4 v[{40+4*j}:{43+4*j}], v3, s[8:11], 0 offen offset:{j*1024}")
    k(f"s_sleep {SL1}")
    poll_records(k, "kb_pr", KB, 78, 6)
    top2(k, KB, 40, 41, 24)
    k(f"""s_cmp_lt_u32 s17, 64
    s_cselect_b32 s40, s40, s41
    s_and_b32 s40, s40, 0x7ff
    s_lshl_b32 s41, s40, 11
    s_add_u32 s42, s41, {WS_H2}
    s_lshl_b32 s19, s18, 5
    s_add_u32 s41, s41, s19""")
    for j in range(2):
        k(f"buffer_load_dwordx4 v[{32+4*j}:{35+4*j}], v3, s[12:15], s42 offen offset:{j*1024} sc1")
    k("buffer_load_dwordx2 v[84:85], v5, s[24:27], s41 offen sc1")
    for i in range(8): unpack_bf16(k, 48 + 2*i, 40 + i)
    k(f"""s_lshl_b32 s44, s17, 12
    s_add_u32 s44, s44, {WS_PART}
    v_cmp_gt_u32 vcc, 32, v2
    v_mov_b32 v7, 0x7ff00000
    v_cndmask_b32 v7, v7, v3, vcc
    s_waitcnt vmcnt(1)""")
    for i in range(8): unpack_bf16(k, 64 + 2*i, 32 + i)
    pmul(k, 8, 48, 64)
    for i in range(1, 8): pfma(k, 8, 48 + 2*i, 64 + 2*i, 8)
    k("v_add_f32 v8, v8, v9")
    wave_reduce_to63(k, [8])
    round_bf16(k, 8, 8)
    k(f"""v_mul_f32 v8, {f32(-math.log2(math.e))}, v8
    v_exp_f32 v8, v8
    v_add_f32 v8, 1.0, v8
    v_rcp_f32 v8, v8""")
    round_bf16(k, 8, 8)
    k("v_readlane_b32 s46, v8, 63")
    k("s_waitcnt vmcnt(0) lgkmcnt(0)")
    unpack_bf16(k, 44, 84); unpack_bf16(k, 46, 85)
    for h in range(2): pmul_s(k, 80 + 2*h, 80 + 2*h, 46)
    stamp(k, 13)
    L = 16
    k(f"s_sleep {int(os.environ.get('SL4', '16'))}")
    k(f"s_mov_b32 s83, 0\nkb_p2:")
    for j in range(4):
        k(f"buffer_load_dwordx4 v[{L+4*j}:{L+4*j+3}], v{7 if j == 3 else 3}, s[12:15], s44 offen offset:{j*1024} sc1")
    k("s_waitcnt vmcnt(0)")
    chk_sent(k, range(L, L + 16), 12)
    k(f"""s_cbranch_vccz kb_p3
    s_add_u32 s83, s83, 1
    s_cmp_lt_u32 s83, {SPIN}
    s_cbranch_scc1 kb_p2
    kb_p3:""")
    stamp(k, 14)
    for h in range(2):
        padd(k, L + 2*h, L + 2*h, L + 4 + 2*h); padd(k, L + 8 + 2*h, L + 8 + 2*h, L + 12 + 2*h)
    for h in range(2): padd(k, L + 2*h, L + 2*h, L + 8 + 2*h)
    regs = [L, L + 1, L + 2, L + 3]
    for sh in (4, 8):
        for r in regs: k(f"v_add_f32_dpp v{r}, v{r}, v{r} row_ror:{sh} {DPPM}")
    for r in regs: k(f"v_mov_b32 v{r+4}, v{r}")
    for r in regs: k(f"v_permlane16_swap_b32 v{r}, v{r+4}")
    for r in regs: k(f"v_add_f32 v{r}, v{r}, v{r+4}")
    for r in regs: k(f"v_mov_b32 v{r+4}, v{r}")
    for r in regs: k(f"v_permlane32_swap_b32 v{r}, v{r+4}")
    for r in regs: k(f"v_add_f32 v{r}, v{r}, v{r+4}")
    for h in range(2): pfma(k, 44 + 2*h, L + 2*h, 80 + 2*h, 44 + 2*h)
    k(f"""v_cvt_pk_bf16_f32 v12, v44, v45
    v_cvt_pk_bf16_f32 v13, v46, v47
    s_mov_b64 exec, 15
    buffer_store_dwordx2 v[12:13], v5, s[24:27], s41 offen sc1""")
    stamp_out(k, 1)
    k("""kb_done:
    s_endpgm""")
    return k

HEADER = """; adaLN + FNet mixing + MoD block, gfx950.  Generated by gen/gen2.py (hand-written generator).
"""

def main(out):
    ks = [(gen_k1(), 512, 256, 4096), (gen_kb(), 256, 512, KB_LDS)]
    t = HEADER
    for k, g, b, lds in ks:
        t += f"; @launch kernel={k.name} grid=({g},1,1) block=({b},1,1) lds={lds}\n"
    t += '.amdgcn_target "amdgcn-amd-amdhsa--gfx950"\n.text\n'
    for k, *_ in ks: t += k.text()
    t += 'code_end:\n'
    t += '.section .rodata,"a"\n'
    for k, *_ in ks: t += k.desc()
    open(out, "w").write(t)

if __name__ == "__main__":
    main(sys.argv[1] if len(sys.argv) > 1 else "adaLN_cond__spectral_fnet__moe_arch_mod__prompt.s")
```

```python
import math, sys, os
from asmgen import K, f32
import gen2 as G
from gen2 import (srd, P, padd, psub, pmul, pfma, pmul_s, pfma_s, psub_s, unpack_bf16, round_bf16, DPPM,
                  row_allreduce, wave_reduce_to63, RA, pos16, pos32, stamp, stamp_init, stamp_out, chk_sent,
                  A_X, A_WR, A_WG, A_WU, A_WD, A_C, A_WM, A_OUT, A_DBG, A_WS, WS_SIZE)

NAME = "adaLN_cond__spectral_fnet__moe_arch_mod__prompt_kernel"
WS_Z1   = 0x0100000
WS_ZF   = 0x0600000
WS_H2   = 0x0B00000
WS_MODP = 0x1000000
WS_CS   = 0x1040000
WS_MAXP = 0x1041000
WS_PAR  = 0x1042000
WS_FL1  = 0x1050000
WS_FLM  = 0x1054000
WS_FL2  = 0x1058000
WS_PART = 0x1100000
WS_XA   = 0x1140000
WS_XB   = 0x1180000
WS_KEY  = 0x11B8000

L_C = 0; L_P = 16384; L_Y = 36864; L_KEY = L_Y + 9 * 4608; L_ST = L_KEY + 128
L_S = 81920
L_G = 114688
L_T = 16384
LDS = 131072 + 1024
E = lambda n, d: int(os.environ.get(n, str(d)))
SL1, SL2, SL3, SL4, SLX = E("SL1", 6), E("SL2", 4), E("SL3", 2), E("SL4", 16), E("SLX", 60)
XFAST = E("XFAST", 3); B2AT = E("B2AT", 2)
SPIN = "0x40000"

def get_nonce_issue(k, vz, vd):
    k(f"buffer_load_dwordx2 v[{vd}:{vd+1}], v{vz}, s[20:23], 0 offen sc1")
def get_nonce_finish(k, lab, vz, vd):
    k(f"""s_mov_b32 s83, 0
    {lab}:
    v_readfirstlane_b32 s32, v{vd}
    v_readfirstlane_b32 s33, v{vd+1}
    s_cmp_lg_u32 s32, 0
    s_cbranch_scc1 {lab}x
    s_add_u32 s83, s83, 1
    s_cmp_ge_u32 s83, {SPIN}
    s_cbranch_scc1 {lab}x
    buffer_load_dwordx2 v[{vd}:{vd+1}], v{vz}, s[20:23], 0 offen sc1
    s_waitcnt vmcnt(0)
    s_branch {lab}
    {lab}x:""")
def poll_flags(k, lab, base, soff, tmp, extra=0):
    k(f"s_mov_b32 s83, 0\n{lab}:")
    k(f"buffer_load_dwordx4 v[{base}:{base+3}], v3, s[12:15], s{soff} offen sc1")
    if extra == 1:
        k(f"v_and_b32 v{tmp}, 0x70, v3")
        k(f"buffer_load_dwordx4 v[{base+4}:{base+7}], v{tmp}, s[12:15], s{soff} offen offset:1024 sc1")
    if extra == 2:
        k(f"buffer_load_dwordx4 v[{base+4}:{base+7}], v3, s[12:15], s{soff} offen offset:1024 sc1")
    k("s_waitcnt vmcnt(0)")
    n = 8 if extra else 4
    for i in range(n): k(f"v_xor_b32 v{base+i}, s{32 + (i & 1)}, v{base+i}")
    k(f"v_or3_b32 v{tmp}, v{base}, v{base+1}, v{base+2}")
    if extra:
        k(f"v_or3_b32 v{tmp}, v{tmp}, v{base+3}, v{base+4}")
        k(f"v_or3_b32 v{tmp}, v{tmp}, v{base+5}, v{base+6}")
        k(f"v_or_b32 v{tmp}, v{tmp}, v{base+7}")
    else:
        k(f"v_or_b32 v{tmp}, v{tmp}, v{base+3}")
    k(f"""v_cmp_ne_u32 vcc, 0, v{tmp}
    s_cbranch_vccz {lab}x
    s_sleep {SL2}
    s_add_u32 s83, s83, 1
    s_cmp_lt_u32 s83, {SPIN}
    s_cbranch_scc1 {lab}
    {lab}x:""")
def poll_keys(k, lab, base, soff, tmp):
    k(f"s_mov_b32 s83, 0\n{lab}:")
    k(f"buffer_load_dwordx4 v[{base}:{base+3}], v3, s[12:15], s{soff} offen sc1")
    k("s_waitcnt vmcnt(0)")
    chk_sent(k, range(base, base + 4), tmp)
    k(f"""s_cbranch_vccz {lab}x
    s_sleep {SL2}
    s_add_u32 s83, s83, 1
    s_cmp_lt_u32 s83, {SPIN}
    s_cbranch_scc1 {lab}
    {lab}x:""")
def top2(k, KB, s1, s2, tmp):
    m1, m2, c = tmp, tmp + 1, tmp + 2
    k(f"v_max_u32 v{m1}, v{KB}, v{KB+2}")
    k(f"v_min_u32 v{m2}, v{KB}, v{KB+2}")
    k(f"v_max3_u32 v{m2}, v{m2}, v{KB+1}, v{KB+3}")
    k(f"v_mov_b32 v{c}, v{m1}")
    wave_reduce_to63(k, [c], "v_max_u32")
    k(f"v_readlane_b32 s{s1}, v{c}, 63")
    k(f"v_cmp_eq_u32 vcc, s{s1}, v{m1}")
    k(f"v_cndmask_b32 v{c}, v{m1}, v{m2}, vcc")
    wave_reduce_to63(k, [c], "v_max_u32")
    k(f"v_readlane_b32 s{s2}, v{c}, 63")

NON = 6
FA = 62
def phase_A(k):
    k(f"""s_load_dwordx2 s[4:5], s[0:1], {A_X}
    s_load_dwordx4 s[24:27], s[0:1], {A_OUT}
    s_load_dwordx2 s[6:7], s[0:1], {A_WS}
    s_load_dwordx4 s[72:75], s[0:1], {A_C}
    s_memrealtime s[32:33]""")
    k.c("s35 = mm ; s3 = u ; s17 = r ; s39 = 1 for G role ; s64 = cluster / X index ; s65 = kq ; s66 = 1 for X")
    k(f"""s_lshr_b32 s35, s2, 4
    s_lshl_b32 s3, s35, 3
    s_add_u32 s3, s3, s34
    s_sub_u32 s17, 256, s3
    s_cmp_eq_u32 s3, 0
    s_cselect_b32 s17, 128, s17
    s_bfe_u32 s39, s2, 0x10003
    s_cmp_eq_u32 s39, 0
    s_cselect_b32 s17, s3, s17
    s_and_b32 s81, s35, 3
    s_lshr_b32 s40, s35, 2
    s_lshl_b32 s80, s34, 2
    s_mul_i32 s41, s34, 3
    s_add_u32 s41, s41, 4
    s_cmp_lt_u32 s34, 4
    s_cselect_b32 s80, s80, s41
    s_cselect_b32 s82, 0, s39
    s_add_u32 s80, s80, s40
    s_cmp_eq_u32 s40, 3
    s_cselect_b32 s82, s82, 0
    s_lshl_b32 s41, s34, 2
    s_add_u32 s41, s41, s81
    s_sub_u32 s41, s41, 16
    s_cmp_eq_u32 s82, 1
    s_cselect_b32 s80, s41, s80
    s_cmp_ge_u32 s16, 4
    s_cbranch_scc1 a_gemv
    v_lshlrev_b32 v4, 2, v0
    v_and_b32 v5, 7, v0
    v_mul_u32_u24 v6, s17, v5
    v_cvt_f32_u32 v6, v6
    v_mul_f32 v6, {f32(1.0/2048)}, v6
    v_cos_f32 v7, v6
    v_sin_f32 v6, v6
    v_lshlrev_b32 v8, 2, v2
    v_add_u32 v8, {L_ST}, v8
    v_mov_b32 v9, -1
    ds_write_b32 v8, v9
    s_lshl_b32 s36, s17, 11
    s_waitcnt lgkmcnt(0)""")
    srd(k, 8, 4, 2048 * 1024 * 2)
    stamp(k, 1)
    ra = RA(24)
    XR = ra(8); XI = ra(8)
    for j in range(8):
        k(f"buffer_load_dword v{XR+j}, v4, s[8:11], s36 offen")
        k(f"buffer_load_dword v{XI+j}, v4, s[8:11], s36 offen offset:1024")
        if j < 7: k(f"s_add_u32 s36, s36, {256*2048}")
    k("s_barrier")
    srd(k, 12, 6, WS_SIZE)
    srd(k, 20, 26, 256)
    k("s_mov_b32 s26, 4194304\ns_mov_b32 s27, 0x00020000")
    TW = 40
    for kk in range(1, 8):
        k(f"v_readlane_b32 s{TW+2*kk}, v7, {kk}")
        k(f"v_readlane_b32 s{TW+2*kk+1}, v6, {kk}")
    KAP = 38
    k(f"s_mov_b32 s{KAP}, {f32(math.sqrt(0.5))}")
    fft_consts(k)
    VO = ra()
    k(f"""v_lshlrev_b32 v{VO}, 17, v1
    v_lshlrev_b32 v6, 2, v1
    v_bfe_u32 v7, v0, 4, 2
    v_lshl_add_u32 v6, v7, 5, v6
    v_add_u32 v6, {L_ST}, v6
    v_lshlrev_b32 v5, 4, v5
    v_add_u32 v5, {L_ST}, v5
    v_lshl_add_u32 v{VO}, v7, 20, v{VO}
    v_bfe_u32 v7, v0, 2, 2
    v_lshl_add_u32 v{VO}, v7, 15, v{VO}
    v_and_b32 v7, 3, v0
    v_lshl_add_u32 v{VO}, v7, 4, v{VO}
    s_lshl_b32 s36, s17, 7
    s_add_u32 s36, s36, {WS_Z1}
    s_add_u32 s37, s36, 524288""")
    RE = ra(16); IM = ra(16); SS = ra(8); T = ra(16)
    for j in range(8):
        k(f"s_waitcnt vmcnt({14-2*j})")
        unpack_bf16(k, RE + 2*j, XR + j)
        unpack_bf16(k, IM + 2*j, XI + j)
        padd(k, T + 2*j, RE + 2*j, IM + 2*j)
        k(f"v_add_f32 v{SS+j}, v{T+2*j}, v{T+2*j+1}")
    stamp(k, 2)
    def reduce8(ldsoff, dst4):
        for j in range(4): k(f"v_permlane32_swap_b32 v{SS+j}, v{SS+j+4}")
        for j in range(4): k(f"v_add_f32 v{SS+j}, v{SS+j}, v{SS+j+4}")
        for j in range(2): k(f"v_permlane16_swap_b32 v{SS+j}, v{SS+j+2}")
        for j in range(2): k(f"v_add_f32 v{SS+j}, v{SS+j}, v{SS+j+2}")
        row_allreduce(k, [SS, SS + 1])
        k(f"v_min_u32 v{SS}, -2, v{SS}")
        k(f"v_min_u32 v{SS+1}, -2, v{SS+1}")
        k(f"ds_write2_b32 v6, v{SS}, v{SS+1} offset0:{ldsoff//4} offset1:{ldsoff//4+4}")
        k(f"ln_sp{ldsoff}:")
        k(f"ds_read_b128 v[{dst4}:{dst4+3}], v5 offset:{ldsoff}")
        k("s_waitcnt lgkmcnt(0)")
        chk_sent(k, range(dst4, dst4 + 4), SS + 2)
        k(f"s_cbranch_vccnz ln_sp{ldsoff}")
        padd(k, dst4, dst4, dst4 + 2)
        k(f"v_add_f32 v{dst4}, v{dst4}, v{dst4+1}")
        k(f"v_mul_f32 v{dst4}, {f32(1.0/1024)}, v{dst4}")
    R4 = ra(4, 4); MB = ra(); DM = ra()
    reduce8(0, R4)
    round_bf16(k, MB, R4)
    k(f"v_sub_f32 v{DM}, v{R4}, v{MB}")
    SM = 56
    for j in range(8): k(f"v_readlane_b32 s{SM+j}, v{MB}, {j}")
    for j in range(8):
        psub_s(k, RE + 2*j, RE + 2*j, SM + j)
        psub_s(k, IM + 2*j, IM + 2*j, SM + j)
    for j in range(8): pmul(k, T + 2*j, RE + 2*j, RE + 2*j)
    for j in range(8): pfma(k, T + 2*j, IM + 2*j, IM + 2*j, T + 2*j)
    for j in range(8): k(f"v_add_f32 v{SS+j}, v{T+2*j}, v{T+2*j+1}")
    reduce8(128, R4)
    k(f"v_fma_f32 v{R4}, -v{DM}, v{DM}, v{R4}")
    k(f"v_max_f32 v{R4}, 0, v{R4}")
    round_bf16(k, R4, R4)
    k(f"v_add_f32 v{R4}, {f32(1e-5)}, v{R4}")
    round_bf16(k, R4, R4)
    k(f"v_sqrt_f32 v{R4}, v{R4}")
    round_bf16(k, R4, R4)
    k(f"v_rcp_f32 v{R4}, v{R4}")
    k(f"v_mul_f32 v{R4}, {f32(1.0/32)}, v{R4}")
    SR = 64
    for j in range(8): k(f"v_readlane_b32 s{SR+j}, v{R4}, {j}")
    for j in range(4):
        for ci, A in enumerate((RE, IM)):
            pmul_s(k, T + 2 * (2*j + ci), A + 2*j, SR + j)
    for j in range(4):
        for ci, A in enumerate((RE, IM)):
            t = T + 2 * (2*j + ci)
            pfma_s(k, A + 2*j, A + 2*(j+4), SR + j + 4, t)
            pfma_s(k, A + 2*(j+4), A + 2*(j+4), SR + j + 4, t, nega=True)
    b = [(RE + 2*j, IM + 2*j) for j in range(4)]
    c = [(RE + 2*(j+4), IM + 2*(j+4)) for j in range(4)]
    def cv(): return (ra(2), ra(2))
    X = [cv() for _ in range(8)]
    p, q, ss_, w = cv(), cv(), cv(), cv()
    for i in range(2):
        padd(k, p[i], b[0][i], b[2][i]); psub(k, q[i], b[0][i], b[2][i])
        padd(k, ss_[i], b[1][i], b[3][i]); psub(k, w[i], b[1][i], b[3][i])
    for i in range(2):
        padd(k, X[0][i], p[i], ss_[i]); psub(k, X[4][i], p[i], ss_[i])
    padd(k, X[2][0], q[0], w[1]); psub(k, X[2][1], q[1], w[0])
    psub(k, X[6][0], q[0], w[1]); padd(k, X[6][1], q[1], w[0])
    p, q, ss_, w, u1, u3 = cv(), cv(), cv(), cv(), cv(), cv()
    padd(k, p[0], c[0][0], c[2][1]); psub(k, p[1], c[0][1], c[2][0])
    psub(k, q[0], c[0][0], c[2][1]); padd(k, q[1], c[0][1], c[2][0])
    padd(k, u1[0], c[1][0], c[1][1]); psub(k, u1[1], c[1][1], c[1][0])
    psub(k, u3[0], c[3][1], c[3][0]); padd(k, u3[1], c[3][0], c[3][1])
    padd(k, ss_[0], u1[0], u3[0]); psub(k, ss_[1], u1[1], u3[1])
    psub(k, w[0], u1[0], u3[0]); padd(k, w[1], u1[1], u3[1])
    for i in range(2):
        pfma_s(k, X[1][i], ss_[i], KAP, p[i]); pfma_s(k, X[5][i], ss_[i], KAP, p[i], nega=True)
    pfma_s(k, X[3][0], w[1], KAP, q[0]); pfma_s(k, X[3][1], w[0], KAP, q[1], nega=True)
    pfma_s(k, X[7][0], w[1], KAP, q[0], nega=True); pfma_s(k, X[7][1], w[0], KAP, q[1])
    Y = [X[0]] + [(RE + 2*j, IM + 2*j) for j in range(1, 8)]
    for kk in range(1, 8):
        pmul_s(k, Y[kk][0], X[kk][0], TW + 2*kk)
        pmul_s(k, Y[kk][1], X[kk][1], TW + 2*kk)
    for kk in range(1, 8):
        pfma_s(k, Y[kk][0], X[kk][1], TW + 2*kk + 1, Y[kk][0])
        pfma_s(k, Y[kk][1], X[kk][0], TW + 2*kk + 1, Y[kk][1], nega=True)
    OB = ra(16, 4)
    assert ra.n <= 224
    for kk in range(8):
        for cc in range(2):
            k(f"v_cvt_pk_f16_f32 v{OB + ((kk&1)*2+cc)*4 + (kk>>1)}, v{Y[kk][0]+cc}, v{Y[kk][1]+cc}")
    for g in range(4):
        k(f"v_permlane32_swap_b32 v{OB+4*g}, v{OB+4*g+2}")
        k(f"v_permlane32_swap_b32 v{OB+4*g+1}, v{OB+4*g+3}")
    for g in range(4):
        k(f"v_permlane16_swap_b32 v{OB+4*g}, v{OB+4*g+1}")
        k(f"v_permlane16_swap_b32 v{OB+4*g+2}, v{OB+4*g+3}")
    for g in range(4):
        k(f"buffer_store_dwordx4 v[{OB+4*g}:{OB+4*g+3}], v{VO}, s[12:15], s{36+(g>>1)} offen offset:{(g&1)*64} sc1")
    k("v_mov_b32 v4, 0")
    get_nonce_issue(k, 4, NON)
    stamp(k, 3)
    k("s_barrier\ns_branch a_join")
    k.c("---- GEMV tile [128 k][192 n]: ks = s2>>5, nchunk = s2&31 ----")
    k(f"""a_gemv:
    s_getpc_b64 s[36:37]
    g_pc:
    s_sub_u32 s36, s36, g_pc-{NAME}
    s_subb_u32 s37, s37, 0
    v_and_b32 v108, 255, v0
    v_lshlrev_b32 v4, 7, v108
    v_min_u32 v4, code_end-{NAME}-4, v4
    s_cmp_ge_u32 s2, 32
    s_cbranch_scc1 a_npf
    global_load_dword v250, v4, s[36:37]
    a_npf:
    s_lshr_b32 s40, s2, 5
    s_and_b32 s41, s2, 31
    v_bfe_u32 v5, v0, 5, 1
    v_and_b32 v9, 3, v1
    v_lshl_add_u32 v6, v9, 5, v5
    v_mul_u32_u24 v4, 12288, v6
    v_and_b32 v7, 31, v0
    v_lshl_add_u32 v4, v7, 4, v4
    v_cmp_gt_u32 vcc, 24, v7
    v_mov_b32 v8, 0x7ff00000
    v_cndmask_b32 v4, v8, v4, vcc
    v_and_b32 v7, 15, v0
    v_lshl_add_u32 v7, v7, 1, v6
    v_lshlrev_b32 v7, 1, v7
    s_mul_i32 s18, s40, {128*12288}
    s_mul_i32 s19, s41, 384
    s_add_u32 s18, s18, s19
    s_lshl_b32 s19, s40, 8
    v_mov_b32 v104, -1
    v_mov_b32 v105, -1
    v_mov_b32 v106, -1
    v_mov_b32 v107, -1
    v_mov_b32 v14, 0
    s_waitcnt lgkmcnt(0)""")
    srd(k, 20, 26, 256)
    srd(k, 12, 6, WS_SIZE)
    srd(k, 8, 74, 1024 * 6144 * 2)
    srd(k, 44, 72, 2048)
    stamp(k, 1)
    k.c("nonce writer: workgroup 0, wave 4")
    k(f"""s_sub_u32 s42, s16, 4
    s_or_b32 s42, s42, s2
    s_cmp_lg_u32 s42, 0
    s_cbranch_scc1 g_non
    s_or_b32 s32, s32, 1
    v_mov_b32 v12, s32
    v_mov_b32 v13, s33
    s_mov_b64 exec, 1
    buffer_store_dwordx2 v[12:13], v14, s[20:23], 0 offen sc1
    s_mov_b64 exec, -1
    g_non:
    buffer_load_ushort v6, v7, s[44:47], s19 offen
    s_barrier""")
    W = 16
    for i in range(16):
        k(f"buffer_load_dwordx4 v[{W+4*i}:{W+4*i+3}], v4, s[8:11], s18 offen")
        if i < 15: k("s_add_u32 s18, s18, 24576")
    k.c("sentinel prefill: 3 KB per workgroup of the 768 KB region PART|XA|XB+KEY")
    k(f"""s_mov_b32 s26, 4194304
    s_mov_b32 s27, 0x00020000
    v_lshlrev_b32 v109, 4, v108
    v_lshlrev_b32 v108, 2, v108
    v_cmp_gt_u32 vcc, 3072, v109
    v_cndmask_b32 v109, v8, v109, vcc
    s_mul_i32 s42, s2, 3072
    s_add_u32 s42, s42, {WS_PART}
    buffer_store_dwordx4 v[104:107], v109, s[12:15], s42 offen sc1""")
    fft_consts(k)
    ACC = 80; U = 88; SB = 10
    for i in range(8): k(f"v_mov_b32 v{ACC+i}, 0")
    k(f"""s_waitcnt vmcnt(17)
    v_lshlrev_b32 v6, 16, v6
    v_mul_f32 v7, {f32(-math.log2(math.e))}, v6
    v_exp_f32 v7, v7
    v_add_f32 v7, 1.0, v7
    v_rcp_f32 v7, v7
    v_mul_f32 v6, v6, v7""")
    round_bf16(k, 6, 6)
    k(f"""v_and_b32 v7, 31, v0
    v_lshlrev_b32 v7, 5, v7
    v_lshl_add_u32 v7, v5, 4, v7
    v_lshl_add_u32 v7, v9, 10, v7
    v_add_u32 v7, {L_G}, v7
    s_mul_i32 s18, s40, 24576
    s_mul_i32 s19, s41, 768
    s_add_u32 s18, s18, s19
    s_add_u32 s18, s18, {WS_MODP}
    s_lshl_b32 s19, s40, 4
    s_add_u32 s19, s19, s41
    s_lshl_b32 s19, s19, 4
    s_add_u32 s19, s19, {WS_MAXP}
    s_cmp_lt_u32 s41, 11
    s_cselect_b32 s42, 0x7fffffff, 0
    v_cmp_gt_u32 vcc, 768, v108
    v_cndmask_b32 v8, v8, v108, vcc
    v_add_u32 v108, {L_G}, v108
    v_lshlrev_b32 v9, 2, v9""")
    stamp(k, 2)
    GB1 = E("GB1", 2); GB2 = E("GB2", 4)
    for i in range(16):
        sb = SB + 2 * (i & 1)
        k(f"v_mov_b32_dpp v{sb}, v6 row_newbcast:{i} {DPPM}")
        k(f"s_waitcnt vmcnt({16-i})")
        u = U + 8 * (i & 1)
        for j in range(4): unpack_bf16(k, u + 2*j, W + 4*i + j)
        for j in range(4):
            k(f"v_pk_fma_f32 {P(ACC+2*j)}, {P(u+2*j)}, {P(sb)}, {P(ACC+2*j)} op_sel_hi:[1,0,1]")
    for j in range(4): k(f"v_permlane32_swap_b32 v{ACC+j}, v{ACC+j+4}")
    for j in range(2): padd(k, ACC + 2*j, ACC + 2*j, ACC + 4 + 2*j)
    stamp(k, 3)
    k(f"""ds_write_b128 v7, v[{ACC}:{ACC+3}]
    s_waitcnt lgkmcnt(0)
    s_barrier
    ds_read2st64_b32 v[16:17], v108 offset0:0 offset1:4
    ds_read2st64_b32 v[18:19], v108 offset0:8 offset1:12
    s_waitcnt lgkmcnt(0)
    v_pk_add_f32 v[16:17], v[16:17], v[18:19]
    v_add_f32 v16, v16, v17
    buffer_store_dword v16, v8, s[12:15], s18 offen sc1
    s_cmp_ge_u32 s41, 16
    s_cbranch_scc1 a_join
    v_and_b32 v17, s42, v16""")
    wave_reduce_to63(k, [17], "v_max_u32")
    k(f"""s_mov_b32 exec_lo, 0
    s_mov_b32 exec_hi, 0x80000000
    buffer_store_dword v17, v9, s[12:15], s19 offen sc1
    s_mov_b64 exec, -1
    a_join:
    v_lshlrev_b32 v{FA}, 11, v2
    s_lshl_b32 s76, s34, 11
    s_add_u32 s77, s76, {WS_FL2}
    s_add_u32 s76, s76, {WS_FL1}
    s_lshl_b32 s78, s2, 3
    s_add_u32 s78, s78, {WS_FL1}
    s_mov_b32 s64, s80
    s_mov_b32 s65, s81
    s_mov_b32 s66, s82
    s_cmp_eq_u32 s39, 1
    s_cbranch_scc1 g_start""")

def fft_consts(k):
    k.c("shared FFT constants")
    c = 224
    k(f"""v_and_b32 v{c}, 31, v0
    v_cvt_f32_u32 v{c}, v{c}
    v_mul_f32 v{c}, {f32(1.0/1024)}, v{c}
    v_lshrrev_b32 v{c+1}, 7, v0
    v_lshlrev_b32 v{c+1}, 3, v{c+1}
    v_bfe_u32 v{c+2}, v0, 6, 1
    v_lshl_add_u32 v{c+1}, v{c+2}, 1, v{c+1}
    v_bfe_u32 v{c+2}, v0, 5, 1
    v_lshl_add_u32 v{c+1}, v{c+2}, 2, v{c+1}
    v_cvt_f32_u32 v{c+1}, v{c+1}
    v_mul_f32 v{c+4}, v{c}, v{c+1}
    v_add_f32 v{c+5}, v{c+4}, v{c}
    v_mul_f32 v{c+6}, {f32(32.0)}, v{c+4}
    v_mul_f32 v{c+7}, {f32(32.0)}, v{c+5}
    v_fract_f32 v{c+6}, v{c+6}
    v_fract_f32 v{c+7}, v{c+7}
    v_cos_f32 v{c+8}, v{c+4}
    v_cos_f32 v{c+9}, v{c+5}
    v_sin_f32 v{c+10}, v{c+4}
    v_sin_f32 v{c+11}, v{c+5}
    v_cos_f32 v{c+12}, v{c+6}
    v_cos_f32 v{c+13}, v{c+7}
    v_sin_f32 v{c+14}, v{c+6}
    v_sin_f32 v{c+15}, v{c+7}
    v_lshrrev_b32 v{c+1}, 7, v0
    v_lshl_add_u32 v{c+1}, v{c+1}, 10, v3
    v_bfe_u32 v{c+2}, v0, 6, 1
    v_lshl_add_u32 v{c+1}, v{c+2}, 3, v{c+1}
    v_cvt_pk_f16_f32 v{c+4}, v{c+12}, v{c+14}
    v_cvt_pk_f16_f32 v{c+5}, v{c+13}, v{c+15}
    v_cvt_pk_f16_f32 v{c+6}, -v{c+14}, v{c+12}
    v_cvt_pk_f16_f32 v{c+7}, -v{c+15}, v{c+13}
    ds_write_b64 v{c+1}, v[{c+4}:{c+5}] offset:{L_C}
    ds_write_b64 v{c+1}, v[{c+6}:{c+7}] offset:{L_C+4096}
    ds_write_b64 v{c+1}, v[{c+8}:{c+9}] offset:{L_C+8192}
    ds_write_b64 v{c+1}, v[{c+10}:{c+11}] offset:{L_C+12288}""")

def publish1(k, lab):
    k(f"""s_barrier
    s_cmp_lg_u32 s16, 0
    s_cbranch_scc1 {lab}""")
    get_nonce_finish(k, lab + "_non", 4, NON)
    k(f"""s_mov_b64 exec, 0xff
    buffer_store_dwordx2 v[{NON}:{NON+1}], v{FA}, s[12:15], s78 offen sc1
    s_mov_b64 exec, -1""")

def role_F(k):
    XRA, XRB, ZA, ZB, CS, SAR = 8, 16, 24, 32, 40, 48
    ZAD, YW, YRA, YRM, YRB, YRC = 56, 57, 58, 59, 60, 61
    BRE, BIM, TC, TS, W, D1R, D1I = 64, 80, 96, 112, 128, 144, 160
    GA, SBv, C1, GBv, WR = 176, 192, 208, 224, 240
    srd(k, 8, 4, 2048 * 1024 * 2)
    k.c("s18/s19 = byte offsets of rows A/B ; s30/s31 = rows A/B")
    k(f"""s_cmp_eq_u32 s3, 0
    s_cselect_b32 s36, {1024-128}, 0
    s_cmp_lt_u32 s16, 4
    s_cselect_b32 s36, 0, s36
    s_lshl_b32 s30, s16, 8
    s_add_u32 s30, s30, s3
    s_sub_u32 s30, s30, s36
    s_sub_u32 s31, 2048, s30
    s_cmp_eq_u32 s30, 0
    s_cselect_b32 s31, 1024, s31
    s_lshl_b32 s18, s30, 11
    s_lshl_b32 s19, s31, 11""")
    k.c("---- phase-B constants and addresses (while stores drain) ----")
    L = 24; B2R, B2I, T2C, T2S, TMP = 40, 44, 48, 52, 128
    SA_, RA_, TWA, TRA, STA = 64, 65, 66, 67, 68
    k(f"""v_and_b32 v70, 15, v0
    v_bfe_u32 v71, v0, 4, 2
    v_cvt_f32_u32 v72, v70
    v_mul_f32 v72, {f32(1.0/256)}, v72
    v_cvt_f32_u32 v73, v71
    v_mul_f32 v73, 4.0, v73
    v_mul_f32 v73, v72, v73""")
    for j in range(4):
        if j == 0: k(f"v_mov_b32 v{TMP}, v73")
        else: k(f"v_fmamk_f32 v{TMP+j}, v72, {f32(float(j))}, v73")
    for j in range(4):
        k(f"v_cos_f32 v{T2C+j}, v{TMP+j}")
        k(f"v_sin_f32 v{T2S+j}, v{TMP+j}")
    for j in range(4):
        k(f"v_mul_f32 v{TMP+j}, {f32(16.0)}, v{TMP+j}")
        k(f"v_fract_f32 v{TMP+j}, v{TMP+j}")
    for j in range(4):
        k(f"v_cos_f32 v{TMP+4+j}, v{TMP+j}")
        k(f"v_sin_f32 v{TMP+8+j}, v{TMP+j}")
    for j in range(4):
        k(f"v_cvt_pk_f16_f32 v{B2R+j}, v{TMP+4+j}, v{TMP+8+j}")
        k(f"v_cvt_pk_f16_f32 v{B2I+j}, -v{TMP+8+j}, v{TMP+4+j}")
    k(f"""v_lshrrev_b32 v72, 3, v2
    v_lshlrev_b32 v72, 7, v72
    v_xor_b32 v73, v71, v0
    v_and_b32 v73, 7, v73
    v_lshl_add_u32 v{SA_}, v73, 4, v72
    v_xor_b32 v69, 64, v{SA_}
    v_bfe_u32 v72, v0, 1, 3
    v_xor_b32 v72, v72, v1
    v_lshlrev_b32 v72, 4, v72
    v_lshl_add_u32 v72, v70, 7, v72
    v_lshl_add_u32 v72, v71, 13, v72
    v_add_u32 v{RA_}, {L_S}, v72
    v_and_b32 v72, 7, v0
    v_xor_b32 v72, v72, v1
    v_lshlrev_b32 v72, 4, v72
    v_lshl_add_u32 v{TWA}, v2, 7, v72
    v_lshlrev_b32 v{TRA}, 4, v0
    v_bfe_u32 v72, v0, 3, 4
    v_lshlrev_b32 v{STA}, 18, v72
    v_lshrrev_b32 v72, 7, v0
    v_lshl_add_u32 v{STA}, v72, 16, v{STA}
    v_lshrrev_b32 v72, 3, v0
    v_xor_b32 v72, v72, v0
    v_and_b32 v72, 7, v72
    v_lshl_add_u32 v{STA}, v72, 4, v{STA}
    s_lshr_b32 s41, s3, 3
    s_lshl_b32 s42, s34, 19
    s_lshl_b32 s43, s41, 15
    s_add_u32 s42, s42, s43
    s_lshl_b32 s43, s16, 12
    s_add_u32 s42, s42, s43
    s_add_u32 s42, s42, {WS_Z1}
    s_add_u32 s43, s43, {L_S}
    s_lshl_b32 s70, s34, 11
    s_lshl_b32 s71, s41, 7
    s_add_u32 s70, s70, s71
    s_add_u32 s70, s70, {WS_ZF}
    s_add_u32 s71, s70, 16384
    s_add_u32 s72, s70, 32768
    s_add_u32 s73, s70, 49152
    s_lshl_b32 s80, s3, 3
    s_add_u32 s79, s80, {WS_FL2}
    s_add_u32 s80, s80, {WS_KEY}
    s_mov_b32 m0, s43
    s_waitcnt vmcnt(0)""")
    stamp(k, 4)
    publish1(k, "f_np1")
    k(f"s_sleep {SL1}")
    poll_flags(k, "f_p1", 24, 76, 5, extra=2)
    k("f_np1:\ns_barrier")
    stamp(k, 5)
    k.c("================= phase B =================")
    for i in range(4):
        k(f"buffer_load_dwordx4 v{69 if i & 1 else SA_}, s[12:15], s42 offen offset:{i*1024} sc1 lds")
    k("s_barrier")
    for j in range(2):
        k(f"buffer_load_dwordx4 v[{XRA+4*j}:{XRA+4*j+3}], v3, s[8:11], s18 offen offset:{j*1024}")
        k(f"buffer_load_dwordx4 v[{XRB+4*j}:{XRB+4*j+3}], v3, s[8:11], s19 offen offset:{j*1024}")
    k("s_waitcnt vmcnt(4)\ns_barrier")
    stamp(k, 6)
    for j in range(4):
        k(f"ds_read_b128 v[{L+4*j}:{L+4*j+3}], v{RA_} offset:{j*2048}")
    k("s_waitcnt lgkmcnt(0)")
    for j in range(4):
        for cc in range(j + 1, 4):
            k(f"v_swap_b32 v{L+4*j+cc}, v{L+4*cc+j}")
    D1 = 144
    for cc in range(4):
        k(f"v_mfma_f32_16x16x32_f16 v[{D1+8*cc}:{D1+8*cc+3}], v[{L+4*cc}:{L+4*cc+3}], v[{B2R}:{B2R+3}], 0")
        k(f"v_mfma_f32_16x16x32_f16 v[{D1+8*cc+4}:{D1+8*cc+7}], v[{L+4*cc}:{L+4*cc+3}], v[{B2I}:{B2I+3}], 0")
    V = 176; VT = 192; D2 = 208; O = L
    for cc in range(4):
        re, im = D1 + 8*cc, D1 + 8*cc + 4
        t = VT + 8 * (cc & 1)
        for h in range(2):
            pmul(k, t + 2*h, re + 2*h, T2C + 2*h)
            pmul(k, t + 4 + 2*h, im + 2*h, T2C + 2*h)
        for h in range(2):
            pfma(k, t + 2*h, im + 2*h, T2S + 2*h, t + 2*h)
            pfma(k, t + 4 + 2*h, re + 2*h, T2S + 2*h, t + 4 + 2*h, nega=True)
        for i in range(4):
            k(f"v_cvt_pk_f16_f32 v{V+4*cc+i}, v{t+i}, v{t+4+i}")
        k(f"v_mfma_f32_16x16x32_f16 v[{D2+8*cc}:{D2+8*cc+3}], v[{V+4*cc}:{V+4*cc+3}], v[{B2R}:{B2R+3}], 0")
        k(f"v_mfma_f32_16x16x32_f16 v[{D2+8*cc+4}:{D2+8*cc+7}], v[{V+4*cc}:{V+4*cc+3}], v[{B2I}:{B2I+3}], 0")
    for cc in range(4):
        for i in range(4):
            k(f"v_cvt_pk_f16_f32 v{O+4*i+cc}, v{D2+8*cc+i}, v{D2+8*cc+4+i}")
    for i in range(4):
        k(f"ds_write_b128 v{TWA}, v[{O+4*i}:{O+4*i+3}] offset:{L_T+i*8192}")
    k("s_waitcnt lgkmcnt(0)\ns_barrier")
    O2 = 176
    for i in range(4):
        k(f"ds_read_b128 v[{O2+4*i}:{O2+4*i+3}], v{TRA} offset:{L_T+i*8192}")
    for i in range(4):
        k(f"s_waitcnt lgkmcnt({3-i})")
        k(f"buffer_store_dwordx4 v[{O2+4*i}:{O2+4*i+3}], v{STA}, s[12:15], s{70+i} offen sc1")
    stamp(k, 7)
    k.c("---- phase-C addresses / constants ----")
    k(f"""s_mul_i32 s45, s16, 4608
    s_add_u32 s45, s45, {L_Y}
    s_add_u32 s28, s18, {WS_ZF}
    s_add_u32 s29, s19, {WS_ZF}
    s_mov_b32 s44, {WS_CS}
    v_and_b32 v4, 0x38, v0
    v_lshlrev_b32 v{ZAD}, 4, v4
    v_and_b32 v4, 1, v0
    v_lshl_add_u32 v{ZAD}, v4, 6, v{ZAD}
    v_bfe_u32 v4, v0, 1, 2
    v_lshl_add_u32 v{ZAD}, v4, 4, v{ZAD}
    v_and_b32 v4, 31, v0
    v_mul_u32_u24 v4, 144, v4
    v_bfe_u32 v5, v0, 5, 1
    v_lshl_add_u32 v4, v5, 4, v4
    v_add_u32 v{YW}, s45, v4""")
    def yaddr(dst, first):
        k(first)
        k(f"""v_lshrrev_b32 v5, 2, v4
        v_mul_u32_u24 v5, 144, v5
        v_and_b32 v4, 3, v4
        v_lshl_add_u32 v4, v4, 5, v5
        v_add_u32 v{dst}, s45, v4""")
    yaddr(YRA, "v_mov_b32 v4, v2")
    yaddr(YRM, "v_sub_u32 v4, 63, v2")
    yaddr(YRB, "v_sub_u32 v4, 128, v2\nv_and_b32 v4, 127, v4")
    yaddr(YRC, "v_sub_u32 v4, 64, v2")
    for a, base in enumerate((BRE, BIM, TC, TS)):
        for q in range(4):
            k(f"ds_read_b128 v[{base+4*q}:{base+4*q+3}], v3 offset:{L_C+a*4096+q*1024}")
    k(f"""s_lshl_b32 s46, s16, 10
    s_add_u32 s47, s46, {WS_PAR}
    s_add_u32 s46, s46, {L_P}
    s_mov_b32 m0, s46
    s_waitcnt vmcnt(0)""")
    stamp(k, 8)
    k(f"""s_barrier
    s_cmp_lg_u32 s16, 0
    s_cbranch_scc1 f_np2
    s_mov_b64 exec, 0xff
    buffer_store_dwordx2 v[{NON}:{NON+1}], v{FA}, s[12:15], s79 offen sc1
    s_mov_b64 exec, -1
    s_sleep {SL1}""")
    poll_flags(k, "f_p2", 24, 77, 5, extra=1)
    k("f_np2:\ns_barrier")
    stamp(k, 9)
    k.c("================= phase C =================")
    for j in range(2):
        k(f"buffer_load_dwordx4 v[{ZA+4*j}:{ZA+4*j+3}], v{ZAD}, s[12:15], s28 offen offset:{j*1024} sc1")
        k(f"buffer_load_dwordx4 v[{ZB+4*j}:{ZB+4*j+3}], v{ZAD}, s[12:15], s29 offen offset:{j*1024} sc1")
    for j in range(2):
        k(f"buffer_load_dwordx4 v[{CS+4*j}:{CS+4*j+3}], v3, s[12:15], s44 offen offset:{j*1024} sc1")
    k("s_cmp_lg_u32 s30, 0\ns_cbranch_scc1 f_nosa")
    for j in range(2):
        k(f"buffer_load_dwordx4 v[{SAR+4*j}:{SAR+4*j+3}], v3, s[12:15], s44 offen offset:{2048+j*1024} sc1")
    k(f"""f_nosa:
    s_barrier
    buffer_load_dwordx4 v3, s[12:15], s47 offen sc1 lds
    s_add_u32 s46, s46, 8192
    s_add_u32 s47, s47, 8192
    s_mov_b32 m0, s46
    s_add_u32 s46, s46, 8192
    buffer_load_dwordx4 v3, s[12:15], s47 offen sc1 lds
    s_add_u32 s47, s47, 8192
    s_cmp_lt_u32 s16, 4
    s_cselect_b32 s47, s47, 0x7ff00000
    s_cselect_b32 s46, s46, {L_S}
    s_mov_b32 m0, s46
    s_cmp_eq_u32 s30, 0
    buffer_load_dwordx4 v3, s[12:15], s47 offen sc1 lds
    s_waitcnt vmcnt(3) lgkmcnt(0)""")
    stamp(k, 10)
    k("s_cbranch_scc1 f_sp")
    preads = []
    for vec, base in enumerate((GA, SBv, C1, GBv, WR)):
        for q in range(4):
            preads.append(f"ds_read_b128 v[{base+4*q}:{base+4*q+3}], v3 offset:{L_P+vec*4096+q*1024}")
    for i in range(8):
        k(f"v_pk_add_f16 v{W+i}, v{ZA+i}, v{ZB+i} neg_hi:[0,1]")
    for i in range(8):
        k(f"v_pk_add_f16 v{W+8+i}, v{ZA+i}, v{ZB+i} op_sel:[1,1] op_sel_hi:[0,0] neg_hi:[1,0]")
    def modul(j):
        for i in range(4*j, 4*j + 4):
            b = i & 1
            k(f"v_pk_mul_f16 v{W+i}, v{W+i}, v{CS+(i>>1)} op_sel:[0,{b}] op_sel_hi:[1,{b}]")
    def st1(j, part):
        D, B = (D1R, BRE) if part == 0 else (D1I, BIM)
        cc = "0" if j == 0 else f"v[{D}:{D+15}]"
        k(f"v_mfma_f32_32x32x16_f16 v[{D}:{D+15}], v[{W+4*j}:{W+4*j+3}], v[{B+4*j}:{B+4*j+3}], {cc}")
    modul(0); modul(1)
    st1(0, 0); modul(2); st1(0, 1); modul(3)
    k("f_st1:")
    pr = list(preads)
    for j in range(1, 4):
        for part in range(2): st1(j, part)
    Y = CS
    for j in range(4):
        vr = ZA + 8 * (j & 1); vi = vr + 4
        for h in range(2):
            pmul(k, vr + 2*h, D1R + 4*j + 2*h, TC + 4*j + 2*h)
            pmul(k, vi + 2*h, D1I + 4*j + 2*h, TC + 4*j + 2*h)
        for h in range(2):
            pfma(k, vr + 2*h, D1I + 4*j + 2*h, TS + 4*j + 2*h, vr + 2*h)
            pfma(k, vi + 2*h, D1R + 4*j + 2*h, TS + 4*j + 2*h, vi + 2*h, nega=True)
        for i in range(4):
            k(f"v_cvt_pk_f16_f32 v{W+4*j+i}, v{vr+i}, v{vi+i}")
        if j > 0:
            jj = j - 1
            cr = "0" if jj == 0 else f"v[{Y}:{Y+15}]"
            k(f"v_mfma_f32_32x32x16_f16 v[{Y}:{Y+15}], v[{W+4*jj}:{W+4*jj+3}], v[{BRE+4*jj}:{BRE+4*jj+3}], {cr}")
        if j == B2AT: k("s_waitcnt vmcnt(0)\ns_barrier")
        if j >= B2AT and j < 3:
            for _ in range(20 // (4 - B2AT)): k(pr.pop(0))
    k(f"v_mfma_f32_32x32x16_f16 v[{Y}:{Y+15}], v[{W+12}:{W+15}], v[{BRE+12}:{BRE+15}], v[{Y}:{Y+15}]")
    for x in pr: k(x)
    XA2, XB2, YN, YM, YE = D1I, TS, D1R, TC, ZA
    k("s_cmp_eq_u32 s30, 0\ns_cbranch_scc1 f_sp2")
    for i in range(4): unpack_bf16(k, XA2 + 2*i, XRA + i)
    for q in range(4):
        k(f"ds_write_b128 v{YW}, v[{Y+4*q}:{Y+4*q+3}] offset:{q*32}")
    for i in range(4, 8): unpack_bf16(k, XA2 + 2*i, XRA + i)
    def yreads(off):
        for q in range(4):
            k(f"ds_read_b128 v[{YN+4*q}:{YN+4*q+3}], v{YRA} offset:{off + (q>>1)*2304 + (q&1)*16}")
        for q in range(4):
            k(f"ds_read_b128 v[{YM+4*q}:{YM+4*q+3}], v{YRM} offset:{off + (q>>1)*2304 + (q&1)*16}")
        k(f"ds_read_b32 v{YE}, v{YRB} offset:{off}")
        k(f"ds_read_b32 v{YE+1}, v{YRC} offset:{off}")
    def mir(dst):
        for hf in range(2):
            for j in range(8):
                src = YE + hf if j == 0 else YM + 8 * (1 - hf) + 8 - j
                k(f"v_fmac_f32 v{dst+8*hf+j}, v{GA+8*hf+j}, v{src}")
    yreads(0)
    for i in range(8): unpack_bf16(k, XB2 + 2*i, XRB + i)
    k("s_waitcnt lgkmcnt(6)")
    for i in range(8): pfma(k, XA2 + 2*i, GA + 2*i, YN + 2*i, XA2 + 2*i)
    k("s_waitcnt lgkmcnt(0)")
    mir(XB2)
    k("f_join:")
    stamp(k, 11)
    T = W
    rows = ((XA2, BRE, D1R, T, 4, 56), (XB2, BIM, TC, T + 8, 5, 58))
    for X2, _, _, t, vr, _ in rows:
        for i in range(4): padd(k, t + 2*i, X2 + 4*i, X2 + 4*i + 2)
    for X2, _, _, t, vr, _ in rows:
        padd(k, t, t, t + 2); padd(k, t + 4, t + 4, t + 6)
    for X2, _, _, t, vr, _ in rows: padd(k, t, t, t + 4)
    for X2, _, _, t, vr, _ in rows: k(f"v_add_f32 v{vr}, v{t}, v{t+1}")
    for X2, _, _, t, vr, _ in rows: k(f"v_mul_f32 v{vr}, {f32(1.0/1024)}, v{vr}")
    wave_reduce_to63(k, [4, 5])
    for X2, _, _, t, vr, sr in rows: k(f"v_readlane_b32 s{sr}, v{vr}, 63")
    for X2, Dd, Tt, t, vr, sr in rows:
        for i in range(8): psub_s(k, Dd + 2*i, X2 + 2*i, sr)
        for i in range(8): pmul(k, Tt + 2*i, Dd + 2*i, C1 + 2*i)
        A0, A1, A2, A3 = t, t + 2, t + 4, t + 6
        pmul(k, A0, Dd, Dd); pmul(k, A1, Dd + 2, Dd + 2); pmul(k, A2, Tt, WR); pmul(k, A3, Tt + 2, WR + 2)
        for i in range(1, 4):
            pfma(k, A0, Dd + 4*i, Dd + 4*i, A0); pfma(k, A1, Dd + 4*i + 2, Dd + 4*i + 2, A1)
            pfma(k, A2, Tt + 4*i, WR + 4*i, A2); pfma(k, A3, Tt + 4*i + 2, WR + 4*i + 2, A3)
        padd(k, A0, A0, A1); padd(k, A2, A2, A3)
    RQ = ZA
    for n, (X2, Dd, Tt, t, vr, sr) in enumerate(rows):
        k(f"v_add_f32 v{RQ+n}, v{t}, v{t+1}")
        k(f"v_add_f32 v{RQ+2+n}, v{t+4}, v{t+5}")
    wave_reduce_to63(k, [RQ, RQ + 1, RQ + 2, RQ + 3])
    for n in range(2): k(f"v_mul_f32 v{RQ+n}, {f32(1.0/1024)}, v{RQ+n}")
    def rb2():
        k(f"v_cvt_pk_bf16_f32 v4, v{RQ}, v{RQ+1}")
        unpack_bf16(k, RQ, 4)
    rb2()
    for n in range(2): k(f"v_add_f32 v{RQ+n}, {f32(1e-5)}, v{RQ+n}")
    rb2()
    for n in range(2): k(f"v_sqrt_f32 v{RQ+n}, v{RQ+n}")
    rb2()
    for n in range(2): k(f"v_rcp_f32 v{RQ+n}, v{RQ+n}")
    pmul(k, RQ + 2, RQ + 2, RQ)
    for n in range(2):
        k(f"v_readlane_b32 s{56+2*n}, v{RQ+n}, 63")
        k(f"v_readlane_b32 s{60+n}, v{RQ+2+n}, 63")
    for n in range(2):
        k(f"""s_ashr_i32 s42, s{60+n}, 31
        s_or_b32 s42, s42, 0x80000000
        s_xor_b32 s{60+n}, s{60+n}, s42
        s_min_u32 s{60+n}, s{60+n}, 0xfffff000
        s_and_b32 s{60+n}, s{60+n}, 0xfffff800
        s_or_b32 s{60+n}, s{60+n}, s{30+n}""")
    k(f"""v_mov_b32 v4, s60
    v_mov_b32 v5, s61
    v_lshlrev_b32 v{ZAD}, 3, v1
    v_add_u32 v{ZAD}, {L_KEY}, v{ZAD}
    ds_write_b64 v{ZAD}, v[4:5]""")
    stamp(k, 12)
    HPA, HPB = CS, SAR
    for (X2, Dd, Tt, t, vr, sr), HP in zip(rows, (HPA, HPB)):
        for i in range(8): pfma_s(k, Tt + 2*i, Tt + 2*i, sr, SBv + 2*i)
    k(f"""v_and_b32 v{YW}, 15, v0
    v_lshlrev_b32 v{YW}, 2, v{YW}
    v_add_u32 v{YW}, {L_KEY}, v{YW}
    s_add_u32 s62, s18, {WS_H2}
    s_add_u32 s63, s19, {WS_H2}
    s_waitcnt lgkmcnt(0)
    s_barrier
    ds_read_b32 v{YRA}, v{YW}""")
    for (X2, Dd, Tt, t, vr, sr), HP in zip(rows, (HPA, HPB)):
        for i in range(8): k(f"v_cvt_pk_bf16_f32 v{HP+i}, v{Tt+2*i}, v{Tt+2*i+1}")
    k("s_waitcnt lgkmcnt(0)")
    k("s_mov_b32 s43, 0")
    for n, HP in enumerate((HPA, HPB)):
        k(f"""v_cmp_lt_u32 vcc, s{60+n}, v{YRA}
        s_and_b32 s42, vcc_lo, 0xffff
        s_bcnt1_i32_b32 s42, s42
        s_cmp_ge_u32 s42, 2
        s_cbranch_scc1 f_nc{n}""")
        for j in range(2):
            k(f"buffer_store_dwordx4 v[{HP+4*j}:{HP+4*j+3}], v3, s[12:15], s{62+n} offen offset:{j*1024} sc1")
        k(f"""s_lshl_b32 s42, s42, 2
        s_add_u32 s42, s42, {L_KEY+64}
        v_mov_b32 v{YRM}, s42
        ds_write_b32 v{YRM}, v{4+n}
        s_mov_b32 s43, 1
        f_nc{n}:""")
    for (X2, Dd, Tt, t, vr, sr), XO, so in zip(rows, (XRA, XRB), (18, 19)):
        for i in range(8): pfma(k, X2 + 2*i, GBv + 2*i, Tt + 2*i, X2 + 2*i)
        for i in range(8): k(f"v_cvt_pk_bf16_f32 v{XO+i}, v{X2+2*i}, v{X2+2*i+1}")
    def outst(fl="sc1"):
        for XO, so in zip((XRA, XRB), (18, 19)):
            for j in range(2):
                k(f"buffer_store_dwordx4 v[{XO+4*j}:{XO+4*j+3}], v3, s[24:27], s{so} offen offset:{j*1024} {fl}")
    stamp(k, 13)
    k(f"""v_mov_b32 v{YRM}, {L_KEY+64}
    s_cmp_eq_u32 s43, 0
    s_cbranch_scc1 f_late""")
    outst()
    k("s_waitcnt vmcnt(0) lgkmcnt(0)\nf_late:")
    stamp(k, 14)
    k(f"""s_barrier
    s_cmp_lg_u32 s16, 0
    s_cbranch_scc1 f_end
    ds_read_b64 v[4:5], v{YRM}
    s_waitcnt lgkmcnt(0)
    s_mov_b64 exec, 0xfff
    buffer_store_dwordx2 v[4:5], v{FA}, s[12:15], s80 offen sc1
    s_mov_b64 exec, -1
    f_end:
    s_cmp_eq_u32 s43, 1
    s_cbranch_scc1 f_end2""")
    k(f"s_sleep {E('OSL', 1)}")
    outst(os.environ.get("OFL", "sc1"))
    k("f_end2:")
    stamp_out(k, 0)
    k("s_endpgm")
    k.c("---- special wave: rows 0 and 1024 (both spectra real) packed as re/im of one FFT ----")
    k("f_sp:")
    k("s_mov_b32 s42, 0x05040100\ns_mov_b32 s43, 0x07060302")
    for i in range(8):
        k(f"v_perm_b32 v{W+i}, v{ZB+i}, v{ZA+i}, s42")
        k(f"v_perm_b32 v{W+8+i}, v{ZB+i}, v{ZA+i}, s43")
    for j in range(4): modul(j)
    for i in range(8):
        k(f"v_and_b32 v{ZA+i}, 0xffff, v{SAR+i}")
        k(f"v_lshrrev_b32 v{ZB+i}, 16, v{SAR+i}")
    for i in range(8):
        k(f"v_pk_add_f16 v{W+2*i}, v{W+2*i}, v{ZA+i}")
        k(f"v_pk_add_f16 v{W+2*i+1}, v{W+2*i+1}, v{ZB+i}")
    st1(0, 0); st1(0, 1)
    k("s_branch f_st1")
    k("f_sp2:")
    for j in range(4):
        cr = "0" if j == 0 else f"v[{D1R}:{D1R+15}]"
        k(f"v_mfma_f32_32x32x16_f16 v[{D1R}:{D1R+15}], v[{W+4*j}:{W+4*j+3}], v[{BIM+4*j}:{BIM+4*j+3}], {cr}")
    for q in range(4):
        k(f"ds_write_b128 v{YW}, v[{Y+4*q}:{Y+4*q+3}] offset:{q*32}")
    for i in range(8): unpack_bf16(k, XA2 + 2*i, XRA + i)
    for q in range(4):
        k(f"ds_write_b128 v{YW}, v[{D1R+4*q}:{D1R+4*q+3}] offset:{8*4608 + q*32}")
    k("s_waitcnt lgkmcnt(0)")
    yreads(0)
    for i in range(8): unpack_bf16(k, XB2 + 2*i, XRB + i)
    k("s_waitcnt lgkmcnt(0)")
    for i in range(8): pfma(k, XA2 + 2*i, GA + 2*i, YN + 2*i, XA2 + 2*i)
    mir(XA2)
    yreads(8 * 4608)
    k("s_waitcnt lgkmcnt(0)")
    for i in range(8): pfma(k, XB2 + 2*i, GA + 2*i, YN + 2*i, XB2 + 2*i)
    mir(XB2)
    k("s_branch f_join")

def role_G(k):
    k(f"""g_start:
    s_load_dwordx4 s[48:51], s[0:1], {A_WR}
    s_load_dwordx4 s[52:55], s[0:1], {A_WU}
    s_waitcnt vmcnt(0) lgkmcnt(0)""")
    stamp(k, 4)
    publish1(k, "g_nf")
    k(f"""g_nf:
    s_cmp_eq_u32 s66, 1
    s_cbranch_scc1 x_start""")
    k.c("================= M: weight stream =================")
    srd(k, 8, 50, 1024 * 3584 * 2)
    srd(k, 44, 52, 1024 * 3584 * 2)
    srd(k, 56, 54, 1024 * 3584 * 2)
    k(f"""v_lshrrev_b32 v4, 4, v2
    v_lshlrev_b32 v5, 1, v4
    v_xor_b32 v5, v5, v0
    v_and_b32 v5, 15, v5
    v_mul_u32_u24 v4, 7168, v4
    v_lshl_add_u32 v4, v5, 4, v4
    v_xor_b32 v5, 0x80, v4
    s_lshl_b32 s67, s65, 3
    s_add_u32 s67, s67, s16
    s_mul_i32 s67, s67, {32*7168}
    s_lshl_b32 s68, s64, 8
    s_add_u32 s67, s67, s68
    s_lshl_b32 s68, s16, 14
    s_barrier""")
    if E("MWAIT", 0):
        k("s_cmp_lg_u32 s16, 0\ns_cbranch_scc1 m_w1")
        k(f"s_sleep {SL1}")
        poll_flags(k, "m_p1", 16, 76, 9, extra=2)
        k("m_w1:\ns_barrier")
    if E("NOSTREAM", 0):
        k("v_mov_b32 v4, 0x7ff00000\nv_mov_b32 v5, 0x7ff00000")
    for d in range(8):
        rows = 8 * (d & 3) + 4 * (d >> 2)
        k(f"s_add_u32 s42, s67, {rows*7168}")
        k(f"s_add_u32 s43, s68, {d*1024}")
        k(f"s_mov_b32 m0, s43")
        k(f"s_add_u32 s43, s43, 8192")
        k(f"buffer_load_dwordx4 v{4 + (d & 1)}, s[8:11], s42 offen lds")
        k(f"s_mov_b32 m0, s43")
        k(f"buffer_load_dwordx4 v{4 + (d & 1)}, s[44:47], s42 offen lds")
    WD = 16; WF = 48; BF = 112; AC = 176; TA = 240
    k(f"""v_lshlrev_b32 v6, 3, v2
    s_lshl_b32 s18, s64, 3
    s_add_u32 s18, s18, s16
    s_lshl_b32 s69, s18, 10
    s_lshl_b32 s18, s18, 15
    s_lshl_b32 s19, s65, 9
    s_add_u32 s18, s18, s19""")
    if E("NOSTREAM", 0):
        k("v_mov_b32 v6, 0x7ff00000")
    for f in range(16):
        k(f"buffer_load_dwordx2 v[{WD+2*f}:{WD+2*f+1}], v6, s[56:59], s18 offen offset:{(f & 1) * 2048}")
        if f & 1 and f < 15: k("s_add_u32 s18, s18, 4096")
    stamp(k, 5)
    k(f"""v_lshrrev_b32 v6, 2, v2
    v_and_b32 v7, 7, v6
    v_lshlrev_b32 v6, 8, v6
    v_lshl_add_u32 v6, v7, 5, v6
    v_and_b32 v7, 3, v0
    v_lshl_add_u32 v6, v7, 3, v6
    v_add_u32 v{TA}, s68, v6""")
    for sub in range(1, 8):
        k(f"v_xor_b32 v{TA+sub}, {sub*32}, v{TA}")
    k.c("v4 = A address base ; v5 = LDS partial write ; v6 = tid*4 ; v7 = PART store ; v8 = lane*4 ; v9 = y LDS write")
    k(f"""v_bfe_u32 v7, v0, 4, 2
    v_lshlrev_b32 v4, 4, v7
    v_lshl_add_u32 v4, v1, 6, v4
    s_lshl_b32 s70, s65, 9
    s_add_u32 s70, s70, {WS_H2}
    v_and_b32 v6, 1, v0
    v_cmp_eq_u32 s[72:73], 1, v6
    v_lshl_add_u32 v5, v1, 11, v3
    v_lshlrev_b32 v6, 2, v0
    v_lshrrev_b32 v7, 8, v0
    v_lshlrev_b32 v7, 17, v7
    v_bfe_u32 v8, v0, 4, 4
    v_lshl_add_u32 v7, v8, 11, v7
    v_and_b32 v8, 15, v0
    v_lshl_add_u32 v7, v8, 2, v7
    v_lshlrev_b32 v8, 2, v2
    s_lshl_b32 s74, s65, 15
    s_lshl_b32 s75, s64, 6
    s_add_u32 s74, s74, s75
    s_add_u32 s74, s74, {WS_PART}
    s_add_u32 s81, s69, {WS_XA}
    s_add_u32 s82, s69, {WS_XB}
    s_lshl_b32 s76, s65, 8
    s_add_u32 s77, s76, s82
    s_add_u32 s76, s76, s81
    s_lshl_b32 s78, s34, 11
    s_add_u32 s78, s78, {WS_KEY}
    s_waitcnt vmcnt(16)""")
    for mat in range(2):
        for sub in range(8):
            b = BF + (mat*8 + sub)*4
            k(f"ds_read_b64_tr_b16 v[{b}:{b+1}], v{TA+sub} offset:{mat*8192}")
            k(f"ds_read_b64_tr_b16 v[{b+2}:{b+3}], v{TA+sub} offset:{mat*8192+4096}")
    k("s_waitcnt vmcnt(0)")
    for i in range(32): unpack_bf16(k, WF + 2*i, WD + i)
    k("s_waitcnt lgkmcnt(0)")
    stamp(k, 6)
    KB, HA = 16, 24
    k("""v_and_b32 v10, 1, v0
    v_lshlrev_b32 v10, 2, v10
    v_add_u32 v10, 131072, v10
    s_cmp_lg_u32 s16, 0
    s_cbranch_scc1 m_nk""")
    for _ in range(E("MSL", 0)): k("s_sleep 64")
    poll_keys(k, "m_pk", KB, 78, 9)
    stamp(k, 13)
    top2(k, KB, 40, 41, 20)
    k(f"""s_and_b32 s40, s40, 0x7ff
    s_and_b32 s41, s41, 0x7ff
    s_lshl_b32 s40, s40, 11
    s_lshl_b32 s41, s41, 11
    v_mov_b32 v9, s40
    v_mov_b32 v11, s41
    v_cndmask_b32 v9, v9, v11, s[72:73]
    ds_write_b32 v10, v9
    s_waitcnt lgkmcnt(0)
    m_nk:
    s_barrier
    ds_read_b32 v9, v10
    s_waitcnt lgkmcnt(0)
    v_add_u32 v9, v9, v4
    buffer_load_dwordx4 v[{HA}:{HA+3}], v9, s[12:15], s70 offen sc1
    s_waitcnt vmcnt(0)""")
    stamp(k, 14)
    for sub in range(8):
        for mat in range(2):
            a = AC + (mat*8 + sub)*4
            b = BF + (mat*8 + sub)*4
            k(f"v_mfma_f32_16x16x32_bf16 v[{a}:{a+3}], v[{HA}:{HA+3}], v[{b}:{b+3}], 0")
    k("s_mov_b64 exec, 0xffff")
    for sub in range(8):
        k(f"ds_write2_b64 v5, v[{AC+sub*4}:{AC+sub*4+1}], v[{AC+(8+sub)*4}:{AC+(8+sub)*4+1}] offset0:{sub*32} offset1:{sub*32+1}")
    k("s_mov_b64 exec, -1\ns_waitcnt lgkmcnt(0)\ns_barrier")
    for i in range(4):
        k(f"ds_read2st64_b32 v[{16+2*i}:{17+2*i}], v6 offset0:{16*i} offset1:{16*i+8}")
    k("s_waitcnt lgkmcnt(0)")
    padd(k, 16, 16, 18); padd(k, 20, 20, 22); padd(k, 16, 16, 20)
    k(f"""v_add_f32 v11, v16, v17
    v_min_u32 v11, -2, v11
    buffer_store_dword v11, v8, s[12:15], s76 offen
    s_sleep {SL3}""")
    stamp(k, 15)
    R = 16
    for rep in range(XFAST):
        k(f"buffer_load_dwordx4 v[{R}:{R+3}], v3, s[12:15], s81 offen sc1")
        k("s_waitcnt vmcnt(0)")
        chk_sent(k, range(R, R + 4), 9)
        k("s_cbranch_vccz m_pxf")
    k(f"""buffer_store_dword v11, v8, s[12:15], s77 offen sc1
    s_mov_b32 s83, 0
    m_px:""")
    for so in (81, 82):
        k(f"buffer_load_dwordx4 v[{R}:{R+3}], v3, s[12:15], s{so} offen sc1")
        k("s_waitcnt vmcnt(0)")
        chk_sent(k, range(R, R + 4), 9)
        k("s_cbranch_vccz m_pxx")
    k(f"""s_add_u32 s83, s83, 1
    s_cmp_lt_u32 s83, {SPIN}
    s_cbranch_scc1 m_px
    s_branch m_pxx
    m_pxf:
    buffer_store_dword v11, v8, s[12:15], s77 offen sc1
    m_pxx:""")
    stamp(k, 16)
    k(f"v_permlane32_swap_b32 v{R}, v{R+2}")
    k(f"v_permlane32_swap_b32 v{R+1}, v{R+3}")
    padd(k, R, R, R + 2)
    k(f"v_permlane16_swap_b32 v{R}, v{R+1}")
    k(f"v_add_f32 v{R}, v{R}, v{R+1}")
    round_bf16(k, R, R)
    k(f"""v_mul_f32 v{R+1}, {f32(-math.log2(math.e))}, v{R}
    v_exp_f32 v{R+1}, v{R+1}
    v_mov_b32 v{R+2}, v{R}
    v_add_f32 v{R+1}, 1.0, v{R+1}
    v_rcp_f32 v{R+1}, v{R+1}
    v_mov_b32 v{R+3}, v{R}
    v_mul_f32 v{R+1}, v{R}, v{R+1}
    v_permlane32_swap_b32 v{R+2}, v{R+3}""")
    round_bf16(k, R + 1, R + 1)
    k(f"v_mul_f32 v{R+1}, v{R+1}, v{R+3}")
    round_bf16(k, R + 1, R + 1)
    SA = 24
    for f in range(16):
        k(f"v_readlane_b32 s{SA+2*f}, v{R+1}, {f}")
        k(f"v_readlane_b32 s{SA+2*f+1}, v{R+1}, {16+f}")
    Y = 24
    for f in range(16):
        for row in range(2):
            for h in range(2):
                if f == 0: pmul_s(k, Y + 4*row + 2*h, WF + 4*f + 2*h, SA + 2*f + row)
                else: pfma_s(k, Y + 4*row + 2*h, WF + 4*f + 2*h, SA + 2*f + row, Y + 4*row + 2*h)
    for row in range(2):
        k(f"ds_write_b128 v5, v[{Y+4*row}:{Y+4*row+3}] offset:{16384+row*1024}")
    k("s_waitcnt lgkmcnt(0)\ns_barrier")
    for i in range(4):
        k(f"ds_read2st64_b32 v[{32+2*i}:{33+2*i}], v6 offset0:{64+16*i} offset1:{64+16*i+8}")
    k("s_waitcnt lgkmcnt(0)")
    padd(k, 32, 32, 34); padd(k, 36, 36, 38); padd(k, 32, 32, 36)
    k("""v_add_f32 v32, v32, v33
    v_min_u32 v32, -2, v32
    buffer_store_dword v32, v7, s[12:15], s74 offen sc1""")
    stamp(k, 17)
    stamp_out(k, 0)
    k("s_endpgm")
    k.c("================= X: finalize mod, then final reduction =================")
    k("x_start:")
    srd(k, 8, 48, 2048)
    k.c("s17 = j = xi*8 + wave ; finalize: vec s70 = j>>4, column v4")
    k(f"""s_lshl_b32 s17, s64, 3
    s_add_u32 s17, s17, s16
    s_lshr_b32 s70, s17, 4
    s_and_b32 s71, s17, 15
    s_lshl_b32 s71, s71, 6
    v_and_b32 v4, 15, v0
    v_lshlrev_b32 v8, 4, v4
    v_lshlrev_b32 v4, 2, v4
    v_lshrrev_b32 v5, 4, v2
    v_add3_u32 v4, v4, v5, s71
    v_mul_u32_u24 v5, 24576, v5
    v_add_u32 v8, v8, v5
    s_lshl_b32 s43, s17, 8
    s_add_u32 s43, s43, {WS_MODP}
    s_add_u32 s44, s43, {4*24576}
    s_mov_b32 s46, {WS_MAXP}
    s_lshl_b32 s79, s64, 3
    s_add_u32 s79, s79, {WS_FL2 + 1024}
    s_lshl_b32 s78, s34, 11
    s_add_u32 s78, s78, {WS_KEY + 4*2048}""")
    pos16(k, 5, 4, 9)
    pos32(k, 10, 4, 9)
    k(f"""s_cmp_lg_u32 s16, 0
    s_cbranch_scc1 x_np
    s_sleep {SL1}""")
    poll_flags(k, "x_pm", 16, 76, 9, extra=2)
    k(f"""x_np:
    s_barrier
    s_cmp_ge_u32 s70, 7
    s_cbranch_scc1 x_fd
    s_cmp_eq_u32 s70, 6
    s_cbranch_scc0 x_fin
    v_lshlrev_b32 v4, 1, v4
    buffer_load_ushort v16, v4, s[8:11], 0 offen
    s_waitcnt vmcnt(0)
    v_lshlrev_b32 v16, 16, v16
    s_branch x_f32
    x_fin:""")
    stamp(k, 5)
    k(f"""buffer_load_dwordx4 v[16:19], v8, s[12:15], s43 offen sc1
    buffer_load_dwordx4 v[28:31], v8, s[12:15], s44 offen sc1
    buffer_load_dwordx4 v[20:23], v3, s[12:15], s46 offen sc1
    buffer_load_dwordx4 v[24:27], v3, s[12:15], s46 offen offset:1024 sc1
    s_cmp_eq_u32 s70, 1
    s_cselect_b32 s72, 1.0, 0
    s_cmp_eq_u32 s70, 4
    s_cselect_b32 s72, 1.0, s72
    s_waitcnt vmcnt(0)
    v_max3_u32 v20, v20, v21, v22
    v_max3_u32 v23, v23, v24, v25
    v_max3_u32 v20, v20, v26, v27
    v_max_u32 v20, v20, v23""")
    padd(k, 16, 16, 28); padd(k, 18, 18, 30)
    k("""v_permlane32_swap_b32 v16, v18
    v_permlane32_swap_b32 v17, v19""")
    padd(k, 16, 16, 18)
    k("v_permlane16_swap_b32 v16, v17")
    k("v_add_f32 v16, v16, v17")
    wave_reduce_to63(k, [20], "v_max_u32")
    round_bf16(k, 16, 16)
    k(f"""v_mul_f32 v20, {f32(8.25)}, v20
    v_add_f32 v16, s72, v16
    v_add_f32 v20, 1.0, v20
    v_frexp_exp_i32_f32 v20, v20
    v_readlane_b32 s73, v20, 63""")
    round_bf16(k, 16, 16)
    k.c("K = e+1 ; exponent: sa 6-K (half scale), ca -K, ga K+4, others 0")
    k(f"""s_sub_u32 s74, 5, s73
    s_sub_u32 s75, -1, s73
    s_add_u32 s77, s73, 5
    s_cmp_eq_u32 s70, 0
    s_cselect_b32 s74, s74, 0
    s_cmp_eq_u32 s70, 1
    s_cselect_b32 s74, s75, s74
    s_cmp_eq_u32 s70, 2
    s_cselect_b32 s74, s77, s74
    v_ldexp_f32 v16, v16, s74
    s_cmp_ge_u32 s70, 2
    s_cbranch_scc1 x_f32
    v_cvt_f16_f32 v16, v16
    s_xor_b32 s75, s70, 1
    s_lshl_b32 s75, s75, 11
    s_add_u32 s75, s75, {WS_CS}
    buffer_store_short v16, v5, s[12:15], s75 offen sc1
    s_branch x_fd
    x_f32:
    s_lshl_b32 s75, s70, 12
    s_add_u32 s75, s75, {WS_PAR - 2*4096}
    buffer_store_dword v16, v10, s[12:15], s75 offen sc1
    x_fd:
    s_waitcnt vmcnt(0)""")
    stamp(k, 6)
    k(f"""s_barrier
    s_cmp_lg_u32 s16, 0
    s_cbranch_scc1 x_nf
    s_mov_b64 exec, 0xff
    buffer_store_dwordx2 v[{NON}:{NON+1}], v{FA}, s[12:15], s79 offen sc1
    s_mov_b64 exec, -1
    x_nf:
    s_and_b32 s18, s17, 63
    v_and_b32 v5, 3, v0
    v_lshlrev_b32 v5, 3, v5
    v_and_b32 v6, 1, v0
    v_lshlrev_b32 v6, 10, v6
    v_bfe_u32 v7, v0, 1, 1
    v_lshl_add_u32 v6, v7, 4, v6
    s_lshr_b32 s19, s18, 5
    s_lshl_b32 s19, s19, 11
    s_and_b32 s31, s18, 31
    s_lshl_b32 s31, s31, 5
    s_add_u32 s19, s19, s31
    s_add_u32 s31, s19, {WS_PAR + 3*4096}""")
    for j in range(2):
        k(f"buffer_load_dwordx4 v[{40+4*j}:{43+4*j}], v3, s[8:11], 0 offen offset:{j*1024}")
    k(f"s_sleep {SLX}")
    poll_keys(k, "x_pk", KB, 78, 7)
    stamp(k, 13)
    top2(k, KB, 40, 41, 20)
    k(f"""s_cmp_lt_u32 s17, 64
    s_cselect_b32 s40, s40, s41
    s_and_b32 s40, s40, 0x7ff
    s_lshl_b32 s41, s40, 11
    s_add_u32 s42, s41, {WS_H2}
    s_lshl_b32 s19, s18, 5
    s_add_u32 s41, s41, s19""")
    for j in range(2):
        k(f"buffer_load_dwordx4 v[{32+4*j}:{35+4*j}], v3, s[12:15], s42 offen offset:{j*1024} sc1")
    k("buffer_load_dwordx2 v[84:85], v5, s[24:27], s41 offen sc1")
    k("buffer_load_dwordx4 v[80:83], v6, s[12:15], s31 offen sc1")
    for i in range(8): unpack_bf16(k, 48 + 2*i, 40 + i)
    k(f"""s_lshl_b32 s44, s17, 11
    s_add_u32 s44, s44, {WS_PART}
    v_cmp_gt_u32 vcc, 48, v2
    v_mov_b32 v7, 0x7ff00000
    v_cndmask_b32 v7, v7, v3, vcc
    s_waitcnt vmcnt(2)""")
    for i in range(8): unpack_bf16(k, 64 + 2*i, 32 + i)
    pmul(k, 8, 48, 64)
    for i in range(1, 8): pfma(k, 8, 48 + 2*i, 64 + 2*i, 8)
    k("v_add_f32 v8, v8, v9")
    wave_reduce_to63(k, [8])
    round_bf16(k, 8, 8)
    k(f"""v_mul_f32 v8, {f32(-math.log2(math.e))}, v8
    v_exp_f32 v8, v8
    v_add_f32 v8, 1.0, v8
    v_rcp_f32 v8, v8""")
    round_bf16(k, 8, 8)
    k("v_readlane_b32 s46, v8, 63")
    k("s_waitcnt vmcnt(0)")
    unpack_bf16(k, 44, 84); unpack_bf16(k, 46, 85)
    for h in range(2): pmul_s(k, 80 + 2*h, 80 + 2*h, 46)
    stamp(k, 14)
    L = 16
    k(f"s_sleep {SL4}")
    k(f"s_mov_b32 s83, 0\nx_p2:")
    for j in range(2):
        k(f"buffer_load_dwordx4 v[{L+4*j}:{L+4*j+3}], v{7 if j == 1 else 3}, s[12:15], s44 offen offset:{j*1024} sc1")
    k("s_waitcnt vmcnt(0)")
    chk_sent(k, range(L, L + 8), 12)
    k(f"""s_cbranch_vccz x_p3
    s_add_u32 s83, s83, 1
    s_cmp_lt_u32 s83, {SPIN}
    s_cbranch_scc1 x_p2
    x_p3:""")
    stamp(k, 17)
    for h in range(2): padd(k, L + 2*h, L + 2*h, L + 4 + 2*h)
    regs = [L, L + 1, L + 2, L + 3]
    for sh in (4, 8):
        for r in regs: k(f"v_add_f32_dpp v{r}, v{r}, v{r} row_ror:{sh} {DPPM}")
    for r in regs: k(f"v_mov_b32 v{r+4}, v{r}")
    for r in regs: k(f"v_permlane16_swap_b32 v{r}, v{r+4}")
    for r in regs: k(f"v_add_f32 v{r}, v{r}, v{r+4}")
    for r in regs: k(f"v_mov_b32 v{r+4}, v{r}")
    for r in regs: k(f"v_permlane32_swap_b32 v{r}, v{r+4}")
    for r in regs: k(f"v_add_f32 v{r}, v{r}, v{r+4}")
    for h in range(2): pfma(k, 44 + 2*h, L + 2*h, 80 + 2*h, 44 + 2*h)
    k(f"""v_cvt_pk_bf16_f32 v12, v44, v45
    v_cvt_pk_bf16_f32 v13, v46, v47
    s_mov_b64 exec, 15
    buffer_store_dwordx2 v[12:13], v5, s[24:27], s41 offen sc1""")
    stamp_out(k, 0)

def gen():
    k = K(NAME)
    stamp_init(k)
    k("""s_cmp_ge_u32 s2, 256
    s_cbranch_scc1 k_done""")
    stamp(k, 0)
    k("""v_lshrrev_b32 v1, 6, v0
    v_and_b32 v2, 63, v0
    v_readfirstlane_b32 s16, v1
    v_lshlrev_b32 v3, 4, v2
    s_and_b32 s34, s2, 7""")
    phase_A(k)
    role_F(k)
    role_G(k)
    k("k_done:\ns_endpgm")
    return k

HEADER = """; adaLN + FNet mixing + MoD block, gfx950.  Generated by gen/gen4.py (hand-written generator).
"""
def main(out):
    k = gen()
    t = HEADER + f"; @launch grid=(256,1,1) block=(512,1,1) lds={LDS}\n"
    t += '.amdgcn_target "amdgcn-amd-amdhsa--gfx950"\n.text\n' + k.text() + 'code_end:\n'
    t += '.section .rodata,"a"\n' + k.desc()
    open(out, "w").write(t)
if __name__ == "__main__":
    main(sys.argv[1] if len(sys.argv) > 1 else "adaLN_cond__spectral_fnet__moe_arch_mod__prompt.s")
```

```python
import math, sys, os
from asmgen import K, f32
from gen2 import (srd, P, padd, psub, pmul, pfma, pmul_s, pfma_s, psub_s, unpack_bf16, round_bf16, DPPM,
                  row_allreduce, wave_reduce_to63, pos16, pos32, stamp, stamp_init, stamp_out, chk_sent,
                  A_X, A_WR, A_WG, A_WU, A_WD, A_C, A_WM, A_OUT, A_DBG, A_WS, WS_SIZE)
from gen4 import get_nonce_issue, get_nonce_finish, poll_keys, top2, fft_consts, E, SPIN, SL1, SL2, SL3, SL4, XFAST, NAME

WSO = int(os.environ.get("WSO", "0"), 0)
WS_Z1   = WSO + 0x0100000
WS_ZF   = WSO + 0x0600000
WS_CAP  = WSO + 0x1000000
WS_MODP = WSO + 0x1010000
WS_PAR  = WSO + 0x1042000
WS_FL1  = WSO + 0x1050000
WS_FLM  = WSO + 0x1054000
WS_FLX  = WSO + 0x1058000
WS_FLG  = WSO + 0x105C000
WS_ZL   = WSO + 0x1060000
WS_MX   = WSO + 0x1070000
WS_SENT = WSO + 0x1200000
WS_PART = WS_SENT
WS_XA   = WS_SENT + 0x80000
WS_XB   = WS_SENT + 0xC0000
WS_KEY  = WS_SENT + 0xF8000
WS_KEY2 = WS_SENT + 0xB8000
WS_TT   = WS_SENT + 0xFC000
WS_SLOT = WS_SENT + 0x100000
L_C = 0; L_P = 16384; L_Y = 36864; L_KEY = L_Y + 9 * 4608; L_ST = L_KEY + 128
L_SI = L_ST + 256; L_CS = 79872; L_S = 83968; L_T = 16384; XP = 2080
LDS = 131072 + 8192
NON = 6; FA = 62
NTD = os.environ.get('NTD', ''); NTG = os.environ.get('NTG', ''); NTV = os.environ.get('NTV', '')
B2AT = E('B2AT', 1)
DEPTH = E('DEPTH', 0); GDEPTH = E('GDEPTH', 0); ZFL = os.environ.get('ZFL', 'sc1 nt')
LOG2E = f32(-math.log2(math.e))

def cmp_recs(k, base, n, tmp, mask_hi=False):
    for i in range(n): k(f"v_xor_b32 v{base+i}, s{32 + (i & 1)}, v{base+i}")
    if mask_hi:
        k(f"v_or_b32 v{tmp+1}, v{base+1}, v{base+3}")
        k(f"v_and_b32 v{tmp}, -8, v{tmp+1}")
        k(f"v_or3_b32 v{tmp}, v{tmp}, v{base}, v{base+2}")
    else:
        k(f"v_or3_b32 v{tmp}, v{base}, v{base+1}, v{base+2}")
        k(f"v_or_b32 v{tmp}, v{tmp}, v{base+3}")
    k(f"v_cmp_ne_u32 vcc, 0, v{tmp}")
def poll_recs(k, lab, base, vaddr, soff, tmp, mask_hi=False, sl=None):
    k(f"s_mov_b32 s83, 0\n{lab}:")
    k(f"buffer_load_dwordx4 v[{base}:{base+3}], v{vaddr}, s[12:15], s{soff} offen sc1")
    k("s_waitcnt vmcnt(0)")
    cmp_recs(k, base, 4, tmp, mask_hi)
    k(f"""s_cbranch_vccz {lab}x
    s_sleep {SL2 if sl is None else sl}
    s_add_u32 s83, s83, 1
    s_cmp_lt_u32 s83, {SPIN}
    s_cbranch_scc1 {lab}
    {lab}x:""")
def spoll(k, lab, soff, xcc):
    k(f"s_or_b32 s41, s33, s39\ns_mov_b32 s40, s32\ns_mov_b32 s72, 0\ns_mov_b32 s83, 0")
    par = not E("STAMPS", 0)
    for h in range(1 if par else 2):
        k(f"""{lab}{h}:
        s_load_dwordx16 s[56:71], s[6:7], s{soff} offset:{h*64} glc""")
        if par: k(f"s_load_dwordx16 s[84:99], s[6:7], s{soff} offset:64 glc")
        k("s_waitcnt lgkmcnt(0)")
        for i in range(8): k(f"s_xor_b64 s[{56+2*i}:{57+2*i}], s[{56+2*i}:{57+2*i}], s[40:41]")
        if par:
            for i in range(8): k(f"s_xor_b64 s[{84+2*i}:{85+2*i}], s[{84+2*i}:{85+2*i}], s[40:41]")
            for i in range(8): k(f"s_or_b64 s[{56+2*i}:{57+2*i}], s[{56+2*i}:{57+2*i}], s[{84+2*i}:{85+2*i}]")
        for st in (8, 4, 2):
            for i in range(0, st, 2): k(f"s_or_b64 s[{56+i}:{57+i}], s[{56+i}:{57+i}], s[{56+st+i}:{57+st+i}]")
        k(f"""s_and_b32 s58, s57, -8
        s_or_b32 s58, s58, s56
        s_cbranch_scc0 {lab}{h}x
        s_sleep {E("SSL", 4)}
        s_add_u32 s83, s83, 1
        s_cmp_lt_u32 s83, {SPIN}
        s_cbranch_scc1 {lab}{h}
        {lab}{h}x:
        s_or_b32 s72, s72, s57""")
def go_wait(k, lab, soff):
    k(f"""v_mov_b32 v22, 0
    s_mov_b32 s83, 0
    {lab}:
    buffer_load_dword v23, v22, s[12:15], s{soff} offen offset:1024 sc1
    s_waitcnt vmcnt(0)
    v_cmp_eq_u32 vcc, -1, v23
    s_cbranch_vccz {lab}x
    s_sleep {E("SLG", 3)}
    s_add_u32 s83, s83, 1
    s_cmp_lt_u32 s83, {SPIN}
    s_cbranch_scc1 {lab}
    {lab}x:
    s_sleep {E("SLG2", 1)}""")
def res_wait(k, lab, soff, vz, vd, sl):
    k(f"""v_mov_b32 v{vz}, 0
    s_mov_b32 s83, 0
    {lab}:
    buffer_load_dwordx2 v[{vd}:{vd+1}], v{vz}, s[12:15], s{soff} offen offset:1280 sc1
    s_waitcnt vmcnt(0)
    v_readfirstlane_b32 s40, v{vd}
    v_readfirstlane_b32 s41, v{vd+1}
    s_max_u32 s42, s40, s41
    s_cmp_lg_u32 s42, -1
    s_cbranch_scc1 {lab}x
    s_sleep {sl}
    s_add_u32 s83, s83, 1
    s_cmp_lt_u32 s83, {SPIN}
    s_cbranch_scc1 {lab}
    {lab}x:""")
def rb2(k, v, t):
    k(f"v_cvt_pk_bf16_f32 v{t}, v{v}, v{v+1}")
    unpack_bf16(k, v, t)

L_B = 118784
def role_F(k):
    XRA, XRB, ZA, ZB, CS, SAR = 8, 16, 24, 32, 40, 48
    V70, YW, YRA, YRM, YRB, YRC = 56, 57, 58, 59, 60, 61
    BRE, BIM, TC, TS, W, D1R, D1I = 64, 80, 96, 112, 128, 144, 160
    GA, C1, WR, XA2, XB2 = 176, 192, 208, 224, 240
    L = 24; B1R, B1I, B2R, B2I, T2C, T2S = 192, 196, 40, 44, 48, 52
    SA_, RA_, TWA, TRA, STA = 200, 204, 205, 206, 207
    k(f"""s_load_dwordx2 s[4:5], s[0:1], {A_X}
    s_load_dwordx4 s[24:27], s[0:1], {A_OUT}
    s_load_dwordx2 s[6:7], s[0:1], {A_WS}
    s_load_dwordx4 s[48:51], s[0:1], {A_C}
    s_getreg_b32 s39, hwreg(HW_REG_XCC_ID)
    s_getpc_b64 s[62:63]
    f_pc:
    s_add_u32 s62, s62, tables-f_pc
    s_addc_u32 s63, s63, 0
    s_lshr_b32 s35, s2, 4
    s_lshl_b32 s42, s16, 11
    s_mov_b32 m0, s42
    v_add_u32 v4, s42, v3
    global_load_lds_dwordx4 v4, s[62:63]
    global_load_lds_dwordx4 v4, s[62:63] offset:1024
    s_lshr_b32 s43, s35, 3
    s_cmp_eq_u32 s34, 0
    s_cselect_b32 s43, s43, 0
    s_lshl_b32 s43, s43, 13
    s_lshl_b32 s42, s16, 10
    s_add_u32 s43, s43, s42
    s_add_u32 s43, s43, 16384
    s_add_u32 s42, s42, {L_B}
    s_mov_b32 m0, s42
    v_add_u32 v4, s43, v3
    s_cmp_ge_u32 s16, 6
    s_cbranch_scc1 f_nt
    global_load_lds_dwordx4 v4, s[62:63]
    f_nt:""")
    k.c("s35 = mm ; s3 = c*16+mm ; s17 = r ; GEMV tile: kq = s40 = s3&3, nchunk = s41 = s3>>2")
    k(f"""s_and_b32 s39, s39, 7
    s_lshl_b32 s3, s34, 4
    s_add_u32 s3, s3, s35
    s_sub_u32 s17, 16, s34
    s_cmp_eq_u32 s34, 0
    s_cselect_b32 s17, 8, s17
    s_bitcmp1_b32 s35, 0
    s_cselect_b32 s17, s17, s34
    s_lshr_b32 s36, s35, 1
    s_lshl_b32 s36, s36, 4
    s_add_u32 s17, s17, s36
    s_lshl_b32 s36, s16, 8
    s_add_u32 s36, s36, s17
    s_lshl_b32 s36, s36, 11
    s_add_u32 s37, s36, {128*2048}
    s_and_b32 s40, s3, 3
    s_lshr_b32 s41, s3, 2
    v_and_b32 v70, 15, v0
    v_bfe_u32 v71, v0, 4, 2
    v_lshlrev_b32 v4, 1, v0
    v_bfe_u32 v5, v0, 5, 1
    v_lshlrev_b32 v5, 3, v5
    v_bfe_u32 v7, v0, 3, 2
    v_add_u32 v5, v5, v7
    v_mul_u32_u24 v5, 12288, v5
    v_lshlrev_b32 v7, 1, v71
    v_xor_b32 v7, v7, v0
    v_and_b32 v7, 7, v7
    v_lshl_add_u32 v5, v7, 4, v5
    s_lshl_b32 s42, s40, 3
    s_add_u32 s42, s42, s16
    s_mul_i32 s42, s42, {32*12288}
    s_lshl_b32 s43, s41, 7
    s_add_u32 s42, s42, s43
    s_lshl_b32 s43, s16, 12
    s_add_u32 s43, s43, {L_T}
    s_lshl_b32 s44, s40, 9""")
    k.c("A-matrix base: lane m = 2k+c', rows j = 4g+i")
    AB = 40
    k(f"""v_lshrrev_b32 v72, 1, v70
    v_and_b32 v73, 1, v0
    v_cmp_eq_u32 vcc, 1, v70
    v_mov_b32 v74, s17
    v_cndmask_b32_e64 v72, v72, 8, vcc
    v_cndmask_b32_e64 v74, v74, 0, vcc
    v_cndmask_b32_e64 v73, v73, 0, vcc
    v_lshl_add_u32 v74, v71, 9, v74
    v_mul_u32_u24 v74, v72, v74
    v_lshl_add_u32 v74, v73, 9, v74
    v_lshlrev_b32 v72, 7, v72
    v_cmp_gt_u32 vcc, 2, v70
    v_mov_b32 v75, {f32(1.0/16)}
    v_mov_b32 v76, {f32(1.0/32)}
    v_cndmask_b32 v75, v75, v76, vcc
    s_waitcnt lgkmcnt(0)""")
    srd(k, 8, 4, 2048 * 1024 * 2)
    stamp(k, 1)
    XW = 24
    for h in range(2):
        for jj in range(2):
            k(f"buffer_load_dwordx4 v[{XW+8*jj+4*h}:{XW+8*jj+4*h+3}], v3, s[8:11], s{36+jj} offen offset:{h*1024}")
    srd(k, 52, 48, 2048)
    srd(k, 56, 50, 1024 * 6144 * 2)
    k("buffer_load_ushort v63, v4, s[52:55], s44 offen")
    k("s_mov_b32 s72, s42\ns_mov_b32 s73, s43")
    srd(k, 12, 6, WS_SIZE)
    srd(k, 20, 26, 256)
    k("s_mov_b32 s26, 4194304\ns_mov_b32 s27, 0x00020000")
    for i in range(4):
        k(f"v_and_b32 v{AB+i}, 2047, v74")
        if i < 3: k("v_add_u32 v74, v74, v72")
    for i in range(4): k(f"v_cvt_f32_u32 v{AB+i}, v{AB+i}")
    for i in range(4): k(f"v_mul_f32 v{AB+i}, {f32(1.0/2048)}, v{AB+i}")
    for i in range(4): k(f"v_cos_f32 v{AB+i}, v{AB+i}")
    for i in range(4): k(f"v_mul_f32 v{AB+i}, v75, v{AB+i}")
    VO, XWA, TRA_, RT, MT, STW = 44, 45, 46, 47, 52, 53
    GT, GS, GO_ = 64, 65, 66
    k(f"""s_mov_b32 s47, {L_S}
    v_lshlrev_b32 v{VO}, 20, v71
    v_lshl_add_u32 v{VO}, v1, 15, v{VO}
    v_lshl_add_u32 v{VO}, v70, 4, v{VO}
    v_mul_u32_u24 v{XWA}, {2*XP}, v1
    v_add3_u32 v{XWA}, v{XWA}, v3, s47
    v_lshrrev_b32 v72, 2, v2
    v_mul_u32_u24 v{TRA_}, {XP}, v72
    v_lshlrev_b32 v{GT}, 7, v72
    v_and_b32 v72, 3, v0
    v_lshl_add_u32 v{TRA_}, v72, 3, v{TRA_}
    v_lshl_add_u32 v{GT}, v72, 3, v{GT}
    v_lshrrev_b32 v72, 1, v1
    v_lshl_add_u32 v{TRA_}, v72, 8, v{TRA_}
    v_and_b32 v72, 1, v1
    v_lshl_add_u32 v{TRA_}, v72, 5, v{TRA_}
    v_add_u32 v{TRA_}, s47, v{TRA_}
    v_lshlrev_b32 v{RT}, 4, v71
    v_add_u32 v{GS}, {L_SI}, v{RT}
    v_add_u32 v{RT}, {L_ST}, v{RT}
    v_lshlrev_b32 v{MT}, 3, v71
    v_add_u32 v{MT}, {L_ST+64}, v{MT}
    v_lshrrev_b32 v72, 5, v0
    v_lshlrev_b32 v{STW}, 2, v72
    v_add_u32 v{STW}, {L_ST}, v{STW}
    v_lshlrev_b32 v54, 1, v72
    v_add_u32 v54, {L_ST+64}, v54
    v_add_u32 v67, {L_SI}, v4
    v_bfe_u32 v72, v0, 3, 2
    v_xor_b32 v72, v72, v1
    v_lshl_add_u32 v{GT}, v72, 5, v{GT}
    v_lshlrev_b32 v{GO_}, 2, v2
    v_lshlrev_b32 v{FA}, 11, v2
    s_lshl_b32 s64, s3, 8
    s_add_u32 s64, s64, {WS_Z1}
    s_add_u32 s65, s64, 262144
    s_add_u32 s66, s64, 524288
    s_add_u32 s67, s64, {524288+262144}
    s_mov_b32 s44, 0x3f803f80
    s_mov_b32 s46, {f32(1.0/1024)}
    s_lshl_b32 s42, s40, 13
    s_lshl_b32 s43, s41, 8
    s_add_u32 s42, s42, s43
    s_lshl_b32 s43, s16, 6
    s_add_u32 s42, s42, s43
    s_add_u32 s42, s42, {WS_CAP}
    s_lshl_b32 s78, s3, 3
    s_add_u32 s80, s78, {WS_KEY}
    s_add_u32 s78, s78, {WS_FL1}
    s_lshl_b32 s60, s35, 3
    s_add_u32 s60, s60, s16
    s_lshl_b32 s30, s60, 4
    s_add_u32 s30, s30, s34
    s_lshl_b32 s28, s60, 8
    s_add_u32 s29, s28, 262144
    s_cmp_lg_u32 s34, 0
    s_cbranch_scc1 f_g1
    s_sub_u32 s29, 128, s60
    s_cmp_eq_u32 s60, 0
    s_cselect_b32 s29, 64, s29
    s_lshl_b32 s29, s29, 8
    s_cmp_lt_u32 s60, 64
    s_cbranch_scc1 f_g1
    s_sub_u32 s30, s30, {1024-8}
    s_add_u32 s28, s28, {262144-64*256}
    s_add_u32 s29, s29, {262144+63*256}
    f_g1:
    s_lshl_b32 s61, s34, 19
    s_add_u32 s61, s61, {WS_ZF if E('ZMODE', 0) else WS_Z1}
    s_add_u32 s28, s28, s61
    s_add_u32 s29, s29, s61
    s_add_u32 s52, s28, 131072
    s_add_u32 s53, s29, 131072
    s_sub_u32 s31, 2048, s30
    s_cmp_eq_u32 s30, 0
    s_cselect_b32 s31, 1024, s31
    s_lshl_b32 s18, s30, 11
    s_lshl_b32 s19, s31, 11
    s_lshl_b32 s76, s34, 11
    s_add_u32 s77, s76, {WS_FLG}
    s_add_u32 s75, s76, {WS_FLX}
    s_add_u32 s74, s76, {WS_KEY}
    s_add_u32 s76, s76, {WS_FL1}
    s_lshl_b32 s79, s35, 3
    s_add_u32 s79, s79, s77""")
    def wdma():
        for d in range(4):
            rows = 16 * (d & 1) + 4 * (d >> 1)
            k(f"s_add_u32 s71, s72, {rows*12288}")
            k(f"s_mov_b32 m0, s73")
            k(f"s_add_u32 s73, s73, 1024")
            k(f"buffer_load_dwordx4 v5, s[56:59], s71 offen lds")
    WPOS = E("WPOS", 1)
    PW = E("PW", 0)
    if WPOS == 0: wdma()
    S = 48
    for h in range(2):
        for jj in range(2):
            k(f"s_waitcnt vmcnt({(8 if WPOS == 0 else 4) - 2*h - jj})")
            k(f"ds_write_b128 v{XWA}, v[{XW+8*jj+4*h}:{XW+8*jj+4*h+3}] offset:{jj*XP + h*1024}")
            for q in range(4):
                r = XW + 8*jj + 4*h + q
                first = (h == 0 and q == 0)
                k(f"v_dot2_f32_bf16 v{S+jj}, v{r}, s44, {'0' if first else f'v{S+jj}'}")
                k(f"v_dot2_f32_bf16 v{S+2+jj}, v{r}, v{r}, {'0' if first else f'v{S+2+jj}'}")
    stamp(k, 2)
    if PW:
        k(f"""s_cmp_lg_u32 s16, 0
        s_cbranch_scc1 f_npw
        v_mov_b32 v72, 0
        v_mov_b32 v73, 0
        s_mov_b64 exec, 0xff
        buffer_store_dwordx2 v[72:73], v{FA}, s[12:15], s78 offen sc1
        s_mov_b64 exec, -1
        f_npw:""")
    if WPOS == 1: wdma()
    R = 96
    k("s_nop 1")
    def red1(js):
        for j in js: k(f"v_permlane32_swap_b32 v{S+j}, v{S+j+1}")
        for j in js: k(f"v_add_f32 v{S+j}, v{S+j}, v{S+j+1}")
        regs = [S + j for j in js]
        row_allreduce(k, regs)
        for r in regs: k(f"v_add_f32_dpp v{r}, v{r}, v{r} row_bcast:15 row_mask:0xa bank_mask:0xf")
    red1((0, 2))
    k.c("lanes 31 / 63 hold the two rows")
    V = S + 2
    k(f"""v_mul_f32 v{S}, s46, v{S}
    v_mul_f32 v{V}, s46, v{V}
    v_mul_f32 v{R+4}, v{S}, v{S}
    v_cvt_pk_bf16_f32 v55, -v{S}, -v{S}
    v_sub_f32 v{V}, v{V}, v{R+4}
    v_mul_f32 v{R+6}, {f32(512.0)}, v{V}
    v_cmp_gt_f32 vcc, v{R+4}, v{R+6}
    s_or_b32 s68, vcc_lo, vcc_hi
    s_bitcmp1_b32 s68, 31
    s_cbranch_scc1 f_slowvar
    f_var:""")
    round_bf16(k, V, V)
    k(f"v_add_f32 v{V}, {f32(1e-5)}, v{V}")
    round_bf16(k, V, V)
    k(f"v_sqrt_f32 v{V}, v{V}")
    round_bf16(k, V, V)
    k(f"""v_rcp_f32 v{V}, v{V}
    s_mov_b32 exec_lo, 0x80000000
    s_mov_b32 exec_hi, 0x80000000
    ds_write_b16 v54, v55
    ds_write_b32 v{STW}, v{V}
    s_mov_b64 exec, -1""")
    if WPOS == 2: wdma()
    k(f"""s_waitcnt lgkmcnt(0)
    s_barrier
    ds_read_b128 v[{R}:{R+3}], v{RT}
    ds_read_b64 v[{R+4}:{R+5}], v{MT}""")
    BFR = 80
    for ah in range(2):
        for q in range(4):
            u = ah * 4 + q
            k(f"ds_read_b64_tr_b16 v[{BFR+2*u}:{BFR+2*u+1}], v{TRA_} offset:{ah*1024 + q*64}")
    XE = E("XE", 1)
    if XE:
        for j in range(2):
            k(f"buffer_load_dwordx4 v[{XRA+4*j}:{XRA+4*j+3}], v3, s[8:11], s18 offen offset:{j*1024}")
            k(f"buffer_load_dwordx4 v[{XRB+4*j}:{XRB+4*j+3}], v3, s[8:11], s19 offen offset:{j*1024}")
    k("s_waitcnt lgkmcnt(8)")
    BM = R + 4
    for h in range(2): pmul(k, AB + 2*h, AB + 2*h, R + 2*h)
    AH, AL, T = 48, 50, 104
    for h in range(2): k(f"v_cvt_pk_bf16_f32 v{AH+h}, v{AB+2*h}, v{AB+2*h+1}")
    for h in range(2): unpack_bf16(k, T + 2*h, AH + h)
    D0 = 108; D = 112
    k(f"v_mfma_f32_16x16x16_bf16 v[{D0}:{D0+3}], v[{AH}:{AH+1}], v[{BM}:{BM+1}], 0")
    for h in range(2): psub(k, T + 2*h, AB + 2*h, T + 2*h)
    for h in range(2): k(f"v_cvt_pk_bf16_f32 v{AL+h}, v{T+2*h}, v{T+2*h+1}")
    k(f"v_mfma_f32_16x16x16_bf16 v[{D0}:{D0+3}], v[{AL}:{AL+1}], v[{BM}:{BM+1}], v[{D0}:{D0+3}]")
    k("s_waitcnt lgkmcnt(0)")
    for u in range(8):
        k(f"v_mfma_f32_16x16x16_bf16 v[{D+4*u}:{D+4*u+3}], v[{AL}:{AL+1}], v[{BFR+2*u}:{BFR+2*u+1}], v[{D0}:{D0+3}]")
    for u in (0, 4, 1, 5, 2, 6, 3, 7):
        k(f"v_mfma_f32_16x16x16_bf16 v[{D+4*u}:{D+4*u+3}], v[{AH}:{AH+1}], v[{BFR+2*u}:{BFR+2*u+1}], v[{D+4*u}:{D+4*u+3}]")
    OB = 144
    k("v_mov_b32 v4, 0")
    for ah in range(2):
        for q in range(4):
            u = ah * 4 + q
            k(f"v_cvt_pk_f16_f32 v{OB + (2+ah)*4 + q}, v{D+4*u+2}, v{D+4*u+3}")
        k(f"buffer_store_dwordx4 v[{OB+4*(2+ah)}:{OB+4*(2+ah)+3}], v{VO}, s[12:15], s{66+ah} offen sc1")
    k("s_mov_b64 exec, 0xffff")
    for q in range(4):
        k(f"v_swap_b32 v{D+4*q+1}, v{D+4*(4+q)}")
    k("s_mov_b64 exec, -1")
    for ah in range(2):
        for q in range(4):
            u = ah * 4 + q
            k(f"v_cvt_pk_f16_f32 v{OB + ah*4 + q}, v{D+4*u}, v{D+4*u+1}")
        k(f"buffer_store_dwordx4 v[{OB+4*ah}:{OB+4*ah+3}], v{VO}, s[12:15], s{64+ah} offen sc1")
    get_nonce_issue(k, 4, NON)
    stamp(k, 3)
    k.c("---- sa|ca GEMV tile on MFMA: waves 0-3, N-tile = wave ----")
    k(f"""s_waitcnt vmcnt({13 if XE else 9})
    v_lshlrev_b32 v63, 16, v63
    v_mul_f32 v72, {LOG2E}, v63
    v_exp_f32 v72, v72
    v_add_f32 v72, 1.0, v72
    v_rcp_f32 v72, v72
    v_mul_f32 v63, v63, v72
    v_cvt_pk_bf16_f32 v63, v63, v63
    ds_write_b16 v67, v63
    s_waitcnt vmcnt({9 if XE else 5}) lgkmcnt(0)
    s_barrier
    s_cmp_ge_u32 s16, 4
    s_cbranch_scc1 f_ngv""")
    GB_, GA_ = 160, 224
    for ks in range(8):
        k(f"ds_read_b128 v[{GA_+4*ks}:{GA_+4*ks+3}], v{GS} offset:{ks*64}")
        k(f"ds_read_b64_tr_b16 v[{GB_+4*ks}:{GB_+4*ks+1}], v{GT} offset:{L_T+ks*4096}")
        k(f"ds_read_b64_tr_b16 v[{GB_+4*ks+2}:{GB_+4*ks+3}], v{GT} offset:{L_T+ks*4096+2048}")
    for ks in range(8):
        if ks in (0, 4): k(f"s_waitcnt lgkmcnt({12 if ks == 0 else 0})")
        cc = "0" if ks == 0 else "v[76:79]"
        k(f"v_mfma_f32_16x16x32_bf16 v[76:79], v[{GA_+4*ks}:{GA_+4*ks+3}], v[{GB_+4*ks}:{GB_+4*ks+3}], {cc}")
    k(f"""s_mov_b64 exec, 0xffff
    buffer_store_dword v76, v{GO_}, s[12:15], s42 offen sc1
    s_mov_b64 exec, -1
    f_ngv:""")
    k.c("---- phase-B / phase-C addresses (while the stores drain) ----")
    k(f"""v_lshrrev_b32 v79, 1, v71
    v_and_b32 v75, 1, v71
    v_lshl_add_u32 v74, v1, 1, v75
    v_xor_b32 v74, v74, v70
    v_lshlrev_b32 v74, 4, v74
    v_lshl_add_u32 v{SA_}, v71, 8, v74
    v_lshl_add_u32 v76, v1, 1, v79
    v_xor_b32 v74, v76, v70
    v_lshlrev_b32 v74, 4, v74
    v_lshl_add_u32 v74, v70, 8, v74
    v_lshl_add_u32 v{TWA}, v75, 12, v74
    v_sub_u32 v74, 16, v70
    v_and_b32 v74, 7, v74
    v_cmp_gt_u32 vcc, 8, v70
    v_cndmask_b32 v74, v74, v70, vcc
    v_lshrrev_b32 v77, 3, v70
    v_lshl_add_u32 v78, v74, 1, v77
    v_xor_b32 v78, v78, v76
    v_lshlrev_b32 v78, 4, v78
    v_lshl_add_u32 v78, v74, 12, v78
    v_lshl_add_u32 v78, v77, 8, v78
    v_lshl_add_u32 v{RA_}, v75, 11, v78
    v_add_u32 v{RA_}, {L_S}, v{RA_}
    v_lshlrev_b32 v{TRA}, 4, v0
    v_bfe_u32 v74, v0, 4, 4
    v_lshlrev_b32 v{STA}, 11, v74
    v_xor_b32 v74, v74, v70
    v_lshl_add_u32 v{STA}, v74, 4, v{STA}
    v_lshrrev_b32 v74, 8, v0
    v_lshl_add_u32 v{STA}, v74, 10, v{STA}
    v_and_b32 v{V70}, 0x70, v3
    s_lshl_b32 s73, s35, 15
    s_add_u32 s73, s73, s61
    s_lshl_b32 s43, s16, 12
    s_add_u32 s42, s73, s43
    s_sub_u32 s42, s42, {(WS_ZF - WS_Z1) if E('ZMODE', 0) else 0}
    s_add_u32 s45, s43, {L_Y}
    s_add_u32 s43, s43, {L_S}
    s_mov_b32 m0, s43
    s_lshl_b32 s46, s16, 10
    s_add_u32 s47, s46, {WS_PAR}
    s_add_u32 s46, s46, {L_P}
    v_and_b32 v74, 31, v0
    v_bfe_u32 v75, v0, 1, 2
    v_lshl_add_u32 v74, v74, 2, v75
    v_lshlrev_b32 v74, 4, v74
    v_bfe_u32 v75, v0, 5, 1
    v_lshl_add_u32 v74, v75, 11, v74
    v_add_u32 v{YW}, s45, v74""")
    def yaddr(dst, first):
        k(first)
        k(f"""v_bfe_u32 v75, v74, 3, 2
        v_xor_b32 v74, v74, v75
        v_lshl_add_u32 v{dst}, v74, 4, s45""")
    yaddr(YRA, "v_mov_b32 v74, v2")
    yaddr(YRM, "v_sub_u32 v74, 63, v2")
    yaddr(YRB, "v_sub_u32 v74, 128, v2\nv_and_b32 v74, 127, v74")
    yaddr(YRC, "v_sub_u32 v74, 64, v2")
    k("v_lshlrev_b32 v74, 1, v0")
    pos16(k, 63, 74, 75)
    k(f"""v_add_u32 v63, {L_CS}, v63
    v_add_u32 v5, {L_B}, v3""")
    for i, base in enumerate((B1R, B1I, B2R, B2I, T2C, T2S)):
        k(f"ds_read_b128 v[{base}:{base+3}], v5 offset:{i*1024}")
    for a_, base in enumerate((BRE, BIM, TC, TS)):
        for q in range(4):
            k(f"ds_read_b128 v[{base+4*q}:{base+4*q+3}], v3 offset:{L_C+a_*4096+q*1024}")
    k(f"""s_lshl_b32 s68, s16, 7
    s_add_u32 s76, s76, s68""")
    if XE:
        k("s_waitcnt vmcnt(5)")
        for i in range(8): unpack_bf16(k, XA2 + 2*i, XRA + i)
        for i in range(8): unpack_bf16(k, XB2 + 2*i, XRB + i)
    if E("NOCAP", 0): k("s_cmp_ge_u32 s16, 4\ns_cbranch_scc1 f_nc9\ns_waitcnt vmcnt(1)\ns_branch f_nc8\nf_nc9:\ns_waitcnt vmcnt(0)\nf_nc8:")
    else: k("s_waitcnt vmcnt(0)")
    stamp(k, 4)
    get_nonce_finish(k, "f_non", 4, NON)
    k(f"""v_or_b32 v5, s39, v{NON+1}
    v_mov_b32 v4, v{NON}
    s_cmp_lg_u32 s16, 0
    s_barrier
    s_cbranch_scc1 f_nf1
    s_mov_b64 exec, {"0xffff" if E("TWOSET", 0) else "0xff"}
    buffer_store_dwordx2 v[4:5], v{FA}, s[12:15], s78 offen sc1
    s_mov_b64 exec, -1
    buffer_load_dword v129, v{V70}, s[12:15], s77 offen sc1
    f_nf1:""")
    if not XE:
        for j in range(2):
            k(f"buffer_load_dwordx4 v[{XRA+4*j}:{XRA+4*j+3}], v3, s[8:11], s18 offen offset:{j*1024}")
            k(f"buffer_load_dwordx4 v[{XRB+4*j}:{XRB+4*j+3}], v3, s[8:11], s19 offen offset:{j*1024}")
    if E("TWOSET", 0):
        k.c("first look goes to a second replica set, so late arrivers do not back off and early ones leave the main set alone")
        k(f"""s_add_u32 s68, s76, 16384
        s_sleep {E('SLA', 6)}
        buffer_load_dwordx4 v[24:27], v{V70}, s[12:15], s68 offen sc1
        s_waitcnt vmcnt(0)""")
        cmp_recs(k, 24, 4, 4, mask_hi=True)
        k("s_cbranch_vccz f_p1x")
    k(f"s_sleep {E('SLF', 24)}")
    SP = E("SPOLL", 0)
    if SP:
        spoll(k, "f_p1", 76, True)
    else:
        poll_recs(k, "f_p1", 24, V70, 76, 4, mask_hi=True)
    stamp(k, 5)
    k.c("================= phase B =================")
    CP = 208
    for i in range(4):
        k(f"buffer_load_dwordx4 v{SA_}, s[12:15], s42 offen offset:{i*1024} sc1 lds")
    HW = E("HW", 0)
    k(f"""s_cmp_lg_u32 s16, {HW}
    s_cbranch_scc1 f_nzl
    s_lshl_b32 s68, s3, 7
    s_add_u32 s68, s68, {WS_ZL}
    v_mov_b32 v4, 0
    s_mov_b64 exec, 1
    buffer_store_dwordx2 v[{NON}:{NON+1}], v4, s[12:15], s68 offen sc1
    s_mov_b64 exec, -1
    f_nzl:""")
    k.c("same die for the whole group? wave c saw the records of group c")
    k(f"""v_mov_b32 v5, {L_KEY+96}
    s_cmp_lg_u32 s16, s34
    s_cbranch_scc1 f_np1""")
    if SP:
        k("v_mov_b32 v4, s72")
    else:
        k("""v_cmp_ne_u32 vcc, s39, v25
        v_cmp_ne_u32 s[68:69], s39, v27
        s_or_b32 s68, vcc_lo, s68
        v_mov_b32 v4, s68""")
    k("""ds_write_b32 v5, v4
    f_np1:""")
    if not XE:
        k("s_waitcnt vmcnt(4)")
        for i in range(8): unpack_bf16(k, XA2 + 2*i, XRA + i)
        for i in range(8): unpack_bf16(k, XB2 + 2*i, XRB + i)
    KW, KR = 8, 9
    YWQ = [YW, 18, 19, 20]
    k(f"""v_lshrrev_b32 v23, 5, v0
    v_lshlrev_b32 v{KW}, 2, v23
    v_add_u32 v{KW}, {L_KEY}, v{KW}
    v_and_b32 v4, 15, v0
    v_lshlrev_b32 v4, 2, v4
    v_add_u32 v{KR}, {L_KEY}, v4
    v_xor_b32 v18, 16, v{YW}
    v_xor_b32 v19, 32, v{YW}
    v_xor_b32 v20, 48, v{YW}
    v_lshrrev_b32 v21, 4, v2
    v_lshlrev_b32 v21, 15, v21
    v_lshl_add_u32 v21, v4, 2, v21
    v_lshlrev_b32 v10, 2, v1
    v_add_u32 v10, {L_ST+128}, v10
    v_mov_b32 v11, {L_ST+128}
    v_add_u32 v12, {L_CS}, v3
    v_lshlrev_b32 v4, 3, v0
    s_mov_b32 s42, {WS_CAP+4096}""")
    for i in range(8): k(f"v_mov_b32 v{CP+8+i}, 0")
    FPG = E("FPG", 0)
    if FPG:
        k(f"""s_load_dwordx2 s[64:65], s[0:1], {(A_WG, A_WU)[E("FPGM", 0)]}
        v_lshrrev_b32 v13, 3, v2
        v_mul_u32_u24 v13, 7168, v13
        v_and_b32 v24, 7, v0
        v_min_u32 v24, 6, v24
        v_lshl_add_u32 v13, v24, 7, v13
        s_lshl_b32 s70, s35, 3
        s_add_u32 s70, s70, s16
        s_lshr_b32 s71, s70, 6
        s_and_b32 s70, s70, 63
        s_mul_i32 s70, s70, {FPG}
        s_lshl_b32 s71, s71, 9
        s_add_u32 s70, s70, s71
        s_add_u32 s70, s70, {(512 - 64*FPG) if not E("FPGM", 0) else 0}
        s_mul_i32 s70, s70, 7168
        s_mul_i32 s71, s34, 896
        s_add_u32 s70, s70, s71
        s_mov_b32 s66, {1024*3584*2}
        s_mov_b32 s67, 0x00020000""")
    k("""s_waitcnt vmcnt(0) lgkmcnt(0)
    s_barrier""")
    stamp(k, 6); stamp(k, 40)
    for j in range(4):
        k(f"ds_read_b128 v[{L+4*j}:{L+4*j+3}], v{RA_} offset:{j*512}")
    k("ds_read_b32 v22, v5")
    for i in range(4):
        k(f"buffer_load_dwordx2 v[{CP+2*i}:{CP+2*i+1}], v4, s[12:15], s42 offen sc1")
        if i < 3: k("s_add_u32 s42, s42, 8192")
    k(f"""s_cmp_lg_u32 s3, 0
    s_cbranch_scc1 f_nsa
    s_mov_b32 s42, {WS_CAP}""")
    for i in range(4):
        k(f"buffer_load_dwordx2 v[{CP+8+2*i}:{CP+8+2*i+1}], v4, s[12:15], s42 offen sc1")
        if i < 3: k("s_add_u32 s42, s42, 8192")
    k("f_nsa:")
    if FPG:
        msk = (1 << (8 * FPG)) - 1
        k(f"s_mov_b32 exec_lo, {msk & 0xffffffff}\ns_mov_b32 exec_hi, {msk >> 32}")
        k("buffer_load_dword v14, v13, s[64:67], s70 offen\ns_mov_b64 exec, -1")
    k("""s_waitcnt lgkmcnt(0)
    v_readfirstlane_b32 s38, v22
    v_mov_b32 v22, 0xffffff00""")
    stamp(k, 41)
    for j in range(4):
        for cc in range(j + 1, 4):
            k(f"v_swap_b32 v{L+4*j+cc}, v{L+4*cc+j}")
    D1 = 128
    for cc in range(4):
        k(f"v_mfma_f32_16x16x32_f16 v[{D1+8*cc}:{D1+8*cc+3}], v[{L+4*cc}:{L+4*cc+3}], v[{B1R}:{B1R+3}], 0")
        k(f"v_mfma_f32_16x16x32_f16 v[{D1+8*cc+4}:{D1+8*cc+7}], v[{L+4*cc}:{L+4*cc+3}], v[{B1I}:{B1I+3}], 0")
    V = 160; VT = 176; D2 = D1; O = L
    for cc in range(4):
        re, im = D1 + 8*cc, D1 + 8*cc + 4
        t = VT + 8 * (cc & 1)
        for h in range(2):
            pmul(k, t + 2*h, re + 2*h, T2C + 2*h)
            pmul(k, t + 4 + 2*h, im + 2*h, T2C + 2*h)
        for h in range(2):
            pfma(k, t + 2*h, im + 2*h, T2S + 2*h, t + 2*h)
            pfma(k, t + 4 + 2*h, re + 2*h, T2S + 2*h, t + 4 + 2*h, nega=True)
        for i in range(4):
            k(f"v_cvt_pk_f16_f32 v{V+4*cc+i}, v{t+i}, v{t+4+i}")
        if cc > 0:
            c2 = cc - 1
            k(f"v_mfma_f32_16x16x32_f16 v[{D2+8*c2}:{D2+8*c2+3}], v[{V+4*c2}:{V+4*c2+3}], v[{B2R}:{B2R+3}], 0")
            k(f"v_mfma_f32_16x16x32_f16 v[{D2+8*c2+4}:{D2+8*c2+7}], v[{V+4*c2}:{V+4*c2+3}], v[{B2I}:{B2I+3}], 0")
    k(f"v_mfma_f32_16x16x32_f16 v[{D2+24}:{D2+27}], v[{V+12}:{V+15}], v[{B2R}:{B2R+3}], 0")
    k(f"v_mfma_f32_16x16x32_f16 v[{D2+28}:{D2+31}], v[{V+12}:{V+15}], v[{B2I}:{B2I+3}], 0")
    for cc in range(4):
        for i in range(4):
            k(f"v_cvt_pk_f16_f32 v{O+4*i+cc}, v{D2+8*cc+i}, v{D2+8*cc+4+i}")
    stamp(k, 42)
    for i in range(4):
        k(f"ds_write_b128 v{TWA}, v[{O+4*i}:{O+4*i+3}] offset:{L_T+i*8192}")
    k("s_waitcnt lgkmcnt(0)")
    stamp(k, 43)
    k("s_barrier")
    if E("STAMPS", 0) == 6:
        stamp(k, 44); k("s_waitcnt lgkmcnt(0)")
    O2 = 160
    for i in range(4):
        k(f"ds_read_b128 v[{O2+4*i}:{O2+4*i+3}], v{TRA} offset:{L_T+i*8192}")
    k("s_cmp_lg_u32 s38, 0\ns_cbranch_scc1 f_slowst")
    for i in range(4):
        k(f"s_waitcnt lgkmcnt({3-i})")
        k(f"buffer_store_dwordx4 v[{O2+4*i}:{O2+4*i+3}], v{STA}, s[12:15], s73 offen offset:{i*256} {'sc1' if E('ZMODE', 0) == 2 else os.environ.get('ZST', '')}")
    k("f_std:")
    stamp(k, 7); stamp(k, 45)
    k.c("own copy of (1+ca) [and sa]: sum, round, max")
    k("s_waitcnt vmcnt(4)")
    for b_ in (CP, CP + 8):
        padd(k, b_, b_, b_ + 2); padd(k, b_ + 4, b_ + 4, b_ + 6)
    for b_ in (CP, CP + 8): padd(k, b_, b_, b_ + 4)
    rb2(k, CP, 4); rb2(k, CP + 8, 5)
    for n in range(2): k(f"v_add_f32 v{CP+n}, 1.0, v{CP+n}")
    rb2(k, CP, 4)
    k(f"""v_max3_f32 v4, abs(v{CP}), abs(v{CP+1}), abs(v{CP+8})
    v_max_f32_e64 v4, v4, abs(v{CP+9})""")
    wave_reduce_to63(k, [4], "v_max_f32")
    k(f"""s_mov_b32 exec_lo, 0
    s_mov_b32 exec_hi, 0x80000000
    ds_write_b32 v10, v4
    s_mov_b64 exec, -1
    s_waitcnt vmcnt(0) lgkmcnt(0)""")
    stamp(k, 8)
    k(f"""s_barrier
    s_cmp_lg_u32 s16, 0
    s_cbranch_scc1 f_nf2
    v_mov_b32 v4, 0
    s_mov_b64 exec, 1
    s_cmp_lg_u32 s38, 0
    s_cbranch_scc1 f_f2s
    buffer_store_dwordx2 v[{NON}:{NON+1}], v4, s[12:15], s79 offen
    s_branch f_f2d
    f_f2s:
    buffer_store_dwordx2 v[{NON}:{NON+1}], v4, s[12:15], s79 offen sc1
    f_f2d:
    s_mov_b64 exec, -1
    f_nf2:
    ds_read_b128 v[{W}:{W+3}], v11
    ds_read_b128 v[{W+4}:{W+7}], v11 offset:16""")
    k(f"""s_waitcnt lgkmcnt(0)
    v_max3_f32 v{W}, v{W}, v{W+1}, v{W+2}
    v_max3_f32 v{W+3}, v{W+3}, v{W+4}, v{W+5}
    v_max3_f32 v{W}, v{W}, v{W+6}, v{W+7}
    v_max_f32 v{W}, v{W}, v{W+3}
    v_frexp_exp_i32_f32 v{W}, v{W}
    v_sub_u32 v{W+1}, -1, v{W}
    v_add_u32 v{W+2}, 6, v{W+1}
    v_add_u32 v{W}, 5, v{W}
    v_ldexp_f32 v{CP}, v{CP}, v{W+1}
    v_ldexp_f32 v{CP+1}, v{CP+1}, v{W+1}
    v_ldexp_f32 v{CP+8}, v{CP+8}, v{W+2}
    v_ldexp_f32 v{CP+9}, v{CP+9}, v{W+2}
    v_ldexp_f32 v{W}, 1.0, v{W}
    v_cvt_pk_f16_f32 v{CP}, v{CP}, v{CP+1}
    v_cvt_pk_f16_f32 v{CP+8}, v{CP+8}, v{CP+9}
    v_readfirstlane_b32 s54, v{W}
    ds_write_b16 v63, v{CP}
    ds_write_b16_d16_hi v63, v{CP} offset:16
    ds_write_b16 v63, v{CP+8} offset:2048
    ds_write_b16_d16_hi v63, v{CP+8} offset:2064
    {"s_nop 0" if E("NOFLX", 0) else f"buffer_load_dwordx4 v[14:17], v{V70}, s[12:15], s75 offen sc1"}
    s_cmp_lg_u32 s16, 0
    s_cbranch_scc1 f_np2""")
    poll_recs(k, "f_p2", 28, V70, 77, 4, sl=1)
    k("f_np2:")
    k("s_waitcnt vmcnt(0) lgkmcnt(0)")
    cmp_recs(k, 14, 4, 4)
    if E("NOFLX", 0): k("s_mov_b64 vcc, 0")
    k("s_barrier")
    stamp(k, 9); stamp(k, 20)
    k.c("================= phase C =================")
    for j in range(2):
        k(f"buffer_load_dwordx4 v[{ZA+4*j}:{ZA+4*j+3}], v21, s[12:15], s{(28, 52)[j]} offen {ZFL}")
    for j in range(2):
        k(f"buffer_load_dwordx4 v[{ZB+4*j}:{ZB+4*j+3}], v21, s[12:15], s{(29, 53)[j]} offen {ZFL}")
    stamp(k, 21)
    if E("ZWAIT", 0):
        k("s_waitcnt vmcnt(3)"); stamp(k, 22); k("s_waitcnt vmcnt(0)"); stamp(k, 23)
    def pdma():
        k(f"""s_mov_b32 m0, s46
        s_add_u32 s46, s46, 8192
        buffer_load_dwordx4 v3, s[12:15], s47 offen sc1 lds
        s_add_u32 s47, s47, 8192
        s_mov_b32 m0, s46
        s_add_u32 s46, s46, 8192
        buffer_load_dwordx4 v3, s[12:15], s47 offen sc1 lds
        s_add_u32 s47, s47, 8192
        s_mov_b32 m0, s46
        s_mov_b32 s55, 1
        s_cmp_lt_u32 s16, 4
        s_cbranch_scc0 f_pd{pdma.n}
        buffer_load_dwordx4 v3, s[12:15], s47 offen sc1 lds
        s_waitcnt vmcnt(3)
        f_pd{pdma.n}:""")
        pdma.n += 1
    pdma.n = 0
    for j in range(2):
        k(f"ds_read_b128 v[{CS+4*j}:{CS+4*j+3}], v12 offset:{j*1024}")
    FPF = E("FPF", 8)
    if FPF:
        k(f"""s_load_dwordx2 s[64:65], s[0:1], {A_WU}
        v_lshrrev_b32 v4, 3, v2
        v_mul_u32_u24 v4, 7168, v4
        v_and_b32 v5, 7, v0
        v_min_u32 v5, 6, v5
        v_lshl_add_u32 v13, v5, 7, v4
        s_lshl_b32 s70, s35, 3
        s_add_u32 s70, s70, s16
        s_lshr_b32 s71, s70, 6
        s_and_b32 s70, s70, 63
        s_mul_i32 s70, s70, {FPF}
        s_lshl_b32 s71, s71, 9
        s_add_u32 s70, s70, s71
        s_add_u32 s70, s70, {512 - 64*FPF}
        s_mul_i32 s70, s70, 7168
        s_mul_i32 s71, s34, 896
        s_add_u32 s70, s70, s71""")
    k(f"""s_mov_b32 s55, 0
    s_barrier
    s_cbranch_vccnz f_plate""")
    pdma()
    k(f"""s_cbranch_scc1 f_pgo
    s_waitcnt vmcnt(2)
    s_branch f_pgo
    f_plate:
    buffer_load_dwordx4 v[14:17], v{V70}, s[12:15], s75 offen sc1
    s_waitcnt vmcnt(1)
    f_pgo:
    s_waitcnt lgkmcnt(0)""")
    stamp(k, 10); stamp(k, 24); stamp(k, 30)
    k("s_cmp_eq_u32 s34, 0\ns_cbranch_scc1 f_g0")
    def pread(vec, base):
        return [f"ds_read_b128 v[{base+4*q}:{base+4*q+3}], v3 offset:{L_P+vec*4096+q*1024}" for q in range(4)]
    preads = pread(0, GA) + pread(4, WR)
    def modul(j, src):
        for i in range(4*j, 4*j + 4):
            b = i & 1
            k(f"v_pk_mul_f16 v{W+i}, v{src+i}, v{CS+(i>>1)} op_sel:[0,{b}] op_sel_hi:[1,{b}]")
    def st1(j, part):
        D, B = (D1R, BRE) if part == 0 else (D1I, BIM)
        cc = "0" if j == 0 else f"v[{D}:{D+15}]"
        k(f"v_mfma_f32_32x32x16_f16 v[{D}:{D+15}], v[{W+4*j}:{W+4*j+3}], v[{B+4*j}:{B+4*j+3}], {cc}")
    modul(0, ZA); modul(1, ZA)
    st1(0, 0); modul(2, ZA); st1(0, 1); modul(3, ZA)
    k("f_st1:")
    pr = list(preads)
    st1(1, 0); st1(1, 1)
    k("s_cmp_eq_u32 s55, 1\ns_cbranch_scc1 f_pk1\ns_waitcnt vmcnt(0)")
    cmp_recs(k, 14, 4, 4)
    k("s_cbranch_vccnz f_pk1")
    pdma()
    k("f_pk1:")
    for j in range(2, 4):
        for part in range(2): st1(j, part)
    k("s_cmp_eq_u32 s55, 1\ns_cbranch_scc1 f_pok")
    poll_recs(k, "f_px", 14, V70, 75, 4)
    pdma()
    k("f_pok:")
    stamp(k, 25); stamp(k, 31)
    k("s_waitcnt lgkmcnt(0)")
    Y = CS
    for j in range(4):
        vr = ZA + 8 * (j & 1); vi = vr + 4
        for h in range(2):
            pmul(k, vr + 2*h, D1R + 4*j + 2*h, TC + 4*j + 2*h)
            pmul(k, vi + 2*h, D1I + 4*j + 2*h, TC + 4*j + 2*h)
        for h in range(2):
            pfma(k, vr + 2*h, D1I + 4*j + 2*h, TS + 4*j + 2*h, vr + 2*h)
            pfma(k, vi + 2*h, D1R + 4*j + 2*h, TS + 4*j + 2*h, vi + 2*h, nega=True)
        for i in range(4):
            k(f"v_cvt_pk_f16_f32 v{W+4*j+i}, v{vr+i}, v{vi+i}")
        if j > 0:
            jj = j - 1
            cr = "0" if jj == 0 else f"v[{Y}:{Y+15}]"
            k(f"v_mfma_f32_32x32x16_f16 v[{Y}:{Y+15}], v[{W+4*jj}:{W+4*jj+3}], v[{BRE+4*jj}:{BRE+4*jj+3}], {cr}")
        if j == B2AT:
            stamp(k, 32); k("s_waitcnt vmcnt(0)"); stamp(k, 33); k("s_barrier"); stamp(k, 34)
            if E("ZCLEAN", 0):
                k.c("the spectrum row is consumed: push the dirty lines out now instead of at kernel end")
                for so in (28, 52, 29, 53):
                    k(f"buffer_store_dwordx4 v[{XA2}:{XA2+3}], v21, s[12:15], s{so} offen sc1")
            if FPF:
                k(f"""s_mov_b32 s66, {1024*3584*2}
                s_mov_b32 s67, 0x00020000""")
                msk = (1 << (8 * FPF)) - 1
                k(f"s_mov_b32 exec_lo, {msk & 0xffffffff}\ns_mov_b32 exec_hi, {msk >> 32}")
                k("buffer_load_dword v7, v13, s[64:67], s70 offen\ns_mov_b64 exec, -1")
        if j >= B2AT:
            for _ in range(4):
                if pr: k(pr.pop(0))
    k(f"v_mfma_f32_32x32x16_f16 v[{Y}:{Y+15}], v[{W+12}:{W+15}], v[{BRE+12}:{BRE+15}], v[{Y}:{Y+15}]")
    for x in pr: k(x)
    if E("ST11", 0):
        stamp(k, 11)
    k("s_waitcnt lgkmcnt(%d)" % (0 if E("ST11", 0) else 4))
    for i in range(8): pmul_s(k, GA + 2*i, GA + 2*i, 54)
    if E("WBL2", 0) == 1:
        k("""s_lshl_b32 s42, s35, 3
        s_add_u32 s42, s42, s16
        s_cmp_lg_u32 s42, 15
        s_cbranch_scc1 f_nwb
        buffer_wbl2 sc1
        f_nwb:""")
    YN, YM, YE = D1R, TC, ZA
    SBv, GBv = D1I, TS
    k("s_cmp_eq_u32 s30, 0\ns_cbranch_scc1 f_sp2")
    for q in range(4):
        k(f"ds_write_b128 v{YWQ[q]}, v[{Y+4*q}:{Y+4*q+3}]")
    def yreads(off):
        for q in range(4):
            k(f"ds_read_b128 v[{YN+4*q}:{YN+4*q+3}], v{YRA} offset:{off + (q>>1)*1024 + (q&1)*2048}")
        for q in range(4):
            k(f"ds_read_b128 v[{YM+4*q}:{YM+4*q+3}], v{YRM} offset:{off + (q>>1)*1024 + (q&1)*2048}")
        k(f"ds_read_b32 v{YE}, v{YRB} offset:{off}")
        k(f"ds_read_b32 v{YE+1}, v{YRC} offset:{off}")
    RQ = ZB
    def qsum():
        t = C1
        for i in range(4): padd(k, t + 2*i, WR + 4*i, WR + 4*i + 2)
        padd(k, t, t, t + 2); padd(k, t + 4, t + 4, t + 6); padd(k, t, t, t + 4)
        k(f"v_add_f32 v{RQ+3}, v{t}, v{t+1}")
        k(f"v_add_f32 v{RQ+7}, v{t}, v{t+1}")
    def mir(dst):
        for hf in range(2):
            for j in range(8):
                src = YE + hf if j == 0 else YM + 8 * (1 - hf) + 8 - j
                k(f"v_fmac_f32 v{dst+8*hf+j}, v{GA+8*hf+j}, v{src}")
    yreads(0)
    k("s_waitcnt lgkmcnt(14)")
    qsum()
    k("s_waitcnt lgkmcnt(6)")
    for i in range(8): pfma(k, XA2 + 2*i, GA + 2*i, YN + 2*i, XA2 + 2*i)
    k("s_waitcnt lgkmcnt(0)")
    mir(XB2)
    k("f_join:")
    stamp(k, 35)
    k.c("GO hint from one workgroup per replica")
    k(f"""s_or_b32 s42, s35, s16
    s_cmp_lg_u32 s42, 0
    s_cbranch_scc1 f_ngo
    s_lshl_b32 s42, 1, s34
    s_mov_b32 s43, 0
    s_mov_b32 s41, {WS_KEY+1024}
    s_mov_b64 exec, s[42:43]
    buffer_store_dword v1, v{FA}, s[12:15], s41 offen sc1
    s_mov_b64 exec, -1
    f_ngo:""")
    for x in pread(2, C1) + pread(1, SBv) + pread(3, GBv): k(x)
    T = W
    rows = ((XA2, BRE, D1R, T, 56), (XB2, BIM, TC, T + 8, 58))
    def sums23(src):
        for i in range(8):
            for n, (X2, Dd, Tt, t, sr) in enumerate(rows):
                x = src[n] + 2*i
                if i == 0:
                    pmul(k, t + 2, x, x); pmul(k, t + 4, x, WR)
                else:
                    pfma(k, t + 2, x, x, t + 2); pfma(k, t + 4, x, WR + 2*i, t + 4)
    for i in range(1, 8):
        for X2, Dd, Tt, t, sr in rows: padd(k, t, X2 if i == 1 else t, X2 + 2*i)
    sums23((XA2, XB2))
    for n, (X2, Dd, Tt, t, sr) in enumerate(rows):
        for j in range(3): k(f"v_add_f32 v{RQ+4*n+j}, v{t+2*j}, v{t+2*j+1}")
    def red(js):
        for j in js: k(f"v_permlane32_swap_b32 v{RQ+j}, v{RQ+4+j}")
        for j in js: k(f"v_add_f32 v{RQ+j}, v{RQ+j}, v{RQ+4+j}")
        regs = [RQ + j for j in js]
        row_allreduce(k, regs)
        for r in regs: k(f"v_add_f32_dpp v{r}, v{r}, v{r} row_bcast:15 row_mask:0xa bank_mask:0xf")
    red((0, 1, 2, 3))
    k.c("lanes 31 / 63 hold rows A / B")
    k(f"""v_mul_f32 v{RQ}, {f32(1.0/1024)}, v{RQ}
    v_mul_f32 v{RQ+1}, {f32(1.0/1024)}, v{RQ+1}
    v_mul_f32 v{RQ+4}, v{RQ}, v{RQ}
    v_fma_f32 v{RQ+2}, -v{RQ}, v{RQ+3}, v{RQ+2}
    v_sub_f32 v{RQ+1}, v{RQ+1}, v{RQ+4}
    v_mul_f32 v{RQ+5}, 4.0, v{RQ+1}
    v_cmp_gt_f32 vcc, v{RQ+4}, v{RQ+5}
    s_or_b32 s42, vcc_lo, vcc_hi
    s_bitcmp1_b32 s42, 31
    s_cbranch_scc1 f_slow2
    f_var2:""")
    round_bf16(k, RQ + 1, RQ + 1)
    k(f"v_add_f32 v{RQ+1}, {f32(1e-5)}, v{RQ+1}")
    round_bf16(k, RQ + 1, RQ + 1)
    k(f"v_sqrt_f32 v{RQ+1}, v{RQ+1}")
    round_bf16(k, RQ + 1, RQ + 1)
    k(f"""v_rcp_f32 v{RQ+1}, v{RQ+1}
    s_mov_b32 s42, 0x80000000
    s_mov_b32 exec_lo, s42
    s_mov_b32 exec_hi, s42
    v_mul_f32 v{RQ+2}, v{RQ+2}, v{RQ+1}
    v_ashrrev_i32 v{RQ+4}, 31, v{RQ+2}
    v_or_b32 v{RQ+4}, s42, v{RQ+4}
    v_xor_b32 v{RQ+2}, v{RQ+2}, v{RQ+4}
    v_min_u32 v{RQ+2}, 0xfffff000, v{RQ+2}
    v_and_or_b32 v{RQ+2}, v{RQ+2}, v22, v23
    ds_write_b32 v{KW}, v{RQ+2}
    s_mov_b64 exec, -1""")
    for n in range(2):
        k(f"v_readlane_b32 s{60+n}, v{RQ+2}, {31+32*n}")
        k(f"v_readlane_b32 s{56+2*n}, v{RQ}, {31+32*n}")
        k(f"v_readlane_b32 s{57+2*n}, v{RQ+1}, {31+32*n}")
    k("s_waitcnt lgkmcnt(0)")
    stamp(k, 12)
    k(f"""s_barrier
    ds_read_b32 v{YRA}, v{KR}
    s_lshl_b32 s42, s3, 1
    s_movk_i32 s43, 0xff00
    s_cmp_lg_u32 s16, 0
    s_waitcnt lgkmcnt(0)
    s_cbranch_scc1 f_nkey
    s_setprio 3
    v_mov_b32 v4, v{YRA}""")
    row_allreduce(k, [4], "v_max_u32")
    k(f"""v_cmp_eq_u32 vcc, v4, v{YRA}
    v_cndmask_b32_e64 v5, v{YRA}, 0, vcc
    v_and_b32 v4, s43, v4""")
    row_allreduce(k, [5], "v_max_u32")
    k(f"""v_or_b32 v4, s42, v4
    v_and_b32 v5, s43, v5
    v_or3_b32 v5, v5, s42, 1
    s_mov_b64 exec, 0xff
    buffer_store_dwordx2 v[4:5], v{FA}, s[12:15], s80 offen sc1
    {f"s_sub_u32 s80, s80, {WS_KEY - WS_KEY2}" if E("FKEY", 2) == 1 else ""}
    {f"buffer_store_dwordx2 v[4:5], v{FA}, s[12:15], s80 offen sc1" if E("FKEY", 2) == 1 else ""}
    s_mov_b64 exec, -1
    s_setprio 0
    f_nkey:""")
    HP = CS; OA, OBB = 10, 18
    def h2row(n):
        X2, Dd, Tt, t, sr = rows[n]
        for i in range(8): psub_s(k, Tt + 2*i, X2 + 2*i, sr)
        for i in range(8): pmul(k, Tt + 2*i, Tt + 2*i, C1 + 2*i)
        for i in range(8): pfma_s(k, Tt + 2*i, Tt + 2*i, sr + 1, SBv + 2*i)
    def outpack(n, with_h2=True):
        X2, Dd, Tt, t, sr = rows[n]
        XO = (OA, OBB)[n]
        if with_h2: h2row(n)
        for i in range(8): pfma(k, X2 + 2*i, GBv + 2*i, Tt + 2*i, X2 + 2*i)
        for i in range(8): k(f"v_cvt_pk_bf16_f32 v{XO+i}, v{X2+2*i}, v{X2+2*i+1}")
    k("v_mov_b32 v4, 0")
    for n in range(2):
        Tt = rows[n][2]; XO = (OA, OBB)[n]
        k(f"""s_movk_i32 s{62+n}, 0x100
        v_cmp_lt_u32 vcc, s{60+n}, v{YRA}
        s_and_b32 s42, vcc_lo, 0xffff
        s_bcnt1_i32_b32 s42, s42
        s_cmp_ge_u32 s42, 2
        s_cbranch_scc1 f_nc{n}
        s_setprio 2
        s_lshl_b32 s{62+n}, s3, 1
        s_add_u32 s{62+n}, s{62+n}, s42
        s_lshl_b32 s42, s{62+n}, 12
        s_add_u32 s42, s42, {WS_SLOT}
        s_lshl_b32 s43, s{62+n}, 2
        s_add_u32 s43, s43, {WS_TT}""")
        h2row(n)
        for i in range(8): k(f"v_cvt_pk_bf16_f32 v{HP+8*n+i}, v{Tt+2*i}, v{Tt+2*i+1}")
        for i in range(8): k(f"v_min_u32 v{HP+8*n+i}, -2, v{HP+8*n+i}")
        for j in range(2):
            k(f"buffer_store_dwordx4 v[{HP+8*n+4*j}:{HP+8*n+4*j+3}], v3, s[12:15], s42 offen offset:{j*1024} sc1")
        outpack(n, False)
        for i in range(8): k(f"v_min_u32 v{XO+i}, -2, v{XO+i}")
        for j in range(2):
            k(f"buffer_store_dwordx4 v[{XO+4*j}:{XO+4*j+3}], v3, s[12:15], s42 offen offset:{2048+j*1024} sc1")
        k(f"""v_mov_b32 v5, s{30+n}
        s_mov_b64 exec, 1
        buffer_store_dword v5, v4, s[12:15], s43 offen sc1
        s_mov_b64 exec, -1
        s_setprio 0
        f_nc{n}:""")
    stamp(k, 13)
    for n in range(2):
        k(f"s_cmp_lt_u32 s{62+n}, 0x100\ns_cbranch_scc1 f_op{n}")
        outpack(n)
        k(f"f_op{n}:")
    if E("WBL2", 0) == 2:
        k("""s_lshl_b32 s42, s35, 3
        s_add_u32 s42, s42, s16
        s_cmp_lg_u32 s42, 15
        s_cbranch_scc1 f_nwb
        buffer_wbl2 sc1
        f_nwb:""")
    if E("OWAIT", 1):
        def outst(n):
            XO = (OA, OBB)[n]
            for j in range(2):
                k(f"buffer_store_dwordx4 v[{XO+4*j}:{XO+4*j+3}], v3, s[24:27], s{18+n} offen offset:{j*1024} {os.environ.get('OFL', 'sc1')}")
        k.c("rows are written once the selection is known; the two selected rows are written by the reducers")
        HALF = E("HALF", 0)
        if HALF:
            if E("OSL", 0): k(f"s_sleep {E('OSL', 0)}")
            k("s_cmp_lt_u32 s62, 0x100\ns_cbranch_scc1 f_h0")
            outst(0)
            k("f_h0:")
        k(f"""v_mov_b32 v5, {L_KEY+104}
        s_cmp_lg_u32 s16, 0
        s_cbranch_scc1 f_nrs""")
        if E("FKEY", 2):
            if E("FKEY", 2) == 1: k(f"s_sub_u32 s74, s74, {WS_KEY - WS_KEY2}")
            k(f"s_sleep {E('FKS', 8)}")
            poll_keys(k, "f_kq", 32, 74, 4)
            top2(k, 32, 40, 41, 36)
            k("v_mov_b32 v28, 0xff\nv_and_b32 v29, s41, v28\nv_and_b32 v28, s40, v28")
        else:
            res_wait(k, "f_rs", 74, 4, 28, E("RSL", 4))
        k(f"""ds_write_b64 v5, v[28:29]
        s_waitcnt lgkmcnt(0)
        f_nrs:
        s_barrier
        ds_read_b64 v[28:29], v5
        s_waitcnt lgkmcnt(0)
        v_readfirstlane_b32 s40, v28
        v_readfirstlane_b32 s41, v29""")
        for n in range(2):
            if HALF and n == 0: k("s_cmp_ge_u32 s62, 0x100\ns_cbranch_scc1 f_e0")
            k(f"""s_cmp_eq_u32 s{62+n}, s40
            s_cbranch_scc1 f_e{n}
            s_cmp_eq_u32 s{62+n}, s41
            s_cbranch_scc1 f_e{n}""")
            outst(n)
            k(f"f_e{n}:")
    else:
        if E("OSL", 0): k(f"s_sleep {E('OSL', 0)}")
        def outst(n):
            XO = (OA, OBB)[n]
            for j in range(2):
                k(f"buffer_store_dwordx4 v[{XO+4*j}:{XO+4*j+3}], v3, s[24:27], s{18+n} offen offset:{j*1024} {os.environ.get('OFL', 'sc1')}")
        for n in range(2):
            k(f"s_cmp_lt_u32 s{62+n}, 0x100\ns_cbranch_scc1 f_o{n}")
            outst(n)
            k(f"f_o{n}:")
        k.c("candidate rows: learn the selection, the selected rows are written by the reducers")
        k("""s_min_u32 s42, s62, s63
        s_cmp_lt_u32 s42, 0x100
        s_cbranch_scc0 f_e1""")
        res_wait(k, "f_rs", 74, 4, 28, 4)
        for n in range(2):
            k(f"""s_cmp_ge_u32 s{62+n}, 0x100
            s_cbranch_scc1 f_e{n}
            s_cmp_eq_u32 s{62+n}, s40
            s_cbranch_scc1 f_e{n}
            s_cmp_eq_u32 s{62+n}, s41
            s_cbranch_scc1 f_e{n}""")
            outst(n)
            k(f"f_e{n}:")
    if E("WBL2", 0) == 3:
        k("""s_lshl_b32 s42, s35, 3
        s_add_u32 s42, s42, s16
        s_cmp_lg_u32 s42, 15
        s_cbranch_scc1 f_nwb
        s_waitcnt vmcnt(0)
        buffer_wbl2 sc1
        f_nwb:""")
    stamp_out(k, 0)
    k("s_endpgm")
    k.c("---- rare: two-pass variance / router score for LN2 ----")
    k("f_slow2:")
    k.c("here the bf16 rounding of x and of the mean matters: follow the reference's rounding steps")
    for X2, Dd, Tt, t, sr in rows:
        for i in range(8): rb2(k, X2 + 2*i, t)
        for i in range(1, 8): padd(k, t, X2 if i == 1 else t, X2 + 2*i)
    for n, (X2, Dd, Tt, t, sr) in enumerate(rows):
        k(f"v_add_f32 v{RQ+4*n}, v{t}, v{t+1}")
    red((0,))
    k(f"v_mul_f32 v{RQ+3}, {f32(1.0/1024)}, v{RQ}")
    round_bf16(k, RQ, RQ + 3)
    k(f"v_sub_f32 v{RQ+3}, v{RQ+3}, v{RQ}")
    for n in range(2): k(f"v_readlane_b32 s{56+2*n}, v{RQ}, {31+32*n}")
    for X2, Dd, Tt, t, sr in rows:
        for i in range(8): psub_s(k, Dd + 2*i, X2 + 2*i, sr)
    sums23((rows[0][1], rows[1][1]))
    for n, (X2, Dd, Tt, t, sr) in enumerate(rows):
        for j in (1, 2): k(f"v_add_f32 v{RQ+4*n+j}, v{t+2*j}, v{t+2*j+1}")
    red((1, 2))
    k(f"""v_mul_f32 v{RQ+1}, {f32(1.0/1024)}, v{RQ+1}
    v_fma_f32 v{RQ+1}, -v{RQ+3}, v{RQ+3}, v{RQ+1}
    v_max_f32 v{RQ+1}, 0, v{RQ+1}
    s_branch f_var2""")
    k.c("---- placement fallback: write-through ZF stores ----")
    k("f_slowst:\ns_waitcnt lgkmcnt(0)")
    for i in range(4):
        k(f"buffer_store_dwordx4 v[{O2+4*i}:{O2+4*i+3}], v{STA}, s[12:15], s73 offen offset:{i*256} sc1")
    k("s_branch f_std")
    k.c("---- rare: |mean| >> std, recompute the variance in two passes ----")
    k("f_slowvar:")
    U = 144
    k(f"v_lshlrev_b32 v{R+6}, 16, v55")
    k(f"v_readlane_b32 s68, v{R+6}, 31\nv_readlane_b32 s70, v{R+6}, 63")
    for jj in range(2):
        sr = 68 + 2 * jj
        for i in range(8):
            unpack_bf16(k, U, XW + jj * 8 + i)
            k(f"v_pk_add_f32 {P(U)}, {P(U)}, s[{sr}:{sr+1}] op_sel_hi:[1,0]")
            if i == 0: pmul(k, U + 2, U, U)
            else: pfma(k, U + 2, U, U, U + 2)
        k(f"v_add_f32 v{S+2+jj}, v{U+2}, v{U+3}")
    k(f"v_add_f32 v{R+6}, v{R+6}, v{S}")
    red1((2,))
    k(f"""v_mul_f32 v{S+2}, s46, v{S+2}
    v_fma_f32 v{S+2}, -v{R+6}, v{R+6}, v{S+2}
    v_max_f32 v{S+2}, 0, v{S+2}
    s_branch f_var""")
    k.c("---- group 0: spectra are stored for column pairs (d, d+512) ----")
    k("f_g0:\ns_cmp_eq_u32 s30, 0\ns_cbranch_scc1 f_sp")
    for i in range(8):
        k(f"v_pk_add_f16 v{W+i}, v{ZA+i}, v{ZB+i} neg_hi:[0,1]")
    modul(0, W); modul(1, W)
    st1(0, 0)
    for i in range(8):
        k(f"v_pk_add_f16 v{W+8+i}, v{ZA+i}, v{ZB+i} op_sel:[1,1] op_sel_hi:[0,0] neg_hi:[1,0]")
    st1(0, 1); modul(2, W); modul(3, W)
    k("s_branch f_st1")
    k("f_sp:")
    for j in range(2):
        k(f"ds_read_b128 v[{SAR+4*j}:{SAR+4*j+3}], v12 offset:{2048+j*1024}")
    k("s_mov_b32 s42, 0x05040100\ns_mov_b32 s43, 0x07060302")
    for i in range(8):
        k(f"v_perm_b32 v{W+i}, v{ZB+i}, v{ZA+i}, s42")
        k(f"v_perm_b32 v{W+8+i}, v{ZB+i}, v{ZA+i}, s43")
    for j in range(4): modul(j, W)
    k("s_waitcnt lgkmcnt(0)")
    for i in range(8):
        k(f"v_and_b32 v{ZA+i}, 0xffff, v{SAR+i}")
        k(f"v_lshrrev_b32 v{ZB+i}, 16, v{SAR+i}")
    for i in range(8):
        k(f"v_pk_add_f16 v{W+2*i}, v{W+2*i}, v{ZA+i}")
        k(f"v_pk_add_f16 v{W+2*i+1}, v{W+2*i+1}, v{ZB+i}")
    st1(0, 0); st1(0, 1)
    k("s_branch f_st1")
    k("f_sp2:")
    for j in range(4):
        cr = "0" if j == 0 else f"v[{D1R}:{D1R+15}]"
        k(f"v_mfma_f32_32x32x16_f16 v[{D1R}:{D1R+15}], v[{W+4*j}:{W+4*j+3}], v[{BIM+4*j}:{BIM+4*j+3}], {cr}")
    for q in range(4):
        k(f"ds_write_b128 v{YWQ[q]}, v[{Y+4*q}:{Y+4*q+3}]")
    for q in range(4):
        k(f"ds_write_b128 v{YWQ[q]}, v[{D1R+4*q}:{D1R+4*q+3}] offset:{8*4096}")
    k("s_waitcnt lgkmcnt(0)")
    yreads(0)
    qsum()
    k("s_waitcnt lgkmcnt(0)")
    for i in range(8): pfma(k, XA2 + 2*i, GA + 2*i, YN + 2*i, XA2 + 2*i)
    mir(XA2)
    yreads(8 * 4096)
    k("s_waitcnt lgkmcnt(0)")
    for i in range(8): pfma(k, XB2 + 2*i, GA + 2*i, YN + 2*i, XB2 + 2*i)
    mir(XB2)
    k("s_branch f_join")

def role_G(k):
    NON = 12
    k(f"""g_start:
    s_load_dwordx4 s[4:7], s[0:1], {A_C}
    s_load_dwordx4 s[24:27], s[0:1], {A_OUT}
    s_load_dwordx2 s[28:29], s[0:1], {A_WS}
    s_load_dwordx4 s[48:51], s[0:1], {A_WR}
    s_load_dwordx4 s[52:55], s[0:1], {A_WU}
    s_load_dwordx2 s[56:57], s[0:1], {A_X}
    s_memrealtime s[32:33]
    s_getpc_b64 s[36:37]
    g_pc:
    s_sub_u32 s36, s36, g_pc-{NAME}
    s_subb_u32 s37, s37, 0
    v_lshlrev_b32 v4, 7, v0
    v_min_u32 v4, code_end-{NAME}-4, v4
    s_cmp_ge_u32 s2, 64
    s_cbranch_scc1 g_npf
    global_load_dword v250, v4, s[36:37]
    g_npf:""")
    k.c("s35 = mm ; s64 = cluster (or X index) ; s65 = kq ; s66 = 1 for X ; GEMV tile [256 k][128 n]: s40 = ks, s41 = nchunk, s3 = gi")
    k(f"""s_lshr_b32 s35, s2, 4
    s_and_b32 s65, s35, 1
    s_lshr_b32 s40, s35, 1
    s_mul_i32 s64, s34, 7
    s_add_u32 s64, s64, s40
    s_lshl_b32 s41, s34, 1
    s_add_u32 s41, s41, s65
    s_cmp_ge_u32 s35, 14
    s_cselect_b32 s66, 1, 0
    s_cselect_b32 s64, s41, s64
    s_lshl_b32 s3, s35, 3
    s_add_u32 s3, s3, s34
    s_lshr_b32 s40, s3, 5
    s_and_b32 s41, s3, 31
    v_bfe_u32 v5, v0, 4, 2
    v_lshl_add_u32 v6, v1, 5, v5
    v_mul_u32_u24 v4, 12288, v6
    v_and_b32 v8, 15, v0
    v_lshl_add_u32 v4, v8, 4, v4
    v_and_b32 v7, 7, v0
    v_lshl_add_u32 v7, v7, 2, v6
    v_lshlrev_b32 v7, 1, v7
    s_mul_i32 s18, s40, {256*12288}
    s_lshl_b32 s19, s41, 8
    s_add_u32 s18, s18, s19
    s_add_u32 s18, s18, 4096
    s_lshl_b32 s19, s40, 9
    v_mov_b32 v104, -1
    v_mov_b32 v105, -1
    v_mov_b32 v106, -1
    v_mov_b32 v107, -1
    v_mov_b32 v14, 0
    v_lshlrev_b32 v109, 4, v0
    s_lshl_b32 s38, s3, 14
    s_add_u32 s38, s38, {WS_SENT}
    s_add_u32 s39, s38, 8192
    s_waitcnt lgkmcnt(0)""")
    srd(k, 20, 26, 256)
    srd(k, 12, 28, WS_SIZE)
    stamp(k, 1)
    k.c("nonce writer: X workgroup 0, wave 0")
    k(f"""s_lshl_b32 s42, s64, 3
    s_add_u32 s42, s42, s16
    s_cmp_eq_u32 s66, 0
    s_cselect_b32 s42, 1, s42
    s_cmp_lg_u32 s42, 0
    s_cbranch_scc1 g_non
    s_or_b32 s32, s32, 1
    s_lshl_b32 s33, s33, 3
    v_mov_b32 v12, s32
    v_mov_b32 v13, s33
    s_mov_b64 exec, 1
    buffer_store_dwordx2 v[12:13], v14, s[20:23], 0 offen sc1
    s_mov_b64 exec, -1
    g_non:""")
    srd(k, 8, 6, 1024 * 6144 * 2)
    if E("ASSIST", 1):
        srd(k, 60, 56, 2048 * 1024 * 2)
        k(f"""s_sub_u32 s68, 16, s34
        s_cmp_eq_u32 s34, 0
        s_cselect_b32 s68, 8, s68
        s_bitcmp1_b32 s35, 0
        s_cselect_b32 s68, s68, s34
        s_lshr_b32 s69, s35, 1
        s_lshl_b32 s69, s69, 4
        s_add_u32 s68, s68, s69
        s_lshl_b32 s68, s68, 11
        s_add_u32 s68, s68, 1024
        s_and_b32 s69, s35, 3
        s_mul_i32 s69, s69, {256*12288}
        s_lshl_b32 s70, s34, 2
        s_lshr_b32 s71, s35, 2
        s_add_u32 s70, s70, s71
        s_lshl_b32 s70, s70, 7
        s_add_u32 s69, s69, s70
        s_cmp_ge_u32 s16, 4
        s_cbranch_scc1 g_as1
        s_cmp_eq_u32 s16, 3
        s_cbranch_scc1 g_as2
        s_cmp_eq_u32 s16, 2
        s_cbranch_scc1 g_as3
        v_lshrrev_b32 v110, 3, v0
        v_lshlrev_b32 v110, 18, v110
        v_and_b32 v111, 7, v0
        v_lshl_add_u32 v110, v111, 7, v110
        buffer_load_dword v251, v110, s[60:63], s68 offen
        s_waitcnt vmcnt(0)
        s_branch g_as2
        g_as3:
        s_lshr_b32 s70, s8, 7
        s_sub_u32 s70, {E("CLS", 3) if E("WHELP", 1) else 0}, s70
        s_lshl_b32 s71, s34, 2
        s_sub_u32 s70, s70, s71
        s_and_b32 s70, s70, 7
        s_cmp_ge_u32 s70, {4 if E("WHELP", 1) else 0}
        s_cbranch_scc1 g_as2
        s_add_u32 s70, s70, s71
        s_lshl_b32 s70, s70, 7
        s_mul_i32 s71, s35, {64*12288}
        s_add_u32 s70, s70, s71
        v_mul_u32_u24 v110, 12288, v2
        buffer_load_dword v251, v110, s[8:11], s70 offen
        s_branch g_as2
        g_as1:
        v_and_b32 v110, 255, v0
        v_mul_u32_u24 v110, 12288, v110
        buffer_load_dword v251, v110, s[8:11], s69 offen
        g_as2:""")
    if E("GDEL", 0): k(f"s_sleep {E('GDEL', 0)}")
    else: k("s_barrier")
    if E("NOGEMV", 0): k("v_mov_b32 v4, 0x7ff00000")
    PFL = E("PFL", 0)
    pf = """buffer_store_dwordx4 v[104:107], v109, s[12:15], s38 offen sc1
    buffer_store_dwordx4 v[104:107], v109, s[12:15], s39 offen sc1"""
    if E("NOPF", 0): k("v_mov_b32 v109, 0x7ff00000")
    if not PFL: k(pf)
    srd(k, 44, 4, 2048)
    k("buffer_load_ushort v6, v7, s[44:47], s19 offen")
    W = 16
    for i in range(8):
        if GDEPTH: k(f"s_waitcnt vmcnt({GDEPTH-1})")
        k(f"buffer_load_dwordx4 v[{W+4*i}:{W+4*i+3}], v4, s[8:11], s18 offen {NTV}")
        if i < 7: k(f"s_add_u32 s18, s18, {4*12288}")
    if PFL: k(pf)
    ACC = 80; U = 88; SB = 10
    k("s_mov_b32 s26, 4194304\ns_mov_b32 s27, 0x00020000")
    for i in range(8): k(f"v_mov_b32 v{ACC+i}, 0")
    get_nonce_issue(k, 14, NON)
    L_GR = 131072 + 4096
    k(f"""v_lshlrev_b32 v7, 5, v8
    v_lshl_add_u32 v7, v5, 3, v7
    v_lshl_add_u32 v7, v1, 9, v7
    v_add_u32 v7, {L_GR}, v7
    v_lshlrev_b32 v108, 3, v2
    v_add_u32 v108, {L_GR}, v108
    v_lshlrev_b32 v15, 11, v2
    s_lshl_b32 s18, s40, 15
    s_lshl_b32 s19, s41, 10
    s_add_u32 s18, s18, s19
    s_add_u32 s18, s18, {WS_MODP}
    s_waitcnt vmcnt({9+2*PFL})
    v_lshlrev_b32 v6, 16, v6
    v_mul_f32 v9, {LOG2E}, v6
    v_exp_f32 v9, v9
    v_add_f32 v9, 1.0, v9
    v_rcp_f32 v9, v9
    v_mul_f32 v6, v6, v9""")
    round_bf16(k, 6, 6)
    stamp(k, 2)
    for i in range(8):
        k(f"v_mov_b32_dpp v{SB}, v6 row_newbcast:{i} {DPPM}")
        k(f"s_waitcnt vmcnt({8-i+2*PFL})")
        u = U + 8 * (i & 1)
        for j in range(4): unpack_bf16(k, u + 2*j, W + 4*i + j)
        for j in range(4):
            k(f"v_pk_fma_f32 {P(ACC+2*j)}, {P(u+2*j)}, {P(SB)}, {P(ACC+2*j)} op_sel_hi:[1,0,1]")
    for j in range(4): k(f"v_permlane32_swap_b32 v{ACC+j}, v{ACC+j+4}")
    for j in range(2): padd(k, ACC + 2*j, ACC + 2*j, ACC + 4 + 2*j)
    for j in range(2): k(f"v_permlane16_swap_b32 v{ACC+j}, v{ACC+j+2}")
    padd(k, ACC, ACC, ACC + 2)
    stamp(k, 3)
    k(f"""ds_write_b64 v7, v[{ACC}:{ACC+1}]
    s_waitcnt vmcnt(0)""")
    get_nonce_finish(k, "g_nn", 14, NON)
    k.c("M: w_down DMA may start before the partial sums are out (own LDS area)")
    srd(k, 56, 54, 1024 * 3584 * 2)
    k(f"""s_lshl_b32 s68, s16, 13
    s_lshl_b32 s42, s64, 6
    s_lshr_b32 s43, s16, 2
    s_lshl_b32 s43, s43, 5
    s_add_u32 s42, s42, s43
    s_and_b32 s43, s16, 1
    s_lshl_b32 s43, s43, 4
    s_add_u32 s42, s42, s43
    s_and_b32 s43, s16, 2
    s_lshl_b32 s43, s43, 1
    s_add_u32 s42, s42, s43
    s_lshl_b32 s67, s42, 11
    s_lshl_b32 s43, s65, 10
    s_add_u32 s67, s67, s43""")
    def wd():
        for d in range(0 if E("NOSTREAM", 0) else 8):
            rows = 8 * (d >> 2) + (d & 3)
            k(f"s_add_u32 s42, s67, {rows*2048}")
            k(f"s_add_u32 s43, s68, {d*1024}")
            k(f"s_mov_b32 m0, s43")
            if d: k(f"v_xor_b32 v8, {d*32}, v3")
            if DEPTH: k(f"s_waitcnt vmcnt({DEPTH-1})")
            k(f"buffer_load_dwordx4 v{8 if d else 3}, s[56:59], s42 offen {NTD} lds")
    EARLY = E("EARLY", 0)
    if E("HELP", 1):
        k.c("the line group whose address class streams slowly is pulled into L2 by all M workgroups of the die")
        k(f"""s_cmp_eq_u32 s66, 1
        s_cbranch_scc1 g_nh
        s_cmp_eq_u32 s65, 0
        s_cselect_b32 s8, s50, s52
        s_cselect_b32 s9, s51, s53
        s_mov_b32 s10, {1024*3584*2}
        s_lshr_b32 s42, s8, 7
        s_sub_u32 s42, {E("CLS", 3)}, s42
        s_add_u32 s42, s42, s34
        s_and_b32 s42, s42, 7
        s_cmp_eq_u32 s42, 7
        s_cbranch_scc1 g_nh
        s_mul_i32 s43, s34, 7
        s_add_u32 s42, s42, s43
        s_lshl_b32 s42, s42, 7
        s_lshr_b32 s43, s35, 1
        s_lshl_b32 s43, s43, 3
        s_add_u32 s43, s43, s16
        s_mul_i32 s43, s43, {19*7168}
        s_add_u32 s42, s42, s43
        v_mul_u32_u24 v8, 7168, v2
        s_mov_b64 exec, 0x7ffff
        buffer_load_dword v252, v8, s[8:11], s42 offen
        s_mov_b64 exec, -1
        g_nh:""")
    k(f"""s_cmp_eq_u32 s66, 1
    s_cbranch_scc1 g_ne
    s_cmp_ge_u32 s16, {EARLY}
    s_cbranch_scc1 g_ne""")
    wd()
    k(f"""g_ne:
    s_waitcnt lgkmcnt(0)
    s_barrier
    s_cmp_lg_u32 s16, 7
    s_cbranch_scc1 g_nr""")
    for i in range(4):
        k(f"ds_read2st64_b64 v[{16+4*i}:{19+4*i}], v108 offset0:{2*i} offset1:{2*i+1}")
    k("s_waitcnt lgkmcnt(0)")
    for i in range(4): padd(k, 16 + 4*i, 16 + 4*i, 18 + 4*i)
    padd(k, 16, 16, 20); padd(k, 24, 24, 28); padd(k, 16, 16, 24)
    k(f"""v_mov_b32 v18, v17
    v_mov_b32 v17, s32
    v_mov_b32 v19, s33
    buffer_store_dwordx4 v[16:19], v3, s[12:15], s18 offen sc1
    g_nr:""")
    stamp(k, 4)
    k(f"""s_barrier
    s_cmp_eq_u32 s66, 1
    s_cbranch_scc1 x_start""")
    k.c("================= M: weight stream =================")
    k(f"""s_getreg_b32 s39, hwreg(HW_REG_XCC_ID)
    s_and_b32 s39, s39, 7
    s_or_b32 s39, s39, s33
    s_lshl_b32 s38, s64, 1
    s_add_u32 s38, s38, s65
    s_lshl_b32 s38, s38, 7
    s_add_u32 s38, s38, {WS_MX}
    s_cmp_lg_u32 s16, 6
    s_cbranch_scc1 m_nx
    v_mov_b32 v13, s39
    s_mov_b64 exec, 1
    buffer_store_dwordx2 v[12:13], v14, s[12:15], s38 offen sc1
    s_mov_b64 exec, -1
    m_nx:
    s_xor_b32 s38, s38, 128""")
    srd(k, 8, 50, 1024 * 3584 * 2)
    srd(k, 44, 52, 1024 * 3584 * 2)
    L_H = 131072; L_A = 131072 + 2048
    if E("MW1", 0):
        k(f"""s_lshl_b32 s79, s34, 11
        s_add_u32 s79, s79, {WS_FL1}
        s_cmp_lg_u32 s16, 0
        s_cbranch_scc1 m_w1""")
        poll_recs(k, "m_pf", 24, 3, 79, 28, mask_hi=True)
        if E("ZASSIST", 1):
            k(f"""s_lshl_b32 s42, s34, 4
            s_add_u32 s42, s42, s35
            s_lshl_b32 s42, s42, 15
            s_add_u32 s42, s42, {WS_Z1 + 16384}
            s_add_u32 s43, s42, 8192
            v_lshlrev_b32 v8, 7, v2
            buffer_load_dword v253, v8, s[12:15], s42 offen sc1
            buffer_load_dword v254, v8, s[12:15], s43 offen sc1""")
        if E("MDEL", 8): k(f"s_sleep {E('MDEL', 8)}")
        k("m_w1:\ns_barrier")
    if E("MSTART", 0): k(f"s_sleep {E('MSTART', 0)}")
    else:
        E2 = E("E2", 0)
        if E2:
            k(f"s_cmp_lt_u32 s16, {8-E2}\ns_cbranch_scc1 m_e2")
            wd()
            k("m_e2:")
        k.c("hold the weight stream until the neighbour's first exchange is through (hint only, bounded)")
        k(f"""s_cmp_lg_u32 s16, 0
        s_cbranch_scc1 m_zlx
        s_lshl_b32 s42, s34, 4
        s_add_u32 s42, s42, s35
        s_lshl_b32 s42, s42, 7
        s_add_u32 s42, s42, {WS_ZL}
        s_mov_b32 s83, 0
        m_zl:
        buffer_load_dwordx2 v[16:17], v14, s[12:15], s42 offen sc1
        s_waitcnt vmcnt(0)
        v_readfirstlane_b32 s43, v16
        s_cmp_eq_u32 s43, s32
        s_cbranch_scc1 m_zlx
        s_sleep {E("ZLS", 3)}
        s_add_u32 s83, s83, 1
        s_cmp_lt_u32 s83, 32
        s_cbranch_scc1 m_zl
        m_zlx:
        s_barrier""")
    if E("E2", 0): k(f"s_cmp_ge_u32 s16, {8-E('E2', 0)}\ns_cbranch_scc1 m_l1")
    k(f"s_cmp_lt_u32 s16, {EARLY}\ns_cbranch_scc1 m_l1")
    wd()
    k(f"""m_l1:
    v_bfe_u32 v4, v0, 5, 1
    v_lshlrev_b32 v4, 3, v4
    v_bfe_u32 v5, v0, 3, 2
    v_add_u32 v4, v4, v5
    v_mul_u32_u24 v4, 7168, v4
    v_bfe_u32 v5, v0, 4, 2
    v_lshlrev_b32 v5, 1, v5
    v_xor_b32 v5, v5, v0
    v_and_b32 v5, 7, v5
    v_lshl_add_u32 v4, v5, 4, v4
    s_lshl_b32 s67, s65, 3
    s_add_u32 s67, s67, s16
    s_mul_i32 s67, s67, {64*7168}
    s_lshl_b32 s42, s64, 7
    s_add_u32 s67, s67, s42""")
    def gu(srdb, base):
        for ks in range(0 if E("NOSTREAM", 0) else 2):
            for d in range(4):
                rows = 32 * ks + 16 * (d & 1) + 4 * (d >> 1)
                k(f"s_add_u32 s42, s67, {rows*7168}")
                k(f"s_add_u32 s43, s68, {base + ks*4096 + d*1024}")
                k(f"s_mov_b32 m0, s43")
                if DEPTH: k(f"s_waitcnt vmcnt({DEPTH-1})")
                k(f"buffer_load_dwordx4 v4, s[{srdb}:{srdb+3}], s42 offen {NTG} lds")
    gu(8, 65536)
    stamp(k, 5)
    BD, BG, BU = 32, 64, 96
    k.c("v12/v21 gate/up tr addr ; v8..v11 down tr addr ; v17 A read ; v18 act write ; v19 act read ; v20 PART store")
    k(f"""v_lshrrev_b32 v6, 2, v2
    v_and_b32 v15, 3, v0
    v_bfe_u32 v7, v0, 3, 2
    v_xor_b32 v12, v7, v1
    v_and_b32 v12, 3, v12
    v_lshlrev_b32 v12, 5, v12
    v_lshl_add_u32 v12, v6, 7, v12
    v_lshl_add_u32 v12, v15, 3, v12
    v_lshrrev_b32 v16, 2, v1
    v_lshl_add_u32 v12, v16, 15, v12
    v_add_u32 v21, 65536, v12
    v_and_b32 v7, 7, v6
    v_lshlrev_b32 v8, 2, v1
    v_xor_b32 v8, v8, v7
    v_lshlrev_b32 v8, 5, v8
    v_lshl_add_u32 v8, v6, 10, v8
    v_lshl_add_u32 v8, v15, 3, v8
    v_xor_b32 v9, 32, v8
    v_xor_b32 v10, 64, v8
    v_xor_b32 v11, 96, v8
    v_bfe_u32 v7, v0, 4, 2
    v_and_b32 v6, 1, v0
    v_lshlrev_b32 v17, 10, v6
    v_lshl_add_u32 v17, v16, 9, v17
    v_lshl_add_u32 v17, v7, 4, v17
    v_add_u32 v17, {L_H}, v17
    v_lshlrev_b32 v19, 7, v6
    v_lshl_add_u32 v19, v7, 4, v19
    v_add_u32 v19, {L_A}, v19
    v_and_b32 v6, 15, v0
    v_lshlrev_b32 v18, 1, v6
    v_lshl_add_u32 v18, v1, 5, v18
    v_lshl_add_u32 v18, v7, 7, v18
    v_add_u32 v18, {L_A}, v18
    v_lshlrev_b32 v20, 2, v6
    v_lshl_add_u32 v20, v1, 14, v20
    v_lshl_add_u32 v20, v7, 12, v20
    v_cmp_eq_u32 s[60:61], 1, v7
    v_cmp_eq_u32 s[62:63], 2, v7
    v_cmp_eq_u32 s[72:73], 3, v7
    v_add_u32 v13, {L_H}, v3
    s_lshl_b32 s70, s65, 10
    s_add_u32 s70, s70, {WS_SLOT}
    s_lshl_b32 s74, s65, 17
    s_lshl_b32 s75, s64, 6
    s_add_u32 s74, s74, s75
    s_add_u32 s74, s74, {WS_PART}
    s_add_u32 s75, s74, {64*4096}
    s_lshl_b32 s69, s64, 2
    s_and_b32 s42, s16, 3
    s_add_u32 s69, s69, s42
    s_lshl_b32 s69, s69, 10
    s_add_u32 s81, s69, {WS_XA}
    s_add_u32 s82, s69, {WS_XB}
    s_lshl_b32 s76, s65, 1
    s_lshr_b32 s42, s16, 2
    s_add_u32 s76, s76, s42
    s_lshl_b32 s76, s76, 8
    s_add_u32 s77, s76, s82
    s_add_u32 s76, s76, s81
    s_lshl_b32 s78, s34, 11
    s_add_u32 s79, s78, {WS_FLX}
    s_add_u32 s78, s78, {WS_KEY}
    v_and_b32 v14, 0x70, v3
    s_waitcnt vmcnt(8)
    s_barrier""")
    for ks in range(2):
        for t in range(4):
            b_ = BD + (ks*4 + t)*4
            k(f"ds_read_b64_tr_b16 v[{b_}:{b_+1}], v{8+t} offset:{ks*32768}")
            k(f"ds_read_b64_tr_b16 v[{b_+2}:{b_+3}], v{8+t} offset:{ks*32768+16384}")
    k("s_waitcnt lgkmcnt(0)\ns_barrier")
    gu(44, 0)
    k("s_waitcnt vmcnt(8)\ns_barrier")
    k.c("wave 0: flag / hint / key loads ride behind the last weight loads")
    k(f"""s_cmp_lg_u32 s16, 0
    s_cbranch_scc1 m_n0
    v_lshlrev_b32 v9, 6, v2
    v_mov_b32 v22, 0
    s_waitcnt vmcnt({E("MLATE", 2)})
    buffer_load_dword v10, v9, s[12:15], s81 offen sc1
    buffer_load_dwordx4 v[28:31], v14, s[12:15], s79 offen sc1
    buffer_load_dwordx2 v[188:189], v22, s[12:15], s38 offen sc1
    {"buffer_load_dword v23, v22, s[12:15], s78 offen offset:1024 sc1" if E("RIDE", 1) else "v_mov_b32 v23, -1"}
    m_n0:""")
    for ks in range(8):
        k(f"ds_read_b64_tr_b16 v[{BG+4*ks}:{BG+4*ks+1}], v21 offset:{ks*4096}")
        k(f"ds_read_b64_tr_b16 v[{BG+4*ks+2}:{BG+4*ks+3}], v21 offset:{ks*4096+2048}")
    KB = 24; HA = 128; AG = 160
    k("s_waitcnt vmcnt(0)\ns_barrier")
    k(f"""v_mov_b32 v190, {L_A + 1024}
    s_cmp_lg_u32 s16, 0
    s_cbranch_scc1 m_n1
    v_xor_b32 v188, s32, v188
    v_xor_b32 v189, s39, v189
    v_or_b32 v188, v188, v189
    ds_write_b32 v190, v188""")
    cmp_recs(k, 28, 4, 9)
    k(f"""s_mov_b32 s71, 0
    s_cbranch_vccnz m_n1
    s_mov_b32 s71, 1
    v_cmp_eq_u32 vcc, -1, v23
    s_cbranch_vccnz m_n1
    buffer_load_dwordx4 v[{KB}:{KB+3}], v3, s[12:15], s78 offen sc1
    m_n1:""")
    for ks in range(8):
        k(f"ds_read_b64_tr_b16 v[{BU+4*ks}:{BU+4*ks+1}], v12 offset:{ks*4096}")
        k(f"ds_read_b64_tr_b16 v[{BU+4*ks+2}:{BU+4*ks+3}], v12 offset:{ks*4096+2048}")
    stamp(k, 6)
    k("s_cmp_lg_u32 s16, 0\ns_cbranch_scc1 m_nk\ns_cbranch_vccnz m_slowk\ns_waitcnt vmcnt(0)")
    chk_sent(k, range(KB, KB + 4), 9)
    k("s_cbranch_vccz m_pkx\ns_branch m_gox\nm_slowk:\ns_cmp_eq_u32 s71, 1\ns_cbranch_scc1 m_p1x")
    poll_recs(k, "m_p1", 24, 14, 79, 9)
    go_wait(k, "m_go", 78)
    poll_keys(k, "m_pk", KB, 78, 9)
    stamp(k, 13)
    top2(k, KB, 40, 41, 28)
    hl = """buffer_load_dwordx4 v[176:179], v3, s[12:15], s42 offen sc1
    buffer_load_dwordx4 v[180:183], v3, s[12:15], s43 offen sc1"""
    k(f"""s_and_b32 s40, s40, 0xff
    s_and_b32 s41, s41, 0xff
    s_lshl_b32 s42, s40, 12
    s_lshl_b32 s43, s41, 12
    s_add_u32 s42, s42, s70
    s_add_u32 s43, s43, s70
    s_mov_b32 s83, 0
    {hl}
    s_cmp_lg_u32 s35, 0
    s_cbranch_scc1 m_ph2
    v_mov_b32 v28, s40
    v_mov_b32 v29, s41
    s_mov_b64 exec, 1
    buffer_store_dwordx2 v[28:29], v22, s[12:15], s78 offen offset:1280 sc1
    s_mov_b64 exec, -1
    s_waitcnt vmcnt(1)
    s_branch m_ph3
    m_ph:
    {hl}
    m_ph2:
    s_waitcnt vmcnt(0)
    m_ph3:
    ds_write_b128 v13, v[176:179]
    ds_write_b128 v13, v[180:183] offset:1024""")
    chk_sent(k, range(176, 184), 9)
    k(f"""s_cbranch_vccz m_phx
    s_add_u32 s83, s83, 1
    s_cmp_lt_u32 s83, {SPIN}
    s_cbranch_scc1 m_ph
    m_phx:
    s_waitcnt lgkmcnt(0)""")
    stamp(k, 14)
    k("m_nk:\ns_barrier\nds_read_b32 v188, v190")
    for ks in range(8):
        k(f"ds_read_b128 v[{HA+4*ks}:{HA+4*ks+3}], v17 offset:{ks*64}")
    for ks in range(8):
        k(f"s_waitcnt lgkmcnt({7-ks})")
        for a_, b_ in ((AG, BG), (AG + 4, BU)):
            cc = "0" if ks == 0 else f"v[{a_}:{a_+3}]"
            k(f"v_mfma_f32_16x16x32_bf16 v[{a_}:{a_+3}], v[{HA+4*ks}:{HA+4*ks+3}], v[{b_+4*ks}:{b_+4*ks+3}], {cc}")
    PB = 184
    xb = f"s_mov_b64 exec, 0xffff\nbuffer_store_dwordx4 v[{PB}:{PB+3}], v3, s[12:15], s77 offen sc1\ns_mov_b64 exec, -1"
    k(f"""v_readfirstlane_b32 s71, v188
    v_min_u32 v{PB}, -2, v{AG}
    v_min_u32 v{PB+1}, -2, v{AG+1}
    v_min_u32 v{PB+2}, -2, v{AG+4}
    v_min_u32 v{PB+3}, -2, v{AG+5}
    s_mov_b64 exec, 0xffff
    buffer_store_dwordx4 v[{PB}:{PB+3}], v3, s[12:15], s76 offen
    s_cmp_eq_u32 s71, 0
    s_cbranch_scc1 m_same
    buffer_store_dwordx4 v[{PB}:{PB+3}], v3, s[12:15], s77 offen sc1
    m_same:
    s_cselect_b32 s82, s81, s82
    s_mov_b64 exec, -1
    s_cmp_ge_u32 s16, 4
    s_cbranch_scc1 m_na""")
    if SL3: k(f"s_sleep {SL3}")
    stamp(k, 15)
    R = 24
    k("s_mov_b32 s83, 0\nm_px:")
    for so in (81, 82):
        k(f"buffer_load_dwordx4 v[{R}:{R+3}], v3, s[12:15], s{so} offen sc1")
        k("s_waitcnt vmcnt(0)")
        chk_sent(k, range(R, R + 4), 9)
        k("s_cbranch_vccz m_pxx")
    k(f"""s_add_u32 s83, s83, 1
    s_cmp_lt_u32 s83, {SPIN}
    s_cbranch_scc1 m_px
    m_pxx:""")
    stamp(k, 16)
    k(f"v_permlane32_swap_b32 v{R}, v{R+2}")
    k(f"v_permlane32_swap_b32 v{R+1}, v{R+3}")
    padd(k, R, R, R + 2)
    k(f"v_permlane16_swap_b32 v{R}, v{R+1}")
    k(f"v_add_f32 v{R}, v{R}, v{R+1}")
    round_bf16(k, R, R)
    k(f"""v_mul_f32 v{R+1}, {LOG2E}, v{R}
    v_exp_f32 v{R+1}, v{R+1}
    v_mov_b32 v{R+2}, v{R}
    v_add_f32 v{R+1}, 1.0, v{R+1}
    v_rcp_f32 v{R+1}, v{R+1}
    v_mov_b32 v{R+3}, v{R}
    v_mul_f32 v{R+1}, v{R}, v{R+1}
    v_permlane32_swap_b32 v{R+2}, v{R+3}""")
    round_bf16(k, R + 1, R + 1)
    k(f"""v_mul_f32 v{R+1}, v{R+1}, v{R+3}
    v_cvt_pk_bf16_f32 v{R+1}, v{R+1}, v{R+1}
    ds_write_b16 v18, v{R+1}
    m_na:""")
    k("""s_waitcnt lgkmcnt(0)
    s_barrier""")
    for ks in range(2):
        k(f"ds_read_b128 v[{HA+4*ks}:{HA+4*ks+3}], v19 offset:{ks*64}")
    for ks in range(2):
        k(f"s_waitcnt lgkmcnt({1-ks})")
        for t in range(4):
            a_ = AG + 4 * t
            cc = "0" if ks == 0 else f"v[{a_}:{a_+3}]"
            b_ = BD + (ks*4 + t)*4
            k(f"v_mfma_f32_16x16x32_bf16 v[{a_}:{a_+3}], v[{HA+4*ks}:{HA+4*ks+3}], v[{b_}:{b_+3}], {cc}")
    for t, m_ in ((1, "s[60:61]"), (2, "s[62:63]"), (3, "s[72:73]")):
        for row in range(2):
            src = AG + row if t == 1 else 24 + row
            k(f"v_cndmask_b32 v{24+row}, v{src}, v{AG+4*t+row}, {m_}")
    for row in range(2):
        k(f"v_min_u32 v{24+row}, -2, v{24+row}")
    for row in range(2):
        k(f"buffer_store_dword v{24+row}, v20, s[12:15], s{74+row} offen sc1")
    if E("WBL2", 0) == 4:
        k("""s_lshl_b32 s42, s35, 3
        s_add_u32 s42, s42, s16
        s_cmp_lg_u32 s42, 15
        s_cbranch_scc1 m_nwb
        s_waitcnt vmcnt(0)
        buffer_wbl2 sc1
        m_nwb:""")
    stamp(k, 17)
    stamp_out(k, 0)
    k("s_endpgm")
    k.c("================= X: finalize ga/sb/cb/gb, then final reduction =================")
    k("x_start:")
    srd(k, 8, 48, 2048)
    k.c("s17 = j = wave*16 + xi ; finalize: vec = wave>>1, columns xi*64 + (wave&1)*32 + 2*(l>>2) + {0,1}, ks = l&3")
    k(f"""s_lshl_b32 s17, s64, 3
    s_add_u32 s17, s17, s16
    s_lshl_b32 s71, s64, 6
    s_and_b32 s70, s16, 1
    s_lshl_b32 s70, s70, 5
    s_add_u32 s70, s70, s71
    v_lshrrev_b32 v8, 2, v2
    v_lshlrev_b32 v4, 1, v8
    v_add_u32 v4, s70, v4
    v_and_b32 v5, 3, v0
    v_lshlrev_b32 v5, 15, v5
    v_lshl_add_u32 v8, v8, 4, v5
    s_lshr_b32 s72, s16, 1
    s_lshl_b32 s43, s72, 10
    s_add_u32 s43, s43, s70
    s_lshl_b32 s43, s43, 3
    s_add_u32 s43, s43, {WS_MODP}
    s_lshl_b32 s78, s34, 11
    s_add_u32 s78, s78, {WS_KEY}
    s_lshl_b32 s79, s64, 3
    s_add_u32 s79, s79, {WS_FLX}
    s_lshl_b32 s75, s72, 12
    s_add_u32 s75, s75, {WS_PAR}
    s_cmp_eq_u32 s72, 2
    s_cselect_b32 s72, 1.0, 0""")
    pos32(k, 6, 4, 7)
    k(f"""s_cmp_lg_u32 s16, 0
    s_cbranch_scc1 x_npw
    v_mov_b32 v20, 0
    v_mov_b32 v21, 0
    s_mov_b64 exec, 0xff
    buffer_store_dwordx2 v[20:21], v15, s[12:15], s79 offen sc1
    s_mov_b64 exec, -1
    x_npw:""")
    if E("PWX", 0):
        k(f"""s_mov_b32 exec_lo, 0x11111111
        s_mov_b32 exec_hi, 0x11111111
        s_mov_b32 s74, {WS_PAR + 4*4096}
        buffer_store_dwordx2 v[14:15], v6, s[12:15], s75 offen sc1
        s_cmp_eq_u32 s72, 0
        s_cbranch_scc1 x_npq
        buffer_store_dwordx2 v[14:15], v6, s[12:15], s74 offen sc1
        x_npq:
        s_mov_b64 exec, -1""")
    k(f"""v_lshlrev_b32 v9, 1, v4
    buffer_load_dword v22, v9, s[8:11], 0 offen
    s_mov_b32 s74, {WS_PAR + 4*4096}
    s_sleep {E("SLP", 6)}
    s_mov_b32 s83, 0
    x_pm:
    buffer_load_dwordx4 v[16:19], v8, s[12:15], s43 offen sc1
    s_waitcnt vmcnt(0)
    v_cmp_ne_u32 vcc, s32, v17
    v_cmp_ne_u32 s[68:69], s33, v19
    s_or_b64 vcc, vcc, s[68:69]
    s_cbranch_vccz x_pmx
    s_sleep {SL2}
    s_add_u32 s83, s83, 1
    s_cmp_lt_u32 s83, {SPIN}
    s_cbranch_scc1 x_pm
    x_pmx:
    v_mov_b32 v17, v18""")
    stamp(k, 5)
    for qp in ("[1,0,3,2]", "[2,3,0,1]"):
        for r in (16, 17): k(f"v_add_f32_dpp v{r}, v{r}, v{r} quad_perm:{qp} {DPPM}")
    rb2(k, 16, 18)
    k("v_add_f32 v16, s72, v16\nv_add_f32 v17, s72, v17")
    rb2(k, 16, 18)
    k(f"""s_mov_b32 exec_lo, 0x11111111
    s_mov_b32 exec_hi, 0x11111111
    buffer_store_dwordx2 v[16:17], v6, s[12:15], s75 offen sc1
    s_cmp_eq_u32 s72, 0
    s_cbranch_scc1 x_nq
    v_lshlrev_b32 v20, 16, v22
    v_and_b32 v21, 0xffff0000, v22
    v_pk_mul_f32 v[20:21], v[20:21], v[16:17]
    buffer_store_dwordx2 v[20:21], v6, s[12:15], s74 offen sc1
    x_nq:
    s_mov_b64 exec, -1
    s_waitcnt vmcnt(0)""")
    stamp(k, 6)
    k(f"""s_barrier
    s_cmp_lg_u32 s16, 0
    s_cbranch_scc1 x_nf
    s_mov_b64 exec, 0xff
    buffer_store_dwordx2 v[{NON}:{NON+1}], v15, s[12:15], s79 offen sc1
    s_mov_b64 exec, -1
    x_nf:
    s_and_b32 s18, s17, 63
    v_and_b32 v5, 3, v0
    v_lshlrev_b32 v5, 3, v5
    v_and_b32 v6, 1, v0
    v_lshlrev_b32 v6, 10, v6
    v_bfe_u32 v7, v0, 1, 1
    v_lshl_add_u32 v6, v7, 4, v6
    v_lshrrev_b32 v7, 4, v2
    v_lshl_add_u32 v6, v7, 2, v6
    v_lshl_add_u32 v5, v7, 1, v5
    v_and_b32 v86, -4, v5
    v_and_b32 v87, 2, v5
    v_lshlrev_b32 v87, 3, v87
    s_lshr_b32 s19, s18, 5
    s_lshl_b32 s19, s19, 11
    s_and_b32 s31, s18, 31
    s_lshl_b32 s31, s31, 5
    s_add_u32 s19, s19, s31
    s_add_u32 s31, s19, {WS_PAR + 3*4096}
    s_lshl_b32 s44, s17, 12
    s_add_u32 s44, s44, {WS_PART}
    v_cmp_gt_u32 vcc, 32, v2
    v_mov_b32 v7, 0x7ff00000
    v_cndmask_b32 v7, v7, v3, vcc""")
    for j in range(2):
        k(f"buffer_load_dwordx4 v[{40+4*j}:{43+4*j}], v3, s[8:11], 0 offen offset:{j*1024}")
    k("s_waitcnt vmcnt(0)")
    for i in range(8): unpack_bf16(k, 48 + 2*i, 40 + i)
    XPF = E("XPF", 0)
    if XPF:
        k.c("second X workgroup of the die helps the weight stream: last gate rows of both K halves")
        srd(k, 60, 50, 1024 * 3584 * 2)
        k(f"""s_cmp_eq_u32 s65, 0
        s_cbranch_scc1 x_nh
        v_lshrrev_b32 v90, 3, v2
        v_mul_u32_u24 v90, 7168, v90
        v_and_b32 v91, 7, v0
        v_min_u32 v91, 6, v91
        v_lshl_add_u32 v90, v91, 7, v90
        s_lshr_b32 s70, s16, 2
        s_lshl_b32 s70, s70, 9
        s_and_b32 s71, s16, 3
        s_mul_i32 s71, s71, {8*XPF}
        s_add_u32 s70, s70, s71
        s_add_u32 s70, s70, {512 - 32*XPF}
        s_mul_i32 s70, s70, 7168
        s_mul_i32 s71, s34, 896
        s_add_u32 s70, s70, s71""")
        for i in range(XPF):
            k(f"buffer_load_dword v{92+i}, v90, s[60:63], s70 offen\ns_add_u32 s70, s70, {8*7168}")
        k("x_nh:")
    k(f"s_cmp_lg_u32 s16, 0\ns_cbranch_scc1 x_ng\nv_and_b32 v9, 0x70, v3\ns_sub_u32 s79, s78, {WS_KEY-WS_FLX}\ns_sleep {E('XPS', 6)}")
    poll_recs(k, "x_px", 16, 9, 79, 20)
    if E("PTOUCH", 1):
        k(f"""v_lshlrev_b32 v9, 7, v2
        s_mov_b32 s42, {WS_PAR}
        s_mov_b32 s43, {WS_PAR + 8192}
        buffer_load_dword v24, v9, s[12:15], s42 offen sc1
        buffer_load_dword v25, v9, s[12:15], s43 offen sc1
        s_mov_b32 s42, {WS_PAR + 12288}
        buffer_load_dword v26, v9, s[12:15], s42 offen sc1""")
    res_wait(k, "x_r0", 78, 22, 16, 3)
    k("x_ng:\ns_barrier")
    res_wait(k, "x_r1", 78, 22, 16, 1)
    stamp(k, 13)
    k(f"""s_cmp_lt_u32 s17, 64
    s_cselect_b32 s40, s40, s41
    s_and_b32 s40, s40, 0xff
    s_lshl_b32 s42, s40, 12
    s_add_u32 s42, s42, {WS_SLOT}
    s_lshl_b32 s19, s18, 5
    s_add_u32 s43, s42, s19
    s_lshl_b32 s40, s40, 2
    s_add_u32 s40, s40, {WS_TT}
    buffer_load_dword v80, v6, s[12:15], s31 offen sc1
    s_mov_b32 s83, 0
    x_ps:""")
    for j in range(2):
        k(f"buffer_load_dwordx4 v[{32+4*j}:{35+4*j}], v3, s[12:15], s42 offen offset:{j*1024} sc1")
    k("""buffer_load_dword v40, v86, s[12:15], s43 offen offset:2048 sc1
    buffer_load_dword v41, v14, s[12:15], s40 offen sc1
    s_waitcnt vmcnt(0)""")
    chk_sent(k, range(32, 42), 9)
    k(f"""s_cbranch_vccz x_psx
    s_add_u32 s83, s83, 1
    s_cmp_lt_u32 s83, {SPIN}
    s_cbranch_scc1 x_ps
    x_psx:
    v_readfirstlane_b32 s41, v41""")
    for i in range(8): unpack_bf16(k, 64 + 2*i, 32 + i)
    k("""s_and_b32 s41, s41, 0x7ff
    s_lshl_b32 s41, s41, 11
    s_add_u32 s41, s41, s19""")
    pmul(k, 8, 48, 64)
    for i in range(1, 8): pfma(k, 8, 48 + 2*i, 64 + 2*i, 8)
    k("v_add_f32 v8, v8, v9")
    wave_reduce_to63(k, [8])
    round_bf16(k, 8, 8)
    k(f"""v_mul_f32 v8, {LOG2E}, v8
    v_exp_f32 v8, v8
    v_add_f32 v8, 1.0, v8
    v_rcp_f32 v8, v8""")
    round_bf16(k, 8, 8)
    k("v_readlane_b32 s46, v8, 63")
    k("v_lshrrev_b32 v44, v87, v40\nv_lshlrev_b32 v44, 16, v44\nv_mul_f32 v80, s46, v80")
    stamp(k, 14)
    L = 16
    k(f"s_sleep {SL4}")
    k(f"s_mov_b32 s83, 0\nx_p2:")
    for j in range(4):
        k(f"buffer_load_dwordx4 v[{L+4*j}:{L+4*j+3}], v{7 if j == 3 else 3}, s[12:15], s44 offen offset:{j*1024} sc1")
    k("s_waitcnt vmcnt(0)")
    chk_sent(k, range(L, L + 16), 12)
    k(f"""s_cbranch_vccz x_p3
    s_add_u32 s83, s83, 1
    s_cmp_lt_u32 s83, {SPIN}
    s_cbranch_scc1 x_p2
    x_p3:""")
    stamp(k, 17)
    for h in range(2):
        padd(k, L + 2*h, L + 2*h, L + 4 + 2*h); padd(k, L + 8 + 2*h, L + 8 + 2*h, L + 12 + 2*h)
    for h in range(2): padd(k, L + 2*h, L + 2*h, L + 8 + 2*h)
    k(f"v_permlane32_swap_b32 v{L}, v{L+2}\nv_permlane32_swap_b32 v{L+1}, v{L+3}")
    padd(k, L, L, L + 2)
    k(f"v_permlane16_swap_b32 v{L}, v{L+1}\nv_add_f32 v{L}, v{L}, v{L+1}")
    for sh in (4, 8): k(f"v_add_f32_dpp v{L}, v{L}, v{L} row_ror:{sh} {DPPM}")
    k(f"""v_fmac_f32 v44, v{L}, v80
    s_mov_b32 exec_lo, 0x000f000f
    s_mov_b32 exec_hi, 0x000f000f
    v_cvt_pk_bf16_f32 v44, v44, v44
    buffer_store_short v44, v5, s[24:27], s41 offen {os.environ.get("FST", "")}""")
    stamp_out(k, 0)

def gen():
    k = K(NAME)
    stamp_init(k)
    k("""s_cmp_ge_u32 s2, 256
    s_cbranch_scc1 k_done""")
    stamp(k, 0)
    k("""v_lshrrev_b32 v1, 6, v0
    v_and_b32 v2, 63, v0
    v_readfirstlane_b32 s16, v1
    v_lshlrev_b32 v3, 4, v2
    s_and_b32 s34, s2, 7
    s_bitcmp1_b32 s2, 3
    s_cbranch_scc1 g_start""")
    role_F(k)
    role_G(k)
    k("k_done:\ns_endpgm")
    return k

HEADER = """; adaLN + FNet mixing + MoD block, gfx950.  Generated by gen/gen17.py (hand-written generator).
"""
def tables():
    import numpy as np
    def h2(a, b):
        return int(np.float16(a).view(np.uint16)) | (int(np.float16(b).view(np.uint16)) << 16)
    def f4(a): return int(np.float32(a).view(np.uint32))
    cs = lambda x: (math.cos(2 * math.pi * x), math.sin(2 * math.pi * x))
    w = []
    for arr in range(4):
        for q in range(4):
            for l in range(64):
                n, h = l & 31, l >> 5
                for i in range(4):
                    idx = 8 * q + 4 * h + i
                    c, s_ = cs((idx * n % 32) / 32.0) if arr < 2 else cs(idx * n / 1024.0)
                    w.append((h2(c, s_), h2(-s_, c), f4(c), f4(s_))[arr])
    for d2 in range(2):
        for arr in range(8):
            for l in range(64):
                n, g = l & 15, l >> 4
                kd = (n & 7) + 0.5 * d2
                for j in range(4):
                    if arr < 2:
                        c, s_ = cs((4 * (g & 1) + j) * kd / 8.0)
                        v = (h2(c, s_), h2(-s_, c))[arr] if (n >> 3) == (g >> 1) else 0
                    elif arr < 4:
                        c, s_ = cs(((4 * g + j) * n % 16) / 16.0)
                        v = (h2(c, s_), h2(-s_, c))[arr - 2]
                    elif arr < 6:
                        c, s_ = cs((4 * g + j) * kd / 128.0)
                        v = (f4(c), f4(s_))[arr - 4]
                    else:
                        v = 0
                    w.append(v)
    t = ".p2align 8\n.type tables,@object\ntables:\n"
    for i in range(0, len(w), 8):
        t += ".long " + ",".join("0x%x" % x for x in w[i:i+8]) + "\n"
    return t + f".size tables, {4*len(w)}\n"

def main(out):
    k = gen()
    t = HEADER + f"; @launch grid=(256,1,1) block=(512,1,1) lds={LDS}\n"
    t += '.amdgcn_target "amdgcn-amd-amdhsa--gfx950"\n.text\n' + k.text() + 'code_end:\n' + tables()
    t += '.section .rodata,"a"\n' + k.desc()
    open(out, "w").write(t)
if __name__ == "__main__":
    main(sys.argv[1] if len(sys.argv) > 1 else "adaLN_cond__spectral_fnet__moe_arch_mod__prompt.s")
```

```python
import math, sys
from asmgen import K, v, s, f32

WS_Z1   = 0x0100000
WS_ZF   = 0x0600000
WS_H2   = 0x0B00000
WS_MODP = 0x1000000
WS_CS   = 0x1040000
WS_SAS  = 0x1040800
WS_MAXP = 0x1041000
WS_PAR  = 0x1042000
WS_SENT = 0x1100000
WS_PART = WS_SENT
WS_XA   = WS_SENT + 0x80000
WS_XB   = WS_SENT + 0xC0000
WS_FLAG = WS_SENT + 0xF8000
WS_KEY  = WS_SENT + 0xFC000
WS_SIZE = 0x10000000

A_X, A_WR, A_WG, A_WU, A_WD, A_C, A_WM, A_OUT, A_DBG, A_WS = 0, 48, 56, 64, 72, 80, 88, 96, 104, 112

import os
STAMPS = int(os.environ.get("STAMPS", "0"))
WS_STAMP = 0x2000000
def _slot(i):
    if STAMPS == 1: return i if i < 7 else None
    if STAMPS == 2: return 0 if i == 0 else (i - 6 if 7 <= i < 13 else None)
    if STAMPS == 3: return 0 if i == 0 else (i - 12 if 13 <= i < 19 else None)
    if STAMPS == 4: return 0 if i == 0 else (i - 19 if 20 <= i < 26 else None)
    if STAMPS == 6: return 0 if i == 0 else (i - 39 if 40 <= i < 46 else None)
    if STAMPS == 5: return 0 if i == 0 else (i - 29 if 30 <= i < 36 else None)
    return None
def stamp(k, i):
    j = _slot(i)
    if j is not None: k(f"s_memrealtime s[{84+2*j}:{85+2*j}]")
def stamp_init(k):
    if STAMPS:
        for j in range(8): k(f"s_mov_b32 s{84+2*j}, 0")
def stamp_out(k, kid, n=7, srdb=12):
    if not STAMPS: return
    k("s_mov_b64 exec, -1")
    k("s_waitcnt vmcnt(0)")
    k("s_memrealtime s[98:99]")
    k("s_waitcnt lgkmcnt(0)")
    k(f"v_lshrrev_b32 v248, 6, v0")
    k(f"v_lshlrev_b32 v248, 5, v248")
    k(f"s_lshl_b32 s100, s2, 8")
    k(f"s_add_u32 s100, s100, {WS_STAMP + kid * 0x40000}")
    for i in range(8):
        k(f"v_mov_b32 v{240+i}, s{84+2*i}")
    k("s_mov_b64 exec, 1")
    k(f"buffer_store_dwordx4 v[240:243], v248, s[{srdb}:{srdb+3}], s100 offen")
    k(f"buffer_store_dwordx4 v[244:247], v248, s[{srdb}:{srdb+3}], s100 offen offset:16")
    DIAG = os.environ.get("DIAG", "")
    if DIAG:
        stamp_out.n = getattr(stamp_out, "n", 0) + 1
        role, slot = DIAG.split(":")
        if int(role) == stamp_out.n:
            j = int(slot)
            k(f"""s_sub_u32 s40, s{84+2*j}, s84
            s_cmp_eq_u32 s{84+2*j}, 0
            s_cselect_b32 s40, 0, s40
            s_lshl_b32 s40, s40, 3
            s_add_u32 s40, s40, 3000
            s_min_u32 s40, s40, 20000
            s_add_u32 s40, s40, s84
            diag_spin:
            s_memrealtime s[42:43]
            s_waitcnt lgkmcnt(0)
            s_sub_u32 s41, s42, s40
            s_cmp_lt_i32 s41, 0
            s_cbranch_scc1 diag_spin""")

K1ST = os.environ.get("K1ST", "")
K2ST = os.environ.get("K2ST", "")
K3ST = os.environ.get("K3ST", "")
K4ST = os.environ.get("K4ST", "")
NT1 = os.environ.get("NT1", "")
NT2 = os.environ.get("NT2", "")
class RA:
    def __init__(self, base): self.n = base
    def __call__(self, n=1, align=None):
        if align is None: align = 2 if n >= 2 else 1
        self.n = (self.n + align - 1) // align * align
        b = self.n; self.n += n
        return b

def srd(k, d, src, nbytes):
    k(f"""s_mov_b32 s{d}, s{src}
    s_mov_b32 s{d+1}, s{src+1}
    s_mov_b32 s{d+2}, {nbytes}
    s_mov_b32 s{d+3}, 0x00020000""")

def P(a): return f"v[{a}:{a+1}]"
def padd(k, d, a, b): k(f"v_pk_add_f32 {P(d)}, {P(a)}, {P(b)}")
def psub(k, d, a, b): k(f"v_pk_add_f32 {P(d)}, {P(a)}, {P(b)} neg_lo:[0,1] neg_hi:[0,1]")
def pmul(k, d, a, b): k(f"v_pk_mul_f32 {P(d)}, {P(a)}, {P(b)}")
def pfma(k, d, a, b, c, nega=False):
    k(f"v_pk_fma_f32 {P(d)}, {P(a)}, {P(b)}, {P(c)}" + (" neg_lo:[1,0,0] neg_hi:[1,0,0]" if nega else ""))
def spair(sr):
    return f"s[{sr & ~1}:{(sr & ~1) + 1}]", sr & 1
def pmul_s(k, d, a, sr):
    p, b = spair(sr)
    k(f"v_pk_mul_f32 {P(d)}, {P(a)}, {p} op_sel:[0,{b}] op_sel_hi:[1,{b}]")
def pfma_s(k, d, a, sr, c, nega=False):
    p, b = spair(sr)
    k(f"v_pk_fma_f32 {P(d)}, {P(a)}, {p}, {P(c)} op_sel:[0,{b},0] op_sel_hi:[1,{b},1]" + (" neg_lo:[1,0,0] neg_hi:[1,0,0]" if nega else ""))
def psub_s(k, d, a, sr):
    p, b = spair(sr)
    k(f"v_pk_add_f32 {P(d)}, {P(a)}, {p} op_sel:[0,{b}] op_sel_hi:[1,{b}] neg_lo:[0,1] neg_hi:[0,1]")
def unpack_bf16(k, d, src):
    k(f"v_lshlrev_b32 v{d}, 16, v{src}")
    k(f"v_and_b32 v{d+1}, 0xffff0000, v{src}")
def round_bf16(k, d, a):
    k(f"v_cvt_pk_bf16_f32 v{d}, v{a}, v{a}")
    k(f"v_lshlrev_b32 v{d}, 16, v{d}")
DPPM = "row_mask:0xf bank_mask:0xf"
def row_allreduce(k, regs, op="v_add_f32"):
    for sh in (8, 4, 2, 1):
        for r in regs:
            k(f"{op}_dpp v{r}, v{r}, v{r} row_ror:{sh} {DPPM}")
def wave_reduce_to63(k, regs, op="v_add_f32"):
    row_allreduce(k, regs, op)
    for r in regs:
        k(f"{op}_dpp v{r}, v{r}, v{r} row_bcast:15 row_mask:0xa bank_mask:0xf")
    for r in regs:
        k(f"{op}_dpp v{r}, v{r}, v{r} row_bcast:31 row_mask:0xc bank_mask:0xf")

def rho_map(k, dst, t1, t2):
    k(f"""s_and_b32 s{dst}, s2, 7
    s_lshr_b32 s{t1}, s2, 4
    s_xor_b32 s{t1}, s{t1}, 15
    s_lshl_b32 s{t1}, s{t1}, 3
    s_add_u32 s{dst}, s{dst}, s{t1}
    s_sub_u32 s{t1}, 256, s{dst}
    s_cmp_eq_u32 s{dst}, 0
    s_cselect_b32 s{t1}, 128, s{t1}
    s_bitcmp1_b32 s2, 3
    s_cselect_b32 s{dst}, s{t1}, s{dst}""")

def code_prefetch(k, vaddr, vdst, sp):
    k(f"""s_getpc_b64 s[{sp}:{sp+1}]
    cpf_base:
    v_lshlrev_b32 v{vaddr}, 7, v0
    v_min_u32 v{vaddr}, code_end-cpf_base-4, v{vaddr}
    global_load_dword v{vdst}, v{vaddr}, s[{sp}:{sp+1}]""")

def pos32(k, d, e, t):
    k(f"""v_lshrrev_b32 v{d}, 9, v{e}
    v_lshlrev_b32 v{d}, 11, v{d}
    v_bfe_u32 v{t}, v{e}, 2, 1
    v_lshl_add_u32 v{d}, v{t}, 10, v{d}
    v_bfe_u32 v{t}, v{e}, 3, 6
    v_lshl_add_u32 v{d}, v{t}, 4, v{d}
    v_and_b32 v{t}, 3, v{e}
    v_lshl_add_u32 v{d}, v{t}, 2, v{d}""")
def pos16(k, d, e, t):
    k(f"""v_bfe_u32 v{d}, v{e}, 7, 1
    v_lshlrev_b32 v{d}, 9, v{d}
    v_and_b32 v{t}, 31, v{e}
    v_lshl_add_u32 v{d}, v{t}, 4, v{d}
    v_bfe_u32 v{t}, v{e}, 8, 1
    v_lshl_add_u32 v{d}, v{t}, 3, v{d}
    v_lshrrev_b32 v{t}, 9, v{e}
    v_lshl_add_u32 v{d}, v{t}, 10, v{d}
    v_bfe_u32 v{t}, v{e}, 5, 2
    v_lshl_add_u32 v{d}, v{t}, 1, v{d}""")

def gen_k1():
    k = K("k1_kernel")
    stamp_init(k)
    k("""s_cmp_ge_u32 s2, 512
    s_cbranch_scc1 k1_done
    s_cmp_ge_u32 s2, 256
    s_cbranch_scc1 k1_gemv""")
    k.c("---------------- LN1 + radix-8 over rows r+256j ----------------")
    stamp(k, 0)
    k(f"""s_load_dwordx2 s[4:5], s[0:1], {A_X}
    s_load_dwordx2 s[6:7], s[0:1], {A_WS}
    s_load_dwordx2 s[28:29], s[0:1], {A_WR}""")
    code_prefetch(k, 1, 200, 20)
    rho_map(k, 3, 16, 17)
    k(f"""v_lshlrev_b32 v1, 2, v0
    v_and_b32 v2, 7, v0
    v_mul_u32_u24 v3, s3, v2
    v_cvt_f32_u32 v3, v3
    v_mul_f32 v3, {f32(1.0/2048)}, v3
    v_cos_f32 v4, v3
    v_sin_f32 v5, v3
    s_lshl_b32 s16, s3, 11
    s_waitcnt lgkmcnt(0)""")
    srd(k, 8, 4, 2048 * 1024 * 2)
    srd(k, 12, 6, WS_SIZE)
    stamp(k, 1)
    ra = RA(8)
    XR = ra(8); XI = ra(8)
    for j in range(8):
        k(f"buffer_load_dword v{XR+j}, v1, s[8:11], s16 offen {NT1}")
        k(f"buffer_load_dword v{XI+j}, v1, s[8:11], s16 offen offset:1024 {NT1}")
        if j < 7: k(f"s_add_u32 s16, s16, {256*2048}")
    k(f"""v_mov_b32 v192, -1
    v_mov_b32 v193, -1
    v_mov_b32 v194, -1
    v_mov_b32 v195, -1
    v_lshlrev_b32 v196, 4, v0
    s_lshl_b32 s22, s2, 12
    s_add_u32 s22, s22, {WS_SENT}
    buffer_store_dwordx4 v[192:195], v196, s[12:15], s22 offen sc1""")
    TW = 40
    for kk in range(1, 8):
        k(f"v_readlane_b32 s{TW+2*kk}, v4, {kk}")
        k(f"v_readlane_b32 s{TW+2*kk+1}, v5, {kk}")
    KAP = 38
    k(f"s_mov_b32 s{KAP}, {f32(math.sqrt(0.5))}")
    k("""v_lshrrev_b32 v6, 6, v0
    v_lshlrev_b32 v6, 2, v6
    v_bfe_u32 v7, v0, 4, 2
    v_lshl_add_u32 v6, v7, 5, v6
    v_lshlrev_b32 v2, 4, v2""")
    VO = ra()
    k(f"""v_lshlrev_b32 v{VO}, 20, v7
    v_lshrrev_b32 v3, 6, v0
    v_lshl_add_u32 v{VO}, v3, 17, v{VO}
    v_bfe_u32 v3, v0, 2, 2
    v_lshl_add_u32 v{VO}, v3, 15, v{VO}
    v_and_b32 v3, 3, v0
    v_lshl_add_u32 v{VO}, v3, 4, v{VO}
    s_lshl_b32 s24, s3, 6
    s_add_u32 s24, s24, {WS_Z1}
    s_add_u32 s25, s24, 16384
    s_add_u32 s26, s24, 524288
    s_add_u32 s27, s24, {524288+16384}""")
    RE = ra(16); IM = ra(16); SS = ra(8); T = ra(16)
    for j in range(8):
        k(f"s_waitcnt vmcnt({15-2*j})")
        unpack_bf16(k, RE + 2*j, XR + j)
        unpack_bf16(k, IM + 2*j, XI + j)
        padd(k, T + 2*j, RE + 2*j, IM + 2*j)
        k(f"v_add_f32 v{SS+j}, v{T+2*j}, v{T+2*j+1}")
    stamp(k, 2)
    def reduce8(ldsoff, dst4):
        for j in range(4): k(f"v_permlane32_swap_b32 v{SS+j}, v{SS+j+4}")
        for j in range(4): k(f"v_add_f32 v{SS+j}, v{SS+j}, v{SS+j+4}")
        for j in range(2): k(f"v_permlane16_swap_b32 v{SS+j}, v{SS+j+2}")
        for j in range(2): k(f"v_add_f32 v{SS+j}, v{SS+j}, v{SS+j+2}")
        row_allreduce(k, [SS, SS + 1])
        k(f"ds_write2_b32 v6, v{SS}, v{SS+1} offset0:{ldsoff//4} offset1:{ldsoff//4+4}")
        k("s_waitcnt lgkmcnt(0)\ns_barrier")
        k(f"ds_read_b128 v[{dst4}:{dst4+3}], v2 offset:{ldsoff}")
        k("s_waitcnt lgkmcnt(0)")
        padd(k, dst4, dst4, dst4 + 2)
        k(f"v_add_f32 v{dst4}, v{dst4}, v{dst4+1}")
        k(f"v_mul_f32 v{dst4}, {f32(1.0/1024)}, v{dst4}")
    R4 = ra(4, 4); MB = ra(); DM = ra()
    reduce8(0, R4)
    round_bf16(k, MB, R4)
    k(f"v_sub_f32 v{DM}, v{R4}, v{MB}")
    SM = 56
    for j in range(8): k(f"v_readlane_b32 s{SM+j}, v{MB}, {j}")
    for j in range(8):
        psub_s(k, RE + 2*j, RE + 2*j, SM + j)
        psub_s(k, IM + 2*j, IM + 2*j, SM + j)
    for j in range(8):
        pmul(k, T + 2*j, RE + 2*j, RE + 2*j)
    for j in range(8):
        pfma(k, T + 2*j, IM + 2*j, IM + 2*j, T + 2*j)
    for j in range(8):
        k(f"v_add_f32 v{SS+j}, v{T+2*j}, v{T+2*j+1}")
    reduce8(128, R4)
    k(f"v_fma_f32 v{R4}, -v{DM}, v{DM}, v{R4}")
    k(f"v_max_f32 v{R4}, 0, v{R4}")
    round_bf16(k, R4, R4)
    k(f"v_add_f32 v{R4}, {f32(1e-5)}, v{R4}")
    round_bf16(k, R4, R4)
    k(f"v_sqrt_f32 v{R4}, v{R4}")
    round_bf16(k, R4, R4)
    k(f"v_rcp_f32 v{R4}, v{R4}")
    k(f"v_mul_f32 v{R4}, {f32(1.0/32)}, v{R4}")
    SR = 64
    for j in range(8): k(f"v_readlane_b32 s{SR+j}, v{R4}, {j}")
    for j in range(4):
        for ci, A in enumerate((RE, IM)):
            t = T + 2 * (2*j + ci)
            pmul_s(k, t, A + 2*j, SR + j)
    for j in range(4):
        for ci, A in enumerate((RE, IM)):
            t = T + 2 * (2*j + ci)
            pfma_s(k, A + 2*j, A + 2*(j+4), SR + j + 4, t)
            pfma_s(k, A + 2*(j+4), A + 2*(j+4), SR + j + 4, t, nega=True)
    b = [(RE + 2*j, IM + 2*j) for j in range(4)]
    c = [(RE + 2*(j+4), IM + 2*(j+4)) for j in range(4)]
    def cv(): return (ra(2), ra(2))
    X = [cv() for _ in range(8)]
    p, q, ss_, w = cv(), cv(), cv(), cv()
    for i in range(2):
        padd(k, p[i], b[0][i], b[2][i]); psub(k, q[i], b[0][i], b[2][i])
        padd(k, ss_[i], b[1][i], b[3][i]); psub(k, w[i], b[1][i], b[3][i])
    for i in range(2):
        padd(k, X[0][i], p[i], ss_[i]); psub(k, X[4][i], p[i], ss_[i])
    padd(k, X[2][0], q[0], w[1]); psub(k, X[2][1], q[1], w[0])
    psub(k, X[6][0], q[0], w[1]); padd(k, X[6][1], q[1], w[0])
    p, q, ss_, w, u1, u3 = cv(), cv(), cv(), cv(), cv(), cv()
    padd(k, p[0], c[0][0], c[2][1]); psub(k, p[1], c[0][1], c[2][0])
    psub(k, q[0], c[0][0], c[2][1]); padd(k, q[1], c[0][1], c[2][0])
    padd(k, u1[0], c[1][0], c[1][1]); psub(k, u1[1], c[1][1], c[1][0])
    psub(k, u3[0], c[3][1], c[3][0]); padd(k, u3[1], c[3][0], c[3][1])
    padd(k, ss_[0], u1[0], u3[0]); psub(k, ss_[1], u1[1], u3[1])
    psub(k, w[0], u1[0], u3[0]); padd(k, w[1], u1[1], u3[1])
    for i in range(2):
        pfma_s(k, X[1][i], ss_[i], KAP, p[i]); pfma_s(k, X[5][i], ss_[i], KAP, p[i], nega=True)
    pfma_s(k, X[3][0], w[1], KAP, q[0]); pfma_s(k, X[3][1], w[0], KAP, q[1], nega=True)
    pfma_s(k, X[7][0], w[1], KAP, q[0], nega=True); pfma_s(k, X[7][1], w[0], KAP, q[1])
    Y = [X[0]] + [(RE + 2*j, IM + 2*j) for j in range(1, 8)]
    for kk in range(1, 8):
        pmul_s(k, Y[kk][0], X[kk][0], TW + 2*kk)
        pmul_s(k, Y[kk][1], X[kk][1], TW + 2*kk)
    for kk in range(1, 8):
        pfma_s(k, Y[kk][0], X[kk][1], TW + 2*kk + 1, Y[kk][0])
        pfma_s(k, Y[kk][1], X[kk][0], TW + 2*kk + 1, Y[kk][1], nega=True)
    OB = ra(16, 4)
    for kk in range(8):
        for cc in range(2):
            k(f"v_cvt_pk_f16_f32 v{OB + ((kk&1)*2+cc)*4 + (kk>>1)}, v{Y[kk][0]+cc}, v{Y[kk][1]+cc}")
    for g in range(4):
        G = OB + 4*g
        k(f"v_permlane32_swap_b32 v{G}, v{G+2}")
        k(f"v_permlane32_swap_b32 v{G+1}, v{G+3}")
    for g in range(4):
        G = OB + 4*g
        k(f"v_permlane16_swap_b32 v{G}, v{G+1}")
        k(f"v_permlane16_swap_b32 v{G+2}, v{G+3}")
    stamp(k, 3)
    for g in range(4):
        k(f"buffer_store_dwordx4 v[{OB+4*g}:{OB+4*g+3}], v{VO}, s[12:15], s{24+g} offen {K1ST}")
    k.c("WGs 0..3: w_r -> fp32, permuted")
    k("s_cmp_ge_u32 s2, 4\ns_cbranch_scc1 k1_lnd")
    srd(k, 32, 28, 2048)
    k(f"""s_lshl_b32 s22, s2, 8
    v_add_u32 v1, s22, v0
    v_lshlrev_b32 v2, 1, v1
    buffer_load_ushort v6, v2, s[32:35], 0 offen""")
    pos32(k, 5, 1, 4)
    k(f"""s_mov_b32 s22, {WS_PAR + 4*4096}
    s_waitcnt vmcnt(0)
    v_lshlrev_b32 v6, 16, v6
    buffer_store_dword v6, v5, s[12:15], s22 offen
    k1_lnd:""")
    stamp_out(k, 0)
    k("s_endpgm")
    k.c("---------------- mod GEMV partials ----------------")
    k("k1_gemv:")
    stamp(k, 0)
    k(f"""s_load_dwordx4 s[4:7], s[0:1], {A_C}
    s_load_dwordx2 s[20:21], s[0:1], {A_WS}
    s_sub_u32 s3, s2, 256
    s_lshr_b32 s16, s3, 5
    s_and_b32 s17, s3, 31""")
    k.c("s16 = ks (0..7), s17 = nchunk (0..31), tile [128 k][192 n]")
    k(f"""v_lshrrev_b32 v1, 6, v0
    v_bfe_u32 v2, v0, 5, 1
    v_lshl_add_u32 v3, v1, 5, v2
    v_mul_u32_u24 v4, 12288, v3
    v_and_b32 v5, 31, v0
    v_lshl_add_u32 v4, v5, 4, v4
    v_cmp_gt_u32 vcc, 24, v5
    v_mov_b32 v7, 0x7ff00000
    v_cndmask_b32 v4, v7, v4, vcc
    v_and_b32 v5, 15, v0
    v_lshl_add_u32 v5, v5, 1, v3
    v_lshlrev_b32 v5, 1, v5
    s_mul_i32 s18, s16, {128*12288}
    s_mul_i32 s19, s17, 384
    s_add_u32 s18, s18, s19
    s_lshl_b32 s19, s16, 8
    s_waitcnt lgkmcnt(0)""")
    srd(k, 8, 6, 1024 * 6144 * 2)
    srd(k, 12, 4, 2048)
    srd(k, 24, 20, WS_SIZE)
    stamp(k, 1)
    k("buffer_load_ushort v6, v5, s[12:15], s19 offen")
    W = 16
    for i in range(16):
        k(f"buffer_load_dwordx4 v[{W+4*i}:{W+4*i+3}], v4, s[8:11], s18 offen {NT1}")
        if i < 15: k("s_add_u32 s18, s18, 24576")
    ACC = 80; U = 88; SB = 8
    for i in range(8): k(f"v_mov_b32 v{ACC+i}, 0")
    k(f"""s_waitcnt vmcnt(16)
    v_lshlrev_b32 v6, 16, v6
    v_mul_f32 v7, {f32(-math.log2(math.e))}, v6
    v_exp_f32 v7, v7
    v_add_f32 v7, 1.0, v7
    v_rcp_f32 v7, v7
    v_mul_f32 v6, v6, v7""")
    round_bf16(k, 6, 6)
    stamp(k, 2)
    for i in range(16):
        sb = SB + 2 * (i & 1)
        k(f"v_mov_b32_dpp v{sb}, v6 row_newbcast:{i} {DPPM}")
        k(f"s_waitcnt vmcnt({15-i})")
        u = U + 8 * (i & 1)
        for j in range(4): unpack_bf16(k, u + 2*j, W + 4*i + j)
        for j in range(4):
            k(f"v_pk_fma_f32 {P(ACC+2*j)}, {P(u+2*j)}, {P(sb)}, {P(ACC+2*j)} op_sel_hi:[1,0,1]")
    for j in range(4): k(f"v_permlane32_swap_b32 v{ACC+j}, v{ACC+j+4}")
    for j in range(2): padd(k, ACC + 2*j, ACC + 2*j, ACC + 4 + 2*j)
    stamp(k, 3)
    k.c("lane<32: cols 8*cl+0..3 ; lane>=32: cols 8*cl+4..7")
    k(f"""v_and_b32 v5, 31, v0
    v_lshlrev_b32 v5, 5, v5
    v_lshl_add_u32 v5, v2, 4, v5
    v_lshl_add_u32 v5, v1, 10, v5
    ds_write_b128 v5, v[{ACC}:{ACC+3}]
    v_lshlrev_b32 v5, 2, v0
    s_mul_i32 s18, s16, 24576
    s_mul_i32 s19, s17, 768
    s_add_u32 s18, s18, s19
    s_add_u32 s18, s18, {WS_MODP}
    v_cmp_gt_u32 vcc, 192, v0
    v_mov_b32 v7, 0x7ff00000
    v_cndmask_b32 v7, v7, v5, vcc
    s_lshl_b32 s19, s16, 4
    s_add_u32 s19, s19, s17
    s_lshl_b32 s19, s19, 4
    s_add_u32 s19, s19, {WS_MAXP}
    s_cmp_lt_u32 s17, 11
    s_cselect_b32 s22, 0x7fffffff, 0
    v_lshlrev_b32 v1, 2, v1
    s_waitcnt lgkmcnt(0)
    s_barrier
    ds_read2st64_b32 v[8:9], v5 offset0:0 offset1:4
    ds_read2st64_b32 v[10:11], v5 offset0:8 offset1:12
    s_waitcnt lgkmcnt(0)
    v_pk_add_f32 v[8:9], v[8:9], v[10:11]
    v_add_f32 v8, v8, v9
    buffer_store_dword v8, v7, s[24:27], s18 offen
    s_cmp_ge_u32 s17, 16
    s_cbranch_scc1 k1_gdone
    v_and_b32 v9, s22, v8""")
    wave_reduce_to63(k, [9], "v_max_u32")
    k("""s_mov_b32 exec_lo, 0
    s_mov_b32 exec_hi, 0x80000000
    buffer_store_dword v9, v1, s[24:27], s19 offen
    k1_gdone:""")
    stamp_out(k, 0, 7, 24)
    k("""k1_done:
    s_endpgm""")
    return k

def top2(k, KB, s1, s2, tmp):
    m1, m2, c = tmp, tmp + 1, tmp + 2
    k(f"v_max_u32 v{m1}, v{KB}, v{KB+1}")
    k(f"v_min_u32 v{m2}, v{KB}, v{KB+1}")
    for i in range(2, 8):
        k(f"v_med3_u32 v{m2}, v{m1}, v{m2}, v{KB+i}")
        k(f"v_max_u32 v{m1}, v{m1}, v{KB+i}")
    k(f"v_mov_b32 v{c}, v{m1}")
    wave_reduce_to63(k, [c], "v_max_u32")
    k(f"v_readlane_b32 s{s1}, v{c}, 63")
    k(f"v_cmp_eq_u32 vcc, s{s1}, v{m1}")
    k(f"v_cndmask_b32 v{c}, v{m1}, v{m2}, vcc")
    wave_reduce_to63(k, [c], "v_max_u32")
    k(f"v_readlane_b32 s{s2}, v{c}, 63")


L_C = 0
L_P = 16384
L_Y = 36864
L_KEY = L_Y + 5 * 4608
L_W = 60416
KB_LDS = L_W + 65536
SL1 = int(os.environ.get("SL1", "6"))
SL2 = int(os.environ.get("SL2", "4"))
XFAST = int(os.environ.get("XFAST", "3"))
B2AT = int(os.environ.get("B2AT", "2"))
LDF = os.environ.get("LDF", "sc1")
SPIN = "0x40000"

def chk_sent(k, regs, tmp):
    regs = list(regs)
    k(f"v_max3_u32 v{tmp}, v{regs[0]}, v{regs[1]}, v{regs[2]}")
    regs = regs[3:]
    while len(regs) >= 2:
        k(f"v_max3_u32 v{tmp}, v{tmp}, v{regs[0]}, v{regs[1]}"); regs = regs[2:]
    if regs: k(f"v_max_u32 v{tmp}, v{tmp}, v{regs[0]}")
    k(f"v_cmp_eq_u32 vcc, -1, v{tmp}")

def poll_records(k, lab, base, soff, tmp):
    k(f"s_mov_b32 s83, 0\n{lab}:")
    for j in range(2):
        k(f"buffer_load_dwordx4 v[{base+4*j}:{base+4*j+3}], v3, s[12:15], s{soff} offen offset:{j*1024} sc1")
    k("s_waitcnt vmcnt(0)")
    chk_sent(k, range(base, base + 8), tmp)
    k(f"""s_cbranch_vccz {lab}x
    s_sleep {SL2}
    s_add_u32 s83, s83, 1
    s_cmp_lt_u32 s83, {SPIN}
    s_cbranch_scc1 {lab}
    {lab}x:""")

def gen_kb():
    k = K("kb_kernel")
    stamp_init(k)
    k(f"""s_cmp_ge_u32 s2, 256
    s_cbranch_scc1 kb_done""")
    stamp(k, 0)
    k(f"""s_load_dwordx2 s[4:5], s[0:1], {A_X}
    s_load_dwordx2 s[6:7], s[0:1], {A_WS}
    s_load_dwordx2 s[20:21], s[0:1], {A_OUT}
    s_load_dwordx4 s[48:51], s[0:1], {A_WG}
    s_load_dwordx2 s[56:57], s[0:1], {A_WD}
    s_load_dwordx2 s[58:59], s[0:1], {A_WR}
    v_lshrrev_b32 v1, 6, v0
    v_and_b32 v2, 63, v0
    v_readfirstlane_b32 s16, v1
    v_lshlrev_b32 v3, 4, v2""")
    XR, ZA, ZB, CS, SAR = 8, 16, 24, 32, 40
    ZAD, YW, YRA, YRB, YRC, FA, DMA = 48, 49, 50, 51, 52, 53, 54
    BRE, BIM, TC, TS, W, D1R, D1I = 56, 72, 88, 104, 120, 136, 152
    GA, SBv, C1, GBv, WR = 168, 184, 200, 216, 232
    k.c("phase-B load address (A waves) / finalize address (wave 4)")
    k(f"""v_and_b32 v5, 15, v0
    v_bfe_u32 v6, v0, 4, 2
    v_lshlrev_b32 v4, 12, v6
    v_lshl_add_u32 v4, v5, 6, v4
    v_lshl_add_u32 v4, v1, 4, v4
    s_and_b32 s40, s2, 7
    s_lshr_b32 s41, s2, 3
    s_lshl_b32 s42, s40, 19
    s_lshl_b32 s43, s41, 14
    s_add_u32 s42, s42, s43
    s_add_u32 s42, s42, {WS_Z1}
    v_lshrrev_b32 v7, 3, v2
    v_mul_u32_u24 v7, 24576, v7
    v_and_b32 v16, 7, v0
    v_lshl_add_u32 v7, v16, 4, v7
    s_lshl_b32 s43, s2, 7
    s_add_u32 s43, s43, {WS_MODP}
    s_mov_b32 s46, {WS_MAXP}""")
    rho_map(k, 3, 17, 18)
    k.c("s16 = wave ; s17 = row ; s44 = 1 if this wave runs an FFT ; s45 = y slot")
    k(f"""s_and_b32 s45, s16, 3
    s_lshl_b32 s17, s45, 8
    s_add_u32 s17, s17, s3
    s_sub_u32 s18, 2048, s17
    s_cmp_eq_u32 s17, 0
    s_cselect_b32 s18, 1024, s18
    s_cselect_b32 s44, 1, 0
    s_cselect_b32 s19, s16, s45
    s_mov_b32 s45, s19
    s_cmp_ge_u32 s16, 4
    s_cselect_b32 s17, s18, s17
    s_cselect_b32 s44, s44, 1
    s_lshl_b32 s19, s17, 11""")
    k.c("shared FFT constants: wave w computes i = 2w, 2w+1 ; idx = 8*(w>>1) + 2*(w&1) + 4h + {0,1}")
    c = 120
    k(f"""v_and_b32 v{c}, 31, v0
    v_cvt_f32_u32 v{c}, v{c}
    v_mul_f32 v{c}, {f32(1.0/1024)}, v{c}
    v_lshrrev_b32 v{c+1}, 7, v0
    v_lshlrev_b32 v{c+1}, 3, v{c+1}
    v_bfe_u32 v{c+2}, v0, 6, 1
    v_lshl_add_u32 v{c+1}, v{c+2}, 1, v{c+1}
    v_bfe_u32 v{c+2}, v0, 5, 1
    v_lshl_add_u32 v{c+1}, v{c+2}, 2, v{c+1}
    v_cvt_f32_u32 v{c+1}, v{c+1}
    v_mul_f32 v{c+4}, v{c}, v{c+1}
    v_add_f32 v{c+5}, v{c+4}, v{c}
    v_mul_f32 v{c+6}, {f32(32.0)}, v{c+4}
    v_mul_f32 v{c+7}, {f32(32.0)}, v{c+5}
    v_fract_f32 v{c+6}, v{c+6}
    v_fract_f32 v{c+7}, v{c+7}
    v_cos_f32 v{c+8}, v{c+4}
    v_cos_f32 v{c+9}, v{c+5}
    v_sin_f32 v{c+10}, v{c+4}
    v_sin_f32 v{c+11}, v{c+5}
    v_cos_f32 v{c+12}, v{c+6}
    v_cos_f32 v{c+13}, v{c+7}
    v_sin_f32 v{c+14}, v{c+6}
    v_sin_f32 v{c+15}, v{c+7}
    s_waitcnt lgkmcnt(0)""")
    srd(k, 12, 6, WS_SIZE)
    srd(k, 8, 4, 2048 * 1024 * 2)
    stamp(k, 1)
    L = 16
    k("s_cmp_ge_u32 s16, 4\ns_cbranch_scc1 kb_l1")
    for j in range(4):
        k(f"buffer_load_dwordx4 v[{L+4*j}:{L+4*j+3}], v4, s[12:15], s42 offen offset:{j*1024}")
    k(f"""s_branch kb_l2
    kb_l1:
    s_cmp_lg_u32 s16, 4
    s_cbranch_scc1 kb_l2
    s_cmp_ge_u32 s2, 192
    s_cbranch_scc1 kb_l2
    buffer_load_dwordx4 v[16:19], v7, s[12:15], s43 offen
    buffer_load_dwordx4 v[20:23], v3, s[12:15], s46 offen
    buffer_load_dwordx4 v[24:27], v3, s[12:15], s46 offen offset:1024
    kb_l2:""")
    for j in range(2):
        k(f"buffer_load_dwordx4 v[{XR+4*j}:{XR+4*j+3}], v3, s[8:11], s19 offen offset:{j*1024}")
    k(f"""v_lshrrev_b32 v{c+1}, 7, v0
    v_lshl_add_u32 v{c+1}, v{c+1}, 10, v3
    v_bfe_u32 v{c+2}, v0, 6, 1
    v_lshl_add_u32 v{c+1}, v{c+2}, 3, v{c+1}
    v_cvt_pk_f16_f32 v{c+4}, v{c+12}, v{c+14}
    v_cvt_pk_f16_f32 v{c+5}, v{c+13}, v{c+15}
    v_cvt_pk_f16_f32 v{c+6}, -v{c+14}, v{c+12}
    v_cvt_pk_f16_f32 v{c+7}, -v{c+15}, v{c+13}
    ds_write_b64 v{c+1}, v[{c+4}:{c+5}] offset:{L_C}
    ds_write_b64 v{c+1}, v[{c+6}:{c+7}] offset:{L_C+4096}
    ds_write_b64 v{c+1}, v[{c+8}:{c+9}] offset:{L_C+8192}
    ds_write_b64 v{c+1}, v[{c+10}:{c+11}] offset:{L_C+12288}""")
    srd(k, 24, 20, 2048 * 1024 * 2)
    srd(k, 36, 50, 1024 * 3584 * 2)
    srd(k, 52, 48, 1024 * 3584 * 2)
    srd(k, 60, 56, 1024 * 3584 * 2)
    k.c("MoE mapping: s64 = lg, s65 = kq, s66 = w&3 ; DMA source: row 8*(l>>5) + ((l>>3)&3), piece (l&7) ^ (2*((l>>4)&3))")
    k(f"""s_mul_i32 s64, s40, 28
    s_add_u32 s64, s64, s41
    s_and_b32 s65, s64, 3
    s_lshr_b32 s64, s64, 2
    s_and_b32 s66, s16, 3
    v_bfe_u32 v{DMA}, v0, 5, 1
    v_lshlrev_b32 v{DMA}, 3, v{DMA}
    v_bfe_u32 v248, v0, 3, 2
    v_add_u32 v{DMA}, v{DMA}, v248
    v_mul_u32_u24 v{DMA}, 7168, v{DMA}
    v_bfe_u32 v248, v0, 4, 2
    v_lshlrev_b32 v248, 1, v248
    v_xor_b32 v248, v248, v0
    v_and_b32 v248, 7, v248
    v_lshl_add_u32 v{DMA}, v248, 4, v{DMA}
    s_lshl_b32 s67, s65, 2
    s_add_u32 s67, s67, s66
    s_mul_i32 s67, s67, {64*7168}
    s_lshl_b32 s68, s64, 7
    s_add_u32 s67, s67, s68
    s_lshl_b32 s68, s66, 14
    s_add_u32 s68, s68, {L_W}
    s_waitcnt lgkmcnt(0)
    s_barrier""")
    def slab():
        for ks in range(2):
            for d in range(4):
                rows = 32 * ks + 16 * (d & 1) + 4 * (d >> 1)
                k(f"s_add_u32 s34, s67, {rows*7168}")
                k(f"s_add_u32 s35, s68, {ks*4096 + d*1024}")
                k(f"s_mov_b32 m0, s35")
                k(f"s_add_u32 s35, s35, 8192")
                k(f"buffer_load_dwordx4 v{DMA}, s[52:55], s34 offen lds")
                k(f"s_mov_b32 m0, s35")
                k(f"buffer_load_dwordx4 v{DMA}, s[36:39], s34 offen lds")
    k("s_cmp_ge_u32 s16, 4\ns_cbranch_scc1 kb_b1")
    k.c("================= phase B (A waves): 256-pt DFT over r =================")
    B2R, B2I, T2C, T2S, TMP = 32, 36, 40, 44, 120
    k(f"""v_cvt_f32_u32 v248, v5
    v_mul_f32 v248, {f32(1.0/256)}, v248
    v_cvt_f32_u32 v249, v6
    v_mul_f32 v249, 4.0, v249
    v_mul_f32 v249, v248, v249""")
    for j in range(4):
        if j == 0: k(f"v_mov_b32 v{TMP}, v249")
        else: k(f"v_fmamk_f32 v{TMP+j}, v248, {f32(float(j))}, v249")
    for j in range(4):
        k(f"v_cos_f32 v{T2C+j}, v{TMP+j}")
        k(f"v_sin_f32 v{T2S+j}, v{TMP+j}")
    for j in range(4):
        k(f"v_mul_f32 v{TMP+j}, {f32(16.0)}, v{TMP+j}")
        k(f"v_fract_f32 v{TMP+j}, v{TMP+j}")
    for j in range(4):
        k(f"v_cos_f32 v{TMP+4+j}, v{TMP+j}")
        k(f"v_sin_f32 v{TMP+8+j}, v{TMP+j}")
    for j in range(4):
        k(f"v_cvt_pk_f16_f32 v{B2R+j}, v{TMP+4+j}, v{TMP+8+j}")
        k(f"v_cvt_pk_f16_f32 v{B2I+j}, -v{TMP+8+j}, v{TMP+4+j}")
    k(f"""v_bfe_u32 v5, v0, 1, 2
    v_xor_b32 v5, v5, v1
    v_lshlrev_b32 v5, 4, v5
    v_lshl_add_u32 v5, v2, 6, v5
    v_lshlrev_b32 v6, 4, v0
    v_bfe_u32 v7, v0, 2, 4
    v_lshlrev_b32 v7, 18, v7
    v_lshl_add_u32 v7, v1, 16, v7
    v_bfe_u32 v4, v0, 3, 2
    v_xor_b32 v4, v4, v0
    v_and_b32 v4, 3, v4
    v_lshl_add_u32 v7, v4, 4, v7
    s_lshl_b32 s70, s40, 11
    s_lshl_b32 s71, s41, 6
    s_add_u32 s70, s70, s71
    s_add_u32 s70, s70, {WS_ZF}
    s_add_u32 s71, s70, 16384
    s_add_u32 s72, s70, 32768
    s_add_u32 s73, s70, 49152
    s_waitcnt vmcnt(2)""")
    stamp(k, 2)
    for j in range(4):
        for cc in range(j + 1, 4):
            k(f"v_swap_b32 v{L+4*j+cc}, v{L+4*cc+j}")
    D1 = 136
    for cc in range(4):
        k(f"v_mfma_f32_16x16x32_f16 v[{D1+8*cc}:{D1+8*cc+3}], v[{L+4*cc}:{L+4*cc+3}], v[{B2R}:{B2R+3}], 0")
        k(f"v_mfma_f32_16x16x32_f16 v[{D1+8*cc+4}:{D1+8*cc+7}], v[{L+4*cc}:{L+4*cc+3}], v[{B2I}:{B2I+3}], 0")
    V = 168; VT = 184; D2 = 200; O = L
    for cc in range(4):
        re, im = D1 + 8*cc, D1 + 8*cc + 4
        t = VT + 8 * (cc & 1)
        for h in range(2):
            pmul(k, t + 2*h, re + 2*h, T2C + 2*h)
            pmul(k, t + 4 + 2*h, im + 2*h, T2C + 2*h)
        for h in range(2):
            pfma(k, t + 2*h, im + 2*h, T2S + 2*h, t + 2*h)
            pfma(k, t + 4 + 2*h, re + 2*h, T2S + 2*h, t + 4 + 2*h, nega=True)
        for i in range(4):
            k(f"v_cvt_pk_f16_f32 v{V+4*cc+i}, v{t+i}, v{t+4+i}")
        k(f"v_mfma_f32_16x16x32_f16 v[{D2+8*cc}:{D2+8*cc+3}], v[{V+4*cc}:{V+4*cc+3}], v[{B2R}:{B2R+3}], 0")
        k(f"v_mfma_f32_16x16x32_f16 v[{D2+8*cc+4}:{D2+8*cc+7}], v[{V+4*cc}:{V+4*cc+3}], v[{B2I}:{B2I+3}], 0")
    for cc in range(4):
        for i in range(4):
            k(f"v_cvt_pk_f16_f32 v{O+4*i+cc}, v{D2+8*cc+i}, v{D2+8*cc+4+i}")
    for i in range(4):
        k(f"ds_write_b128 v5, v[{O+4*i}:{O+4*i+3}] offset:{L_P+i*4096}")
    k("s_waitcnt lgkmcnt(0)\ns_barrier")
    O2 = 168
    for i in range(4):
        k(f"ds_read_b128 v[{O2+4*i}:{O2+4*i+3}], v6 offset:{L_P+i*4096}")
    for i in range(4):
        k(f"s_waitcnt lgkmcnt({3-i})")
        k(f"buffer_store_dwordx4 v[{O2+4*i}:{O2+4*i+3}], v7, s[12:15], s{70+i} offen sc1")
    stamp(k, 3)
    k("s_branch kb_j1")
    k.c("================= B waves: weight stream (5..7) / mod finalize (4) =================")
    k(f"""kb_b1:
    s_cmp_eq_u32 s16, 4
    s_cbranch_scc1 kb_fin
    s_cmp_ge_u32 s2, 224
    s_cbranch_scc1 kb_b2""")
    slab()
    k(f"""s_branch kb_b2
    kb_fin:
    s_cmp_ge_u32 s2, 192
    s_cbranch_scc1 kb_b2
    s_lshr_b32 s70, s2, 5
    s_and_b32 s71, s2, 31
    s_lshl_b32 s71, s71, 5
    v_and_b32 v4, 7, v0
    v_lshlrev_b32 v4, 2, v4
    v_bfe_u32 v5, v0, 4, 2
    v_add3_u32 v4, v4, v5, s71""")
    k.c("s70 = vec, v4 = column")
    pos16(k, 5, 4, 7)
    pos32(k, 6, 4, 7)
    k(f"""s_cmp_eq_u32 s70, 1
    s_cselect_b32 s72, 1.0, 0
    s_cmp_eq_u32 s70, 4
    s_cselect_b32 s72, 1.0, s72
    s_waitcnt vmcnt(2)
    v_max3_u32 v20, v20, v21, v22
    v_max3_u32 v23, v23, v24, v25
    v_max3_u32 v20, v20, v26, v27
    v_max_u32 v20, v20, v23
    v_permlane32_swap_b32 v16, v18
    v_permlane32_swap_b32 v17, v19""")
    padd(k, 16, 16, 18)
    k("v_permlane16_swap_b32 v16, v17")
    k("v_add_f32 v16, v16, v17")
    k(f"v_add_f32_dpp v16, v16, v16 row_ror:8 {DPPM}")
    wave_reduce_to63(k, [20], "v_max_u32")
    round_bf16(k, 16, 16)
    k(f"""v_mul_f32 v20, {f32(8.25)}, v20
    v_add_f32 v16, s72, v16
    v_add_f32 v20, 1.0, v20
    v_frexp_exp_i32_f32 v20, v20
    v_readlane_b32 s73, v20, 63""")
    round_bf16(k, 16, 16)
    k.c("K = e+1 ; exponent: sa 7-K, ca -K, ga K+4, others 0")
    k(f"""s_sub_u32 s74, 6, s73
    s_sub_u32 s75, -1, s73
    s_add_u32 s76, s73, 5
    s_cmp_eq_u32 s70, 0
    s_cselect_b32 s74, s74, 0
    s_cmp_eq_u32 s70, 1
    s_cselect_b32 s74, s75, s74
    s_cmp_eq_u32 s70, 2
    s_cselect_b32 s74, s76, s74
    v_ldexp_f32 v16, v16, s74
    s_mov_b32 exec_lo, 0x00ff00ff
    s_mov_b32 exec_hi, 0x00ff00ff
    s_cmp_ge_u32 s70, 2
    s_cbranch_scc1 kb_fin32
    v_cvt_f16_f32 v16, v16
    s_xor_b32 s75, s70, 1
    s_lshl_b32 s75, s75, 11
    s_add_u32 s75, s75, {WS_CS}
    buffer_store_short v16, v5, s[12:15], s75 offen sc1
    s_branch kb_find
    kb_fin32:
    s_lshl_b32 s75, s70, 12
    s_add_u32 s75, s75, {WS_PAR - 2*4096}
    buffer_store_dword v16, v6, s[12:15], s75 offen sc1
    kb_find:
    s_mov_b64 exec, -1
    kb_b2:""")
    stamp(k, 3)
    k("s_barrier")
    k("kb_j1:")
    k.c("addresses for phase C")
    k(f"""s_mul_i32 s45, s45, 4608
    s_add_u32 s45, s45, {L_Y}
    s_sub_u32 s18, 2048, s17
    s_and_b32 s18, s18, 2047
    s_lshl_b32 s18, s18, 11
    s_add_u32 s28, s19, {WS_ZF}
    s_add_u32 s29, s18, {WS_ZF}
    s_mov_b32 s30, {WS_CS}
    s_lshl_b32 s77, s40, 11
    s_add_u32 s78, s77, {WS_KEY}
    s_add_u32 s77, s77, {WS_FLAG}
    s_lshl_b32 s79, s2, 3
    s_add_u32 s80, s79, {WS_KEY}
    s_add_u32 s79, s79, {WS_FLAG}
    v_lshlrev_b32 v{FA}, 11, v2
    v_and_b32 v248, 0x38, v0
    v_lshlrev_b32 v{ZAD}, 4, v248
    v_and_b32 v248, 1, v0
    v_lshl_add_u32 v{ZAD}, v248, 6, v{ZAD}
    v_bfe_u32 v248, v0, 1, 2
    v_lshl_add_u32 v{ZAD}, v248, 4, v{ZAD}
    v_and_b32 v248, 31, v0
    v_mul_u32_u24 v248, 144, v248
    v_bfe_u32 v249, v0, 5, 1
    v_lshl_add_u32 v248, v249, 4, v248
    v_add_u32 v{YW}, s45, v248
    v_sub_u32 v248, 63, v2
    s_cmp_eq_u32 s44, 1
    s_cselect_b64 vcc, -1, 0
    v_cndmask_b32 v248, v248, v2, vcc
    v_lshrrev_b32 v249, 2, v248
    v_mul_u32_u24 v249, 144, v249
    v_and_b32 v248, 3, v248
    v_lshl_add_u32 v248, v248, 5, v249
    v_add_u32 v{YRA}, s45, v248
    v_sub_u32 v248, 128, v2
    v_and_b32 v248, 127, v248
    v_lshrrev_b32 v249, 2, v248
    v_mul_u32_u24 v249, 144, v249
    v_and_b32 v248, 3, v248
    v_lshl_add_u32 v248, v248, 5, v249
    v_add_u32 v{YRB}, s45, v248
    v_sub_u32 v248, 64, v2
    v_lshrrev_b32 v249, 2, v248
    v_mul_u32_u24 v249, 144, v249
    v_and_b32 v248, 3, v248
    v_lshl_add_u32 v248, v248, 5, v249
    v_add_u32 v{YRC}, s45, v248
    v_mov_b32 v4, 1
    v_mov_b32 v5, 1
    s_cmp_eq_u32 s44, 0
    s_cbranch_scc1 kb_nc""")
    for a, base in enumerate((BRE, BIM, TC, TS)):
        for q in range(4):
            k(f"ds_read_b128 v[{base+4*q}:{base+4*q+3}], v3 offset:{L_C+a*4096+q*1024}")
    k(f"""kb_nc:
    s_cmp_gt_u32 s16, 4
    s_cbranch_scc1 kb_nw
    s_waitcnt vmcnt(0)
    kb_nw:""")
    stamp(k, 4)
    k(f"""s_barrier
    s_cmp_lg_u32 s16, 0
    s_cbranch_scc1 kb_np
    s_mov_b64 exec, 0xff
    buffer_store_dwordx2 v[4:5], v{FA}, s[12:15], s79 offen sc1
    s_mov_b64 exec, -1
    s_sleep {SL1}""")
    poll_records(k, "kb_pf", 16, 77, 6)
    k("kb_np:")
    k("s_barrier")
    stamp(k, 5)
    k.c("================= phase C: hidden-dim DFT + LN2 =================")
    k("""s_cmp_eq_u32 s44, 0
    s_cbranch_scc1 kb_noz""")
    for j in range(2):
        k(f"buffer_load_dwordx4 v[{ZA+4*j}:{ZA+4*j+3}], v{ZAD}, s[12:15], s28 offen offset:{j*1024} {LDF}")
        k(f"buffer_load_dwordx4 v[{ZB+4*j}:{ZB+4*j+3}], v{ZAD}, s[12:15], s29 offen offset:{j*1024} {LDF}")
    for j in range(2):
        k(f"buffer_load_dwordx4 v[{CS+4*j}:{CS+4*j+3}], v3, s[12:15], s30 offen offset:{j*1024} {LDF}")
    k("s_cmp_lg_u32 s17, 0\ns_cbranch_scc1 kb_noz")
    for j in range(2):
        k(f"buffer_load_dwordx4 v[{SAR+4*j}:{SAR+4*j+3}], v3, s[12:15], s30 offen offset:{2048+j*1024} {LDF}")
    k(f"""kb_noz:
    s_barrier
    s_cmp_lt_u32 s16, 4
    s_cbranch_scc1 kb_nodma
    s_lshl_b32 s31, s66, 10
    s_add_u32 s32, s31, {WS_PAR}
    s_add_u32 s31, s31, {L_P}""")
    for vec in range(5):
        k("s_mov_b32 m0, s31")
        k("s_add_u32 s31, s31, 4096")
        k(f"buffer_load_dwordx4 v3, s[12:15], s32 offen {LDF} lds")
        if vec < 4: k("s_add_u32 s32, s32, 4096")
    WD = BRE
    k(f"""kb_nodma:
    s_barrier
    s_cmp_lt_u32 s16, 4
    s_cbranch_scc1 kb_w0
    s_cmp_ge_u32 s2, 224
    s_cbranch_scc1 kb_w0
    v_lshlrev_b32 v4, 3, v2
    s_lshl_b32 s18, s64, 2
    s_add_u32 s18, s18, s66
    s_lshl_b32 s18, s18, 15
    s_lshl_b32 s31, s65, 9
    s_add_u32 s18, s18, s31
    s_cmp_lg_u32 s16, 4
    s_cbranch_scc1 kb_s2""")
    slab()
    k("s_waitcnt vmcnt(16)\nkb_s2:")
    k.c("w_down rows (lg*64 + w*16 + f), cols kq*256 + 4*lane")
    for f in range(16):
        off = (f & 1) * 2048
        k(f"buffer_load_dwordx2 v[{WD+2*f}:{WD+2*f+1}], v4, s[60:63], s18 offen offset:{off}")
        if f & 1 and f < 15: k("s_add_u32 s18, s18, 4096")
    k("""s_cmp_eq_u32 s16, 4
    s_cbranch_scc1 kb_nofft
    s_waitcnt vmcnt(16)
    s_branch kb_nofft
    kb_w0:
    s_waitcnt vmcnt(0)
    s_cmp_eq_u32 s44, 0
    s_cbranch_scc1 kb_nofft""")
    stamp(k, 6)
    preads = []
    for vec, base in enumerate((GA, SBv, C1, GBv, WR)):
        for q in range(4):
            preads.append(f"ds_read_b128 v[{base+4*q}:{base+4*q+3}], v3 offset:{L_P+vec*4096+q*1024}")
    for i in range(8):
        k(f"v_pk_add_f16 v{W+i}, v{ZA+i}, v{ZB+i} neg_hi:[0,1]")
    for i in range(8):
        k(f"v_pk_add_f16 v{W+8+i}, v{ZA+i}, v{ZB+i} op_sel:[1,1] op_sel_hi:[0,0] neg_hi:[1,0]")
    k(f"""s_waitcnt lgkmcnt(0)
    s_cmp_eq_u32 s17, 0
    s_cbranch_scc1 kb_sa""")
    def modul(j):
        for i in range(4*j, 4*j + 4):
            b = i & 1
            k(f"v_pk_mul_f16 v{W+i}, v{W+i}, v{CS+(i>>1)} op_sel:[0,{b}] op_sel_hi:[1,{b}]")
    def st1(j, part):
        D, B = (D1R, BRE) if part == 0 else (D1I, BIM)
        cc = "0" if j == 0 else f"v[{D}:{D+15}]"
        k(f"v_mfma_f32_32x32x16_f16 v[{D}:{D+15}], v[{W+4*j}:{W+4*j+3}], v[{B+4*j}:{B+4*j+3}], {cc}")
    modul(0); modul(1)
    st1(0, 0); modul(2); st1(0, 1); modul(3)
    k("kb_st1:")
    pr = list(preads)
    for j in range(1, 4):
        for part in range(2): st1(j, part)
    VR = ZA; VI = BIM; Y = CS
    for j in range(4):
        for i in range(2*j, 2*j + 2):
            pmul(k, VR + 2*i, D1R + 2*i, TC + 2*i)
            pmul(k, VI + 2*i, D1I + 2*i, TC + 2*i)
        for i in range(2*j, 2*j + 2):
            pfma(k, VR + 2*i, D1I + 2*i, TS + 2*i, VR + 2*i)
            pfma(k, VI + 2*i, D1R + 2*i, TS + 2*i, VI + 2*i, nega=True)
        for i in range(4*j, 4*j + 4):
            k(f"v_cvt_pk_f16_f32 v{W+i}, v{VR+i}, v{VI+i}")
        if j > 0:
            jj = j - 1
            cr = "0" if jj == 0 else f"v[{Y}:{Y+15}]"
            k(f"v_mfma_f32_32x32x16_f16 v[{Y}:{Y+15}], v[{W+4*jj}:{W+4*jj+3}], v[{BRE+4*jj}:{BRE+4*jj+3}], {cr}")
        if j == B2AT: k("s_barrier")
        if j >= B2AT and j < 3:
            for _ in range(20 // (4 - B2AT)): k(pr.pop(0))
    k(f"v_mfma_f32_32x32x16_f16 v[{Y}:{Y+15}], v[{W+12}:{W+15}], v[{BRE+12}:{BRE+15}], v[{Y}:{Y+15}]")
    for x in pr: k(x)
    XF = D1I; YN = D1R; YE = ZA; X2 = XF
    for q in range(4):
        k(f"ds_write_b128 v{YW}, v[{Y+4*q}:{Y+4*q+3}] offset:{q*32}")
    stamp(k, 7)
    k("s_waitcnt lgkmcnt(0)\ns_barrier")
    for q in range(4):
        k(f"ds_read_b128 v[{YN+4*q}:{YN+4*q+3}], v{YRA} offset:{(q>>1)*2304 + (q&1)*16}")
    for i in range(8): unpack_bf16(k, XF + 2*i, XR + i)
    k("s_waitcnt lgkmcnt(0)")
    for i in range(8): pfma(k, X2 + 2*i, GA + 2*i, YN + 2*i, XF + 2*i)
    k("s_branch kb_join")
    k.c("row 0: add the sa term (rare path)")
    k("kb_sa:")
    for j in range(4): modul(j)
    for i in range(8):
        k(f"v_and_b32 v{ZA+i}, 0xffff, v{SAR+i}")
        k(f"v_lshrrev_b32 v{ZB+i}, 16, v{SAR+i}")
    for i in range(8):
        k(f"v_pk_add_f16 v{W+2*i}, v{W+2*i}, v{ZA+i}")
        k(f"v_pk_add_f16 v{W+2*i+1}, v{W+2*i+1}, v{ZB+i}")
    st1(0, 0); st1(0, 1)
    k("s_branch kb_st1")
    k.c("mirror waves")
    k("kb_nofft:")
    stamp(k, 6)
    for i in range(8): unpack_bf16(k, XF + 2*i, XR + i)
    k("s_barrier")
    for x in preads: k(x)
    stamp(k, 7)
    k("s_barrier")
    for q in range(4):
        k(f"ds_read_b128 v[{YN+4*q}:{YN+4*q+3}], v{YRA} offset:{(q>>1)*2304 + (q&1)*16}")
    k(f"""ds_read_b32 v{YE}, v{YRB}
    ds_read_b32 v{YE+1}, v{YRC}
    s_waitcnt lgkmcnt(0)""")
    for hf in range(2):
        for j in range(8):
            src = YE + hf if j == 0 else YN + 8 * (1 - hf) + 8 - j
            k(f"v_fmac_f32 v{X2+8*hf+j}, v{GA+8*hf+j}, v{src}")
    k("kb_join:")
    T = W
    for i in range(4): padd(k, T + 2*i, X2 + 4*i, X2 + 4*i + 2)
    padd(k, T, T, T + 2); padd(k, T + 4, T + 4, T + 6); padd(k, T, T, T + 4)
    k(f"v_add_f32 v5, v{T}, v{T+1}")
    k(f"v_mul_f32 v5, {f32(1.0/1024)}, v5")
    wave_reduce_to63(k, [5])
    k("v_readlane_b32 s40, v5, 63")
    Dd = GA
    for i in range(8): psub_s(k, Dd + 2*i, X2 + 2*i, 40)
    for i in range(8): pmul(k, C1 + 2*i, Dd + 2*i, C1 + 2*i)
    A0, A1, A2, A3 = T, T + 2, T + 4, T + 6
    pmul(k, A0, Dd, Dd); pmul(k, A1, Dd + 2, Dd + 2); pmul(k, A2, C1, WR); pmul(k, A3, C1 + 2, WR + 2)
    for i in range(1, 4):
        pfma(k, A0, Dd + 4*i, Dd + 4*i, A0); pfma(k, A1, Dd + 4*i + 2, Dd + 4*i + 2, A1)
        pfma(k, A2, C1 + 4*i, WR + 4*i, A2); pfma(k, A3, C1 + 4*i + 2, WR + 4*i + 2, A3)
    padd(k, A0, A0, A1); padd(k, A2, A2, A3)
    k(f"v_add_f32 v5, v{A0}, v{A0+1}")
    k(f"v_add_f32 v6, v{A2}, v{A2+1}")
    wave_reduce_to63(k, [5, 6])
    k(f"v_mul_f32 v5, {f32(1.0/1024)}, v5")
    round_bf16(k, 5, 5)
    k(f"v_add_f32 v5, {f32(1e-5)}, v5")
    round_bf16(k, 5, 5)
    k("v_sqrt_f32 v5, v5")
    round_bf16(k, 5, 5)
    k("v_rcp_f32 v5, v5")
    k("v_mul_f32 v6, v6, v5")
    k("v_readlane_b32 s40, v5, 63")
    k("v_readlane_b32 s41, v6, 63")
    k(f"""s_ashr_i32 s42, s41, 31
    s_or_b32 s42, s42, 0x80000000
    s_xor_b32 s41, s41, s42
    s_min_u32 s41, s41, 0xfffff000
    s_and_b32 s41, s41, 0xfffff800
    s_or_b32 s41, s41, s17
    v_mov_b32 v5, s41
    v_lshlrev_b32 v6, 2, v1
    ds_write_b32 v6, v5 offset:{L_KEY}""")
    stamp(k, 8)
    H2 = C1; HP = CS
    for i in range(8): pfma_s(k, H2 + 2*i, C1 + 2*i, 40, SBv + 2*i)
    for i in range(8): k(f"v_cvt_pk_bf16_f32 v{HP+i}, v{H2+2*i}, v{H2+2*i+1}")
    k(f"""v_and_b32 v6, 7, v0
    v_lshlrev_b32 v6, 2, v6
    s_add_u32 s43, s19, {WS_H2}
    s_waitcnt lgkmcnt(0)
    s_barrier
    ds_read_b32 v7, v6 offset:{L_KEY}""")
    for i in range(8): pfma(k, X2 + 2*i, GBv + 2*i, H2 + 2*i, X2 + 2*i)
    k(f"""s_waitcnt lgkmcnt(0)
    v_cmp_lt_u32 vcc, s41, v7
    s_and_b32 s42, vcc_lo, 0xff
    s_bcnt1_i32_b32 s42, s42
    s_cmp_ge_u32 s42, 2
    s_cbranch_scc1 kb_nocand""")
    for j in range(2):
        k(f"buffer_store_dwordx4 v[{HP+4*j}:{HP+4*j+3}], v3, s[12:15], s43 offen offset:{j*1024} sc1")
    k(f"""s_lshl_b32 s42, s42, 2
    v_mov_b32 v6, s42
    ds_write_b32 v6, v5 offset:{L_KEY+32}
    kb_nocand:""")
    for i in range(8): k(f"v_cvt_pk_bf16_f32 v{XR+i}, v{X2+2*i}, v{X2+2*i+1}")
    for j in range(2):
        k(f"buffer_store_dwordx4 v[{XR+4*j}:{XR+4*j+3}], v3, s[24:27], s19 offen offset:{j*1024} sc1")
    stamp(k, 9)
    k.c("================= phase D: routed FFN =================")
    KB, TA, HA, BF, AC, PB = 16, 28, 32, 56, 120, 152
    k(f"""v_lshrrev_b32 v6, 2, v2
    v_lshlrev_b32 v6, 7, v6
    v_and_b32 v7, 3, v0
    v_lshl_add_u32 v6, v7, 3, v6
    v_add_u32 v6, s68, v6
    v_bfe_u32 v7, v0, 3, 2
    v_lshl_add_u32 v{TA}, v7, 5, v6""")
    for sub in range(1, 4):
        k(f"v_xor_b32 v{TA+sub}, {sub*32}, v{TA}")
    k(f"""v_bfe_u32 v7, v0, 4, 2
    v_lshlrev_b32 v156, 4, v7
    v_lshl_add_u32 v156, v1, 7, v156
    s_lshl_b32 s70, s65, 9
    s_add_u32 s70, s70, {WS_H2}
    v_and_b32 v6, 1, v0
    v_cmp_eq_u32 s[46:47], 1, v6
    v_cmp_eq_u32 s[72:73], 1, v7
    v_cmp_eq_u32 s[74:75], 2, v7
    v_cmp_eq_u32 s[48:49], 3, v7
    v_lshl_add_u32 v157, v1, 10, v3
    v_lshlrev_b32 v158, 10, v7
    v_and_b32 v6, 15, v0
    v_lshl_add_u32 v158, v6, 4, v158
    s_lshl_b32 s71, s64, 12
    s_lshl_b32 s76, s65, 8
    s_add_u32 s76, s76, s71
    s_add_u32 s76, s76, {WS_XA}
    s_add_u32 s77, s76, {WS_XB - WS_XA}
    s_lshl_b32 s81, s66, 10
    s_add_u32 s81, s81, s71
    s_add_u32 s81, s81, {WS_XA}
    s_add_u32 s82, s81, {WS_XB - WS_XA}
    v_mov_b32 v6, 0
    s_waitcnt vmcnt(0) lgkmcnt(0)""")
    stamp(k, 10)
    k(f"""s_barrier
    s_cmp_ge_u32 s16, 4
    s_cbranch_scc1 kb_dB
    s_cmp_lg_u32 s16, 0
    s_cbranch_scc1 kb_nk
    ds_read_b64 v[4:5], v6 offset:{L_KEY+32}
    s_waitcnt lgkmcnt(0)
    s_mov_b64 exec, 0xff
    buffer_store_dwordx2 v[4:5], v{FA}, s[12:15], s80 offen sc1
    s_mov_b64 exec, -1
    kb_nk:
    s_cmp_ge_u32 s2, 224
    s_cbranch_scc1 kb_red""")
    for mat in range(2):
        for ks in range(2):
            for sub in range(4):
                b = BF + ((mat*2 + ks)*4 + sub)*4
                off = mat*8192 + ks*4096
                k(f"ds_read_b64_tr_b16 v[{b}:{b+1}], v{TA+sub} offset:{off}")
                k(f"ds_read_b64_tr_b16 v[{b+2}:{b+3}], v{TA+sub} offset:{off+2048}")
    k(f"s_sleep {SL1}")
    poll_records(k, "kb_pk", KB, 78, 6)
    stamp(k, 11)
    top2(k, KB, 40, 41, 24)
    k(f"""s_and_b32 s40, s40, 0x7ff
    s_and_b32 s41, s41, 0x7ff
    s_lshl_b32 s40, s40, 11
    s_lshl_b32 s41, s41, 11
    v_add_u32 v7, s40, v156
    v_add_u32 v6, s41, v156
    v_cndmask_b32 v6, v7, v6, s[46:47]""")
    for ks in range(2):
        k(f"buffer_load_dwordx4 v[{HA+4*ks}:{HA+4*ks+3}], v6, s[12:15], s70 offen offset:{ks*64} sc1")
    k("s_waitcnt vmcnt(0) lgkmcnt(0)")
    stamp(k, 12)
    for ks in range(2):
        for mat in range(2):
            for sub in range(4):
                a = AC + (mat*4 + sub)*4
                b = BF + ((mat*2 + ks)*4 + sub)*4
                cc = "0" if ks == 0 else f"v[{a}:{a+3}]"
                k(f"v_mfma_f32_16x16x32_bf16 v[{a}:{a+3}], v[{HA+4*ks}:{HA+4*ks+3}], v[{b}:{b+3}], {cc}")
    for mat in range(2):
        for row in range(2):
            k(f"v_cndmask_b32 v{PB+2*mat+row}, v{AC+(mat*4)*4+row}, v{AC+(mat*4+1)*4+row}, s[72:73]")
    for sub, m in ((2, "s[74:75]"), (3, "s[48:49]")):
        for mat in range(2):
            for row in range(2):
                d = PB + 2*mat + row
                k(f"v_cndmask_b32 v{d}, v{d}, v{AC+(mat*4+sub)*4+row}, {m}")
    k(f"""ds_write_b128 v157, v[{PB}:{PB+3}] offset:{L_C}
    s_waitcnt lgkmcnt(0)
    s_barrier
    s_cmp_lg_u32 s16, 0
    s_cbranch_scc1 kb_fin_a""")
    for w in range(1, 4):
        k(f"ds_read_b128 v[{AC+4*w}:{AC+4*w+3}], v3 offset:{L_C+w*1024}")
    k("s_waitcnt lgkmcnt(0)")
    for h in range(2):
        padd(k, PB + 2*h, PB + 2*h, AC + 4 + 2*h); padd(k, AC + 8 + 2*h, AC + 8 + 2*h, AC + 12 + 2*h)
    for h in range(2): padd(k, PB + 2*h, PB + 2*h, AC + 8 + 2*h)
    for i in range(4): k(f"v_min_u32 v{PB+i}, -2, v{PB+i}")
    k(f"""buffer_store_dwordx4 v[{PB}:{PB+3}], v158, s[12:15], s76 offen
    buffer_store_dwordx4 v[{PB}:{PB+3}], v158, s[12:15], s77 offen sc1
    kb_fin_a:""")
    stamp(k, 13)
    stamp_out(k, 1)
    k("s_endpgm")
    k.c("----- B waves: activation + down projection -----")
    k(f"""kb_dB:
    s_cmp_ge_u32 s2, 224
    s_cbranch_scc1 kb_fin_a""")
    WF = 160
    for i in range(32): unpack_bf16(k, WF + 2*i, WD + i)
    k(f"""v_bfe_u32 v5, v0, 7, 1
    v_lshlrev_b32 v5, 18, v5
    v_bfe_u32 v7, v0, 3, 4
    v_lshl_add_u32 v5, v7, 12, v5
    v_and_b32 v7, 7, v0
    v_lshl_add_u32 v5, v7, 3, v5
    s_lshl_b32 s18, s65, 16
    s_lshl_b32 s19, s64, 6
    s_add_u32 s18, s18, s19
    s_add_u32 s18, s18, {WS_PART}
    v_and_b32 v6, 3, v1
    v_lshl_add_u32 v6, v6, 11, v3
    v_and_b32 v7, 255, v0
    v_lshlrev_b32 v7, 3, v7
    s_barrier
    s_sleep {int(os.environ.get("SL3", "2"))}
    s_mov_b32 s83, 0
    kb_px:""")
    R = 16
    for rep in range(XFAST + 1):
        so = 81 if rep < XFAST else 82
        k(f"buffer_load_dwordx4 v[{R}:{R+3}], v3, s[12:15], s{so} offen sc1")
        k("s_waitcnt vmcnt(0)")
        chk_sent(k, range(R, R + 4), 4)
        k("s_cbranch_vccz kb_pxx")
    k(f"""s_add_u32 s83, s83, 1
    s_cmp_lt_u32 s83, {SPIN}
    s_cbranch_scc1 kb_px
    kb_pxx:""")
    stamp(k, 13)
    k(f"v_permlane32_swap_b32 v{R}, v{R+2}")
    k(f"v_permlane32_swap_b32 v{R+1}, v{R+3}")
    padd(k, R, R, R + 2)
    k(f"v_permlane16_swap_b32 v{R}, v{R+1}")
    k(f"v_add_f32 v{R}, v{R}, v{R+1}")
    round_bf16(k, R, R)
    k(f"""v_mul_f32 v{R+1}, {f32(-math.log2(math.e))}, v{R}
    v_exp_f32 v{R+1}, v{R+1}
    v_mov_b32 v{R+2}, v{R}
    v_add_f32 v{R+1}, 1.0, v{R+1}
    v_rcp_f32 v{R+1}, v{R+1}
    v_mov_b32 v{R+3}, v{R}
    v_mul_f32 v{R+1}, v{R}, v{R+1}
    v_permlane32_swap_b32 v{R+2}, v{R+3}""")
    round_bf16(k, R + 1, R + 1)
    k(f"v_mul_f32 v{R+1}, v{R+1}, v{R+3}")
    round_bf16(k, R + 1, R + 1)
    SA = 24
    for f in range(16):
        k(f"v_readlane_b32 s{SA+2*f}, v{R+1}, {f}")
        k(f"v_readlane_b32 s{SA+2*f+1}, v{R+1}, {16+f}")
    Y = 24
    for f in range(16):
        for row in range(2):
            for h in range(2):
                if f == 0: pmul_s(k, Y + 4*row + 2*h, WF + 4*f + 2*h, SA + 2*f + row)
                else: pfma_s(k, Y + 4*row + 2*h, WF + 4*f + 2*h, SA + 2*f + row, Y + 4*row + 2*h)
    for row in range(2):
        k(f"ds_write_b128 v6, v[{Y+4*row}:{Y+4*row+3}] offset:{L_P+row*1024}")
    k("s_waitcnt lgkmcnt(0)\ns_barrier")
    for w in range(4):
        k(f"ds_read_b64 v[{32+2*w}:{33+2*w}], v7 offset:{L_P+w*2048}")
    k("s_waitcnt lgkmcnt(0)")
    padd(k, 32, 32, 34); padd(k, 36, 36, 38); padd(k, 32, 32, 36)
    k("""v_min_u32 v32, -2, v32
    v_min_u32 v33, -2, v33
    buffer_store_dwordx2 v[32:33], v5, s[12:15], s18 offen sc1""")
    stamp(k, 14)
    stamp_out(k, 1)
    k("s_endpgm")
    k.c("----- reducer waves: j = (wg-224)*4 + wave -> row j>>6, 16 columns -----")
    k("kb_red:")
    srd(k, 8, 58, 2048)
    k(f"""s_sub_u32 s17, s2, 224
    s_lshl_b32 s17, s17, 2
    s_add_u32 s17, s17, s16
    s_and_b32 s18, s17, 63
    v_and_b32 v5, 3, v0
    v_lshlrev_b32 v5, 3, v5
    v_and_b32 v6, 1, v0
    v_lshlrev_b32 v6, 10, v6
    v_bfe_u32 v7, v0, 1, 1
    v_lshl_add_u32 v6, v7, 4, v6
    s_lshr_b32 s19, s18, 5
    s_lshl_b32 s19, s19, 11
    s_and_b32 s31, s18, 31
    s_lshl_b32 s31, s31, 5
    s_add_u32 s19, s19, s31
    s_add_u32 s19, s19, {L_P + 3*4096}
    v_add_u32 v6, s19, v6
    ds_read_b128 v[80:83], v6""")
    for j in range(2):
        k(f"buffer_load_dwordx4 v[{40+4*j}:{43+4*j}], v3, s[8:11], 0 offen offset:{j*1024}")
    k(f"s_sleep {SL1}")
    poll_records(k, "kb_pr", KB, 78, 6)
    top2(k, KB, 40, 41, 24)
    k(f"""s_cmp_lt_u32 s17, 64
    s_cselect_b32 s40, s40, s41
    s_and_b32 s40, s40, 0x7ff
    s_lshl_b32 s41, s40, 11
    s_add_u32 s42, s41, {WS_H2}
    s_lshl_b32 s19, s18, 5
    s_add_u32 s41, s41, s19""")
    for j in range(2):
        k(f"buffer_load_dwordx4 v[{32+4*j}:{35+4*j}], v3, s[12:15], s42 offen offset:{j*1024} sc1")
    k("buffer_load_dwordx2 v[84:85], v5, s[24:27], s41 offen sc1")
    for i in range(8): unpack_bf16(k, 48 + 2*i, 40 + i)
    k(f"""s_lshl_b32 s44, s17, 12
    s_add_u32 s44, s44, {WS_PART}
    v_cmp_gt_u32 vcc, 32, v2
    v_mov_b32 v7, 0x7ff00000
    v_cndmask_b32 v7, v7, v3, vcc
    s_waitcnt vmcnt(1)""")
    for i in range(8): unpack_bf16(k, 64 + 2*i, 32 + i)
    pmul(k, 8, 48, 64)
    for i in range(1, 8): pfma(k, 8, 48 + 2*i, 64 + 2*i, 8)
    k("v_add_f32 v8, v8, v9")
    wave_reduce_to63(k, [8])
    round_bf16(k, 8, 8)
    k(f"""v_mul_f32 v8, {f32(-math.log2(math.e))}, v8
    v_exp_f32 v8, v8
    v_add_f32 v8, 1.0, v8
    v_rcp_f32 v8, v8""")
    round_bf16(k, 8, 8)
    k("v_readlane_b32 s46, v8, 63")
    k("s_waitcnt vmcnt(0) lgkmcnt(0)")
    unpack_bf16(k, 44, 84); unpack_bf16(k, 46, 85)
    for h in range(2): pmul_s(k, 80 + 2*h, 80 + 2*h, 46)
    stamp(k, 13)
    L = 16
    k(f"s_sleep {int(os.environ.get('SL4', '16'))}")
    k(f"s_mov_b32 s83, 0\nkb_p2:")
    for j in range(4):
        k(f"buffer_load_dwordx4 v[{L+4*j}:{L+4*j+3}], v{7 if j == 3 else 3}, s[12:15], s44 offen offset:{j*1024} sc1")
    k("s_waitcnt vmcnt(0)")
    chk_sent(k, range(L, L + 16), 12)
    k(f"""s_cbranch_vccz kb_p3
    s_add_u32 s83, s83, 1
    s_cmp_lt_u32 s83, {SPIN}
    s_cbranch_scc1 kb_p2
    kb_p3:""")
    stamp(k, 14)
    for h in range(2):
        padd(k, L + 2*h, L + 2*h, L + 4 + 2*h); padd(k, L + 8 + 2*h, L + 8 + 2*h, L + 12 + 2*h)
    for h in range(2): padd(k, L + 2*h, L + 2*h, L + 8 + 2*h)
    regs = [L, L + 1, L + 2, L + 3]
    for sh in (4, 8):
        for r in regs: k(f"v_add_f32_dpp v{r}, v{r}, v{r} row_ror:{sh} {DPPM}")
    for r in regs: k(f"v_mov_b32 v{r+4}, v{r}")
    for r in regs: k(f"v_permlane16_swap_b32 v{r}, v{r+4}")
    for r in regs: k(f"v_add_f32 v{r}, v{r}, v{r+4}")
    for r in regs: k(f"v_mov_b32 v{r+4}, v{r}")
    for r in regs: k(f"v_permlane32_swap_b32 v{r}, v{r+4}")
    for r in regs: k(f"v_add_f32 v{r}, v{r}, v{r+4}")
    for h in range(2): pfma(k, 44 + 2*h, L + 2*h, 80 + 2*h, 44 + 2*h)
    k(f"""v_cvt_pk_bf16_f32 v12, v44, v45
    v_cvt_pk_bf16_f32 v13, v46, v47
    s_mov_b64 exec, 15
    buffer_store_dwordx2 v[12:13], v5, s[24:27], s41 offen sc1""")
    stamp_out(k, 1)
    k("""kb_done:
    s_endpgm""")
    return k

HEADER = """; adaLN + FNet mixing + MoD block, gfx950.  Generated by gen/gen2.py (hand-written generator).
"""

def main(out):
    ks = [(gen_k1(), 512, 256, 4096), (gen_kb(), 256, 512, KB_LDS)]
    t = HEADER
    for k, g, b, lds in ks:
        t += f"; @launch kernel={k.name} grid=({g},1,1) block=({b},1,1) lds={lds}\n"
    t += '.amdgcn_target "amdgcn-amd-amdhsa--gfx950"\n.text\n'
    for k, *_ in ks: t += k.text()
    t += 'code_end:\n'
    t += '.section .rodata,"a"\n'
    for k, *_ in ks: t += k.desc()
    open(out, "w").write(t)

if __name__ == "__main__":
    main(sys.argv[1] if len(sys.argv) > 1 else "adaLN_cond__spectral_fnet__moe_arch_mod__prompt.s")
```

```python
import math, sys, os
from asmgen import K, f32
from gen2 import (srd, P, padd, psub, pmul, pfma, pmul_s, pfma_s, psub_s, unpack_bf16, round_bf16, DPPM,
                  row_allreduce, wave_reduce_to63, pos16, stamp, stamp_init, stamp_out, chk_sent,
                  A_X, A_WR, A_WG, A_WU, A_WD, A_C, A_WM, A_OUT, A_DBG, A_WS, WS_SIZE)
from gen4 import top2, E, SPIN, NAME

WS_Z    = 0x0100000
WS_STA  = 0x1000000
WS_STB  = 0x1008000
WS_GO   = 0x1010000
WS_FLX  = 0x1012000
WS_MX   = 0x1014000
WS_MP1  = 0x1020000
WS_MP2  = 0x1030000
WS_PAR  = 0x1300000
WS_SENT = 0x1100000
WS_PART = WS_SENT
WS_XA   = WS_SENT + 0x80000
WS_XB   = WS_SENT + 0xC0000
WS_KEY  = WS_SENT + 0xFC000
WS_SLOT = 0x1200000
P_CS, P_SAS, P_GA, P_GAM, P_Q, P_QM, P_C1, P_C1M, P_SB, P_SBM, P_GB, P_GBM, P_END = (
    0, 2048, 4096, 8192, 12288, 16384, 20480, 24576, 28672, 32768, 36864, 40960, 45056)
L_C = 0; L_P = 16384; L_X = L_P + P_END; L_U = L_X + 32768; L_R = L_U + 32768; L_KEY = L_R + 32768
LDS = 163840
XW = 64
assert L_KEY + 256 <= LDS
LOG2E = f32(-math.log2(math.e))
SL2 = E("SL2", 4)

class VM:
    def __init__(self, k): self.k = k; self.q = []
    def __call__(self, tag, text): self.k(text); self.q.append(tag)
    def wait(self, tag, extra=""):
        i = len(self.q) - 1 - self.q[::-1].index(tag)
        self.k(f"s_waitcnt vmcnt({len(self.q) - 1 - i}) {extra}")

def cmp_recs(k, base):
    k(f"v_cmp_ne_u64 vcc, s[32:33], v[{base}:{base+1}]")
def spin(k, lab, sl):
    k(f"""{f"s_sleep {sl}" if sl else ""}
    s_add_u32 s83, s83, 1
    s_cmp_lt_u32 s83, {SPIN}
    s_cbranch_scc1 {lab}""")
def poll_recs(k, lab, base, vaddr, soff, mask, sl=SL2):
    k(f"s_mov_b32 s83, 0\ns_mov_b64 exec, {mask}\n{lab}:")
    k(f"buffer_load_dwordx2 v[{base}:{base+1}], v{vaddr}, s[12:15], s{soff} offen sc1")
    k("s_waitcnt vmcnt(0)")
    cmp_recs(k, base)
    k(f"s_cbranch_vccz {lab}y")
    spin(k, lab, sl)
    k(f"{lab}y:\ns_mov_b64 exec, -1\n{lab}x:")
def poll_keys(k, lab, base, soff, tmp, sl=SL2):
    k(f"s_mov_b32 s83, 0\n{lab}:")
    k(f"buffer_load_dwordx4 v[{base}:{base+3}], v3, s[12:15], s{soff} offen sc1")
    k("s_waitcnt vmcnt(0)")
    chk_sent(k, range(base, base + 4), tmp)
    k(f"s_cbranch_vccz {lab}x")
    spin(k, lab, sl)
    k(f"{lab}x:")
def go_wait(k, lab, soff, vz, vd):
    poll_recs(k, lab, vd, vz, soff, "1", sl=E("SLG", 3))
    if E("SLG2", 1): k(f"s_sleep {E('SLG2', 1)}")
def nonce_issue(k, sp, off):
    k(f"s_load_dwordx2 s[32:33], s[{sp}:{sp+1}], {off}")
def nonce_finish(k, lab, sp, off, vt):
    k(f"""s_waitcnt lgkmcnt(0)
    s_cmp_lg_u32 s32, 0
    s_cbranch_scc1 {lab}x
    s_load_dwordx2 s[32:33], s[{sp}:{sp+1}], {off}
    s_mov_b32 s83, 0
    v_mov_b32 v{vt+2}, 0
    s_waitcnt lgkmcnt(0)
    {lab}:
    s_cmp_lg_u32 s32, 0
    s_cbranch_scc1 {lab}x
    global_load_dwordx2 v[{vt}:{vt+1}], v{vt+2}, s[{sp}:{sp+1}] sc1
    s_waitcnt vmcnt(0)
    v_readfirstlane_b32 s32, v{vt}
    v_readfirstlane_b32 s33, v{vt+1}""")
    spin(k, lab, 0)
    k(f"{lab}x:")
def rb2(k, v, t):
    k(f"v_cvt_pk_bf16_f32 v{t}, v{v}, v{v+1}")
    unpack_bf16(k, v, t)
def row_of(k, d, q, w, t1):
    k(f"""s_lshr_b32 s{t1}, s{q}, 4
    s_and_b32 s{d}, s{q}, 15
    s_lshl_b32 s{d}, s{d}, 4
    s_add_u32 s{d}, s{d}, s{t1}
    s_lshr_b32 s{t1}, s{q}, 3
    s_cmp_eq_u32 s{t1}, 1
    s_cselect_b32 s{t1}, 120, 0
    s_sub_u32 s{d}, s{d}, s{t1}
    s_lshl_b32 s{t1}, s{w}, 8
    s_add_u32 s{d}, s{d}, s{t1}
    s_cmp_ge_u32 s{w}, 4
    s_cselect_b32 s{t1}, 896, 0
    s_cmp_eq_u32 s{q}, 0
    s_cselect_b32 s{t1}, s{t1}, 0
    s_sub_u32 s{d}, s{d}, s{t1}""")
def mirror_row(k, d, t):
    k(f"""s_sub_u32 s{d}, 2048, s{t}
    s_cmp_eq_u32 s{t}, 0
    s_cselect_b32 s{d}, 1024, s{d}""")

def stats(k, vm, pre, lastpre, extra=()):
    S = 108; R = 112
    k(f"s_mov_b32 s4, 0x3f803f80\ns_mov_b32 s5, {f32(1.0/1024)}")
    for h in range(2):
        for jj in range(2):
            vm.wait(f"x{h}{jj}")
            if h == 0 and jj == 0: nonce_issue(k, 20, 0)
            if 2*h + jj < len(extra): extra[2*h + jj]()
            for q in range(4):
                r = XW + 8*jj + 4*h + q
                first = (h == 0 and q == 0)
                k(f"v_dot2_f32_bf16 v{S+jj}, v{r}, s4, {'0' if first else f'v{S+jj}'}")
                k(f"v_dot2_f32_bf16 v{S+2+jj}, v{r}, v{r}, {'0' if first else f'v{S+2+jj}'}")
    k("s_nop 1")
    def red1(js):
        for j in js: k(f"v_permlane32_swap_b32 v{S+j}, v{S+j+1}")
        for j in js: k(f"v_add_f32 v{S+j}, v{S+j}, v{S+j+1}")
        regs = [S + j for j in js]
        row_allreduce(k, regs)
        for r in regs: k(f"v_add_f32_dpp v{r}, v{r}, v{r} row_bcast:15 row_mask:0xa bank_mask:0xf")
    red1((0, 2))
    k.c("lanes 31 / 63 hold the two rows")
    V = S + 2
    k(f"""v_mul_f32 v{S}, s5, v{S}
    v_mul_f32 v{V}, s5, v{V}
    v_mul_f32 v{R+4}, v{S}, v{S}
    v_cvt_pk_bf16_f32 v{R+5}, -v{S}, -v{S}
    v_sub_f32 v{V}, v{V}, v{R+4}
    v_mul_f32 v{R+6}, {f32(512.0)}, v{V}
    v_cmp_gt_f32 vcc, v{R+4}, v{R+6}
    v_readlane_b32 s40, v{R+5}, 31
    s_or_b32 s41, vcc_lo, vcc_hi
    s_bitcmp1_b32 s41, 31
    s_cbranch_scc1 {pre}_slowvar
    {pre}_var:""")
    round_bf16(k, V, V)
    k(f"v_add_f32 v{V}, {f32(1e-5)}, v{V}")
    round_bf16(k, V, V)
    k(f"v_sqrt_f32 v{V}, v{V}")
    k(f"s_and_b32 s40, s40, 0xffff\nv_mov_b32 v{R+2}, 0xffff0000")
    round_bf16(k, V, V)
    k(f"""v_mul_f32 v{V}, {f32(16.0)}, v{V}
    v_and_or_b32 v{R+2}, v{R+5}, v{R+2}, s40
    v_rcp_f32 v{R+1}, v{V}""")
    nonce_finish(k, f"{pre}_nn", 20, 64, 120)
    k(f"""v_mov_b32 v{R+3}, s32
    v_mov_b32_dpp v{R}, v{R+1} row_bcast:31 row_mask:0xc bank_mask:0xf
    v_mov_b32 v{R+4}, 0""")
    if lastpre: vm.wait(lastpre)
    k("s_mov_b32 exec_lo, 0\ns_mov_b32 exec_hi, 0x80000000")
    stamp(k, 20)
    k(f"buffer_store_dwordx4 v[{R}:{R+3}], v{R+4}, s[12:15], s62 offen")
    if E("STAMPS", 0) == 4:
        k("s_waitcnt vmcnt(0)"); stamp(k, 21)
    k("s_mov_b64 exec, -1")
    def slow():
        k.c("---- rare: |mean| >> std, recompute the variance in two passes ----")
        k(f"{pre}_slowvar:")
        U2 = 120
        k(f"v_lshlrev_b32 v{R+6}, 16, v{R+5}")
        k(f"v_readlane_b32 s44, v{R+6}, 31\nv_readlane_b32 s46, v{R+6}, 63")
        for jj in range(2):
            sr = 44 + 2 * jj
            for i in range(8):
                unpack_bf16(k, U2, XW + jj * 8 + i)
                k(f"v_pk_add_f32 {P(U2)}, {P(U2)}, s[{sr}:{sr+1}] op_sel_hi:[1,0]")
                if i == 0: pmul(k, U2 + 2, U2, U2)
                else: pfma(k, U2 + 2, U2, U2, U2 + 2)
            k(f"v_add_f32 v{S+2+jj}, v{U2+2}, v{U2+3}")
        k(f"v_add_f32 v{R+6}, v{R+6}, v{S}")
        red1((2,))
        k(f"""v_mul_f32 v{S+2}, s5, v{S+2}
        v_fma_f32 v{S+2}, -v{R+6}, v{R+6}, v{S+2}
        v_max_f32 v{S+2}, 0, v{S+2}
        s_branch {pre}_var""")
    return slow

def stats_b(k, lab):
    k(f"""s_mov_b32 exec_lo, 0
    s_mov_b32 exec_hi, 0x80000000
    buffer_store_dwordx4 v[112:115], v116, s[12:15], s63 offen sc1
    s_mov_b64 exec, -1
    {lab}:""")

def head(k):
    k(f"""s_load_dwordx2 s[4:5], s[0:1], {A_X}
    s_load_dwordx4 s[24:27], s[0:1], {A_OUT}
    s_load_dwordx2 s[6:7], s[0:1], {A_WS}
    s_load_dwordx4 s[56:59], s[0:1], {A_C}
    s_load_dwordx4 s[48:51], s[0:1], {A_WR}
    s_load_dwordx4 s[52:55], s[0:1], {A_WU}
    s_memrealtime s[32:33]
    v_lshrrev_b32 v1, 6, v0
    v_and_b32 v2, 63, v0
    v_readfirstlane_b32 s16, v1
    v_lshlrev_b32 v3, 4, v2
    v_mov_b32 v4, 0
    s_getpc_b64 s[36:37]
    h_pc:
    s_and_b32 s34, s2, 7
    s_bfe_u32 s35, s2, 0x40003
    s_cmp_lg_u32 s16, 7
    s_cbranch_scc1 h_npf
    s_lshr_b32 s42, s2, 3
    s_lshl_b32 s42, s42, 11
    v_lshl_add_u32 v4, v2, 7, s42
    v_min_u32 v4, all_end-h_pc-4, v4
    s_mov_b64 exec, 0xffff
    global_load_dword v246, v4, s[36:37]
    s_mov_b64 exec, -1
    h_npf:
    s_mov_b32 s11, 0x00020000
    s_mov_b32 s14, {WS_SIZE}
    s_mov_b32 s15, 0x00020000
    s_bitcmp0_b32 s2, 7
    s_cbranch_scc1 g_start""")
HQ = ["x00", "x01", "x10", "x11", "touch"]

def role_F(k):
    vm = VM(k); vm.q = list(HQ)
    N16, G4, VO, TR, UW, XD, XDM, SLA, SLM, V70, FA, BP, KW, KR, A3 = 4, 5, 6, 8, 12, 13, 14, 15, 16, 17, 18, 19, 20, 21, 22
    ZL, W, D1R, D1I, BRE, BIM, TC, TS, XA2, XB2, GA, GAM, Q, QM, CS = 24, 40, 56, 72, 88, 104, 120, 136, 152, 168, 184, 200, 216, 232, 248
    AB, S, XB, AH, D0, D, UO, A2, UB = 216, 24, 40, 224, 228, 56, 184, 236, 200
    T = 248; TG = 8; FK = 240; PFD = 6; FLW = E("FLW", 4); XR = E("XR", 1)
    k(f"""s_lshl_b32 s60, s16, 19
    s_lshl_b32 s61, s35, 14
    s_add_u32 s60, s60, s61
    s_lshl_b32 s61, s34, 11
    s_add_u32 s60, s60, s61
    s_add_u32 s61, s60, 262144
    s_lshl_b32 s62, s34, 11
    s_lshl_b32 s63, s35, 7
    s_add_u32 s62, s62, s63
    s_lshl_b32 s63, s16, 4
    s_add_u32 s62, s62, s63
    s_add_u32 s62, s62, {WS_STA}
    s_add_u32 s63, s62, {WS_STB - WS_STA}
    v_mov_b32 v116, 0
    s_mov_b32 s10, {2048*1024*2}
    s_waitcnt lgkmcnt(0)
    s_mov_b32 s8, s4
    s_mov_b32 s9, s5
    s_mov_b32 s12, s6
    s_mov_b32 s13, s7""")
    stamp(k, 1)
    for h in range(2):
        for jj in range(2):
            k(f"buffer_load_dwordx4 v[{XW+8*jj+4*h}:{XW+8*jj+4*h+3}], v3, s[8:11], s{60+jj} offen offset:{h*1024}")
    k(f"""s_mov_b64 exec, 1
    buffer_load_dword v247, v116, s[12:15], s62 offen sc1
    s_mov_b64 exec, -1
    s_branch f_start
    @@G@@
    f_start:
    s_mov_b32 s20, s26
    s_mov_b32 s21, s27
    s_mov_b32 s26, 4194304
    s_mov_b32 s27, 0x00020000
    s_mov_b32 s22, s50
    s_mov_b32 s23, s51
    s_mov_b32 s28, s54
    s_mov_b32 s29, s55
    s_add_u32 s58, s36, tables-h_pc
    s_addc_u32 s59, s37, 0""")
    k.c("s36 = k0 slot of this wave in the second radix-16 step ; s37 = column-block pair read after the exchange")
    k(f"""s_lshr_b32 s36, s35, 1
    s_and_b32 s36, s36, 4
    s_xor_b32 s36, s36, s16
    s_and_b32 s37, s34, 4
    s_xor_b32 s37, s37, s16""")
    k(f"""s_lshl_b32 s3, s34, 4
    s_add_u32 s3, s3, s35
    v_and_b32 v{N16}, 15, v0
    v_bfe_u32 v{G4}, v0, 4, 2
    v_lshrrev_b32 v{T}, 3, v2
    v_lshlrev_b32 v{T}, 18, v{T}
    v_lshlrev_b32 v{T+1}, 1, v{G4}
    v_xor_b32 v{T+1}, v{T+1}, v0
    v_and_b32 v{T+1}, 7, v{T+1}
    v_lshl_add_u32 v{T+7}, v{T+1}, 4, v{T}
    v_lshlrev_b32 v{VO}, 16, v{G4}
    v_lshl_add_u32 v{VO}, v{N16}, 4, v{VO}
    s_lshl_b32 s60, s16, 15
    s_lshl_b32 s61, s34, 11
    s_add_u32 s60, s60, s61
    s_lshl_b32 s61, s35, 7
    s_add_u32 s60, s60, s61
    s_lshl_b32 s61, s16, 12
    s_add_u32 s61, s61, {L_X}
    s_lshl_b32 s64, s36, 19
    s_lshl_b32 s65, s35, 3
    s_and_b32 s66, s34, 1
    s_lshl_b32 s66, s66, 2
    s_add_u32 s65, s65, s66
    s_lshr_b32 s66, s34, 1
    s_add_u32 s65, s65, s66
    s_lshl_b32 s65, s65, 8
    s_add_u32 s64, s64, s65
    s_add_u32 s64, s64, {WS_Z}
    s_add_u32 s65, s64, 32768
    s_add_u32 s66, s64, {8*32768}
    s_add_u32 s67, s64, {9*32768}
""")
    def tile(i):
        k(f"s_mov_b32 m0, s61\ns_add_u32 s42, s60, {(i&1)*8*262144 + (i>>1)*16384}\ns_add_u32 s61, s61, 1024")
        vm("tile", f"buffer_load_dwordx4 v{T+7}, s[8:11], s42 offen lds")
    def tabs():
        k(f"""s_cmp_eq_u32 s36, 0
        s_cselect_b32 s42, 2048, 0
        s_add_u32 s42, s42, 16384
        v_add_u32 v{T}, s42, v3""")
        vm("tab", f"global_load_dwordx4 v[{A2}:{A2+3}], v{T}, s[58:59]")
        vm("tab", f"global_load_dwordx4 v[{A2+4}:{A2+7}], v{T}, s[58:59] offset:1024")
    def tabs2():
        k(f"s_lshl_b32 s42, s16, 11\ns_mov_b32 m0, s42\nv_add_u32 v{T}, s42, v3")
        vm("tab", f"global_load_lds_dwordx4 v{T}, s[58:59]")
        vm("tab", f"global_load_lds_dwordx4 v{T}, s[58:59] offset:1024")
    TL = E("TL", 2)
    k("s_barrier")
    tabs()
    if TL == 0:
        for i in range(4): tile(i)
    PFS = {n: os.environ.get(n, d).split(",") for n, d in (("PF0", "-,-,-,-,-,-,T,S"), ("PFA", "-"), ("PFB", "-"), ("PFC", "-"))}
    PFR = {"PF0": 64, "PFA": 66, "PFB": 52, "PFC": 20}
    PFV = {"PF0": 246, "PFA": 245, "PFB": 4, "PFC": 5}
    def pf_setup(site):
        plan = PFS[site]
        if plan == ["-"]: return
        b, t, lab = PFR[site], PFV[site], "f_" + site
        k(f"s_mov_b32 s44, s58\ns_mov_b32 s45, s59\nv_mov_b32 v247, 0\ns_mov_b32 s42, 0")
        for w, p in enumerate(plan):
            if p == "-": continue
            ptr = {"S": 52, "U": 52, "T": 22, "G": 22, "D": 28}[p[0]]
            k(f"""s_cmp_lg_u32 s16, {w}
            s_cbranch_scc1 {lab}{w}
            s_mul_i32 s43, s34, 7""")
            if p[0] in "ST":
                k(f"""s_lshr_b32 s41, s{ptr}, 7
                s_sub_u32 s41, 3, s41
                s_add_u32 s41, s41, s34
                s_and_b32 s41, s41, 7
                s_cmp_eq_u32 s41, 7
                s_cbranch_scc1 {lab}{w}
                s_add_u32 s42, s41, s43
                s_lshl_b32 s42, s42, 7
                s_mul_i32 s43, s35, {64*7168}
                v_mul_u32_u24 v247, 7168, v2""")
            else:
                k(f"""s_cmp_ge_u32 s35, 14
                s_cbranch_scc1 {lab}{w}
                s_lshr_b32 s42, s35, 1
                s_add_u32 s42, s42, s43
                s_and_b32 s43, s35, 1""")
                if p[0] == "D":
                    k(f"""s_lshl_b32 s42, s42, 17
                    s_lshl_b32 s43, s43, 10
                    s_add_u32 s43, s43, {int(p[1])*8*2048}
                    v_lshrrev_b32 v247, 3, v2
                    v_lshlrev_b32 v247, 4, v247
                    v_and_or_b32 v247, v0, 7, v247
                    v_lshlrev_b32 v247, 7, v247""")
                else:
                    k(f"""s_lshl_b32 s42, s42, 7
                    s_mul_i32 s43, s43, {512*7168}
                    s_add_u32 s43, s43, {int(p[1])*64*7168}
                    v_mul_u32_u24 v247, 7168, v2""")
            k(f"""s_add_u32 s42, s42, s43
            s_mov_b32 s44, s{ptr}
            s_mov_b32 s45, s{ptr+1}
            {lab}{w}:""")
        k(f"v_add_u32 v{t}, s42, v247\ns_mov_b32 s{b}, s44\ns_mov_b32 s{b+1}, s45")
    def pf(site):
        if PFS[site] == ["-"]: return 0
        vm("pf", f"global_load_dword v{PFD}, v{PFV[site]}, s[{PFR[site]}:{PFR[site]+1}]")
        return 1
    def rowaddr():
        row_of(k, 30, 3, 16, 42)
        mirror_row(k, 31, 30)
        k(f"""s_lshl_b32 s18, s30, 11
        s_lshl_b32 s19, s31, 11
        s_sub_u32 s75, s19, 2048
        s_lshl_b32 s68, s16, 12
        s_add_u32 s68, s68, {L_R}""")
    def xrows():
        k("s_mov_b32 m0, s68")
        for n in range(2):
            for u in range(2):
                vm("xr", f"buffer_load_dwordx4 v3, s[8:11], s{(18, 75)[n]} offen offset:{n*2048+u*1024} lds")
    if XR == 3:
        rowaddr(); xrows()
    k.c("first-step matrix: lane m = 2*k0+p, rows j1 = 4g+i, angle k0*(16*j1+j0)/256")
    k(f"""v_lshrrev_b32 v{T}, 1, v{N16}
    v_and_b32 v{T+1}, 1, v0
    v_cmp_eq_u32 vcc, 1, v{N16}
    v_cndmask_b32_e64 v{T+2}, v{T}, 0, vcc
    v_cndmask_b32_e64 v{T}, v{T}, 8, vcc
    v_cndmask_b32_e64 v{T+1}, v{T+1}, 0, vcc
    v_mad_u32_u24 v{T+3}, v{T}, v{G4}, v{T+1}
    v_lshlrev_b32 v{T+3}, 5, v{T+3}
    v_mad_u32_u24 v{T+3}, v{T+2}, v1, v{T+3}
    v_cvt_f32_u32 v{T}, v{T}
    v_cvt_f32_u32 v{T+2}, v{T+2}
    v_cvt_f32_u32 v{T+3}, v{T+3}
    v_mul_f32 v{T}, {f32(1.0/16)}, v{T}
    v_mul_f32 v{T+2}, {f32(1.0/256)}, v{T+2}
    v_mul_f32 v{AB}, {f32(1.0/128)}, v{T+3}""")
    for i in range(1, 4): k(f"v_add_f32 v{AB+i}, v{AB+i-1}, v{T}")
    for i in range(4): k(f"v_add_f32 v{AB+4+i}, v{AB+i}, v{T+2}")
    for i in range(8): k(f"v_cos_f32 v{AB+i}, v{AB+i}")
    UWA, URA = T + 4, T + 5
    k(f"""v_lshrrev_b32 v{T}, 2, v2
    v_lshlrev_b32 v{TR}, 7, v{T}
    v_bfe_u32 v{T}, v0, 3, 2
    v_lshl_add_u32 v{TR}, v{T}, 5, v{TR}
    v_and_b32 v{T}, 3, v0
    v_lshl_add_u32 v{TR}, v{T}, 3, v{TR}
    v_lshl_add_u32 v{TR}, v1, 12, v{TR}
    v_xor_b32 v{TR+1}, 32, v{TR}
    v_xor_b32 v{TR+2}, 64, v{TR}
    v_xor_b32 v{TR+3}, 96, v{TR}
    v_lshlrev_b32 v{UW}, 13, v{G4}
    v_lshl_add_u32 v{UW}, v{N16}, 4, v{UW}
    v_lshlrev_b32 v7, 5, v{G4}
    v_and_b32 v{T}, 1, v0
    v_lshl_add_u32 v7, v{T}, 4, v7
    v_and_b32 v{T}, 2, v0
    v_lshl_add_u32 v7, v{T}, 6, v7
    s_lshl_b32 s70, s34, 11
    s_lshl_b32 s71, s16, 8
    s_add_u32 s71, s71, s70
    s_add_u32 s71, s71, {WS_STA}
    s_lshr_b32 s42, s16, 1
    s_lshl_b32 s42, s42, 8
    s_and_b32 s43, s16, 1
    s_lshl_b32 s43, s43, 3
    s_add_u32 s42, s42, s43
    s_add_u32 s42, s42, {L_U}
    v_add_u32 v{UWA}, s42, v{UW}
    s_lshl_b32 s42, s36, 12
    s_add_u32 s42, s42, {L_U}
    v_add_u32 v{URA}, s42, v3""")
    slow1 = stats(k, vm, "f", None, [(lambda i=i: tile(i)) for i in range(4)] if TL == 1 else ())
    vm.q.append("sta")
    if TL == 3: k("s_barrier")
    if TL >= 2:
        for i in range(4): tile(i)
    k.c("the lines of the die-local tables are read once so that the later plain stores find them in L2")
    k(f"""s_lshl_b32 s77, s34, 17
    s_add_u32 s77, s77, {WS_PAR}
    s_lshl_b32 s42, s35, 3
    s_add_u32 s42, s42, s16
    s_mul_i32 s42, s42, 384
    s_add_u32 s73, s42, s77
    v_lshlrev_b32 v{V70}, 7, v2""")
    if XR != 3: rowaddr()
    vm.wait("tile")
    stamp(k, 2)
    for jj in range(2):
        for nt in range(4):
            b = XB + (jj*4 + nt)*2
            k(f"ds_read_b64_tr_b16 v[{b}:{b+1}], v{TR+nt} offset:{L_X + jj*2048}")
    k("s_waitcnt lgkmcnt(0)")
    k.c("tag bits: 16 bits of the nonce per 16-byte piece, all 64 bits over four neighbouring lanes")
    k(f"""v_mov_b32 v{TG}, s32
    v_mov_b32 v{TG+1}, s33
    v_and_b32 v{T}, 2, v0
    v_cmp_eq_u32 vcc, 2, v{T}
    v_and_b32 v{T}, 1, v0
    v_lshlrev_b32 v{T}, 3, v{T}
    v_cndmask_b32 v{TG}, v{TG}, v{TG+1}, vcc
    v_lshrrev_b32 v{TG}, v{T}, v{TG}
    s_mov_b32 s54, 0x00030003
    s_mov_b32 s55, 0xfffcfffc""")
    for i in range(1, 4): k(f"v_lshrrev_b32 v{TG+i}, {2*i}, v{TG}")
    for i in range(4): k(f"v_and_b32 v{TG+i}, s54, v{TG+i}")
    k.c("---- LN1 statistics of this wave's 32 rows (same-die copy first, write-through copy every 4th try) ----")
    stamp(k, 22)
    if E("STAMPS", 0) == 4:
        k(f"""s_mov_b32 exec_lo, 0x000f000f
        s_mov_b32 exec_hi, 0x000f000f
        buffer_load_dwordx4 v[{S}:{S+3}], v7, s[12:15], s71 offen sc1
        s_waitcnt vmcnt(0)""")
        stamp(k, 23)
        k(f"""buffer_load_dwordx4 v[{S}:{S+3}], v7, s[12:15], s71 offen sc1
        s_waitcnt vmcnt(0)""")
        stamp(k, 24)
    k(f"""s_mov_b32 s83, 0
    s_mov_b32 s42, s71
    f_st:
    s_mov_b32 exec_lo, 0x000f000f
    s_mov_b32 exec_hi, 0x000f000f
    buffer_load_dwordx4 v[{S}:{S+3}], v7, s[12:15], s42 offen sc1
    s_waitcnt vmcnt(0)
    v_cmp_ne_u32 vcc, s32, v{S+3}
    s_mov_b64 exec, -1
    s_cbranch_vccz f_stx
    s_and_b32 s42, s83, {E("STB", 15)}
    s_cmp_eq_u32 s42, {E("STB", 15)}
    s_cselect_b32 s42, {WS_STB - WS_STA}, 0
    s_add_u32 s42, s42, s71
    s_cmp_lg_u32 s83, 7
    s_cbranch_scc1 f_sb1""")
    stats_b(k, "f_sb1")
    spin(k, "f_st", E("SLS", 1))
    k("f_stx:\ns_setprio 3")
    vm.q = []
    stamp(k, 3); stamp(k, 25)
    BM = S + 4
    for jj in range(2):
        for i in range(4):
            k(f"v_mul_f32_dpp v{AB+4*jj+i}, v{S+(i&1)}, v{AB+4*jj+i} row_newbcast:{2*jj+(i>>1)} {DPPM}")
        for hh in range(2): k(f"v_mov_b32_dpp v{BM+2*jj+hh}, v{S+2} row_newbcast:{2*jj+hh} {DPPM}")
        for hh in range(2): k(f"v_cvt_pk_bf16_f32 v{AH+2*jj+hh}, v{AB+4*jj+2*hh}, v{AB+4*jj+2*hh+1}")
        k(f"v_mfma_f32_16x16x16_bf16 v[{D0+4*jj}:{D0+4*jj+3}], v[{AH+2*jj}:{AH+2*jj+1}], v[{BM+2*jj}:{BM+2*jj+1}], 0")
    for nt in range(4):
        for jj in range(2):
            d = D + (nt*2 + jj)*4; b = XB + (jj*4 + nt)*2
            k(f"v_mfma_f32_16x16x16_bf16 v[{d}:{d+3}], v[{AH+2*jj}:{AH+2*jj+1}], v[{b}:{b+1}], v[{D0+4*jj}:{D0+4*jj+3}]")
    stats_b(k, "f_sb2")
    for nt in range(4):
        for ii in range(2):
            for jj in range(2):
                d = D + (nt*2 + jj)*4
                k(f"v_cvt_pk_f16_f32 v{UO+(nt*2+ii)*2+jj}, v{d+2*ii}, v{d+2*ii+1}")
            u = UO + (nt*2 + ii)*2
            k(f"ds_write_b64 v{UWA}, v[{u}:{u+1}] offset:{ii*4096 + nt*1024}")
    k("s_waitcnt lgkmcnt(0)\ns_barrier")
    for nt in range(4):
        k(f"ds_read_b128 v[{UB+4*nt}:{UB+4*nt+3}], v{URA} offset:{nt*1024}")
    for mt in range(2):
        for nt in range(4):
            if mt == 0: k(f"s_waitcnt lgkmcnt({3-nt})")
            d = D + (mt*4 + nt)*4
            k(f"v_mfma_f32_16x16x32_f16 v[{d}:{d+3}], v[{A2+4*mt}:{A2+4*mt+3}], v[{UB+4*nt}:{UB+4*nt+3}], 0")
    for mt in range(2):
        for ii in range(2):
            o = UO + (mt*2 + ii)*4
            for nt in range(4):
                d = D + (mt*4 + nt)*4
                k(f"v_cvt_pk_f16_f32 v{o+nt}, v{d+2*ii}, v{d+2*ii+1}")
            for nt in range(4): k(f"v_and_or_b32 v{o+nt}, v{o+nt}, s55, v{TG+nt}")
            vm("z", f"buffer_store_dwordx4 v[{o}:{o+3}], v{VO}, s[12:15], s{64+mt*2+ii} offen sc1")
    stamp(k, 4)
    XRA, XRB = 200, 208
    k("s_setprio 0")
    pf_setup("PF0")
    k(f"s_waitcnt vmcnt({E('XRW', 3)})")
    k(f"s_mov_b64 exec, 7\nbuffer_load_dword v{PFD}, v{V70}, s[12:15], s73 offen sc1\ns_mov_b64 exec, -1")
    tabs2()
    k(f"""s_lshl_b32 s76, s34, 10
    s_add_u32 s76, s76, {WS_FLX}
    s_getreg_b32 s79, hwreg(HW_REG_XCC_ID)
    s_and_b32 s79, s79, 7
    s_or_b32 s79, s79, s33
    s_mov_b32 s78, s32
    s_lshl_b32 s72, s3, 15
    s_lshl_b32 s73, s37, 12
    s_add_u32 s72, s72, s73
    s_add_u32 s72, s72, {WS_Z}""")
    if XR == 1: xrows()
    n0 = pf("PF0")
    k(f"s_waitcnt vmcnt({(7 if XR == 1 else 3) + n0 + E('ZW', 0)})")
    stamp(k, 5)
    if E("ZDEL", 0): k(f"s_sleep {E('ZDEL', 0)}")
    for i in range(4):
        vm("zl", f"buffer_load_dwordx4 v[{ZL+4*i}:{ZL+4*i+3}], v3, s[12:15], s72 offen offset:{i*1024} sc1")
    k.c("radix-8 matrix: lane m = 2*kk+p, inputs r = 2g, 2g+1, angle r*t/2048")
    k("s_mov_b32 s43, 0")
    row_of(k, 40, 3, 43, 42)
    k(f"""v_lshrrev_b32 v{T}, 1, v{N16}
    v_and_b32 v{T+1}, 1, v0
    v_lshlrev_b32 v{T+2}, 8, v{T}
    v_add_u32 v{T+2}, s40, v{T+2}
    s_cmp_lg_u32 s3, 0
    s_cbranch_scc1 f_a3n
    v_cmp_lt_u32 s[44:45], 3, v{T}
    v_subrev_u32 v{T+3}, 896, v{T+2}
    v_cndmask_b32 v{T+2}, v{T+2}, v{T+3}, s[44:45]
    v_cmp_eq_u32 vcc, 1, v{N16}
    v_mov_b32 v{T+3}, 1024
    v_cndmask_b32 v{T+2}, v{T+2}, v{T+3}, vcc
    v_cndmask_b32_e64 v{T+1}, v{T+1}, 0, vcc
    f_a3n:
    v_lshlrev_b32 v{T+3}, 1, v{G4}
    v_mul_u32_u24 v{T+3}, v{T+3}, v{T+2}
    v_lshl_add_u32 v{T+3}, v{T+1}, 9, v{T+3}
    v_add_u32 v{T+5}, v{T+3}, v{T+2}
    v_add_u32 v{T+4}, 1536, v{T+3}
    v_add_u32 v{T+6}, 1536, v{T+5}""")
    for i in range(3, 7): k(f"v_and_b32 v{T+i}, 2047, v{T+i}")
    for i in range(3, 7): k(f"v_cvt_f32_u32 v{T+i}, v{T+i}")
    for i in range(3, 7): k(f"v_mul_f32 v{T+i}, {f32(1.0/2048)}, v{T+i}")
    for i in range(3, 7): k(f"v_cos_f32 v{T+i}, v{T+i}")
    k(f"""s_cbranch_scc1 f_a3m
    v_cmp_gt_u32 vcc, 2, v{N16}
    v_cndmask_b32_e64 v{T+1}, 1.0, 0.5, vcc
    v_mul_f32 v{T+3}, v{T+3}, v{T+1}
    v_mul_f32 v{T+5}, v{T+5}, v{T+1}
    v_cndmask_b32 v{T+4}, 0, v{T+3}, s[44:45]
    v_cndmask_b32 v{T+6}, 0, v{T+5}, s[44:45]
    v_cndmask_b32 v{T+3}, v{T+3}, 0, s[44:45]
    v_cndmask_b32 v{T+5}, v{T+5}, 0, s[44:45]
    f_a3m:
    v_cvt_pk_f16_f32 v{A3}, v{T+3}, v{T+4}
    v_cvt_pk_f16_f32 v{A3+1}, v{T+5}, v{T+6}""")
    k(f"""v_and_b32 v{T}, 3, v0
    v_bfe_u32 v{T+1}, v0, 2, 1
    v_bfe_u32 v{T+2}, v0, 3, 2
    v_bfe_u32 v{T+3}, v0, 5, 1
    v_lshlrev_b32 v{XD}, 10, v{T+1}
    v_lshl_add_u32 v{SLA}, v{T+3}, 8, v{XD}
    v_lshl_add_u32 v{SLA}, v{T+2}, 6, v{SLA}
    v_lshl_add_u32 v{SLA}, v{T}, 4, v{SLA}
    v_lshl_add_u32 v{XD}, v{T+2}, 8, v{XD}
    v_lshl_add_u32 v{XD}, v{T}, 6, v{XD}
    v_lshl_add_u32 v{XD}, v{T+3}, 5, v{XD}
    v_xor_b32 v{XDM}, 2016, v{XD}
    v_add_u32 v{XD}, s68, v{XD}
    v_add_u32 v{XDM}, s68, v{XDM}""")
    def xr_read():
        for n in range(2):
            for u in range(2):
                k(f"ds_read_b128 v[{XRA+8*n+4*u}:{XRA+8*n+4*u+3}], v{(XD, XDM)[n]} offset:{n*2048+u*16}")
    def xr_unpack():
        for i in range(8): unpack_bf16(k, XA2 + 2*i, XRA + i)
        for p in range(16):
            src = XRB + (p >> 1); dst = XB2 + ((16 - p) & 15)
            k(f"v_and_b32 v{dst}, 0xffff0000, v{src}" if p & 1 else f"v_lshlrev_b32 v{dst}, 16, v{src}")
    if XR == 1: vm.wait("xr")
    if XR != 2: xr_read()
    k(f"""v_xor_b32 v{SLM}, 1520, v{SLA}
    v_subrev_u32 v{T}, s68, v{XD}
    v_add_u32 v{T}, 32, v{T}
    v_bfe_u32 v{BP}, v{T}, 5, 1
    v_lshlrev_b32 v{BP}, 5, v{BP}
    v_bfe_u32 v{T+1}, v{T}, 8, 2
    v_lshl_add_u32 v{BP}, v{T+1}, 3, v{BP}
    v_bfe_u32 v{T+1}, v{T}, 10, 1
    v_lshl_add_u32 v{BP}, v{T+1}, 2, v{BP}
    v_bfe_u32 v{T+1}, v{T}, 6, 2
    v_add_lshl_u32 v{BP}, v{T+1}, v{BP}, 2
    v_lshlrev_b32 v{FA}, 11, v2
    v_lshrrev_b32 v{T}, 5, v0
    v_lshlrev_b32 v{KW}, 2, v{T}
    v_add_u32 v{KW}, {L_KEY}, v{KW}
    v_lshlrev_b32 v{KR}, 2, v{N16}
    v_add_u32 v{KR}, {L_KEY}, v{KR}
    s_add_u32 s74, s70, {WS_KEY}
    s_lshl_b32 s80, s3, 3
    s_add_u32 s80, s80, {WS_KEY}
    s_lshl_b32 s42, s37, 9
    s_add_u32 s42, s42, {L_X}
    v_add_u32 v{UW}, s42, v{UW}""")
    k("s_waitcnt lgkmcnt(0)")
    if XR != 2: xr_unpack()
    for n_ in ("PFA", "PFC", "PFB"): pf_setup(n_)
    vm.wait("tab")
    k("s_barrier")
    for a_, base in enumerate((BRE, BIM, TC, TS)):
        for q in range(4):
            k(f"ds_read_b128 v[{base+4*q}:{base+4*q+3}], v3 offset:{L_C+a_*4096+q*1024}")
    if XR == 2: xrows()
    k(f"""s_lshl_b32 s42, s3, 13
    s_lshl_b32 s43, s16, 10
    s_add_u32 s42, s42, s43
    s_add_u32 s42, s42, {WS_SLOT}""")
    for i in range(4): k(f"v_mov_b32 v{W+i}, -1")
    vm("slot", f"buffer_store_dwordx4 v[{W}:{W+3}], v3, s[12:15], s42 offen sc1")
    pf("PFA")
    k(f"""s_mul_i32 s46, s16, 5120
    s_add_u32 s47, s46, s77
    s_add_u32 s46, s46, {L_P}""")
    vm.wait("zl")
    stamp(k, 6)
    def p1dma():
        for i in range(5):
            if i == 0: k("s_mov_b32 m0, s46")
            if i == 4: k("s_add_u32 s42, s46, 4096\ns_add_u32 s43, s47, 4096\ns_mov_b32 m0, s42")
            k(f"buffer_load_dwordx4 v3, s[12:15], s{47 if i < 4 else 43} offen offset:{(i&3)*1024} sc1 lds")
    k.c("---- modulation tables (20 KB): waves 0-3 look at the flags of the two X workgroups of this group ----")
    def flx(fk, off=0): return f"buffer_load_dwordx4 v[{fk}:{fk+3}], v{V70}, s[12:15], s76 offen offset:{off} sc1"
    def poll_tab(lab, fk, mask, sl):
        k(f"""s_mov_b32 s83, 0
        s_mov_b64 exec, {mask}
        {lab}:
        {flx(fk)}
        s_waitcnt vmcnt(0)
        v_cmp_ne_u64 vcc, s[78:79], v[{fk}:{fk+1}]
        s_cbranch_vccz {lab}y
        s_and_b32 s42, s83, 7
        s_cmp_lg_u32 s42, 7
        s_cbranch_scc1 {lab}n
        {flx(fk, 512)}
        s_waitcnt vmcnt(0)
        v_cmp_ne_u64 vcc, s[32:33], v[{fk}:{fk+1}]
        s_cbranch_vccnz {lab}n
        s_add_u32 s47, s47, 65536
        s_branch {lab}y
        {lab}n:""")
        spin(k, lab, sl)
        k(f"{lab}y:")
    k(f"""s_cmp_ge_u32 s16, 4
    s_cbranch_scc1 f_pd
    s_mov_b64 exec, 3
    {flx(FK)}
    s_mov_b64 exec, -1
    f_pd:""")
    k("s_mov_b32 s83, 0\nf_zc:")
    ZC = W
    for cbi in range(2):
        for nt in range(4):
            for p in range(2):
                k(f"v_xor_b32 v{ZC+8*cbi+2*nt+p}, v{ZL+8*cbi+4*p+nt}, v{TG+nt}")
    for i in range(8):
        k(f"v_or3_b32 v{T}, v{ZC+2*i}, v{ZC+2*i+1}, {'0' if i == 0 else f'v{T}'}")
    k(f"""v_and_b32 v{T}, s54, v{T}
    v_cmp_ne_u32 vcc, 0, v{T}
    s_cbranch_vccnz f_zr
    f_zx:""")
    stamp(k, 7)
    k.c("---- radix-8 over r ----")
    for bh in range(2):
        for cbi in range(2):
            for al in range(2):
                nt = 2*al + bh; b = ZC + 8*cbi + 2*nt; d = D1R + (cbi*4 + nt)*4
                k(f"v_mfma_f32_16x16x16_f16 v[{d}:{d+3}], v[{A3}:{A3+1}], v[{b}:{b+1}], 0")
    for bh in range(2):
        for ii in range(2):
            o = ZL + (bh*2 + ii)*4
            for cbi in range(2):
                for al in range(2):
                    d = D1R + (cbi*4 + 2*al + bh)*4
                    k(f"v_cvt_pk_f16_f32 v{o+2*cbi+al}, v{d+2*ii}, v{d+2*ii+1}")
            k(f"ds_write_b128 v{UW}, v[{o}:{o+3}] offset:{ii*4096 + bh*256}")
    k(f"""s_cmp_ge_u32 s16, 4
    s_cbranch_scc1 f_pvx
    s_waitcnt vmcnt(0)
    s_mov_b64 exec, 3
    v_cmp_ne_u64 vcc, s[78:79], v[{FK}:{FK+1}]
    s_cbranch_vccz f_p1y""")
    stamp(k, 30)
    poll_tab("f_p1", FK, "3", E("SLX", 1))
    k(f"ds_write_b32 v{KR}, v{FK+2} offset:64\ns_mov_b64 exec, -1")
    stamp(k, 31)
    p1dma()
    stamp(k, 32)
    k("s_waitcnt vmcnt(0)")
    stamp(k, 33)
    k("f_pvx:")
    k(f"""s_lshl_b32 s42, s16, 12
    s_add_u32 s42, s42, {L_X}
    v_add_u32 v7, s42, v3
    s_waitcnt vmcnt({E("PFAW", 1)}) lgkmcnt(0)""")
    XRA, XRB = (Q, Q + 8) if XR == 2 else (XRA, XRB)
    if XR == 2: xr_read()
    stamp(k, 8)
    k("s_barrier")
    k.c("================= 1024-point DFT, LN2, router score =================")
    FK2 = TG
    for j in range(2):
        k(f"ds_read_b128 v[{CS+4*j}:{CS+4*j+3}], v3 offset:{L_P+P_CS+j*1024}")
        k(f"ds_read_b128 v[{ZL+8*j}:{ZL+8*j+3}], v7 offset:{2*j*1024}")
        k(f"ds_read_b128 v[{ZL+8*j+4}:{ZL+8*j+7}], v7 offset:{(2*j+1)*1024}")
    def pread(off, base):
        return [f"ds_read_b128 v[{base+4*q}:{base+4*q+3}], v3 offset:{L_P+off+q*1024}" for q in range(4)]
    def modul(j):
        for i in range(4*j, 4*j + 4):
            b = i & 1
            k(f"v_pk_mul_f16 v{W+i}, v{ZL+i}, v{CS+(i>>1)} op_sel:[0,{b}] op_sel_hi:[1,{b}]")
    def st1(j, part):
        Dd, B = (D1R, BRE) if part == 0 else (D1I, BIM)
        cc = "0" if j == 0 else f"v[{Dd}:{Dd+15}]"
        k(f"v_mfma_f32_32x32x16_f16 v[{Dd}:{Dd+15}], v[{W+4*j}:{W+4*j+3}], v[{B+4*j}:{B+4*j+3}], {cc}")
    k("s_cmp_eq_u32 s30, 0\ns_cbranch_scc1 f_sp")
    k("s_waitcnt lgkmcnt(4)"); modul(0); st1(0, 0)
    k("s_waitcnt lgkmcnt(3)"); modul(1); st1(0, 1)
    k("s_waitcnt lgkmcnt(1)"); modul(2); st1(1, 0)
    k("s_waitcnt lgkmcnt(0)"); modul(3); st1(1, 1)
    k("f_st1:")
    if XR == 2: xr_unpack()
    pr1 = pread(P_GA, GA) + pread(P_GAM, GAM) + pread(P_Q, Q) + pread(P_QM, QM)
    k(f"v_mov_b32 v{A3}, {L_KEY + 64}\nds_read_b64 v[{A3}:{A3+1}], v{A3}")
    for j in range(2, 4):
        for part in range(2):
            st1(j, part)
            for _ in range(4): k(pr1.pop(0))
    k("s_waitcnt lgkmcnt(8)")
    for i in range(16):
        k(f"v_pk_mul_f32 {P(GA+2*i)}, {P(GA+2*i)}, {P(A3)} op_sel_hi:[1,0]")
    k.c("second group of tables (sb, gb)")
    k(f"""s_mul_i32 s46, s16, 3072
    s_add_u32 s46, s46, {P_C1}
    s_add_u32 s47, s46, s77
    s_add_u32 s46, s46, {L_P}
    s_mov_b32 m0, s46
""")
    def p2dma():
        for i in range(3): k(f"buffer_load_dwordx4 v3, s[12:15], s47 offen offset:{i*1024} sc1 lds")
    k("s_waitcnt vmcnt(0)")
    pf("PFB")
    stamp(k, 9)
    Y = BIM
    def twid(j):
        vr = ZL + 8 * (j & 1); vi = vr + 4
        for h in range(2):
            pmul(k, vr + 2*h, D1R + 4*j + 2*h, TC + 4*j + 2*h)
            pmul(k, vi + 2*h, D1I + 4*j + 2*h, TC + 4*j + 2*h)
        for h in range(2):
            pfma(k, vr + 2*h, D1I + 4*j + 2*h, TS + 4*j + 2*h, vr + 2*h)
            pfma(k, vi + 2*h, D1R + 4*j + 2*h, TS + 4*j + 2*h, vi + 2*h, nega=True)
        for i in range(4):
            k(f"v_cvt_pk_f16_f32 v{W+4*j+i}, v{vr+i}, v{vi+i}")
    def st2(j, Yd=Y, B=BRE):
        cr = "0" if j == 0 else f"v[{Yd}:{Yd+15}]"
        k(f"v_mfma_f32_32x32x16_f16 v[{Yd}:{Yd+15}], v[{W+4*j}:{W+4*j+3}], v[{B+4*j}:{B+4*j+3}], {cr}")
    k("s_cmp_eq_u32 s30, 0\ns_cbranch_scc1 f_sp2")
    for j in range(4):
        twid(j)
        if j > 0: st2(j - 1)
    st2(3)
    k.c("GO hint from one workgroup per replica")
    def gohint(lab):
        k(f"""s_xor_b32 s42, s35, {E("GOMM", 1)}
        s_xor_b32 s43, s16, 1
        s_or_b32 s42, s42, s43
        s_cmp_lg_u32 s42, 0
        s_cbranch_scc1 {lab}
        s_lshl_b32 s41, s34, 7
        s_mov_b32 s38, 1
        s_add_u32 s41, s41, {WS_GO}
        v_mov_b32 v{CS+4}, s32
        v_mov_b32 v{CS+5}, s33
        s_mov_b64 exec, 0xff
        buffer_store_dwordx4 v[{CS+4}:{CS+7}], v3, s[12:15], s41 offen sc1
        s_mov_b64 exec, -1
        {lab}:""")
    YS = CS
    def x1rows(YA, YB):
        k(f"ds_bpermute_b32 v{YS}, v{BP}, v{YB}")
        k("s_waitcnt lgkmcnt(1)")
        for i in range(8): pfma(k, XA2 + 2*i, GA + 2*i, YA + 2*i, XA2 + 2*i)
        for i in range(1, 8): pfma(k, XB2 + 2*i, GAM + 2*i, YB + 2*i, XB2 + 2*i)
        k(f"v_fmac_f32 v{XB2+1}, v{GAM+1}, v{YB+1}")
        k("s_waitcnt lgkmcnt(0)")
        k(f"v_fmac_f32 v{XB2}, v{GAM}, v{YS}")
    x1rows(Y, Y)
    k("f_join:")
    stamp(k, 10)
    C1, C1M, SBv, SBM, GBv, GBM = BRE, TC, TS, BIM, GA, GAM
    k(f"s_mov_b64 exec, 14\n{flx(FK2)}\ns_mov_b64 exec, -1")
    RQ = ZL; TT_ = W
    rows = ((XA2, Q, D1R, TT_, 56, C1, SBv, GBv), (XB2, QM, D1I, TT_ + 8, 58, C1M, SBM, GBM))
    def sums23(src):
        for i in range(7, -1, -1):
            for n, r_ in enumerate(rows):
                x = src[n] + 2*i; t = r_[3]
                if i == 7:
                    pmul(k, t + 2, x, x); pmul(k, t + 4, x, r_[1] + 2*i)
                else:
                    pfma(k, t + 2, x, x, t + 2); pfma(k, t + 4, x, r_[1] + 2*i, t + 4)
    for i in range(6, -1, -1):
        for r_ in rows: padd(k, r_[3], r_[0] + 14 if i == 6 else r_[3], r_[0] + 2*i)
    sums23((XA2, XB2))
    for n, r_ in enumerate(rows):
        for j in range(3): k(f"v_add_f32 v{RQ+4*n+j}, v{r_[3]+2*j}, v{r_[3]+2*j+1}")
    def red(js):
        for j in js: k(f"v_permlane32_swap_b32 v{RQ+j}, v{RQ+4+j}")
        for j in js: k(f"v_add_f32 v{RQ+j}, v{RQ+j}, v{RQ+4+j}")
        regs = [RQ + j for j in js]
        row_allreduce(k, regs)
        for r in regs: k(f"v_add_f32_dpp v{r}, v{r}, v{r} row_bcast:15 row_mask:0xa bank_mask:0xf")
    k(f"""s_waitcnt vmcnt(0)
    s_mov_b64 exec, 14
    v_cmp_ne_u64 vcc, s[78:79], v[{FK2}:{FK2+1}]
    s_mov_b64 exec, -1
    s_mov_b32 s55, vcc_lo
    s_cbranch_vccnz f_p2l""")
    p2dma()
    k("f_p2l:")
    gohint("f_ngo")
    red((0, 1, 2))
    k.c("lanes 31 / 63 hold rows A / B")
    k(f"""v_mul_f32 v{RQ}, {f32(1.0/1024)}, v{RQ}
    v_mul_f32 v{RQ+1}, {f32(1.0/1024)}, v{RQ+1}
    v_mul_f32 v{RQ+4}, v{RQ}, v{RQ}
    v_fma_f32 v{RQ+2}, -v{RQ}, v{A3+1}, v{RQ+2}
    v_sub_f32 v{RQ+1}, v{RQ+1}, v{RQ+4}
    v_mul_f32 v{RQ+5}, 4.0, v{RQ+1}
    v_cmp_gt_f32 vcc, v{RQ+4}, v{RQ+5}
    v_lshrrev_b32 v{RQ+6}, 4, v0
    s_lshl_b32 s43, s3, 5
    v_and_or_b32 v{RQ+6}, v{RQ+6}, 30, s43
    s_or_b32 s42, vcc_lo, vcc_hi
    s_bitcmp1_b32 s42, 31
    s_cbranch_scc1 f_slow2
    f_var2:""")
    round_bf16(k, RQ + 1, RQ + 1)
    k(f"v_add_f32 v{RQ+1}, {f32(1e-5)}, v{RQ+1}")
    round_bf16(k, RQ + 1, RQ + 1)
    k(f"v_sqrt_f32 v{RQ+1}, v{RQ+1}")
    round_bf16(k, RQ + 1, RQ + 1)
    k(f"""v_rcp_f32 v{RQ+1}, v{RQ+1}
    s_mov_b32 s42, 0x80000000
    s_movk_i32 s43, 0xf000
    s_mov_b32 exec_lo, s42
    s_mov_b32 exec_hi, s42
    v_mul_f32 v{RQ+2}, v{RQ+2}, v{RQ+1}
    v_ashrrev_i32 v{RQ+4}, 31, v{RQ+2}
    v_or_b32 v{RQ+4}, s42, v{RQ+4}
    v_xor_b32 v{RQ+2}, v{RQ+2}, v{RQ+4}
    v_min_u32 v{RQ+2}, 0xffffe000, v{RQ+2}
    v_and_or_b32 v{RQ+2}, v{RQ+2}, s43, v{RQ+6}
    ds_write_b32 v{KW}, v{RQ+2}
    s_mov_b64 exec, -1""")
    for n in range(2):
        k(f"v_readlane_b32 s{60+n}, v{RQ+2}, {31+32*n}")
        k(f"v_readlane_b32 s{56+2*n}, v{RQ}, {31+32*n}")
        k(f"v_readlane_b32 s{57+2*n}, v{RQ+1}, {31+32*n}")
    k("s_waitcnt lgkmcnt(0)")
    stamp(k, 11)
    KV = RQ + 8
    k(f"""s_barrier
    ds_read_b32 v{KV}, v{KR}
    s_cmp_lg_u32 s16, 0
    s_waitcnt vmcnt(0) lgkmcnt(0)
    s_cbranch_scc1 f_nkey
    s_setprio 3
    v_mov_b32 v{KV+2}, v{KV}""")
    row_allreduce(k, [KV + 2], "v_max_u32")
    k(f"""v_cmp_eq_u32 vcc, v{KV+2}, v{KV}
    v_cndmask_b32_e64 v{KV+3}, v{KV}, 0, vcc""")
    row_allreduce(k, [KV + 3], "v_max_u32")
    k(f"""v_or_b32 v{KV+3}, 1, v{KV+3}
    s_mov_b64 exec, 0xff
    buffer_store_dwordx2 v[{KV+2}:{KV+3}], v{FA}, s[12:15], s80 offen sc1
    s_mov_b64 exec, -1
    s_setprio 0
    f_nkey:""")
    stamp(k, 12)
    k("s_cmp_lg_u32 s55, 0\ns_cbranch_scc1 f_p2w\nf_p2d:\ns_barrier")
    for x in pread(P_C1, C1) + pread(P_C1M, C1M): k(x)
    for x in pread(P_SB, SBv) + pread(P_SBM, SBM): k(x)
    k("s_waitcnt lgkmcnt(8)")
    for x in pread(P_GB, GBv) + pread(P_GBM, GBM): k(x)
    HP = W; OA, OBB = Q, Q + 8
    def pk(dst, src, n):
        for i in range(8):
            a, b = (2*i, 2*i + 1) if n == 0 else ((16 - 2*i) & 15, 15 - 2*i)
            k(f"v_cvt_pk_bf16_f32 v{dst+i}, v{src+a}, v{src+b}")
    def h2row(n):
        X2, _, Tt, _, sr, c1, sb, gb = rows[n]
        for i in range(8): psub_s(k, Tt + 2*i, X2 + 2*i, sr)
        for i in range(8): pmul(k, Tt + 2*i, Tt + 2*i, c1 + 2*i)
        k("s_waitcnt lgkmcnt(8)")
        for i in range(8): pfma_s(k, Tt + 2*i, Tt + 2*i, sr + 1, sb + 2*i)
    def outpack(n, with_h2=True):
        X2, _, Tt, _, sr, c1, sb, gb = rows[n]
        if with_h2: h2row(n)
        k("s_waitcnt lgkmcnt(0)")
        for i in range(8): pfma(k, X2 + 2*i, gb + 2*i, Tt + 2*i, X2 + 2*i)
        pk((OA, OBB)[n], X2, n)
    for n in range(2):
        Tt = rows[n][2]; XO = (OA, OBB)[n]; SA_ = (SLA, SLM)[n]
        k(f"""s_mov_b32 s{62+n}, 0
        v_cmp_lt_u32 vcc, s{60+n}, v{KV}
        s_and_b32 s42, vcc_lo, 0xffff
        s_bcnt1_i32_b32 s42, s42
        s_cmp_ge_u32 s42, 2
        s_cbranch_scc1 f_nc{n}
        s_setprio 2
        s_mov_b32 s{62+n}, 1
        s_lshl_b32 s43, s3, 1
        s_add_u32 s42, s42, s43
        s_lshl_b32 s42, s42, 12
        s_add_u32 s42, s42, {WS_SLOT}""")
        h2row(n)
        pk(HP + 8*n, Tt, n)
        for i in range(8): k(f"v_min_u32 v{HP+8*n+i}, -2, v{HP+8*n+i}")
        for u in range(2):
            k(f"buffer_store_dwordx4 v[{HP+8*n+4*u}:{HP+8*n+4*u+3}], v{SA_}, s[12:15], s42 offen offset:{u*512} sc1")
        outpack(n, False)
        for i in range(8): k(f"v_min_u32 v{HP+8*n+i}, -2, v{XO+i}")
        for u in range(2):
            k(f"buffer_store_dwordx4 v[{HP+8*n+4*u}:{HP+8*n+4*u+3}], v{SA_}, s[12:15], s42 offen offset:{2048+u*512} sc1")
        k(f"s_setprio 0\nf_nc{n}:")
    stamp(k, 13)
    for n in range(2):
        k(f"s_cmp_eq_u32 s{62+n}, 1\ns_cbranch_scc1 f_op{n}")
        outpack(n)
        k(f"f_op{n}:")
    pf("PFC")
    k.c("rows back to memory order through LDS; written once the selection is known (the reducers write the two selected rows)")
    k(f"v_add_u32 v7, s68, v3")
    for n in range(2):
        for u in range(2):
            XO = (OA, OBB)[n]
            k(f"ds_write_b128 v{(XD, XDM)[n]}, v[{XO+4*u}:{XO+4*u+3}] offset:{n*2048+u*16}")
    k("s_waitcnt lgkmcnt(0)")
    for i in range(4):
        k(f"ds_read_b128 v[{QM+4*i}:{QM+4*i+3}], v7 offset:{i*1024}")
    k(f"""v_mov_b32 v5, {L_KEY+104}
    s_cmp_lg_u32 s16, 0
    s_cbranch_scc1 f_nrs""")
    if E("FKS", 8): k(f"s_sleep {E('FKS', 8)}")
    poll_keys(k, "f_kq", 32, 74, 4)
    top2(k, 32, 40, 41, 36)
    k(f"""v_mov_b32 v28, s40
    v_mov_b32 v29, s41
    ds_write_b64 v5, v[28:29]
    s_waitcnt lgkmcnt(0)
    f_nrs:
    s_barrier
    ds_read_b64 v[28:29], v5
    s_waitcnt lgkmcnt(0)
    v_readfirstlane_b32 s40, v28
    v_readfirstlane_b32 s41, v29
    s_andn2_b32 s40, s40, 1
    s_andn2_b32 s41, s41, 1""")
    for n in range(2):
        k(f"""s_cmp_eq_u32 s{60+n}, s40
        s_cbranch_scc1 f_e{n}
        s_cmp_eq_u32 s{60+n}, s41
        s_cbranch_scc1 f_e{n}""")
        for j in range(2):
            k(f"buffer_store_dwordx4 v[{QM+8*n+4*j}:{QM+8*n+4*j+3}], v3, s[24:27], s{18+n} offen offset:{j*1024} sc1")
        k(f"f_e{n}:")
    stamp_out(k, 0)
    k("s_endpgm")
    k.c("---- spectrum pieces that were not there yet: read them again ----")
    k("f_zr:")
    for i in range(4):
        z = ZC + 8*(i >> 1) + (i & 1)
        k(f"""v_or3_b32 v{T}, v{z}, v{z+2}, v{z+4}
        v_or_b32 v{T}, v{T}, v{z+6}
        v_and_b32 v{T}, s54, v{T}
        v_cmp_ne_u32 vcc, 0, v{T}""")
        k(f"""s_cbranch_vccz f_zr{i}
        buffer_load_dwordx4 v[{ZL+4*i}:{ZL+4*i+3}], v3, s[12:15], s72 offen offset:{i*1024} sc1
        f_zr{i}:""")
    k("s_waitcnt vmcnt(0)")
    spin(k, "f_zc", 0)
    k("s_branch f_zx")
    k.c("---- late tables ----")
    k("f_p2w:")
    poll_tab("f_p2p", FK2, "14", 1)
    k("s_mov_b64 exec, -1")
    p2dma()
    k("s_waitcnt vmcnt(0)\ns_branch f_p2d")
    k.c("---- rare: two-pass variance / router score for LN2 ----")
    k("f_slow2:")
    k.c("here the bf16 rounding of x and of the mean matters: follow the reference's rounding steps")
    for r_ in rows:
        X2, t = r_[0], r_[3]
        for i in range(8): rb2(k, X2 + 2*i, t)
        for i in range(1, 8): padd(k, t, X2 if i == 1 else t, X2 + 2*i)
    for n, r_ in enumerate(rows):
        k(f"v_add_f32 v{RQ+4*n}, v{r_[3]}, v{r_[3]+1}")
    red((0,))
    k(f"v_mul_f32 v{RQ+3}, {f32(1.0/1024)}, v{RQ}")
    round_bf16(k, RQ, RQ + 3)
    k(f"v_sub_f32 v{RQ+3}, v{RQ+3}, v{RQ}")
    for n in range(2): k(f"v_readlane_b32 s{56+2*n}, v{RQ}, {31+32*n}")
    for r_ in rows:
        for i in range(8): psub_s(k, r_[2] + 2*i, r_[0] + 2*i, r_[4])
    k(f"v_mov_b32 v{RQ+7}, v{RQ+6}")
    sums23((rows[0][2], rows[1][2]))
    for n, r_ in enumerate(rows):
        for j in (1, 2): k(f"v_add_f32 v{RQ+4*n+j}, v{r_[3]+2*j}, v{r_[3]+2*j+1}")
    red((1, 2))
    k(f"""v_mul_f32 v{RQ+1}, {f32(1.0/1024)}, v{RQ+1}
    v_fma_f32 v{RQ+1}, -v{RQ+3}, v{RQ+3}, v{RQ+1}
    v_max_f32 v{RQ+1}, 0, v{RQ+1}
    v_mov_b32 v{RQ+6}, v{RQ+7}
    s_branch f_var2""")
    slow1()
    k.c("---- rows 0 and 1024 travel as one complex row ----")
    k("f_sp:\ns_setprio 2")
    SAR = D1R
    for j in range(2):
        k(f"ds_read_b128 v[{SAR+4*j}:{SAR+4*j+3}], v3 offset:{L_P+P_SAS+j*1024}")
    k("s_waitcnt lgkmcnt(2)")
    for j in range(4): modul(j)
    k("s_waitcnt lgkmcnt(0)")
    for i in range(8):
        k(f"v_and_b32 v{ZL+i}, 0xffff, v{SAR+i}")
        k(f"v_lshrrev_b32 v{ZL+8+i}, 16, v{SAR+i}")
    for i in range(8):
        k(f"v_pk_add_f16 v{W+2*i}, v{W+2*i}, v{ZL+i}")
        k(f"v_pk_add_f16 v{W+2*i+1}, v{W+2*i+1}, v{ZL+8+i}")
    st1(0, 0); st1(0, 1); st1(1, 0); st1(1, 1)
    k("s_branch f_st1")
    k("f_sp2:")
    for j in range(4): twid(j)
    YA, YB = TC, TS
    for j in range(4): st2(j, YA, BRE)
    for j in range(4): st2(j, YB, BIM)
    k(f"""v_subrev_u32 v{CS+1}, s68, v{XD}
    v_subrev_u32 v{CS+2}, s68, v{XDM}
    v_lshlrev_b32 v{CS+1}, 1, v{CS+1}
    v_lshlrev_b32 v{CS+2}, 1, v{CS+2}
    v_sub_u32 v{CS+3}, 4096, v{CS+1}
    v_and_b32 v{CS+3}, 4095, v{CS+3}""")
    for r in (1, 2, 3): k(f"v_add_u32 v{CS+r}, {L_U}, v{CS+r}")
    for n, Yv in enumerate((YA, YB)):
        for q in range(4):
            k(f"ds_write_b128 v{CS+1}, v[{Yv+4*q}:{Yv+4*q+3}] offset:{n*4096+q*16}")
    k("s_waitcnt lgkmcnt(0)")
    for n, Mv in enumerate((D1R, D1I)):
        for q in range(4):
            k(f"ds_read_b128 v[{Mv+4*q}:{Mv+4*q+3}], v{CS+2} offset:{n*4096+q*16}")
    k("s_waitcnt lgkmcnt(0)")
    for n, Mv in enumerate((D1R, D1I)):
        k(f"ds_read_b32 v{Mv}, v{CS+3} offset:{n*4096}")
    for n, (Yv, Mv) in enumerate(((YA, D1R), (YB, D1I))):
        for i in range(1, 16): k(f"v_add_f32 v{Yv+i}, v{Yv+i}, v{Mv+16-i}")
    k("s_waitcnt lgkmcnt(0)")
    for n, (Yv, Mv) in enumerate(((YA, D1R), (YB, D1I))):
        k(f"v_add_f32 v{Yv}, v{Yv}, v{Mv}")
    x1rows(YA, YB)
    k("s_setprio 0\ns_branch f_join")

def role_G(k):
    L_GR = 131072 + 4096; L_SI = 131072 + 8192
    k.c("w_mod tiles: [256 x 128] of sa|ca|ga|cb, [128 x 128] of sb|gb ; s40 = 2c + (mm>>3)")
    k(f"""g_start:
    s_lshr_b32 s40, s35, 3
    s_lshl_b32 s41, s34, 1
    s_add_u32 s40, s40, s41
    s_and_b32 s29, s35, 7
    v_lshlrev_b32 v13, 2, v2
    s_cmp_lt_u32 s16, 4
    s_cbranch_scc1 g_cons
    @@L@@
    g_cons:
    s_lshl_b32 s38, s2, 13
    s_lshl_b32 s39, s16, 11
    s_add_u32 s38, s38, s39
    s_add_u32 s38, s38, {WS_SENT}
    s_lshl_b32 s30, s40, 12
    s_lshl_b32 s31, s29, 9
    s_add_u32 s30, s30, s31
    s_lshl_b32 s31, s16, 7
    s_add_u32 s30, s30, s31
    s_xor_b32 s31, s30, 512
    s_add_u32 s31, s31, {WS_MP2}
    s_add_u32 s30, s30, {WS_MP1}
    v_lshlrev_b32 v8, 1, v0
    v_and_b32 v9, 0xff, v8
    s_and_b32 s41, s40, 7
    s_lshl_b32 s41, s41, 8
    s_and_b32 s40, s40, 3
    s_lshl_b32 s40, s40, 9
    v_mov_b32 v104, -1
    v_mov_b32 v105, -1
    v_mov_b32 v106, -1
    v_mov_b32 v107, -1
    s_or_b32 s42, s2, s16
    s_waitcnt lgkmcnt(0)
    s_mov_b32 s12, s6
    s_mov_b32 s13, s7""")
    stamp(k, 1)
    k.c("nonce writer: workgroup 0, wave 0")
    k(f"""s_cmp_lg_u32 s42, 0
    s_cbranch_scc1 h_non
    s_mul_i32 s42, s32, 0x9e3779b1
    s_lshr_b32 s43, s42, 15
    s_xor_b32 s42, s42, s43
    s_mul_i32 s42, s42, 0x85ebca6b
    s_xor_b32 s33, s33, s42
    s_lshr_b32 s43, s42, 13
    s_xor_b32 s42, s42, s43
    s_mul_i32 s33, s33, 0xc2b2ae35
    s_add_u32 s33, s33, s32
    s_lshr_b32 s43, s33, 16
    s_xor_b32 s33, s33, s43
    s_mul_i32 s33, s33, 0x27d4eb2f
    s_or_b32 s32, s42, 1
    s_andn2_b32 s33, s33, 7
    v_mov_b32 v10, s32
    v_mov_b32 v11, s33
    v_lshlrev_b32 v12, 3, v2
    s_mov_b32 exec_hi, 0
    global_store_dwordx2 v12, v[10:11], s[26:27] sc1
    s_mov_b32 exec_hi, -1
    h_non:""")
    srd(k, 44, 56, 2048)
    k("""buffer_load_ushort v6, v8, s[44:47], s40 offen
    buffer_load_ushort v7, v9, s[44:47], s41 offen
    s_barrier""")
    srd(k, 8, 58, 1024 * 6144 * 2)
    def common(lab):
        k.c("s64 = cluster (or X index) ; s65 = K half ; s66 = 1 for X")
        k(f"""s_mov_b32 s20, s26
        s_mov_b32 s21, s27
        s_mov_b32 s26, 4194304
        s_mov_b32 s27, 0x00020000
        s_and_b32 s65, s35, 1
        s_lshr_b32 s40, s35, 1
        s_mul_i32 s64, s34, 7
        s_add_u32 s64, s64, s40
        s_lshl_b32 s41, s34, 1
        s_add_u32 s41, s41, s65
        s_cmp_ge_u32 s35, 14
        s_cselect_b32 s66, 1, 0
        s_cselect_b32 s64, s41, s64""")
        k.c("v12 / v21: transposed reads of the gate / up tile")
        k(f"""v_lshrrev_b32 v10, 2, v2
        v_and_b32 v15, 3, v0
        v_bfe_u32 v11, v0, 3, 2
        v_xor_b32 v12, v11, v1
        v_and_b32 v12, 3, v12
        v_lshlrev_b32 v12, 5, v12
        v_lshl_add_u32 v12, v10, 7, v12
        v_lshl_add_u32 v12, v15, 3, v12
        v_lshrrev_b32 v16, 2, v1
        v_lshl_add_u32 v12, v16, 15, v12
        v_add_u32 v21, 65536, v12""")
        k.c("X: table positions of the four columns e = 4*(tid&255)..: natural, mirrored (two), f16")
        k(f"""s_cmp_eq_u32 s66, 0
        s_cbranch_scc1 {lab}
        v_and_b32 v204, 255, v0
        v_lshlrev_b32 v204, 2, v204
        v_bfe_u32 v200, v204, 4, 1
        v_lshlrev_b32 v200, 5, v200
        v_bfe_u32 v201, v204, 7, 2
        v_lshl_add_u32 v200, v201, 3, v200
        v_bfe_u32 v201, v204, 9, 1
        v_lshl_add_u32 v200, v201, 2, v200
        v_bfe_u32 v201, v204, 5, 2
        v_add_lshl_u32 v200, v201, v200, 4
        v_xor_b32 v202, {63*16}, v200
        v_and_b32 v206, 3, v0
        v_lshl_add_u32 v200, v206, 10, v200
        v_sub_u32 v205, 4, v206
        v_and_b32 v205, 3, v205
        v_lshl_add_u32 v201, v205, 10, v202
        v_sub_u32 v205, 3, v206
        v_lshl_add_u32 v202, v205, 10, v202""")
        pos16(k, 203, 204, 205)
        k(f"""s_lshl_b32 s22, s34, 17
        s_add_u32 s22, s22, {WS_PAR}
        s_lshl_b32 s79, s34, 10
        s_lshl_b32 s23, s65, 7
        s_add_u32 s79, s79, s23
        s_add_u32 s79, s79, {WS_FLX}
        {lab}:""")
    common("g_c0")
    k(f"""v_bfe_u32 v22, v0, 2, 3
    v_lshlrev_b32 v23, 1, v1
    v_xor_b32 v22, v22, v23
    v_lshlrev_b32 v22, 5, v22
    v_lshl_add_u32 v22, v15, 3, v22
    v_bfe_u32 v23, v0, 2, 2
    v_lshl_add_u32 v22, v23, 8, v22
    v_bfe_u32 v23, v0, 4, 2
    v_lshl_add_u32 v22, v23, 11, v22
    v_add_u32 v22, 32768, v22
    v_xor_b32 v23, 32, v22
    v_add_u32 v208, 65536, v22
    v_add_u32 v209, 65536, v23
    v_and_b32 v10, 48, v0
    v_cmp_eq_u32 s[72:73], 16, v10
    v_add_u32 v10, {L_SI}, v10
    v_add_u32 v8, {L_SI}, v8
    v_add_u32 v9, {L_SI}, v9
    s_waitcnt vmcnt(0)""")
    nonce_issue(k, 20, 128)
    for r in (6, 7): k(f"v_lshlrev_b32 v{r}, 16, v{r}")
    for r in (6, 7): k(f"v_mul_f32 v{18+r}, {LOG2E}, v{r}")
    for r in (6, 7): k(f"v_exp_f32 v{18+r}, v{18+r}")
    for r in (6, 7): k(f"v_add_f32 v{18+r}, 1.0, v{18+r}")
    for r in (6, 7): k(f"v_rcp_f32 v{18+r}, v{18+r}")
    for r in (6, 7): k(f"v_mul_f32 v{r}, v{r}, v{18+r}")
    k(f"""v_cvt_pk_bf16_f32 v6, v6, v7
    ds_write_b16 v8, v6
    ds_write_b16_d16_hi v9, v6 offset:512""")
    for i in range(2): k(f"buffer_store_dwordx4 v[104:107], v3, s[12:15], s38 offen offset:{i*1024} sc1")
    nonce_finish(k, "g_nn", 20, 192, 120)
    def mtag(d, idx):
        k(f"""v_mov_b32 v{d}, s32
        v_mov_b32 v{d+1}, s33
        v_and_b32 v{d+2}, 7, v{idx}
        v_lshlrev_b32 v{d+2}, 3, v{d+2}
        v_lshrrev_b64 v[{d}:{d+1}], v{d+2}, v[{d}:{d+1}]""")
    mtag(210, 0)
    k("v_and_b32 v210, 0xff, v210\ns_movk_i32 s74, 0xff00")
    if E("MPW", 1):
        k("""v_not_b32 v24, v210
        s_mov_b32 exec_hi, 0
        buffer_store_dword v24, v13, s[12:15], s30 offen sc1
        buffer_store_dword v24, v13, s[12:15], s31 offen sc1
        s_mov_b32 exec_hi, -1""")
    k("s_barrier")
    GA_, GB_, GD = 68, 128, 24
    def gemv(u, vb, off, st=True):
        def rd(j):
            ks, t = j >> 1, j & 1
            k(f"ds_read_b64_tr_b16 v[{GB_+4*j}:{GB_+4*j+1}], v{vb+t} offset:{off+ks*8192}")
            k(f"ds_read_b64_tr_b16 v[{GB_+4*j+2}:{GB_+4*j+3}], v{vb+t} offset:{off+ks*8192+1024}")
        for j in range(7): rd(j)
        for j in range(8):
            k(f"s_waitcnt lgkmcnt({12 if j == 0 else 2*(7 - j)})")
            d_ = GD + 4*(j & 1)
            cc = "0" if j < 2 and u != 1 else f"v[{d_}:{d_+3}]"
            a_ = GA_ + 16*u + 4*(j >> 1)
            k(f"v_mfma_f32_16x16x32_bf16 v[{d_}:{d_+3}], v[{a_}:{a_+3}], v[{GB_+4*j}:{GB_+4*j+3}], {cc}")
            if j == 0: rd(7)
        if u:
            k(f"""v_cndmask_b32 v{GD}, v{GD}, v{GD+4}, s[72:73]
            v_and_or_b32 v{GD}, v{GD}, s74, v210
            s_mov_b32 exec_hi, 0
            buffer_store_dword v{GD}, v13, s[12:15], s{29+u} offen sc1
            s_mov_b32 exec_hi, -1""")
            if st:
                stamp(k, 3 + u)
                k("s_barrier")
    stamp(k, 2)
    for ks in range(12):
        k(f"ds_read_b128 v[{GA_+4*ks}:{GA_+4*ks+3}], v10 offset:{ks*64}")
    gemv(0, 22, 0)
    k("s_waitcnt vmcnt(0)\ns_barrier")
    stamp(k, 3)
    gemv(1, 22, 32768)
    k("s_cmp_eq_u32 s66, 1\ns_cbranch_scc1 x_start\ns_barrier")
    gemv(2, 208, 0)
    BD, BG, BU = 32, 64, 96
    def rdw(base, va):
        for ks in range(8):
            k(f"ds_read_b64_tr_b16 v[{base+4*ks}:{base+4*ks+1}], v{va} offset:{ks*4096}")
            k(f"ds_read_b64_tr_b16 v[{base+4*ks+2}:{base+4*ks+3}], v{va} offset:{ks*4096+2048}")
    k(f"""s_getreg_b32 s39, hwreg(HW_REG_XCC_ID)
    s_and_b32 s39, s39, 7
    s_or_b32 s39, s39, s33
    s_lshl_b32 s38, s64, 1
    s_add_u32 s38, s38, s65
    s_lshl_b32 s38, s38, 7
    s_add_u32 s38, s38, {WS_MX}
    v_mov_b32 v22, 0
    s_cmp_lg_u32 s16, 1
    s_cbranch_scc1 m_nx
    v_mov_b32 v24, s32
    v_mov_b32 v25, s39
    s_mov_b64 exec, 1
    buffer_store_dwordx2 v[24:25], v22, s[12:15], s38 offen sc1
    s_mov_b64 exec, -1
    m_nx:
    s_xor_b32 s38, s38, 128
    s_barrier""")
    rdw(BG, 12)
    k("s_waitcnt lgkmcnt(0)\ns_barrier\ns_barrier")
    rdw(BU, 21)
    k("s_barrier\n@@L0@@")
    k.c("================= waves 4-7: the loaders (nine 32 KB units through four LDS slots) =================")
    k(f"""g_load:
    v_lshrrev_b32 v5, 4, v2
    v_lshlrev_b32 v6, 1, v5
    v_xor_b32 v6, v6, v0
    v_and_b32 v6, 15, v6
    v_lshlrev_b32 v6, 4, v6
    s_movk_i32 s42, 12288
    v_mad_u32_u24 v6, v5, s42, v6
    v_xor_b32 v7, 128, v6
    s_and_b32 s69, s16, 3
    s_and_b32 s41, s40, 3
    s_lshl_b32 s41, s41, 3
    s_add_u32 s41, s41, s69
    s_mul_i32 s18, s41, {32*12288}
    s_lshr_b32 s41, s34, 1
    s_cmp_eq_u32 s41, 3
    s_cselect_b32 s41, 4, s41
    s_lshl_b32 s41, s41, 11
    s_add_u32 s18, s18, s41
    s_lshl_b32 s42, s29, 8
    s_add_u32 s18, s18, s42
    s_lshl_b32 s68, s69, 13
    s_mov_b32 s10, {1024*6144*2}
    s_waitcnt lgkmcnt(0)
    s_mov_b32 s8, s58
    s_mov_b32 s9, s59
    s_mov_b32 s12, s6
    s_mov_b32 s13, s7""")
    stamp(k, 1)
    k("s_barrier")
    W0, W1, W2 = E("W0", 8), E("W1", 7), E("W2", 10)
    win = lambda n: W0 if n < 32 else W2
    def unit_load(n):
        u, i = n >> 3, n & 7
        slot = ((u + 1) & 3) * 32768
        if u < 3:
            va, srdb, sb, stride = 6 + ((i >> 1) & 1), 8, (18, 18, 19)[u], 12288
            rows = (0, 128, 0)[u] + 4 * i
        elif u < 7:
            va, srdb, sb, stride = 5, (56, 56, 44, 44)[u-3], 67, 7168
            rows = 256 * ((u + 1) & 1) + 32 * (i >> 2) + 16 * (i & 1) + 4 * ((i >> 1) & 1)
        else:
            va, srdb, sb, stride = (4 if i else 3), 60, 70, 2048
            rows = 32 * (u - 7) + 8 * (i >> 2) + (i & 3)
            if i: k(f"v_xor_b32 v4, {i*32}, v3")
        k(f"s_add_u32 s43, s68, {slot + i*1024}\ns_mov_b32 m0, s43\ns_add_u32 s42, s{sb}, {rows*stride}")
        nt = "nt" if (E("NTU", 511) >> u) & 1 else ""
        k(f"buffer_load_dwordx4 v{va}, s[{srdb}:{srdb+3}], s42 offen {nt} lds")
    L1, L2 = E("L1", 2), E("L2", 2)
    def stream(n0, n1, total, landed):
        for n in range(n0, n1):
            w = min(win(n), n) if n else 1
            for u, la in ((1, L1), (2, L2)):
                if n == 8 * (u + 1) + la and landed <= u:
                    k(f"s_waitcnt vmcnt({la})")
                    while landed <= u:
                        event(landed); landed += 1
            if n >= win(n): k(f"s_waitcnt vmcnt({win(n)-1})")
            while 8 * (landed + 1) <= n - win(n) + 1:
                event(landed); landed += 1
            unit_load(n)
        if n1 == total:
            while 8 * (landed + 1) <= total - (8 if total == 72 else 0):
                k(f"s_waitcnt vmcnt({total - 8*(landed+1)})")
                event(landed); landed += 1
        return landed
    def event(u):
        if u in (5, 7): k("s_waitcnt lgkmcnt(0)")
        if u < 7: k("s_barrier")
        if u in (1, 2): k("s_barrier")
        if u == 4: rdw(BG, 12)
        if u == 6: rdw(BU, 21)
    def setup2():
        pass
    landed = stream(0, 8, 72, 0)
    k(f"""s_and_b32 s41, s40, 7
    s_lshl_b32 s19, s41, 2
    s_add_u32 s19, s19, s69
    s_mul_i32 s19, s19, {32*12288}
    s_xor_b32 s42, s29, 1
    s_lshl_b32 s42, s42, 8
    s_add_u32 s19, s19, s42
    s_and_b32 s42, s34, 4
    s_lshl_b32 s42, s42, 10
    s_add_u32 s19, s19, s42
    s_add_u32 s19, s19, {3*2048}
    v_bfe_u32 v5, v0, 5, 1
    v_lshlrev_b32 v5, 3, v5
    v_bfe_u32 v12, v0, 3, 2
    v_add_u32 v5, v5, v12
    v_bfe_u32 v12, v0, 4, 2
    v_lshlrev_b32 v12, 1, v12
    v_xor_b32 v12, v12, v0
    v_and_b32 v12, 7, v12
    v_lshlrev_b32 v12, 4, v12
    s_movk_i32 s42, 7168
    v_mad_u32_u24 v5, v5, s42, v12""")
    common("g_c1")
    k(f"""s_lshl_b32 s67, s65, 3
    s_add_u32 s67, s67, s69
    s_mul_i32 s67, s67, {64*7168}
    s_lshl_b32 s42, s64, 7
    s_add_u32 s67, s67, s42
    s_lshl_b32 s42, s64, 6
    s_and_b32 s43, s16, 1
    s_lshl_b32 s43, s43, 4
    s_add_u32 s42, s42, s43
    s_and_b32 s43, s16, 2
    s_lshl_b32 s43, s43, 1
    s_add_u32 s42, s42, s43
    s_lshl_b32 s70, s42, 11
    s_lshl_b32 s43, s65, 10
    s_add_u32 s70, s70, s43""")
    srd(k, 56, 50, 1024 * 3584 * 2)
    srd(k, 44, 52, 1024 * 3584 * 2)
    srd(k, 60, 54, 1024 * 3584 * 2)
    landed = stream(8, 10, 72, landed)
    nonce_issue(k, 20, 128)
    landed = stream(10, 16, 72, landed)
    nonce_finish(k, "g_n2", 20, 192, 120)
    k("s_cmp_eq_u32 s66, 0\ns_cbranch_scc1 m_load")
    for n in range(16, 24):
        k(f"s_waitcnt vmcnt({W0-1})")
        unit_load(n)
    k("s_waitcnt vmcnt(8)\ns_barrier\ns_barrier\ns_branch x_start\nm_load:")
    stream(16, 72, 72, landed)
    k("v_mov_b32 v22, 0\ns_branch m_join\n@@L1@@\nm_join:")
    L_H = 131072; L_A = 131072 + 2048
    k.c("v8..v11 down tr addr ; v17 A read ; v18 act write ; v19 act read ; v20 PART store")
    k(f"""v_lshrrev_b32 v6, 2, v2
    v_and_b32 v7, 7, v6
    v_lshlrev_b32 v8, 2, v1
    v_xor_b32 v8, v8, v7
    v_lshlrev_b32 v8, 5, v8
    v_lshl_add_u32 v8, v6, 10, v8
    v_lshl_add_u32 v8, v15, 3, v8
    v_xor_b32 v9, 32, v8
    v_xor_b32 v10, 64, v8
    v_xor_b32 v11, 96, v8
    v_bfe_u32 v7, v0, 4, 2
    v_and_b32 v6, 1, v0
    v_lshlrev_b32 v17, 10, v6
    v_lshl_add_u32 v17, v16, 9, v17
    v_lshl_add_u32 v17, v7, 4, v17
    v_add_u32 v17, {L_H}, v17
    v_lshlrev_b32 v19, 7, v6
    v_lshl_add_u32 v19, v7, 4, v19
    v_add_u32 v19, {L_A}, v19
    v_and_b32 v6, 15, v0
    v_lshlrev_b32 v18, 1, v6
    v_lshl_add_u32 v18, v1, 5, v18
    v_lshl_add_u32 v18, v7, 7, v18
    v_add_u32 v18, {L_A}, v18
    v_lshlrev_b32 v20, 2, v6
    v_lshl_add_u32 v20, v1, 14, v20
    v_lshl_add_u32 v20, v7, 12, v20
    v_cmp_eq_u32 s[60:61], 1, v7
    v_cmp_eq_u32 s[62:63], 2, v7
    v_cmp_eq_u32 s[72:73], 3, v7
    v_lshlrev_b32 v13, 6, v6
    v_bfe_u32 v22, v0, 4, 1
    v_lshl_add_u32 v13, v22, 5, v13
    v_bfe_u32 v22, v0, 5, 1
    v_lshl_add_u32 v13, v22, 4, v13
    v_add_u32 v13, {L_H}, v13
    s_lshl_b32 s70, s65, 10
    s_add_u32 s70, s70, {WS_SLOT}
    s_lshl_b32 s74, s65, 17
    s_lshl_b32 s75, s64, 6
    s_add_u32 s74, s74, s75
    s_add_u32 s74, s74, {WS_PART}
    s_add_u32 s75, s74, {64*4096}
    s_lshl_b32 s69, s64, 2
    s_and_b32 s42, s16, 3
    s_add_u32 s69, s69, s42
    s_lshl_b32 s69, s69, 10
    s_add_u32 s81, s69, {WS_XA}
    s_add_u32 s82, s69, {WS_XB}
    s_lshl_b32 s76, s65, 1
    s_lshr_b32 s42, s16, 2
    s_add_u32 s76, s76, s42
    s_lshl_b32 s76, s76, 8
    s_add_u32 s77, s76, s82
    s_add_u32 s76, s76, s81
    s_lshl_b32 s78, s34, 11
    s_lshl_b32 s79, s34, 7
    s_add_u32 s79, s79, {WS_GO}
    s_add_u32 s78, s78, {WS_KEY}
    s_barrier""")
    k.c("wave 0: flag loads ride in front of the last unit")
    k(f"""s_cmp_lg_u32 s16, 0
    s_cbranch_scc1 m_n0
    v_lshlrev_b32 v4, 6, v2
    buffer_load_dword v5, v4, s[12:15], s81 offen sc1
    s_mov_b64 exec, 1
    buffer_load_dwordx2 v[188:189], v22, s[12:15], s38 offen sc1
    buffer_load_dwordx2 v[28:29], v22, s[12:15], s79 offen sc1
    s_mov_b64 exec, -1
    m_n0:""")
    KB = 24; HA = 128; AG = 160
    k("s_waitcnt vmcnt(0)\ns_barrier")
    k(f"""v_mov_b32 v190, {L_A + 1024}
    s_cmp_lg_u32 s16, 0
    s_cbranch_scc1 m_n1
    s_mov_b64 exec, 1
    v_xor_b32 v188, s32, v188
    v_xor_b32 v189, s39, v189
    v_or_b32 v188, v188, v189
    ds_write_b32 v190, v188""")
    cmp_recs(k, 28)
    k(f"""s_cbranch_vccnz m_n1
    s_mov_b64 exec, -1
    buffer_load_dwordx4 v[{KB}:{KB+3}], v3, s[12:15], s78 offen sc1
    m_n1:
    s_mov_b64 exec, -1""")
    for ks in range(2):
        for t in range(4):
            b_ = BD + (ks*4 + t)*4
            k(f"ds_read_b64_tr_b16 v[{b_}:{b_+1}], v{8+t} offset:{ks*32768}")
            k(f"ds_read_b64_tr_b16 v[{b_+2}:{b_+3}], v{8+t} offset:{ks*32768+16384}")
    stamp(k, 6)
    k("s_cmp_lg_u32 s16, 0\ns_cbranch_scc1 m_nk\ns_cbranch_vccnz m_slowk\ns_waitcnt vmcnt(0)")
    chk_sent(k, range(KB, KB + 4), 4)
    k("s_cbranch_vccz m_pkx\ns_branch m_gox\nm_slowk:")
    go_wait(k, "m_go", 79, 22, 28)
    poll_keys(k, "m_pk", KB, 78, 4)
    stamp(k, 13)
    top2(k, KB, 40, 41, 28)
    def slot_of(d, s_):
        k(f"""s_bfe_u32 s{d}, s{s_}, 0x70005
        s_lshl_b32 s{d}, s{d}, 13
        s_and_b32 s{s_}, s{s_}, 1
        s_lshl_b32 s{s_}, s{s_}, 12
        s_add_u32 s{d}, s{d}, s{s_}""")
    slot_of(42, 40); slot_of(43, 41)
    k(f"""s_add_u32 s42, s42, s70
    s_add_u32 s43, s43, s70
    s_mov_b32 s83, 0
    m_ph:
    buffer_load_dwordx4 v[176:179], v3, s[12:15], s42 offen sc1
    buffer_load_dwordx4 v[180:183], v3, s[12:15], s43 offen sc1
    s_waitcnt vmcnt(0)
    ds_write_b128 v13, v[176:179]
    ds_write_b128 v13, v[180:183] offset:1024""")
    chk_sent(k, range(176, 184), 4)
    k("s_cbranch_vccz m_phx")
    spin(k, "m_ph", 0)
    k("m_phx:\ns_waitcnt lgkmcnt(0)")
    stamp(k, 14)
    k("m_nk:\ns_barrier\nds_read_b32 v188, v190")
    for ks in range(8):
        k(f"ds_read_b128 v[{HA+4*ks}:{HA+4*ks+3}], v17 offset:{ks*64}")
    for ks in range(8):
        k(f"s_waitcnt lgkmcnt({7-ks})")
        for a_, b_ in ((AG, BG), (AG + 4, BU)):
            cc = "0" if ks == 0 else f"v[{a_}:{a_+3}]"
            k(f"v_mfma_f32_16x16x32_bf16 v[{a_}:{a_+3}], v[{HA+4*ks}:{HA+4*ks+3}], v[{b_+4*ks}:{b_+4*ks+3}], {cc}")
    PB = 184
    k(f"""v_readfirstlane_b32 s71, v188
    v_min_u32 v{PB}, -2, v{AG}
    v_min_u32 v{PB+1}, -2, v{AG+1}
    v_min_u32 v{PB+2}, -2, v{AG+4}
    v_min_u32 v{PB+3}, -2, v{AG+5}
    s_mov_b64 exec, 0xffff
    buffer_store_dwordx4 v[{PB}:{PB+3}], v3, s[12:15], s76 offen
    s_cmp_eq_u32 s71, 0
    s_cbranch_scc1 m_same
    buffer_store_dwordx4 v[{PB}:{PB+3}], v3, s[12:15], s77 offen sc1
    m_same:
    s_mov_b64 exec, -1
    s_cmp_ge_u32 s16, 4
    s_cbranch_scc1 m_na""")
    if E("SL3", 2): k(f"s_sleep {E('SL3', 2)}")
    stamp(k, 15)
    R = 24
    k("s_mov_b32 s83, 0\nm_px:")
    for so in (81, 81, 82):
        k(f"buffer_load_dwordx4 v[{R}:{R+3}], v3, s[12:15], s{so} offen sc1")
        k("s_waitcnt vmcnt(0)")
        chk_sent(k, range(R, R + 4), 4)
        k("s_cbranch_vccz m_pxx")
    spin(k, "m_px", 0)
    k("m_pxx:")
    stamp(k, 16)
    k(f"v_permlane32_swap_b32 v{R}, v{R+2}")
    k(f"v_permlane32_swap_b32 v{R+1}, v{R+3}")
    padd(k, R, R, R + 2)
    k(f"v_permlane16_swap_b32 v{R}, v{R+1}")
    k(f"v_add_f32 v{R}, v{R}, v{R+1}")
    round_bf16(k, R, R)
    k(f"""v_mul_f32 v{R+1}, {LOG2E}, v{R}
    v_exp_f32 v{R+1}, v{R+1}
    v_mov_b32 v{R+2}, v{R}
    v_add_f32 v{R+1}, 1.0, v{R+1}
    v_rcp_f32 v{R+1}, v{R+1}
    v_mov_b32 v{R+3}, v{R}
    v_mul_f32 v{R+1}, v{R}, v{R+1}
    v_permlane32_swap_b32 v{R+2}, v{R+3}""")
    round_bf16(k, R + 1, R + 1)
    k(f"""v_mul_f32 v{R+1}, v{R+1}, v{R+3}
    v_cvt_pk_bf16_f32 v{R+1}, v{R+1}, v{R+1}
    ds_write_b16 v18, v{R+1}
    m_na:""")
    k("""s_waitcnt lgkmcnt(0)
    s_barrier""")
    for ks in range(2):
        k(f"ds_read_b128 v[{HA+4*ks}:{HA+4*ks+3}], v19 offset:{ks*64}")
    for ks in range(2):
        k(f"s_waitcnt lgkmcnt({1-ks})")
        for t in range(4):
            a_ = AG + 4 * t
            cc = "0" if ks == 0 else f"v[{a_}:{a_+3}]"
            b_ = BD + (ks*4 + t)*4
            k(f"v_mfma_f32_16x16x32_bf16 v[{a_}:{a_+3}], v[{HA+4*ks}:{HA+4*ks+3}], v[{b_}:{b_+3}], {cc}")
    for t, m_ in ((1, "s[60:61]"), (2, "s[62:63]"), (3, "s[72:73]")):
        for row in range(2):
            src = AG + row if t == 1 else 24 + row
            k(f"v_cndmask_b32 v{24+row}, v{src}, v{AG+4*t+row}, {m_}")
    for row in range(2):
        k(f"v_min_u32 v{24+row}, -2, v{24+row}")
    for row in range(2):
        k(f"buffer_store_dword v{24+row}, v20, s[12:15], s{74+row} offen sc1")
    stamp(k, 17)
    stamp_out(k, 0)
    k("s_endpgm")
    k.c("================= X: modulation tables, then the final reduction =================")
    k("x_start:")
    stamp(k, 30)
    srd(k, 56, 48, 2048)
    mtag(212, 204)
    k(f"""v_bfe_u32 v213, v212, 8, 8
    v_bfe_u32 v214, v212, 16, 8
    v_lshrrev_b32 v215, 24, v212
    v_and_b32 v212, 0xff, v212
    v_lshlrev_b32 v8, 4, v0
    v_lshlrev_b32 v9, 2, v1
    v_add_u32 v9, {L_GR}, v9
    v_mov_b32 v10, {L_GR}
    v_lshlrev_b32 v11, 2, v204
    v_lshlrev_b32 v12, 1, v204
    s_getreg_b32 s39, hwreg(HW_REG_XCC_ID)
    s_and_b32 s39, s39, 7
    s_or_b32 s39, s39, s33
    s_lshr_b32 s40, s16, 2
    buffer_load_dwordx2 v[64:65], v12, s[56:59], 0 offen""")
    def gather(lab, between=None):
        k(f"s_mov_b32 s83, 0\n{lab}:\ns_mov_b32 s42, s41")
        for i in range(4):
            k(f"buffer_load_dwordx4 v[{32+4*i}:{35+4*i}], v11, s[12:15], s42 offen sc1")
            if i < 3: k("s_add_u32 s42, s42, 4096")
        if between: between()
        for i in range(4):
            k(f"s_waitcnt vmcnt({3-i})")
            for j in range(4): k(f"v_xor_b32 v{32+4*i+j}, v{212+j}, v{32+4*i+j}")
            for j in range(2): k(f"v_or3_b32 v17, v{32+4*i+2*j}, v{33+4*i+2*j}, {'0' if i + j == 0 else 'v17'}")
        k(f"v_and_b32 v17, 0xff, v17\nv_cmp_ne_u32 vcc, 0, v17\ns_cbranch_vccz {lab}x")
        spin(k, lab, E("SLP", 2))
        k(f"{lab}x:")
        for h in range(2):
            padd(k, 32 + 2*h, 32 + 2*h, 36 + 2*h); padd(k, 40 + 2*h, 40 + 2*h, 44 + 2*h)
        for h in range(2): padd(k, 60 + 2*h, 32 + 2*h, 40 + 2*h)
    def tab(v, off):
        k(f"""ds_write_b128 v200, v[{v}:{v+3}] offset:{off}
        ds_write_b32 v201, v{v} offset:{off+4096}
        ds_write_b32 v202, v{v+1} offset:{off+4096+12}
        ds_write_b32 v202, v{v+2} offset:{off+4096+8}
        ds_write_b32 v202, v{v+3} offset:{off+4096+4}""")
    def wred(v, op):
        wave_reduce_to63(k, [v], op)
        k(f"""s_mov_b32 exec_lo, 0
        s_mov_b32 exec_hi, 0x80000000
        ds_write_b32 v9, v{v}
        s_mov_b64 exec, -1""")
    def publish(lab, off, n, foff, rb, cp):
        m = max(n, 1)
        if cp == 0:
            for i in range(m): k(f"ds_read_b128 v[{rb+4*i}:{rb+4*i+3}], v8 offset:{off+i*8192}")
        k(f"v_mov_b32 v48, s32\nv_mov_b32 v49, s{(39, 33)[cp]}")
        if n == 0: k(f"s_cmp_ge_u32 s16, 4\ns_cbranch_scc1 {lab}a")
        for i in range(m):
            if cp == 0: k(f"s_waitcnt lgkmcnt({m-1-i})")
            k(f"s_add_u32 s42, s{23 if foff else 22}, {off + i*8192 + cp*65536}")
            k(f"buffer_store_dwordx4 v[{rb+4*i}:{rb+4*i+3}], v8, s[12:15], s42 offen {('', 'sc1')[cp]}")
        k(f"{lab}a:")
        if cp == 1 and foff == 0: return
        k(f"""s_waitcnt vmcnt(0)
        s_barrier
        s_cmp_lg_u32 s16, 0
        s_cbranch_scc1 {lab}b
        s_mov_b64 exec, 0xff
        buffer_store_dwordx4 v[48:51], v3, s[12:15], s79 offen offset:{foff + cp*512} {('', 'sc1')[cp]}""")
        if cp == 1: k("buffer_store_dwordx4 v[48:51], v3, s[12:15], s79 offen offset:512 sc1")
        k(f"s_mov_b64 exec, -1\n{lab}b:")
    k.c("first X of the group: waves 0-3 sa, 4-7 ca ; second X: waves 0-3 ga, 4-7 cb")
    k(f"""s_lshl_b32 s41, s65, 1
    s_add_u32 s41, s41, s40
    s_lshl_b32 s41, s41, 14
    s_add_u32 s41, s41, {WS_MP1}
    s_cmp_eq_u32 s40, 1
    s_cselect_b32 s43, 1.0, 0""")
    def second_tile():
        k("""s_cmp_lg_u32 s83, 0
        s_cbranch_scc1 x_t2
        s_waitcnt vmcnt(5)
        s_barrier
        s_cmp_ge_u32 s16, 4
        s_cbranch_scc1 x_t2""")
        gemv(2, 208, 0, st=False)
        stamp(k, 5)
        k("x_t2:")
    if E("XG", 8): k(f"s_sleep {E('XG', 8)}")
    gather("x_g0", second_tile)
    stamp(k, 14); stamp(k, 31)
    for h in range(2): rb2(k, 60 + 2*h, 17 + h)
    for n in range(4): k(f"v_add_f32 v{60+n}, s43, v{60+n}")
    for h in range(2): rb2(k, 60 + 2*h, 17 + h)
    k(f"""s_cmp_eq_u32 s65, 1
    s_cbranch_scc1 x_f1
    v_max3_f32 v17, abs(v60), abs(v61), abs(v62)
    v_max_f32_e64 v17, v17, abs(v63)""")
    wred(17, "v_max_f32")
    k(f"""s_cmp_eq_u32 s40, 1
    s_cselect_b32 s43, -1, 5
    s_cselect_b32 s42, {P_CS}, {P_SAS}
    v_add_u32 v203, s42, v203
    s_waitcnt lgkmcnt(0)
    s_barrier
    ds_read_b128 v[24:27], v10
    ds_read_b128 v[28:31], v10 offset:16
    s_waitcnt lgkmcnt(0)
    v_max3_f32 v24, v24, v25, v26
    v_max3_f32 v27, v27, v28, v29
    v_max3_f32 v24, v24, v30, v31
    v_max_f32 v24, v24, v27
    v_frexp_exp_i32_f32 v24, v24
    v_sub_u32 v25, s43, v24
    v_add_u32 v24, 5, v24""")
    for n in range(4): k(f"v_ldexp_f32 v{60+n}, v{60+n}, v25")
    k(f"""v_cvt_pk_f16_f32 v60, v60, v61
    v_cvt_pk_f16_f32 v62, v62, v63
    v_ldexp_f32 v50, 1.0, v24
    ds_write_b16 v203, v60
    ds_write_b16_d16_hi v203, v60 offset:16
    ds_write_b16 v203, v62 offset:32
    ds_write_b16_d16_hi v203, v62 offset:48
    s_waitcnt lgkmcnt(0)
    s_barrier""")
    stamp(k, 32)
    publish("x_pa", 0, 0, 0, 128, 0)
    k("s_branch x_p2nd\nx_f1:\ns_cmp_eq_u32 s40, 1\ns_cbranch_scc1 x_f2")
    tab(60, P_GA)
    k("s_branch x_f3\nx_f2:")
    tab(60, P_C1)
    for h in range(2): unpack_bf16(k, 56 + 2*h, 64 + h)
    for h in range(2): pmul(k, 56 + 2*h, 56 + 2*h, 60 + 2*h)
    tab(56, P_Q)
    padd(k, 18, 56, 58)
    k("v_add_f32 v17, v18, v19")
    wred(17, "v_add_f32")
    k(f"""x_f3:
    s_waitcnt lgkmcnt(0)
    s_barrier
    ds_read_b128 v[28:31], v10 offset:16""")
    stamp(k, 32)
    k("s_waitcnt lgkmcnt(0)")
    padd(k, 28, 28, 30)
    k("v_add_f32 v50, v28, v29")
    publish("x_pb", P_GA, 3, 0, 128, 0)
    k.c("second round: sb / gb, eight partial vectors (four per half of the workgroup)")
    k("x_p2nd:")
    stamp(k, 33)
    k(f"""
    s_add_u32 s41, s41, {WS_MP2 - WS_MP1}""")
    gather("x_g1")
    stamp(k, 34)
    k(f"""s_cmp_eq_u32 s40, 0
    s_cbranch_scc1 x_h0
    ds_write_b128 v11, v[60:63] offset:{P_END}
    s_waitcnt lgkmcnt(0)
    x_h0:
    s_barrier
    s_cbranch_scc0 x_h1
    ds_read_b128 v[56:59], v11 offset:{P_END}
    s_waitcnt lgkmcnt(0)""")
    for h in range(2): padd(k, 60 + 2*h, 60 + 2*h, 56 + 2*h)
    for h in range(2): rb2(k, 60 + 2*h, 17 + h)
    tab(60, P_SB)
    k(f"""s_waitcnt lgkmcnt(0)
    x_h1:
    s_barrier
    s_lshl_b32 s42, s65, 13
    s_add_u32 s23, s22, s42""")
    publish("x_pc", P_SB, 1, 256, 140, 0)
    stamp(k, 6); stamp(k, 35)
    k("s_cmp_eq_u32 s65, 1\ns_cbranch_scc1 x_w1")
    publish("x_pd", 0, 0, 0, 128, 1)
    k("s_branch x_w2\nx_w1:")
    publish("x_pe", P_GA, 3, 0, 128, 1)
    k("x_w2:")
    publish("x_pf", P_SB, 1, 256, 140, 1)
    k.c("final reduction: job s17 = (row, 16-column block)")
    k(f"""s_lshl_b32 s17, s64, 3
    s_add_u32 s17, s17, s16
    s_and_b32 s18, s17, 63
    s_lshl_b32 s78, s34, 11
    s_add_u32 s78, s78, {WS_KEY}
    v_and_b32 v4, 3, v0
    v_lshrrev_b32 v7, 4, v2
    v_lshlrev_b32 v5, 3, v4
    v_lshl_add_u32 v5, v7, 1, v5
    v_lshlrev_b32 v6, 10, v4
    v_lshl_add_u32 v6, v7, 2, v6
    v_lshrrev_b32 v86, 1, v4
    v_lshlrev_b32 v86, 9, v86
    v_and_b32 v87, 12, v5
    v_add_u32 v86, v86, v87
    v_and_b32 v87, 2, v5
    v_lshlrev_b32 v87, 3, v87
    s_and_b32 s30, s18, 1
    s_bfe_u32 s31, s18, 0x20001
    s_bfe_u32 s40, s18, 0x20003
    s_lshr_b32 s41, s18, 5
    s_lshl_b32 s45, s41, 10
    s_lshl_b32 s42, s30, 8
    s_add_u32 s45, s45, s42
    s_lshl_b32 s42, s40, 6
    s_add_u32 s45, s45, s42
    s_lshl_b32 s31, s31, 4
    s_add_u32 s45, s45, s31
    s_lshl_b32 s30, s30, 9
    s_add_u32 s31, s31, s30
    s_lshl_b32 s40, s40, 7
    s_add_u32 s31, s31, s40
    s_lshl_b32 s41, s41, 6
    s_add_u32 s31, s31, s41
    s_lshl_b32 s41, s34, 17
    s_add_u32 s31, s31, s41
    s_add_u32 s31, s31, {WS_PAR + 65536 + P_GB}
    s_lshl_b32 s44, s17, 12
    s_add_u32 s44, s44, {WS_PART}
    v_cmp_gt_u32 vcc, 32, v2
    v_mov_b32 v7, 0x7ff00000
    v_cndmask_b32 v7, v7, v3, vcc
    v_and_b32 v9, 15, v0
    v_lshlrev_b32 v9, 6, v9
    v_bfe_u32 v10, v0, 4, 1
    v_lshl_add_u32 v9, v10, 5, v9
    v_bfe_u32 v10, v0, 5, 1
    v_lshl_add_u32 v9, v10, 4, v9
    v_mov_b32 v10, {L_GR + 64}
    v_mov_b32 v22, 0""")
    for j in range(2):
        k(f"buffer_load_dwordx4 v[{40+4*j}:{43+4*j}], v9, s[56:59], 0 offen offset:{j*1024}")
    k("s_waitcnt vmcnt(0)")
    for i in range(8): unpack_bf16(k, 48 + 2*i, 40 + i)
    k(f"""s_cmp_lg_u32 s16, 0
    s_cbranch_scc1 x_ng""")
    k(f"s_lshl_b32 s79, s34, 10\ns_add_u32 s79, s79, {WS_FLX + 512 + 384}")
    poll_recs(k, "x_gb", 28, 22, 79, "1", sl=4)
    k(f"s_lshl_b32 s79, s34, 7\ns_add_u32 s79, s79, {WS_GO}")
    go_wait(k, "x_go", 79, 22, 28)
    if E("XKS", 4): k(f"s_sleep {E('XKS', 4)}")
    poll_keys(k, "x_pk", 24, 78, 4)
    top2(k, 24, 40, 41, 28)
    k(f"""v_mov_b32 v28, s40
    v_mov_b32 v29, s41
    ds_write_b64 v10, v[28:29]
    s_waitcnt lgkmcnt(0)
    x_ng:
    s_barrier
    ds_read_b64 v[28:29], v10
    s_waitcnt lgkmcnt(0)
    v_readfirstlane_b32 s40, v28
    v_readfirstlane_b32 s41, v29""")
    stamp(k, 13)
    k(f"""s_cmp_lt_u32 s17, 64
    s_cselect_b32 s40, s40, s41
    s_bfe_u32 s46, s40, 0x70005
    s_bfe_u32 s47, s40, 0x30002
    s_bfe_u32 s48, s40, 0x10001""")
    slot_of(42, 40)
    k(f"""s_add_u32 s42, s42, {WS_SLOT}
    s_add_u32 s43, s42, s45
    s_mov_b32 s83, 0
    x_ps:""")
    for j in range(2):
        k(f"buffer_load_dwordx4 v[{32+4*j}:{35+4*j}], v3, s[12:15], s42 offen offset:{j*1024} sc1")
    k("buffer_load_dword v40, v86, s[12:15], s43 offen offset:2048 sc1")
    k("buffer_load_dword v41, v6, s[12:15], s31 offen sc1")
    row_of(k, 41, 46, 47, 49)
    mirror_row(k, 49, 41)
    k("""s_cmp_eq_u32 s48, 1
    s_cselect_b32 s41, s49, s41
    s_lshl_b32 s41, s41, 11
    s_lshl_b32 s49, s18, 5
    s_add_u32 s41, s41, s49
    s_waitcnt vmcnt(0)""")
    chk_sent(k, range(32, 41), 9)
    k("s_cbranch_vccz x_psx")
    spin(k, "x_ps", 1)
    k("x_psx:")
    for i in range(8): unpack_bf16(k, 64 + 2*i, 32 + i)
    pmul(k, 8, 48, 64)
    for i in range(1, 8): pfma(k, 8, 48 + 2*i, 64 + 2*i, 8)
    k("v_add_f32 v8, v8, v9")
    wave_reduce_to63(k, [8])
    round_bf16(k, 8, 8)
    k(f"""v_mul_f32 v8, {LOG2E}, v8
    v_exp_f32 v8, v8
    v_add_f32 v8, 1.0, v8
    v_rcp_f32 v8, v8""")
    round_bf16(k, 8, 8)
    k("v_readlane_b32 s46, v8, 63")
    k("v_lshrrev_b32 v44, v87, v40\nv_lshlrev_b32 v44, 16, v44\nv_mul_f32 v80, s46, v41")
    stamp(k, 15)
    L = 16
    if E("SL4", 24): k(f"s_sleep {E('SL4', 24)}")
    k(f"s_mov_b32 s83, 0\nx_p2:")
    for j in range(4):
        k(f"buffer_load_dwordx4 v[{L+4*j}:{L+4*j+3}], v{7 if j == 3 else 3}, s[12:15], s44 offen offset:{j*1024} sc1")
    k("s_waitcnt vmcnt(0)")
    chk_sent(k, range(L, L + 16), 12)
    k("s_cbranch_vccz x_p3")
    spin(k, "x_p2", 0)
    k("x_p3:")
    stamp(k, 17)
    for h in range(2):
        padd(k, L + 2*h, L + 2*h, L + 4 + 2*h); padd(k, L + 8 + 2*h, L + 8 + 2*h, L + 12 + 2*h)
    for h in range(2): padd(k, L + 2*h, L + 2*h, L + 8 + 2*h)
    k(f"v_permlane32_swap_b32 v{L}, v{L+2}\nv_permlane32_swap_b32 v{L+1}, v{L+3}")
    padd(k, L, L, L + 2)
    k(f"v_permlane16_swap_b32 v{L}, v{L+1}\nv_add_f32 v{L}, v{L}, v{L+1}")
    for sh in (4, 8): k(f"v_add_f32_dpp v{L}, v{L}, v{L} row_ror:{sh} {DPPM}")
    k(f"""v_fmac_f32 v44, v{L}, v80
    s_mov_b32 exec_lo, 0x000f000f
    s_mov_b32 exec_hi, 0x000f000f
    v_cvt_pk_bf16_f32 v44, v44, v44
    buffer_store_short v44, v5, s[24:27], s41 offen""")
    stamp_out(k, 0)
    k("s_endpgm")

def gen():
    k = K(NAME)
    stamp_init(k)
    k("""s_cmp_ge_u32 s2, 256
    s_cbranch_scc1 k_done""")
    stamp(k, 0)
    head(k)
    role_F(k)
    n0 = len(k.lines)
    role_G(k)
    g = k.lines[n0:]; f = k.lines[:n0]
    ix = lambda L, t: [x.strip() for x in L].index(t)
    a, b = ix(g, "@@L0@@"), ix(g, "@@L1@@")
    ld = g[a+1:b]; g = g[:a] + g[b+1:]
    a = ix(g, "@@L@@"); g = g[:a] + ld + g[a+1:]
    a = ix(f, "@@G@@"); k.lines = f[:a] + g + f[a+1:]
    k("k_done:\ns_endpgm")
    return k

HEADER = """; adaLN + FNet mixing + MoD block, gfx950.  Generated by gen/gen18.py (hand-written generator).
"""
def tables():
    import numpy as np
    def h2(a, b):
        return int(np.float16(a).view(np.uint16)) | (int(np.float16(b).view(np.uint16)) << 16)
    def f4(a): return int(np.float32(a).view(np.uint32))
    cs = lambda x: (math.cos(2 * math.pi * x), math.sin(2 * math.pi * x))
    w = []
    for arr in range(4):
        for q in range(4):
            for l in range(64):
                n, h = l & 31, l >> 5
                e = 16 * ((n >> 2) & 1) + 4 * (n >> 3) + (n & 3)
                for i in range(4):
                    idx = 8 * q + 4 * h + i
                    c, s_ = cs((idx * e % 32) / 32.0) if arr < 2 else cs(idx * e / 1024.0)
                    w.append((h2(c, s_), h2(-s_, c), f4(c), f4(s_))[arr])
    for var in range(2):
        for mt in range(2):
            for l in range(64):
                m, g = l & 15, l >> 4
                k1, p = 8 * mt + (m >> 1), m & 1
                for i in range(4):
                    j0 = 4 * g + i
                    if var == 0:
                        c, s_ = cs((j0 * k1 % 16) / 16.0)
                        v = (h2(c, s_), h2(-s_, c))[p]
                    elif k1 == 0:
                        v = h2(1.0 if p == 0 else (-1.0) ** j0, 0)
                    elif k1 < 8:
                        c, s_ = cs((j0 * k1 % 16) / 16.0)
                        v = h2((c, -s_)[p], 0)
                    else:
                        c, s_ = cs(j0 * (8 + 16 * (k1 - 8)) / 256.0)
                        v = h2(0, (c, -s_)[p])
                    w.append(v)
    t = ".p2align 8\n.type tables,@object\ntables:\n"
    for i in range(0, len(w), 8):
        t += ".long " + ",".join("0x%x" % x for x in w[i:i+8]) + "\n"
    return t + f".size tables, {4*len(w)}\nall_end:\n"

def main(out):
    k = gen()
    t = HEADER + f"; @launch grid=(256,1,1) block=(512,1,1) lds={LDS}\n"
    t += '.amdgcn_target "amdgcn-amd-amdhsa--gfx950"\n.text\n' + k.text() + 'code_end:\n' + tables()
    t += '.section .rodata,"a"\n' + k.desc()
    open(out, "w").write(t)
if __name__ == "__main__":
    main(sys.argv[1] if len(sys.argv) > 1 else "adaLN_cond__spectral_fnet__moe_arch_mod__prompt.s")
```

```python
import math, sys, os
from asmgen import K, f32
from gen2 import (srd, P, padd, psub, pmul, pfma, pmul_s, pfma_s, psub_s, unpack_bf16, round_bf16, DPPM,
                  row_allreduce, wave_reduce_to63, pos16, stamp, stamp_init, stamp_out, chk_sent,
                  A_X, A_WR, A_WG, A_WU, A_WD, A_C, A_WM, A_OUT, A_DBG, A_WS, WS_SIZE)
from gen4 import E, SPIN, NAME

WS_Z    = 0x0100000
WS_STA  = 0x1000000
WS_STB  = 0x1008000
WS_GO   = 0x1010000
WS_REC  = 0x1012000
WS_FIN  = 0x1018000
WS_MPA  = 0x1300000
WS_MPB  = 0x1380000
WS_SENT = 0x1100000
WS_PART = WS_SENT
WS_XA   = WS_SENT + 0x80000
WS_XB   = WS_SENT + 0xC0000
WS_KEY  = 0x1040000
WS_SLOT = 0x1200000
P_CS, P_SAS, P_GA, P_GAM, P_Q, P_QM, P_C1, P_C1M, P_SB, P_SBM, P_GB, P_GBM, P_END = (
    0, 2048, 4096, 8192, 12288, 16384, 20480, 24576, 28672, 32768, 36864, 40960, 45056)
L_C = 0; L_P = 16384; L_X = L_P + P_END; L_U = L_X + 32768; L_R = L_U + 32768; L_KEY = L_R + 32768
L_ST = L_KEY + 1024
LDS = 163840
XW = 64
assert L_KEY + 256 <= LDS
LOG2E = f32(-math.log2(math.e))
SL2 = E("SL2", 4)

class VM:
    def __init__(self, k): self.k = k; self.q = []
    def __call__(self, tag, text): self.k(text); self.q.append(tag)
    def wait(self, tag, extra=""):
        i = len(self.q) - 1 - self.q[::-1].index(tag)
        self.k(f"s_waitcnt vmcnt({len(self.q) - 1 - i}) {extra}")

def cmp_recs(k, base):
    k(f"v_cmp_ne_u64 vcc, s[32:33], v[{base}:{base+1}]")
def spin(k, lab, sl):
    k(f"""{f"s_sleep {sl}" if sl else ""}
    s_add_u32 s83, s83, 1
    s_cmp_lt_u32 s83, {SPIN}
    s_cbranch_scc1 {lab}""")
def poll_recs(k, lab, base, vaddr, soff, mask, sl=SL2):
    k(f"s_mov_b32 s83, 0\ns_mov_b64 exec, {mask}\n{lab}:")
    k(f"buffer_load_dwordx2 v[{base}:{base+1}], v{vaddr}, s[12:15], s{soff} offen sc1")
    k("s_waitcnt vmcnt(0)")
    cmp_recs(k, base)
    k(f"s_cbranch_vccz {lab}y")
    spin(k, lab, sl)
    k(f"{lab}y:\ns_mov_b64 exec, -1\n{lab}x:")
def poll_keys(k, lab, base, soff, tmp, sl=1):
    k(f"""v_lshlrev_b32 v{tmp}, 7, v2
    s_add_u32 s42, s{soff}, 8192
    s_mov_b32 s83, 0
    s_mov_b64 vcc, -1
    s_mov_b64 s[40:41], -1
    {lab}:
    s_mov_b64 exec, vcc
    s_cbranch_execz {lab}a
    buffer_load_dwordx4 v[{base}:{base+3}], v{tmp}, s[12:15], s{soff} offen sc1
    {lab}a:
    s_mov_b64 exec, s[40:41]
    s_cbranch_execz {lab}b
    buffer_load_dwordx4 v[{base+4}:{base+7}], v{tmp}, s[12:15], s42 offen sc1
    {lab}b:
    s_mov_b64 exec, -1
    s_waitcnt vmcnt(0)
    v_cmp_ne_u64 vcc, s[32:33], v[{base+2}:{base+3}]
    v_cmp_ne_u64 s[40:41], s[32:33], v[{base+6}:{base+7}]
    v_max_u32 v{tmp+1}, v{base}, v{base+4}
    v_min_u32 v{tmp+2}, v{base}, v{base+4}
    s_or_b64 s[20:21], vcc, s[40:41]
    s_cbranch_scc0 {lab}x""")
    spin(k, lab, sl)
    k(f"{lab}x:")
def top2(k, base, tmp):
    m1, m2, c = tmp + 1, tmp + 2, tmp + 3
    k(f"v_mov_b32 v{c}, v{m1}")
    k(f"v_max3_u32 v{m2}, v{m2}, v{base+1}, v{base+5}")
    wave_reduce_to63(k, [c], "v_max_u32")
    k(f"v_readlane_b32 s40, v{c}, 63")
    k(f"v_cmp_eq_u32 vcc, s40, v{m1}")
    k(f"v_cndmask_b32 v{c}, v{m1}, v{m2}, vcc")
    wave_reduce_to63(k, [c], "v_max_u32")
    k(f"v_readlane_b32 s41, v{c}, 63")
def go_wait(k, lab, soff, vz, vd):
    poll_recs(k, lab, vd, vz, soff, "1", sl=E("SLG", 3))
    if E("SLG2", 1): k(f"s_sleep {E('SLG2', 1)}")
def nonce_issue(k, sp, off):
    k(f"s_load_dwordx2 s[32:33], s[{sp}:{sp+1}], {off}")
def nonce_finish(k, lab, sp, off, vt):
    k(f"""s_waitcnt lgkmcnt(0)
    s_cmp_lg_u32 s32, 0
    s_cbranch_scc1 {lab}x
    s_load_dwordx2 s[32:33], s[{sp}:{sp+1}], {off}
    s_mov_b32 s83, 0
    v_mov_b32 v{vt+2}, 0
    s_waitcnt lgkmcnt(0)
    {lab}:
    s_cmp_lg_u32 s32, 0
    s_cbranch_scc1 {lab}x
    global_load_dwordx2 v[{vt}:{vt+1}], v{vt+2}, s[{sp}:{sp+1}] sc1
    s_waitcnt vmcnt(0)
    v_readfirstlane_b32 s32, v{vt}
    v_readfirstlane_b32 s33, v{vt+1}""")
    spin(k, lab, 0)
    k(f"{lab}x:")
def rb2(k, v, t):
    k(f"v_cvt_pk_bf16_f32 v{t}, v{v}, v{v+1}")
    unpack_bf16(k, v, t)
def row_of(k, d, q, w, t1):
    k(f"""s_lshr_b32 s{t1}, s{q}, 4
    s_and_b32 s{d}, s{q}, 15
    s_lshl_b32 s{d}, s{d}, 4
    s_add_u32 s{d}, s{d}, s{t1}
    s_lshr_b32 s{t1}, s{q}, 3
    s_cmp_eq_u32 s{t1}, 1
    s_cselect_b32 s{t1}, 120, 0
    s_sub_u32 s{d}, s{d}, s{t1}
    s_lshl_b32 s{t1}, s{w}, 8
    s_add_u32 s{d}, s{d}, s{t1}
    s_cmp_ge_u32 s{w}, 4
    s_cselect_b32 s{t1}, 896, 0
    s_cmp_eq_u32 s{q}, 0
    s_cselect_b32 s{t1}, s{t1}, 0
    s_sub_u32 s{d}, s{d}, s{t1}""")
def mirror_row(k, d, t):
    k(f"""s_sub_u32 s{d}, 2048, s{t}
    s_cmp_eq_u32 s{t}, 0
    s_cselect_b32 s{d}, 1024, s{d}""")

def mtag(k, d, idx):
    k(f"""v_mov_b32 v{d}, s32
    v_mov_b32 v{d+1}, s33
    v_and_b32 v{d+2}, 7, v{idx}
    v_lshlrev_b32 v{d+2}, 3, v{d+2}
    v_lshrrev_b64 v[{d}:{d+1}], v{d+2}, v[{d}:{d+1}]""")
def mtag4(k, d):
    k(f"""v_mov_b32 v{d}, s32
    v_mov_b32 v{d+1}, s33
    v_and_b32 v{d+2}, 1, v0
    v_cmp_eq_u32 vcc, 1, v{d+2}
    v_cndmask_b32 v{d}, v{d}, v{d+1}, vcc
    v_bfe_u32 v{d+1}, v{d}, 8, 8
    v_bfe_u32 v{d+2}, v{d}, 16, 8
    v_lshrrev_b32 v{d+3}, 24, v{d}
    v_and_b32 v{d}, 0xff, v{d}""")
def untag(k, regs, tg, acc, first=True):
    regs = list(regs)
    for i, r in enumerate(regs): k(f"v_xor_b32 v{r}, v{tg+(i&3)}, v{r}")
    for i in range(0, len(regs), 2):
        k(f"v_or3_b32 v{acc}, v{regs[i]}, v{regs[i+1]}, {'0' if first and i == 0 else f'v{acc}'}")
def tagchk(k, acc):
    k(f"v_and_b32 v{acc}, 0xff, v{acc}\nv_cmp_ne_u32 vcc, 0, v{acc}")

def stats(k, vm, pre, lastpre, extra=()):
    S = 108; R = 112
    k(f"s_mov_b32 s4, 0x3f803f80\ns_mov_b32 s5, {f32(1.0/1024)}")
    for h in range(2):
        for jj in range(2):
            vm.wait(f"x{h}{jj}")
            if h == 0 and jj == 0: nonce_issue(k, 20, 0)
            if 2*h + jj < len(extra): extra[2*h + jj]()
            for q in range(4):
                r = XW + 8*jj + 4*h + q
                first = (h == 0 and q == 0)
                k(f"v_dot2_f32_bf16 v{S+jj}, v{r}, s4, {'0' if first else f'v{S+jj}'}")
                k(f"v_dot2_f32_bf16 v{S+2+jj}, v{r}, v{r}, {'0' if first else f'v{S+2+jj}'}")
    k("s_nop 1")
    def red1(js):
        for j in js: k(f"v_permlane32_swap_b32 v{S+j}, v{S+j+1}")
        for j in js: k(f"v_add_f32 v{S+j}, v{S+j}, v{S+j+1}")
        regs = [S + j for j in js]
        row_allreduce(k, regs)
        for r in regs: k(f"v_add_f32_dpp v{r}, v{r}, v{r} row_bcast:15 row_mask:0xa bank_mask:0xf")
    red1((0, 2))
    k.c("lanes 31 / 63 hold the two rows")
    V = S + 2
    k(f"""v_mul_f32 v{S}, s5, v{S}
    v_mul_f32 v{V}, s5, v{V}
    v_mul_f32 v{R+4}, v{S}, v{S}
    v_cvt_pk_bf16_f32 v{R+5}, -v{S}, -v{S}
    v_sub_f32 v{V}, v{V}, v{R+4}
    v_mul_f32 v{R+6}, {f32(512.0)}, v{V}
    v_cmp_gt_f32 vcc, v{R+4}, v{R+6}
    v_readlane_b32 s40, v{R+5}, 31
    s_or_b32 s41, vcc_lo, vcc_hi
    s_bitcmp1_b32 s41, 31
    s_cbranch_scc1 {pre}_slowvar
    {pre}_var:""")
    round_bf16(k, V, V)
    k(f"v_add_f32 v{V}, {f32(1e-5)}, v{V}")
    round_bf16(k, V, V)
    k(f"v_sqrt_f32 v{V}, v{V}")
    k(f"s_and_b32 s40, s40, 0xffff\nv_mov_b32 v{R+2}, 0xffff0000")
    round_bf16(k, V, V)
    k(f"""v_mul_f32 v{V}, {f32(16.0)}, v{V}
    v_and_or_b32 v{R+2}, v{R+5}, v{R+2}, s40
    v_rcp_f32 v{R+1}, v{V}""")
    nonce_finish(k, f"{pre}_nn", 20, 64, 120)
    k(f"""v_mov_b32 v{R+3}, s32
    v_mov_b32_dpp v{R}, v{R+1} row_bcast:31 row_mask:0xc bank_mask:0xf
    v_mov_b32 v{R+4}, 0""")
    if lastpre: vm.wait(lastpre)
    k("s_mov_b32 exec_lo, 0\ns_mov_b32 exec_hi, 0x80000000")
    k(f"buffer_store_dwordx4 v[{R}:{R+3}], v{R+4}, s[12:15], s62 offen")
    k(f"v_lshlrev_b32 v{R+5}, 4, v1\nv_add_u32 v{R+5}, {L_ST}, v{R+5}\nds_write_b128 v{R+5}, v[{R}:{R+3}]")
    k("s_mov_b64 exec, -1")
    def slow():
        k.c("---- rare: |mean| >> std, recompute the variance in two passes ----")
        k(f"{pre}_slowvar:")
        U2 = 120
        k(f"v_lshlrev_b32 v{R+6}, 16, v{R+5}")
        k(f"v_readlane_b32 s44, v{R+6}, 31\nv_readlane_b32 s46, v{R+6}, 63")
        for jj in range(2):
            sr = 44 + 2 * jj
            for i in range(8):
                unpack_bf16(k, U2, XW + jj * 8 + i)
                k(f"v_pk_add_f32 {P(U2)}, {P(U2)}, s[{sr}:{sr+1}] op_sel_hi:[1,0]")
                if i == 0: pmul(k, U2 + 2, U2, U2)
                else: pfma(k, U2 + 2, U2, U2, U2 + 2)
            k(f"v_add_f32 v{S+2+jj}, v{U2+2}, v{U2+3}")
        k(f"v_add_f32 v{R+6}, v{R+6}, v{S}")
        red1((2,))
        k(f"""v_mul_f32 v{S+2}, s5, v{S+2}
        v_fma_f32 v{S+2}, -v{R+6}, v{R+6}, v{S+2}
        v_max_f32 v{S+2}, 0, v{S+2}
        s_branch {pre}_var""")
    return slow

def stats_b(k):
    k(f"""v_add_u32 v116, {L_ST}, v3
    s_mov_b64 exec, 0xff
    ds_read_b128 v[112:115], v116
    s_waitcnt lgkmcnt(0)
    buffer_store_dwordx4 v[112:115], v3, s[12:15], s63 offen sc1
    s_mov_b64 exec, -1""")

def head(k):
    k(f"""s_load_dwordx2 s[4:5], s[0:1], {A_X}
    s_load_dwordx4 s[24:27], s[0:1], {A_OUT}
    s_load_dwordx2 s[6:7], s[0:1], {A_WS}
    s_load_dwordx4 s[56:59], s[0:1], {A_C}
    s_load_dwordx4 s[48:51], s[0:1], {A_WR}
    s_load_dwordx4 s[52:55], s[0:1], {A_WU}
    s_memrealtime s[32:33]
    v_lshrrev_b32 v1, 6, v0
    v_and_b32 v2, 63, v0
    v_readfirstlane_b32 s16, v1
    v_lshlrev_b32 v3, 4, v2
    v_mov_b32 v4, 0
    s_getpc_b64 s[36:37]
    h_pc:
    s_and_b32 s34, s2, 7
    s_bfe_u32 s35, s2, 0x40003
    s_cmp_lg_u32 s16, 7
    s_cbranch_scc1 h_npf
    s_lshr_b32 s42, s2, 3
    s_lshl_b32 s42, s42, 11
    v_lshl_add_u32 v4, v2, 7, s42
    v_min_u32 v4, all_end-h_pc-4, v4
    s_mov_b64 exec, 0xffff
    global_load_dword v199, v4, s[36:37]
    s_mov_b64 exec, -1
    h_npf:
    s_mov_b32 s11, 0x00020000
    s_mov_b32 s14, {WS_SIZE}
    s_mov_b32 s15, 0x00020000
    s_bitcmp0_b32 s2, 7
    s_cbranch_scc1 g_start""")
HQ = ["x00", "x01", "x10", "x11", "touch"]

def role_F(k):
    vm = VM(k); vm.q = list(HQ)
    N16, G4, VO, TR, UW, XD, XDM, SLA, SLM, V70, FA, BP, A3 = 4, 5, 6, 8, 12, 13, 14, 15, 16, 17, 18, 19, 22
    ZL, W, D1R, D1I, BRE, BIM, TC, TS, XA2, XB2, GA, GAM, Q, QM, CS = 24, 40, 56, 72, 88, 104, 120, 136, 152, 168, 184, 200, 216, 232, 248
    AB, S, XB, AH, D0, D, UO, A2, UB = 216, 24, 40, 224, 228, 56, 184, 236, 152
    T = 248; TG = 244; FT = 8; PFD = 6; FLW = E("FLW", 4); XR = E("XR", 1)
    k(f"""s_lshl_b32 s60, s16, 19
    s_lshl_b32 s61, s35, 15
    s_add_u32 s60, s60, s61
    s_lshl_b32 s61, s34, 11
    s_add_u32 s60, s60, s61
    s_add_u32 s61, s60, 16384
    s_lshl_b32 s62, s34, 11
    s_lshl_b32 s63, s35, 7
    s_add_u32 s62, s62, s63
    s_add_u32 s63, s62, {WS_STB}
    s_lshl_b32 s42, s16, 4
    s_add_u32 s62, s62, s42
    s_add_u32 s62, s62, {WS_STA}
    v_mov_b32 v116, 0
    s_mov_b32 s10, {2048*1024*2}
    s_waitcnt lgkmcnt(0)
    s_mov_b32 s8, s4
    s_mov_b32 s9, s5
    s_mov_b32 s12, s6
    s_mov_b32 s13, s7""")
    stamp(k, 1)
    for h in range(2):
        for jj in range(2):
            k(f"buffer_load_dwordx4 v[{XW+8*jj+4*h}:{XW+8*jj+4*h+3}], v3, s[8:11], s{60+jj} offen offset:{h*1024}")
    k(f"""s_mov_b64 exec, 1
    buffer_load_dword v215, v116, s[12:15], s62 offen sc1
    s_mov_b64 exec, -1
    s_branch f_start
    @@G@@
    f_start:
    s_mov_b32 s20, s26
    s_mov_b32 s21, s27
    s_mov_b32 s26, 4194304
    s_mov_b32 s27, 0x00020000
    s_mov_b32 s22, s50
    s_mov_b32 s23, s51
    s_mov_b32 s28, s54
    s_mov_b32 s29, s55
    s_add_u32 s58, s36, tables-h_pc
    s_addc_u32 s59, s37, 0""")
    k.c("s36 = k0 slot of this wave in the second radix-16 step ; s37 = column-block pair read after the exchange")
    k(f"""s_lshr_b32 s36, s35, 1
    s_and_b32 s36, s36, 4
    s_xor_b32 s36, s36, s16
    s_and_b32 s37, s34, 4
    s_xor_b32 s37, s37, s16""")
    k(f"""s_lshl_b32 s3, s34, 4
    s_add_u32 s3, s3, s35
    v_and_b32 v{N16}, 15, v0
    v_bfe_u32 v{G4}, v0, 4, 2
    v_lshrrev_b32 v{T}, 3, v2
    v_lshlrev_b32 v{T}, 18, v{T}
    v_lshlrev_b32 v{T+1}, 1, v{G4}
    v_xor_b32 v{T+1}, v{T+1}, v0
    v_and_b32 v{T+1}, 7, v{T+1}
    v_lshl_add_u32 v{T+7}, v{T+1}, 4, v{T}
    v_lshlrev_b32 v{VO}, 16, v{G4}
    v_lshl_add_u32 v{VO}, v{N16}, 4, v{VO}
    s_lshl_b32 s60, s16, 15
    s_lshl_b32 s61, s34, 11
    s_add_u32 s60, s60, s61
    s_lshl_b32 s61, s35, 7
    s_add_u32 s60, s60, s61
    s_lshl_b32 s61, s16, 12
    s_add_u32 s61, s61, {L_X}
    s_lshl_b32 s64, s36, 19
    s_lshl_b32 s65, s35, 3
    s_and_b32 s66, s34, 1
    s_lshl_b32 s66, s66, 2
    s_add_u32 s65, s65, s66
    s_lshr_b32 s66, s34, 1
    s_add_u32 s65, s65, s66
    s_lshl_b32 s65, s65, 8
    s_add_u32 s64, s64, s65
    s_add_u32 s64, s64, {WS_Z}
    s_add_u32 s65, s64, 32768
    s_add_u32 s66, s64, {8*32768}
    s_add_u32 s67, s64, {9*32768}
""")
    def tile(i):
        k(f"s_mov_b32 m0, s61\ns_add_u32 s42, s60, {(i&1)*8*262144 + (i>>1)*16384}\ns_add_u32 s61, s61, 1024")
        vm("tile", f"buffer_load_dwordx4 v{T+7}, s[8:11], s42 offen lds")
    def tabs():
        k(f"""s_cmp_eq_u32 s36, 0
        s_cselect_b32 s42, 2048, 0
        s_add_u32 s42, s42, 16384
        v_add_u32 v{T}, s42, v3""")
        vm("tab", f"global_load_dwordx4 v[{A2}:{A2+3}], v{T}, s[58:59]")
        vm("tab", f"global_load_dwordx4 v[{A2+4}:{A2+7}], v{T}, s[58:59] offset:1024")
    def tabs2():
        k(f"s_lshl_b32 s42, s16, 11\ns_mov_b32 m0, s42\nv_add_u32 v{T}, s42, v3")
        vm("tab", f"global_load_lds_dwordx4 v{T}, s[58:59]")
        vm("tab", f"global_load_lds_dwordx4 v{T}, s[58:59] offset:1024")
    TL = E("TL", 2)
    k("s_barrier")
    tabs()
    if TL == 0:
        for i in range(4): tile(i)
    def rowaddr():
        row_of(k, 30, 3, 16, 42)
        mirror_row(k, 31, 30)
        k(f"""s_lshl_b32 s18, s30, 11
        s_lshl_b32 s19, s31, 11
        s_sub_u32 s75, s19, 2048
        s_lshl_b32 s68, s16, 12
        s_add_u32 s68, s68, {L_R}""")
    rowaddr()
    k.c("first-step matrix: lane m = 2*k0+p, rows j1 = 4g+i, angle k0*(16*j1+j0)/256")
    k(f"""v_lshrrev_b32 v{T}, 1, v{N16}
    v_and_b32 v{T+1}, 1, v0
    v_cmp_eq_u32 vcc, 1, v{N16}
    v_cndmask_b32_e64 v{T+2}, v{T}, 0, vcc
    v_cndmask_b32_e64 v{T}, v{T}, 8, vcc
    v_cndmask_b32_e64 v{T+1}, v{T+1}, 0, vcc
    v_mad_u32_u24 v{T+3}, v{T}, v{G4}, v{T+1}
    v_lshlrev_b32 v{T+3}, 5, v{T+3}
    v_mad_u32_u24 v{T+3}, v{T+2}, v1, v{T+3}
    v_cvt_f32_u32 v{T}, v{T}
    v_cvt_f32_u32 v{T+2}, v{T+2}
    v_cvt_f32_u32 v{T+3}, v{T+3}
    v_mul_f32 v{T}, {f32(1.0/16)}, v{T}
    v_mul_f32 v{T+2}, {f32(1.0/256)}, v{T+2}
    v_mul_f32 v{AB}, {f32(1.0/128)}, v{T+3}""")
    for i in range(1, 4): k(f"v_add_f32 v{AB+i}, v{AB+i-1}, v{T}")
    for i in range(4): k(f"v_add_f32 v{AB+4+i}, v{AB+i}, v{T+2}")
    for i in range(8): k(f"v_cos_f32 v{AB+i}, v{AB+i}")
    UWA, URA = 212, 213
    k(f"""v_lshrrev_b32 v{T}, 2, v2
    v_lshlrev_b32 v{TR}, 7, v{T}
    v_bfe_u32 v{T}, v0, 3, 2
    v_lshl_add_u32 v{TR}, v{T}, 5, v{TR}
    v_and_b32 v{T}, 3, v0
    v_lshl_add_u32 v{TR}, v{T}, 3, v{TR}
    v_lshl_add_u32 v{TR}, v1, 12, v{TR}
    v_xor_b32 v{TR+1}, 32, v{TR}
    v_xor_b32 v{TR+2}, 64, v{TR}
    v_xor_b32 v{TR+3}, 96, v{TR}
    v_lshlrev_b32 v{UW}, 13, v{G4}
    v_lshl_add_u32 v{UW}, v{N16}, 4, v{UW}
    v_lshlrev_b32 v7, 5, v{G4}
    v_and_b32 v{T}, 1, v0
    v_lshl_add_u32 v7, v{T}, 10, v7
    v_and_b32 v{T}, 2, v0
    v_lshl_add_u32 v7, v{T}, 3, v7
    s_lshl_b32 s70, s34, 11
    s_lshl_b32 s71, s16, 7
    s_add_u32 s71, s71, s70
    s_add_u32 s71, s71, {WS_STA}
    s_lshr_b32 s42, s16, 1
    s_lshl_b32 s42, s42, 8
    s_and_b32 s43, s16, 1
    s_lshl_b32 s43, s43, 3
    s_add_u32 s42, s42, s43
    s_add_u32 s42, s42, {L_U}
    v_add_u32 v{UWA}, s42, v{UW}
    s_lshl_b32 s42, s36, 12
    s_add_u32 s42, s42, {L_U}
    v_add_u32 v{URA}, s42, v3""")
    slow1 = stats(k, vm, "f", None, [(lambda i=i: tile(i)) for i in range(4)] if TL == 1 else ())
    vm.q.append("sta")
    if TL == 3: k("s_barrier")
    if TL >= 2:
        for i in range(4): tile(i)
    k(f"s_lshl_b32 s69, s16, 11\nv_add_u32 v{T+6}, s69, v3")
    k.c("the first row is this wave's output row: keep it")
    k(f"v_add_u32 v{T}, s68, v3")
    for h in range(2): k(f"ds_write_b128 v{T}, v[{XW+4*h}:{XW+4*h+3}] offset:{h*1024}")
    k.c("tag bits: 8 bits of the nonce per 16-byte piece, all 64 bits over eight neighbouring lanes")
    k(f"""v_mov_b32 v{TG}, s32
    v_mov_b32 v{TG+1}, s33
    v_and_b32 v{T}, 4, v0
    v_cmp_eq_u32 vcc, 4, v{T}
    v_and_b32 v{T}, 3, v0
    v_lshlrev_b32 v{T}, 2, v{T}
    v_cndmask_b32 v{TG}, v{TG}, v{TG+1}, vcc
    v_lshrrev_b32 v{TG}, v{T}, v{TG}
    s_mov_b32 s54, 0x00010001
    s_mov_b32 s55, 0xfffefffe
    s_mov_b32 s46, 0x05040100
    s_mov_b32 s47, 0x07060302""")
    for i in range(1, 4): k(f"v_lshrrev_b32 v{TG+i}, {i}, v{TG}")
    for i in range(4): k(f"v_and_b32 v{TG+i}, s54, v{TG+i}")
    k.c("---- LN1 statistics of this wave's 32 rows (same-die copy first, now and then the write-through copy) ----")
    stl = lambda so: f"""s_mov_b32 exec_lo, 0x000f000f
    s_mov_b32 exec_hi, 0x000f000f
    buffer_load_dwordx4 v[{S}:{S+3}], v7, s[12:15], s{so} offen sc1"""
    k(f"s_waitcnt vmcnt({E('STW', 2)})")
    k(stl(71) + "\ns_mov_b64 exec, -1\ns_mov_b32 s83, 0\ns_waitcnt vmcnt(1)")
    stamp(k, 2)
    for jj in range(2):
        for nt in range(4):
            b = XB + (jj*4 + nt)*2
            k(f"ds_read_b64_tr_b16 v[{b}:{b+1}], v{TR+nt} offset:{L_X + jj*2048}")
    k(f"""s_mov_b32 exec_lo, 0x000f000f
    s_mov_b32 exec_hi, 0x000f000f
    f_st:
    s_waitcnt vmcnt(0)
    v_cmp_ne_u32 vcc, s32, v{S+3}
    s_mov_b64 exec, -1
    s_cbranch_vccnz f_str
    f_stx:
    s_setprio 3""")
    def st_retry():
        k(f"""f_str:
        s_and_b32 s42, s83, 31
        s_cmp_lg_u32 s42, 24
        s_cbranch_scc1 f_sb1""")
        stats_b(k)
        k(f"""f_sb1:
        s_cmp_eq_u32 s42, 31
        s_cselect_b32 s42, {WS_STB - WS_STA}, 0
        s_add_u32 s42, s42, s71""")
        if E("SLS", 0): k(f"s_sleep {E('SLS', 0)}")
        k(stl(42))
        spin(k, "f_st", 0)
        k("s_waitcnt vmcnt(0)\ns_mov_b64 exec, -1\ns_branch f_stx")
    vm.q = []
    stamp(k, 3)
    BM = S + 4; MM = S + 8
    for i in range(4): k(f"v_mov_b32_dpp v{MM+i}, v{S+2} row_newbcast:{i} {DPPM}")
    for jj in range(2):
        for i in range(4):
            k(f"v_mul_f32_dpp v{AB+4*jj+i}, v{S+jj}, v{AB+4*jj+i} row_newbcast:{i} {DPPM}")
        for hh in range(2): k(f"v_perm_b32 v{BM+2*jj+hh}, v{MM+2*hh+1}, v{MM+2*hh}, s{46+jj}")
        for hh in range(2): k(f"v_cvt_pk_bf16_f32 v{AH+2*jj+hh}, v{AB+4*jj+2*hh}, v{AB+4*jj+2*hh+1}")
        k(f"v_mfma_f32_16x16x16_bf16 v[{D0+4*jj}:{D0+4*jj+3}], v[{AH+2*jj}:{AH+2*jj+1}], v[{BM+2*jj}:{BM+2*jj+1}], 0")
    k("s_waitcnt lgkmcnt(0)")
    def s1m(nt):
        for jj in range(2):
            d = D + (nt*2 + jj)*4; b = XB + (jj*4 + nt)*2
            k(f"v_mfma_f32_16x16x16_bf16 v[{d}:{d+3}], v[{AH+2*jj}:{AH+2*jj+1}], v[{b}:{b+1}], v[{D0+4*jj}:{D0+4*jj+3}]")
    def s1c(nt):
        for ii in range(2):
            for jj in range(2):
                d = D + (nt*2 + jj)*4
                k(f"v_cvt_pk_f16_f32 v{UO+(nt*2+ii)*2+jj}, v{d+2*ii}, v{d+2*ii+1}")
            u = UO + (nt*2 + ii)*2
            k(f"ds_write_b64 v{UWA}, v[{u}:{u+1}] offset:{ii*4096 + nt*1024}")
    def early():
        k("s_mov_b32 m0, s68\ns_cmp_eq_u32 s34, 0\ns_cbranch_scc1 f_r0\nf_nr:")
        for u in range(2): k(f"buffer_load_dwordx4 v3, s[8:11], s75 offen offset:{2048+u*1024} lds")
        k("s_mov_b32 m0, s69")
        for u in range(2): k(f"global_load_lds_dwordx4 v{T+6}, s[58:59] offset:{u*1024}")
    s1m(0); s1m(1); early(); s1m(2); s1c(0); s1m(3); s1c(1); s1c(2); s1c(3)
    k("s_waitcnt lgkmcnt(0)\ns_barrier")
    for nt in range(4):
        k(f"ds_read_b128 v[{UB+4*nt}:{UB+4*nt+3}], v{URA} offset:{nt*1024}")
    for mt in range(2):
        for nt in range(4):
            if mt == 0: k(f"s_waitcnt lgkmcnt({3-nt})")
            d = D + (mt*4 + nt)*4
            k(f"v_mfma_f32_16x16x32_f16 v[{d}:{d+3}], v[{A2+4*mt}:{A2+4*mt+3}], v[{UB+4*nt}:{UB+4*nt+3}], 0")
    for mt in range(2):
        for ii in range(2):
            o = UO + (mt*2 + ii)*4
            for nt in range(4):
                d = D + (mt*4 + nt)*4
                k(f"v_cvt_pk_f16_f32 v{o+nt}, v{d+2*ii}, v{d+2*ii+1}")
            for nt in range(4): k(f"v_and_or_b32 v{o+nt}, v{o+nt}, s55, v{TG+nt}")
            vm("z", f"buffer_store_dwordx4 v[{o}:{o+3}], v{VO}, s[12:15], s{64+mt*2+ii} offen sc1")
    stamp(k, 4)
    XRA, XRB = 200, 208
    k("s_setprio 0")
    k.c("radix-8 matrix: lane m = 2*kk+p, inputs r = 2g, 2g+1, angle r*t/2048")
    k("s_mov_b32 s43, 0")
    row_of(k, 40, 3, 43, 42)
    k(f"""v_lshrrev_b32 v{T}, 1, v{N16}
    v_and_b32 v{T+1}, 1, v0
    v_lshlrev_b32 v{T+2}, 8, v{T}
    v_add_u32 v{T+2}, s40, v{T+2}
    s_cmp_lg_u32 s3, 0
    s_cbranch_scc1 f_a3n
    v_cmp_lt_u32 s[44:45], 3, v{T}
    v_subrev_u32 v{T+3}, 896, v{T+2}
    v_cndmask_b32 v{T+2}, v{T+2}, v{T+3}, s[44:45]
    v_cmp_eq_u32 vcc, 1, v{N16}
    v_mov_b32 v{T+3}, 1024
    v_cndmask_b32 v{T+2}, v{T+2}, v{T+3}, vcc
    v_cndmask_b32_e64 v{T+1}, v{T+1}, 0, vcc
    f_a3n:
    v_lshlrev_b32 v{T+3}, 1, v{G4}
    v_mul_u32_u24 v{T+3}, v{T+3}, v{T+2}
    v_lshl_add_u32 v{T+3}, v{T+1}, 9, v{T+3}
    v_add_u32 v{T+5}, v{T+3}, v{T+2}
    v_add_u32 v{T+4}, 1536, v{T+3}
    v_add_u32 v{T+6}, 1536, v{T+5}""")
    for i in range(3, 7): k(f"v_and_b32 v{T+i}, 2047, v{T+i}")
    for i in range(3, 7): k(f"v_cvt_f32_u32 v{T+i}, v{T+i}")
    for i in range(3, 7): k(f"v_mul_f32 v{T+i}, {f32(1.0/2048)}, v{T+i}")
    for i in range(3, 7): k(f"v_cos_f32 v{T+i}, v{T+i}")
    k(f"""s_cbranch_scc1 f_a3m
    v_cmp_gt_u32 vcc, 2, v{N16}
    v_cndmask_b32_e64 v{T+1}, 1.0, 0.5, vcc
    v_mul_f32 v{T+3}, v{T+3}, v{T+1}
    v_mul_f32 v{T+5}, v{T+5}, v{T+1}
    v_cndmask_b32 v{T+4}, 0, v{T+3}, s[44:45]
    v_cndmask_b32 v{T+6}, 0, v{T+5}, s[44:45]
    v_cndmask_b32 v{T+3}, v{T+3}, 0, s[44:45]
    v_cndmask_b32 v{T+5}, v{T+5}, 0, s[44:45]
    f_a3m:
    v_cvt_pk_f16_f32 v{A3}, v{T+3}, v{T+4}
    v_cvt_pk_f16_f32 v{A3+1}, v{T+5}, v{T+6}""")
    k(f"""v_and_b32 v{T}, 3, v0
    v_bfe_u32 v{T+1}, v0, 2, 1
    v_bfe_u32 v{T+2}, v0, 3, 2
    v_bfe_u32 v{T+3}, v0, 5, 1
    v_lshlrev_b32 v{XD}, 10, v{T+1}
    v_lshl_add_u32 v{SLA}, v{T+3}, 8, v{XD}
    v_lshl_add_u32 v{SLA}, v{T+2}, 6, v{SLA}
    v_lshl_add_u32 v{SLA}, v{T}, 4, v{SLA}
    v_lshl_add_u32 v{XD}, v{T+2}, 8, v{XD}
    v_lshl_add_u32 v{XD}, v{T}, 6, v{XD}
    v_lshl_add_u32 v{XD}, v{T+3}, 5, v{XD}
    v_xor_b32 v{XDM}, 2016, v{XD}
    v_add_u32 v{XD}, s68, v{XD}
    v_add_u32 v{XDM}, s68, v{XDM}""")
    k("s_waitcnt vmcnt(4)\ns_barrier")
    for n in range(2):
        for u in range(2):
            k(f"ds_read_b128 v[{XRA+8*n+4*u}:{XRA+8*n+4*u+3}], v{(XD, XDM)[n]} offset:{n*2048+u*16}")
    k("s_cmp_lg_u32 s16, 0\ns_cbranch_scc1 f_sb2")
    stats_b(k)
    k("f_sb2:")
    k(f"""s_lshl_b32 s42, s3, 13
    s_lshl_b32 s43, s16, 10
    s_add_u32 s42, s42, s43
    s_add_u32 s42, s42, {WS_SLOT}""")
    for i in range(4): k(f"v_mov_b32 v{W+i}, -1")
    k(f"""buffer_store_dwordx4 v[{W}:{W+3}], v3, s[12:15], s42 offen sc1
    v_lshrrev_b32 v{FA}, 3, v2
    v_lshlrev_b32 v{FA}, 14, v{FA}
    v_and_b32 v{T}, 0x70, v3
    v_add_u32 v{FA}, v{FA}, v{T}
    s_lshl_b32 s80, s3, 7
    s_add_u32 s80, s80, {WS_KEY}
    s_cmp_lg_u32 s16, 0
    s_cbranch_scc1 f_nkw
    buffer_store_dwordx4 v[{W}:{W+3}], v{FA}, s[12:15], s80 offen sc1
    f_nkw:""")
    k(f"""s_lshl_b32 s72, s3, 15
    s_lshl_b32 s73, s37, 12
    s_add_u32 s72, s72, s73
    s_add_u32 s72, s72, {WS_Z}
""")
    k("s_waitcnt lgkmcnt(0)")
    for a_, base in enumerate((BRE, BIM, TC, TS)):
        for q in range(4):
            k(f"ds_read_b128 v[{base+4*q}:{base+4*q+3}], v3 offset:{L_C+a_*4096+q*1024}")
    for i in range(8): unpack_bf16(k, XA2 + 2*i, XRA + i)
    for p in range(16):
        src = XRB + (p >> 1); dst = XB2 + ((16 - p) & 15)
        k(f"v_and_b32 v{dst}, 0xffff0000, v{src}" if p & 1 else f"v_lshlrev_b32 v{dst}, 16, v{src}")
    k(f"s_waitcnt vmcnt({1 + E('ZW', 0)})")
    stamp(k, 5)
    k("s_barrier")
    if E("ZDEL", 0): k(f"s_sleep {E('ZDEL', 0)}")
    for i in range(4):
        k(f"buffer_load_dwordx4 v[{ZL+4*i}:{ZL+4*i+3}], v3, s[12:15], s72 offen offset:{i*1024} sc1")
    k(f"""v_xor_b32 v{SLM}, 1520, v{SLA}
    v_subrev_u32 v{T}, s68, v{XD}
    v_add_u32 v{T}, 32, v{T}
    v_bfe_u32 v{BP}, v{T}, 5, 1
    v_lshlrev_b32 v{BP}, 5, v{BP}
    v_bfe_u32 v{T+1}, v{T}, 8, 2
    v_lshl_add_u32 v{BP}, v{T+1}, 3, v{BP}
    v_bfe_u32 v{T+1}, v{T}, 10, 1
    v_lshl_add_u32 v{BP}, v{T+1}, 2, v{BP}
    v_bfe_u32 v{T+1}, v{T}, 6, 2
    v_add_lshl_u32 v{BP}, v{T+1}, v{BP}, 2
    s_lshl_b32 s74, s34, 14
    s_add_u32 s74, s74, {WS_KEY}
    s_lshl_b32 s42, s37, 9
    s_add_u32 s42, s42, {L_X}
    v_add_u32 v{UW}, s42, v{UW}""")
    k.c("w_down tile [64 x 512] of cluster s17 (none: empty descriptor)")
    k(f"""s_mul_i32 s17, s34, 7
    s_lshr_b32 s42, s35, 1
    s_add_u32 s17, s17, s42
    s_lshl_b32 s42, s17, 6
    s_lshr_b32 s43, s16, 2
    s_lshl_b32 s43, s43, 5
    s_add_u32 s42, s42, s43
    s_and_b32 s43, s16, 1
    s_lshl_b32 s43, s43, 4
    s_add_u32 s42, s42, s43
    s_and_b32 s43, s16, 2
    s_lshl_b32 s43, s43, 1
    s_add_u32 s42, s42, s43
    s_lshl_b32 s38, s42, 11
    s_and_b32 s43, s35, 1
    s_lshl_b32 s43, s43, 10
    s_add_u32 s38, s38, s43
    s_lshl_b32 s39, s16, 13
    s_add_u32 s39, s39, {L_U}
    s_mov_b32 s48, s28
    s_mov_b32 s49, s29
    s_mov_b32 s50, {1024*3584*2}
    s_mov_b32 s51, 0x00020000""")
    DN = [int(x) for x in os.environ.get("DN", "0,4,4").split(",")]
    assert XR != 2
    def down(site, t):
        d0 = sum(DN[:site])
        if DN[site] == 0 or E("NOW", 0): return
        k(f"s_cmp_ge_u32 s35, 14\ns_cbranch_scc1 f_nd{site}")
        for d in range(d0, d0 + DN[site]):
            rows = 8 * (d >> 2) + (d & 3)
            k(f"s_add_u32 s43, s39, {d*1024}\ns_mov_b32 m0, s43\ns_add_u32 s42, s38, {rows*2048}")
            if d: k(f"v_xor_b32 v{t}, {d*32}, v3")
            k(f"buffer_load_dwordx4 v{t if d else 3}, s[48:51], s42 offen nt lds")
        k(f"f_nd{site}:")
    k.c("wave a = w&3 handles columns 4a..4a+3 of every lane's block: natural, mirrored (two) and f16 positions")
    PN, PM0, PM1, PH, FV = 4, 5, 6, 235, 236
    k(f"""v_lshlrev_b32 v{V70}, 7, v{N16}
    s_and_b32 s40, s16, 3
    s_lshl_b32 s76, s40, 10
    v_add_u32 v{PN}, s76, v3
    v_xor_b32 v{PM1}, {63*16}, v3
    s_sub_u32 s42, 4096, s76
    s_and_b32 s42, s42, 3072
    v_add_u32 v{PM0}, s42, v{PM1}
    s_sub_u32 s42, 3072, s76
    v_add_u32 v{PM1}, s42, v{PM1}
    v_subrev_u32 v{T}, s68, v{XD}
    v_lshrrev_b32 v{T}, 1, v{T}
    s_lshl_b32 s42, s40, 2
    v_add_u32 v{T}, s42, v{T}""")
    pos16(k, PH, T, T + 1)
    mtag4(k, FT)
    k(f"""s_add_u32 s76, s76, {WS_FIN}
    s_mov_b32 s77, {WS_REC}
    s_xor_b32 s79, s35, {E("GOMM", 1)}
    s_xor_b32 s43, s16, {E("GOW", 1)}
    s_or_b32 s79, s79, s43""")
    k.c("finished modulation vectors: waves 0-3 take 1+ca and ga (and sa), waves 4-7 q and 1+cb, all the records")
    FL = GA
    k(f"""s_cmp_ge_u32 s16, 4
    s_cselect_b32 s64, 4, 1
    s_cselect_b32 s65, 3, 2
    s_lshl_b32 s64, s64, 12
    s_lshl_b32 s65, s65, 12
    s_add_u32 s64, s64, s76
    s_add_u32 s65, s65, s76
    s_lshl_b32 s42, s16, 12
    s_add_u32 s42, s42, {L_X}
    v_add_u32 v7, s42, v3
    s_cmp_eq_u32 s3, 0
    s_cselect_b64 s[52:53], -1, 1""")
    def fin1():
        for i in range(2): k(f"buffer_load_dwordx4 v[{FL+4*i}:{FL+4*i+3}], v3, s[12:15], s{64+i} offen sc1")
        k(f"""s_mov_b64 exec, 0xffff
        buffer_load_dwordx4 v[{FV}:{FV+3}], v{V70}, s[12:15], s77 offen sc1
        s_mov_b64 exec, s[52:53]
        buffer_load_dwordx4 v[{FL+8}:{FL+11}], v3, s[12:15], s76 offen sc1
        s_mov_b64 exec, -1""")
    for i in range(4): k(f"v_mov_b32 v{FL+8+i}, v{FT+i}")
    def tab(v, off):
        k(f"""ds_write_b128 v{PN}, v[{v}:{v+3}] offset:{L_P+off}
        ds_write_b32 v{PM0}, v{v} offset:{L_P+off+4096}
        ds_write_b32 v{PM1}, v{v+1} offset:{L_P+off+4096+12}
        ds_write_b32 v{PM1}, v{v+2} offset:{L_P+off+4096+8}
        ds_write_b32 v{PM1}, v{v+3} offset:{L_P+off+4096+4}""")
    def tab16(v, off):
        k(f"""v_cvt_pk_f16_f32 v{v}, v{v}, v{v+1}
        v_cvt_pk_f16_f32 v{v+2}, v{v+2}, v{v+3}
        ds_write_b16 v{PH}, v{v} offset:{L_P+off}
        ds_write_b16_d16_hi v{PH}, v{v} offset:{L_P+off+16}
        ds_write_b16 v{PH}, v{v+2} offset:{L_P+off+32}
        ds_write_b16_d16_hi v{PH}, v{v+2} offset:{L_P+off+48}""")
    def pread(off, base):
        return [f"ds_read_b128 v[{base+4*q}:{base+4*q+3}], v3 offset:{L_P+off+q*1024}" for q in range(4)]
    ZC = W; ZT = T
    def zx(cbi):
        for nt in range(4):
            for p in range(2):
                k(f"v_xor_b32 v{ZC+8*cbi+2*nt+p}, v{ZL+8*cbi+4*p+nt}, v{TG+nt}")
    def r8(cbi):
        for nt in (0, 2, 1, 3):
            b = ZC + 8*cbi + 2*nt; d = D1R + (cbi*4 + nt)*4
            k(f"v_mfma_f32_16x16x16_f16 v[{d}:{d+3}], v[{A3}:{A3+1}], v[{b}:{b+1}], 0")
            k(f"v_or3_b32 v{ZT}, v{b}, v{b+1}, {'0' if cbi + nt == 0 else f'v{ZT}'}")
    k(f"s_waitcnt vmcnt({E('F1W', 3)})")
    fin1()
    k("s_mov_b32 s83, 0\ns_waitcnt vmcnt(6)\nf_zc:")
    k.c("---- radix-8 over r ----")
    zx(0); r8(0)
    k("s_waitcnt vmcnt(4)")
    stamp(k, 6)
    zx(1); r8(1)
    k(f"""v_and_b32 v{ZT}, s54, v{ZT}
    v_cmp_ne_u32 vcc, 0, v{ZT}
    s_cbranch_vccnz f_zr
    f_zx:""")
    stamp(k, 7)
    for bh in range(2):
        for ii in range(2):
            o = ZL + (bh*2 + ii)*4
            for cbi in range(2):
                for al in range(2):
                    d = D1R + (cbi*4 + 2*al + bh)*4
                    k(f"v_cvt_pk_f16_f32 v{o+2*cbi+al}, v{d+2*ii}, v{d+2*ii+1}")
            k(f"ds_write_b128 v{UW}, v[{o}:{o+3}] offset:{ii*4096 + bh*256}")
    k(f"""s_mov_b32 s83, 0
    s_waitcnt vmcnt(0)
    f_pv:""")
    stamp(k, 30)
    untag(k, range(FL, FL + 12), FT, T)
    k(f"""v_cmp_ne_u64 s[44:45], s[32:33], v[{FV}:{FV+1}]
    v_and_b32 v{T}, 0xff, v{T}
    v_cmp_ne_u32 vcc, 0, v{T}
    v_add_f32_dpp v{FV+3}, v{FV+2}, v{FV+2} quad_perm:[1,0,3,2] {DPPM}
    s_and_b32 s44, s44, 0xffff
    s_or_b32 vcc_lo, vcc_lo, s44
    s_cbranch_vccnz f_pr
    f_pw:
    v_add_f32_dpp v{FV+3}, v{FV+3}, v{FV+3} quad_perm:[2,3,0,1] {DPPM}
    s_cmp_ge_u32 s16, 4
    s_cbranch_scc1 f_ph""")
    for qp in ("[1,0,3,2]", "[2,3,0,1]"):
        k(f"v_max_f32_dpp v{FV+2}, v{FV+2}, v{FV+2} quad_perm:{qp} {DPPM}")
    k(f"""v_max_f32_dpp v{FV+2}, v{FV+2}, v{FV+2} row_half_mirror {DPPM}
    v_frexp_exp_i32_f32 v{FV+2}, v{FV+2}
    v_readfirstlane_b32 s42, v{FV+2}
    s_sub_u32 s43, -1, s42
    s_add_u32 s44, s42, 5
    s_sub_u32 s45, 5, s42""")
    for n in range(4): k(f"v_ldexp_f32 v{FL+n}, v{FL+n}, s43")
    tab16(FL, P_CS)
    for n in range(4): k(f"v_ldexp_f32 v{FL+4+n}, v{FL+4+n}, s44")
    tab(FL + 4, P_GA)
    k("s_cmp_lg_u32 s3, 0\ns_cbranch_scc1 f_pvx")
    for n in range(4): k(f"v_ldexp_f32 v{FL+8+n}, v{FL+8+n}, s45")
    tab16(FL + 8, P_SAS)
    k("s_branch f_pvx\nf_ph:")
    tab(FL, P_Q); tab(FL + 4, P_C1)
    k(f"f_pvx:\nv_readlane_b32 s66, v{FV+3}, 12")
    if E("PRIO", 0):
        k("s_setprio 1\ns_cmp_ge_u32 s16, 4\ns_cbranch_scc1 f_pp\ns_setprio 2\nf_pp:")
    k("s_waitcnt lgkmcnt(0)")
    stamp(k, 8)
    k("s_barrier")
    k.c("================= 1024-point DFT, LN2, router score =================")
    for j in range(2):
        k(f"ds_read_b128 v[{CS+4*j}:{CS+4*j+3}], v3 offset:{L_P+P_CS+j*1024}")
        k(f"ds_read_b128 v[{ZL+8*j}:{ZL+8*j+3}], v7 offset:{2*j*1024}")
        k(f"ds_read_b128 v[{ZL+8*j+4}:{ZL+8*j+7}], v7 offset:{(2*j+1)*1024}")
    def modul(j):
        for i in range(4*j, 4*j + 4):
            b = i & 1
            k(f"v_pk_mul_f16 v{W+i}, v{ZL+i}, v{CS+(i>>1)} op_sel:[0,{b}] op_sel_hi:[1,{b}]")
    def st1(j, part):
        Dd, B = (D1R, BRE) if part == 0 else (D1I, BIM)
        cc = "0" if j == 0 else f"v[{Dd}:{Dd+15}]"
        k(f"v_mfma_f32_32x32x16_f16 v[{Dd}:{Dd+15}], v[{W+4*j}:{W+4*j+3}], v[{B+4*j}:{B+4*j+3}], {cc}")
    k("s_cmp_eq_u32 s30, 0\ns_cbranch_scc1 f_sp")
    k("s_waitcnt lgkmcnt(4)"); modul(0); st1(0, 0)
    k("s_waitcnt lgkmcnt(3)"); modul(1); st1(0, 1)
    k("s_waitcnt lgkmcnt(1)"); modul(2); st1(1, 0)
    k("s_waitcnt lgkmcnt(0)"); modul(3); st1(1, 1)
    k("f_st1:")
    pr1 = pread(P_GA, GA) + pread(P_GAM, GAM) + pread(P_Q, Q) + pread(P_QM, QM)
    for j in range(2, 4):
        for part in range(2):
            st1(j, part)
            for _ in range(2): k(pr1.pop(0))
    down(1, 7)
    stamp(k, 9)
    Y = BIM
    def twid(j):
        vr = ZL + 8 * (j & 1); vi = vr + 4
        for h in range(2):
            pmul(k, vr + 2*h, D1R + 4*j + 2*h, TC + 4*j + 2*h)
            pmul(k, vi + 2*h, D1I + 4*j + 2*h, TC + 4*j + 2*h)
        for h in range(2):
            pfma(k, vr + 2*h, D1I + 4*j + 2*h, TS + 4*j + 2*h, vr + 2*h)
            pfma(k, vi + 2*h, D1R + 4*j + 2*h, TS + 4*j + 2*h, vi + 2*h, nega=True)
        for i in range(4):
            k(f"v_cvt_pk_f16_f32 v{W+4*j+i}, v{vr+i}, v{vi+i}")
    def st2(j, Yd=Y, B=BRE):
        cr = "0" if j == 0 else f"v[{Yd}:{Yd+15}]"
        k(f"v_mfma_f32_32x32x16_f16 v[{Yd}:{Yd+15}], v[{W+4*j}:{W+4*j+3}], v[{B+4*j}:{B+4*j+3}], {cr}")
    k("s_cmp_eq_u32 s30, 0\ns_cbranch_scc1 f_sp2")
    for j in range(4):
        twid(j)
        if j > 0: st2(j - 1)
        if j < 2:
            for x in pr1[4*j:4*j+4]: k(x)
    st2(3)
    k.c("GO hint from one workgroup per replica")
    YS = 12
    def x1rows(YA, YB):
        k(f"ds_bpermute_b32 v{YS}, v{BP}, v{YB}")
        k("s_waitcnt lgkmcnt(1)")
        for i in range(8): pfma(k, XA2 + 2*i, GA + 2*i, YA + 2*i, XA2 + 2*i)
        for i in range(1, 8): pfma(k, XB2 + 2*i, GAM + 2*i, YB + 2*i, XB2 + 2*i)
        k(f"v_fmac_f32 v{XB2+1}, v{GAM+1}, v{YB+1}")
        k("s_waitcnt lgkmcnt(0)")
        k(f"v_fmac_f32 v{XB2}, v{GAM}, v{YS}")
    x1rows(Y, Y)
    k("f_join:")
    stamp(k, 10)
    C1, C1M, SBv, SBM, GBv, GBM = BRE, TC, TS, BIM, GA, GAM
    for x in pread(P_C1, C1) + pread(P_C1M, C1M): k(x)
    RQ = ZL; TT_ = W
    KW, KR = 17, 7
    k(f"""v_lshrrev_b32 v{KW}, 3, v0
    v_and_b32 v{KW}, 60, v{KW}
    v_add_u32 v{KW}, {L_KEY}, v{KW}
    v_and_b32 v{KR}, 0xf0, v3
    v_lshrrev_b32 v{KR}, 2, v{KR}
    v_add_u32 v{KR}, {L_KEY}, v{KR}""")
    rows = ((XA2, Q, D1R, TT_, 56, C1, SBv, GBv), (XB2, QM, D1I, TT_ + 8, 58, C1M, SBM, GBM))
    def sums23(src):
        for i in range(7, -1, -1):
            for n, r_ in enumerate(rows):
                x = src[n] + 2*i; t = r_[3]
                if i == 7:
                    pmul(k, t + 2, x, x); pmul(k, t + 4, x, r_[1] + 2*i)
                else:
                    pfma(k, t + 2, x, x, t + 2); pfma(k, t + 4, x, r_[1] + 2*i, t + 4)
    for i in range(6, -1, -1):
        for r_ in rows: padd(k, r_[3], r_[0] + 14 if i == 6 else r_[3], r_[0] + 2*i)
    sums23((XA2, XB2))
    for n, r_ in enumerate(rows):
        for j in range(3): k(f"v_add_f32 v{RQ+4*n+j}, v{r_[3]+2*j}, v{r_[3]+2*j+1}")
    def red(js):
        for j in js: k(f"v_permlane32_swap_b32 v{RQ+j}, v{RQ+4+j}")
        for j in js: k(f"v_add_f32 v{RQ+j}, v{RQ+j}, v{RQ+4+j}")
        regs = [RQ + j for j in js]
        row_allreduce(k, regs)
        for r in regs: k(f"v_add_f32_dpp v{r}, v{r}, v{r} row_bcast:15 row_mask:0xa bank_mask:0xf")
    k("s_cmp_eq_u32 s79, 0\ns_cbranch_scc1 f_go\nf_ngo:")
    red((0, 1, 2))
    k.c("lanes 31 / 63 hold rows A / B")
    k(f"""v_mul_f32 v{RQ}, {f32(1.0/1024)}, v{RQ}
    v_mul_f32 v{RQ+1}, {f32(1.0/1024)}, v{RQ+1}
    v_mul_f32 v{RQ+4}, v{RQ}, v{RQ}
    v_fma_f32 v{RQ+2}, -v{RQ}, s66, v{RQ+2}
    v_sub_f32 v{RQ+1}, v{RQ+1}, v{RQ+4}
    v_mul_f32 v{RQ+5}, 4.0, v{RQ+1}
    v_cmp_gt_f32 vcc, v{RQ+4}, v{RQ+5}
    v_lshrrev_b32 v{RQ+6}, 4, v0
    s_lshl_b32 s43, s3, 5
    v_and_or_b32 v{RQ+6}, v{RQ+6}, 30, s43
    s_or_b32 s42, vcc_lo, vcc_hi
    s_bitcmp1_b32 s42, 31
    s_cbranch_scc1 f_slow2
    f_var2:""")
    round_bf16(k, RQ + 1, RQ + 1)
    k(f"v_add_f32 v{RQ+1}, {f32(1e-5)}, v{RQ+1}")
    round_bf16(k, RQ + 1, RQ + 1)
    k(f"v_sqrt_f32 v{RQ+1}, v{RQ+1}")
    round_bf16(k, RQ + 1, RQ + 1)
    k(f"""v_rcp_f32 v{RQ+1}, v{RQ+1}
    s_mov_b32 s42, 0x80000000
    s_movk_i32 s43, 0xf000
    s_mov_b32 exec_lo, s42
    s_mov_b32 exec_hi, s42
    v_mul_f32 v{RQ+2}, v{RQ+2}, v{RQ+1}
    v_ashrrev_i32 v{RQ+4}, 31, v{RQ+2}
    v_or_b32 v{RQ+4}, s42, v{RQ+4}
    v_xor_b32 v{RQ+2}, v{RQ+2}, v{RQ+4}
    v_and_or_b32 v{RQ+2}, v{RQ+2}, s43, v{RQ+6}
    ds_write_b32 v{KW}, v{RQ+2}
    v_mul_f32 v{RQ}, -v{RQ}, v{RQ+1}
    s_mov_b64 exec, -1""")
    for n in range(2):
        k(f"v_readlane_b32 s{60+n}, v{RQ+2}, {31+32*n}")
        k(f"v_readlane_b32 s{56+2*n}, v{RQ}, {31+32*n}")
        k(f"v_readlane_b32 s{57+2*n}, v{RQ+1}, {31+32*n}")
    k("s_waitcnt lgkmcnt(0)")
    stamp(k, 11)
    KV = RQ + 8
    k(f"""s_barrier
    ds_read_b32 v{KV}, v{KR}
    s_cmp_eq_u32 s16, 0
    s_waitcnt lgkmcnt(0)
    s_cbranch_scc1 f_key
    f_nkey:""")
    stamp(k, 12)
    HP = W; OA, OBB = Q, Q + 8
    def pk(dst, src, n):
        for i in range(8):
            a, b = (2*i, 2*i + 1) if n == 0 else ((16 - 2*i) & 15, 15 - 2*i)
            k(f"v_cvt_pk_bf16_f32 v{dst+i}, v{src+a}, v{src+b}")
    def norm(n):
        X2, _, Tt, _, sr = rows[n][:5]
        for i in range(8):
            k(f"v_pk_fma_f32 {P(Tt+2*i)}, {P(X2+2*i)}, s[{sr}:{sr+1}], s[{sr}:{sr+1}] op_sel:[0,1,0] op_sel_hi:[1,1,0]")
    k(f"""v_cmp_lt_u32 vcc, s60, v{KV}
    v_cmp_lt_u32 s[44:45], s61, v{KV}
    s_and_b32 s62, vcc_lo, 0xffff
    s_and_b32 s63, s44, 0xffff
    s_bcnt1_i32_b32 s62, s62
    s_bcnt1_i32_b32 s63, s63""")
    for n in range(2):
        k(f"s_cmp_lt_u32 s{62+n}, 2\ns_cbranch_scc1 f_cand{n}\nf_nc{n}:")
    def cands():
        for n in range(2):
            Tt = rows[n][2]; XO = (OA, OBB)[n]; SA_ = (SLA, SLM)[n]
            k(f"""f_cand{n}:
            s_setprio 2
            s_lshl_b32 s43, s3, 1
            s_add_u32 s42, s{62+n}, s43
            s_lshl_b32 s42, s42, 12
            s_add_u32 s42, s42, {WS_SLOT}""")
            norm(n)
            for i in range(8): pmul(k, Tt + 2*i, Tt + 2*i, rows[n][5] + 2*i)
            pk(XO, Tt, n)
            for u in range(2):
                for i in range(4*u, 4*u + 4): k(f"v_min_u32 v{XO+i}, -2, v{XO+i}")
                k(f"buffer_store_dwordx4 v[{XO+4*u}:{XO+4*u+3}], v{SA_}, s[12:15], s42 offen offset:{u*512} sc1")
            pk(HP + 8*n, rows[n][0], n)
            for i in range(8): k(f"v_min_u32 v{HP+8*n+i}, -2, v{HP+8*n+i}")
            for u in range(2):
                k(f"buffer_store_dwordx4 v[{HP+8*n+4*u}:{HP+8*n+4*u+3}], v{SA_}, s[12:15], s42 offen offset:{2048+u*512} sc1")
            k(f"s_setprio 0\ns_branch f_nc{n}")
    stamp(k, 13)
    k.c("sb (waves 0-3) and gb (waves 4-7) for the output rows")
    fin2 = f"buffer_load_dwordx4 v[{CS}:{CS+3}], v3, s[12:15], s64 offen sc1"
    k(f"""s_lshr_b32 s42, s16, 2
    s_lshl_b32 s43, s42, 13
    s_lshl_b32 s42, s42, 12
    s_add_u32 s64, s76, s42
    s_add_u32 s64, s64, {5*4096}
    v_add_u32 v{PN}, s43, v{PN}
    v_add_u32 v{PM0}, s43, v{PM0}
    v_add_u32 v{PM1}, s43, v{PM1}
    {fin2}""")
    if E("DB", 1): k("s_barrier")
    down(2, 7)
    norm(0); norm(1)
    k(f"""s_mov_b32 s83, 0
    s_cmp_ge_u32 s35, 14
    s_cbranch_scc1 f_p2c
    s_waitcnt vmcnt({0 if E("NOW", 0) else DN[2]})
    f_p2e:""")
    untag(k, range(CS, CS + 4), FT, YS)
    tagchk(k, YS)
    k("s_cbranch_vccnz f_p2r\nf_p2w:")
    tab(CS, P_SB)
    k("s_waitcnt lgkmcnt(0)\ns_barrier")
    for n in range(2):
        for x in pread((P_SB, P_SBM)[n], rows[n][6]) + pread((P_GB, P_GBM)[n], rows[n][7]): k(x)
    for n in range(2):
        X2, _, Tt, _, sr, c1, sb, gb = rows[n]
        k(f"s_waitcnt lgkmcnt({12 - 8*n})")
        for i in range(8): pfma(k, Tt + 2*i, Tt + 2*i, c1 + 2*i, sb + 2*i)
        k(f"s_waitcnt lgkmcnt({8 - 8*n})")
        for i in range(8): pfma(k, X2 + 2*i, gb + 2*i, Tt + 2*i, X2 + 2*i)
        pk((OA, OBB)[n], X2, n)
    k.c("rows back to memory order through LDS; written once the selection is known (the reducers write the two selected rows)")
    k(f"""v_subrev_u32 v{XD}, {L_R - L_X}, v{XD}
    v_subrev_u32 v{XDM}, {L_R - L_X}, v{XDM}
    s_sub_u32 s68, s68, {L_R - L_X}
    v_add_u32 v7, s68, v3""")
    for n in range(2):
        for u in range(2):
            XO = (OA, OBB)[n]
            k(f"ds_write_b128 v{(XD, XDM)[n]}, v[{XO+4*u}:{XO+4*u+3}] offset:{n*2048+u*16}")
    k("s_waitcnt lgkmcnt(0)")
    for i in range(4):
        k(f"ds_read_b128 v[{QM+4*i}:{QM+4*i+3}], v7 offset:{i*1024}")
    OUTP = E("OUTP", 1)
    def outst(lab, cond):
        for n in range(2):
            k(cond(n, f"{lab}{n}"))
            for j in range(2):
                k(f"buffer_store_dwordx4 v[{QM+8*n+4*j}:{QM+8*n+4*j+3}], v3, s[24:27], s{18+n} offen offset:{j*1024} sc1")
            k(f"{lab}{n}:")
    notsel = lambda n, l: f"s_cmp_eq_u32 s{60+n}, s40\ns_cbranch_scc1 {l}\ns_cmp_eq_u32 s{60+n}, s41\ns_cbranch_scc1 {l}"
    if OUTP == 0:
        k("s_waitcnt lgkmcnt(0)")
        outst("f_o", lambda n, l: f"s_cmp_lt_u32 s{62+n}, 2\ns_cbranch_scc1 {l}")
    BD, HA, AG, R, AD = 88, 120, 128, 144, 148
    L_A = L_KEY + 128
    k.c("down projection: tr addr, act write / read, PART store")
    k(f"""v_lshrrev_b32 v{R}, 2, v2
    v_and_b32 v{R+1}, 7, v{R}
    v_and_b32 v{R+2}, 3, v0
    v_lshl_add_u32 v{AD}, v1, 2, v{R+2}
    v_xor_b32 v{AD}, v{AD}, v{R+1}
    v_lshlrev_b32 v{AD}, 5, v{AD}
    v_lshl_add_u32 v{AD}, v{R}, 10, v{AD}
    v_add_u32 v{AD}, {L_U}, v{AD}
    v_cmp_eq_u32 s[44:45], 1, v{R+2}
    v_cmp_eq_u32 s[46:47], 2, v{R+2}
    v_cmp_eq_u32 s[72:73], 3, v{R+2}
    v_bfe_u32 v{R+1}, v0, 4, 2
    v_and_b32 v{R}, 1, v{R}
    v_lshlrev_b32 v{AD+5}, 7, v{R}
    v_lshl_add_u32 v{AD+5}, v{R+1}, 4, v{AD+5}
    v_add_u32 v{AD+5}, {L_A}, v{AD+5}
    v_lshlrev_b32 v{AD+6}, 4, v{R+2}
    v_lshl_add_u32 v{AD+6}, v{R}, 18, v{AD+6}
    v_lshl_add_u32 v{AD+6}, v1, 14, v{AD+6}
    v_lshl_add_u32 v{AD+6}, v{R+1}, 12, v{AD+6}
    v_and_b32 v{R}, 15, v0
    v_lshlrev_b32 v{AD+4}, 1, v{R}
    v_lshl_add_u32 v{AD+4}, v1, 5, v{AD+4}
    v_lshl_add_u32 v{AD+4}, v{R+1}, 7, v{AD+4}
    v_add_u32 v{AD+4}, {L_A}, v{AD+4}
    s_and_b32 s76, s35, 1
    s_lshl_b32 s76, s76, 17
    s_lshl_b32 s77, s17, 6
    s_add_u32 s76, s76, s77
    s_add_u32 s76, s76, {WS_PART}
    s_lshl_b32 s81, s17, 2
    s_and_b32 s42, s16, 3
    s_add_u32 s81, s81, s42
    s_lshl_b32 s81, s81, 10
    s_add_u32 s82, s81, {WS_XB}
    s_add_u32 s81, s81, {WS_XA}
    v_mov_b32 v5, {L_KEY+104}""")
    if OUTP == 0:
        k.c("the weight tile is older than the row stores")
        k("""s_max_u32 s42, s62, s63
        s_min_u32 s43, s62, s63
        s_cmp_lt_u32 s43, 2
        s_cbranch_scc1 f_w0
        s_waitcnt vmcnt(4)
        f_w1:""")
    else: k("s_waitcnt vmcnt(0)")
    k("s_barrier")
    stamp(k, 14)
    for ks in range(2):
        for t in range(4):
            b_ = BD + (ks*4 + t)*4
            k(f"ds_read_b64_tr_b16 v[{b_}:{b_+1}], v{AD} offset:{ks*32768+t*8}")
            k(f"ds_read_b64_tr_b16 v[{b_+2}:{b_+3}], v{AD} offset:{ks*32768+16384+t*8}")
    k("""s_cmp_eq_u32 s16, 7
    s_cbranch_scc1 f_sel
    s_cmp_ge_u32 s35, 14
    s_cbranch_scc1 f_na
    s_cmp_ge_u32 s16, 4
    s_cbranch_scc1 f_na""")
    k("s_mov_b32 s83, 0\nf_px:\ns_and_b32 s42, s83, 31\ns_cmp_eq_u32 s42, 31\ns_cselect_b32 s42, s82, s81")
    for so in (42,):
        k(f"buffer_load_dwordx4 v[{R}:{R+3}], v3, s[12:15], s{so} offen sc1")
        k("s_waitcnt vmcnt(0)")
        chk_sent(k, range(R, R + 4), 4)
        k("s_cbranch_vccz f_pxx")
    spin(k, "f_px", 0)
    k("f_pxx:")
    stamp(k, 16)
    k(f"v_permlane32_swap_b32 v{R}, v{R+2}")
    k(f"v_permlane32_swap_b32 v{R+1}, v{R+3}")
    padd(k, R, R, R + 2)
    k(f"v_permlane16_swap_b32 v{R}, v{R+1}")
    k(f"v_add_f32 v{R}, v{R}, v{R+1}")
    round_bf16(k, R, R)
    k(f"""v_mul_f32 v{R+1}, {LOG2E}, v{R}
    v_exp_f32 v{R+1}, v{R+1}
    v_mov_b32 v{R+2}, v{R}
    v_add_f32 v{R+1}, 1.0, v{R+1}
    v_rcp_f32 v{R+1}, v{R+1}
    v_mov_b32 v{R+3}, v{R}
    v_mul_f32 v{R+1}, v{R}, v{R+1}
    v_permlane32_swap_b32 v{R+2}, v{R+3}""")
    round_bf16(k, R + 1, R + 1)
    k(f"""v_mul_f32 v{R+1}, v{R+1}, v{R+3}
    v_cvt_pk_bf16_f32 v{R+1}, v{R+1}, v{R+1}
    ds_write_b16 v{AD+4}, v{R+1}
    f_na:
    s_waitcnt lgkmcnt(0)
    s_barrier
    s_cmp_ge_u32 s35, 14
    s_cbranch_scc1 f_fin""")
    for ks in range(2):
        k(f"ds_read_b128 v[{HA+4*ks}:{HA+4*ks+3}], v{AD+5} offset:{ks*64}")
    for ks in range(2):
        k(f"s_waitcnt lgkmcnt({1-ks})")
        for t in range(4):
            a_ = AG + 4 * t
            cc = "0" if ks == 0 else f"v[{a_}:{a_+3}]"
            b_ = BD + (ks*4 + t)*4
            k(f"v_mfma_f32_16x16x32_bf16 v[{a_}:{a_+3}], v[{b_}:{b_+3}], v[{HA+4*ks}:{HA+4*ks+3}], {cc}")
    for t, m_ in ((1, "s[44:45]"), (2, "s[46:47]"), (3, "s[72:73]")):
        for i in range(4):
            k(f"v_cndmask_b32 v{AG+i}, v{AG+i}, v{AG+4*t+i}, {m_}")
    for i in range(4): k(f"v_min_u32 v{AG+i}, -2, v{AG+i}")
    k(f"""s_mov_b32 exec_lo, 0x00ff00ff
    s_mov_b32 exec_hi, 0x00ff00ff
    buffer_store_dwordx4 v[{AG}:{AG+3}], v{AD+6}, s[12:15], s76 offen sc1
    s_mov_b64 exec, -1""")
    stamp(k, 17)
    if OUTP == 1: k("s_barrier")
    k(f"""f_fin:
    ds_read_b64 v[28:29], v5
    s_waitcnt lgkmcnt(0)
    v_readfirstlane_b32 s40, v28
    v_readfirstlane_b32 s41, v29""")
    if E("OSL", 0): k(f"s_sleep {E('OSL', 0)}")
    cand = lambda n, l: f"s_cmp_ge_u32 s{62+n}, 2\ns_cbranch_scc1 {l}\n" + notsel(n, l)
    outst("f_e", cand if OUTP == 0 else notsel)
    stamp_out(k, 0)
    k("s_endpgm")
    k("f_sel:")
    poll_keys(k, "f_kq", 32, 74, 40, sl=4)
    top2(k, 32, 40)
    k(f"""s_andn2_b32 s40, s40, 1
    s_andn2_b32 s41, s41, 1
    v_mov_b32 v28, s40
    v_mov_b32 v29, s41
    ds_write_b64 v5, v[28:29]
    s_branch f_na""")
    if OUTP == 0: k("f_w0:\ns_waitcnt vmcnt(0)\ns_branch f_w1")
    k(f"""f_p2r:
    s_add_u32 s83, s83, 1
    s_cmp_ge_u32 s83, {SPIN}
    s_cbranch_scc1 f_p2w
    s_sleep 12
    {fin2}
    f_p2c:
    s_waitcnt vmcnt(0)
    s_branch f_p2e""")
    k(f"f_key:\ns_setprio 3\nv_mov_b32 v{KV+4}, v{KV}\nv_mov_b32 v{KV+6}, s32")
    row_allreduce(k, [KV + 4], "v_max_u32")
    k(f"""v_cmp_eq_u32 vcc, v{KV+4}, v{KV}
    v_mov_b32 v{KV+7}, s33
    v_cndmask_b32_e64 v{KV+5}, v{KV}, 0, vcc""")
    row_allreduce(k, [KV + 5], "v_max_u32")
    k(f"""v_or_b32 v{KV+5}, 1, v{KV+5}
    buffer_store_dwordx4 v[{KV+4}:{KV+7}], v{FA}, s[12:15], s80 offen sc1
    s_setprio 0
    s_branch f_nkey""")
    cands()
    k.c("---- spectrum pieces that were not there yet: read them again ----")
    k("f_zr:")
    for i in range(4):
        z = ZC + 8*(i >> 1) + (i & 1)
        k(f"""v_or3_b32 v{ZT}, v{z}, v{z+2}, v{z+4}
        v_or_b32 v{ZT}, v{ZT}, v{z+6}
        v_and_b32 v{ZT}, s54, v{ZT}
        v_cmp_ne_u32 vcc, 0, v{ZT}""")
        k(f"""s_cbranch_vccz f_zr{i}
        buffer_load_dwordx4 v[{ZL+4*i}:{ZL+4*i+3}], v3, s[12:15], s72 offen offset:{i*1024} sc1
        f_zr{i}:""")
    k("s_waitcnt vmcnt(0)")
    spin(k, "f_zc", 0)
    k("s_branch f_zx")
    k.c("---- out-of-line pieces ----")
    k("f_r0:")
    for u in range(2): k(f"buffer_load_dwordx4 v3, s[8:11], s18 offen offset:{u*1024} lds")
    k("s_branch f_nr")
    st_retry()
    k(f"f_pr:\ns_sleep {E('SLX', 6)}")
    for i in range(4): k(f"v_mov_b32 v{FL+8+i}, v{FT+i}")
    fin1()
    k("s_waitcnt vmcnt(0)")
    spin(k, "f_pv", 0)
    k("s_branch f_pw")
    k(f"""f_go:
    s_lshl_b32 s41, s34, 7
    s_add_u32 s41, s41, {WS_GO}
    v_mov_b32 v{D1R}, s32
    v_mov_b32 v{D1R+1}, s33
    s_mov_b64 exec, 0xff
    buffer_store_dwordx4 v[{D1R}:{D1R+3}], v3, s[12:15], s41 offen sc1
    s_mov_b64 exec, -1
    s_branch f_ngo""")
    k.c("---- rare: two-pass variance / router score for LN2 ----")
    k("f_slow2:")
    k.c("here the bf16 rounding of x and of the mean matters: follow the reference's rounding steps")
    for r_ in rows:
        X2, t = r_[0], r_[3]
        for i in range(8): rb2(k, X2 + 2*i, t)
        for i in range(1, 8): padd(k, t, X2 if i == 1 else t, X2 + 2*i)
    for n, r_ in enumerate(rows):
        k(f"v_add_f32 v{RQ+4*n}, v{r_[3]}, v{r_[3]+1}")
    red((0,))
    k(f"v_mul_f32 v{RQ+3}, {f32(1.0/1024)}, v{RQ}")
    round_bf16(k, RQ, RQ + 3)
    k(f"v_sub_f32 v{RQ+3}, v{RQ+3}, v{RQ}")
    for n in range(2): k(f"v_readlane_b32 s{56+2*n}, v{RQ}, {31+32*n}")
    for r_ in rows:
        for i in range(8): psub_s(k, r_[2] + 2*i, r_[0] + 2*i, r_[4])
    k(f"v_mov_b32 v{RQ+7}, v{RQ+6}")
    sums23((rows[0][2], rows[1][2]))
    for n, r_ in enumerate(rows):
        for j in (1, 2): k(f"v_add_f32 v{RQ+4*n+j}, v{r_[3]+2*j}, v{r_[3]+2*j+1}")
    red((1, 2))
    k(f"""v_mul_f32 v{RQ+1}, {f32(1.0/1024)}, v{RQ+1}
    v_fma_f32 v{RQ+1}, -v{RQ+3}, v{RQ+3}, v{RQ+1}
    v_max_f32 v{RQ+1}, 0, v{RQ+1}
    v_mov_b32 v{RQ+6}, v{RQ+7}
    s_branch f_var2""")
    slow1()
    k.c("---- rows 0 and 1024 travel as one complex row ----")
    k("f_sp:\ns_setprio 2")
    SAR = D1R
    for j in range(2):
        k(f"ds_read_b128 v[{SAR+4*j}:{SAR+4*j+3}], v3 offset:{L_P+P_SAS+j*1024}")
    k("s_waitcnt lgkmcnt(2)")
    for j in range(4): modul(j)
    k("s_waitcnt lgkmcnt(0)")
    for i in range(8):
        k(f"v_and_b32 v{ZL+i}, 0xffff, v{SAR+i}")
        k(f"v_lshrrev_b32 v{ZL+8+i}, 16, v{SAR+i}")
    for i in range(8):
        k(f"v_pk_add_f16 v{W+2*i}, v{W+2*i}, v{ZL+i}")
        k(f"v_pk_add_f16 v{W+2*i+1}, v{W+2*i+1}, v{ZL+8+i}")
    st1(0, 0); st1(0, 1); st1(1, 0); st1(1, 1)
    k("s_branch f_st1")
    k("f_sp2:")
    for x in pr1: k(x)
    for j in range(4): twid(j)
    YA, YB = TC, TS
    for j in range(4): st2(j, YA, BRE)
    for j in range(4): st2(j, YB, BIM)
    k(f"""v_subrev_u32 v12, s68, v{XD}
    v_subrev_u32 v17, s68, v{XDM}
    v_lshlrev_b32 v12, 1, v12
    v_lshlrev_b32 v17, 1, v17
    v_sub_u32 v7, 4096, v12
    v_and_b32 v7, 4095, v7""")

    for n, Yv in enumerate((YA, YB)):
        for q in range(4):
            k(f"ds_write_b128 v12, v[{Yv+4*q}:{Yv+4*q+3}] offset:{n*4096+q*16}")
    k("s_waitcnt lgkmcnt(0)")
    for n, Mv in enumerate((D1R, D1I)):
        for q in range(4):
            k(f"ds_read_b128 v[{Mv+4*q}:{Mv+4*q+3}], v17 offset:{n*4096+q*16}")
    k("s_waitcnt lgkmcnt(0)")
    for n, Mv in enumerate((D1R, D1I)):
        k(f"ds_read_b32 v{Mv}, v7 offset:{n*4096}")
    for n, (Yv, Mv) in enumerate(((YA, D1R), (YB, D1I))):
        for i in range(1, 16): k(f"v_add_f32 v{Yv+i}, v{Yv+i}, v{Mv+16-i}")
    k("s_waitcnt lgkmcnt(0)")
    for n, (Yv, Mv) in enumerate(((YA, D1R), (YB, D1I))):
        k(f"v_add_f32 v{Yv}, v{Yv}, v{Mv}")
    x1rows(YA, YB)
    k("s_setprio 0\ns_branch f_join")

def role_G(k):
    L_GR = 131072 + 4096; L_SI = 131072 + 8192
    k.c("w_mod tiles: rows 64*mm.., 512 columns of sa|ca|ga|cb and 256 columns of sb|gb per group")
    k.c("nonce writer: first wave of workgroup 0")
    k(f"""h_non:
    s_mul_i32 s42, s32, 0x9e3779b1
    s_lshr_b32 s43, s42, 15
    s_xor_b32 s42, s42, s43
    s_mul_i32 s42, s42, 0x85ebca6b
    s_xor_b32 s33, s33, s42
    s_lshr_b32 s43, s42, 13
    s_xor_b32 s42, s42, s43
    s_mul_i32 s33, s33, 0xc2b2ae35
    s_add_u32 s33, s33, s32
    s_lshr_b32 s43, s33, 16
    s_xor_b32 s33, s33, s43
    s_mul_i32 s33, s33, 0x27d4eb2f
    s_or_b32 s32, s42, 1
    s_andn2_b32 s33, s33, 7
    v_mov_b32 v10, s32
    v_mov_b32 v11, s33
    v_lshlrev_b32 v12, 3, v2
    s_mov_b32 exec_hi, 0
    global_store_dwordx2 v12, v[10:11], s[26:27] sc1
    s_mov_b32 exec_hi, -1
    s_branch h_nonx""")
    k.c("the first four waves start earlier: they are the loaders (logical waves 4-7)")
    k(f"""g_start:
    s_or_b32 s40, s2, s16
    s_xor_b32 s16, s16, 4
    v_xor_b32 v1, 4, v1
    v_xor_b32 v0, 0x100, v0
    v_lshlrev_b32 v13, 2, v2
    v_mov_b32 v220, 0
    v_mov_b32 v221, 0
    s_cmp_lt_u32 s16, 4
    s_cbranch_scc1 g_cons
    @@L@@
    g_cons:
    s_lshl_b32 s38, s2, 13
    s_lshl_b32 s39, s16, 11
    s_add_u32 s38, s38, s39
    s_add_u32 s38, s38, {WS_SENT}
    s_lshl_b32 s29, s34, 4
    s_add_u32 s29, s29, s35
    s_lshl_b32 s29, s29, 12
    s_add_u32 s29, s29, {WS_MPA}
    s_lshl_b32 s30, s16, 9
    s_add_u32 s30, s30, s29
    s_lshl_b32 s31, s16, 8
    s_add_u32 s31, s31, s29
    s_add_u32 s31, s31, 2048
    v_lshlrev_b32 v8, 1, v2
    v_lshlrev_b32 v9, 7, v2
    v_mov_b32 v104, -1
    v_mov_b32 v105, -1
    v_mov_b32 v106, -1
    v_mov_b32 v107, -1
    s_waitcnt lgkmcnt(0)
    s_mov_b32 s12, s6
    s_mov_b32 s13, s7""")
    stamp(k, 1)
    k("""
    s_cmp_eq_u32 s16, 1
    s_cselect_b64 exec, 0xffffff, 1
    buffer_load_dword v245, v9, s[12:15], s29 offen sc1
    s_mov_b64 exec, -1
    v_mov_b32 v14, 0""")
    srd(k, 8, 58, 1024 * 6144 * 2)
    def common():
        k.c("s64 = cluster (or X index) ; s65 = K half ; s66 = 1 for X")
        k(f"""s_mov_b32 s20, s26
        s_mov_b32 s21, s27
        s_mov_b32 s26, 4194304
        s_mov_b32 s27, 0x00020000
        s_and_b32 s65, s35, 1
        s_lshr_b32 s40, s35, 1
        s_mul_i32 s64, s34, 7
        s_add_u32 s64, s64, s40
        s_lshl_b32 s41, s34, 1
        s_add_u32 s41, s41, s65
        s_cmp_ge_u32 s35, 14
        s_cselect_b32 s66, 1, 0
        s_cselect_b32 s64, s41, s64""")
        k.c("v12 / v21: transposed reads of the gate / up tile")
        k(f"""v_lshrrev_b32 v10, 2, v2
        v_and_b32 v15, 3, v0
        v_bfe_u32 v11, v0, 3, 2
        v_xor_b32 v12, v11, v1
        v_and_b32 v12, 3, v12
        v_lshlrev_b32 v12, 5, v12
        v_lshl_add_u32 v12, v10, 7, v12
        v_lshl_add_u32 v12, v15, 3, v12
        v_lshrrev_b32 v16, 2, v1
        v_lshl_add_u32 v12, v16, 15, v12
        v_add_u32 v21, 65536, v12""")
    common()
    RA, RB = 200, 208
    k(f"""v_bfe_u32 v22, v0, 2, 3
    v_lshlrev_b32 v22, 5, v22
    v_lshl_add_u32 v22, v15, 3, v22
    v_bfe_u32 v23, v0, 2, 2
    v_bfe_u32 v24, v0, 4, 2
    v_lshl_add_u32 v23, v24, 3, v23
    v_lshl_add_u32 v{RA}, v23, 10, v22
    v_lshl_add_u32 v{RA}, v1, 8, v{RA}
    v_add_u32 v{RA}, 32768, v{RA}
    v_lshlrev_b32 v25, 7, v1
    v_xor_b32 v22, v22, v25
    v_lshl_add_u32 v{RB}, v23, 9, v22
    v_add_u32 v{RB}, 98304, v{RB}
    v_cmp_eq_u32 s[60:61], 1, v24
    v_cmp_eq_u32 s[62:63], 2, v24
    v_cmp_eq_u32 s[72:73], 3, v24
    v_add3_u32 v8, v8, v25, s36
    v_lshl_add_u32 v10, v24, 4, v25
    v_add_u32 v10, {L_SI}, v10""".replace("v_add3_u32 v8, v8, v25, s36", f"v_add_u32 v8, v8, v25\nv_add_u32 v8, {L_SI}, v8"))
    for t in range(1, 8): k(f"v_xor_b32 v{RA+t}, {32*t}, v{RA}")
    for t in range(1, 4): k(f"v_xor_b32 v{RB+t}, {32*t}, v{RB}")
    k(f"s_sleep {E('GNS', 8)}")
    nonce_issue(k, 20, 128)
    GA_, GB_, GD = 120, 128, 64
    for i in range(2): k(f"buffer_store_dwordx4 v[104:107], v3, s[12:15], s38 offen offset:{i*1024} sc1")
    nonce_finish(k, "g_nn", 20, 192, 112)
    mtag(k, 212, 0)
    k("v_and_b32 v212, 0xff, v212\ns_movk_i32 s74, 0xff00")
    k.c("X: s22 / s23 = place of the finished vectors ; their lines are written once early so that early readers find them on the die")
    k(f"""s_lshr_b32 s22, s64, 2
    s_lshl_b32 s22, s22, 12
    s_and_b32 s42, s64, 1
    s_lshl_b32 s42, s42, 8
    s_add_u32 s22, s22, s42
    s_and_b32 s42, s64, 2
    s_lshl_b32 s42, s42, 5
    s_add_u32 s22, s22, s42
    s_add_u32 s22, s22, {WS_FIN}
    s_lshr_b32 s23, s64, 3
    s_lshl_b32 s23, s23, 12
    s_and_b32 s42, s64, 3
    s_lshl_b32 s42, s42, 7
    s_add_u32 s23, s23, s42
    s_and_b32 s42, s64, 4
    s_lshl_b32 s42, s42, 4
    s_add_u32 s23, s23, s42
    s_add_u32 s23, s23, {WS_FIN + 5*4096}
    v_bfe_u32 v24, v0, 2, 1
    v_bfe_u32 v25, v0, 3, 2
    v_bfe_u32 v26, v0, 5, 1
    v_lshlrev_b32 v220, 4, v15
    v_lshl_add_u32 v220, v24, 9, v220
    v_lshl_add_u32 v220, v25, 10, v220
    v_lshl_add_u32 v220, v26, 7, v220
    v_lshlrev_b32 v221, 7, v15
    v_lshl_add_u32 v221, v24, 6, v221
    v_lshl_add_u32 v221, v25, 4, v221
    v_lshl_add_u32 v221, v26, 9, v221
    s_lshl_b32 s79, s64, 7
    s_add_u32 s79, s79, {WS_REC}
    s_cmp_ge_u32 s16, s66
    s_cbranch_scc1 g_nw""")
    srd(k, 44, 48, 2048)
    k("""v_lshrrev_b32 v11, 1, v221
    s_and_b32 s42, s64, 3
    s_lshl_b32 s42, s42, 9
    buffer_load_dwordx2 v[52:53], v11, s[44:47], s42 offen""")
    mtag4(k, 216)
    for i in range(4): k(f"v_not_b32 v{24+i}, v{216+i}")
    k(f"""buffer_store_dwordx4 v[24:27], v220, s[12:15], s22 offen sc1
    s_add_u32 s42, s22, 4096
    s_cmp_ge_u32 s64, 12
    s_cselect_b32 s42, s42, s22
    buffer_store_dwordx4 v[24:27], v220, s[12:15], s42 offen sc1
    s_mov_b32 exec_hi, 0
    buffer_store_dwordx4 v[24:27], v220, s[12:15], s23 offen sc1
    s_mov_b64 exec, 0xff
    buffer_store_dwordx4 v[104:107], v3, s[12:15], s79 offen sc1
    s_mov_b64 exec, -1
    g_nw:
    s_barrier""")
    def gemv(u, st=True):
        def prm(j):
            if u < 2: return RA + j, u*32768, 4096, GD + 4*j, GA_ + 4*u, u == 0
            return RB + (j & 3), (j >> 2)*16384, 2048, GD + 4*(j & 3), GA_ + 4*(j >> 2), j < 4
        def rd(j):
            va, off, hs = prm(j)[:3]
            k(f"ds_read_b64_tr_b16 v[{GB_+4*j}:{GB_+4*j+1}], v{va} offset:{off}")
            k(f"ds_read_b64_tr_b16 v[{GB_+4*j+2}:{GB_+4*j+3}], v{va} offset:{off+hs}")
        for j in range(7): rd(j)
        for j in range(8):
            k(f"s_waitcnt lgkmcnt({12 if j == 0 else 2*(7 - j)})")
            d_, a_, z = prm(j)[3:]
            k(f"v_mfma_f32_16x16x32_bf16 v[{d_}:{d_+3}], v[{a_}:{a_+3}], v[{GB_+4*j}:{GB_+4*j+3}], {'0' if z else f'v[{d_}:{d_+3}]'}")
            if j == 0: rd(7)
        if u:
            for h in range(3 - u):
                d_ = GD + 16*h
                for t, m_ in ((1, "s[60:61]"), (2, "s[62:63]"), (3, "s[72:73]")):
                    k(f"v_cndmask_b32 v{d_}, v{d_}, v{d_+4*t}, {m_}")
                k(f"v_and_or_b32 v{PO + 2*(u-1) + h}, v{d_}, s74, v212")
    PO = 224
    def mp(u, cp):
        if cp: k(f"s_add_u32 s42, s{29+u}, {WS_MPB - WS_MPA}")
        for h in range(3 - u):
            k(f"buffer_store_dword v{PO+2*(u-1)+h}, v13, s[12:15], s{42 if cp else 29+u} offen offset:{h*256} {('', 'sc1')[cp]}")
    stamp(k, 2)
    k("ds_read_u16 v6, v8\ns_waitcnt lgkmcnt(0)")
    k(f"""v_lshlrev_b32 v6, 16, v6
    v_mul_f32 v24, {LOG2E}, v6
    v_exp_f32 v24, v24
    v_add_f32 v24, 1.0, v24
    v_rcp_f32 v24, v24
    v_mul_f32 v6, v6, v24
    v_cvt_pk_bf16_f32 v6, v6, v6
    ds_write_b16 v8, v6
    ds_read_b128 v[{GA_}:{GA_+3}], v10
    ds_read_b128 v[{GA_+4}:{GA_+7}], v10 offset:64""")
    gemv(0)
    k("s_waitcnt vmcnt(0)\ns_barrier")
    stamp(k, 3)
    gemv(1)
    mp(1, 0)
    stamp(k, 4)
    k("s_barrier\ns_cmp_eq_u32 s66, 1\ns_cbranch_scc1 x_start")
    if E("XH", 0):
        k.c("wave 0: a share of the second tiles of the two X workgroups into L2")
        k(f"""s_cmp_lg_u32 s16, 0
        s_cbranch_scc1 m_nh
        s_mul_i32 s42, s35, 9
        s_add_u32 s42, s42, 896
        s_mul_i32 s42, s42, 12288
        s_lshl_b32 s43, s34, 9
        s_add_u32 s42, s42, s43
        s_and_b32 s43, s34, 4
        s_lshl_b32 s43, s43, 9
        s_add_u32 s42, s42, s43
        s_add_u32 s42, s42, {3*2048}
        v_lshrrev_b32 v24, 2, v2
        v_mul_u32_u24 v24, 12288, v24
        v_lshl_add_u32 v24, v15, 7, v24
        s_mov_b32 exec_hi, 15
        buffer_load_dword v245, v24, s[8:11], s42 offen
        s_mov_b32 exec_hi, -1
        m_nh:""")
    k("s_barrier")
    gemv(2)
    mp(2, 0)
    stamp(k, 5)
    k("s_barrier")
    HN = E("HN", 37)
    if HN:
        k.c("the gate / up columns whose lines stream slowly are pulled into L2 by all M workgroups of the die")
        k(f"""s_bitcmp1_b32 s16, 0
        {"s_cbranch_scc1 m_nh2" if E("XN", 0) else ""}
        s_cselect_b32 s8, s52, s50
        s_cselect_b32 s9, s53, s51
        s_mov_b32 s10, {1024*3584*2}
        s_lshr_b32 s42, s8, 7
        s_sub_u32 s42, 3, s42
        s_add_u32 s42, s42, s34
        s_and_b32 s42, s42, 7
        s_cmp_eq_u32 s42, 7
        s_cbranch_scc1 m_nh2
        s_mul_i32 s43, s34, 7
        s_add_u32 s42, s42, s43
        s_lshl_b32 s42, s42, 7
        s_lshl_b32 s43, s35, 1
        s_lshr_b32 s40, s16, 1
        s_add_u32 s43, s43, s40
        s_mul_i32 s43, s43, {37*7168}
        s_add_u32 s42, s42, s43
        v_mul_u32_u24 v24, 7168, v2
        s_mov_b32 exec_lo, {((1 << HN) - 1) & 0xffffffff}
        s_mov_b32 exec_hi, {((1 << HN) - 1) >> 32}
        buffer_load_dword v245, v24, s[8:11], s42 offen
        s_mov_b64 exec, -1
        m_nh2:""")
    BD, BG, BU = 32, 64, 96
    def rdw(base, va):
        for ks in range(8):
            k(f"ds_read_b64_tr_b16 v[{base+4*ks}:{base+4*ks+1}], v{va} offset:{ks*4096}")
            k(f"ds_read_b64_tr_b16 v[{base+4*ks+2}:{base+4*ks+3}], v{va} offset:{ks*4096+2048}")
    k("s_barrier")
    rdw(BG, 12)
    k("s_waitcnt vmcnt(0)\ns_barrier")
    k.c("write-through copy of the partial sums (read back through L2, one KB per wave)")
    def fwd(lab, w0=0):
        k(f"""s_sub_u32 s42, s16, {w0}
        s_cmp_ge_u32 s42, 3
        s_cbranch_scc1 {lab}
        s_lshl_b32 s42, s42, 10
        s_add_u32 s42, s42, s29
        s_add_u32 s43, s42, {WS_MPB - WS_MPA}
        buffer_load_dwordx4 v[44:47], v3, s[12:15], s42 offen sc1
        s_waitcnt vmcnt(0)
        buffer_store_dwordx4 v[44:47], v3, s[12:15], s43 offen sc1
        {lab}:""")
    fwd("m_nb", 1)
    k("@@L0@@")
    k.c("================= waves 4-7: the loaders (nine 32 KB units through four LDS slots) =================")
    k(f"""g_load:
    s_and_b32 s69, s16, 3
    s_and_b32 s42, s16, 1
    s_lshl_b32 s42, s42, 7
    v_xor_b32 v6, s42, v3
    v_xor_b32 v7, 32, v6
    v_xor_b32 v8, 64, v6
    v_xor_b32 v9, 96, v6
    s_lshl_b32 s41, s35, 3
    s_add_u32 s41, s41, s69
    s_mul_i32 s18, s41, {8*12288}
    s_lshl_b32 s41, s34, 10
    s_cmp_ge_u32 s34, 6
    s_cselect_b32 s42, 2048, 0
    s_add_u32 s18, s18, s41
    s_add_u32 s18, s18, s42
    s_lshl_b32 s68, s69, 13
    s_mov_b32 s10, {1024*6144*2}
    s_waitcnt lgkmcnt(0)
    s_mov_b32 s8, s58
    s_mov_b32 s9, s59
    s_mov_b32 s12, s6
    s_mov_b32 s13, s7
    s_cmp_eq_u32 s40, 0
    s_cbranch_scc1 h_non
    h_nonx:
    s_lshl_b32 s42, s69, 7
    s_add_u32 s42, s42, {L_SI}
    s_mov_b32 m0, s42
    s_lshl_b32 s42, s35, 7
    v_add_u32 v10, s42, v13
    s_mov_b32 exec_hi, 0
    global_load_lds_dword v10, s[56:57]
    s_mov_b32 exec_hi, -1""")
    stamp(k, 1)
    W0, W1, W2 = E("W0", 8), E("W1", 7), E("W2", 10)
    WU = [int(x) for x in os.environ.get("WU", "8,8,8,8,10,10,10").split(",")]
    win = lambda n: WU[n >> 3]
    def unit_load(n):
        u, i = n >> 3, n & 7
        slot = ((u + 1) & 3) * 32768
        if u < 2:
            va, srdb, sb, stride = 6 + (i & 3), 8, 18, 12288
            rows = 32 * u + i
        elif u == 2:
            va, srdb, sb, stride = 4, 8, 19, 12288
            rows = 2 * i
            k(f"v_xor_b32 v4, {64*(i&1) + 128*((i>>2)&1)}, v14")
        elif u < 7:
            va, srdb, sb, stride = 5, (56, 56, 44, 44)[u-3], 67, 7168
            rows = 256 * ((u + 1) & 1) + 32 * (i >> 2) + 16 * (i & 1) + 4 * ((i >> 1) & 1)
        k(f"s_add_u32 s43, s68, {slot + i*1024}\ns_mov_b32 m0, s43\ns_add_u32 s42, s{sb}, {rows*stride}")
        if E("NOW", 0) and u >= 3: return
        nt = "nt" if (E("NTU", 511) >> u) & 1 else ""
        k(f"buffer_load_dwordx4 v{va}, s[{srdb}:{srdb+3}], s42 offen {nt} lds")
    L1, L2 = E("L1", 0), E("L2", 4)
    def stream(n0, n1, total, landed):
        for n in range(n0, n1):
            w = min(win(n), n) if n else 1
            for u, la in ((1, L1), (2, L2)):
                if n == 8 * (u + 1) + la and landed <= u:
                    k(f"s_waitcnt vmcnt({la})")
                    while landed <= u:
                        event(landed); landed += 1
            if n >= win(n): k(f"s_waitcnt vmcnt({win(n)-1})")
            while 8 * (landed + 1) <= n - win(n) + 1 and landed < 5:
                event(landed); landed += 1
            unit_load(n)
        if n1 == total:
            while 8 * (landed + 1) <= total - 16:
                k(f"s_waitcnt vmcnt({total - 8*(landed+1)})")
                event(landed); landed += 1
        return landed
    def event(u):
        k("s_barrier")
        if u in (1, 2): k("s_barrier")
        if u == 4: rdw(BG, 12)
    def setup2():
        pass
    landed = stream(0, 8, 56, 0)
    k(f"""s_lshl_b32 s19, s35, 2
    s_add_u32 s19, s19, s69
    s_mul_i32 s19, s19, {16*12288}
    s_lshl_b32 s42, s34, 9
    s_add_u32 s19, s19, s42
    s_and_b32 s42, s34, 4
    s_lshl_b32 s42, s42, 9
    s_add_u32 s19, s19, s42
    s_add_u32 s19, s19, {3*2048}
    v_lshrrev_b32 v5, 5, v2
    v_and_b32 v14, 0x1f0, v3
    v_lshlrev_b32 v12, 5, v5
    v_xor_b32 v14, v14, v12
    s_movk_i32 s42, 12288
    v_mad_u32_u24 v14, v5, s42, v14
    v_bfe_u32 v5, v0, 5, 1
    v_lshlrev_b32 v5, 3, v5
    v_bfe_u32 v12, v0, 3, 2
    v_add_u32 v5, v5, v12
    v_bfe_u32 v12, v0, 4, 2
    v_lshlrev_b32 v12, 1, v12
    v_xor_b32 v12, v12, v0
    v_and_b32 v12, 7, v12
    v_lshlrev_b32 v12, 4, v12
    s_movk_i32 s42, 7168
    v_mad_u32_u24 v5, v5, s42, v12""")
    common()
    k(f"""s_lshl_b32 s67, s65, 3
    s_add_u32 s67, s67, s69
    s_mul_i32 s67, s67, {64*7168}
    s_lshl_b32 s42, s64, 7
    s_add_u32 s67, s67, s42
""")
    srd(k, 56, 50, 1024 * 3584 * 2)
    srd(k, 44, 52, 1024 * 3584 * 2)
    landed = stream(8, 10, 56, landed)
    nonce_issue(k, 20, 128)
    landed = stream(10, 16, 56, landed)
    nonce_finish(k, "g_n2", 20, 192, 120)
    k("s_cmp_eq_u32 s66, 0\ns_cbranch_scc1 m_load")
    k(f"s_waitcnt vmcnt(0)\ns_barrier\ns_barrier\ns_branch x_start\nm_load:")
    stream(16, 56, 56, landed)
    k("s_branch m_join\n@@L1@@\nm_join:")
    L_H = 131072
    KB = 24; HA = 128; AG = 160
    k.c("v13 h2 write ; v17 A read")
    k(f"""v_bfe_u32 v7, v0, 4, 2
    v_and_b32 v6, 1, v0
    v_lshlrev_b32 v17, 10, v6
    v_lshl_add_u32 v17, v16, 9, v17
    v_lshl_add_u32 v17, v7, 4, v17
    v_add_u32 v17, {L_H}, v17
    v_and_b32 v6, 15, v0
    v_lshlrev_b32 v13, 6, v6
    v_bfe_u32 v22, v0, 4, 1
    v_lshl_add_u32 v13, v22, 5, v13
    v_bfe_u32 v22, v0, 5, 1
    v_lshl_add_u32 v13, v22, 4, v13
    v_add_u32 v13, {L_H}, v13
    v_lshlrev_b32 v18, 11, v22
    v_bfe_u32 v22, v0, 4, 1
    v_lshl_add_u32 v18, v22, 9, v18
    v_bfe_u32 v22, v0, 2, 2
    v_lshl_add_u32 v18, v22, 7, v18
    v_lshl_add_u32 v18, v15, 4, v18
    s_lshl_b32 s71, s65, 6
    s_add_u32 s71, s71, {WS_FIN + 5*4096}
    v_mov_b32 v22, 0
    s_lshl_b32 s70, s65, 10
    s_add_u32 s70, s70, {WS_SLOT}
    s_lshl_b32 s69, s64, 2
    s_and_b32 s42, s16, 3
    s_add_u32 s69, s69, s42
    s_lshl_b32 s69, s69, 10
    s_lshl_b32 s76, s65, 1
    s_lshr_b32 s42, s16, 2
    s_add_u32 s76, s76, s42
    s_lshl_b32 s76, s76, 8
    s_add_u32 s76, s76, s69
    s_add_u32 s77, s76, {WS_XB}
    s_add_u32 s76, s76, {WS_XA}
    s_add_u32 s69, s69, {WS_XA}
    s_lshl_b32 s78, s34, 14
    s_lshl_b32 s79, s34, 7
    s_add_u32 s79, s79, {WS_GO}
    s_add_u32 s78, s78, {WS_KEY}""")
    sbl = """buffer_load_dwordx4 v[192:195], v18, s[12:15], s71 offen sc1
    buffer_load_dwordx4 v[196:199], v18, s[12:15], s71 offen offset:1024 sc1"""
    k.c("wave 0 follows the selection while the last unit lands; wave 1 brings the hand-off lines into L2")
    k(f"""s_cmp_lg_u32 s16, 1
    s_cbranch_scc1 m_n0
    v_lshlrev_b32 v4, 7, v2
    s_sub_u32 s69, s69, 1024
    s_mov_b32 exec_hi, 0
    buffer_load_dword v5, v4, s[12:15], s69 offen sc1
    s_mov_b32 exec_hi, -1
    m_n0:
    s_waitcnt vmcnt(0)""")
    stamp(k, 6)
    k("s_cmp_lg_u32 s16, 0\ns_cbranch_scc1 m_nk")
    mtag4(k, 216)
    poll_recs(k, "m_go", 28, 22, 79, "1", sl=E("SLG", 3))
    k(f"""s_mov_b32 s83, 0
    m_sb:
    {sbl}
    s_waitcnt vmcnt(0)""")
    untag(k, range(192, 200), 216, 4)
    tagchk(k, 4)
    k(f"s_cbranch_vccz m_sbx")
    spin(k, "m_sb", 8)
    k("m_sbx:")
    poll_keys(k, "m_pk", KB, 78, 4, sl=E("SLK", 0))
    stamp(k, 13)
    top2(k, KB, 4)
    def slot_of(d, s_):
        k(f"""s_bfe_u32 s{d}, s{s_}, 0x70005
        s_lshl_b32 s{d}, s{d}, 13
        s_and_b32 s{s_}, s{s_}, 1
        s_lshl_b32 s{s_}, s{s_}, 12
        s_add_u32 s{d}, s{d}, s{s_}""")
    slot_of(42, 40); slot_of(43, 41)
    k(f"""s_add_u32 s42, s42, s70
    s_add_u32 s43, s43, s70
    s_mov_b32 s83, 0
    m_ph:
    buffer_load_dwordx4 v[176:179], v3, s[12:15], s42 offen sc1
    buffer_load_dwordx4 v[180:183], v3, s[12:15], s43 offen sc1
""")
    for r in range(2):
        k(f"s_waitcnt vmcnt({1-r})")
        for i in range(4): unpack_bf16(k, 200 + 2*i, 176 + 4*r + i)
        for i in range(4): padd(k, 200 + 2*i, 200 + 2*i, 192 + 2*i)
        for i in range(4): k(f"v_cvt_pk_bf16_f32 v{208+4*r+i}, v{200+2*i}, v{201+2*i}")
        k(f"ds_write_b128 v13, v[{208+4*r}:{211+4*r}] offset:{r*1024}")
    chk_sent(k, range(176, 184), 4)
    k("s_cbranch_vccz m_phx")
    spin(k, "m_ph", 0)
    k("m_phx:\ns_waitcnt lgkmcnt(0)")
    stamp(k, 14)
    k("m_nk:\ns_barrier")
    for ks in range(8):
        k(f"ds_read_b128 v[{HA+4*ks}:{HA+4*ks+3}], v17 offset:{ks*64}")
    mm_ = lambda a_, b_, ks: k(f"v_mfma_f32_16x16x32_bf16 v[{a_}:{a_+3}], v[{HA+4*ks}:{HA+4*ks+3}], v[{b_+4*ks}:{b_+4*ks+3}], {'0' if ks == 0 else f'v[{a_}:{a_+3}]'}")
    for ks in range(8):
        k(f"s_waitcnt lgkmcnt({7 + ks})")
        mm_(AG, BG, ks)
        k(f"ds_read_b64_tr_b16 v[{BU+4*ks}:{BU+4*ks+1}], v21 offset:{ks*4096}")
        k(f"ds_read_b64_tr_b16 v[{BU+4*ks+2}:{BU+4*ks+3}], v21 offset:{ks*4096+2048}")
    for ks in range(8):
        k(f"s_waitcnt lgkmcnt({14 - 2*ks})")
        mm_(AG + 4, BU, ks)
    PB = 184
    k(f"""v_min_u32 v{PB}, -2, v{AG}
    v_min_u32 v{PB+1}, -2, v{AG+1}
    v_min_u32 v{PB+2}, -2, v{AG+4}
    v_min_u32 v{PB+3}, -2, v{AG+5}
    s_mov_b64 exec, 0xffff
    buffer_store_dwordx4 v[{PB}:{PB+3}], v3, s[12:15], s76 offen
    buffer_store_dwordx4 v[{PB}:{PB+3}], v3, s[12:15], s77 offen sc1""")
    stamp(k, 15)
    stamp_out(k, 0)
    k("s_endpgm")
    k.c("================= X: modulation tables, then the final reduction =================")
    k("x_start:")
    stamp(k, 30)
    srd(k, 56, 48, 2048)
    mtag4(k, 216)
    k(f"""s_lshl_b32 s41, s34, 16
    s_lshl_b32 s42, s16, 13
    s_add_u32 s41, s41, s42
    s_add_u32 s41, s41, {WS_MPA}
    s_lshl_b32 s42, s65, 9
    s_add_u32 s40, s41, s42
    s_add_u32 s41, s40, s42
    v_lshlrev_b32 v10, 4, v0
    v_lshrrev_b32 v11, 5, v2
    v_and_b32 v12, 0x1f0, v3
    v_lshl_add_u32 v11, v11, 12, v12
    s_lshl_b32 s39, s34, 4
    s_add_u32 s39, s39, s35
    s_lshl_b32 s39, s39, 12
    s_add_u32 s39, s39, {WS_MPA}
    s_bitcmp1_b32 s64, 2
    s_cselect_b32 s28, 1.0, 0""")
    def gather(lab, rnd):
        k(f"""s_mov_b32 s83, 0
        {lab}:
        s_and_b32 s42, s83, 31
        s_cmp_eq_u32 s42, 31
        s_cselect_b32 s42, {WS_MPB - WS_MPA}, 0
        s_add_u32 s42, s42, s{41 - rnd}""")
        if rnd == 0:
            k("""s_add_u32 s43, s42, 4096
            buffer_load_dwordx4 v[32:35], v3, s[12:15], s42 offen sc1
            buffer_load_dwordx4 v[36:39], v3, s[12:15], s43 offen sc1""")
        else:
            k("buffer_load_dwordx4 v[32:35], v11, s[12:15], s42 offen offset:2048 sc1")
        k("s_waitcnt vmcnt(0)")
        untag(k, range(32, 40 - 4*rnd), 216, 17)
        tagchk(k, 17)
        k(f"""s_cbranch_vccz {lab}x
        s_and_b32 s42, s83, 31
        s_cmp_lg_u32 s42, 24
        s_cbranch_scc1 {lab}n""")
        own_b(rnd)
        k(f"{lab}n:")
        spin(k, lab, E("SLP", 0))
        k(f"{lab}x:")
        stamp(k, 31 + 3*rnd)
        if rnd == 0:
            for h in range(2): padd(k, 32 + 2*h, 32 + 2*h, 36 + 2*h)
        k(f"""ds_write_b128 v10, v[32:35] offset:{rnd*8192}
        s_waitcnt lgkmcnt(0)
        s_barrier
        s_cmp_lg_u32 s16, 0
        s_cbranch_scc1 {lab}e""")
        for i in range(8): k(f"ds_read_b128 v[{160+4*i}:{163+4*i}], v221 offset:{rnd*8192+i*1024}")
        for i in range(0, 8, 2):
            k(f"s_waitcnt lgkmcnt({6-i})")
            for h in range(2): padd(k, 160 + 4*i + 2*h, 160 + 4*i + 2*h, 164 + 4*i + 2*h)
        for h in range(2):
            padd(k, 160 + 2*h, 160 + 2*h, 168 + 2*h); padd(k, 176 + 2*h, 176 + 2*h, 184 + 2*h)
        for h in range(2): padd(k, 160 + 2*h, 160 + 2*h, 176 + 2*h)
    def own_b(rnd):
        k(f"s_add_u32 s43, s39, {WS_MPB - WS_MPA}")
        for i in range(2 + rnd):
            k(f"buffer_load_dwordx4 v[44:47], v3, s[12:15], s39 offen offset:{i*1024} sc1")
            k("s_waitcnt vmcnt(0)")
            k(f"buffer_store_dwordx4 v[44:47], v3, s[12:15], s43 offen offset:{i*1024} sc1")
            k("s_waitcnt vmcnt(0)")
    def fin_store(v, so):
        for i in range(4): k(f"v_and_or_b32 v{40+i}, v{v+i}, s74, v{216+i}")
        k(f"buffer_store_dwordx4 v[40:43], v220, s[12:15], s{so} offen sc1")
    gather("x_g0", 0)
    for h in range(2): rb2(k, 160 + 2*h, 17 + h)
    for n in range(4): k(f"v_add_f32 v{160+n}, s28, v{160+n}")
    for h in range(2): rb2(k, 160 + 2*h, 17 + h)
    fin_store(160, 22)
    k(f"""v_mov_b32 v48, s32
    v_mov_b32 v49, s33
    s_cmp_ge_u32 s64, 12
    s_cbranch_scc1 x_q
    v_max3_f32 v50, abs(v160), abs(v161), abs(v162)
    v_max_f32_e64 v50, v50, abs(v163)""")
    wave_reduce_to63(k, [50], "v_max_f32")
    k("s_branch x_r\nx_q:")
    for h in range(2): unpack_bf16(k, 164 + 2*h, 52 + h)
    for h in range(2): pmul(k, 164 + 2*h, 164 + 2*h, 160 + 2*h)
    k("s_add_u32 s42, s22, 4096")
    fin_store(164, 42)
    for i in range(4): k(f"v_and_b32 v{164+i}, s74, v{164+i}")
    padd(k, 164, 164, 166)
    k("v_add_f32 v50, v164, v165")
    wave_reduce_to63(k, [50], "v_add_f32")
    k(f"""x_r:
    v_readlane_b32 s42, v50, 63
    v_mov_b32 v50, s42
    s_mov_b64 exec, 0xff
    buffer_store_dwordx4 v[48:51], v3, s[12:15], s79 offen sc1
    s_mov_b64 exec, -1
    x_g0e:""")
    stamp(k, 32); stamp(k, 14)
    k("s_barrier\ns_cmp_lt_u32 s16, 4\ns_cbranch_scc1 x_t1")
    for n in range(16, 24): unit_load(n)
    k("s_waitcnt vmcnt(0)\ns_barrier\ns_branch x_t2\nx_t1:")
    k("s_barrier")
    gemv(2)
    mp(2, 0)
    k("x_t2:")
    stamp(k, 33)
    gather("x_g1", 1)
    for i in range(4): k(f"v_mov_b32 v{164+i}, v{160+i}")
    for i in range(4): k(f"v_permlane32_swap_b32 v{160+i}, v{164+i}")
    for h in range(2): padd(k, 160 + 2*h, 160 + 2*h, 164 + 2*h)
    for h in range(2): rb2(k, 160 + 2*h, 17 + h)
    k("s_mov_b32 exec_hi, 0")
    fin_store(160, 23)
    k("s_mov_b32 exec_hi, -1\nx_g1e:")
    stamp(k, 6); stamp(k, 35)
    fwd("x_nb")
    XN = E("XN", 0)
    if XN:
        k.c("idle time: the slowly streaming up column of this die into L2")
        k(f"""s_barrier
        s_mov_b32 s8, s52
        s_mov_b32 s9, s53
        s_mov_b32 s10, {1024*3584*2}
        s_lshr_b32 s42, s8, 7
        s_sub_u32 s42, 3, s42
        s_add_u32 s42, s42, s34
        s_and_b32 s42, s42, 7
        s_cmp_eq_u32 s42, 7
        s_cbranch_scc1 x_nh
        s_mul_i32 s43, s34, 7
        s_add_u32 s42, s42, s43
        s_lshl_b32 s42, s42, 7
        s_lshl_b32 s43, s65, 3
        s_add_u32 s43, s43, s16
        s_mul_i32 s43, s43, {64*7168}
        s_add_u32 s42, s42, s43
        v_mul_u32_u24 v24, 7168, v2
        buffer_load_dword v245, v24, s[8:11], s42 offen
        x_nh:""")
    k.c("final reduction: job s17 = (row, 16-column block)")
    k(f"""s_lshl_b32 s17, s64, 3
    s_add_u32 s17, s17, s16
    s_and_b32 s18, s17, 63
    s_lshl_b32 s78, s34, 14
    s_add_u32 s78, s78, {WS_KEY}
    v_and_b32 v4, 3, v0
    v_lshrrev_b32 v7, 4, v2
    v_lshlrev_b32 v5, 3, v4
    v_lshl_add_u32 v5, v7, 1, v5
    v_lshlrev_b32 v6, 10, v4
    v_lshl_add_u32 v6, v7, 2, v6
    v_lshrrev_b32 v86, 1, v4
    v_lshlrev_b32 v86, 9, v86
    v_and_b32 v87, 12, v5
    v_add_u32 v86, v86, v87
    v_and_b32 v87, 2, v5
    v_lshlrev_b32 v87, 3, v87
    s_and_b32 s30, s18, 1
    s_bfe_u32 s31, s18, 0x20001
    s_bfe_u32 s40, s18, 0x20003
    s_lshr_b32 s41, s18, 5
    s_lshl_b32 s45, s41, 10
    s_lshl_b32 s42, s30, 8
    s_add_u32 s45, s45, s42
    s_lshl_b32 s42, s40, 6
    s_add_u32 s45, s45, s42
    s_lshl_b32 s31, s31, 4
    s_add_u32 s45, s45, s31
    s_lshl_b32 s30, s30, 9
    s_add_u32 s31, s31, s30
    s_lshl_b32 s40, s40, 7
    s_add_u32 s31, s31, s40
    s_lshl_b32 s41, s41, 6
    s_add_u32 s31, s31, s41
    s_add_u32 s31, s31, {WS_FIN + 6*4096}
    s_lshl_b32 s44, s17, 12
    s_add_u32 s44, s44, {WS_PART}
    s_bitcmp1_b32 s18, 1
    s_cselect_b32 s42, s33, s32
    v_lshlrev_b32 v88, 3, v7
    v_lshrrev_b32_e64 v88, v88, s42
    v_and_b32 v88, 0xff, v88
    v_cmp_gt_u32 vcc, 32, v2
    v_mov_b32 v7, 0x7ff00000
    v_cndmask_b32 v7, v7, v3, vcc
    v_and_b32 v9, 15, v0
    v_lshlrev_b32 v9, 6, v9
    v_bfe_u32 v10, v0, 4, 1
    v_lshl_add_u32 v9, v10, 5, v9
    v_bfe_u32 v10, v0, 5, 1
    v_lshl_add_u32 v9, v10, 4, v9
    v_mov_b32 v10, {L_GR + 64}
    v_mov_b32 v22, 0""")
    for j in range(2):
        k(f"buffer_load_dwordx4 v[{40+4*j}:{43+4*j}], v9, s[56:59], 0 offen offset:{j*1024}")
    k("s_waitcnt vmcnt(0)")
    for i in range(8): unpack_bf16(k, 48 + 2*i, 40 + i)
    k(f"""s_cmp_lg_u32 s16, 0
    s_cbranch_scc1 x_gox""")
    k(f"s_lshl_b32 s79, s34, 7\ns_add_u32 s79, s79, {WS_GO}")
    poll_recs(k, "x_go", 28, 22, 79, "1", sl=E("SLG", 3))
    k("s_barrier")
    k.c("sb in slot order, sb and gb of this job's columns")
    k(f"""v_bfe_u32 v18, v0, 5, 1
    v_lshlrev_b32 v18, 11, v18
    v_bfe_u32 v19, v0, 4, 1
    v_lshl_add_u32 v18, v19, 9, v18
    v_bfe_u32 v19, v0, 2, 2
    v_lshl_add_u32 v18, v19, 7, v18
    v_lshl_add_u32 v18, v4, 4, v18
    s_mov_b32 s42, {WS_FIN + 5*4096}
    s_sub_u32 s43, s31, 4096
    s_mov_b32 s83, 0
    x_sb:""")
    for j in range(4):
        k(f"buffer_load_dwordx4 v[{100+4*j}:{103+4*j}], v18, s[12:15], s42 offen offset:{(j>>1)*64 + (j&1)*1024} sc1")
    k("""buffer_load_dword v90, v6, s[12:15], s43 offen sc1
    buffer_load_dword v91, v6, s[12:15], s31 offen sc1
    s_waitcnt vmcnt(0)""")
    untag(k, range(100, 116), 216, 19)
    k("v_xor_b32 v90, v88, v90\nv_xor_b32 v91, v88, v91\nv_or3_b32 v19, v19, v90, v91")
    tagchk(k, 19)
    k("s_cbranch_vccz x_sbx")
    spin(k, "x_sb", 12)
    k("x_sbx:")
    k("s_cmp_lg_u32 s16, 0\ns_cbranch_scc1 x_ng")
    if E("XKS", 4): k(f"s_sleep {E('XKS', 4)}")
    poll_keys(k, "x_pk", 24, 78, 32, sl=2)
    top2(k, 24, 32)
    k(f"""v_mov_b32 v28, s40
    v_mov_b32 v29, s41
    ds_write_b64 v10, v[28:29]
    s_waitcnt lgkmcnt(0)
    x_ng:
    s_barrier
    ds_read_b64 v[28:29], v10
    s_waitcnt lgkmcnt(0)
    v_readfirstlane_b32 s40, v28
    v_readfirstlane_b32 s41, v29""")
    stamp(k, 13)
    k(f"""s_cmp_lt_u32 s17, 64
    s_cselect_b32 s40, s40, s41
    s_bfe_u32 s46, s40, 0x70005
    s_bfe_u32 s47, s40, 0x30002
    s_bfe_u32 s48, s40, 0x10001""")
    slot_of(42, 40)
    k(f"""s_add_u32 s42, s42, {WS_SLOT}
    s_add_u32 s43, s42, s45
    s_mov_b32 s83, 0
    x_ps:""")
    for j in range(2):
        k(f"buffer_load_dwordx4 v[{32+4*j}:{35+4*j}], v3, s[12:15], s42 offen offset:{j*1024} sc1")
    k("buffer_load_dword v40, v86, s[12:15], s43 offen offset:2048 sc1")
    k("buffer_load_dword v41, v86, s[12:15], s43 offen sc1")
    row_of(k, 41, 46, 47, 49)
    mirror_row(k, 49, 41)
    k("""s_cmp_eq_u32 s48, 1
    s_cselect_b32 s41, s49, s41
    s_lshl_b32 s41, s41, 11
    s_lshl_b32 s49, s18, 5
    s_add_u32 s41, s41, s49
    s_waitcnt vmcnt(0)""")
    chk_sent(k, range(32, 42), 9)
    k("s_cbranch_vccz x_psx")
    spin(k, "x_ps", 1)
    k("x_psx:")
    for i in range(8): unpack_bf16(k, 64 + 2*i, 32 + i)
    for i in range(8): padd(k, 64 + 2*i, 64 + 2*i, 100 + 2*i)
    for i in range(8): rb2(k, 64 + 2*i, 9)
    pmul(k, 8, 48, 64)
    for i in range(1, 8): pfma(k, 8, 48 + 2*i, 64 + 2*i, 8)
    k("v_add_f32 v8, v8, v9")
    wave_reduce_to63(k, [8])
    round_bf16(k, 8, 8)
    k(f"""v_mul_f32 v8, {LOG2E}, v8
    v_exp_f32 v8, v8
    v_add_f32 v8, 1.0, v8
    v_rcp_f32 v8, v8""")
    round_bf16(k, 8, 8)
    k("v_readlane_b32 s46, v8, 63")
    k("v_lshrrev_b32 v44, v87, v40\nv_lshlrev_b32 v44, 16, v44\nv_mul_f32 v80, s46, v91")
    k("v_lshrrev_b32 v41, v87, v41\nv_lshlrev_b32 v41, 16, v41\nv_add_f32 v41, v41, v90")
    round_bf16(k, 41, 41)
    k("v_fmac_f32 v44, v91, v41")
    stamp(k, 15)
    L = 16
    if E("SL4", 44): k(f"s_sleep {E('SL4', 44)}")
    k(f"s_mov_b32 s83, 0")
    pl = lambda j: f"buffer_load_dwordx4 v[{L+4*j}:{L+4*j+3}], v{7 if j == 3 else 3}, s[12:15], s44 offen offset:{j*1024} sc1"
    for j in range(4): k(pl(j))
    k("x_p2:\ns_waitcnt vmcnt(0)")
    chk_sent(k, range(L, L + 16), 12)
    k("s_cbranch_vccz x_p3")
    for j in range(4):
        chk_sent(k, range(L + 4*j, L + 4*j + 4), 12)
        k(f"s_and_saveexec_b64 s[50:51], vcc\ns_cbranch_execz x_q{j}\n{pl(j)}\nx_q{j}:\ns_mov_b64 exec, -1")
    spin(k, "x_p2", 0)
    k("s_waitcnt vmcnt(0)\nx_p3:")
    stamp(k, 17)
    for h in range(2):
        padd(k, L + 2*h, L + 2*h, L + 4 + 2*h); padd(k, L + 8 + 2*h, L + 8 + 2*h, L + 12 + 2*h)
    for h in range(2): padd(k, L + 2*h, L + 2*h, L + 8 + 2*h)
    k(f"v_permlane32_swap_b32 v{L}, v{L+2}\nv_permlane32_swap_b32 v{L+1}, v{L+3}")
    padd(k, L, L, L + 2)
    k(f"v_permlane16_swap_b32 v{L}, v{L+1}\nv_add_f32 v{L}, v{L}, v{L+1}")
    for sh in (4, 8): k(f"v_add_f32_dpp v{L}, v{L}, v{L} row_ror:{sh} {DPPM}")
    k(f"""v_fmac_f32 v44, v{L}, v80
    s_mov_b32 exec_lo, 0x000f000f
    s_mov_b32 exec_hi, 0x000f000f
    v_cvt_pk_bf16_f32 v44, v44, v44
    buffer_store_short v44, v5, s[24:27], s41 offen""")
    stamp_out(k, 0)
    k("s_endpgm")

def gen():
    k = K(NAME)
    stamp_init(k)
    k("""s_cmp_ge_u32 s2, 256
    s_cbranch_scc1 k_done""")
    stamp(k, 0)
    head(k)
    role_F(k)
    n0 = len(k.lines)
    role_G(k)
    g = k.lines[n0:]; f = k.lines[:n0]
    ix = lambda L, t: [x.strip() for x in L].index(t)
    a, b = ix(g, "@@L0@@"), ix(g, "@@L1@@")
    ld = g[a+1:b]; g = g[:a] + g[b+1:]
    a = ix(g, "@@L@@"); g = g[:a] + ld + g[a+1:]
    a = ix(f, "@@G@@"); k.lines = f[:a] + g + f[a+1:]
    k("k_done:\ns_endpgm")
    return k

HEADER = """; adaLN + FNet mixing + MoD block, gfx950.  Generated by gen/gen20.py (hand-written generator).
"""
def tables():
    import numpy as np
    def h2(a, b):
        return int(np.float16(a).view(np.uint16)) | (int(np.float16(b).view(np.uint16)) << 16)
    def f4(a): return int(np.float32(a).view(np.uint32))
    cs = lambda x: (math.cos(2 * math.pi * x), math.sin(2 * math.pi * x))
    w = []
    for arr in range(4):
        for q in range(4):
            for l in range(64):
                n, h = l & 31, l >> 5
                e = 16 * ((n >> 2) & 1) + 4 * (n >> 3) + (n & 3)
                for i in range(4):
                    idx = 8 * q + 4 * h + i
                    c, s_ = cs((idx * e % 32) / 32.0) if arr < 2 else cs(idx * e / 1024.0)
                    w.append((h2(c, s_), h2(-s_, c), f4(c), f4(s_))[arr])
    for var in range(2):
        for mt in range(2):
            for l in range(64):
                m, g = l & 15, l >> 4
                k1, p = 8 * mt + (m >> 1), m & 1
                for i in range(4):
                    j0 = 4 * g + i
                    if var == 0:
                        c, s_ = cs((j0 * k1 % 16) / 16.0)
                        v = (h2(c, s_), h2(-s_, c))[p]
                    elif k1 == 0:
                        v = h2(1.0 if p == 0 else (-1.0) ** j0, 0)
                    elif k1 < 8:
                        c, s_ = cs((j0 * k1 % 16) / 16.0)
                        v = h2((c, -s_)[p], 0)
                    else:
                        c, s_ = cs(j0 * (8 + 16 * (k1 - 8)) / 256.0)
                        v = h2(0, (c, -s_)[p])
                    w.append(v)
    t = ".p2align 8\n.type tables,@object\ntables:\n"
    for i in range(0, len(w), 8):
        t += ".long " + ",".join("0x%x" % x for x in w[i:i+8]) + "\n"
    return t + f".size tables, {4*len(w)}\nall_end:\n"

def main(out):
    k = gen()
    t = HEADER + f"; @launch grid=(256,1,1) block=(512,1,1) lds={LDS}\n"
    t += '.amdgcn_target "amdgcn-amd-amdhsa--gfx950"\n.text\n' + k.text() + 'code_end:\n' + tables()
    t += '.section .rodata,"a"\n' + k.desc()
    open(out, "w").write(t)
if __name__ == "__main__":
    main(sys.argv[1] if len(sys.argv) > 1 else "adaLN_cond__spectral_fnet__moe_arch_mod__prompt.s")
```

```python
import math, sys, os
from asmgen import K, f32
from gen2 import (srd, P, padd, psub, pmul, pfma, pmul_s, pfma_s, psub_s, unpack_bf16, round_bf16, DPPM,
                  row_allreduce, wave_reduce_to63, pos16, stamp, stamp_init, stamp_out, chk_sent,
                  A_X, A_WR, A_WG, A_WU, A_WD, A_C, A_WM, A_OUT, A_DBG, A_WS, WS_SIZE)
from gen4 import E, SPIN, NAME

WS_Z    = 0x0100000
WS_STA  = 0x1000000
WS_STB  = 0x1008000
WS_GO   = 0x1010000
WS_REC  = 0x1012000
WS_FIN  = 0x1018000
WS_HM   = 0x1080000
HM_B    = 0x20000
WS_MPA  = 0x1300000
WS_MPB  = 0x1380000
WS_PART = 0x1100000
WS_XA   = 0x1180000
WS_XB   = 0x11C0000
WS_KEY  = 0x1040000
WS_SLOT = 0x1200000
P_CS, P_SAS, P_GA, P_GAM, P_Q, P_QM, P_C1, P_C1M, P_SB, P_SBM, P_GB, P_GBM, P_END = (
    0, 2048, 4096, 8192, 12288, 16384, 20480, 24576, 28672, 32768, 36864, 40960, 45056)
L_C = 0; L_P = 16384; L_X = L_P + P_END; L_U = L_X + 32768; L_R = L_U + 32768; L_KEY = L_R + 32768
L_ST = L_KEY + 1024
LDS = 163840
XW = 64
assert L_KEY + 256 <= LDS
LOG2E = f32(-math.log2(math.e))
SL2 = E("SL2", 4)

class VM:
    def __init__(self, k): self.k = k; self.q = []
    def __call__(self, tag, text): self.k(text); self.q.append(tag)
    def wait(self, tag, extra=""):
        i = len(self.q) - 1 - self.q[::-1].index(tag)
        self.k(f"s_waitcnt vmcnt({len(self.q) - 1 - i}) {extra}")

def cmp_recs(k, base):
    k(f"v_cmp_ne_u64 vcc, s[32:33], v[{base}:{base+1}]")
def spin(k, lab, sl):
    k(f"""{f"s_sleep {sl}" if sl else ""}
    s_add_u32 s83, s83, 1
    s_cmp_lt_u32 s83, {SPIN}
    s_cbranch_scc1 {lab}""")
def poll_recs(k, lab, base, vaddr, soff, mask, sl=SL2):
    k(f"s_mov_b32 s83, 0\ns_mov_b64 exec, {mask}\n{lab}:")
    k(f"buffer_load_dwordx2 v[{base}:{base+1}], v{vaddr}, s[12:15], s{soff} offen sc1")
    k("s_waitcnt vmcnt(0)")
    cmp_recs(k, base)
    k(f"s_cbranch_vccz {lab}y")
    spin(k, lab, sl)
    k(f"{lab}y:\ns_mov_b64 exec, -1\n{lab}x:")
def poll_keys(k, lab, base, soff, tmp, sl=1):
    k(f"""v_lshlrev_b32 v{tmp}, 7, v2
    s_add_u32 s42, s{soff}, 8192
    s_mov_b32 s83, 0
    s_mov_b64 vcc, -1
    s_mov_b64 s[40:41], -1
    {lab}:
    s_mov_b64 exec, vcc
    s_cbranch_execz {lab}a
    buffer_load_dwordx4 v[{base}:{base+3}], v{tmp}, s[12:15], s{soff} offen sc1
    {lab}a:
    s_mov_b64 exec, s[40:41]
    s_cbranch_execz {lab}b
    buffer_load_dwordx4 v[{base+4}:{base+7}], v{tmp}, s[12:15], s42 offen sc1
    {lab}b:
    s_mov_b64 exec, -1
    s_waitcnt vmcnt(0)
    {lab}c:
    v_cmp_ne_u32 vcc, s32, v{base+1}
    v_cmp_ne_u32 s[20:21], s33, v{base+3}
    v_cmp_ne_u32 s[40:41], s32, v{base+5}
    v_cmp_ne_u32 s[22:23], s33, v{base+7}
    v_max_u32 v{tmp+1}, v{base}, v{base+4}
    v_min_u32 v{tmp+2}, v{base}, v{base+4}
    s_or_b64 vcc, vcc, s[20:21]
    s_or_b64 s[40:41], s[40:41], s[22:23]
    s_or_b64 s[20:21], vcc, s[40:41]
    s_cbranch_scc0 {lab}x""")
    spin(k, lab, sl)
    k(f"{lab}x:")
def top2(k, base, tmp, skip=None):
    m1, m2, c = tmp + 1, tmp + 2, tmp + 3
    k(f"v_mov_b32 v{c}, v{m1}")
    k(f"v_max3_u32 v{m2}, v{m2}, v{base+2}, v{base+6}")
    wave_reduce_to63(k, [c], "v_max_u32")
    k(f"v_readlane_b32 s40, v{c}, 63")
    if skip: k(f"s_cmp_eq_u32 s65, 0\ns_cbranch_scc1 {skip}")
    k(f"v_cmp_eq_u32 vcc, s40, v{m1}")
    k(f"v_cndmask_b32 v{c}, v{m1}, v{m2}, vcc")
    wave_reduce_to63(k, [c], "v_max_u32")
    k(f"v_readlane_b32 s41, v{c}, 63")
def go_wait(k, lab, soff, vz, vd):
    poll_recs(k, lab, vd, vz, soff, "1", sl=E("SLG", 3))
    if E("SLG2", 1): k(f"s_sleep {E('SLG2', 1)}")
def nonce_issue(k, sp, off):
    k(f"s_load_dwordx2 s[32:33], s[{sp}:{sp+1}], {off}")
def nonce_finish(k, lab, sp, off, vt):
    k(f"""s_waitcnt lgkmcnt(0)
    s_cmp_lg_u32 s32, 0
    s_cbranch_scc1 {lab}x
    s_load_dwordx2 s[32:33], s[{sp}:{sp+1}], {off}
    s_mov_b32 s83, 0
    v_mov_b32 v{vt+2}, 0
    s_waitcnt lgkmcnt(0)
    {lab}:
    s_cmp_lg_u32 s32, 0
    s_cbranch_scc1 {lab}x
    global_load_dwordx2 v[{vt}:{vt+1}], v{vt+2}, s[{sp}:{sp+1}] sc1
    s_waitcnt vmcnt(0)
    v_readfirstlane_b32 s32, v{vt}
    v_readfirstlane_b32 s33, v{vt+1}""")
    spin(k, lab, 0)
    k(f"{lab}x:")
def rb2(k, v, t):
    k(f"v_cvt_pk_bf16_f32 v{t}, v{v}, v{v+1}")
    unpack_bf16(k, v, t)
def row_of(k, d, q, w, t1):
    k(f"""s_lshr_b32 s{t1}, s{q}, 4
    s_and_b32 s{d}, s{q}, 15
    s_lshl_b32 s{d}, s{d}, 4
    s_add_u32 s{d}, s{d}, s{t1}
    s_lshr_b32 s{t1}, s{q}, 3
    s_cmp_eq_u32 s{t1}, 1
    s_cselect_b32 s{t1}, 120, 0
    s_sub_u32 s{d}, s{d}, s{t1}
    s_lshl_b32 s{t1}, s{w}, 8
    s_add_u32 s{d}, s{d}, s{t1}
    s_cmp_ge_u32 s{w}, 4
    s_cselect_b32 s{t1}, 896, 0
    s_cmp_eq_u32 s{q}, 0
    s_cselect_b32 s{t1}, s{t1}, 0
    s_sub_u32 s{d}, s{d}, s{t1}""")
def mirror_row(k, d, t):
    k(f"""s_sub_u32 s{d}, 2048, s{t}
    s_cmp_eq_u32 s{t}, 0
    s_cselect_b32 s{d}, 1024, s{d}""")

def mtag(k, d, idx):
    k(f"""v_mov_b32 v{d}, s32
    v_mov_b32 v{d+1}, s33
    v_and_b32 v{d+2}, 7, v{idx}
    v_lshlrev_b32 v{d+2}, 3, v{d+2}
    v_lshrrev_b64 v[{d}:{d+1}], v{d+2}, v[{d}:{d+1}]""")
def mtag4(k, d):
    k(f"""v_mov_b32 v{d}, s32
    v_mov_b32 v{d+1}, s33
    v_and_b32 v{d+2}, 1, v0
    v_cmp_eq_u32 vcc, 1, v{d+2}
    v_cndmask_b32 v{d}, v{d}, v{d+1}, vcc
    v_bfe_u32 v{d+1}, v{d}, 8, 8
    v_bfe_u32 v{d+2}, v{d}, 16, 8
    v_lshrrev_b32 v{d+3}, 24, v{d}
    v_and_b32 v{d}, 0xff, v{d}""")
def htag(k, d):
    k(f"""s_and_b32 s{d}, s32, 0xffff
    s_lshr_b32 s{d+1}, s32, 16
    s_and_b32 s{d+2}, s33, 0xffff
    s_lshr_b32 s{d+3}, s33, 16""")
def untag(k, regs, tg, acc, first=True):
    regs = list(regs)
    for i, r in enumerate(regs): k(f"v_xor_b32 v{r}, v{tg+(i&3)}, v{r}")
    for i in range(0, len(regs), 2):
        k(f"v_or3_b32 v{acc}, v{regs[i]}, v{regs[i+1]}, {'0' if first and i == 0 else f'v{acc}'}")
def tagchk(k, acc):
    k(f"v_and_b32 v{acc}, 0xff, v{acc}\nv_cmp_ne_u32 vcc, 0, v{acc}")

def stats(k, vm, pre, lastpre, extra=()):
    S = 108; R = 112
    k(f"s_mov_b32 s4, 0x3f803f80\ns_mov_b32 s5, {f32(1.0/1024)}")
    for h in range(2):
        for jj in range(2):
            vm.wait(f"x{h}{jj}")
            if h == 0 and jj == 0: nonce_issue(k, 20, 0)
            if 2*h + jj < len(extra): extra[2*h + jj]()
            for q in range(4):
                r = XW + 8*jj + 4*h + q
                first = (h == 0 and q == 0)
                k(f"v_dot2_f32_bf16 v{S+jj}, v{r}, s4, {'0' if first else f'v{S+jj}'}")
                k(f"v_dot2_f32_bf16 v{S+2+jj}, v{r}, v{r}, {'0' if first else f'v{S+2+jj}'}")
    k("s_nop 1")
    def red1(js):
        for j in js: k(f"v_permlane32_swap_b32 v{S+j}, v{S+j+1}")
        for j in js: k(f"v_add_f32 v{S+j}, v{S+j}, v{S+j+1}")
        regs = [S + j for j in js]
        row_allreduce(k, regs)
        for r in regs: k(f"v_add_f32_dpp v{r}, v{r}, v{r} row_bcast:15 row_mask:0xa bank_mask:0xf")
    red1((0, 2))
    k.c("lanes 31 / 63 hold the two rows")
    V = S + 2
    k(f"""v_mul_f32 v{S}, s5, v{S}
    v_mul_f32 v{V}, s5, v{V}
    v_mul_f32 v{R+4}, v{S}, v{S}
    v_cvt_pk_bf16_f32 v{R+5}, -v{S}, -v{S}
    v_sub_f32 v{V}, v{V}, v{R+4}
    v_mul_f32 v{R+6}, {f32(512.0)}, v{V}
    v_cmp_gt_f32 vcc, v{R+4}, v{R+6}
    v_readlane_b32 s40, v{R+5}, 31
    s_or_b32 s41, vcc_lo, vcc_hi
    s_bitcmp1_b32 s41, 31
    s_cbranch_scc1 {pre}_slowvar
    {pre}_var:""")
    round_bf16(k, V, V)
    k(f"v_add_f32 v{V}, {f32(1e-5)}, v{V}")
    round_bf16(k, V, V)
    k(f"v_sqrt_f32 v{V}, v{V}")
    k(f"s_and_b32 s40, s40, 0xffff\nv_mov_b32 v{R+2}, 0xffff0000")
    round_bf16(k, V, V)
    k(f"""v_mul_f32 v{V}, {f32(16.0)}, v{V}
    v_and_or_b32 v{R+2}, v{R+5}, v{R+2}, s40
    v_rcp_f32 v{R+1}, v{V}""")
    nonce_finish(k, f"{pre}_nn", 20, 64, 120)
    k(f"""v_mov_b32 v{R+3}, s32
    v_mov_b32_dpp v{R}, v{R+1} row_bcast:31 row_mask:0xc bank_mask:0xf
    v_mov_b32 v{R+4}, 0""")
    if lastpre: vm.wait(lastpre)
    k("s_mov_b32 exec_lo, 0\ns_mov_b32 exec_hi, 0x80000000")
    k(f"buffer_store_dwordx4 v[{R}:{R+3}], v{R+4}, s[12:15], s62 offen")
    k(f"v_lshlrev_b32 v{R+5}, 4, v1\nv_add_u32 v{R+5}, {L_ST}, v{R+5}\nds_write_b128 v{R+5}, v[{R}:{R+3}]")
    k("s_mov_b64 exec, -1")
    def slow():
        k.c("---- rare: |mean| >> std, recompute the variance in two passes ----")
        k(f"{pre}_slowvar:")
        U2 = 120
        k(f"v_lshlrev_b32 v{R+6}, 16, v{R+5}")
        k(f"v_readlane_b32 s44, v{R+6}, 31\nv_readlane_b32 s46, v{R+6}, 63")
        for jj in range(2):
            sr = 44 + 2 * jj
            for i in range(8):
                unpack_bf16(k, U2, XW + jj * 8 + i)
                k(f"v_pk_add_f32 {P(U2)}, {P(U2)}, s[{sr}:{sr+1}] op_sel_hi:[1,0]")
                if i == 0: pmul(k, U2 + 2, U2, U2)
                else: pfma(k, U2 + 2, U2, U2, U2 + 2)
            k(f"v_add_f32 v{S+2+jj}, v{U2+2}, v{U2+3}")
        k(f"v_add_f32 v{R+6}, v{R+6}, v{S}")
        red1((2,))
        k(f"""v_mul_f32 v{S+2}, s5, v{S+2}
        v_fma_f32 v{S+2}, -v{R+6}, v{R+6}, v{S+2}
        v_max_f32 v{S+2}, 0, v{S+2}
        s_branch {pre}_var""")
    return slow

def stats_b(k):
    k(f"""v_add_u32 v116, {L_ST}, v3
    s_mov_b64 exec, 0xff
    ds_read_b128 v[112:115], v116
    s_waitcnt lgkmcnt(0)
    buffer_store_dwordx4 v[112:115], v3, s[12:15], s63 offen sc1
    s_mov_b64 exec, -1""")

def head(k):
    k(f"""s_load_dwordx2 s[4:5], s[0:1], {A_X}
    s_load_dwordx4 s[24:27], s[0:1], {A_OUT}
    s_load_dwordx2 s[6:7], s[0:1], {A_WS}
    s_load_dwordx4 s[56:59], s[0:1], {A_C}
    s_load_dwordx4 s[48:51], s[0:1], {A_WR}
    s_load_dwordx4 s[52:55], s[0:1], {A_WU}
    s_memrealtime s[32:33]
    v_lshrrev_b32 v1, 6, v0
    v_and_b32 v2, 63, v0
    v_readfirstlane_b32 s16, v1
    v_lshlrev_b32 v3, 4, v2
    v_mov_b32 v4, 0
    s_getpc_b64 s[36:37]
    h_pc:
    s_and_b32 s34, s2, 7
    s_bfe_u32 s35, s2, 0x40003
    s_cmp_lg_u32 s16, 7
    s_cbranch_scc1 h_npf
    s_lshr_b32 s42, s2, 3
    s_lshl_b32 s42, s42, 11
    v_lshl_add_u32 v4, v2, 7, s42
    v_min_u32 v4, all_end-h_pc-4, v4
    s_mov_b64 exec, 0xffff
    global_load_dword v199, v4, s[36:37]
    s_mov_b64 exec, -1
    h_npf:
    s_mov_b32 s11, 0x00020000
    s_mov_b32 s14, {WS_SIZE}
    s_mov_b32 s15, 0x00020000
    s_bitcmp0_b32 s2, 7
    s_cbranch_scc1 g_start""")
HQ = ["x00", "x01", "x10", "x11", "touch"]

def role_F(k):
    vm = VM(k); vm.q = list(HQ)
    N16, G4, VO, TR, UW, XD, XDM, SLA, SLM, V70, FA, BP, A3 = 4, 5, 6, 8, 12, 13, 14, 15, 16, 17, 18, 19, 22
    ZL, W, D1R, D1I, BRE, BIM, TC, TS, XA2, XB2, GA, GAM, Q, QM, CS = 24, 40, 56, 72, 88, 104, 120, 136, 152, 168, 184, 200, 216, 232, 248
    AB, S, XB, AH, D0, D, UO, A2, UB = 216, 24, 40, 224, 228, 56, 184, 236, 152
    T = 248; TG = 244; FT = 8; PFD = 6; FLW = E("FLW", 4); XR = E("XR", 1)
    k(f"""s_lshl_b32 s60, s16, 19
    s_lshl_b32 s61, s35, 15
    s_add_u32 s60, s60, s61
    s_lshl_b32 s61, s34, 11
    s_add_u32 s60, s60, s61
    s_add_u32 s61, s60, 16384
    s_lshl_b32 s62, s34, 11
    s_lshl_b32 s63, s35, 7
    s_add_u32 s62, s62, s63
    s_add_u32 s63, s62, {WS_STB}
    s_lshl_b32 s42, s16, 4
    s_add_u32 s62, s62, s42
    s_add_u32 s62, s62, {WS_STA}
    v_mov_b32 v116, 0
    s_mov_b32 s10, {2048*1024*2}
    s_waitcnt lgkmcnt(0)
    s_mov_b32 s8, s4
    s_mov_b32 s9, s5
    s_mov_b32 s12, s6
    s_mov_b32 s13, s7""")
    stamp(k, 1)
    for h in range(2):
        for jj in range(2):
            k(f"buffer_load_dwordx4 v[{XW+8*jj+4*h}:{XW+8*jj+4*h+3}], v3, s[8:11], s{60+jj} offen offset:{h*1024}")
    k(f"""s_mov_b64 exec, 1
    buffer_load_dword v215, v116, s[12:15], s62 offen sc1
    s_mov_b64 exec, -1
    s_branch f_start
    @@G@@
    f_start:
    s_mov_b32 s20, s26
    s_mov_b32 s21, s27
    s_mov_b32 s26, 4194304
    s_mov_b32 s27, 0x00020000
    s_mov_b32 s22, s50
    s_mov_b32 s23, s51
    s_mov_b32 s28, s54
    s_mov_b32 s29, s55
    s_add_u32 s58, s36, tables-h_pc
    s_addc_u32 s59, s37, 0""")
    k.c("s36 = k0 slot of this wave in the second radix-16 step ; s37 = column-block pair read after the exchange")
    k(f"""s_lshr_b32 s36, s35, 1
    s_and_b32 s36, s36, 4
    s_xor_b32 s36, s36, s16
    s_and_b32 s37, s34, 4
    s_xor_b32 s37, s37, s16""")
    k(f"""s_lshl_b32 s3, s34, 4
    s_add_u32 s3, s3, s35
    v_and_b32 v{N16}, 15, v0
    v_bfe_u32 v{G4}, v0, 4, 2
    v_lshrrev_b32 v{T}, 3, v2
    v_lshlrev_b32 v{T}, 18, v{T}
    v_lshlrev_b32 v{T+1}, 1, v{G4}
    v_xor_b32 v{T+1}, v{T+1}, v0
    v_and_b32 v{T+1}, 7, v{T+1}
    v_lshl_add_u32 v{T+7}, v{T+1}, 4, v{T}
    v_lshlrev_b32 v{VO}, 16, v{G4}
    v_lshl_add_u32 v{VO}, v{N16}, 4, v{VO}
    s_lshl_b32 s60, s16, 15
    s_lshl_b32 s61, s34, 11
    s_add_u32 s60, s60, s61
    s_lshl_b32 s61, s35, 7
    s_add_u32 s60, s60, s61
    s_lshl_b32 s61, s16, 12
    s_add_u32 s61, s61, {L_X}
    s_lshl_b32 s64, s36, 19
    s_lshl_b32 s65, s35, 3
    s_and_b32 s66, s34, 1
    s_lshl_b32 s66, s66, 2
    s_add_u32 s65, s65, s66
    s_lshr_b32 s66, s34, 1
    s_add_u32 s65, s65, s66
    s_lshl_b32 s65, s65, 8
    s_add_u32 s64, s64, s65
    s_add_u32 s64, s64, {WS_Z}
    s_add_u32 s65, s64, 32768
    s_add_u32 s66, s64, {8*32768}
    s_add_u32 s67, s64, {9*32768}
""")
    def tile(i):
        k(f"s_mov_b32 m0, s61\ns_add_u32 s42, s60, {(i&1)*8*262144 + (i>>1)*16384}\ns_add_u32 s61, s61, 1024")
        vm("tile", f"buffer_load_dwordx4 v{T+7}, s[8:11], s42 offen lds")
    def tabs():
        k(f"""s_cmp_eq_u32 s36, 0
        s_cselect_b32 s42, 2048, 0
        s_add_u32 s42, s42, 16384
        v_add_u32 v{T}, s42, v3""")
        vm("tab", f"global_load_dwordx4 v[{A2}:{A2+3}], v{T}, s[58:59]")
        vm("tab", f"global_load_dwordx4 v[{A2+4}:{A2+7}], v{T}, s[58:59] offset:1024")
    def tabs2():
        k(f"s_lshl_b32 s42, s16, 11\ns_mov_b32 m0, s42\nv_add_u32 v{T}, s42, v3")
        vm("tab", f"global_load_lds_dwordx4 v{T}, s[58:59]")
        vm("tab", f"global_load_lds_dwordx4 v{T}, s[58:59] offset:1024")
    TL = E("TL", 2)
    k("s_barrier")
    tabs()
    if TL == 0:
        for i in range(4): tile(i)
    def rowaddr():
        row_of(k, 30, 3, 16, 42)
        mirror_row(k, 31, 30)
        k(f"""s_lshl_b32 s18, s30, 11
        s_lshl_b32 s19, s31, 11
        s_sub_u32 s75, s19, 2048
        s_lshl_b32 s68, s16, 12
        s_add_u32 s68, s68, {L_R}""")
    rowaddr()
    k.c("first-step matrix: lane m = 2*k0+p, rows j1 = 4g+i, angle k0*(16*j1+j0)/256")
    k(f"""v_lshrrev_b32 v{T}, 1, v{N16}
    v_and_b32 v{T+1}, 1, v0
    v_cmp_eq_u32 vcc, 1, v{N16}
    v_cndmask_b32_e64 v{T+2}, v{T}, 0, vcc
    v_cndmask_b32_e64 v{T}, v{T}, 8, vcc
    v_cndmask_b32_e64 v{T+1}, v{T+1}, 0, vcc
    v_mad_u32_u24 v{T+3}, v{T}, v{G4}, v{T+1}
    v_lshlrev_b32 v{T+3}, 5, v{T+3}
    v_mad_u32_u24 v{T+3}, v{T+2}, v1, v{T+3}
    v_cvt_f32_u32 v{T}, v{T}
    v_cvt_f32_u32 v{T+2}, v{T+2}
    v_cvt_f32_u32 v{T+3}, v{T+3}
    v_mul_f32 v{T}, {f32(1.0/16)}, v{T}
    v_mul_f32 v{T+2}, {f32(1.0/256)}, v{T+2}
    v_mul_f32 v{AB}, {f32(1.0/128)}, v{T+3}""")
    for i in range(1, 4): k(f"v_add_f32 v{AB+i}, v{AB+i-1}, v{T}")
    for i in range(4): k(f"v_add_f32 v{AB+4+i}, v{AB+i}, v{T+2}")
    for i in range(8): k(f"v_cos_f32 v{AB+i}, v{AB+i}")
    UWA, URA = 212, 213
    k(f"""v_lshrrev_b32 v{T}, 2, v2
    v_lshlrev_b32 v{TR}, 7, v{T}
    v_bfe_u32 v{T}, v0, 3, 2
    v_lshl_add_u32 v{TR}, v{T}, 5, v{TR}
    v_and_b32 v{T}, 3, v0
    v_lshl_add_u32 v{TR}, v{T}, 3, v{TR}
    v_lshl_add_u32 v{TR}, v1, 12, v{TR}
    v_xor_b32 v{TR+1}, 32, v{TR}
    v_xor_b32 v{TR+2}, 64, v{TR}
    v_xor_b32 v{TR+3}, 96, v{TR}
    v_lshlrev_b32 v{UW}, 13, v{G4}
    v_lshl_add_u32 v{UW}, v{N16}, 4, v{UW}
    v_lshlrev_b32 v7, 5, v{G4}
    v_and_b32 v{T}, 1, v0
    v_lshl_add_u32 v7, v{T}, 10, v7
    v_and_b32 v{T}, 2, v0
    v_lshl_add_u32 v7, v{T}, 3, v7
    s_lshl_b32 s70, s34, 11
    s_lshl_b32 s71, s16, 7
    s_add_u32 s71, s71, s70
    s_add_u32 s71, s71, {WS_STA}
    s_lshr_b32 s42, s16, 1
    s_lshl_b32 s42, s42, 8
    s_and_b32 s43, s16, 1
    s_lshl_b32 s43, s43, 3
    s_add_u32 s42, s42, s43
    s_add_u32 s42, s42, {L_U}
    v_add_u32 v{UWA}, s42, v{UW}
    s_lshl_b32 s42, s36, 12
    s_add_u32 s42, s42, {L_U}
    v_add_u32 v{URA}, s42, v3""")
    slow1 = stats(k, vm, "f", None, [(lambda i=i: tile(i)) for i in range(4)] if TL == 1 else ())
    vm.q.append("sta")
    if TL == 3: k("s_barrier")
    if TL >= 2:
        for i in range(4): tile(i)
    k(f"s_lshl_b32 s69, s16, 11\nv_add_u32 v{T+6}, s69, v3")
    k.c("the first row is this wave's output row: keep it")
    k(f"v_add_u32 v{T}, s68, v3")
    for h in range(2): k(f"ds_write_b128 v{T}, v[{XW+4*h}:{XW+4*h+3}] offset:{h*1024}")
    k.c("tag bits: 8 bits of the nonce per 16-byte piece, all 64 bits over eight neighbouring lanes")
    k(f"""v_mov_b32 v{TG}, s32
    v_mov_b32 v{TG+1}, s33
    v_and_b32 v{T}, 4, v0
    v_cmp_eq_u32 vcc, 4, v{T}
    v_and_b32 v{T}, 3, v0
    v_lshlrev_b32 v{T}, 2, v{T}
    v_cndmask_b32 v{TG}, v{TG}, v{TG+1}, vcc
    v_lshrrev_b32 v{TG}, v{T}, v{TG}
    s_mov_b32 s54, 0x00010001
    s_mov_b32 s55, 0xfffefffe
    s_mov_b32 s46, 0x05040100
    s_mov_b32 s47, 0x07060302""")
    for i in range(1, 4): k(f"v_lshrrev_b32 v{TG+i}, {i}, v{TG}")
    for i in range(4): k(f"v_and_b32 v{TG+i}, s54, v{TG+i}")
    k.c("---- LN1 statistics of this wave's 32 rows (same-die copy first, now and then the write-through copy) ----")
    stl = lambda so: f"""s_mov_b32 exec_lo, 0x000f000f
    s_mov_b32 exec_hi, 0x000f000f
    buffer_load_dwordx4 v[{S}:{S+3}], v7, s[12:15], s{so} offen sc1"""
    k(f"s_waitcnt vmcnt({E('STW', 2)})")
    k(stl(71) + "\ns_mov_b64 exec, -1\ns_mov_b32 s83, 0\ns_waitcnt vmcnt(1)")
    stamp(k, 2)
    for jj in range(2):
        for nt in range(4):
            b = XB + (jj*4 + nt)*2
            k(f"ds_read_b64_tr_b16 v[{b}:{b+1}], v{TR+nt} offset:{L_X + jj*2048}")
    k(f"""s_mov_b32 exec_lo, 0x000f000f
    s_mov_b32 exec_hi, 0x000f000f
    f_st:
    s_waitcnt vmcnt(0)
    v_cmp_ne_u32 vcc, s32, v{S+3}
    s_mov_b64 exec, -1
    s_cbranch_vccnz f_str
    f_stx:
    s_setprio 3""")
    def st_retry():
        k(f"""f_str:
        s_and_b32 s42, s83, 31
        s_cmp_lg_u32 s42, 24
        s_cbranch_scc1 f_sb1""")
        stats_b(k)
        k(f"""f_sb1:
        s_cmp_eq_u32 s42, 31
        s_cselect_b32 s42, {WS_STB - WS_STA}, 0
        s_add_u32 s42, s42, s71""")
        if E("SLS", 0): k(f"s_sleep {E('SLS', 0)}")
        k(stl(42))
        spin(k, "f_st", 0)
        k("s_waitcnt vmcnt(0)\ns_mov_b64 exec, -1\ns_branch f_stx")
    vm.q = []
    stamp(k, 3)
    BM = S + 4; MM = S + 8
    for i in range(4): k(f"v_mov_b32_dpp v{MM+i}, v{S+2} row_newbcast:{i} {DPPM}")
    for jj in range(2):
        for i in range(4):
            k(f"v_mul_f32_dpp v{AB+4*jj+i}, v{S+jj}, v{AB+4*jj+i} row_newbcast:{i} {DPPM}")
        for hh in range(2): k(f"v_perm_b32 v{BM+2*jj+hh}, v{MM+2*hh+1}, v{MM+2*hh}, s{46+jj}")
        for hh in range(2): k(f"v_cvt_pk_bf16_f32 v{AH+2*jj+hh}, v{AB+4*jj+2*hh}, v{AB+4*jj+2*hh+1}")
        k(f"v_mfma_f32_16x16x16_bf16 v[{D0+4*jj}:{D0+4*jj+3}], v[{AH+2*jj}:{AH+2*jj+1}], v[{BM+2*jj}:{BM+2*jj+1}], 0")
    k("s_waitcnt lgkmcnt(0)")
    def s1m(nt):
        for jj in range(2):
            d = D + (nt*2 + jj)*4; b = XB + (jj*4 + nt)*2
            k(f"v_mfma_f32_16x16x16_bf16 v[{d}:{d+3}], v[{AH+2*jj}:{AH+2*jj+1}], v[{b}:{b+1}], v[{D0+4*jj}:{D0+4*jj+3}]")
    def s1c(nt):
        for ii in range(2):
            for jj in range(2):
                d = D + (nt*2 + jj)*4
                k(f"v_cvt_pk_f16_f32 v{UO+(nt*2+ii)*2+jj}, v{d+2*ii}, v{d+2*ii+1}")
            u = UO + (nt*2 + ii)*2
            k(f"ds_write_b64 v{UWA}, v[{u}:{u+1}] offset:{ii*4096 + nt*1024}")
    def early():
        k("s_mov_b32 m0, s68\ns_cmp_eq_u32 s34, 0\ns_cbranch_scc1 f_r0\nf_nr:")
        for u in range(2): k(f"buffer_load_dwordx4 v3, s[8:11], s75 offen offset:{2048+u*1024} lds")
        k("s_mov_b32 m0, s69")
        for u in range(2): k(f"global_load_lds_dwordx4 v{T+6}, s[58:59] offset:{u*1024}")
    s1m(0); s1m(1); early(); s1m(2); s1c(0); s1m(3); s1c(1); s1c(2); s1c(3)
    k("s_waitcnt lgkmcnt(0)\ns_barrier")
    for nt in range(4):
        k(f"ds_read_b128 v[{UB+4*nt}:{UB+4*nt+3}], v{URA} offset:{nt*1024}")
    for mt in range(2):
        for nt in range(4):
            if mt == 0: k(f"s_waitcnt lgkmcnt({3-nt})")
            d = D + (mt*4 + nt)*4
            k(f"v_mfma_f32_16x16x32_f16 v[{d}:{d+3}], v[{A2+4*mt}:{A2+4*mt+3}], v[{UB+4*nt}:{UB+4*nt+3}], 0")
    for mt in range(2):
        for ii in range(2):
            o = UO + (mt*2 + ii)*4
            for nt in range(4):
                d = D + (mt*4 + nt)*4
                k(f"v_cvt_pk_f16_f32 v{o+nt}, v{d+2*ii}, v{d+2*ii+1}")
            for nt in range(4): k(f"v_and_or_b32 v{o+nt}, v{o+nt}, s55, v{TG+nt}")
            vm("z", f"buffer_store_dwordx4 v[{o}:{o+3}], v{VO}, s[12:15], s{64+mt*2+ii} offen sc1")
    stamp(k, 4)
    XRA, XRB = 200, 208
    k("s_setprio 0")
    k.c("radix-8 matrix: lane m = 2*kk+p, inputs r = 2g, 2g+1, angle r*t/2048")
    k("s_mov_b32 s43, 0")
    row_of(k, 40, 3, 43, 42)
    k(f"""v_lshrrev_b32 v{T}, 1, v{N16}
    v_and_b32 v{T+1}, 1, v0
    v_lshlrev_b32 v{T+2}, 8, v{T}
    v_add_u32 v{T+2}, s40, v{T+2}
    s_cmp_lg_u32 s3, 0
    s_cbranch_scc1 f_a3n
    v_cmp_lt_u32 s[44:45], 3, v{T}
    v_subrev_u32 v{T+3}, 896, v{T+2}
    v_cndmask_b32 v{T+2}, v{T+2}, v{T+3}, s[44:45]
    v_cmp_eq_u32 vcc, 1, v{N16}
    v_mov_b32 v{T+3}, 1024
    v_cndmask_b32 v{T+2}, v{T+2}, v{T+3}, vcc
    v_cndmask_b32_e64 v{T+1}, v{T+1}, 0, vcc
    f_a3n:
    v_lshlrev_b32 v{T+3}, 1, v{G4}
    v_mul_u32_u24 v{T+3}, v{T+3}, v{T+2}
    v_lshl_add_u32 v{T+3}, v{T+1}, 9, v{T+3}
    v_add_u32 v{T+5}, v{T+3}, v{T+2}
    v_add_u32 v{T+4}, 1536, v{T+3}
    v_add_u32 v{T+6}, 1536, v{T+5}""")
    for i in range(3, 7): k(f"v_and_b32 v{T+i}, 2047, v{T+i}")
    for i in range(3, 7): k(f"v_cvt_f32_u32 v{T+i}, v{T+i}")
    for i in range(3, 7): k(f"v_mul_f32 v{T+i}, {f32(1.0/2048)}, v{T+i}")
    for i in range(3, 7): k(f"v_cos_f32 v{T+i}, v{T+i}")
    k(f"""s_cbranch_scc1 f_a3m
    v_cmp_gt_u32 vcc, 2, v{N16}
    v_cndmask_b32_e64 v{T+1}, 1.0, 0.5, vcc
    v_mul_f32 v{T+3}, v{T+3}, v{T+1}
    v_mul_f32 v{T+5}, v{T+5}, v{T+1}
    v_cndmask_b32 v{T+4}, 0, v{T+3}, s[44:45]
    v_cndmask_b32 v{T+6}, 0, v{T+5}, s[44:45]
    v_cndmask_b32 v{T+3}, v{T+3}, 0, s[44:45]
    v_cndmask_b32 v{T+5}, v{T+5}, 0, s[44:45]
    f_a3m:
    v_cvt_pk_f16_f32 v{A3}, v{T+3}, v{T+4}
    v_cvt_pk_f16_f32 v{A3+1}, v{T+5}, v{T+6}""")
    k(f"""v_and_b32 v{T}, 3, v0
    v_bfe_u32 v{T+1}, v0, 2, 1
    v_bfe_u32 v{T+2}, v0, 3, 2
    v_bfe_u32 v{T+3}, v0, 5, 1
    v_lshlrev_b32 v{XD}, 10, v{T+1}
    v_lshl_add_u32 v{SLA}, v{T+3}, 8, v{XD}
    v_lshl_add_u32 v{SLA}, v{T+2}, 6, v{SLA}
    v_lshl_add_u32 v{SLA}, v{T}, 4, v{SLA}
    v_lshl_add_u32 v{XD}, v{T+2}, 8, v{XD}
    v_lshl_add_u32 v{XD}, v{T}, 6, v{XD}
    v_lshl_add_u32 v{XD}, v{T+3}, 5, v{XD}
    v_xor_b32 v{XDM}, 2016, v{XD}
    v_add_u32 v{XD}, s68, v{XD}
    v_add_u32 v{XDM}, s68, v{XDM}""")
    k("s_waitcnt vmcnt(4)\ns_barrier")
    for n in range(2):
        for u in range(2):
            k(f"ds_read_b128 v[{XRA+8*n+4*u}:{XRA+8*n+4*u+3}], v{(XD, XDM)[n]} offset:{n*2048+u*16}")
    k("s_cmp_lg_u32 s16, 0\ns_cbranch_scc1 f_sb2")
    stats_b(k)
    k("f_sb2:")
    k(f"""s_lshl_b32 s42, s3, 13
    s_lshl_b32 s43, s16, 10
    s_add_u32 s42, s42, s43
    s_add_u32 s42, s42, {WS_SLOT}""")
    for i in range(4): k(f"v_mov_b32 v{W+i}, -1")
    k(f"""buffer_store_dwordx4 v[{W}:{W+3}], v3, s[12:15], s42 offen sc1
    v_lshrrev_b32 v{FA}, 3, v2
    v_lshlrev_b32 v{FA}, 14, v{FA}
    v_and_b32 v{T}, 0x70, v3
    v_add_u32 v{FA}, v{FA}, v{T}
    s_lshl_b32 s80, s3, 7
    s_add_u32 s80, s80, {WS_KEY}
    s_cmp_lg_u32 s16, 0
    s_cbranch_scc1 f_nkw
    v_mov_b32 v{T}, 0
    v_not_b32 v{T+1}, s32
    v_mov_b32 v{T+2}, 0
    v_not_b32 v{T+3}, s33
    buffer_store_dwordx4 v[{T}:{T+3}], v{FA}, s[12:15], s80 offen sc1
    f_nkw:
    v_lshlrev_b32 v{FA}, 14, v2""")
    k(f"""s_lshl_b32 s72, s3, 15
    s_lshl_b32 s73, s37, 12
    s_add_u32 s72, s72, s73
    s_add_u32 s72, s72, {WS_Z}
""")
    k("s_waitcnt lgkmcnt(0)")
    for a_, base in enumerate((BRE, BIM, TC, TS)):
        for q in range(4):
            k(f"ds_read_b128 v[{base+4*q}:{base+4*q+3}], v3 offset:{L_C+a_*4096+q*1024}")
    for i in range(8): unpack_bf16(k, XA2 + 2*i, XRA + i)
    for p in range(16):
        src = XRB + (p >> 1); dst = XB2 + ((16 - p) & 15)
        k(f"v_and_b32 v{dst}, 0xffff0000, v{src}" if p & 1 else f"v_lshlrev_b32 v{dst}, 16, v{src}")
    k(f"s_waitcnt vmcnt({1 + E('ZW', 0)})")
    stamp(k, 5)
    k("s_barrier")
    if E("ZDEL", 0): k(f"s_sleep {E('ZDEL', 0)}")
    for i in range(4):
        k(f"buffer_load_dwordx4 v[{ZL+4*i}:{ZL+4*i+3}], v3, s[12:15], s72 offen offset:{i*1024} sc1")
    k(f"""v_xor_b32 v{SLM}, 1520, v{SLA}
    v_subrev_u32 v{T}, s68, v{XD}
    v_add_u32 v{T}, 32, v{T}
    v_bfe_u32 v{BP}, v{T}, 5, 1
    v_lshlrev_b32 v{BP}, 5, v{BP}
    v_bfe_u32 v{T+1}, v{T}, 8, 2
    v_lshl_add_u32 v{BP}, v{T+1}, 3, v{BP}
    v_bfe_u32 v{T+1}, v{T}, 10, 1
    v_lshl_add_u32 v{BP}, v{T+1}, 2, v{BP}
    v_bfe_u32 v{T+1}, v{T}, 6, 2
    v_add_lshl_u32 v{BP}, v{T+1}, v{BP}, 2
    s_lshl_b32 s74, s34, 14
    s_add_u32 s74, s74, {WS_KEY}
    s_lshl_b32 s42, s37, 9
    s_add_u32 s42, s42, {L_X}
    v_add_u32 v{UW}, s42, v{UW}""")
    k.c("w_down tile [64 x 512] of cluster s17 (none: empty descriptor)")
    k(f"""s_mul_i32 s17, s34, 7
    s_lshr_b32 s42, s35, 1
    s_add_u32 s17, s17, s42
    s_lshl_b32 s42, s17, 6
    s_lshr_b32 s43, s16, 2
    s_lshl_b32 s43, s43, 5
    s_add_u32 s42, s42, s43
    s_and_b32 s43, s16, 1
    s_lshl_b32 s43, s43, 4
    s_add_u32 s42, s42, s43
    s_and_b32 s43, s16, 2
    s_lshl_b32 s43, s43, 1
    s_add_u32 s42, s42, s43
    s_lshl_b32 s38, s42, 11
    s_and_b32 s43, s35, 1
    s_lshl_b32 s43, s43, 10
    s_add_u32 s38, s38, s43
    s_lshl_b32 s39, s16, 13
    s_add_u32 s39, s39, {L_U}
    s_mov_b32 s48, s28
    s_mov_b32 s49, s29
    s_mov_b32 s50, {1024*3584*2}
    s_mov_b32 s51, 0x00020000""")
    DN = [int(x) for x in os.environ.get("DN", "0,3,5").split(",")]
    assert XR != 2
    def down(site, t):
        d0 = sum(DN[:site])
        if DN[site] == 0 or E("NOW", 0) or E("NOD", 0): return
        k(f"s_cmp_ge_u32 s35, 14\ns_cbranch_scc1 f_nd{site}")
        for d in range(d0, d0 + DN[site]):
            rows = 8 * (d >> 2) + (d & 3)
            k(f"s_add_u32 s43, s39, {d*1024}\ns_mov_b32 m0, s43\ns_add_u32 s42, s38, {rows*2048}")
            if d: k(f"v_xor_b32 v{t}, {d*32}, v3")
            k(f"buffer_load_dwordx4 v{t if d else 3}, s[48:51], s42 offen nt lds")
        k(f"f_nd{site}:")
    k.c("wave a = w&3 handles columns 4a..4a+3 of every lane's block: natural, mirrored (two) and f16 positions")
    PN, PM0, PM1, PH, FV = 4, 5, 6, 235, 236
    k(f"""v_lshlrev_b32 v{V70}, 7, v{N16}
    s_and_b32 s40, s16, 3
    s_lshl_b32 s76, s40, 10
    v_add_u32 v{PN}, s76, v3
    v_xor_b32 v{PM1}, {63*16}, v3
    s_sub_u32 s42, 4096, s76
    s_and_b32 s42, s42, 3072
    v_add_u32 v{PM0}, s42, v{PM1}
    s_sub_u32 s42, 3072, s76
    v_add_u32 v{PM1}, s42, v{PM1}
    v_subrev_u32 v{T}, s68, v{XD}
    v_lshrrev_b32 v{T}, 1, v{T}
    s_lshl_b32 s42, s40, 2
    v_add_u32 v{T}, s42, v{T}""")
    pos16(k, PH, T, T + 1)
    mtag4(k, FT)
    k(f"""s_add_u32 s76, s76, {WS_FIN}
    s_mov_b32 s77, {WS_REC}
    s_xor_b32 s79, s35, {E("GOMM", 1)}
    s_xor_b32 s43, s16, {E("GOW", 5)}
    s_or_b32 s79, s79, s43""")
    k.c("finished modulation vectors: waves 0-3 take 1+ca and ga (and sa), waves 4-7 q and 1+cb, all the records")
    FL = GA
    k(f"""s_cmp_ge_u32 s16, 4
    s_cselect_b32 s64, 4, 1
    s_cselect_b32 s65, 3, 2
    s_lshl_b32 s64, s64, 12
    s_lshl_b32 s65, s65, 12
    s_add_u32 s64, s64, s76
    s_add_u32 s65, s65, s76
    s_lshl_b32 s42, s16, 12
    s_add_u32 s42, s42, {L_X}
    v_add_u32 v7, s42, v3
    s_cmp_eq_u32 s3, 0
    s_cselect_b64 s[52:53], -1, 1""")
    def fin1():
        for i in range(2): k(f"buffer_load_dwordx4 v[{FL+4*i}:{FL+4*i+3}], v3, s[12:15], s{64+i} offen sc1")
        k(f"""s_mov_b64 exec, 0xffff
        buffer_load_dwordx4 v[{FV}:{FV+3}], v{V70}, s[12:15], s77 offen sc1
        s_mov_b64 exec, s[52:53]
        buffer_load_dwordx4 v[{FL+8}:{FL+11}], v3, s[12:15], s76 offen sc1
        s_mov_b64 exec, -1""")
    for i in range(4): k(f"v_mov_b32 v{FL+8+i}, v{FT+i}")
    def tab(v, off):
        k(f"""ds_write_b128 v{PN}, v[{v}:{v+3}] offset:{L_P+off}
        ds_write_b32 v{PM0}, v{v} offset:{L_P+off+4096}
        ds_write_b32 v{PM1}, v{v+1} offset:{L_P+off+4096+12}
        ds_write_b32 v{PM1}, v{v+2} offset:{L_P+off+4096+8}
        ds_write_b32 v{PM1}, v{v+3} offset:{L_P+off+4096+4}""")
    def tab16(v, off):
        k(f"""v_cvt_pk_f16_f32 v{v}, v{v}, v{v+1}
        v_cvt_pk_f16_f32 v{v+2}, v{v+2}, v{v+3}
        ds_write_b16 v{PH}, v{v} offset:{L_P+off}
        ds_write_b16_d16_hi v{PH}, v{v} offset:{L_P+off+16}
        ds_write_b16 v{PH}, v{v+2} offset:{L_P+off+32}
        ds_write_b16_d16_hi v{PH}, v{v+2} offset:{L_P+off+48}""")
    def pread(off, base):
        return [f"ds_read_b128 v[{base+4*q}:{base+4*q+3}], v3 offset:{L_P+off+q*1024}" for q in range(4)]
    ZC = W; ZT = T
    def zx(cbi):
        for nt in range(4):
            for p in range(2):
                k(f"v_xor_b32 v{ZC+8*cbi+2*nt+p}, v{ZL+8*cbi+4*p+nt}, v{TG+nt}")
    def r8(cbi):
        for nt in (0, 2, 1, 3):
            b = ZC + 8*cbi + 2*nt; d = D1R + (cbi*4 + nt)*4
            k(f"v_mfma_f32_16x16x16_f16 v[{d}:{d+3}], v[{A3}:{A3+1}], v[{b}:{b+1}], 0")
            k(f"v_or3_b32 v{ZT}, v{b}, v{b+1}, {'0' if cbi + nt == 0 else f'v{ZT}'}")
    k(f"s_waitcnt vmcnt({E('F1W', 3)})")
    fin1()
    k("s_mov_b32 s83, 0\ns_waitcnt vmcnt(6)\nf_zc:")
    k.c("---- radix-8 over r ----")
    zx(0); r8(0)
    k("s_waitcnt vmcnt(4)")
    stamp(k, 6)
    zx(1); r8(1)
    k(f"""v_and_b32 v{ZT}, s54, v{ZT}
    v_cmp_ne_u32 vcc, 0, v{ZT}
    s_cbranch_vccnz f_zr
    f_zx:""")
    stamp(k, 7)
    for bh in range(2):
        for ii in range(2):
            o = ZL + (bh*2 + ii)*4
            for cbi in range(2):
                for al in range(2):
                    d = D1R + (cbi*4 + 2*al + bh)*4
                    k(f"v_cvt_pk_f16_f32 v{o+2*cbi+al}, v{d+2*ii}, v{d+2*ii+1}")
            k(f"ds_write_b128 v{UW}, v[{o}:{o+3}] offset:{ii*4096 + bh*256}")
    k(f"""s_mov_b32 s83, 0
    s_waitcnt vmcnt(0)
    f_pv:""")
    stamp(k, 30)
    untag(k, range(FL, FL + 12), FT, T)
    k(f"""v_cmp_ne_u64 s[44:45], s[32:33], v[{FV}:{FV+1}]
    v_and_b32 v{T}, 0xff, v{T}
    v_cmp_ne_u32 vcc, 0, v{T}
    v_add_f32_dpp v{FV+3}, v{FV+2}, v{FV+2} quad_perm:[1,0,3,2] {DPPM}
    s_and_b32 s44, s44, 0xffff
    s_or_b32 vcc_lo, vcc_lo, s44
    s_cbranch_vccnz f_pr
    f_pw:
    v_add_f32_dpp v{FV+3}, v{FV+3}, v{FV+3} quad_perm:[2,3,0,1] {DPPM}
    s_cmp_ge_u32 s16, 4
    s_cbranch_scc1 f_ph""")
    for qp in ("[1,0,3,2]", "[2,3,0,1]"):
        k(f"v_max_f32_dpp v{FV+2}, v{FV+2}, v{FV+2} quad_perm:{qp} {DPPM}")
    k(f"""v_max_f32_dpp v{FV+2}, v{FV+2}, v{FV+2} row_half_mirror {DPPM}
    v_frexp_exp_i32_f32 v{FV+2}, v{FV+2}
    v_readfirstlane_b32 s42, v{FV+2}
    s_sub_u32 s43, -1, s42
    s_add_u32 s44, s42, 5
    s_sub_u32 s45, 5, s42""")
    for n in range(4): k(f"v_ldexp_f32 v{FL+n}, v{FL+n}, s43")
    tab16(FL, P_CS)
    for n in range(4): k(f"v_ldexp_f32 v{FL+4+n}, v{FL+4+n}, s44")
    tab(FL + 4, P_GA)
    k("s_cmp_lg_u32 s3, 0\ns_cbranch_scc1 f_pvx")
    for n in range(4): k(f"v_ldexp_f32 v{FL+8+n}, v{FL+8+n}, s45")
    k(f"""v_and_b32 v{T}, 0x3f0, v{PH}
    v_bfe_u32 v{T+1}, v{PH}, 10, 1
    v_lshl_add_u32 v{T}, v{T+1}, 11, v{T}
    v_bfe_u32 v{T+1}, v{PH}, 3, 1
    v_lshl_add_u32 v{T}, v{T+1}, 10, v{T}
    v_and_b32 v{T+1}, 6, v{PH}
    v_lshl_add_u32 v{T}, v{T+1}, 1, v{T}""")
    for n in range(4):
        k(f"v_cvt_f16_f32 v{FL+8+n}, v{FL+8+n}\nds_write_b32 v{T}, v{FL+8+n} offset:{L_C + 16*n}")
    k("s_branch f_pvx\nf_ph:")
    tab(FL, P_Q); tab(FL + 4, P_C1)
    k(f"f_pvx:\nv_readlane_b32 s66, v{FV+3}, 12")
    if E("PRIO", 0):
        k("s_setprio 1\ns_cmp_ge_u32 s16, 4\ns_cbranch_scc1 f_pp\ns_setprio 2\nf_pp:")
    k("s_waitcnt lgkmcnt(0)")
    stamp(k, 8)
    k("s_barrier")
    k.c("================= 1024-point DFT, LN2, router score =================")
    for j in range(2):
        k(f"ds_read_b128 v[{CS+4*j}:{CS+4*j+3}], v3 offset:{L_P+P_CS+j*1024}")
        k(f"ds_read_b128 v[{ZL+8*j}:{ZL+8*j+3}], v7 offset:{2*j*1024}")
        k(f"ds_read_b128 v[{ZL+8*j+4}:{ZL+8*j+7}], v7 offset:{(2*j+1)*1024}")
    def modul(j):
        for i in range(4*j, 4*j + 4):
            b = i & 1
            k(f"v_pk_mul_f16 v{W+i}, v{ZL+i}, v{CS+(i>>1)} op_sel:[0,{b}] op_sel_hi:[1,{b}]")
    def st1(j, part):
        Dd, B = (D1R, BRE) if part == 0 else (D1I, BIM)
        cc = "0" if j == 0 else f"v[{Dd}:{Dd+15}]"
        k(f"v_mfma_f32_32x32x16_f16 v[{Dd}:{Dd+15}], v[{W+4*j}:{W+4*j+3}], v[{B+4*j}:{B+4*j+3}], {cc}")
    k("s_cmp_eq_u32 s30, 0\ns_cbranch_scc1 f_sp")
    k("s_waitcnt lgkmcnt(4)"); modul(0); st1(0, 0)
    k("s_waitcnt lgkmcnt(3)"); modul(1); st1(0, 1)
    k("s_waitcnt lgkmcnt(1)"); modul(2); st1(1, 0)
    k("s_waitcnt lgkmcnt(0)"); modul(3); st1(1, 1)
    k("f_st1:")
    pr1 = pread(P_GA, GA) + pread(P_GAM, GAM) + pread(P_Q, Q) + pread(P_QM, QM)
    for j in range(2, 4):
        for part in range(2):
            st1(j, part)
            for _ in range(2): k(pr1.pop(0))
    if E("PW", 0):
        k.c("the lines of this wave's partial results are written once so that an early reader does not go to HBM")
        k(f"""v_not_b32 v20, v{FT}
        v_bfe_u32 v7, v0, 4, 2
        v_lshlrev_b32 v7, 13, v7
        v_and_b32 v21, 0x70, v3
        v_add_u32 v7, v7, v21
        s_and_b32 s42, s35, 1
        s_lshl_b32 s42, s42, 3
        s_add_u32 s42, s42, s16
        s_lshl_b32 s42, s42, 15
        s_lshl_b32 s43, s17, 7
        s_add_u32 s42, s42, s43
        s_add_u32 s42, s42, {WS_PART}
        s_cmp_lt_u32 s35, 14
        s_cselect_b32 s42, s42, {WS_PART + 63*128}
        s_mov_b32 exec_lo, 0x00ff00ff
        s_mov_b32 exec_hi, 0x00ff00ff
        buffer_store_dwordx4 v[20:23], v7, s[12:15], s42 offen sc1
        s_mov_b64 exec, -1""")
    down(1, 7)
    stamp(k, 9)
    Y = BIM
    def twid(j):
        vr = ZL + 8 * (j & 1); vi = vr + 4
        for h in range(2):
            pmul(k, vr + 2*h, D1R + 4*j + 2*h, TC + 4*j + 2*h)
            pmul(k, vi + 2*h, D1I + 4*j + 2*h, TC + 4*j + 2*h)
        for h in range(2):
            pfma(k, vr + 2*h, D1I + 4*j + 2*h, TS + 4*j + 2*h, vr + 2*h)
            pfma(k, vi + 2*h, D1R + 4*j + 2*h, TS + 4*j + 2*h, vi + 2*h, nega=True)
        for i in range(4):
            k(f"v_cvt_pk_f16_f32 v{W+4*j+i}, v{vr+i}, v{vi+i}")
    def st2(j, Yd=Y, B=BRE):
        cr = "0" if j == 0 else f"v[{Yd}:{Yd+15}]"
        k(f"v_mfma_f32_32x32x16_f16 v[{Yd}:{Yd+15}], v[{W+4*j}:{W+4*j+3}], v[{B+4*j}:{B+4*j+3}], {cr}")
    k("s_cmp_eq_u32 s30, 0\ns_cbranch_scc1 f_sp2")
    for j in range(4):
        twid(j)
        if j > 0: st2(j - 1)
        if j < 2:
            for x in pr1[4*j:4*j+4]: k(x)
    st2(3)
    k.c("GO hint from one workgroup per replica")
    YS = 12
    def x1rows(YA, YB):
        k(f"ds_bpermute_b32 v{YS}, v{BP}, v{YB}")
        k("s_waitcnt lgkmcnt(1)")
        for i in range(8): pfma(k, XA2 + 2*i, GA + 2*i, YA + 2*i, XA2 + 2*i)
        for i in range(1, 8): pfma(k, XB2 + 2*i, GAM + 2*i, YB + 2*i, XB2 + 2*i)
        k(f"v_fmac_f32 v{XB2+1}, v{GAM+1}, v{YB+1}")
        k("s_waitcnt lgkmcnt(0)")
        k(f"v_fmac_f32 v{XB2}, v{GAM}, v{YS}")
    x1rows(Y, Y)
    k("f_join:")
    stamp(k, 10)
    C1, C1M, SBv, SBM, GBv, GBM = BRE, TC, TS, BIM, GA, GAM
    for x in pread(P_C1, C1) + pread(P_C1M, C1M): k(x)
    RQ = ZL; TT_ = W
    KW, KR = 17, 7
    k(f"""v_lshrrev_b32 v{KW}, 3, v0
    v_and_b32 v{KW}, 60, v{KW}
    v_add_u32 v{KW}, {L_KEY}, v{KW}
    v_and_b32 v{KR}, 0xf0, v3
    v_lshrrev_b32 v{KR}, 2, v{KR}
    v_add_u32 v{KR}, {L_KEY}, v{KR}""")
    rows = ((XA2, Q, D1R, TT_, 56, C1, SBv, GBv), (XB2, QM, D1I, TT_ + 8, 58, C1M, SBM, GBM))
    def sums23(src):
        for i in range(7, -1, -1):
            for n, r_ in enumerate(rows):
                x = src[n] + 2*i; t = r_[3]
                if i == 7:
                    pmul(k, t + 2, x, x); pmul(k, t + 4, x, r_[1] + 2*i)
                else:
                    pfma(k, t + 2, x, x, t + 2); pfma(k, t + 4, x, r_[1] + 2*i, t + 4)
    for i in range(6, -1, -1):
        for r_ in rows: padd(k, r_[3], r_[0] + 14 if i == 6 else r_[3], r_[0] + 2*i)
    sums23((XA2, XB2))
    for n, r_ in enumerate(rows):
        for j in range(3): k(f"v_add_f32 v{RQ+4*n+j}, v{r_[3]+2*j}, v{r_[3]+2*j+1}")
    def red(js):
        for j in js: k(f"v_permlane32_swap_b32 v{RQ+j}, v{RQ+4+j}")
        for j in js: k(f"v_add_f32 v{RQ+j}, v{RQ+j}, v{RQ+4+j}")
        regs = [RQ + j for j in js]
        row_allreduce(k, regs)
        for r in regs: k(f"v_add_f32_dpp v{r}, v{r}, v{r} row_bcast:15 row_mask:0xa bank_mask:0xf")
    k("s_cmp_eq_u32 s79, 0\ns_cbranch_scc1 f_go\nf_ngo:")
    red((0, 1, 2))
    k.c("lanes 31 / 63 hold rows A / B")
    k(f"""v_mul_f32 v{RQ}, {f32(1.0/1024)}, v{RQ}
    v_mul_f32 v{RQ+1}, {f32(1.0/1024)}, v{RQ+1}
    v_mul_f32 v{RQ+4}, v{RQ}, v{RQ}
    v_fma_f32 v{RQ+2}, -v{RQ}, s66, v{RQ+2}
    v_sub_f32 v{RQ+1}, v{RQ+1}, v{RQ+4}
    v_mul_f32 v{RQ+5}, 4.0, v{RQ+1}
    v_cmp_gt_f32 vcc, v{RQ+4}, v{RQ+5}
    v_lshrrev_b32 v{RQ+6}, 4, v0
    s_lshl_b32 s43, s3, 5
    v_and_or_b32 v{RQ+6}, v{RQ+6}, 30, s43
    s_or_b32 s42, vcc_lo, vcc_hi
    s_bitcmp1_b32 s42, 31
    s_cbranch_scc1 f_slow2
    f_var2:""")
    round_bf16(k, RQ + 1, RQ + 1)
    k(f"v_add_f32 v{RQ+1}, {f32(1e-5)}, v{RQ+1}")
    round_bf16(k, RQ + 1, RQ + 1)
    k(f"v_sqrt_f32 v{RQ+1}, v{RQ+1}")
    round_bf16(k, RQ + 1, RQ + 1)
    k(f"""v_rcp_f32 v{RQ+1}, v{RQ+1}
    s_mov_b32 s42, 0x80000000
    s_movk_i32 s43, 0xf000
    s_mov_b32 exec_lo, s42
    s_mov_b32 exec_hi, s42
    v_mul_f32 v{RQ+2}, v{RQ+2}, v{RQ+1}
    v_ashrrev_i32 v{RQ+4}, 31, v{RQ+2}
    v_or_b32 v{RQ+4}, s42, v{RQ+4}
    v_xor_b32 v{RQ+2}, v{RQ+2}, v{RQ+4}
    v_and_or_b32 v{RQ+2}, v{RQ+2}, s43, v{RQ+6}
    ds_write_b32 v{KW}, v{RQ+2}
    v_mul_f32 v{RQ}, -v{RQ}, v{RQ+1}
    s_mov_b64 exec, -1""")
    for n in range(2):
        k(f"v_readlane_b32 s{60+n}, v{RQ+2}, {31+32*n}")
        k(f"v_readlane_b32 s{56+2*n}, v{RQ}, {31+32*n}")
        k(f"v_readlane_b32 s{57+2*n}, v{RQ+1}, {31+32*n}")
    k("s_waitcnt lgkmcnt(0)")
    stamp(k, 11)
    KV = RQ + 8
    k(f"""s_barrier
    ds_read_b32 v{KV}, v{KR}
    s_waitcnt lgkmcnt(0)""")
    stamp(k, 12)
    HP = W; OA, OBB = Q, Q + 8
    def pk(dst, src, n):
        for i in range(8):
            a, b = (2*i, 2*i + 1) if n == 0 else ((16 - 2*i) & 15, 15 - 2*i)
            k(f"v_cvt_pk_bf16_f32 v{dst+i}, v{src+a}, v{src+b}")
    def norm(n):
        X2, _, Tt, _, sr = rows[n][:5]
        for i in range(8):
            k(f"v_pk_fma_f32 {P(Tt+2*i)}, {P(X2+2*i)}, s[{sr}:{sr+1}], s[{sr}:{sr+1}] op_sel:[0,1,0] op_sel_hi:[1,1,0]")
    k(f"""v_cmp_lt_u32 vcc, s60, v{KV}
    v_cmp_lt_u32 s[44:45], s61, v{KV}
    s_and_b32 s62, vcc_lo, 0xffff
    s_and_b32 s63, s44, 0xffff
    s_bcnt1_i32_b32 s62, s62
    s_bcnt1_i32_b32 s63, s63""")
    def keyst(n):
        k(f"""s_or_b32 s42, s{60+n}, s{62+n}
        s_cmp_eq_u32 s{62+n}, 0
        s_cselect_b32 s43, s32, s33
        v_mov_b32 v{KV+2}, s42
        v_mov_b32 v{KV+3}, s43
        s_lshl_b32 s42, s{62+n}, 3
        s_add_u32 s42, s42, s80
        s_mov_b64 exec, 0xff
        buffer_store_dwordx2 v[{KV+2}:{KV+3}], v{FA}, s[12:15], s42 offen sc1
        s_mov_b64 exec, -1""")
    k("s_add_u32 s42, s62, s63\ns_cmp_eq_u32 s42, 1\ns_cbranch_scc1 f_both")
    if True:
        for n in range(2):
            Tt = rows[n][2]; XO = (OA, OBB)[n]; SA_ = (SLA, SLM)[n]
            k(f"""s_cmp_ge_u32 s{62+n}, 2
            s_cbranch_scc1 f_nc{n}
            f_cand{n}:
            s_setprio 2""")
            stamp(k, 20)
            keyst(n)
            if E("STAMPS", 0) == 4:
                stamp(k, 21); k("s_waitcnt vmcnt(0)"); stamp(k, 22)
            k(f"""s_lshl_b32 s43, s3, 1
            s_add_u32 s42, s{62+n}, s43
            s_lshl_b32 s42, s42, 12
            s_add_u32 s42, s42, {WS_SLOT}""")
            norm(n)
            for i in range(8): pmul(k, Tt + 2*i, Tt + 2*i, rows[n][5] + 2*i)
            pk(XO, Tt, n)
            for u in range(2):
                for i in range(4*u, 4*u + 4): k(f"v_min_u32 v{XO+i}, -2, v{XO+i}")
                k(f"buffer_store_dwordx4 v[{XO+4*u}:{XO+4*u+3}], v{SA_}, s[12:15], s42 offen offset:{u*512} sc1")
            pk(HP + 8*n, rows[n][0], n)
            for i in range(8): k(f"v_min_u32 v{HP+8*n+i}, -2, v{HP+8*n+i}")
            for u in range(2):
                k(f"buffer_store_dwordx4 v[{HP+8*n+4*u}:{HP+8*n+4*u+3}], v{SA_}, s[12:15], s42 offen offset:{2048+u*512} sc1")
            k(f"s_setprio 0\nf_nc{n}:")
    stamp(k, 13)
    k.c("sb (waves 0-3) and gb (waves 4-7) for the output rows")
    fin2 = f"buffer_load_dwordx4 v[{CS}:{CS+3}], v3, s[12:15], s64 offen sc1"
    k(f"""s_lshr_b32 s42, s16, 2
    s_lshl_b32 s43, s42, 13
    s_lshl_b32 s42, s42, 12
    s_add_u32 s64, s76, s42
    s_add_u32 s64, s64, {5*4096}
    v_add_u32 v{PN}, s43, v{PN}
    v_add_u32 v{PM0}, s43, v{PM0}
    v_add_u32 v{PM1}, s43, v{PM1}
    {fin2}""")
    if E("DB", 1): k("s_barrier")
    down(2, 7)
    norm(0); norm(1)
    k(f"""s_mov_b32 s83, 0
    s_cmp_ge_u32 s35, 14
    s_cbranch_scc1 f_p2c
    s_waitcnt vmcnt({0 if E("NOW", 0) or E("NOD", 0) else DN[2]})
    f_p2e:""")
    untag(k, range(CS, CS + 4), FT, YS)
    tagchk(k, YS)
    k("s_cbranch_vccnz f_p2r\nf_p2w:")
    tab(CS, P_SB)
    k("s_waitcnt lgkmcnt(0)\ns_barrier")
    for n in range(2):
        for x in pread((P_SB, P_SBM)[n], rows[n][6]) + pread((P_GB, P_GBM)[n], rows[n][7]): k(x)
    for n in range(2):
        X2, _, Tt, _, sr, c1, sb, gb = rows[n]
        k(f"s_waitcnt lgkmcnt({12 - 8*n})")
        for i in range(8): pfma(k, Tt + 2*i, Tt + 2*i, c1 + 2*i, sb + 2*i)
        k(f"s_waitcnt lgkmcnt({8 - 8*n})")
        for i in range(8): pfma(k, X2 + 2*i, gb + 2*i, Tt + 2*i, X2 + 2*i)
        pk((OA, OBB)[n], X2, n)
    k.c("rows back to memory order through LDS; written once the selection is known (the reducers write the two selected rows)")
    k(f"""v_subrev_u32 v{XD}, {L_R - L_X}, v{XD}
    v_subrev_u32 v{XDM}, {L_R - L_X}, v{XDM}
    s_sub_u32 s68, s68, {L_R - L_X}
    v_add_u32 v7, s68, v3""")
    for n in range(2):
        for u in range(2):
            XO = (OA, OBB)[n]
            k(f"ds_write_b128 v{(XD, XDM)[n]}, v[{XO+4*u}:{XO+4*u+3}] offset:{n*2048+u*16}")
    k("s_waitcnt lgkmcnt(0)")
    for i in range(4):
        k(f"ds_read_b128 v[{QM+4*i}:{QM+4*i+3}], v7 offset:{i*1024}")
    OUTP = E("OUTP", 1)
    def outst(lab, cond):
        for n in range(2):
            k(cond(n, f"{lab}{n}"))
            for j in range(2):
                k(f"buffer_store_dwordx4 v[{QM+8*n+4*j}:{QM+8*n+4*j+3}], v3, s[24:27], s{18+n} offen offset:{j*1024} {os.environ.get('OFL', 'sc1')}")
            k(f"{lab}{n}:")
    notsel = lambda n, l: f"s_cmp_eq_u32 s{60+n}, s40\ns_cbranch_scc1 {l}\ns_cmp_eq_u32 s{60+n}, s41\ns_cbranch_scc1 {l}"
    if OUTP == 0:
        k("s_waitcnt lgkmcnt(0)")
        outst("f_o", lambda n, l: f"s_cmp_lt_u32 s{62+n}, 2\ns_cbranch_scc1 {l}")
    BD, HA, AG, R, AD = 88, 120, 128, 144, 148
    L_A = L_KEY + 128
    k.c("down projection: tr addr, act write / read, PART store")
    k(f"""v_lshrrev_b32 v{R}, 2, v2
    v_and_b32 v{R+1}, 7, v{R}
    v_and_b32 v{R+2}, 3, v0
    v_lshl_add_u32 v{AD}, v1, 2, v{R+2}
    v_xor_b32 v{AD}, v{AD}, v{R+1}
    v_lshlrev_b32 v{AD}, 5, v{AD}
    v_lshl_add_u32 v{AD}, v{R}, 10, v{AD}
    v_add_u32 v{AD}, {L_U}, v{AD}
    v_cmp_eq_u32 s[44:45], 1, v{R+2}
    v_cmp_eq_u32 s[46:47], 2, v{R+2}
    v_cmp_eq_u32 s[72:73], 3, v{R+2}
    v_bfe_u32 v{R+1}, v0, 4, 2
    v_and_b32 v{R}, 1, v{R}
    v_lshlrev_b32 v{AD+5}, 7, v{R}
    v_lshl_add_u32 v{AD+5}, v{R+1}, 4, v{AD+5}
    v_add_u32 v{AD+5}, {L_A}, v{AD+5}
    v_lshlrev_b32 v{AD+6}, 4, v{R+2}
    v_lshl_add_u32 v{AD+6}, v{R}, 6, v{AD+6}
    v_lshl_add_u32 v{AD+6}, v1, 15, v{AD+6}
    v_lshl_add_u32 v{AD+6}, v{R+1}, 13, v{AD+6}
    v_and_b32 v{R}, 15, v0
    v_lshlrev_b32 v{AD+4}, 1, v{R}
    v_lshl_add_u32 v{AD+4}, v1, 5, v{AD+4}
    v_lshl_add_u32 v{AD+4}, v{R+1}, 7, v{AD+4}
    v_add_u32 v{AD+4}, {L_A}, v{AD+4}
    s_and_b32 s76, s35, 1
    s_lshl_b32 s76, s76, 18
    s_lshl_b32 s77, s17, 7
    s_add_u32 s76, s76, s77
    s_add_u32 s76, s76, {WS_PART}
    s_movk_i32 s77, 0xff00
    s_lshl_b32 s81, s17, 2
    s_and_b32 s42, s16, 3
    s_add_u32 s81, s81, s42
    s_lshl_b32 s81, s81, 10
    s_add_u32 s82, s81, {WS_XB}
    s_add_u32 s81, s81, {WS_XA}
    v_mov_b32 v5, {L_KEY+104}""")
    if OUTP == 0:
        k.c("the weight tile is older than the row stores")
        k("""s_max_u32 s42, s62, s63
        s_min_u32 s43, s62, s63
        s_cmp_lt_u32 s43, 2
        s_cbranch_scc1 f_w0
        s_waitcnt vmcnt(4)
        f_w1:""")
    else: k("s_waitcnt vmcnt(0)")
    k("s_barrier")
    stamp(k, 14)
    for ks in range(2):
        for t in range(4):
            b_ = BD + (ks*4 + t)*4
            k(f"ds_read_b64_tr_b16 v[{b_}:{b_+1}], v{AD} offset:{ks*32768+t*8}")
            k(f"ds_read_b64_tr_b16 v[{b_+2}:{b_+3}], v{AD} offset:{ks*32768+16384+t*8}")
    if OUTP == 3:
        if E("OS3", 0): k(f"s_sleep {E('OS3', 0)}")
        k("s_waitcnt lgkmcnt(0)")
        outst("f_o", lambda n, l: f"s_cmp_lt_u32 s{62+n}, 2\ns_cbranch_scc1 {l}")
    if OUTP == 4:
        k("s_waitcnt lgkmcnt(0)\ns_cmp_lt_u32 s16, 4\ns_cbranch_scc1 f_o1")
        outst("f_o", lambda n, l: f"s_cmp_lt_u32 s{62+n}, 2\ns_cbranch_scc1 {l}")
    k("""s_cmp_lg_u32 s16, 7
    s_cbranch_scc1 f_n7
    v_lshlrev_b32 v40, 7, v2
    s_add_u32 s42, s74, 8192
    buffer_load_dwordx4 v[32:35], v40, s[12:15], s74 offen sc1
    buffer_load_dwordx4 v[36:39], v40, s[12:15], s42 offen sc1
    f_n7:
    s_cmp_ge_u32 s35, 14
    s_cbranch_scc1 f_na
    s_cmp_ge_u32 s16, 4
    s_cbranch_scc1 f_na""")
    k("s_mov_b32 s83, 0\nf_px:\ns_and_b32 s42, s83, 31\ns_cmp_eq_u32 s42, 31\ns_cselect_b32 s42, s82, s81")
    for so in (42,):
        k(f"buffer_load_dwordx4 v[{R}:{R+3}], v3, s[12:15], s{so} offen sc1")
        k("s_waitcnt vmcnt(0)")
        untag(k, range(R, R + 4), FT, 4)
        tagchk(k, 4)
        k("s_cbranch_vccz f_pxx")
    spin(k, "f_px", 0)
    k("f_pxx:")
    stamp(k, 16)
    k(f"v_permlane32_swap_b32 v{R}, v{R+2}")
    k(f"v_permlane32_swap_b32 v{R+1}, v{R+3}")
    padd(k, R, R, R + 2)
    k(f"v_permlane16_swap_b32 v{R}, v{R+1}")
    k(f"v_add_f32 v{R}, v{R}, v{R+1}")
    round_bf16(k, R, R)
    k(f"""v_mul_f32 v{R+1}, {LOG2E}, v{R}
    v_exp_f32 v{R+1}, v{R+1}
    v_mov_b32 v{R+2}, v{R}
    v_add_f32 v{R+1}, 1.0, v{R+1}
    v_rcp_f32 v{R+1}, v{R+1}
    v_mov_b32 v{R+3}, v{R}
    v_mul_f32 v{R+1}, v{R}, v{R+1}
    v_permlane32_swap_b32 v{R+2}, v{R+3}""")
    round_bf16(k, R + 1, R + 1)
    k(f"""v_mul_f32 v{R+1}, v{R+1}, v{R+3}
    v_cvt_pk_bf16_f32 v{R+1}, v{R+1}, v{R+1}
    ds_write_b16 v{AD+4}, v{R+1}
    f_na:
    s_waitcnt lgkmcnt(0)
    s_barrier
    s_cmp_ge_u32 s35, 14
    s_cbranch_scc1 f_fin""")
    for ks in range(2):
        k(f"ds_read_b128 v[{HA+4*ks}:{HA+4*ks+3}], v{AD+5} offset:{ks*64}")
    for ks in range(2):
        k(f"s_waitcnt lgkmcnt({1-ks})")
        for t in range(4):
            a_ = AG + 4 * t
            cc = "0" if ks == 0 else f"v[{a_}:{a_+3}]"
            b_ = BD + (ks*4 + t)*4
            k(f"v_mfma_f32_16x16x32_bf16 v[{a_}:{a_+3}], v[{b_}:{b_+3}], v[{HA+4*ks}:{HA+4*ks+3}], {cc}")
    for t, m_ in ((1, "s[44:45]"), (2, "s[46:47]"), (3, "s[72:73]")):
        for i in range(4):
            k(f"v_cndmask_b32 v{AG+i}, v{AG+i}, v{AG+4*t+i}, {m_}")
    for i in range(4): k(f"v_and_or_b32 v{AG+i}, v{AG+i}, s77, v{FT+i}")
    k(f"""s_mov_b32 exec_lo, 0x00ff00ff
    s_mov_b32 exec_hi, 0x00ff00ff
    buffer_store_dwordx4 v[{AG}:{AG+3}], v{AD+6}, s[12:15], s76 offen sc1
    s_mov_b64 exec, -1""")
    stamp(k, 17)
    k(f"""s_waitcnt vmcnt(1)
    f_fin:
    s_cmp_eq_u32 s16, 7
    s_cbranch_scc1 f_sel
    f_selx:
    s_barrier
    ds_read_b64 v[28:29], v5
    s_waitcnt lgkmcnt(0)
    v_readfirstlane_b32 s40, v28
    v_readfirstlane_b32 s41, v29""")
    if E("OSL", 0): k(f"s_sleep {E('OSL', 0)}")
    cand = lambda n, l: f"s_cmp_ge_u32 s{62+n}, 2\ns_cbranch_scc1 {l}\n" + notsel(n, l)
    if OUTP == 4: k("s_cmp_lt_u32 s16, 4\ns_cselect_b32 s62, 0, s62\ns_cselect_b32 s63, 0, s63")
    outst("f_e", notsel if OUTP == 1 else cand)
    stamp_out(k, 0)
    k("s_endpgm")
    k("f_sel:\ns_mov_b32 s83, 0\ns_cmp_lt_u32 s35, 14\ns_cbranch_scc1 f_kqc")
    poll_keys(k, "f_kq", 32, 74, 40, sl=4)
    top2(k, 32, 40)
    k(f"""s_andn2_b32 s40, s40, 1
    s_andn2_b32 s41, s41, 1
    v_mov_b32 v28, s40
    v_mov_b32 v29, s41
    ds_write_b64 v5, v[28:29]
    s_waitcnt lgkmcnt(0)
    s_branch f_selx""")
    if OUTP == 0: k("f_w0:\ns_waitcnt vmcnt(0)\ns_branch f_w1")
    k(f"""f_p2r:
    s_add_u32 s83, s83, 1
    s_cmp_ge_u32 s83, {SPIN}
    s_cbranch_scc1 f_p2w
    s_sleep 12
    {fin2}
    f_p2c:
    s_waitcnt vmcnt(0)
    s_branch f_p2e""")
    k.c("---- spectrum pieces that were not there yet: read them again ----")
    k("f_zr:")
    for i in range(4):
        z = ZC + 8*(i >> 1) + (i & 1)
        k(f"""v_or3_b32 v{ZT}, v{z}, v{z+2}, v{z+4}
        v_or_b32 v{ZT}, v{ZT}, v{z+6}
        v_and_b32 v{ZT}, s54, v{ZT}
        v_cmp_ne_u32 vcc, 0, v{ZT}""")
        k(f"""s_cbranch_vccz f_zr{i}
        buffer_load_dwordx4 v[{ZL+4*i}:{ZL+4*i+3}], v3, s[12:15], s72 offen offset:{i*1024} sc1
        f_zr{i}:""")
    k("s_waitcnt vmcnt(0)")
    spin(k, "f_zc", 0)
    k("s_branch f_zx")
    k.c("---- out-of-line pieces ----")
    k("f_both:")
    keyst(1)
    k("s_nop 1\ns_branch f_cand0")
    k("f_r0:")
    for u in range(2): k(f"buffer_load_dwordx4 v3, s[8:11], s18 offen offset:{u*1024} lds")
    k("s_branch f_nr")
    st_retry()
    k(f"f_pr:\ns_sleep {E('SLX', 6)}")
    for i in range(4): k(f"v_mov_b32 v{FL+8+i}, v{FT+i}")
    fin1()
    k("s_waitcnt vmcnt(0)")
    spin(k, "f_pv", 0)
    k("s_branch f_pw")
    k(f"""f_go:
    s_lshl_b32 s41, s34, 7
    s_add_u32 s41, s41, {WS_GO}
    v_mov_b32 v{D1R}, s32
    v_mov_b32 v{D1R+1}, s33
    s_mov_b64 exec, 0xff
    buffer_store_dwordx4 v[{D1R}:{D1R+3}], v3, s[12:15], s41 offen sc1
    s_mov_b64 exec, -1
    s_branch f_ngo""")
    k.c("---- rare: two-pass variance / router score for LN2 ----")
    k("f_slow2:")
    k.c("here the bf16 rounding of x and of the mean matters: follow the reference's rounding steps")
    for r_ in rows:
        X2, t = r_[0], r_[3]
        for i in range(8): rb2(k, X2 + 2*i, t)
        for i in range(1, 8): padd(k, t, X2 if i == 1 else t, X2 + 2*i)
    for n, r_ in enumerate(rows):
        k(f"v_add_f32 v{RQ+4*n}, v{r_[3]}, v{r_[3]+1}")
    red((0,))
    k(f"v_mul_f32 v{RQ+3}, {f32(1.0/1024)}, v{RQ}")
    round_bf16(k, RQ, RQ + 3)
    k(f"v_sub_f32 v{RQ+3}, v{RQ+3}, v{RQ}")
    for n in range(2): k(f"v_readlane_b32 s{56+2*n}, v{RQ}, {31+32*n}")
    for r_ in rows:
        for i in range(8): psub_s(k, r_[2] + 2*i, r_[0] + 2*i, r_[4])
    k(f"v_mov_b32 v{RQ+7}, v{RQ+6}")
    sums23((rows[0][2], rows[1][2]))
    for n, r_ in enumerate(rows):
        for j in (1, 2): k(f"v_add_f32 v{RQ+4*n+j}, v{r_[3]+2*j}, v{r_[3]+2*j+1}")
    red((1, 2))
    k(f"""v_mul_f32 v{RQ+1}, {f32(1.0/1024)}, v{RQ+1}
    v_fma_f32 v{RQ+1}, -v{RQ+3}, v{RQ+3}, v{RQ+1}
    v_max_f32 v{RQ+1}, 0, v{RQ+1}
    v_mov_b32 v{RQ+6}, v{RQ+7}
    s_branch f_var2""")
    slow1()
    k.c("---- rows 0 and 1024 travel as one complex row ----")
    k.c("both inputs are made even in d: the real and the imaginary part of the transform are then the two rows")
    k("f_sp:\ns_setprio 2")
    SAR = D1R; MR = D1I; SC_ = L_C + 4096
    for j in range(4):
        k(f"ds_read_b128 v[{SAR+4*j}:{SAR+4*j+3}], v3 offset:{L_C+j*1024}")
    k(f"""v_and_b32 v12, 31, v0
    v_lshlrev_b32 v12, 2, v12
    v_and_b32 v17, 32, v0
    v_lshl_add_u32 v12, v17, 4, v12
    v_sub_u32 v20, {SC_}, v12
    v_add_u32 v12, {SC_}, v12
    v_add_u32 v17, 128, v12
    v_add_u32 v21, 128, v20""")
    for j in range(4):
        k(f"s_waitcnt lgkmcnt({3 - j + 2*j})" if j else "s_waitcnt lgkmcnt(3)")
        for i in range(4*j, 4*j + 4):
            b = i & 1
            k(f"v_pk_fma_f16 v{W+i}, v{ZL+i}, v{CS+(i>>1)}, v{SAR+i} op_sel:[0,{b},0] op_sel_hi:[1,{b},1]")
        for i in range(2):
            k(f"ds_write2st64_b32 v{(12, 17)[i]}, v{W+4*j+i}, v{W+4*j+i+2} offset0:{4*j} offset1:{4*j+1}")
    k(f"s_mov_b64 exec, 1\nds_write_b32 v12, v{W} offset:4096\ns_mov_b64 exec, -1")
    for j in range(4):
        k(f"ds_read2st64_b32 v[{MR+4*j}:{MR+4*j+1}], v20 offset0:{16-4*j} offset1:{15-4*j}")
        k(f"ds_read2st64_b32 v[{MR+4*j+2}:{MR+4*j+3}], v21 offset0:{15-4*j} offset1:{14-4*j}")
    for j in range(4):
        k(f"s_waitcnt lgkmcnt({6-2*j})")
        for i in range(4):
            k(f"v_pk_add_f16 v{W+4*j+i}, v{W+4*j+i}, v{MR+4*j+(0, 2, 1, 3)[i]}")
    st1(0, 0); st1(0, 1); st1(1, 0); st1(1, 1)
    k("s_branch f_st1")
    k("f_sp2:")
    YA, YB = Q, QM
    for j in range(4):
        twid(j)
        if j > 0: st2(j - 1, YA, BRE); st2(j - 1, YB, BIM)
    st2(3, YB, BIM); st2(3, YA, BRE)
    x1rows(YA, YB)
    for x in pr1: k(x)
    k("s_waitcnt lgkmcnt(0)\ns_setprio 0\ns_branch f_join")

def role_G(k):
    L_GR = 131072 + 4096; L_SI = 131072 + 8192
    k.c("w_mod tiles: rows 64*mm.., 512 columns of sa|ca|ga|cb and 256 columns of sb|gb per group")
    k.c("nonce writer: first wave of workgroup 0")
    k(f"""h_non:
    s_mul_i32 s42, s32, 0x9e3779b1
    s_lshr_b32 s43, s42, 15
    s_xor_b32 s42, s42, s43
    s_mul_i32 s42, s42, 0x85ebca6b
    s_xor_b32 s33, s33, s42
    s_lshr_b32 s43, s42, 13
    s_xor_b32 s42, s42, s43
    s_mul_i32 s33, s33, 0xc2b2ae35
    s_add_u32 s33, s33, s32
    s_lshr_b32 s43, s33, 16
    s_xor_b32 s33, s33, s43
    s_mul_i32 s33, s33, 0x27d4eb2f
    s_or_b32 s32, s42, 1
    s_andn2_b32 s33, s33, 7
    v_mov_b32 v10, s32
    v_mov_b32 v11, s33
    v_lshlrev_b32 v12, 3, v2
    s_mov_b32 exec_hi, 0
    global_store_dwordx2 v12, v[10:11], s[26:27] sc1
    s_mov_b32 exec_hi, -1
    s_branch h_nonx""")
    k.c("the first four waves start earlier: they are the loaders (logical waves 4-7)")
    k(f"""g_start:
    s_or_b32 s40, s2, s16
    s_xor_b32 s16, s16, 4
    v_xor_b32 v1, 4, v1
    v_xor_b32 v0, 0x100, v0
    v_lshlrev_b32 v13, 2, v2
    v_mov_b32 v220, 0
    v_mov_b32 v221, 0
    s_cmp_lt_u32 s16, 4
    s_cbranch_scc1 g_cons
    @@L@@
    g_cons:
    s_lshl_b32 s29, s34, 4
    s_add_u32 s29, s29, s35
    s_lshl_b32 s29, s29, 12
    s_add_u32 s29, s29, {WS_MPA}
    s_lshl_b32 s30, s16, 9
    s_add_u32 s30, s30, s29
    s_lshl_b32 s31, s16, 8
    s_add_u32 s31, s31, s29
    s_add_u32 s31, s31, 2048
    v_lshlrev_b32 v8, 1, v2
    v_lshlrev_b32 v9, 7, v2
    v_mov_b32 v104, -1
    v_mov_b32 v105, -1
    v_mov_b32 v106, -1
    v_mov_b32 v107, -1
    s_waitcnt lgkmcnt(0)
    s_mov_b32 s12, s6
    s_mov_b32 s13, s7""")
    stamp(k, 1)
    k("""
    s_cmp_eq_u32 s16, 1
    s_cselect_b64 exec, 0xffffff, 1
    buffer_load_dword v245, v9, s[12:15], s29 offen sc1
    s_mov_b64 exec, -1
    v_mov_b32 v14, 0""")
    srd(k, 8, 58, 1024 * 6144 * 2)
    def common():
        k.c("s64 = cluster (or X index) ; s65 = K half ; s66 = 1 for X")
        k(f"""s_mov_b32 s20, s26
        s_mov_b32 s21, s27
        s_mov_b32 s26, 4194304
        s_mov_b32 s27, 0x00020000
        s_and_b32 s65, s35, 1
        s_lshr_b32 s40, s35, 1
        s_mul_i32 s64, s34, 7
        s_add_u32 s64, s64, s40
        s_lshl_b32 s41, s34, 1
        s_add_u32 s41, s41, s65
        s_cmp_ge_u32 s35, 14
        s_cselect_b32 s66, 1, 0
        s_cselect_b32 s64, s41, s64""")
        k.c("v12 / v21: transposed reads of the gate / up tile")
        k(f"""v_lshrrev_b32 v10, 2, v2
        v_and_b32 v15, 3, v0
        v_bfe_u32 v11, v0, 3, 2
        v_xor_b32 v12, v11, v1
        v_and_b32 v12, 3, v12
        v_lshlrev_b32 v12, 5, v12
        v_lshl_add_u32 v12, v10, 7, v12
        v_lshl_add_u32 v12, v15, 3, v12
        v_lshrrev_b32 v16, 2, v1
        v_lshl_add_u32 v12, v16, 15, v12
        v_add_u32 v21, 65536, v12""")
    common()
    RA, RB = 200, 208
    k(f"""v_bfe_u32 v22, v0, 2, 3
    v_lshlrev_b32 v22, 5, v22
    v_lshl_add_u32 v22, v15, 3, v22
    v_bfe_u32 v23, v0, 2, 2
    v_bfe_u32 v24, v0, 4, 2
    v_lshl_add_u32 v23, v24, 3, v23
    v_lshl_add_u32 v{RA}, v23, 10, v22
    v_lshl_add_u32 v{RA}, v1, 8, v{RA}
    v_add_u32 v{RA}, 32768, v{RA}
    v_lshlrev_b32 v25, 7, v1
    v_xor_b32 v22, v22, v25
    v_lshl_add_u32 v{RB}, v23, 9, v22
    v_add_u32 v{RB}, 98304, v{RB}
    v_cmp_eq_u32 s[60:61], 1, v24
    v_cmp_eq_u32 s[62:63], 2, v24
    v_cmp_eq_u32 s[72:73], 3, v24
    v_add3_u32 v8, v8, v25, s36
    v_lshl_add_u32 v10, v24, 4, v25
    v_add_u32 v10, {L_SI}, v10""".replace("v_add3_u32 v8, v8, v25, s36", f"v_add_u32 v8, v8, v25\nv_add_u32 v8, {L_SI}, v8"))
    for t in range(1, 8): k(f"v_xor_b32 v{RA+t}, {32*t}, v{RA}")
    for t in range(1, 4): k(f"v_xor_b32 v{RB+t}, {32*t}, v{RB}")
    k(f"s_sleep {E('GNS', 8)}")
    nonce_issue(k, 20, 128)
    GA_, GB_, GD = 120, 128, 64
    nonce_finish(k, "g_nn", 20, 192, 112)
    mtag(k, 212, 0)
    k("v_and_b32 v212, 0xff, v212\ns_movk_i32 s74, 0xff00")
    k.c("X: s22 / s23 = place of the finished vectors ; their lines are written once early so that early readers find them on the die")
    k(f"""s_lshr_b32 s22, s64, 2
    s_lshl_b32 s22, s22, 12
    s_and_b32 s42, s64, 1
    s_lshl_b32 s42, s42, 8
    s_add_u32 s22, s22, s42
    s_and_b32 s42, s64, 2
    s_lshl_b32 s42, s42, 5
    s_add_u32 s22, s22, s42
    s_add_u32 s22, s22, {WS_FIN}
    s_lshr_b32 s23, s64, 3
    s_lshl_b32 s23, s23, 12
    s_and_b32 s42, s64, 3
    s_lshl_b32 s42, s42, 7
    s_add_u32 s23, s23, s42
    s_and_b32 s42, s64, 4
    s_lshl_b32 s42, s42, 4
    s_add_u32 s23, s23, s42
    s_add_u32 s23, s23, {WS_FIN + 5*4096}
    v_bfe_u32 v24, v0, 2, 1
    v_bfe_u32 v25, v0, 3, 2
    v_bfe_u32 v26, v0, 5, 1
    v_lshlrev_b32 v220, 4, v15
    v_lshl_add_u32 v220, v24, 9, v220
    v_lshl_add_u32 v220, v25, 10, v220
    v_lshl_add_u32 v220, v26, 7, v220
    v_lshlrev_b32 v221, 7, v15
    v_lshl_add_u32 v221, v24, 6, v221
    v_lshl_add_u32 v221, v25, 4, v221
    v_lshl_add_u32 v221, v26, 9, v221
    s_lshl_b32 s79, s64, 7
    s_add_u32 s79, s79, {WS_REC}
    s_cmp_ge_u32 s16, s66
    s_cbranch_scc1 g_nw""")
    srd(k, 44, 48, 2048)
    k("""v_lshrrev_b32 v11, 1, v221
    s_and_b32 s42, s64, 3
    s_lshl_b32 s42, s42, 9
    buffer_load_dwordx2 v[52:53], v11, s[44:47], s42 offen""")
    mtag4(k, 216)
    for i in range(4): k(f"v_not_b32 v{24+i}, v{216+i}")
    k(f"""buffer_store_dwordx4 v[24:27], v220, s[12:15], s22 offen sc1
    s_add_u32 s42, s22, 4096
    s_cmp_ge_u32 s64, 12
    s_cselect_b32 s42, s42, s22
    buffer_store_dwordx4 v[24:27], v220, s[12:15], s42 offen sc1
    s_mov_b32 exec_hi, 0
    buffer_store_dwordx4 v[24:27], v220, s[12:15], s23 offen sc1
    s_mov_b64 exec, 0xff
    buffer_store_dwordx4 v[104:107], v3, s[12:15], s79 offen sc1
    s_mov_b64 exec, -1
    g_nw:
    s_barrier""")
    def gemv(u, st=True):
        def prm(j):
            if u < 2: return RA + j, u*32768, 4096, GD + 4*j, GA_ + 4*u, u == 0
            return RB + (j & 3), (j >> 2)*16384, 2048, GD + 4*(j & 3), GA_ + 4*(j >> 2), j < 4
        def rd(j):
            va, off, hs = prm(j)[:3]
            k(f"ds_read_b64_tr_b16 v[{GB_+4*j}:{GB_+4*j+1}], v{va} offset:{off}")
            k(f"ds_read_b64_tr_b16 v[{GB_+4*j+2}:{GB_+4*j+3}], v{va} offset:{off+hs}")
        for j in range(7): rd(j)
        for j in range(8):
            k(f"s_waitcnt lgkmcnt({12 if j == 0 else 2*(7 - j)})")
            d_, a_, z = prm(j)[3:]
            k(f"v_mfma_f32_16x16x32_bf16 v[{d_}:{d_+3}], v[{a_}:{a_+3}], v[{GB_+4*j}:{GB_+4*j+3}], {'0' if z else f'v[{d_}:{d_+3}]'}")
            if j == 0: rd(7)
        if u:
            for h in range(3 - u):
                d_ = GD + 16*h
                for t, m_ in ((1, "s[60:61]"), (2, "s[62:63]"), (3, "s[72:73]")):
                    k(f"v_cndmask_b32 v{d_}, v{d_}, v{d_+4*t}, {m_}")
                k(f"v_and_or_b32 v{PO + 2*(u-1) + h}, v{d_}, s74, v212")
    PO = 224
    def mp(u, cp):
        if cp: k(f"s_add_u32 s42, s{29+u}, {WS_MPB - WS_MPA}")
        for h in range(3 - u):
            k(f"buffer_store_dword v{PO+2*(u-1)+h}, v13, s[12:15], s{42 if cp else 29+u} offen offset:{h*256} {('', 'sc1')[cp]}")
    stamp(k, 2)
    k("ds_read_u16 v6, v8\ns_waitcnt lgkmcnt(0)")
    k(f"""v_lshlrev_b32 v6, 16, v6
    v_mul_f32 v24, {LOG2E}, v6
    v_exp_f32 v24, v24
    v_add_f32 v24, 1.0, v24
    v_rcp_f32 v24, v24
    v_mul_f32 v6, v6, v24
    v_cvt_pk_bf16_f32 v6, v6, v6
    ds_write_b16 v8, v6
    ds_read_b128 v[{GA_}:{GA_+3}], v10
    ds_read_b128 v[{GA_+4}:{GA_+7}], v10 offset:64""")
    gemv(0)
    k("s_barrier")
    stamp(k, 3)
    gemv(1)
    mp(1, 0)
    stamp(k, 4)
    k("s_barrier\ns_cmp_eq_u32 s66, 1\ns_cbranch_scc1 x_start")
    if E("XH", 0):
        k.c("wave 0: a share of the second tiles of the two X workgroups into L2")
        k(f"""s_cmp_lg_u32 s16, 0
        s_cbranch_scc1 m_nh
        s_mul_i32 s42, s35, 9
        s_add_u32 s42, s42, 896
        s_mul_i32 s42, s42, 12288
        s_lshl_b32 s43, s34, 9
        s_add_u32 s42, s42, s43
        s_and_b32 s43, s34, 4
        s_lshl_b32 s43, s43, 9
        s_add_u32 s42, s42, s43
        s_add_u32 s42, s42, {3*2048}
        v_lshrrev_b32 v24, 2, v2
        v_mul_u32_u24 v24, 12288, v24
        v_lshl_add_u32 v24, v15, 7, v24
        s_mov_b32 exec_hi, 15
        buffer_load_dword v245, v24, s[8:11], s42 offen
        s_mov_b32 exec_hi, -1
        m_nh:""")
    k("s_barrier")
    gemv(2)
    mp(2, 0)
    stamp(k, 5)
    k("s_barrier")
    HN = E("HN", 37)
    if HN:
        k.c("the gate / up columns whose lines stream slowly are pulled into L2 by all M workgroups of the die")
        k(f"""s_bitcmp1_b32 s16, 0
        {"s_cbranch_scc1 m_nh2" if E("XN", 0) else ""}
        s_cselect_b32 s8, s52, s50
        s_cselect_b32 s9, s53, s51
        s_mov_b32 s10, {1024*3584*2}
        s_lshr_b32 s42, s8, 7
        s_sub_u32 s42, 3, s42
        s_add_u32 s42, s42, s34
        s_and_b32 s42, s42, 7
        s_cmp_eq_u32 s42, 7
        s_cbranch_scc1 m_nh2
        s_mul_i32 s43, s34, 7
        s_add_u32 s42, s42, s43
        s_lshl_b32 s42, s42, 7
        s_lshl_b32 s43, s35, 1
        s_lshr_b32 s40, s16, 1
        s_add_u32 s43, s43, s40
        s_mul_i32 s43, s43, {37*7168}
        s_add_u32 s42, s42, s43
        v_mul_u32_u24 v24, 7168, v2
        s_mov_b32 exec_lo, {((1 << HN) - 1) & 0xffffffff}
        s_mov_b32 exec_hi, {((1 << HN) - 1) >> 32}
        buffer_load_dword v245, v24, s[8:11], s42 offen
        s_mov_b64 exec, -1
        m_nh2:""")
    BD, BG, BU = 32, 64, 96
    def rdw(base, va):
        for ks in range(8):
            k(f"ds_read_b64_tr_b16 v[{base+4*ks}:{base+4*ks+1}], v{va} offset:{ks*4096}")
            k(f"ds_read_b64_tr_b16 v[{base+4*ks+2}:{base+4*ks+3}], v{va} offset:{ks*4096+2048}")
    k("s_barrier")
    rdw(BG, 12)
    k("s_waitcnt vmcnt(0)\ns_barrier")
    k.c("write-through copy of the partial sums (read back through L2, one KB per wave)")
    def fwd(lab, w0=0):
        k(f"""s_sub_u32 s42, s16, {w0}
        s_cmp_ge_u32 s42, 3
        s_cbranch_scc1 {lab}
        s_lshl_b32 s42, s42, 10
        s_add_u32 s42, s42, s29
        s_add_u32 s43, s42, {WS_MPB - WS_MPA}
        buffer_load_dwordx4 v[44:47], v3, s[12:15], s42 offen sc1
        s_waitcnt vmcnt(0)
        buffer_store_dwordx4 v[44:47], v3, s[12:15], s43 offen sc1
        {lab}:""")
    fwd("m_nb", 1)
    k("@@L0@@")
    k.c("================= waves 4-7: the loaders (nine 32 KB units through four LDS slots) =================")
    k(f"""g_load:
    s_and_b32 s69, s16, 3
    s_and_b32 s42, s16, 1
    s_lshl_b32 s42, s42, 7
    v_xor_b32 v6, s42, v3
    v_xor_b32 v7, 32, v6
    v_xor_b32 v8, 64, v6
    v_xor_b32 v9, 96, v6
    s_lshl_b32 s41, s35, 3
    s_add_u32 s41, s41, s69
    s_mul_i32 s18, s41, {8*12288}
    s_lshl_b32 s41, s34, 10
    s_cmp_ge_u32 s34, 6
    s_cselect_b32 s42, 2048, 0
    s_add_u32 s18, s18, s41
    s_add_u32 s18, s18, s42
    s_lshl_b32 s68, s69, 13
    s_mov_b32 s10, {1024*6144*2}
    s_waitcnt lgkmcnt(0)
    s_mov_b32 s8, s58
    s_mov_b32 s9, s59
    s_mov_b32 s12, s6
    s_mov_b32 s13, s7
    s_cmp_eq_u32 s40, 0
    s_cbranch_scc1 h_non
    h_nonx:
    s_lshl_b32 s42, s69, 7
    s_add_u32 s42, s42, {L_SI}
    s_mov_b32 m0, s42
    s_lshl_b32 s42, s35, 7
    v_add_u32 v10, s42, v13
    s_mov_b32 exec_hi, 0
    global_load_lds_dword v10, s[56:57]
    s_mov_b32 exec_hi, -1""")
    stamp(k, 1)
    W0, W1, W2 = E("W0", 8), E("W1", 7), E("W2", 10)
    WU = [int(x) for x in os.environ.get("WU", "8,8,8,8,10,10,10").split(",")]
    win = lambda n: WU[n >> 3]
    def unit_load(n):
        u, i = n >> 3, n & 7
        slot = ((u + 1) & 3) * 32768
        if u < 2:
            va, srdb, sb, stride = 6 + (i & 3), 8, 18, 12288
            rows = 32 * u + i
        elif u == 2:
            va, srdb, sb, stride = 4, 8, 19, 12288
            rows = 2 * i
            k(f"v_xor_b32 v4, {64*(i&1) + 128*((i>>2)&1)}, v14")
        elif u < 7:
            va, srdb, sb, stride = 5, (56, 56, 44, 44)[u-3], 67, 7168
            rows = 256 * ((u + 1) & 1) + 32 * (i >> 2) + 16 * (i & 1) + 4 * ((i >> 1) & 1)
        k(f"s_add_u32 s43, s68, {slot + i*1024}\ns_mov_b32 m0, s43\ns_add_u32 s42, s{sb}, {rows*stride}")
        if E("NOW", 0) and u >= 3: return
        nt = "nt" if (E("NTU", 511) >> u) & 1 else ""
        k(f"buffer_load_dwordx4 v{va}, s[{srdb}:{srdb+3}], s42 offen {nt} lds")
    L1, L2 = E("L1", 0), E("L2", 4)
    def stream(n0, n1, total, landed):
        for n in range(n0, n1):
            w = min(win(n), n) if n else 1
            for u, la in ((1, L1), (2, L2)):
                if n == 8 * (u + 1) + la and landed <= u:
                    k(f"s_waitcnt vmcnt({la})")
                    while landed <= u:
                        event(landed); landed += 1
            if n >= win(n): k(f"s_waitcnt vmcnt({win(n)-1})")
            while 8 * (landed + 1) <= n - win(n) + 1 and landed < 5:
                event(landed); landed += 1
            unit_load(n)
        if n1 == total:
            while 8 * (landed + 1) <= total - 16:
                k(f"s_waitcnt vmcnt({total - 8*(landed+1)})")
                event(landed); landed += 1
        return landed
    def event(u):
        stamp(k, 40 + u)
        k("s_barrier")
        if u in (1, 2): k("s_barrier")
        if u == 4: rdw(BG, 12)
    def setup2():
        pass
    landed = stream(0, 8, 56, 0)
    k(f"""s_lshl_b32 s19, s35, 2
    s_add_u32 s19, s19, s69
    s_mul_i32 s19, s19, {16*12288}
    s_lshl_b32 s42, s34, 9
    s_add_u32 s19, s19, s42
    s_and_b32 s42, s34, 4
    s_lshl_b32 s42, s42, 9
    s_add_u32 s19, s19, s42
    s_add_u32 s19, s19, {3*2048}
    v_lshrrev_b32 v5, 5, v2
    v_and_b32 v14, 0x1f0, v3
    v_lshlrev_b32 v12, 5, v5
    v_xor_b32 v14, v14, v12
    s_movk_i32 s42, 12288
    v_mad_u32_u24 v14, v5, s42, v14
    v_bfe_u32 v5, v0, 5, 1
    v_lshlrev_b32 v5, 3, v5
    v_bfe_u32 v12, v0, 3, 2
    v_add_u32 v5, v5, v12
    v_bfe_u32 v12, v0, 4, 2
    v_lshlrev_b32 v12, 1, v12
    v_xor_b32 v12, v12, v0
    v_and_b32 v12, 7, v12
    v_lshlrev_b32 v12, 4, v12
    s_movk_i32 s42, 7168
    v_mad_u32_u24 v5, v5, s42, v12""")
    common()
    k(f"""s_lshl_b32 s67, s65, 3
    s_add_u32 s67, s67, s69
    s_mul_i32 s67, s67, {64*7168}
    s_lshl_b32 s42, s64, 7
    s_add_u32 s67, s67, s42
""")
    srd(k, 56, 50, 1024 * 3584 * 2)
    srd(k, 44, 52, 1024 * 3584 * 2)
    landed = stream(8, 10, 56, landed)
    nonce_issue(k, 20, 128)
    landed = stream(10, 16, 56, landed)
    nonce_finish(k, "g_n2", 20, 192, 120)
    k("s_cmp_eq_u32 s66, 0\ns_cbranch_scc1 m_load")
    k(f"s_waitcnt vmcnt(0)\ns_barrier\ns_barrier\ns_branch x_start\nm_load:")
    stream(16, 56, 56, landed)
    k("s_branch m_join\n@@L1@@\nm_join:")
    L_H = 131072
    KB = 24; HA = 128; AG = 160
    k.c("v13 h2 write ; v17 A read")
    k(f"""v_bfe_u32 v7, v0, 4, 2
    v_and_b32 v6, 1, v0
    v_lshlrev_b32 v17, 10, v6
    v_lshl_add_u32 v17, v16, 9, v17
    v_lshl_add_u32 v17, v7, 4, v17
    v_add_u32 v17, {L_H}, v17
    v_and_b32 v6, 15, v0
    v_lshlrev_b32 v13, 6, v6
    v_bfe_u32 v22, v0, 4, 1
    v_lshl_add_u32 v13, v22, 5, v13
    v_bfe_u32 v22, v0, 5, 1
    v_lshl_add_u32 v13, v22, 4, v13
    v_add_u32 v13, {L_H}, v13
    v_lshl_add_u32 v13, v1, 10, v13
    s_lshl_b32 s70, s34, 1
    s_add_u32 s70, s70, s16
    s_lshl_b32 s70, s70, 13
    s_lshl_b32 s71, s65, 11
    s_add_u32 s70, s70, s71
    s_add_u32 s70, s70, {WS_HM}
    s_mov_b32 s71, 0x07060302
    s_lshl_b32 s69, s64, 2
    s_and_b32 s42, s16, 3
    s_add_u32 s69, s69, s42
    s_lshl_b32 s69, s69, 10
    s_lshl_b32 s76, s65, 1
    s_lshr_b32 s42, s16, 2
    s_add_u32 s76, s76, s42
    s_lshl_b32 s76, s76, 8
    s_add_u32 s76, s76, s69
    s_add_u32 s77, s76, {WS_XB}
    s_add_u32 s76, s76, {WS_XA}
    s_add_u32 s69, s69, {WS_XA}
""")
    k.c("waves 0, 1 wait for the two rows while the last units land; wave 2 brings the hand-off lines into L2")
    k(f"""s_cmp_lg_u32 s16, 2
    s_cbranch_scc1 m_n0
    v_lshlrev_b32 v4, 7, v2
    s_sub_u32 s69, s69, 2048
    s_mov_b32 exec_hi, 0
    buffer_load_dword v5, v4, s[12:15], s69 offen sc1
    s_mov_b32 exec_hi, -1
    m_n0:
    s_cmp_ge_u32 s16, 2
    s_cbranch_scc1 m_n1
    v_lshlrev_b32 v4, 7, v2
    s_mov_b64 exec, 0xffff
    buffer_load_dword v5, v4, s[12:15], s70 offen sc1
    s_mov_b64 exec, -1
    m_n1:""")
    mtag4(k, 216)
    htag(k, 60)
    hl = lambda so: f"""buffer_load_dwordx4 v[176:179], v3, s[12:15], s{so} offen sc1
    buffer_load_dwordx4 v[180:183], v3, s[12:15], s{so} offen offset:1024 sc1"""
    k("s_movk_i32 s74, 0xff00\ns_waitcnt vmcnt(0)")
    stamp(k, 6); stamp(k, 45)
    k(f"""s_barrier
    s_cmp_ge_u32 s16, 2
    s_cselect_b64 exec, 1, -1
    {hl(70)}
    s_mov_b64 exec, -1""")
    rdw(BU, 21)
    k(f"""s_cbranch_scc1 m_nk
    s_mov_b32 s83, 0
    m_ph:
    s_waitcnt vmcnt(0)""")
    for i in range(4): k(f"v_perm_b32 v{184+i}, v{177+2*i}, v{176+2*i}, s71")
    k("ds_write_b128 v13, v[184:187]")
    for i in range(8): k(f"v_xor_b32 v{176+i}, s{60+(i&3)}, v{176+i}")
    for i in range(4): k(f"v_or3_b32 v4, v{176+2*i}, v{177+2*i}, {'0' if i == 0 else 'v4'}")
    k("v_cmp_ne_u16 vcc, 0, v4\ns_cbranch_vccnz m_pr\nm_phx:")
    stamp(k, 14)
    def slot_of(d, s_):
        k(f"""s_bfe_u32 s{d}, s{s_}, 0x70005
        s_lshl_b32 s{d}, s{d}, 13
        s_and_b32 s{s_}, s{s_}, 1
        s_lshl_b32 s{s_}, s{s_}, 12
        s_add_u32 s{d}, s{d}, s{s_}""")
    k("m_nk:\ns_waitcnt lgkmcnt(0)\ns_barrier")
    for ks in range(8):
        k(f"ds_read_b128 v[{HA+4*ks}:{HA+4*ks+3}], v17 offset:{ks*64}")
    mm_ = lambda a_, b_, ks: k(f"v_mfma_f32_16x16x32_bf16 v[{a_}:{a_+3}], v[{HA+4*ks}:{HA+4*ks+3}], v[{b_+4*ks}:{b_+4*ks+3}], {'0' if ks == 0 else f'v[{a_}:{a_+3}]'}")
    for ks in range(8):
        k(f"s_waitcnt lgkmcnt({7-ks})")
        mm_(AG, BG, ks); mm_(AG + 4, BU, ks)
    PB = 184
    for i, r_ in enumerate((AG, AG + 1, AG + 4, AG + 5)): k(f"v_and_or_b32 v{PB+i}, v{r_}, s74, v{216+i}")
    k(f"""s_mov_b64 exec, 0xffff
    buffer_store_dwordx4 v[{PB}:{PB+3}], v3, s[12:15], s76 offen
    buffer_store_dwordx4 v[{PB}:{PB+3}], v3, s[12:15], s77 offen sc1
    s_mov_b64 exec, -1""")
    stamp(k, 15)
    k("s_cmp_eq_u32 s16, 0\ns_cbranch_scc1 r_start\ng_end:")
    stamp_out(k, 0)
    k(f"""s_endpgm
    m_pr:
    s_and_b32 s42, s83, 31
    s_cmp_eq_u32 s42, 31
    s_cselect_b32 s42, {HM_B}, 0
    s_add_u32 s42, s42, s70
    {hl(42)}""")
    spin(k, "m_ph", 0)
    k("s_branch m_phx")
    k.c("================= X: modulation tables, then the final reduction =================")
    k("x_start:")
    stamp(k, 30)
    mtag4(k, 216)
    k(f"""s_lshl_b32 s41, s34, 16
    s_lshl_b32 s42, s16, 13
    s_add_u32 s41, s41, s42
    s_add_u32 s41, s41, {WS_MPA}
    s_lshl_b32 s42, s65, 9
    s_add_u32 s40, s41, s42
    s_add_u32 s41, s40, s42
    v_lshlrev_b32 v10, 4, v0
    v_lshrrev_b32 v11, 5, v2
    v_and_b32 v12, 0x1f0, v3
    v_lshl_add_u32 v11, v11, 12, v12
    s_lshl_b32 s39, s34, 4
    s_add_u32 s39, s39, s35
    s_lshl_b32 s39, s39, 12
    s_add_u32 s39, s39, {WS_MPA}
    s_bitcmp1_b32 s64, 2
    s_cselect_b32 s28, 1.0, 0""")
    def gather(lab, rnd):
        k(f"""s_mov_b32 s83, 0
        {lab}:
        s_and_b32 s42, s83, 31
        s_cmp_eq_u32 s42, 31
        s_cselect_b32 s42, {WS_MPB - WS_MPA}, 0
        s_add_u32 s42, s42, s{41 - rnd}""")
        if rnd == 0:
            k("""s_add_u32 s43, s42, 4096
            buffer_load_dwordx4 v[32:35], v3, s[12:15], s42 offen sc1
            buffer_load_dwordx4 v[36:39], v3, s[12:15], s43 offen sc1""")
        else:
            k("buffer_load_dwordx4 v[32:35], v11, s[12:15], s42 offen offset:2048 sc1")
        k("s_waitcnt vmcnt(0)")
        untag(k, range(32, 40 - 4*rnd), 216, 17)
        tagchk(k, 17)
        k(f"""s_cbranch_vccz {lab}x
        s_and_b32 s42, s83, 31
        s_cmp_lg_u32 s42, 24
        s_cbranch_scc1 {lab}n""")
        own_b(rnd)
        k(f"{lab}n:")
        spin(k, lab, E("SLP", 0))
        k(f"{lab}x:")
        stamp(k, 31 + 3*rnd)
        if rnd == 0:
            for h in range(2): padd(k, 32 + 2*h, 32 + 2*h, 36 + 2*h)
        k(f"""ds_write_b128 v10, v[32:35] offset:{rnd*8192}
        s_waitcnt lgkmcnt(0)
        s_barrier
        s_cmp_lg_u32 s16, 0
        s_cbranch_scc1 {lab}e""")
        for i in range(8): k(f"ds_read_b128 v[{160+4*i}:{163+4*i}], v221 offset:{rnd*8192+i*1024}")
        for i in range(0, 8, 2):
            k(f"s_waitcnt lgkmcnt({6-i})")
            for h in range(2): padd(k, 160 + 4*i + 2*h, 160 + 4*i + 2*h, 164 + 4*i + 2*h)
        for h in range(2):
            padd(k, 160 + 2*h, 160 + 2*h, 168 + 2*h); padd(k, 176 + 2*h, 176 + 2*h, 184 + 2*h)
        for h in range(2): padd(k, 160 + 2*h, 160 + 2*h, 176 + 2*h)
    def own_b(rnd):
        k(f"s_add_u32 s43, s39, {WS_MPB - WS_MPA}")
        for i in range(2 + rnd):
            k(f"buffer_load_dwordx4 v[44:47], v3, s[12:15], s39 offen offset:{i*1024} sc1")
            k("s_waitcnt vmcnt(0)")
            k(f"buffer_store_dwordx4 v[44:47], v3, s[12:15], s43 offen offset:{i*1024} sc1")
            k("s_waitcnt vmcnt(0)")
    def fin_store(v, so):
        for i in range(4): k(f"v_and_or_b32 v{40+i}, v{v+i}, s74, v{216+i}")
        k(f"buffer_store_dwordx4 v[40:43], v220, s[12:15], s{so} offen sc1")
    gather("x_g0", 0)
    for h in range(2): rb2(k, 160 + 2*h, 17 + h)
    for n in range(4): k(f"v_add_f32 v{160+n}, s28, v{160+n}")
    for h in range(2): rb2(k, 160 + 2*h, 17 + h)
    fin_store(160, 22)
    k(f"""v_mov_b32 v48, s32
    v_mov_b32 v49, s33
    s_cmp_ge_u32 s64, 12
    s_cbranch_scc1 x_q
    v_max3_f32 v50, abs(v160), abs(v161), abs(v162)
    v_max_f32_e64 v50, v50, abs(v163)""")
    wave_reduce_to63(k, [50], "v_max_f32")
    k("s_branch x_r\nx_q:")
    for h in range(2): unpack_bf16(k, 164 + 2*h, 52 + h)
    for h in range(2): pmul(k, 164 + 2*h, 164 + 2*h, 160 + 2*h)
    k("s_add_u32 s42, s22, 4096")
    fin_store(164, 42)
    for i in range(4): k(f"v_and_b32 v{164+i}, s74, v{164+i}")
    padd(k, 164, 164, 166)
    k("v_add_f32 v50, v164, v165")
    wave_reduce_to63(k, [50], "v_add_f32")
    k(f"""x_r:
    v_readlane_b32 s42, v50, 63
    v_mov_b32 v50, s42
    s_mov_b64 exec, 0xff
    buffer_store_dwordx4 v[48:51], v3, s[12:15], s79 offen sc1
    s_mov_b64 exec, -1
    x_g0e:""")
    stamp(k, 32); stamp(k, 14)
    k("s_barrier\ns_cmp_lt_u32 s16, 4\ns_cbranch_scc1 x_t1")
    for n in range(16, 24): unit_load(n)
    k("s_waitcnt vmcnt(0)\ns_barrier\ns_branch x_t2\nx_t1:")
    k("s_barrier")
    gemv(2)
    mp(2, 0)
    k("x_t2:")
    stamp(k, 33)
    gather("x_g1", 1)
    for i in range(4): k(f"v_mov_b32 v{164+i}, v{160+i}")
    for i in range(4): k(f"v_permlane32_swap_b32 v{160+i}, v{164+i}")
    for h in range(2): padd(k, 160 + 2*h, 160 + 2*h, 164 + 2*h)
    for h in range(2): rb2(k, 160 + 2*h, 17 + h)
    k("s_mov_b32 exec_hi, 0")
    fin_store(160, 23)
    k("s_mov_b32 exec_hi, -1\nx_g1e:")
    stamp(k, 6); stamp(k, 35)
    fwd("x_nb")
    XN = E("XN", 0)
    if XN:
        k.c("idle time: the slowly streaming up column of this die into L2")
        k(f"""s_barrier
        s_mov_b32 s8, s52
        s_mov_b32 s9, s53
        s_mov_b32 s10, {1024*3584*2}
        s_lshr_b32 s42, s8, 7
        s_sub_u32 s42, 3, s42
        s_add_u32 s42, s42, s34
        s_and_b32 s42, s42, 7
        s_cmp_eq_u32 s42, 7
        s_cbranch_scc1 x_nh
        s_mul_i32 s43, s34, 7
        s_add_u32 s42, s42, s43
        s_lshl_b32 s42, s42, 7
        s_lshl_b32 s43, s65, 3
        s_add_u32 s43, s43, s16
        s_mul_i32 s43, s43, {64*7168}
        s_add_u32 s42, s42, s43
        v_mul_u32_u24 v24, 7168, v2
        buffer_load_dword v245, v24, s[8:11], s42 offen
        x_nh:""")
    k(f"""s_cmp_lg_u32 s16, 0
    s_cbranch_scc1 g_end
    s_lshl_b32 s78, s34, 14
    s_add_u32 s78, s78, {WS_KEY}
    s_lshl_b32 s79, s34, 7
    s_add_u32 s79, s79, {WS_GO}
    v_mov_b32 v22, 0""")
    srd(k, 56, 48, 2048)
    htag(k, 60)
    k.c("w_r and sb in slot order")
    k(f"""v_and_b32 v9, 15, v0
    v_lshlrev_b32 v9, 6, v9
    v_bfe_u32 v19, v0, 4, 1
    v_lshl_add_u32 v9, v19, 5, v9
    v_lshlrev_b32 v18, 9, v19
    v_bfe_u32 v19, v0, 5, 1
    v_lshl_add_u32 v9, v19, 4, v9
    v_lshl_add_u32 v18, v19, 11, v18
    v_bfe_u32 v19, v0, 2, 2
    v_lshl_add_u32 v18, v19, 7, v18
    v_lshl_add_u32 v18, v15, 4, v18
    s_mov_b32 s43, {WS_FIN + 5*4096}
    s_lshl_b32 s70, s64, 13
    s_add_u32 s70, s70, {WS_HM}
    s_add_u32 s71, s70, {HM_B}
    s_add_u32 s72, s70, 4096
    s_add_u32 s73, s71, 4096
    v_mov_b32 v21, 0xffff0000""")
    for j in range(2):
        k(f"buffer_load_dwordx4 v[{92+4*j}:{95+4*j}], v9, s[56:59], 0 offen offset:{j*1024}")
    poll_recs(k, "x_go", 28, 22, 79, "1", sl=E("SLG", 3))
    k("s_mov_b32 s83, 0\nx_sb:")
    for j in range(4):
        k(f"buffer_load_dwordx4 v[{100+4*j}:{103+4*j}], v18, s[12:15], s43 offen offset:{(j>>1)*64 + (j&1)*1024} sc1")
    for i in range(8): unpack_bf16(k, 48 + 2*i, 92 + i)
    k("s_waitcnt vmcnt(0)")
    untag(k, range(100, 116), 216, 19)
    tagchk(k, 19)
    k("s_cbranch_vccz x_sbx")
    spin(k, "x_sb", 8)
    k("x_sbx:")
    if E("XKS", 0): k(f"s_sleep {E('XKS', 0)}")
    stamp(k, 23)
    poll_keys(k, "x_pk", 24, 78, 32, sl=E("SLK", 0))
    stamp(k, 24); stamp(k, 13)
    top2(k, 24, 32, "x_t1st")
    k("s_mov_b32 s40, s41\nx_t1st:\nv_mov_b32 v46, s40")
    slot_of(42, 40)
    k(f"""s_add_u32 s42, s42, {WS_SLOT}
    s_mov_b32 s83, 0
    x_ph:
    buffer_load_dwordx4 v[32:35], v3, s[12:15], s42 offen sc1
    buffer_load_dwordx4 v[36:39], v3, s[12:15], s42 offen offset:1024 sc1
    s_waitcnt vmcnt(0)""")
    chk_sent(k, range(32, 40), 19)
    k("s_cbranch_vccz x_phx")
    spin(k, "x_ph", 0)
    k("x_phx:")
    for q in range(4):
        for i in range(2*q, 2*q + 2): unpack_bf16(k, 64 + 2*i, 32 + i)
        for i in range(2*q, 2*q + 2): padd(k, 64 + 2*i, 64 + 2*i, 100 + 2*i)
        for i in range(2*q, 2*q + 2): k(f"v_cvt_pk_bf16_f32 v{32+i}, v{64+2*i}, v{65+2*i}")
        for i in range(2*q, 2*q + 2):
            k(f"v_lshl_or_b32 v{64+2*i}, v{32+i}, 16, s{60+((2*i)&3)}")
            k(f"v_and_or_b32 v{65+2*i}, v{32+i}, v21, s{60+((2*i+1)&3)}")
        k(f"buffer_store_dwordx4 v[{64+4*q}:{67+4*q}], v3, s[12:15], s70 offen offset:{q*1024}")
    stamp(k, 15)
    for q in range(4):
        k(f"buffer_store_dwordx4 v[{64+4*q}:{67+4*q}], v3, s[12:15], s71 offen offset:{q*1024} sc1")
    for i in range(8): unpack_bf16(k, 100 + 2*i, 32 + i)
    pmul(k, 8, 48, 100)
    for i in range(1, 8): pfma(k, 8, 48 + 2*i, 100 + 2*i, 8)
    k("v_add_f32 v8, v8, v9")
    wave_reduce_to63(k, [8])
    round_bf16(k, 8, 8)
    k(f"""v_mul_f32 v8, {LOG2E}, v8
    v_exp_f32 v8, v8
    v_add_f32 v8, 1.0, v8
    v_rcp_f32 v8, v8""")
    round_bf16(k, 8, 8)
    k(f"""v_readlane_b32 s46, v8, 63
    v_mov_b32 v44, s32
    v_mov_b32 v45, s33
    v_mov_b32 v47, s46
    s_mov_b64 exec, 0xff
    buffer_store_dwordx4 v[44:47], v3, s[12:15], s73 offen sc1
    s_mov_b64 exec, -1
    s_sleep {E('XSL', 12)}""")
    k.c("================= final reduction: one job (row, 16-column block s18) per G workgroup =================")
    k(f"""r_start:
    s_lshl_b32 s62, s34, 1
    s_lshr_b32 s42, s34, 2
    s_add_u32 s62, s62, s42
    s_lshl_b32 s62, s62, 13
    s_add_u32 s62, s62, {WS_HM + HM_B}
    s_add_u32 s61, s62, 4096
    s_and_b32 s18, s34, 3
    s_lshl_b32 s18, s18, 4
    s_add_u32 s18, s18, s35
    v_mov_b32 v11, 0
    v_and_b32 v4, 3, v0
    v_lshrrev_b32 v7, 4, v2
    v_lshlrev_b32 v5, 3, v4
    v_lshl_add_u32 v5, v7, 1, v5
    v_lshlrev_b32 v6, 10, v4
    v_lshl_add_u32 v6, v7, 2, v6
    v_lshrrev_b32 v86, 1, v4
    v_lshlrev_b32 v86, 9, v86
    v_and_b32 v87, 1, v4
    v_lshl_add_u32 v85, v87, 10, v86
    v_lshl_add_u32 v85, v7, 2, v85
    v_and_b32 v87, 12, v5
    v_add_u32 v86, v86, v87
    s_and_b32 s30, s18, 1
    s_bfe_u32 s31, s18, 0x20001
    s_bfe_u32 s40, s18, 0x20003
    s_lshr_b32 s41, s18, 5
    s_lshl_b32 s45, s41, 10
    s_add_u32 s62, s62, s45
    s_lshl_b32 s42, s30, 8
    s_add_u32 s45, s45, s42
    s_lshl_b32 s42, s40, 6
    s_add_u32 s45, s45, s42
    s_lshl_b32 s31, s31, 4
    s_add_u32 s45, s45, s31
    s_add_u32 s62, s62, s45
    s_lshl_b32 s30, s30, 9
    s_add_u32 s31, s31, s30
    s_lshl_b32 s40, s40, 7
    s_add_u32 s31, s31, s40
    s_lshl_b32 s41, s41, 6
    s_add_u32 s31, s31, s41
    s_add_u32 s31, s31, {WS_FIN + 6*4096}
    s_mov_b32 s83, 0
    r_ld:
    s_mov_b64 exec, 1
    buffer_load_dwordx4 v[32:35], v11, s[12:15], s61 offen sc1
    s_mov_b64 exec, -1
    buffer_load_dword v41, v85, s[12:15], s62 offen sc1
    buffer_load_dword v91, v6, s[12:15], s31 offen sc1
    v_and_b32 v87, 2, v5
    v_lshlrev_b32 v87, 3, v87
    s_bitcmp1_b32 s18, 1
    s_cselect_b32 s42, s33, s32
    v_lshlrev_b32 v88, 3, v7
    v_lshrrev_b32_e64 v88, v88, s42
    v_and_b32 v88, 0xff, v88
    v_lshlrev_b32 v89, 4, v7
    v_lshrrev_b64 v[82:83], v89, s[32:33]
    v_and_b32 v82, 0xffff, v82
    s_waitcnt vmcnt(0)
    v_readfirstlane_b32 s50, v32
    v_readfirstlane_b32 s51, v33
    v_readfirstlane_b32 s40, v34
    v_readfirstlane_b32 s46, v35
    v_xor_b32 v91, v88, v91
    v_xor_b32 v41, v82, v41
    v_or_b32 v19, v91, v41
    v_cmp_ne_u16 vcc, 0, v19
    s_xor_b64 s[50:51], s[50:51], s[32:33]
    s_or_b64 vcc, vcc, s[50:51]
    s_cbranch_vccz r_ldx""")
    spin(k, "r_ld", 2)
    k(f"""r_ldx:
    v_mul_f32 v80, s46, v91
    s_bfe_u32 s46, s40, 0x70005
    s_bfe_u32 s47, s40, 0x30002
    s_bfe_u32 s60, s40, 0x10001""")
    slot_of(63, 40)
    k(f"""s_add_u32 s63, s63, s45
    s_add_u32 s63, s63, {WS_SLOT}
    s_mov_b32 s83, 0
    r_x1:
    buffer_load_dword v40, v86, s[12:15], s63 offen offset:2048 sc1
    v_lshrrev_b32 v10, 2, v2
    v_lshlrev_b32 v10, 7, v10
    v_lshl_add_u32 v10, v4, 4, v10
    s_lshl_b32 s44, s18, 13
    s_and_b32 s42, s34, 4
    s_lshl_b32 s42, s42, 4
    s_add_u32 s44, s44, s42
    s_add_u32 s44, s44, {WS_PART}
    s_add_u32 s45, s44, 4096""")
    row_of(k, 41, 46, 47, 61)
    mirror_row(k, 61, 41)
    k("""s_cmp_eq_u32 s60, 1
    s_cselect_b32 s41, s61, s41
    s_lshl_b32 s41, s41, 11
    s_lshl_b32 s61, s18, 5
    s_add_u32 s41, s41, s61""")
    if E("OTOUCH", 1): k("s_mov_b64 exec, 1\nbuffer_load_dword v245, v5, s[24:27], s41 offen\ns_mov_b64 exec, -1\ns_waitcnt vmcnt(1)")
    else: k("s_waitcnt vmcnt(0)")
    k("v_cmp_eq_u32 vcc, -1, v40\ns_cbranch_vccz r_x1x")
    spin(k, "r_x1", 2)
    k("""r_x1x:
    v_lshrrev_b32 v44, v87, v40
    v_lshlrev_b32 v44, 16, v44
    v_fmac_f32 v44, v91, v41""")
    stamp(k, 16)
    L = 16; U = 48
    for i in range(4): k(f"v_mov_b32 v{L+12+i}, v{216+i}")
    if E("SL4", 32): k(f"s_sleep {E('SL4', 32)}")
    k(f"""s_mov_b32 s83, 0
    s_mov_b64 s[64:65], -1
    s_mov_b64 s[66:67], -1
    s_mov_b64 s[68:69], -1
    s_mov_b32 s70, -1
    s_mov_b32 s71, 0
    r_p:""")
    for j in range(4):
        k(f"""s_mov_b64 exec, s[{64+2*j}:{65+2*j}]
        s_cbranch_execz r_q{j}
        buffer_load_dwordx4 v[{L+4*j}:{L+4*j+3}], v10, s[12:15], s{44 + (j >> 1)} offen offset:{(j&1)*2048} sc1
        r_q{j}:""")
    k("s_mov_b64 exec, -1\ns_waitcnt vmcnt(0)")
    for i in range(16): k(f"v_xor_b32 v{U+i}, v{216+(i&3)}, v{L+i}")
    for j in range(4):
        k(f"v_or3_b32 v{12+j}, v{U+4*j}, v{U+4*j+1}, v{U+4*j+2}")
    for j in range(4):
        k(f"v_or_b32 v{12+j}, v{12+j}, v{U+4*j+3}")
    for h in range(2):
        padd(k, U + 2*h, U + 2*h, U + 4 + 2*h); padd(k, U + 8 + 2*h, U + 8 + 2*h, U + 12 + 2*h)
    for j in range(4):
        k(f"v_cmp_ne_u16_sdwa s[{64+2*j}:{65+2*j}], v{12+j}, v11 src0_sel:BYTE_0 src1_sel:DWORD")
    for h in range(2): padd(k, U + 2*h, U + 2*h, U + 8 + 2*h)
    k("""s_or_b64 s[50:51], s[64:65], s[66:67]
    s_or_b64 s[52:53], s[68:69], s[70:71]
    s_or_b64 s[50:51], s[50:51], s[52:53]
    s_cbranch_scc1 r_r
    r_x:""")
    stamp(k, 17)
    k(f"v_permlane32_swap_b32 v{U}, v{U+2}\nv_permlane32_swap_b32 v{U+1}, v{U+3}")
    padd(k, U, U, U + 2)
    k(f"v_permlane16_swap_b32 v{U}, v{U+1}\nv_add_f32 v{U}, v{U}, v{U+1}")
    for sh in (4, 8): k(f"v_add_f32_dpp v{U}, v{U}, v{U} row_ror:{sh} {DPPM}")
    k(f"""v_fmac_f32 v44, v{U}, v80
    s_mov_b32 exec_lo, 0x000f000f
    s_mov_b32 exec_hi, 0x000f000f
    v_cvt_pk_bf16_f32 v44, v44, v44
    buffer_store_short v44, v5, s[24:27], s41 offen""")
    stamp_out(k, 0)
    k("s_endpgm\nr_r:")
    spin(k, "r_p", E("RSL", 0))
    k("s_branch r_x")

def gen():
    k = K(NAME)
    stamp_init(k)
    k("""s_cmp_ge_u32 s2, 256
    s_cbranch_scc1 k_done""")
    stamp(k, 0)
    head(k)
    role_F(k)
    n0 = len(k.lines)
    role_G(k)
    g = k.lines[n0:]; f = k.lines[:n0]
    ix = lambda L, t: [x.strip() for x in L].index(t)
    a, b = ix(g, "@@L0@@"), ix(g, "@@L1@@")
    ld = g[a+1:b]; g = g[:a] + g[b+1:]
    a = ix(g, "@@L@@"); g = g[:a] + ld + g[a+1:]
    a = ix(f, "@@G@@"); k.lines = f[:a] + g + f[a+1:]
    k("k_done:\ns_endpgm")
    return k

HEADER = """; adaLN + FNet mixing + MoD block, gfx950.  Generated by gen/gen22.py (hand-written generator).
"""
def tables():
    import numpy as np
    def h2(a, b):
        return int(np.float16(a).view(np.uint16)) | (int(np.float16(b).view(np.uint16)) << 16)
    def f4(a): return int(np.float32(a).view(np.uint32))
    cs = lambda x: (math.cos(2 * math.pi * x), math.sin(2 * math.pi * x))
    w = []
    for arr in range(4):
        for q in range(4):
            for l in range(64):
                n, h = l & 31, l >> 5
                e = 16 * ((n >> 2) & 1) + 4 * (n >> 3) + (n & 3)
                for i in range(4):
                    idx = 8 * q + 4 * h + i
                    c, s_ = cs((idx * e % 32) / 32.0) if arr < 2 else cs(idx * e / 1024.0)
                    w.append((h2(c, s_), h2(-s_, c), f4(c), f4(s_))[arr])
    for var in range(2):
        for mt in range(2):
            for l in range(64):
                m, g = l & 15, l >> 4
                k1, p = 8 * mt + (m >> 1), m & 1
                for i in range(4):
                    j0 = 4 * g + i
                    if var == 0:
                        c, s_ = cs((j0 * k1 % 16) / 16.0)
                        v = (h2(c, s_), h2(-s_, c))[p]
                    elif k1 == 0:
                        v = h2(1.0 if p == 0 else (-1.0) ** j0, 0)
                    elif k1 < 8:
                        c, s_ = cs((j0 * k1 % 16) / 16.0)
                        v = h2((c, -s_)[p], 0)
                    else:
                        c, s_ = cs(j0 * (8 + 16 * (k1 - 8)) / 256.0)
                        v = h2(0, (c, -s_)[p])
                    w.append(v)
    t = ".p2align 8\n.type tables,@object\ntables:\n"
    for i in range(0, len(w), 8):
        t += ".long " + ",".join("0x%x" % x for x in w[i:i+8]) + "\n"
    return t + f".size tables, {4*len(w)}\nall_end:\n"

def main(out):
    k = gen()
    t = HEADER + f"; @launch grid=(256,1,1) block=(512,1,1) lds={LDS}\n"
    t += '.amdgcn_target "amdgcn-amd-amdhsa--gfx950"\n.text\n' + k.text() + 'code_end:\n' + tables()
    t += '.section .rodata,"a"\n' + k.desc()
    open(out, "w").write(t)
if __name__ == "__main__":
    main(sys.argv[1] if len(sys.argv) > 1 else "adaLN_cond__spectral_fnet__moe_arch_mod__prompt.s")
```

```python
import math, sys, os
from asmgen import K, f32
from gen2 import (srd, P, padd, psub, pmul, pfma, pmul_s, pfma_s, psub_s, unpack_bf16, round_bf16, DPPM,
                  row_allreduce, wave_reduce_to63, pos16, stamp, stamp_init, stamp_out, chk_sent,
                  A_X, A_WR, A_WG, A_WU, A_WD, A_C, A_WM, A_OUT, A_DBG, A_WS, WS_SIZE)
from gen4 import E, SPIN, NAME

WS_Z    = 0x0100000
WS_STA  = 0x1000000
WS_STB  = 0x1008000
WS_GO   = 0x1010000
WS_REC  = 0x1012000
WS_FIN  = 0x1018000
WS_HM   = 0x1080000
HM_B    = 0x20000
WS_MPA  = 0x1300000
WS_MPB  = 0x1380000
WS_PART = 0x1100000
WS_XA   = 0x1180000
WS_XB   = 0x11C0000
WS_KEY  = 0x1040000
WS_SLOT = 0x1200000
WS_SH   = 0x1060000
P_CS, P_SAS, P_GA, P_GAM, P_Q, P_QM, P_C1, P_C1M, P_SB, P_SBM, P_GB, P_GBM, P_END = (
    0, 2048, 4096, 8192, 12288, 16384, 20480, 24576, 28672, 32768, 36864, 40960, 45056)
L_C = 0; L_P = 16384; L_X = L_P + P_END; L_U = L_X + 32768; L_R = L_U + 32768; L_KEY = L_R + 32768
L_ST = L_KEY + 1024
LDS = 163840
XW = 64
assert L_KEY + 256 <= LDS
LOG2E = f32(-math.log2(math.e))
SL2 = E("SL2", 4)

class VM:
    def __init__(self, k): self.k = k; self.q = []
    def __call__(self, tag, text): self.k(text); self.q.append(tag)
    def wait(self, tag, extra=""):
        i = len(self.q) - 1 - self.q[::-1].index(tag)
        self.k(f"s_waitcnt vmcnt({len(self.q) - 1 - i}) {extra}")

def cmp_recs(k, base):
    k(f"v_cmp_ne_u64 vcc, s[32:33], v[{base}:{base+1}]")
def spin(k, lab, sl):
    k(f"""{f"s_sleep {sl}" if sl else ""}
    s_add_u32 s83, s83, 1
    s_cmp_lt_u32 s83, {SPIN}
    s_cbranch_scc1 {lab}""")
def poll_recs(k, lab, base, vaddr, soff, mask, sl=SL2):
    k(f"s_mov_b32 s83, 0\ns_mov_b64 exec, {mask}\n{lab}:")
    k(f"buffer_load_dwordx2 v[{base}:{base+1}], v{vaddr}, s[12:15], s{soff} offen sc1")
    k("s_waitcnt vmcnt(0)")
    cmp_recs(k, base)
    k(f"s_cbranch_vccz {lab}y")
    spin(k, lab, sl)
    k(f"{lab}y:\ns_mov_b64 exec, -1\n{lab}x:")
def poll_keys(k, lab, base, soff, tmp, sl=1):
    k(f"""v_lshlrev_b32 v{tmp}, 7, v2
    s_add_u32 s42, s{soff}, 8192
    s_mov_b32 s83, 0
    s_mov_b64 vcc, -1
    s_mov_b64 s[40:41], -1
    {lab}:
    s_mov_b64 exec, vcc
    s_cbranch_execz {lab}a
    buffer_load_dwordx4 v[{base}:{base+3}], v{tmp}, s[12:15], s{soff} offen sc1
    {lab}a:
    s_mov_b64 exec, s[40:41]
    s_cbranch_execz {lab}b
    buffer_load_dwordx4 v[{base+4}:{base+7}], v{tmp}, s[12:15], s42 offen sc1
    {lab}b:
    s_mov_b64 exec, -1
    s_waitcnt vmcnt(0)
    {lab}c:
    v_cmp_ne_u32 vcc, s32, v{base+1}
    v_cmp_ne_u32 s[20:21], s33, v{base+3}
    v_cmp_ne_u32 s[40:41], s32, v{base+5}
    v_cmp_ne_u32 s[22:23], s33, v{base+7}
    v_max_u32 v{tmp+1}, v{base}, v{base+4}
    v_min_u32 v{tmp+2}, v{base}, v{base+4}
    s_or_b64 vcc, vcc, s[20:21]
    s_or_b64 s[40:41], s[40:41], s[22:23]
    s_or_b64 s[20:21], vcc, s[40:41]
    s_cbranch_scc0 {lab}x""")
    spin(k, lab, sl)
    k(f"{lab}x:")
def top2(k, base, tmp, skip=None):
    m1, m2, c = tmp + 1, tmp + 2, tmp + 3
    k(f"v_mov_b32 v{c}, v{m1}")
    k(f"v_max3_u32 v{m2}, v{m2}, v{base+2}, v{base+6}")
    wave_reduce_to63(k, [c], "v_max_u32")
    k(f"v_readlane_b32 s40, v{c}, 63")
    if skip: k(f"s_cmp_eq_u32 s65, 0\ns_cbranch_scc1 {skip}")
    k(f"v_cmp_eq_u32 vcc, s40, v{m1}")
    k(f"v_cndmask_b32 v{c}, v{m1}, v{m2}, vcc")
    wave_reduce_to63(k, [c], "v_max_u32")
    k(f"v_readlane_b32 s41, v{c}, 63")
def go_wait(k, lab, soff, vz, vd):
    poll_recs(k, lab, vd, vz, soff, "1", sl=E("SLG", 3))
    if E("SLG2", 1): k(f"s_sleep {E('SLG2', 1)}")
def nonce_issue(k, sp, off):
    k(f"s_load_dwordx2 s[32:33], s[{sp}:{sp+1}], {off}")
def nonce_finish(k, lab, sp, off, vt):
    k(f"""s_waitcnt lgkmcnt(0)
    s_cmp_lg_u32 s32, 0
    s_cbranch_scc1 {lab}x
    s_load_dwordx2 s[32:33], s[{sp}:{sp+1}], {off}
    s_mov_b32 s83, 0
    v_mov_b32 v{vt+2}, 0
    s_waitcnt lgkmcnt(0)
    {lab}:
    s_cmp_lg_u32 s32, 0
    s_cbranch_scc1 {lab}x
    global_load_dwordx2 v[{vt}:{vt+1}], v{vt+2}, s[{sp}:{sp+1}] sc1
    s_waitcnt vmcnt(0)
    v_readfirstlane_b32 s32, v{vt}
    v_readfirstlane_b32 s33, v{vt+1}""")
    spin(k, lab, 0)
    k(f"{lab}x:")
def rb2(k, v, t):
    k(f"v_cvt_pk_bf16_f32 v{t}, v{v}, v{v+1}")
    unpack_bf16(k, v, t)
def row_of(k, d, q, w, t1):
    k(f"""s_lshr_b32 s{t1}, s{q}, 4
    s_and_b32 s{d}, s{q}, 15
    s_lshl_b32 s{d}, s{d}, 4
    s_add_u32 s{d}, s{d}, s{t1}
    s_lshr_b32 s{t1}, s{q}, 3
    s_cmp_eq_u32 s{t1}, 1
    s_cselect_b32 s{t1}, 120, 0
    s_sub_u32 s{d}, s{d}, s{t1}
    s_lshl_b32 s{t1}, s{w}, 8
    s_add_u32 s{d}, s{d}, s{t1}
    s_cmp_ge_u32 s{w}, 4
    s_cselect_b32 s{t1}, 896, 0
    s_cmp_eq_u32 s{q}, 0
    s_cselect_b32 s{t1}, s{t1}, 0
    s_sub_u32 s{d}, s{d}, s{t1}""")
def mirror_row(k, d, t):
    k(f"""s_sub_u32 s{d}, 2048, s{t}
    s_cmp_eq_u32 s{t}, 0
    s_cselect_b32 s{d}, 1024, s{d}""")

def mtag(k, d, idx):
    k(f"""v_mov_b32 v{d}, s32
    v_mov_b32 v{d+1}, s33
    v_and_b32 v{d+2}, 7, v{idx}
    v_lshlrev_b32 v{d+2}, 3, v{d+2}
    v_lshrrev_b64 v[{d}:{d+1}], v{d+2}, v[{d}:{d+1}]""")
def mtag4(k, d):
    k(f"""v_mov_b32 v{d}, s32
    v_mov_b32 v{d+1}, s33
    v_and_b32 v{d+2}, 1, v0
    v_cmp_eq_u32 vcc, 1, v{d+2}
    v_cndmask_b32 v{d}, v{d}, v{d+1}, vcc
    v_bfe_u32 v{d+1}, v{d}, 8, 8
    v_bfe_u32 v{d+2}, v{d}, 16, 8
    v_lshrrev_b32 v{d+3}, 24, v{d}
    v_and_b32 v{d}, 0xff, v{d}""")
def htag(k, d):
    k(f"""s_and_b32 s{d}, s32, 0xffff
    s_lshr_b32 s{d+1}, s32, 16
    s_and_b32 s{d+2}, s33, 0xffff
    s_lshr_b32 s{d+3}, s33, 16""")
def btag(k, d):
    for i in range(8): k(f"s_bfe_u32 s{d+i}, s{32 + (i >> 2)}, {(8 << 16) | (8 * (i & 3))}")
def untag(k, regs, tg, acc, first=True):
    regs = list(regs)
    for i, r in enumerate(regs): k(f"v_xor_b32 v{r}, v{tg+(i&3)}, v{r}")
    for i in range(0, len(regs), 2):
        k(f"v_or3_b32 v{acc}, v{regs[i]}, v{regs[i+1]}, {'0' if first and i == 0 else f'v{acc}'}")
def tagchk(k, acc):
    k(f"v_and_b32 v{acc}, 0xff, v{acc}\nv_cmp_ne_u32 vcc, 0, v{acc}")

def stats(k, vm, pre, lastpre, extra=()):
    S = 108; R = 112
    k(f"s_mov_b32 s4, 0x3f803f80\ns_mov_b32 s5, {f32(1.0/1024)}")
    for h in range(2):
        for jj in range(2):
            vm.wait(f"x{h}{jj}")
            if h == 0 and jj == 0: nonce_issue(k, 20, 0)
            if 2*h + jj < len(extra): extra[2*h + jj]()
            for q in range(4):
                r = XW + 8*jj + 4*h + q
                first = (h == 0 and q == 0)
                k(f"v_dot2_f32_bf16 v{S+jj}, v{r}, s4, {'0' if first else f'v{S+jj}'}")
                k(f"v_dot2_f32_bf16 v{S+2+jj}, v{r}, v{r}, {'0' if first else f'v{S+2+jj}'}")
    k("s_nop 1")
    def red1(js):
        for j in js: k(f"v_permlane32_swap_b32 v{S+j}, v{S+j+1}")
        for j in js: k(f"v_add_f32 v{S+j}, v{S+j}, v{S+j+1}")
        regs = [S + j for j in js]
        row_allreduce(k, regs)
        for r in regs: k(f"v_add_f32_dpp v{r}, v{r}, v{r} row_bcast:15 row_mask:0xa bank_mask:0xf")
    red1((0, 2))
    k.c("lanes 31 / 63 hold the two rows")
    V = S + 2
    k(f"""v_mul_f32 v{S}, s5, v{S}
    v_mul_f32 v{V}, s5, v{V}
    v_mul_f32 v{R+4}, v{S}, v{S}
    v_cvt_pk_bf16_f32 v{R+5}, -v{S}, -v{S}
    v_sub_f32 v{V}, v{V}, v{R+4}
    v_mul_f32 v{R+6}, {f32(512.0)}, v{V}
    v_cmp_gt_f32 vcc, v{R+4}, v{R+6}
    v_readlane_b32 s40, v{R+5}, 31
    s_or_b32 s41, vcc_lo, vcc_hi
    s_bitcmp1_b32 s41, 31
    s_cbranch_scc1 {pre}_slowvar
    {pre}_var:""")
    round_bf16(k, V, V)
    k(f"v_add_f32 v{V}, {f32(1e-5)}, v{V}")
    round_bf16(k, V, V)
    k(f"v_sqrt_f32 v{V}, v{V}")
    k(f"s_and_b32 s40, s40, 0xffff\nv_mov_b32 v{R+2}, 0xffff0000")
    round_bf16(k, V, V)
    k(f"""v_mul_f32 v{V}, {f32(16.0)}, v{V}
    v_and_or_b32 v{R+2}, v{R+5}, v{R+2}, s40
    v_rcp_f32 v{R+1}, v{V}""")
    nonce_finish(k, f"{pre}_nn", 20, 64, 120)
    k(f"""v_mov_b32 v{R+3}, s32
    v_mov_b32_dpp v{R}, v{R+1} row_bcast:31 row_mask:0xc bank_mask:0xf
    v_mov_b32 v{R+4}, 0""")
    if lastpre: vm.wait(lastpre)
    k("s_mov_b32 exec_lo, 0\ns_mov_b32 exec_hi, 0x80000000")
    k(f"buffer_store_dwordx4 v[{R}:{R+3}], v{R+4}, s[12:15], s62 offen")
    k(f"v_lshlrev_b32 v{R+5}, 4, v1\nv_add_u32 v{R+5}, {L_ST}, v{R+5}\nds_write_b128 v{R+5}, v[{R}:{R+3}]")
    k("s_mov_b64 exec, -1")
    def slow():
        k.c("---- rare: |mean| >> std, recompute the variance in two passes ----")
        k(f"{pre}_slowvar:")
        U2 = 120
        k(f"v_lshlrev_b32 v{R+6}, 16, v{R+5}")
        k(f"v_readlane_b32 s44, v{R+6}, 31\nv_readlane_b32 s46, v{R+6}, 63")
        for jj in range(2):
            sr = 44 + 2 * jj
            for i in range(8):
                unpack_bf16(k, U2, XW + jj * 8 + i)
                k(f"v_pk_add_f32 {P(U2)}, {P(U2)}, s[{sr}:{sr+1}] op_sel_hi:[1,0]")
                if i == 0: pmul(k, U2 + 2, U2, U2)
                else: pfma(k, U2 + 2, U2, U2, U2 + 2)
            k(f"v_add_f32 v{S+2+jj}, v{U2+2}, v{U2+3}")
        k(f"v_add_f32 v{R+6}, v{R+6}, v{S}")
        red1((2,))
        k(f"""v_mul_f32 v{S+2}, s5, v{S+2}
        v_fma_f32 v{S+2}, -v{R+6}, v{R+6}, v{S+2}
        v_max_f32 v{S+2}, 0, v{S+2}
        s_branch {pre}_var""")
    return slow

def stats_b(k):
    k(f"""v_add_u32 v84, {L_ST}, v3
    s_mov_b64 exec, 0xff
    ds_read_b128 v[80:83], v84
    s_waitcnt lgkmcnt(0)
    buffer_store_dwordx4 v[80:83], v3, s[12:15], s63 offen sc1
    s_mov_b64 exec, -1""")

def head(k):
    k(f"""s_load_dwordx2 s[4:5], s[0:1], {A_X}
    s_load_dwordx4 s[24:27], s[0:1], {A_OUT}
    s_load_dwordx2 s[6:7], s[0:1], {A_WS}
    s_load_dwordx4 s[56:59], s[0:1], {A_C}
    s_load_dwordx4 s[48:51], s[0:1], {A_WR}
    s_load_dwordx4 s[52:55], s[0:1], {A_WU}
    s_memrealtime s[32:33]
    v_lshrrev_b32 v1, 6, v0
    v_and_b32 v2, 63, v0
    v_readfirstlane_b32 s16, v1
    v_lshlrev_b32 v3, 4, v2
    v_mov_b32 v4, 0
    s_getpc_b64 s[36:37]
    h_pc:
    s_and_b32 s34, s2, 7
    s_bfe_u32 s35, s2, 0x40003
    s_cmp_lg_u32 s16, 7
    s_cbranch_scc1 h_npf
    s_lshr_b32 s42, s2, 3
    s_lshl_b32 s42, s42, 11
    v_lshl_add_u32 v4, v2, 7, s42
    v_min_u32 v4, all_end-h_pc-4, v4
    s_mov_b64 exec, 0xffff
    global_load_dword v199, v4, s[36:37]
    s_mov_b64 exec, -1
    h_npf:
    s_mov_b32 s11, 0x00020000
    s_mov_b32 s14, {WS_SIZE}
    s_mov_b32 s15, 0x00020000
    s_bitcmp0_b32 s2, 7
    s_cbranch_scc1 g_start""")
HQ = ["x00", "x01", "x10", "x11", "touch"]

def role_F(k):
    vm = VM(k); vm.q = list(HQ)
    N16, G4, VO, TR, UW, XD, XDM, SLA, SLM, V70, FA, BP, A3 = 4, 5, 6, 8, 12, 13, 14, 15, 16, 17, 18, 19, 22
    ZL, W, D1R, D1I, BRE, BIM, TC, TS, XA2, XB2, GA, GAM, Q, QM, CS = 24, 40, 56, 72, 88, 104, 120, 136, 152, 168, 184, 200, 216, 232, 248
    AB, S, XB, AH, D0, D, UO, A2, UB = 216, 24, 40, 224, 228, 56, 184, 236, 152
    T = 248; TG = 244; FT = 8; PFD = 6; FLW = E("FLW", 4); XR = E("XR", 1)
    k(f"""s_lshl_b32 s60, s16, 19
    s_lshl_b32 s61, s35, 15
    s_add_u32 s60, s60, s61
    s_lshl_b32 s61, s34, 11
    s_add_u32 s60, s60, s61
    s_add_u32 s61, s60, 16384
    s_lshl_b32 s62, s34, 11
    s_lshl_b32 s63, s35, 7
    s_add_u32 s62, s62, s63
    s_add_u32 s63, s62, {WS_STB}
    s_lshl_b32 s42, s16, 4
    s_add_u32 s62, s62, s42
    s_add_u32 s62, s62, {WS_STA}
    v_mov_b32 v116, 0
    s_mov_b32 s10, {2048*1024*2}
    s_waitcnt lgkmcnt(0)
    s_mov_b32 s8, s4
    s_mov_b32 s9, s5
    s_mov_b32 s12, s6
    s_mov_b32 s13, s7""")
    stamp(k, 1)
    for h in range(2):
        for jj in range(2):
            k(f"buffer_load_dwordx4 v[{XW+8*jj+4*h}:{XW+8*jj+4*h+3}], v3, s[8:11], s{60+jj} offen offset:{h*1024}")
    k(f"""s_mov_b64 exec, 1
    buffer_load_dword v215, v116, s[12:15], s62 offen sc1
    s_mov_b64 exec, -1
    s_branch f_start
    @@G@@
    f_start:
    s_mov_b32 s20, s26
    s_mov_b32 s21, s27
    s_mov_b32 s26, 4194304
    s_mov_b32 s27, 0x00020000
    s_mov_b32 s22, s50
    s_mov_b32 s23, s51
    s_mov_b32 s28, s54
    s_mov_b32 s29, s55
    s_add_u32 s58, s36, tables-h_pc
    s_addc_u32 s59, s37, 0""")
    k.c("s36 = k0 slot of this wave in the second radix-16 step ; s37 = column-block pair read after the exchange")
    k(f"""s_lshr_b32 s36, s35, 1
    s_and_b32 s36, s36, 4
    s_xor_b32 s36, s36, s16
    s_and_b32 s37, s34, 4
    s_xor_b32 s37, s37, s16""")
    k(f"""s_lshl_b32 s3, s34, 4
    s_add_u32 s3, s3, s35
    v_and_b32 v{N16}, 15, v0
    v_bfe_u32 v{G4}, v0, 4, 2
    v_lshrrev_b32 v{T}, 3, v2
    v_lshlrev_b32 v{T}, 18, v{T}
    v_lshlrev_b32 v{T+1}, 1, v{G4}
    v_xor_b32 v{T+1}, v{T+1}, v0
    v_and_b32 v{T+1}, 7, v{T+1}
    v_lshl_add_u32 v{T+7}, v{T+1}, 4, v{T}
    v_lshlrev_b32 v{VO}, 16, v{G4}
    v_lshl_add_u32 v{VO}, v{N16}, 4, v{VO}
    s_lshl_b32 s60, s16, 15
    s_lshl_b32 s61, s34, 11
    s_add_u32 s60, s60, s61
    s_lshl_b32 s61, s35, 7
    s_add_u32 s60, s60, s61
    s_lshl_b32 s61, s16, 12
    s_add_u32 s61, s61, {L_X}
    s_lshl_b32 s64, s36, 19
    s_lshl_b32 s65, s35, 3
    s_and_b32 s66, s34, 1
    s_lshl_b32 s66, s66, 2
    s_add_u32 s65, s65, s66
    s_lshr_b32 s66, s34, 1
    s_add_u32 s65, s65, s66
    s_lshl_b32 s65, s65, 8
    s_add_u32 s64, s64, s65
    s_add_u32 s64, s64, {WS_Z}
    s_add_u32 s65, s64, 32768
    s_add_u32 s66, s64, {8*32768}
    s_add_u32 s67, s64, {9*32768}
""")
    def tile(i):
        k(f"s_mov_b32 m0, s61\ns_add_u32 s42, s60, {(i&1)*8*262144 + (i>>1)*16384}\ns_add_u32 s61, s61, 1024")
        vm("tile", f"buffer_load_dwordx4 v{T+7}, s[8:11], s42 offen lds")
    def tabs():
        k(f"""s_cmp_eq_u32 s36, 0
        s_cselect_b32 s42, 2048, 0
        v_add_u32 v{T}, s42, v3""")
        vm("tab", f"global_load_dwordx4 v[{A2}:{A2+3}], v{T}, s[58:59]")
        vm("tab", f"global_load_dwordx4 v[{A2+4}:{A2+7}], v{T}, s[58:59] offset:1024")
    def tabs2():
        k(f"s_lshl_b32 s42, s16, 11\ns_mov_b32 m0, s42\nv_add_u32 v{T}, s42, v3")
        vm("tab", f"global_load_lds_dwordx4 v{T}, s[58:59]")
        vm("tab", f"global_load_lds_dwordx4 v{T}, s[58:59] offset:1024")
    TL = E("TL", 2)
    k("s_barrier")
    tabs()
    if TL == 0:
        for i in range(4): tile(i)
    def rowaddr():
        row_of(k, 30, 3, 16, 42)
        mirror_row(k, 31, 30)
        k(f"""s_lshl_b32 s18, s30, 11
        s_lshl_b32 s19, s31, 11
        s_sub_u32 s75, s19, 2048
        s_lshl_b32 s68, s16, 12
        s_add_u32 s68, s68, {L_R}""")
    rowaddr()
    def vtab():
        k.c("tables of the 1024-point DFT: waves 0-3 one quarter of the 32-point matrix each, waves 4-7 of the twiddle factors")
        TB = 152
        k(f"""v_bfe_u32 v{T}, v0, 2, 1
        v_bfe_u32 v{T+1}, v0, 3, 2
        v_lshlrev_b32 v{T+1}, 2, v{T+1}
        v_lshl_add_u32 v{T}, v{T}, 4, v{T+1}
        v_and_or_b32 v{T}, v0, 3, v{T}
        v_bfe_u32 v{T+1}, v0, 5, 3
        v_cvt_f32_u32 v{T}, v{T}
        v_cvt_f32_u32 v{T+1}, v{T+1}
        s_cmp_lt_u32 s16, 4
        s_mov_b32 s42, {f32(1.0/32)}
        s_cselect_b32 s42, s42, {f32(1.0/1024)}
        v_mul_f32 v{T}, s42, v{T}
        v_mul_f32 v{T+1}, 4.0, v{T+1}
        v_mul_f32 v{TB}, v{T}, v{T+1}""")
        for i in range(1, 4): k(f"v_add_f32 v{TB+i}, v{TB+i-1}, v{T}")
        for i in range(4): k(f"v_sin_f32 v{TB+4+i}, v{TB+i}")
        for i in range(4): k(f"v_cos_f32 v{TB+i}, v{TB+i}")
        k("s_cbranch_scc0 f_tw")
        for i in range(4):
            k(f"v_cvt_pk_f16_f32 v{TB+8}, v{TB+i}, v{TB+4+i}")
            k(f"v_cvt_pk_f16_f32 v{TB+4+i}, -v{TB+4+i}, v{TB+i}")
            k(f"v_mov_b32 v{TB+i}, v{TB+8}")
        k(f"""f_tw:
        s_and_b32 s42, s16, 4
        s_add_u32 s42, s42, s16
        s_lshl_b32 s42, s42, 10
        v_add_u32 v{T}, s42, v3
        ds_write_b128 v{T}, v[{TB}:{TB+3}] offset:{L_C}
        ds_write_b128 v{T}, v[{TB+4}:{TB+7}] offset:{L_C+4096}""")
    VT = E("VT", 0)
    if VT == 0: vtab()
    k.c("first-step matrix: lane m = 2*k0+p, rows j1 = 4g+i, angle k0*(16*j1+j0)/256")
    k(f"""v_lshrrev_b32 v{T}, 1, v{N16}
    v_and_b32 v{T+1}, 1, v0
    v_cmp_eq_u32 vcc, 1, v{N16}
    v_cndmask_b32_e64 v{T+2}, v{T}, 0, vcc
    v_cndmask_b32_e64 v{T}, v{T}, 8, vcc
    v_cndmask_b32_e64 v{T+1}, v{T+1}, 0, vcc
    v_mad_u32_u24 v{T+3}, v{T}, v{G4}, v{T+1}
    v_lshlrev_b32 v{T+3}, 5, v{T+3}
    v_mad_u32_u24 v{T+3}, v{T+2}, v1, v{T+3}
    v_cvt_f32_u32 v{T}, v{T}
    v_cvt_f32_u32 v{T+2}, v{T+2}
    v_cvt_f32_u32 v{T+3}, v{T+3}
    v_mul_f32 v{T}, {f32(1.0/16)}, v{T}
    v_mul_f32 v{T+2}, {f32(1.0/256)}, v{T+2}
    v_mul_f32 v{AB}, {f32(1.0/128)}, v{T+3}""")
    for i in range(1, 4): k(f"v_add_f32 v{AB+i}, v{AB+i-1}, v{T}")
    for i in range(4): k(f"v_add_f32 v{AB+4+i}, v{AB+i}, v{T+2}")
    for i in range(8): k(f"v_cos_f32 v{AB+i}, v{AB+i}")
    UWA, URA = 212, 213
    k(f"""v_lshrrev_b32 v{T}, 2, v2
    v_lshlrev_b32 v{TR}, 7, v{T}
    v_bfe_u32 v{T}, v0, 3, 2
    v_lshl_add_u32 v{TR}, v{T}, 5, v{TR}
    v_and_b32 v{T}, 3, v0
    v_lshl_add_u32 v{TR}, v{T}, 3, v{TR}
    v_lshl_add_u32 v{TR}, v1, 12, v{TR}
    v_xor_b32 v{TR+1}, 32, v{TR}
    v_xor_b32 v{TR+2}, 64, v{TR}
    v_xor_b32 v{TR+3}, 96, v{TR}
    v_lshlrev_b32 v{UW}, 13, v{G4}
    v_lshl_add_u32 v{UW}, v{N16}, 4, v{UW}
    v_lshlrev_b32 v7, 5, v{G4}
    v_and_b32 v{T}, 1, v0
    v_lshl_add_u32 v7, v{T}, 10, v7
    v_and_b32 v{T}, 2, v0
    v_lshl_add_u32 v7, v{T}, 3, v7
    s_lshl_b32 s70, s34, 11
    s_lshl_b32 s71, s16, 7
    s_add_u32 s71, s71, s70
    s_add_u32 s71, s71, {WS_STA}
    s_lshl_b32 s42, s16, 7
    s_add_u32 s42, s42, {L_U}
    v_lshlrev_b32 v{URA}, 3, v{N16}
    v_lshl_add_u32 v{UWA}, v{G4}, 13, v{URA}
    v_add_u32 v{UWA}, s42, v{UWA}
    s_lshl_b32 s42, s36, 12
    s_add_u32 s42, s42, {L_U}
    v_lshl_add_u32 v{URA}, v{G4}, 8, v{URA}
    v_and_b32 v{URA+1}, 16, v0
    v_lshl_add_u32 v{URA}, v{URA+1}, 3, v{URA}
    v_add_u32 v{URA}, s42, v{URA}
    v_xor_b32 v{URA+1}, 128, v{URA}""")
    slow1 = stats(k, vm, "f", None, [(lambda i=i: tile(i)) for i in range(4)] if TL == 1 else ())
    vm.q.append("sta")
    if TL == 3: k("s_barrier")
    if TL >= 2:
        for i in range(4): tile(i)
    k.c("the first row is this wave's output row: keep it")
    k(f"v_add_u32 v{T}, s68, v3")
    for h in range(2): k(f"ds_write_b128 v{T}, v[{XW+4*h}:{XW+4*h+3}] offset:{h*1024}")
    if VT == 1: vtab()
    k.c("tag bits: 8 bits of the nonce per 16-byte piece, all 64 bits over eight neighbouring lanes")
    k(f"""v_mov_b32 v{TG}, s32
    v_mov_b32 v{TG+1}, s33
    v_and_b32 v{T}, 4, v0
    v_cmp_eq_u32 vcc, 4, v{T}
    v_and_b32 v{T}, 3, v0
    v_lshlrev_b32 v{T}, 2, v{T}
    v_cndmask_b32 v{TG}, v{TG}, v{TG+1}, vcc
    v_lshrrev_b32 v{TG}, v{T}, v{TG}
    s_mov_b32 s54, 0x00010001
    s_mov_b32 s55, 0xfffefffe
    s_mov_b32 s46, 0x05040100
    s_mov_b32 s47, 0x07060302""")
    for i in range(1, 4): k(f"v_lshrrev_b32 v{TG+i}, {i}, v{TG}")
    for i in range(4): k(f"v_and_b32 v{TG+i}, s54, v{TG+i}")
    k.c("---- LN1 statistics of this wave's 32 rows (same-die copy first, now and then the write-through copy) ----")
    stl = lambda so: f"""s_mov_b32 exec_lo, 0x000f000f
    s_mov_b32 exec_hi, 0x000f000f
    buffer_load_dwordx4 v[{S}:{S+3}], v7, s[12:15], s{so} offen sc1"""
    k(f"s_waitcnt vmcnt({E('STW', 2)})")
    k(stl(71) + "\ns_mov_b64 exec, -1\ns_mov_b32 s83, 0\ns_waitcnt vmcnt(1)")
    stamp(k, 2)
    for jj in range(2):
        for nt in range(4):
            b = XB + (jj*4 + nt)*2
            k(f"ds_read_b64_tr_b16 v[{b}:{b+1}], v{TR+nt} offset:{L_X + jj*2048}")
    k(f"""s_mov_b32 exec_lo, 0x000f000f
    s_mov_b32 exec_hi, 0x000f000f
    f_st:
    s_waitcnt vmcnt(0)
    v_cmp_ne_u32 vcc, s32, v{S+3}
    s_mov_b64 exec, -1
    s_cbranch_vccnz f_str
    f_stx:
    s_setprio 3""")
    def st_retry():
        k(f"""f_str:
        s_and_b32 s42, s83, 31
        s_cmp_lg_u32 s42, 24
        s_cbranch_scc1 f_sb1""")
        stats_b(k)
        k(f"""f_sb1:
        s_cmp_eq_u32 s42, 31
        s_cselect_b32 s42, {WS_STB - WS_STA}, 0
        s_add_u32 s42, s42, s71""")
        if E("SLS", 0): k(f"s_sleep {E('SLS', 0)}")
        k(stl(42))
        spin(k, "f_st", 0)
        k("s_waitcnt vmcnt(0)\ns_mov_b64 exec, -1\ns_branch f_stx")
    vm.q = []
    stamp(k, 3)
    BM = S + 4; MM = S + 8
    for i in range(4): k(f"v_mov_b32_dpp v{MM+i}, v{S+2} row_newbcast:{i} {DPPM}")
    for jj in range(2):
        for i in range(4):
            k(f"v_mul_f32_dpp v{AB+4*jj+i}, v{S+jj}, v{AB+4*jj+i} row_newbcast:{i} {DPPM}")
        for hh in range(2): k(f"v_perm_b32 v{BM+2*jj+hh}, v{MM+2*hh+1}, v{MM+2*hh}, s{46+jj}")
        for hh in range(2): k(f"v_cvt_pk_bf16_f32 v{AH+2*jj+hh}, v{AB+4*jj+2*hh}, v{AB+4*jj+2*hh+1}")
        k(f"v_mfma_f32_16x16x16_bf16 v[{D0+4*jj}:{D0+4*jj+3}], v[{AH+2*jj}:{AH+2*jj+1}], v[{BM+2*jj}:{BM+2*jj+1}], 0")
    k("s_waitcnt lgkmcnt(0)")
    def s1m(nt):
        for jj in range(2):
            d = D + (nt*2 + jj)*4; b = XB + (jj*4 + nt)*2
            k(f"v_mfma_f32_16x16x16_bf16 v[{d}:{d+3}], v[{AH+2*jj}:{AH+2*jj+1}], v[{b}:{b+1}], v[{D0+4*jj}:{D0+4*jj+3}]")
    def s1c(nt):
        for ii in range(2):
            for jj in range(2):
                d = D + (nt*2 + jj)*4
                k(f"v_cvt_pk_f16_f32 v{UO+(nt*2+ii)*2+jj}, v{d+2*ii}, v{d+2*ii+1}")
            u = UO + (nt*2 + ii)*2
            k(f"ds_write_b64 v{UWA}, v[{u}:{u+1}] offset:{ii*4096 + nt*1024}")
    def early():
        k("s_mov_b32 m0, s68\ns_cmp_eq_u32 s34, 0\ns_cbranch_scc1 f_r0\nf_nr:")
        for u in range(2): k(f"buffer_load_dwordx4 v3, s[8:11], s75 offen offset:{2048+u*1024} lds")
    EP = E("EP", 0)
    s1m(0); s1m(1)
    if EP == 0: early()
    s1m(2); s1c(0); s1m(3); s1c(1); s1c(2); s1c(3)
    k("s_waitcnt lgkmcnt(0)\ns_barrier")
    for nt in range(4):
        for h in range(2): k(f"ds_read_b64 v[{UB+4*nt+2*h}:{UB+4*nt+2*h+1}], v{URA+h} offset:{nt*1024}")
    if EP == 1: early()
    for mt in range(2):
        for nt in range(4):
            if mt == 0: k(f"s_waitcnt lgkmcnt({6-2*nt})")
            d = D + (mt*4 + nt)*4
            k(f"v_mfma_f32_16x16x32_f16 v[{d}:{d+3}], v[{A2+4*mt}:{A2+4*mt+3}], v[{UB+4*nt}:{UB+4*nt+3}], 0")
    for mt in range(2):
        for ii in range(2):
            o = UO + (mt*2 + ii)*4
            for nt in range(4):
                d = D + (mt*4 + nt)*4
                k(f"v_cvt_pk_f16_f32 v{o+nt}, v{d+2*ii}, v{d+2*ii+1}")
            for nt in range(4): k(f"v_and_or_b32 v{o+nt}, v{o+nt}, s55, v{TG+nt}")
            vm("z", f"buffer_store_dwordx4 v[{o}:{o+3}], v{VO}, s[12:15], s{64+mt*2+ii} offen sc1")
    stamp(k, 4)
    XRA, XRB = 200, 208
    k("s_setprio 0")
    k.c("radix-8 matrix: lane m = 2*kk+p, inputs r = 2g, 2g+1, angle r*t/2048")
    k("s_mov_b32 s43, 0")
    row_of(k, 40, 3, 43, 42)
    k(f"""v_lshrrev_b32 v{T}, 1, v{N16}
    v_and_b32 v{T+1}, 1, v0
    v_lshlrev_b32 v{T+2}, 8, v{T}
    v_add_u32 v{T+2}, s40, v{T+2}
    s_cmp_lg_u32 s3, 0
    s_cbranch_scc1 f_a3n
    v_cmp_lt_u32 s[44:45], 3, v{T}
    v_subrev_u32 v{T+3}, 896, v{T+2}
    v_cndmask_b32 v{T+2}, v{T+2}, v{T+3}, s[44:45]
    v_cmp_eq_u32 vcc, 1, v{N16}
    v_mov_b32 v{T+3}, 1024
    v_cndmask_b32 v{T+2}, v{T+2}, v{T+3}, vcc
    v_cndmask_b32_e64 v{T+1}, v{T+1}, 0, vcc
    f_a3n:
    v_lshlrev_b32 v{T+3}, 1, v{G4}
    v_mul_u32_u24 v{T+3}, v{T+3}, v{T+2}
    v_lshl_add_u32 v{T+3}, v{T+1}, 9, v{T+3}
    v_add_u32 v{T+5}, v{T+3}, v{T+2}
    v_add_u32 v{T+4}, 1536, v{T+3}
    v_add_u32 v{T+6}, 1536, v{T+5}""")
    for i in range(3, 7): k(f"v_and_b32 v{T+i}, 2047, v{T+i}")
    for i in range(3, 7): k(f"v_cvt_f32_u32 v{T+i}, v{T+i}")
    for i in range(3, 7): k(f"v_mul_f32 v{T+i}, {f32(1.0/2048)}, v{T+i}")
    for i in range(3, 7): k(f"v_cos_f32 v{T+i}, v{T+i}")
    k(f"""s_cbranch_scc1 f_a3m
    v_cmp_gt_u32 vcc, 2, v{N16}
    v_cndmask_b32_e64 v{T+1}, 1.0, 0.5, vcc
    v_mul_f32 v{T+3}, v{T+3}, v{T+1}
    v_mul_f32 v{T+5}, v{T+5}, v{T+1}
    v_cndmask_b32 v{T+4}, 0, v{T+3}, s[44:45]
    v_cndmask_b32 v{T+6}, 0, v{T+5}, s[44:45]
    v_cndmask_b32 v{T+3}, v{T+3}, 0, s[44:45]
    v_cndmask_b32 v{T+5}, v{T+5}, 0, s[44:45]
    f_a3m:
    v_cvt_pk_f16_f32 v{A3}, v{T+3}, v{T+4}
    v_cvt_pk_f16_f32 v{A3+1}, v{T+5}, v{T+6}""")
    k(f"""v_and_b32 v{T}, 3, v0
    v_bfe_u32 v{T+1}, v0, 2, 1
    v_bfe_u32 v{T+2}, v0, 3, 2
    v_bfe_u32 v{T+3}, v0, 5, 1
    v_lshlrev_b32 v{XD}, 10, v{T+1}
    v_lshlrev_b32 v{SLA}, 11, v{T+1}
    v_lshl_add_u32 v{SLA}, v{T+3}, 8, v{SLA}
    v_lshl_add_u32 v{SLA}, v{T+2}, 6, v{SLA}
    v_lshl_add_u32 v{SLA}, v{T}, 4, v{SLA}
    v_lshl_add_u32 v{XD}, v{T+2}, 8, v{XD}
    v_lshl_add_u32 v{XD}, v{T}, 6, v{XD}
    v_lshl_add_u32 v{XD}, v{T+3}, 5, v{XD}
    v_xor_b32 v{XDM}, 2016, v{XD}
    v_add_u32 v{XD}, s68, v{XD}
    v_add_u32 v{XDM}, s68, v{XDM}""")
    k("s_waitcnt vmcnt(4)")
    if E("XB", 0): k("s_barrier")
    for n in range(2):
        for u in range(2):
            k(f"ds_read_b128 v[{XRA+8*n+4*u}:{XRA+8*n+4*u+3}], v{(XD, XDM)[n]} offset:{n*2048+u*16}")
    def side():
        k(f"""s_lshl_b32 s80, s3, 7
        s_add_u32 s80, s80, {WS_KEY}
        s_cmp_lg_u32 s16, 0
        s_cbranch_scc1 f_sb2""")
        stats_b(k)
        k.c("the key lines are written once so that an early reader does not go to HBM")
        k(f"""v_lshrrev_b32 v{FA}, 3, v2
        v_lshlrev_b32 v{FA}, 14, v{FA}
        v_and_b32 v{T}, 0x70, v3
        v_add_u32 v{FA}, v{FA}, v{T}
        v_not_b32 v{T+1}, s32
        v_not_b32 v{T+3}, s33
        buffer_store_dwordx4 v[{T}:{T+3}], v{FA}, s[12:15], s80 offen sc1
        f_sb2:
        v_lshlrev_b32 v{FA}, 14, v2""")
    k(f"""s_lshl_b32 s72, s3, 15
    s_lshl_b32 s73, s37, 12
    s_add_u32 s72, s72, s73
    s_add_u32 s72, s72, {WS_Z}
""")
    k("s_waitcnt lgkmcnt(0)")
    for a_, base in enumerate((BRE, BIM, TC, TS)):
        for q in range(4):
            k(f"ds_read_b128 v[{base+4*q}:{base+4*q+3}], v3 offset:{L_C+a_*4096+q*1024}")
    for i in range(8): unpack_bf16(k, XA2 + 2*i, XRA + i)
    for p in range(16):
        src = XRB + (p >> 1); dst = XB2 + ((16 - p) & 15)
        k(f"v_and_b32 v{dst}, 0xffff0000, v{src}" if p & 1 else f"v_lshlrev_b32 v{dst}, 16, v{src}")
    k(f"s_waitcnt vmcnt({E('ZW', 0)})")
    stamp(k, 5)
    k("s_barrier")
    if E("ZDEL", 0): k(f"s_sleep {E('ZDEL', 0)}")
    for i in range(4):
        k(f"buffer_load_dwordx4 v[{ZL+4*i}:{ZL+4*i+3}], v3, s[12:15], s72 offen offset:{i*1024} sc1")
    side()
    k(f"""v_xor_b32 v{SLM}, {2048+256+192+48}, v{SLA}
    v_subrev_u32 v{T}, s68, v{XD}
    v_add_u32 v{T}, 32, v{T}
    v_bfe_u32 v{BP}, v{T}, 5, 1
    v_lshlrev_b32 v{BP}, 5, v{BP}
    v_bfe_u32 v{T+1}, v{T}, 8, 2
    v_lshl_add_u32 v{BP}, v{T+1}, 3, v{BP}
    v_bfe_u32 v{T+1}, v{T}, 10, 1
    v_lshl_add_u32 v{BP}, v{T+1}, 2, v{BP}
    v_bfe_u32 v{T+1}, v{T}, 6, 2
    v_add_lshl_u32 v{BP}, v{T+1}, v{BP}, 2
    s_lshl_b32 s74, s34, 14
    s_add_u32 s74, s74, {WS_KEY}
    s_lshl_b32 s42, s37, 9
    s_add_u32 s42, s42, {L_X}
    v_add_u32 v{UW}, s42, v{UW}""")
    k.c("w_down tile [64 x 512] of cluster s17 (none: empty descriptor)")
    k(f"""s_mul_i32 s17, s34, 7
    s_lshr_b32 s42, s35, 1
    s_add_u32 s17, s17, s42
    s_lshl_b32 s42, s17, 6
    s_lshr_b32 s43, s16, 2
    s_lshl_b32 s43, s43, 5
    s_add_u32 s42, s42, s43
    s_and_b32 s43, s16, 1
    s_lshl_b32 s43, s43, 4
    s_add_u32 s42, s42, s43
    s_and_b32 s43, s16, 2
    s_lshl_b32 s43, s43, 1
    s_add_u32 s42, s42, s43
    s_lshl_b32 s38, s42, 11
    s_and_b32 s43, s35, 1
    s_lshl_b32 s43, s43, 10
    s_add_u32 s38, s38, s43
    s_lshl_b32 s39, s16, 13
    s_add_u32 s39, s39, {L_U}
    s_mov_b32 s48, s28
    s_mov_b32 s49, s29
    s_mov_b32 s50, {1024*3584*2}
    s_mov_b32 s51, 0x00020000""")
    DN = [int(x) for x in os.environ.get("DN", "3,0,5").split(",")]
    assert XR != 2
    def down(site, t):
        d0 = sum(DN[:site])
        if DN[site] == 0 or E("NOW", 0) or E("NOD", 0): return
        k(f"s_cmp_ge_u32 s35, 14\ns_cbranch_scc1 f_nd{site}")
        for d in range(d0, d0 + DN[site]):
            rows = 8 * (d >> 2) + (d & 3)
            k(f"s_add_u32 s43, s39, {d*1024}\ns_mov_b32 m0, s43\ns_add_u32 s42, s38, {rows*2048}")
            if d: k(f"v_xor_b32 v{t}, {d*32}, v3")
            k(f"buffer_load_dwordx4 v{t if d else 3}, s[48:51], s42 offen nt lds")
        k(f"f_nd{site}:")
    btag(k, 20 - 16)
    k.c("wave a = w&3 handles columns 4a..4a+3 of every lane's block: natural, mirrored (two) and f16 positions")
    PN, PM0, PM1, PH, FV = 4, 5, 6, 235, 236
    k(f"""v_lshlrev_b32 v{V70}, 7, v{N16}
    s_and_b32 s40, s16, 3
    s_lshl_b32 s76, s40, 10
    v_add_u32 v{PN}, s76, v3
    v_xor_b32 v{PM1}, {63*16}, v3
    s_sub_u32 s42, 4096, s76
    s_and_b32 s42, s42, 3072
    v_add_u32 v{PM0}, s42, v{PM1}
    s_sub_u32 s42, 3072, s76
    v_add_u32 v{PM1}, s42, v{PM1}
    v_subrev_u32 v{T}, s68, v{XD}
    v_lshrrev_b32 v{T}, 1, v{T}
    s_lshl_b32 s42, s40, 2
    v_add_u32 v{T}, s42, v{T}""")
    pos16(k, PH, T, T + 1)
    mtag4(k, FT)
    k(f"""s_add_u32 s76, s76, {WS_FIN}
    s_mov_b32 s77, {WS_REC}
    s_xor_b32 s79, s35, {E("GOMM", 1)}
    s_xor_b32 s43, s16, {E("GOW", 5)}
    s_or_b32 s79, s79, s43""")
    k.c("finished modulation vectors: waves 0-3 take 1+ca and ga (and sa), waves 4-7 q and 1+cb, all the records")
    FL = GA
    k(f"""s_cmp_ge_u32 s16, 4
    s_cselect_b32 s64, 4, 1
    s_cselect_b32 s65, 3, 2
    s_lshl_b32 s64, s64, 12
    s_lshl_b32 s65, s65, 12
    s_add_u32 s64, s64, s76
    s_add_u32 s65, s65, s76
    s_lshl_b32 s42, s16, 12
    s_add_u32 s42, s42, {L_X}
    v_add_u32 v7, s42, v3
    s_cmp_eq_u32 s3, 0
    s_cselect_b64 s[52:53], -1, 1""")
    def fin1():
        for i in range(2): k(f"buffer_load_dwordx4 v[{FL+4*i}:{FL+4*i+3}], v3, s[12:15], s{64+i} offen sc1")
        k(f"""s_mov_b64 exec, 0xffff
        buffer_load_dwordx4 v[{FV}:{FV+3}], v{V70}, s[12:15], s77 offen sc1
        s_mov_b64 exec, s[52:53]
        buffer_load_dwordx4 v[{FL+8}:{FL+11}], v3, s[12:15], s76 offen sc1
        s_mov_b64 exec, -1""")
    for i in range(4): k(f"v_mov_b32 v{FL+8+i}, v{FT+i}")
    def tab(v, off):
        k(f"""ds_write_b128 v{PN}, v[{v}:{v+3}] offset:{L_P+off}
        ds_write_b32 v{PM0}, v{v} offset:{L_P+off+4096}
        ds_write_b32 v{PM1}, v{v+1} offset:{L_P+off+4096+12}
        ds_write_b32 v{PM1}, v{v+2} offset:{L_P+off+4096+8}
        ds_write_b32 v{PM1}, v{v+3} offset:{L_P+off+4096+4}""")
    def tab16(v, off):
        k(f"""v_cvt_pk_f16_f32 v{v}, v{v}, v{v+1}
        v_cvt_pk_f16_f32 v{v+2}, v{v+2}, v{v+3}
        ds_write_b16 v{PH}, v{v} offset:{L_P+off}
        ds_write_b16_d16_hi v{PH}, v{v} offset:{L_P+off+16}
        ds_write_b16 v{PH}, v{v+2} offset:{L_P+off+32}
        ds_write_b16_d16_hi v{PH}, v{v+2} offset:{L_P+off+48}""")
    def pread(off, base):
        return [f"ds_read_b128 v[{base+4*q}:{base+4*q+3}], v3 offset:{L_P+off+q*1024}" for q in range(4)]
    ZC = W; ZT = T
    def zx(cbi):
        for nt in range(4):
            for p in range(2):
                k(f"v_xor_b32 v{ZC+8*cbi+2*nt+p}, v{ZL+8*cbi+4*p+nt}, v{TG+nt}")
    def r8(cbi):
        for nt in (0, 2, 1, 3):
            b = ZC + 8*cbi + 2*nt; d = D1R + (cbi*4 + nt)*4
            k(f"v_mfma_f32_16x16x16_f16 v[{d}:{d+3}], v[{A3}:{A3+1}], v[{b}:{b+1}], 0")
            k(f"v_or3_b32 v{ZT}, v{b}, v{b+1}, {'0' if cbi + nt == 0 else f'v{ZT}'}")
    k(f"s_waitcnt vmcnt({E('F1W', 3)})")
    fin1()
    k(f"s_mov_b32 s83, 0\ns_waitcnt vmcnt(6)\nf_zc:")
    k.c("---- radix-8 over r ----")
    zx(0); r8(0)
    k(f"s_waitcnt vmcnt(4)")
    stamp(k, 6)
    zx(1); r8(1)
    k(f"""v_and_b32 v{ZT}, s54, v{ZT}
    v_cmp_ne_u32 vcc, 0, v{ZT}
    s_cbranch_vccnz f_zr
    f_zx:""")
    stamp(k, 7)
    for bh in range(2):
        for ii in range(2):
            o = ZL + (bh*2 + ii)*4
            for cbi in range(2):
                for al in range(2):
                    d = D1R + (cbi*4 + 2*al + bh)*4
                    k(f"v_cvt_pk_f16_f32 v{o+2*cbi+al}, v{d+2*ii}, v{d+2*ii+1}")
            k(f"ds_write_b128 v{UW}, v[{o}:{o+3}] offset:{ii*4096 + bh*256}")
    k(f"""s_mov_b32 s83, 0
    s_waitcnt vmcnt(0)
    f_pv:""")
    stamp(k, 30)
    untag(k, range(FL, FL + 12), FT, T)
    k(f"""v_cmp_ne_u64 s[44:45], s[32:33], v[{FV}:{FV+1}]
    v_and_b32 v{T}, 0xff, v{T}
    v_cmp_ne_u32 vcc, 0, v{T}
    v_add_f32_dpp v{FV+3}, v{FV+2}, v{FV+2} quad_perm:[1,0,3,2] {DPPM}
    s_and_b32 s44, s44, 0xffff
    s_or_b32 vcc_lo, vcc_lo, s44
    s_cbranch_vccnz f_pr
    f_pw:
    v_add_f32_dpp v{FV+3}, v{FV+3}, v{FV+3} quad_perm:[2,3,0,1] {DPPM}
    s_cmp_ge_u32 s16, 4
    s_cbranch_scc1 f_ph""")
    for qp in ("[1,0,3,2]", "[2,3,0,1]"):
        k(f"v_max_f32_dpp v{FV+2}, v{FV+2}, v{FV+2} quad_perm:{qp} {DPPM}")
    k(f"""v_max_f32_dpp v{FV+2}, v{FV+2}, v{FV+2} row_half_mirror {DPPM}
    v_frexp_exp_i32_f32 v{FV+2}, v{FV+2}
    v_readfirstlane_b32 s42, v{FV+2}
    s_sub_u32 s43, -1, s42
    s_add_u32 s44, s42, 5
    s_sub_u32 s45, 5, s42""")
    for n in range(4): k(f"v_ldexp_f32 v{FL+n}, v{FL+n}, s43")
    tab16(FL, P_CS)
    for n in range(4): k(f"v_ldexp_f32 v{FL+4+n}, v{FL+4+n}, s44")
    tab(FL + 4, P_GA)
    k("s_cmp_lg_u32 s3, 0\ns_cbranch_scc1 f_pvx")
    for n in range(4): k(f"v_ldexp_f32 v{FL+8+n}, v{FL+8+n}, s45")
    k(f"""v_and_b32 v{T}, 0x3f0, v{PH}
    v_bfe_u32 v{T+1}, v{PH}, 10, 1
    v_lshl_add_u32 v{T}, v{T+1}, 11, v{T}
    v_bfe_u32 v{T+1}, v{PH}, 3, 1
    v_lshl_add_u32 v{T}, v{T+1}, 10, v{T}
    v_and_b32 v{T+1}, 6, v{PH}
    v_lshl_add_u32 v{T}, v{T+1}, 1, v{T}""")
    for n in range(4):
        k(f"v_cvt_f16_f32 v{FL+8+n}, v{FL+8+n}\nds_write_b32 v{T}, v{FL+8+n} offset:{L_C + 16*n}")
    k("s_branch f_pvx\nf_ph:")
    tab(FL, P_Q); tab(FL + 4, P_C1)
    k(f"f_pvx:\nv_readlane_b32 s66, v{FV+3}, 12")
    if E("PRIO", 0):
        k("s_setprio 1\ns_cmp_ge_u32 s16, 4\ns_cbranch_scc1 f_pp\ns_setprio 2\nf_pp:")
    k("s_waitcnt lgkmcnt(0)")
    stamp(k, 8)
    k("s_barrier")
    k.c("================= 1024-point DFT, LN2, router score =================")
    for j in range(2):
        k(f"ds_read_b128 v[{CS+4*j}:{CS+4*j+3}], v3 offset:{L_P+P_CS+j*1024}")
        k(f"ds_read_b128 v[{ZL+8*j}:{ZL+8*j+3}], v7 offset:{2*j*1024}")
        k(f"ds_read_b128 v[{ZL+8*j+4}:{ZL+8*j+7}], v7 offset:{(2*j+1)*1024}")
    def modul(j):
        for i in range(4*j, 4*j + 4):
            b = i & 1
            k(f"v_pk_mul_f16 v{W+i}, v{ZL+i}, v{CS+(i>>1)} op_sel:[0,{b}] op_sel_hi:[1,{b}]")
    def st1(j, part):
        Dd, B = (D1R, BRE) if part == 0 else (D1I, BIM)
        cc = "0" if j == 0 else f"v[{Dd}:{Dd+15}]"
        k(f"v_mfma_f32_32x32x16_f16 v[{Dd}:{Dd+15}], v[{W+4*j}:{W+4*j+3}], v[{B+4*j}:{B+4*j+3}], {cc}")
    k("s_cmp_eq_u32 s30, 0\ns_cbranch_scc1 f_sp")
    k("s_waitcnt lgkmcnt(4)"); modul(0); st1(0, 0)
    k("s_waitcnt lgkmcnt(3)"); modul(1); st1(0, 1)
    k("s_waitcnt lgkmcnt(1)"); modul(2); st1(1, 0)
    k("s_waitcnt lgkmcnt(0)"); modul(3); st1(1, 1)
    k("f_st1:")
    pr1 = pread(P_GA, GA) + pread(P_GAM, GAM) + pread(P_Q, Q) + pread(P_QM, QM)
    for j in range(2, 4):
        for part in range(2):
            st1(j, part)
            for _ in range(2): k(pr1.pop(0))
    if E("PW", 0):
        k.c("the lines of this wave's partial results are written once so that an early reader does not go to HBM")
        k(f"""v_not_b32 v20, v{FT}
        v_bfe_u32 v7, v0, 4, 2
        v_lshlrev_b32 v7, 13, v7
        v_and_b32 v21, 0x70, v3
        v_add_u32 v7, v7, v21
        s_and_b32 s42, s35, 1
        s_lshl_b32 s42, s42, 3
        s_add_u32 s42, s42, s16
        s_lshl_b32 s42, s42, 15
        s_lshl_b32 s43, s17, 7
        s_add_u32 s42, s42, s43
        s_add_u32 s42, s42, {WS_PART}
        s_cmp_lt_u32 s35, 14
        s_cselect_b32 s42, s42, {WS_PART + 63*128}
        s_mov_b32 exec_lo, 0x00ff00ff
        s_mov_b32 exec_hi, 0x00ff00ff
        buffer_store_dwordx4 v[20:23], v7, s[12:15], s42 offen sc1
        s_mov_b64 exec, -1""")
    down(0, 7)
    stamp(k, 9)
    Y = BIM
    def twid(j):
        vr = ZL + 8 * (j & 1); vi = vr + 4
        for h in range(2):
            pmul(k, vr + 2*h, D1R + 4*j + 2*h, TC + 4*j + 2*h)
            pmul(k, vi + 2*h, D1I + 4*j + 2*h, TC + 4*j + 2*h)
        for h in range(2):
            pfma(k, vr + 2*h, D1I + 4*j + 2*h, TS + 4*j + 2*h, vr + 2*h)
            pfma(k, vi + 2*h, D1R + 4*j + 2*h, TS + 4*j + 2*h, vi + 2*h, nega=True)
        for i in range(4):
            k(f"v_cvt_pk_f16_f32 v{W+4*j+i}, v{vr+i}, v{vi+i}")
    def st2(j, Yd=Y, B=BRE):
        cr = "0" if j == 0 else f"v[{Yd}:{Yd+15}]"
        k(f"v_mfma_f32_32x32x16_f16 v[{Yd}:{Yd+15}], v[{W+4*j}:{W+4*j+3}], v[{B+4*j}:{B+4*j+3}], {cr}")
    k("s_cmp_eq_u32 s30, 0\ns_cbranch_scc1 f_sp2")
    for j in range(4):
        twid(j)
        if j > 0: st2(j - 1)
        if j < 2:
            for x in pr1[4*j:4*j+4]: k(x)
    st2(3)
    k.c("GO hint from one workgroup per replica")
    YS = 12
    def x1rows(YA, YB):
        k(f"ds_bpermute_b32 v{YS}, v{BP}, v{YB}")
        k("s_waitcnt lgkmcnt(1)")
        for i in range(8): pfma(k, XA2 + 2*i, GA + 2*i, YA + 2*i, XA2 + 2*i)
        for i in range(1, 8): pfma(k, XB2 + 2*i, GAM + 2*i, YB + 2*i, XB2 + 2*i)
        k(f"v_fmac_f32 v{XB2+1}, v{GAM+1}, v{YB+1}")
        k("s_waitcnt lgkmcnt(0)")
        k(f"v_fmac_f32 v{XB2}, v{GAM}, v{YS}")
    x1rows(Y, Y)
    k("f_join:")
    stamp(k, 10)
    C1, C1M, SBv, SBM, GBv, GBM = BRE, TC, TS, BIM, GA, GAM
    down(1, 7)
    RQ = ZL; TT_ = W
    KW, KR = 17, 7
    k(f"""v_lshrrev_b32 v{KW}, 3, v0
    v_and_b32 v{KW}, 60, v{KW}
    v_add_u32 v{KW}, {L_KEY}, v{KW}
    v_and_b32 v{KR}, 0xf0, v3
    v_lshrrev_b32 v{KR}, 2, v{KR}
    v_add_u32 v{KR}, {L_KEY}, v{KR}""")
    rows = ((XA2, Q, D1R, TT_, 56, C1, SBv, GBv), (XB2, QM, D1I, TT_ + 8, 58, C1M, SBM, GBM))
    def sums23(src):
        for i in range(7, -1, -1):
            for n, r_ in enumerate(rows):
                x = src[n] + 2*i; t = r_[3]
                if i == 7:
                    pmul(k, t + 2, x, x); pmul(k, t + 4, x, r_[1] + 2*i)
                else:
                    pfma(k, t + 2, x, x, t + 2); pfma(k, t + 4, x, r_[1] + 2*i, t + 4)
    for i in range(6, -1, -1):
        for r_ in rows: padd(k, r_[3], r_[0] + 14 if i == 6 else r_[3], r_[0] + 2*i)
    sums23((XA2, XB2))
    for n, r_ in enumerate(rows):
        for j in range(3): k(f"v_add_f32 v{RQ+4*n+j}, v{r_[3]+2*j}, v{r_[3]+2*j+1}")
    def red(js):
        for j in js: k(f"v_permlane32_swap_b32 v{RQ+j}, v{RQ+4+j}")
        for j in js: k(f"v_add_f32 v{RQ+j}, v{RQ+j}, v{RQ+4+j}")
        regs = [RQ + j for j in js]
        row_allreduce(k, regs)
        for r in regs: k(f"v_add_f32_dpp v{r}, v{r}, v{r} row_bcast:15 row_mask:0xa bank_mask:0xf")
    k("s_cmp_eq_u32 s79, 0\ns_cbranch_scc1 f_go\nf_ngo:")
    red((0, 1, 2))
    k.c("lanes 31 / 63 hold rows A / B")
    k(f"""v_mul_f32 v{RQ}, {f32(1.0/1024)}, v{RQ}
    v_mul_f32 v{RQ+1}, {f32(1.0/1024)}, v{RQ+1}
    v_mul_f32 v{RQ+4}, v{RQ}, v{RQ}
    v_fma_f32 v{RQ+2}, -v{RQ}, s66, v{RQ+2}
    v_sub_f32 v{RQ+1}, v{RQ+1}, v{RQ+4}
    v_mul_f32 v{RQ+5}, 4.0, v{RQ+1}
    v_cmp_gt_f32 vcc, v{RQ+4}, v{RQ+5}
    v_lshrrev_b32 v{RQ+6}, 4, v0
    s_lshl_b32 s43, s3, 5
    v_and_or_b32 v{RQ+6}, v{RQ+6}, 30, s43
    s_or_b32 s42, vcc_lo, vcc_hi
    s_bitcmp1_b32 s42, 31
    s_cbranch_scc1 f_slow2
    f_var2:""")
    round_bf16(k, RQ + 1, RQ + 1)
    k(f"v_add_f32 v{RQ+1}, {f32(1e-5)}, v{RQ+1}")
    round_bf16(k, RQ + 1, RQ + 1)
    k(f"v_sqrt_f32 v{RQ+1}, v{RQ+1}")
    round_bf16(k, RQ + 1, RQ + 1)
    k(f"""v_rcp_f32 v{RQ+1}, v{RQ+1}
    s_mov_b32 s42, 0x80000000
    s_movk_i32 s43, 0xf000
    s_mov_b32 exec_lo, s42
    s_mov_b32 exec_hi, s42
    v_mul_f32 v{RQ+2}, v{RQ+2}, v{RQ+1}
    v_ashrrev_i32 v{RQ+4}, 31, v{RQ+2}
    v_or_b32 v{RQ+4}, s42, v{RQ+4}
    v_xor_b32 v{RQ+2}, v{RQ+2}, v{RQ+4}
    v_and_or_b32 v{RQ+2}, v{RQ+2}, s43, v{RQ+6}
    ds_write_b32 v{KW}, v{RQ+2}
    v_mul_f32 v{RQ}, -v{RQ}, v{RQ+1}
    s_mov_b64 exec, -1""")
    for n in range(2):
        k(f"v_readlane_b32 s{60+n}, v{RQ+2}, {31+32*n}")
        k(f"v_readlane_b32 s{56+2*n}, v{RQ}, {31+32*n}")
        k(f"v_readlane_b32 s{57+2*n}, v{RQ+1}, {31+32*n}")
    k("s_waitcnt lgkmcnt(0)")
    stamp(k, 11)
    KV = RQ + 8
    k(f"""s_barrier
    ds_read_b32 v{KV}, v{KR}""")
    stamp(k, 12)
    HP = W; OA, OBB = Q, Q + 8
    def pk(dst, src, n):
        for i in range(8):
            a, b = (2*i, 2*i + 1) if n == 0 else ((16 - 2*i) & 15, 15 - 2*i)
            k(f"v_cvt_pk_bf16_f32 v{dst+i}, v{src+a}, v{src+b}")
    def norm(n):
        X2, _, Tt, _, sr = rows[n][:5]
        for i in range(8):
            k(f"v_pk_fma_f32 {P(Tt+2*i)}, {P(X2+2*i)}, s[{sr}:{sr+1}], s[{sr}:{sr+1}] op_sel:[0,1,0] op_sel_hi:[1,1,0]")
    k.c("sb (waves 0-3) and gb (waves 4-7) for the output rows")
    fin2 = f"buffer_load_dwordx4 v[{CS}:{CS+3}], v3, s[12:15], s64 offen sc1"
    k(f"""s_lshr_b32 s42, s16, 2
    s_lshl_b32 s43, s42, 13
    s_lshl_b32 s42, s42, 12
    s_add_u32 s64, s76, s42
    s_add_u32 s64, s64, {5*4096}
    v_add_u32 v{PN}, s43, v{PN}
    v_add_u32 v{PM0}, s43, v{PM0}
    v_add_u32 v{PM1}, s43, v{PM1}
    {fin2}
    s_waitcnt lgkmcnt(0)""")
    k(f"""v_cmp_lt_u32 vcc, s60, v{KV}
    v_cmp_lt_u32 s[44:45], s61, v{KV}
    s_and_b32 s62, vcc_lo, 0xffff
    s_and_b32 s63, s44, 0xffff
    s_bcnt1_i32_b32 s62, s62
    s_bcnt1_i32_b32 s63, s63""")
    def keyst(n):
        k(f"""s_or_b32 s42, s{60+n}, s{62+n}
        s_cmp_eq_u32 s{62+n}, 0
        s_cselect_b32 s43, s32, s33
        v_mov_b32 v{KV+2}, s42
        v_mov_b32 v{KV+3}, s43
        s_lshl_b32 s42, s{62+n}, 3
        s_add_u32 s42, s42, s80
        s_mov_b64 exec, 0xff
        buffer_store_dwordx2 v[{KV+2}:{KV+3}], v{FA}, s[12:15], s42 offen sc1
        s_mov_b64 exec, -1""")
    k("s_add_u32 s42, s62, s63\ns_cmp_eq_u32 s42, 1\ns_cbranch_scc1 f_both")
    if True:
        for n in range(2):
            Tt = rows[n][2]; XO = (OA, OBB)[n]; SA_ = (SLA, SLM)[n]
            k(f"""s_cmp_ge_u32 s{62+n}, 2
            s_cbranch_scc1 f_nc{n}
            f_cand{n}:
            s_setprio 2""")
            stamp(k, 20)
            keyst(n)
            if E("STAMPS", 0) == 4:
                stamp(k, 21); k("s_waitcnt vmcnt(0)"); stamp(k, 22)
            k(f"""s_lshl_b32 s43, s3, 1
            s_add_u32 s42, s{62+n}, s43
            s_lshl_b32 s43, s42, 7
            s_lshl_b32 s42, s42, 12
            s_add_u32 s42, s42, {WS_SLOT}
            s_add_u32 s43, s43, {WS_SH}
            v_mov_b32 v{YS}, 0xffffff00""")
            for a in range(4):
                for i in range(4):
                    p = 4*a + i
                    k(f"v_and_or_b32 v{Tt+p}, v{rows[n][0] + (p if n == 0 else (16 - p) & 15)}, v{YS}, s{4 + 4*(a & 1) + i}")
                k(f"buffer_store_dwordx4 v[{Tt+4*a}:{Tt+4*a+3}], v{SA_}, s[12:15], s42 offen offset:{(a&1)*1024 + (a>>1)*512} sc1")
            k(f"""v_mov_b32 v{HP+4*n}, s32
            v_mov_b32 v{HP+4*n+1}, s33
            v_mov_b32 v{HP+4*n+2}, s{56+2*n}
            v_mov_b32 v{HP+4*n+3}, s{57+2*n}
            s_mov_b64 exec, 0xff
            buffer_store_dwordx4 v[{HP+4*n}:{HP+4*n+3}], v3, s[12:15], s43 offen sc1
            s_mov_b64 exec, -1""")
            k(f"s_setprio 0\nf_nc{n}:")
    stamp(k, 13)
    for x in pread(P_C1, C1) + pread(P_C1M, C1M): k(x)
    norm(0); norm(1)
    k(f"""v_subrev_u32 v{XD}, s68, v{XD}
    s_sub_u32 s68, s68, {L_R - L_X}
    v_bfe_u32 v{YS}, v0, 1, 2
    v_lshlrev_b32 v{YS}, 4, v{YS}
    v_xor_b32 v{XD}, v{XD}, v{YS}
    v_xor_b32 v{XDM}, {2016 ^ 48}, v{XD}
    v_add_u32 v{XD}, s68, v{XD}
    v_add_u32 v{XDM}, s68, v{XDM}
    v_xor_b32 v20, 16, v{XD}
    v_xor_b32 v21, 16, v{XDM}
    v_and_b32 v22, 8, v0
    v_lshlrev_b32 v22, 1, v22
    v_xor_b32 v22, v22, v3
    v_add_u32 v22, s68, v22
    v_xor_b32 v23, 32, v22
    s_mov_b32 s83, 0
    s_min_u32 s42, s62, s63
    s_cmp_lt_u32 s42, 2
    s_cbranch_scc1 f_p2k
    s_waitcnt vmcnt(0)
    f_p2e:""")
    untag(k, range(CS, CS + 4), FT, YS)
    tagchk(k, YS)
    k("s_cbranch_vccnz f_p2r\nf_p2w:")
    stamp(k, 42)
    tab(CS, P_SB)
    k("s_waitcnt lgkmcnt(0)\ns_barrier")
    stamp(k, 43)
    down(2, 7)
    for n in range(2):
        for x in pread((P_SB, P_SBM)[n], rows[n][6]) + pread((P_GB, P_GBM)[n], rows[n][7]): k(x)
    for n in range(2):
        X2, _, Tt, _, sr, c1, sb, gb = rows[n]
        k(f"s_waitcnt lgkmcnt({12 - 6*n})")
        for i in range(8): pfma(k, Tt + 2*i, Tt + 2*i, c1 + 2*i, sb + 2*i)
        k(f"s_waitcnt lgkmcnt({8 - 6*n})")
        for i in range(8): pfma(k, X2 + 2*i, gb + 2*i, Tt + 2*i, X2 + 2*i)
        pk((OA, OBB)[n], X2, n)
        for u in range(2):
            XO = (OA, OBB)[n]
            k(f"ds_write_b128 v{((XD, 20), (XDM, 21))[n][u]}, v[{XO+4*u}:{XO+4*u+3}] offset:{n*2048}")
    stamp(k, 44)
    k.c("rows back to memory order through LDS; written once the selection is known (the reducers write the two selected rows)")
    k("s_waitcnt lgkmcnt(0)")
    for i in range(4):
        k(f"ds_read_b128 v[{QM+4*i}:{QM+4*i+3}], v{22 + (i & 1)} offset:{i*1024}")
    OUTP = E("OUTP", 1)
    def outst(lab, cond, rows_=(0, 1)):
        for n in rows_:
            k(cond(n, f"{lab}{n}"))
            for j in range(2):
                k(f"buffer_store_dwordx4 v[{QM+8*n+4*j}:{QM+8*n+4*j+3}], v3, s[24:27], s{18+n} offen offset:{j*1024} {os.environ.get('OFL', 'sc1')}")
            k(f"{lab}{n}:")
    notsel = lambda n, l: f"s_cmp_eq_u32 s{60+n}, s40\ns_cbranch_scc1 {l}\ns_cmp_eq_u32 s{60+n}, s41\ns_cbranch_scc1 {l}"
    if OUTP == 0:
        k("s_waitcnt lgkmcnt(0)")
        outst("f_o", lambda n, l: f"s_cmp_lt_u32 s{62+n}, 2\ns_cbranch_scc1 {l}")
    if OUTP == 5:
        k("s_waitcnt lgkmcnt(0)")
        outst("f_o", lambda n, l: f"s_cmp_lt_u32 s{62+n}, 2\ns_cbranch_scc1 {l}", (0,))
    BD, HA, AG, R, AD = 88, 120, 128, 144, 148
    L_A = L_KEY + 128
    k.c("down projection: tr addr, act write / read, PART store")
    k(f"""v_lshrrev_b32 v{R}, 2, v2
    v_and_b32 v{R+1}, 7, v{R}
    v_and_b32 v{R+2}, 3, v0
    v_lshl_add_u32 v{AD}, v1, 2, v{R+2}
    v_xor_b32 v{AD}, v{AD}, v{R+1}
    v_lshlrev_b32 v{AD}, 5, v{AD}
    v_lshl_add_u32 v{AD}, v{R}, 10, v{AD}
    v_add_u32 v{AD}, {L_U}, v{AD}
    v_cmp_eq_u32 s[44:45], 1, v{R+2}
    v_cmp_eq_u32 s[46:47], 2, v{R+2}
    v_cmp_eq_u32 s[72:73], 3, v{R+2}
    v_bfe_u32 v{R+1}, v0, 4, 2
    v_and_b32 v{R}, 1, v{R}
    v_lshlrev_b32 v{AD+5}, 7, v{R}
    v_lshl_add_u32 v{AD+5}, v{R+1}, 4, v{AD+5}
    v_add_u32 v{AD+5}, {L_A}, v{AD+5}
    v_lshlrev_b32 v{AD+6}, 4, v{R+2}
    v_lshl_add_u32 v{AD+6}, v{R}, 6, v{AD+6}
    v_lshl_add_u32 v{AD+6}, v1, 15, v{AD+6}
    v_lshl_add_u32 v{AD+6}, v{R+1}, 13, v{AD+6}
    v_and_b32 v{R}, 15, v0
    v_lshlrev_b32 v{AD+4}, 1, v{R}
    v_lshl_add_u32 v{AD+4}, v1, 5, v{AD+4}
    v_lshl_add_u32 v{AD+4}, v{R+1}, 7, v{AD+4}
    v_add_u32 v{AD+4}, {L_A}, v{AD+4}
    s_and_b32 s76, s35, 1
    s_lshl_b32 s76, s76, 18
    s_lshl_b32 s77, s17, 7
    s_add_u32 s76, s76, s77
    s_add_u32 s76, s76, {WS_PART}
    s_movk_i32 s77, 0xff00
    s_lshl_b32 s81, s17, 2
    s_and_b32 s42, s16, 3
    s_add_u32 s81, s81, s42
    s_lshl_b32 s81, s81, 10
    s_add_u32 s82, s81, {WS_XB}
    s_add_u32 s81, s81, {WS_XA}
    v_mov_b32 v5, {L_KEY+104}""")
    stamp(k, 45)
    if OUTP == 0:
        k.c("the weight tile is older than the row stores")
        k("""s_max_u32 s42, s62, s63
        s_min_u32 s43, s62, s63
        s_cmp_lt_u32 s43, 2
        s_cbranch_scc1 f_w0
        s_waitcnt vmcnt(4)
        f_w1:""")
    elif OUTP == 5:
        k("s_cmp_lt_u32 s62, 2\ns_cbranch_scc1 f_w0\ns_waitcnt vmcnt(2)\nf_w1:\ns_mov_b32 s63, 0")
    else: k("s_waitcnt vmcnt(0)")
    k("s_barrier")
    stamp(k, 14)
    for ks in range(2):
        for t in range(4):
            b_ = BD + (ks*4 + t)*4
            k(f"ds_read_b64_tr_b16 v[{b_}:{b_+1}], v{AD} offset:{ks*32768+t*8}")
            k(f"ds_read_b64_tr_b16 v[{b_+2}:{b_+3}], v{AD} offset:{ks*32768+16384+t*8}")
    if OUTP == 3:
        if E("OS3", 0): k(f"s_sleep {E('OS3', 0)}")
        k("s_waitcnt lgkmcnt(0)")
        outst("f_o", lambda n, l: f"s_cmp_lt_u32 s{62+n}, 2\ns_cbranch_scc1 {l}")
    if OUTP == 4:
        k("s_waitcnt lgkmcnt(0)\ns_cmp_lt_u32 s16, 4\ns_cbranch_scc1 f_o1")
        outst("f_o", lambda n, l: f"s_cmp_lt_u32 s{62+n}, 2\ns_cbranch_scc1 {l}")
    k("""s_cmp_lg_u32 s16, 7
    s_cbranch_scc1 f_n7
    v_lshlrev_b32 v40, 7, v2
    s_add_u32 s42, s74, 8192
    buffer_load_dwordx4 v[32:35], v40, s[12:15], s74 offen sc1
    buffer_load_dwordx4 v[36:39], v40, s[12:15], s42 offen sc1
    f_n7:
    s_cmp_ge_u32 s35, 14
    s_cbranch_scc1 f_na
    s_cmp_ge_u32 s16, 4
    s_cbranch_scc1 f_na""")
    k(f"""s_mov_b32 s83, 0
    f_px:
    s_and_b32 s42, s83, 63
    s_cmp_eq_u32 s42, 63
    s_cselect_b32 s42, s82, s81
    buffer_load_dwordx4 v[{R}:{R+3}], v3, s[12:15], s42 offen sc1
    s_add_u32 s83, s83, 1
    s_cmp_ge_u32 s83, {SPIN}
    s_cbranch_scc1 f_pxx
    s_waitcnt vmcnt(0)
    v_cmp_ne_u16_sdwa vcc, v{R+3}, v{FT+3} src0_sel:BYTE_0 src1_sel:DWORD
    s_cbranch_vccnz f_px""")
    untag(k, range(R, R + 4), FT, 4)
    tagchk(k, 4)
    k("s_cbranch_vccnz f_px\nf_pxx:\ns_waitcnt vmcnt(0)")
    stamp(k, 16)
    k(f"v_permlane32_swap_b32 v{R}, v{R+2}")
    k(f"v_permlane32_swap_b32 v{R+1}, v{R+3}")
    padd(k, R, R, R + 2)
    k(f"v_permlane16_swap_b32 v{R}, v{R+1}")
    k(f"v_add_f32 v{R}, v{R}, v{R+1}")
    round_bf16(k, R, R)
    k(f"""v_mul_f32 v{R+1}, {LOG2E}, v{R}
    v_exp_f32 v{R+1}, v{R+1}
    v_mov_b32 v{R+2}, v{R}
    v_add_f32 v{R+1}, 1.0, v{R+1}
    v_rcp_f32 v{R+1}, v{R+1}
    v_mov_b32 v{R+3}, v{R}
    v_mul_f32 v{R+1}, v{R}, v{R+1}
    v_permlane32_swap_b32 v{R+2}, v{R+3}""")
    round_bf16(k, R + 1, R + 1)
    k(f"""v_mul_f32 v{R+1}, v{R+1}, v{R+3}
    v_cvt_pk_bf16_f32 v{R+1}, v{R+1}, v{R+1}
    ds_write_b16 v{AD+4}, v{R+1}
    f_na:
    s_waitcnt lgkmcnt(0)
    s_barrier
    s_cmp_ge_u32 s35, 14
    s_cbranch_scc1 f_fin""")
    for ks in range(2):
        k(f"ds_read_b128 v[{HA+4*ks}:{HA+4*ks+3}], v{AD+5} offset:{ks*64}")
    for ks in range(2):
        k(f"s_waitcnt lgkmcnt({1-ks})")
        for t in range(4):
            a_ = AG + 4 * t
            cc = "0" if ks == 0 else f"v[{a_}:{a_+3}]"
            b_ = BD + (ks*4 + t)*4
            k(f"v_mfma_f32_16x16x32_bf16 v[{a_}:{a_+3}], v[{b_}:{b_+3}], v[{HA+4*ks}:{HA+4*ks+3}], {cc}")
    for t, m_ in ((1, "s[44:45]"), (2, "s[46:47]"), (3, "s[72:73]")):
        for i in range(4):
            k(f"v_cndmask_b32 v{AG+i}, v{AG+i}, v{AG+4*t+i}, {m_}")
    for i in range(4): k(f"v_and_or_b32 v{AG+i}, v{AG+i}, s77, v{FT+i}")
    k(f"""s_mov_b32 exec_lo, 0x00ff00ff
    s_mov_b32 exec_hi, 0x00ff00ff
    buffer_store_dwordx4 v[{AG}:{AG+3}], v{AD+6}, s[12:15], s76 offen sc1
    s_mov_b64 exec, -1""")
    stamp(k, 17)
    k(f"""s_waitcnt vmcnt(1)
    f_fin:
    s_cmp_eq_u32 s16, 7
    s_cbranch_scc1 f_sel
    f_selx:
    s_barrier
    ds_read_b64 v[28:29], v5
    s_waitcnt lgkmcnt(0)
    v_readfirstlane_b32 s40, v28
    v_readfirstlane_b32 s41, v29""")
    if E("OSL", 0): k(f"s_sleep {E('OSL', 0)}")
    cand = lambda n, l: f"s_cmp_ge_u32 s{62+n}, 2\ns_cbranch_scc1 {l}\n" + notsel(n, l)
    if OUTP == 4: k("s_cmp_lt_u32 s16, 4\ns_cselect_b32 s62, 0, s62\ns_cselect_b32 s63, 0, s63")
    outst("f_e", notsel if OUTP == 1 else cand)
    stamp_out(k, 0)
    k("s_endpgm")
    k("f_sel:\ns_mov_b32 s83, 0\ns_cmp_lt_u32 s35, 14\ns_cbranch_scc1 f_kqc")
    poll_keys(k, "f_kq", 32, 74, 40, sl=4)
    top2(k, 32, 40)
    k(f"""s_andn2_b32 s40, s40, 1
    s_andn2_b32 s41, s41, 1
    v_mov_b32 v28, s40
    v_mov_b32 v29, s41
    ds_write_b64 v5, v[28:29]
    s_waitcnt lgkmcnt(0)
    s_branch f_selx""")
    if OUTP in (0, 5): k("f_w0:\ns_waitcnt vmcnt(0)\ns_branch f_w1")
    k(f"""f_p2r:
    s_add_u32 s83, s83, 1
    s_cmp_ge_u32 s83, {SPIN}
    s_cbranch_scc1 f_p2w
    s_sleep 12
    {fin2}
    s_waitcnt vmcnt(0)
    s_branch f_p2e
    f_p2k:
    s_waitcnt vmcnt(6)
    s_branch f_p2e""")
    k.c("---- spectrum pieces that were not there yet: read them again ----")
    k("f_zr:")
    for i in range(4):
        z = ZC + 8*(i >> 1) + (i & 1)
        k(f"""v_or3_b32 v{ZT}, v{z}, v{z+2}, v{z+4}
        v_or_b32 v{ZT}, v{ZT}, v{z+6}
        v_and_b32 v{ZT}, s54, v{ZT}
        v_cmp_ne_u32 vcc, 0, v{ZT}""")
        k(f"""s_cbranch_vccz f_zr{i}
        buffer_load_dwordx4 v[{ZL+4*i}:{ZL+4*i+3}], v3, s[12:15], s72 offen offset:{i*1024} sc1
        f_zr{i}:""")
    k("s_waitcnt vmcnt(0)")
    spin(k, "f_zc", 0)
    k("s_branch f_zx")
    k.c("---- out-of-line pieces ----")
    k("f_both:")
    keyst(1)
    k("s_nop 1\ns_branch f_cand0")
    k("f_r0:")
    for u in range(2): k(f"buffer_load_dwordx4 v3, s[8:11], s18 offen offset:{u*1024} lds")
    k("s_branch f_nr")
    st_retry()
    k(f"f_pr:\ns_sleep {E('SLX', 6)}")
    for i in range(4): k(f"v_mov_b32 v{FL+8+i}, v{FT+i}")
    fin1()
    k("s_waitcnt vmcnt(0)")
    spin(k, "f_pv", 0)
    k("s_branch f_pw")
    k(f"""f_go:
    s_lshl_b32 s41, s34, 7
    s_add_u32 s41, s41, {WS_GO}
    v_mov_b32 v{D1R}, s32
    v_mov_b32 v{D1R+1}, s33
    s_mov_b64 exec, 0xff
    buffer_store_dwordx4 v[{D1R}:{D1R+3}], v3, s[12:15], s41 offen sc1
    s_mov_b64 exec, -1
    s_branch f_ngo""")
    k.c("---- rare: two-pass variance / router score for LN2 ----")
    k("f_slow2:")
    k.c("here the bf16 rounding of x and of the mean matters: follow the reference's rounding steps")
    for r_ in rows:
        X2, t = r_[0], r_[3]
        for i in range(8): rb2(k, X2 + 2*i, t)
        for i in range(1, 8): padd(k, t, X2 if i == 1 else t, X2 + 2*i)
    for n, r_ in enumerate(rows):
        k(f"v_add_f32 v{RQ+4*n}, v{r_[3]}, v{r_[3]+1}")
    red((0,))
    k(f"v_mul_f32 v{RQ+3}, {f32(1.0/1024)}, v{RQ}")
    round_bf16(k, RQ, RQ + 3)
    k(f"v_sub_f32 v{RQ+3}, v{RQ+3}, v{RQ}")
    for n in range(2): k(f"v_readlane_b32 s{56+2*n}, v{RQ}, {31+32*n}")
    for r_ in rows:
        for i in range(8): psub_s(k, r_[2] + 2*i, r_[0] + 2*i, r_[4])
    k(f"v_mov_b32 v{RQ+7}, v{RQ+6}")
    sums23((rows[0][2], rows[1][2]))
    for n, r_ in enumerate(rows):
        for j in (1, 2): k(f"v_add_f32 v{RQ+4*n+j}, v{r_[3]+2*j}, v{r_[3]+2*j+1}")
    red((1, 2))
    k(f"""v_mul_f32 v{RQ+1}, {f32(1.0/1024)}, v{RQ+1}
    v_fma_f32 v{RQ+1}, -v{RQ+3}, v{RQ+3}, v{RQ+1}
    v_max_f32 v{RQ+1}, 0, v{RQ+1}
    v_mov_b32 v{RQ+6}, v{RQ+7}
    s_branch f_var2""")
    slow1()
    k.c("---- rows 0 and 1024 travel as one complex row ----")
    k.c("both inputs are made even in d: the real and the imaginary part of the transform are then the two rows")
    k("f_sp:\ns_setprio 2")
    SAR = D1R; MR = D1I; SC_ = L_C + 4096
    for j in range(4):
        k(f"ds_read_b128 v[{SAR+4*j}:{SAR+4*j+3}], v3 offset:{L_C+j*1024}")
    k(f"""v_and_b32 v12, 31, v0
    v_lshlrev_b32 v12, 2, v12
    v_and_b32 v17, 32, v0
    v_lshl_add_u32 v12, v17, 4, v12
    v_sub_u32 v20, {SC_}, v12
    v_add_u32 v12, {SC_}, v12
    v_add_u32 v17, 128, v12
    v_add_u32 v21, 128, v20""")
    for j in range(4):
        k(f"s_waitcnt lgkmcnt({3 - j + 2*j})" if j else "s_waitcnt lgkmcnt(3)")
        for i in range(4*j, 4*j + 4):
            b = i & 1
            k(f"v_pk_fma_f16 v{W+i}, v{ZL+i}, v{CS+(i>>1)}, v{SAR+i} op_sel:[0,{b},0] op_sel_hi:[1,{b},1]")
        for i in range(2):
            k(f"ds_write2st64_b32 v{(12, 17)[i]}, v{W+4*j+i}, v{W+4*j+i+2} offset0:{4*j} offset1:{4*j+1}")
    k(f"s_mov_b64 exec, 1\nds_write_b32 v12, v{W} offset:4096\ns_mov_b64 exec, -1")
    for j in range(4):
        k(f"ds_read2st64_b32 v[{MR+4*j}:{MR+4*j+1}], v20 offset0:{16-4*j} offset1:{15-4*j}")
        k(f"ds_read2st64_b32 v[{MR+4*j+2}:{MR+4*j+3}], v21 offset0:{15-4*j} offset1:{14-4*j}")
    for j in range(4):
        k(f"s_waitcnt lgkmcnt({6-2*j})")
        for i in range(4):
            k(f"v_pk_add_f16 v{W+4*j+i}, v{W+4*j+i}, v{MR+4*j+(0, 2, 1, 3)[i]}")
    st1(0, 0); st1(0, 1); st1(1, 0); st1(1, 1)
    k("s_branch f_st1")
    k("f_sp2:")
    YA, YB = Q, QM
    for j in range(4):
        twid(j)
        if j > 0: st2(j - 1, YA, BRE); st2(j - 1, YB, BIM)
    st2(3, YB, BIM); st2(3, YA, BRE)
    x1rows(YA, YB)
    for x in pr1: k(x)
    k("s_waitcnt lgkmcnt(0)\ns_setprio 0\ns_branch f_join")

def role_G(k):
    L_GR = 131072 + 4096; L_SI = 131072 + 8192
    k.c("w_mod tiles: rows 64*mm.., 512 columns of sa|ca|ga|cb and 256 columns of sb|gb per group")
    k.c("nonce writer: first wave of workgroup 0")
    k(f"""h_non:
    s_mul_i32 s42, s32, 0x9e3779b1
    s_lshr_b32 s43, s42, 15
    s_xor_b32 s42, s42, s43
    s_mul_i32 s42, s42, 0x85ebca6b
    s_xor_b32 s33, s33, s42
    s_lshr_b32 s43, s42, 13
    s_xor_b32 s42, s42, s43
    s_mul_i32 s33, s33, 0xc2b2ae35
    s_add_u32 s33, s33, s32
    s_lshr_b32 s43, s33, 16
    s_xor_b32 s33, s33, s43
    s_mul_i32 s33, s33, 0x27d4eb2f
    s_or_b32 s32, s42, 1
    s_andn2_b32 s33, s33, 7
    v_mov_b32 v10, s32
    v_mov_b32 v11, s33
    v_lshlrev_b32 v12, 3, v2
    s_mov_b32 exec_hi, 0
    global_store_dwordx2 v12, v[10:11], s[26:27] sc1
    s_mov_b32 exec_hi, -1
    s_branch h_nonx""")
    k.c("the first four waves start earlier: they are the loaders (logical waves 4-7)")
    k(f"""g_start:
    s_or_b32 s40, s2, s16
    s_xor_b32 s16, s16, 4
    v_xor_b32 v1, 4, v1
    v_xor_b32 v0, 0x100, v0
    v_lshlrev_b32 v13, 2, v2
    v_mov_b32 v220, 0
    v_mov_b32 v221, 0
    s_cmp_lt_u32 s16, 4
    s_cbranch_scc1 g_cons
    @@L@@
    g_cons:
    s_lshl_b32 s29, s34, 4
    s_add_u32 s29, s29, s35
    s_lshl_b32 s29, s29, 12
    s_add_u32 s29, s29, {WS_MPA}
    s_lshl_b32 s30, s16, 9
    s_add_u32 s30, s30, s29
    s_lshl_b32 s31, s16, 8
    s_add_u32 s31, s31, s29
    s_add_u32 s31, s31, 2048
    v_lshlrev_b32 v8, 1, v2
    v_lshlrev_b32 v9, 7, v2
    v_mov_b32 v104, -1
    v_mov_b32 v105, -1
    v_mov_b32 v106, -1
    v_mov_b32 v107, -1
    s_waitcnt lgkmcnt(0)
    s_mov_b32 s12, s6
    s_mov_b32 s13, s7""")
    stamp(k, 1)
    k("""
    s_cmp_eq_u32 s16, 1
    s_cselect_b64 exec, 0xffffff, 1
    buffer_load_dword v245, v9, s[12:15], s29 offen sc1
    s_mov_b64 exec, -1
    v_mov_b32 v14, 0""")
    srd(k, 8, 58, 1024 * 6144 * 2)
    def common():
        k.c("s64 = cluster (or X index) ; s65 = K half ; s66 = 1 for X")
        k(f"""s_mov_b32 s20, s26
        s_mov_b32 s21, s27
        s_mov_b32 s26, 4194304
        s_mov_b32 s27, 0x00020000
        s_and_b32 s65, s35, 1
        s_lshr_b32 s40, s35, 1
        s_mul_i32 s64, s34, 7
        s_add_u32 s64, s64, s40
        s_lshl_b32 s41, s34, 1
        s_add_u32 s41, s41, s65
        s_cmp_ge_u32 s35, 14
        s_cselect_b32 s66, 1, 0
        s_cselect_b32 s64, s41, s64""")
        k.c("v12 / v21: transposed reads of the gate / up tile")
        k(f"""v_lshrrev_b32 v10, 2, v2
        v_and_b32 v15, 3, v0
        v_bfe_u32 v11, v0, 3, 2
        v_xor_b32 v12, v11, v1
        v_and_b32 v12, 3, v12
        v_lshlrev_b32 v12, 5, v12
        v_lshl_add_u32 v12, v10, 7, v12
        v_lshl_add_u32 v12, v15, 3, v12
        v_lshrrev_b32 v16, 2, v1
        v_lshl_add_u32 v12, v16, 15, v12
        v_add_u32 v21, 65536, v12""")
    common()
    RA, RB = 200, 208
    k(f"""v_bfe_u32 v22, v0, 2, 3
    v_lshlrev_b32 v22, 5, v22
    v_lshl_add_u32 v22, v15, 3, v22
    v_bfe_u32 v23, v0, 2, 2
    v_bfe_u32 v24, v0, 4, 2
    v_lshl_add_u32 v23, v24, 3, v23
    v_lshl_add_u32 v{RA}, v23, 10, v22
    v_lshl_add_u32 v{RA}, v1, 8, v{RA}
    v_add_u32 v{RA}, 32768, v{RA}
    v_lshlrev_b32 v25, 7, v1
    v_xor_b32 v22, v22, v25
    v_lshl_add_u32 v{RB}, v23, 9, v22
    v_add_u32 v{RB}, 98304, v{RB}
    v_cmp_eq_u32 s[60:61], 1, v24
    v_cmp_eq_u32 s[62:63], 2, v24
    v_cmp_eq_u32 s[72:73], 3, v24
    v_add3_u32 v8, v8, v25, s36
    v_lshl_add_u32 v10, v24, 4, v25
    v_add_u32 v10, {L_SI}, v10""".replace("v_add3_u32 v8, v8, v25, s36", f"v_add_u32 v8, v8, v25\nv_add_u32 v8, {L_SI}, v8"))
    for t in range(1, 8): k(f"v_xor_b32 v{RA+t}, {32*t}, v{RA}")
    for t in range(1, 4): k(f"v_xor_b32 v{RB+t}, {32*t}, v{RB}")
    k(f"s_sleep {E('GNS', 8)}")
    nonce_issue(k, 20, 128)
    GA_, GB_, GD = 120, 128, 64
    nonce_finish(k, "g_nn", 20, 192, 112)
    mtag(k, 212, 0)
    k("v_and_b32 v212, 0xff, v212\ns_movk_i32 s74, 0xff00")
    k.c("X: s22 / s23 = place of the finished vectors ; their lines are written once early so that early readers find them on the die")
    k(f"""s_lshr_b32 s22, s64, 2
    s_lshl_b32 s22, s22, 12
    s_and_b32 s42, s64, 1
    s_lshl_b32 s42, s42, 8
    s_add_u32 s22, s22, s42
    s_and_b32 s42, s64, 2
    s_lshl_b32 s42, s42, 5
    s_add_u32 s22, s22, s42
    s_add_u32 s22, s22, {WS_FIN}
    s_lshr_b32 s23, s64, 3
    s_lshl_b32 s23, s23, 12
    s_and_b32 s42, s64, 3
    s_lshl_b32 s42, s42, 7
    s_add_u32 s23, s23, s42
    s_and_b32 s42, s64, 4
    s_lshl_b32 s42, s42, 4
    s_add_u32 s23, s23, s42
    s_add_u32 s23, s23, {WS_FIN + 5*4096}
    v_bfe_u32 v24, v0, 2, 1
    v_bfe_u32 v25, v0, 3, 2
    v_bfe_u32 v26, v0, 5, 1
    v_lshlrev_b32 v220, 4, v15
    v_lshl_add_u32 v220, v24, 9, v220
    v_lshl_add_u32 v220, v25, 10, v220
    v_lshl_add_u32 v220, v26, 7, v220
    v_lshlrev_b32 v221, 7, v15
    v_lshl_add_u32 v221, v24, 6, v221
    v_lshl_add_u32 v221, v25, 4, v221
    v_lshl_add_u32 v221, v26, 9, v221
    s_lshl_b32 s79, s64, 7
    s_add_u32 s79, s79, {WS_REC}
    s_cmp_ge_u32 s16, s66
    s_cbranch_scc1 g_nw""")
    srd(k, 44, 48, 2048)
    k("""v_lshrrev_b32 v11, 1, v221
    s_and_b32 s42, s64, 3
    s_lshl_b32 s42, s42, 9
    buffer_load_dwordx2 v[52:53], v11, s[44:47], s42 offen""")
    mtag4(k, 216)
    for i in range(4): k(f"v_not_b32 v{24+i}, v{216+i}")
    k(f"""buffer_store_dwordx4 v[24:27], v220, s[12:15], s22 offen sc1
    s_add_u32 s42, s22, 4096
    s_cmp_ge_u32 s64, 12
    s_cselect_b32 s42, s42, s22
    buffer_store_dwordx4 v[24:27], v220, s[12:15], s42 offen sc1
    s_mov_b32 exec_hi, 0
    buffer_store_dwordx4 v[24:27], v220, s[12:15], s23 offen sc1
    s_mov_b64 exec, 0xff
    buffer_store_dwordx4 v[104:107], v3, s[12:15], s79 offen sc1
    s_mov_b64 exec, -1
    g_nw:
    s_barrier""")
    def gemv(u, st=True):
        def prm(j):
            if u < 2: return RA + j, u*32768, 4096, GD + 4*j, GA_ + 4*u, u == 0
            return RB + (j & 3), (j >> 2)*16384, 2048, GD + 4*(j & 3), GA_ + 4*(j >> 2), j < 4
        def rd(j):
            va, off, hs = prm(j)[:3]
            k(f"ds_read_b64_tr_b16 v[{GB_+4*j}:{GB_+4*j+1}], v{va} offset:{off}")
            k(f"ds_read_b64_tr_b16 v[{GB_+4*j+2}:{GB_+4*j+3}], v{va} offset:{off+hs}")
        for j in range(7): rd(j)
        for j in range(8):
            k(f"s_waitcnt lgkmcnt({12 if j == 0 else 2*(7 - j)})")
            d_, a_, z = prm(j)[3:]
            k(f"v_mfma_f32_16x16x32_bf16 v[{d_}:{d_+3}], v[{a_}:{a_+3}], v[{GB_+4*j}:{GB_+4*j+3}], {'0' if z else f'v[{d_}:{d_+3}]'}")
            if j == 0: rd(7)
        if u:
            for h in range(3 - u):
                d_ = GD + 16*h
                for t, m_ in ((1, "s[60:61]"), (2, "s[62:63]"), (3, "s[72:73]")):
                    k(f"v_cndmask_b32 v{d_}, v{d_}, v{d_+4*t}, {m_}")
                k(f"v_and_or_b32 v{PO + 2*(u-1) + h}, v{d_}, s74, v212")
    PO = 224
    def mp(u, cp):
        if cp: k(f"s_add_u32 s42, s{29+u}, {WS_MPB - WS_MPA}")
        for h in range(3 - u):
            k(f"buffer_store_dword v{PO+2*(u-1)+h}, v13, s[12:15], s{42 if cp else 29+u} offen offset:{h*256} {('', 'sc1')[cp]}")
    stamp(k, 2)
    k("ds_read_u16 v6, v8\ns_waitcnt lgkmcnt(0)")
    k(f"""v_lshlrev_b32 v6, 16, v6
    v_mul_f32 v24, {LOG2E}, v6
    v_exp_f32 v24, v24
    v_add_f32 v24, 1.0, v24
    v_rcp_f32 v24, v24
    v_mul_f32 v6, v6, v24
    v_cvt_pk_bf16_f32 v6, v6, v6
    ds_write_b16 v8, v6
    ds_read_b128 v[{GA_}:{GA_+3}], v10
    ds_read_b128 v[{GA_+4}:{GA_+7}], v10 offset:64""")
    gemv(0)
    k("s_barrier")
    stamp(k, 3)
    gemv(1)
    mp(1, 0)
    stamp(k, 4)
    k("s_barrier\ns_cmp_eq_u32 s66, 1\ns_cbranch_scc1 x_start")
    if E("XH", 0):
        k.c("wave 0: a share of the second tiles of the two X workgroups into L2")
        k(f"""s_cmp_lg_u32 s16, 0
        s_cbranch_scc1 m_nh
        s_mul_i32 s42, s35, 9
        s_add_u32 s42, s42, 896
        s_mul_i32 s42, s42, 12288
        s_lshl_b32 s43, s34, 9
        s_add_u32 s42, s42, s43
        s_and_b32 s43, s34, 4
        s_lshl_b32 s43, s43, 9
        s_add_u32 s42, s42, s43
        s_add_u32 s42, s42, {3*2048}
        v_lshrrev_b32 v24, 2, v2
        v_mul_u32_u24 v24, 12288, v24
        v_lshl_add_u32 v24, v15, 7, v24
        s_mov_b32 exec_hi, 15
        buffer_load_dword v245, v24, s[8:11], s42 offen
        s_mov_b32 exec_hi, -1
        m_nh:""")
    k("s_barrier")
    gemv(2)
    mp(2, 0)
    stamp(k, 5)
    k("s_barrier")
    HN = E("HN", 37)
    if HN:
        k.c("the gate / up columns whose lines stream slowly are pulled into L2 by all M workgroups of the die")
        k(f"""s_bitcmp1_b32 s16, 0
        {"s_cbranch_scc1 m_nh2" if E("XN", 0) else ""}
        s_cselect_b32 s8, s52, s50
        s_cselect_b32 s9, s53, s51
        s_mov_b32 s10, {1024*3584*2}
        s_lshr_b32 s42, s8, 7
        s_sub_u32 s42, 3, s42
        s_add_u32 s42, s42, s34
        s_and_b32 s42, s42, 7
        s_cmp_eq_u32 s42, 7
        s_cbranch_scc1 m_nh2
        s_mul_i32 s43, s34, 7
        s_add_u32 s42, s42, s43
        s_lshl_b32 s42, s42, 7
        s_lshl_b32 s43, s35, 1
        s_lshr_b32 s40, s16, 1
        s_add_u32 s43, s43, s40
        s_mul_i32 s43, s43, {37*7168}
        s_add_u32 s42, s42, s43
        v_mul_u32_u24 v24, 7168, v2
        s_mov_b32 exec_lo, {((1 << HN) - 1) & 0xffffffff}
        s_mov_b32 exec_hi, {((1 << HN) - 1) >> 32}
        buffer_load_dword v245, v24, s[8:11], s42 offen
        s_mov_b64 exec, -1
        m_nh2:""")
    BD, BG, BU = 32, 64, 96
    def rdw(base, va):
        for ks in range(8):
            k(f"ds_read_b64_tr_b16 v[{base+4*ks}:{base+4*ks+1}], v{va} offset:{ks*4096}")
            k(f"ds_read_b64_tr_b16 v[{base+4*ks+2}:{base+4*ks+3}], v{va} offset:{ks*4096+2048}")
    k("s_barrier")
    rdw(BG, 12)
    k("s_waitcnt vmcnt(0)\ns_barrier")
    k.c("write-through copy of the partial sums (read back through L2, one KB per wave)")
    def fwd(lab, w0=0):
        k(f"""s_sub_u32 s42, s16, {w0}
        s_cmp_ge_u32 s42, 3
        s_cbranch_scc1 {lab}
        s_lshl_b32 s42, s42, 10
        s_add_u32 s42, s42, s29
        s_add_u32 s43, s42, {WS_MPB - WS_MPA}
        buffer_load_dwordx4 v[44:47], v3, s[12:15], s42 offen sc1
        s_waitcnt vmcnt(0)
        buffer_store_dwordx4 v[44:47], v3, s[12:15], s43 offen sc1
        {lab}:""")
    fwd("m_nb", 1)
    k("@@L0@@")
    k.c("================= waves 4-7: the loaders (nine 32 KB units through four LDS slots) =================")
    k(f"""g_load:
    s_and_b32 s69, s16, 3
    s_and_b32 s42, s16, 1
    s_lshl_b32 s42, s42, 7
    v_xor_b32 v6, s42, v3
    v_xor_b32 v7, 32, v6
    v_xor_b32 v8, 64, v6
    v_xor_b32 v9, 96, v6
    s_lshl_b32 s41, s35, 3
    s_add_u32 s41, s41, s69
    s_mul_i32 s18, s41, {8*12288}
    s_lshl_b32 s41, s34, 10
    s_cmp_ge_u32 s34, 6
    s_cselect_b32 s42, 2048, 0
    s_add_u32 s18, s18, s41
    s_add_u32 s18, s18, s42
    s_lshl_b32 s68, s69, 13
    s_mov_b32 s10, {1024*6144*2}
    s_waitcnt lgkmcnt(0)
    s_mov_b32 s8, s58
    s_mov_b32 s9, s59
    s_mov_b32 s12, s6
    s_mov_b32 s13, s7
    s_cmp_eq_u32 s40, 0
    s_cbranch_scc1 h_non
    h_nonx:
    s_lshl_b32 s42, s69, 7
    s_add_u32 s42, s42, {L_SI}
    s_mov_b32 m0, s42
    s_lshl_b32 s42, s35, 7
    v_add_u32 v10, s42, v13
    s_mov_b32 exec_hi, 0
    global_load_lds_dword v10, s[56:57]
    s_mov_b32 exec_hi, -1""")
    stamp(k, 1)
    W0, W1, W2 = E("W0", 8), E("W1", 7), E("W2", 10)
    WU = [int(x) for x in os.environ.get("WU", "8,8,8,8,10,10,10").split(",")]
    win = lambda n: WU[n >> 3]
    def unit_load(n):
        u, i = n >> 3, n & 7
        slot = ((u + 1) & 3) * 32768
        if u < 2:
            va, srdb, sb, stride = 6 + (i & 3), 8, 18, 12288
            rows = 32 * u + i
        elif u == 2:
            va, srdb, sb, stride = 4, 8, 19, 12288
            rows = 2 * i
            k(f"v_xor_b32 v4, {64*(i&1) + 128*((i>>2)&1)}, v14")
        elif u < 7:
            va, srdb, sb, stride = 5, (56, 56, 44, 44)[u-3], 67, 7168
            rows = 256 * ((u + 1) & 1) + 32 * (i >> 2) + 16 * (i & 1) + 4 * ((i >> 1) & 1)
        k(f"s_add_u32 s43, s68, {slot + i*1024}\ns_mov_b32 m0, s43\ns_add_u32 s42, s{sb}, {rows*stride}")
        if E("NOW", 0) and u >= 3: return
        nt = "nt" if (E("NTU", 511) >> u) & 1 else ""
        k(f"buffer_load_dwordx4 v{va}, s[{srdb}:{srdb+3}], s42 offen {nt} lds")
    L1, L2 = E("L1", 4), E("L2", 6)
    def stream(n0, n1, total, landed):
        for n in range(n0, n1):
            w = min(win(n), n) if n else 1
            for u, la in ((1, L1), (2, L2)):
                if n == 8 * (u + 1) + la and landed <= u:
                    k(f"s_waitcnt vmcnt({la})")
                    while landed <= u:
                        event(landed); landed += 1
            if n >= win(n): k(f"s_waitcnt vmcnt({win(n)-1})")
            while 8 * (landed + 1) <= n - win(n) + 1 and landed < 5:
                event(landed); landed += 1
            unit_load(n)
        if n1 == total:
            while 8 * (landed + 1) <= total - 16:
                k(f"s_waitcnt vmcnt({total - 8*(landed+1)})")
                event(landed); landed += 1
        return landed
    def event(u):
        stamp(k, 40 + u)
        k("s_barrier")
        if u in (1, 2): k("s_barrier")
        if u == 4: rdw(BG, 12)
    def setup2():
        pass
    landed = stream(0, 8, 56, 0)
    k(f"""s_lshl_b32 s19, s35, 2
    s_add_u32 s19, s19, s69
    s_mul_i32 s19, s19, {16*12288}
    s_lshl_b32 s42, s34, 9
    s_add_u32 s19, s19, s42
    s_and_b32 s42, s34, 4
    s_lshl_b32 s42, s42, 9
    s_add_u32 s19, s19, s42
    s_add_u32 s19, s19, {3*2048}
    v_lshrrev_b32 v5, 5, v2
    v_and_b32 v14, 0x1f0, v3
    v_lshlrev_b32 v12, 5, v5
    v_xor_b32 v14, v14, v12
    s_movk_i32 s42, 12288
    v_mad_u32_u24 v14, v5, s42, v14
    v_bfe_u32 v5, v0, 5, 1
    v_lshlrev_b32 v5, 3, v5
    v_bfe_u32 v12, v0, 3, 2
    v_add_u32 v5, v5, v12
    v_bfe_u32 v12, v0, 4, 2
    v_lshlrev_b32 v12, 1, v12
    v_xor_b32 v12, v12, v0
    v_and_b32 v12, 7, v12
    v_lshlrev_b32 v12, 4, v12
    s_movk_i32 s42, 7168
    v_mad_u32_u24 v5, v5, s42, v12""")
    common()
    k(f"""s_lshl_b32 s67, s65, 3
    s_add_u32 s67, s67, s69
    s_mul_i32 s67, s67, {64*7168}
    s_lshl_b32 s42, s64, 7
    s_add_u32 s67, s67, s42
""")
    srd(k, 56, 50, 1024 * 3584 * 2)
    srd(k, 44, 52, 1024 * 3584 * 2)
    landed = stream(8, 10, 56, landed)
    nonce_issue(k, 20, 128)
    landed = stream(10, 16, 56, landed)
    nonce_finish(k, "g_n2", 20, 192, 120)
    k("s_cmp_eq_u32 s66, 0\ns_cbranch_scc1 m_load")
    k(f"s_waitcnt vmcnt(0)\ns_barrier\ns_barrier\ns_branch x_start\nm_load:")
    stream(16, 56, 56, landed)
    k("s_branch m_join\n@@L1@@\nm_join:")
    L_H = 131072
    KB = 24; HA = 128; AG = 160
    k.c("v13 h2 write ; v17 A read")
    k(f"""v_bfe_u32 v7, v0, 4, 2
    v_and_b32 v6, 1, v0
    v_lshlrev_b32 v17, 10, v6
    v_lshl_add_u32 v17, v16, 9, v17
    v_lshl_add_u32 v17, v7, 4, v17
    v_add_u32 v17, {L_H}, v17
    v_and_b32 v6, 15, v0
    v_lshlrev_b32 v13, 6, v6
    v_bfe_u32 v22, v0, 4, 1
    v_lshl_add_u32 v13, v22, 5, v13
    v_bfe_u32 v22, v0, 5, 1
    v_lshl_add_u32 v13, v22, 4, v13
    v_add_u32 v13, {L_H}, v13
    v_lshl_add_u32 v13, v1, 10, v13
    s_lshl_b32 s70, s34, 1
    s_add_u32 s70, s70, s16
    s_lshl_b32 s70, s70, 13
    s_lshl_b32 s71, s65, 11
    s_add_u32 s70, s70, s71
    s_add_u32 s70, s70, {WS_HM}
    s_mov_b32 s71, 0x07060302
    s_lshl_b32 s69, s64, 2
    s_and_b32 s42, s16, 3
    s_add_u32 s69, s69, s42
    s_lshl_b32 s69, s69, 10
    s_lshl_b32 s76, s65, 1
    s_lshr_b32 s42, s16, 2
    s_add_u32 s76, s76, s42
    s_lshl_b32 s76, s76, 8
    s_add_u32 s76, s76, s69
    s_add_u32 s77, s76, {WS_XB}
    s_add_u32 s76, s76, {WS_XA}
    s_add_u32 s69, s69, {WS_XA}
""")
    k.c("waves 0, 1 wait for the two rows while the last units land; wave 2 brings the hand-off lines into L2")
    k(f"""s_cmp_lg_u32 s16, 2
    s_cbranch_scc1 m_n0
    v_lshlrev_b32 v4, 7, v2
    s_sub_u32 s69, s69, 2048
    s_mov_b32 exec_hi, 0
    buffer_load_dword v5, v4, s[12:15], s69 offen sc1
    s_mov_b32 exec_hi, -1
    m_n0:
    s_cmp_ge_u32 s16, 2
    s_cbranch_scc1 m_n1
    v_lshlrev_b32 v4, 7, v2
    s_mov_b64 exec, 0xffff
    buffer_load_dword v5, v4, s[12:15], s70 offen sc1
    s_mov_b64 exec, -1
    m_n1:""")
    mtag4(k, 216)
    htag(k, 60)
    hl = lambda so: f"""buffer_load_dwordx4 v[176:179], v3, s[12:15], s{so} offen sc1
    buffer_load_dwordx4 v[180:183], v3, s[12:15], s{so} offen offset:1024 sc1"""
    k("s_movk_i32 s74, 0xff00\ns_waitcnt vmcnt(0)")
    stamp(k, 6); stamp(k, 45)
    k(f"""s_barrier
    s_cmp_ge_u32 s16, 2
    s_cselect_b64 exec, 1, -1
    {hl(70)}
    s_mov_b64 exec, -1""")
    rdw(BU, 21)
    k(f"""s_cbranch_scc1 m_nk
    s_mov_b32 s83, 0
    s_branch m_ph
    m_pr:
    s_and_b32 s42, s83, 63
    s_cmp_eq_u32 s42, 63
    s_cselect_b32 s42, {HM_B}, 0
    s_add_u32 s42, s42, s70
    {hl(42)}
    s_add_u32 s83, s83, 1
    s_cmp_ge_u32 s83, {SPIN}
    s_cbranch_scc1 m_phx
    m_ph:
    s_waitcnt vmcnt(0)
    v_cmp_ne_u16 vcc, s63, v183
    s_cbranch_vccnz m_pr""")
    for i in range(4): k(f"v_perm_b32 v{184+i}, v{177+2*i}, v{176+2*i}, s71")
    k("ds_write_b128 v13, v[184:187]")
    for i in range(8): k(f"v_xor_b32 v{176+i}, s{60+(i&3)}, v{176+i}")
    for i in range(4): k(f"v_or3_b32 v4, v{176+2*i}, v{177+2*i}, {'0' if i == 0 else 'v4'}")
    k("v_cmp_ne_u16 vcc, 0, v4\ns_cbranch_vccnz m_pr\nm_phx:")
    stamp(k, 14)
    def slot_of(d, s_):
        k(f"""s_bfe_u32 s{d}, s{s_}, 0x70005
        s_lshl_b32 s{d}, s{d}, 13
        s_and_b32 s{s_}, s{s_}, 1
        s_lshl_b32 s{s_}, s{s_}, 12
        s_add_u32 s{d}, s{d}, s{s_}""")
    k("m_nk:\ns_waitcnt lgkmcnt(0)\ns_barrier")
    for ks in range(8):
        k(f"ds_read_b128 v[{HA+4*ks}:{HA+4*ks+3}], v17 offset:{ks*64}")
    mm_ = lambda a_, b_, ks: k(f"v_mfma_f32_16x16x32_bf16 v[{a_}:{a_+3}], v[{HA+4*ks}:{HA+4*ks+3}], v[{b_+4*ks}:{b_+4*ks+3}], {'0' if ks == 0 else f'v[{a_}:{a_+3}]'}")
    for ks in range(8):
        k(f"s_waitcnt lgkmcnt({7-ks})")
        mm_(AG, BG, ks); mm_(AG + 4, BU, ks)
    PB = 184
    for i, r_ in enumerate((AG, AG + 1, AG + 4, AG + 5)): k(f"v_and_or_b32 v{PB+i}, v{r_}, s74, v{216+i}")
    k(f"""s_mov_b64 exec, 0xffff
    buffer_store_dwordx4 v[{PB}:{PB+3}], v3, s[12:15], s76 offen
    buffer_store_dwordx4 v[{PB}:{PB+3}], v3, s[12:15], s77 offen sc1
    s_mov_b64 exec, -1""")
    stamp(k, 15)
    k("s_cmp_eq_u32 s16, 0\ns_cbranch_scc1 r_start\ng_end:")
    stamp_out(k, 0)
    k(f"""s_endpgm
""")
    k.c("================= X: modulation tables, then the final reduction =================")
    k("x_start:")
    stamp(k, 30)
    mtag4(k, 216)
    k(f"""s_lshl_b32 s41, s34, 16
    s_lshl_b32 s42, s16, 13
    s_add_u32 s41, s41, s42
    s_add_u32 s41, s41, {WS_MPA}
    s_lshl_b32 s42, s65, 9
    s_add_u32 s40, s41, s42
    s_add_u32 s41, s40, s42
    v_lshlrev_b32 v10, 4, v0
    v_lshrrev_b32 v11, 5, v2
    v_and_b32 v12, 0x1f0, v3
    v_lshl_add_u32 v11, v11, 12, v12
    s_lshl_b32 s39, s34, 4
    s_add_u32 s39, s39, s35
    s_lshl_b32 s39, s39, 12
    s_add_u32 s39, s39, {WS_MPA}
    s_bitcmp1_b32 s64, 2
    s_cselect_b32 s28, 1.0, 0""")
    def gather(lab, rnd):
        k(f"""s_mov_b32 s83, 0
        {lab}:
        s_and_b32 s42, s83, 31
        s_cmp_eq_u32 s42, 31
        s_cselect_b32 s42, {WS_MPB - WS_MPA}, 0
        s_add_u32 s42, s42, s{41 - rnd}""")
        if rnd == 0:
            k("""s_add_u32 s43, s42, 4096
            buffer_load_dwordx4 v[32:35], v3, s[12:15], s42 offen sc1
            buffer_load_dwordx4 v[36:39], v3, s[12:15], s43 offen sc1""")
        else:
            k("buffer_load_dwordx4 v[32:35], v11, s[12:15], s42 offen offset:2048 sc1")
        k("s_waitcnt vmcnt(0)")
        untag(k, range(32, 40 - 4*rnd), 216, 17)
        tagchk(k, 17)
        k(f"""s_cbranch_vccz {lab}x
        s_and_b32 s42, s83, 31
        s_cmp_lg_u32 s42, 24
        s_cbranch_scc1 {lab}n""")
        own_b(rnd)
        k(f"{lab}n:")
        spin(k, lab, E("SLP", 0))
        k(f"{lab}x:")
        stamp(k, 31 + 3*rnd)
        if rnd == 0:
            for h in range(2): padd(k, 32 + 2*h, 32 + 2*h, 36 + 2*h)
        k(f"""ds_write_b128 v10, v[32:35] offset:{rnd*8192}
        s_waitcnt lgkmcnt(0)
        s_barrier
        s_cmp_lg_u32 s16, 0
        s_cbranch_scc1 {lab}e""")
        for i in range(8): k(f"ds_read_b128 v[{160+4*i}:{163+4*i}], v221 offset:{rnd*8192+i*1024}")
        for i in range(0, 8, 2):
            k(f"s_waitcnt lgkmcnt({6-i})")
            for h in range(2): padd(k, 160 + 4*i + 2*h, 160 + 4*i + 2*h, 164 + 4*i + 2*h)
        for h in range(2):
            padd(k, 160 + 2*h, 160 + 2*h, 168 + 2*h); padd(k, 176 + 2*h, 176 + 2*h, 184 + 2*h)
        for h in range(2): padd(k, 160 + 2*h, 160 + 2*h, 176 + 2*h)
    def own_b(rnd):
        k(f"s_add_u32 s43, s39, {WS_MPB - WS_MPA}")
        for i in range(2 + rnd):
            k(f"buffer_load_dwordx4 v[44:47], v3, s[12:15], s39 offen offset:{i*1024} sc1")
            k("s_waitcnt vmcnt(0)")
            k(f"buffer_store_dwordx4 v[44:47], v3, s[12:15], s43 offen offset:{i*1024} sc1")
            k("s_waitcnt vmcnt(0)")
    def fin_store(v, so):
        for i in range(4): k(f"v_and_or_b32 v{40+i}, v{v+i}, s74, v{216+i}")
        k(f"buffer_store_dwordx4 v[40:43], v220, s[12:15], s{so} offen sc1")
    gather("x_g0", 0)
    for h in range(2): rb2(k, 160 + 2*h, 17 + h)
    for n in range(4): k(f"v_add_f32 v{160+n}, s28, v{160+n}")
    for h in range(2): rb2(k, 160 + 2*h, 17 + h)
    fin_store(160, 22)
    k(f"""v_mov_b32 v48, s32
    v_mov_b32 v49, s33
    s_cmp_ge_u32 s64, 12
    s_cbranch_scc1 x_q
    v_max3_f32 v50, abs(v160), abs(v161), abs(v162)
    v_max_f32_e64 v50, v50, abs(v163)""")
    wave_reduce_to63(k, [50], "v_max_f32")
    k("s_branch x_r\nx_q:")
    for h in range(2): unpack_bf16(k, 164 + 2*h, 52 + h)
    for h in range(2): pmul(k, 164 + 2*h, 164 + 2*h, 160 + 2*h)
    k("s_add_u32 s42, s22, 4096")
    fin_store(164, 42)
    for i in range(4): k(f"v_and_b32 v{164+i}, s74, v{164+i}")
    padd(k, 164, 164, 166)
    k("v_add_f32 v50, v164, v165")
    wave_reduce_to63(k, [50], "v_add_f32")
    k(f"""x_r:
    v_readlane_b32 s42, v50, 63
    v_mov_b32 v50, s42
    s_mov_b64 exec, 0xff
    buffer_store_dwordx4 v[48:51], v3, s[12:15], s79 offen sc1
    s_mov_b64 exec, -1
    x_g0e:""")
    stamp(k, 32); stamp(k, 14)
    k("s_barrier\ns_cmp_lt_u32 s16, 4\ns_cbranch_scc1 x_t1")
    for n in range(16, 24): unit_load(n)
    k("s_waitcnt vmcnt(0)\ns_barrier\ns_branch x_t2\nx_t1:")
    k("s_barrier")
    gemv(2)
    mp(2, 0)
    k("x_t2:")
    stamp(k, 33)
    gather("x_g1", 1)
    for i in range(4): k(f"v_mov_b32 v{164+i}, v{160+i}")
    for i in range(4): k(f"v_permlane32_swap_b32 v{160+i}, v{164+i}")
    for h in range(2): padd(k, 160 + 2*h, 160 + 2*h, 164 + 2*h)
    for h in range(2): rb2(k, 160 + 2*h, 17 + h)
    k("s_mov_b32 exec_hi, 0")
    fin_store(160, 23)
    k("s_mov_b32 exec_hi, -1\nx_g1e:")
    stamp(k, 6); stamp(k, 35)
    fwd("x_nb")
    XN = E("XN", 0)
    if XN:
        k.c("idle time: the slowly streaming up column of this die into L2")
        k(f"""s_barrier
        s_mov_b32 s8, s52
        s_mov_b32 s9, s53
        s_mov_b32 s10, {1024*3584*2}
        s_lshr_b32 s42, s8, 7
        s_sub_u32 s42, 3, s42
        s_add_u32 s42, s42, s34
        s_and_b32 s42, s42, 7
        s_cmp_eq_u32 s42, 7
        s_cbranch_scc1 x_nh
        s_mul_i32 s43, s34, 7
        s_add_u32 s42, s42, s43
        s_lshl_b32 s42, s42, 7
        s_lshl_b32 s43, s65, 3
        s_add_u32 s43, s43, s16
        s_mul_i32 s43, s43, {64*7168}
        s_add_u32 s42, s42, s43
        v_mul_u32_u24 v24, 7168, v2
        buffer_load_dword v245, v24, s[8:11], s42 offen
        x_nh:""")
    k(f"""s_cmp_lg_u32 s16, 0
    s_cbranch_scc1 g_end
    s_lshl_b32 s78, s34, 14
    s_add_u32 s78, s78, {WS_KEY}
    s_lshl_b32 s79, s34, 7
    s_add_u32 s79, s79, {WS_GO}
    v_mov_b32 v22, 0""")
    srd(k, 56, 48, 2048)
    htag(k, 60)
    btag(k, 44)
    k.c("w_r, sb and 1+cb in slot order")
    k(f"""v_and_b32 v9, 15, v0
    v_lshlrev_b32 v9, 6, v9
    v_bfe_u32 v19, v0, 4, 1
    v_lshl_add_u32 v9, v19, 5, v9
    v_lshlrev_b32 v18, 9, v19
    v_bfe_u32 v19, v0, 5, 1
    v_lshl_add_u32 v9, v19, 4, v9
    v_lshl_add_u32 v18, v19, 11, v18
    v_bfe_u32 v19, v0, 2, 2
    v_lshl_add_u32 v18, v19, 7, v18
    v_lshl_add_u32 v18, v15, 4, v18
    s_mov_b32 s43, {WS_FIN + 5*4096}
    s_lshl_b32 s70, s64, 13
    s_add_u32 s70, s70, {WS_HM}
    s_add_u32 s71, s70, {HM_B}
    s_add_u32 s72, s70, 4096
    s_add_u32 s73, s71, 4096
    v_mov_b32 v21, 0xffff0000""")
    for j in range(2):
        k(f"buffer_load_dwordx4 v[{92+4*j}:{95+4*j}], v9, s[56:59], 0 offen offset:{j*1024}")
    poll_recs(k, "x_go", 28, 22, 79, "1", sl=E("SLG", 3))
    k("s_mov_b32 s83, 0\nx_sb:")
    for j in range(4):
        k(f"buffer_load_dwordx4 v[{100+4*j}:{103+4*j}], v18, s[12:15], s43 offen offset:{(j>>1)*64 + (j&1)*1024} sc1")
    k("s_sub_u32 s42, s43, 8192")
    for j in range(4):
        k(f"buffer_load_dwordx4 v[{116+4*j}:{119+4*j}], v18, s[12:15], s42 offen offset:{(j>>1)*64 + (j&1)*1024} sc1")
    for i in range(8): unpack_bf16(k, 48 + 2*i, 92 + i)
    k("s_waitcnt vmcnt(0)")
    untag(k, range(100, 132), 216, 19)
    tagchk(k, 19)
    k("s_cbranch_vccz x_sbx")
    spin(k, "x_sb", 8)
    k("x_sbx:")
    if E("XKS", 0): k(f"s_sleep {E('XKS', 0)}")
    stamp(k, 23)
    poll_keys(k, "x_pk", 24, 78, 32, sl=E("SLK", 0))
    stamp(k, 24); stamp(k, 13)
    top2(k, 24, 32, "x_t1st")
    k("s_mov_b32 s40, s41\nx_t1st:\nv_mov_b32 v46, s40")
    slot_of(42, 40)
    k(f"""s_lshr_b32 s43, s42, 5
    s_add_u32 s42, s42, {WS_SLOT}
    s_add_u32 s43, s43, {WS_SH}
    s_mov_b32 s83, 0
    x_ph:
    s_mov_b64 exec, 1
    buffer_load_dwordx4 v[28:31], v22, s[12:15], s43 offen sc1
    s_mov_b64 exec, -1""")
    for q in range(4): k(f"buffer_load_dwordx4 v[{64+4*q}:{67+4*q}], v3, s[12:15], s42 offen offset:{q*1024} sc1")
    k("""s_waitcnt vmcnt(4)
    v_readfirstlane_b32 s22, v28
    v_readfirstlane_b32 s23, v29
    v_readfirstlane_b32 s20, v30
    v_readfirstlane_b32 s21, v31
    s_xor_b64 s[22:23], s[22:23], s[32:33]""")
    k("s_cbranch_scc1 x_pr")
    for q in range(4):
        k(f"s_waitcnt vmcnt(3)")
        for i in range(4): k(f"v_xor_b32 v{64+4*q+i}, s{44 + 4*(q & 1) + i}, v{64+4*q+i}")
        k(f"v_or3_b32 v19, v{64+4*q}, v{65+4*q}, v{66+4*q}\nv_or_b32 v19, v19, v{67+4*q}")
        for i in range(2*q, 2*q + 2):
            k(f"v_pk_fma_f32 {P(64+2*i)}, {P(64+2*i)}, s[20:21], s[20:21] op_sel:[0,1,0] op_sel_hi:[1,1,0]")
        k(f"v_cmp_ne_u16_sdwa vcc, v19, v22 src0_sel:BYTE_0 src1_sel:DWORD")
        for i in range(2*q, 2*q + 2): pfma(k, 64 + 2*i, 64 + 2*i, 116 + 2*i, 100 + 2*i)
        for i in range(2*q, 2*q + 2): k(f"v_cvt_pk_bf16_f32 v{32+i}, v{64+2*i}, v{65+2*i}")
        k("s_cbranch_vccnz x_pr")
        for i in range(2*q, 2*q + 2):
            k(f"v_lshl_or_b32 v{64+2*i}, v{32+i}, 16, s{60+((2*i)&3)}")
            k(f"v_and_or_b32 v{65+2*i}, v{32+i}, v21, s{60+((2*i+1)&3)}")
        k(f"buffer_store_dwordx4 v[{64+4*q}:{67+4*q}], v3, s[12:15], s70 offen offset:{q*1024}")
    k("x_phx:")
    stamp(k, 15)
    for q in range(4):
        k(f"buffer_store_dwordx4 v[{64+4*q}:{67+4*q}], v3, s[12:15], s71 offen offset:{q*1024} sc1")
    for i in range(8): unpack_bf16(k, 100 + 2*i, 32 + i)
    pmul(k, 8, 48, 100)
    for i in range(1, 8): pfma(k, 8, 48 + 2*i, 100 + 2*i, 8)
    k("v_add_f32 v8, v8, v9")
    wave_reduce_to63(k, [8])
    round_bf16(k, 8, 8)
    k(f"""v_mul_f32 v8, {LOG2E}, v8
    v_exp_f32 v8, v8
    v_add_f32 v8, 1.0, v8
    v_rcp_f32 v8, v8""")
    round_bf16(k, 8, 8)
    k(f"""v_readlane_b32 s46, v8, 63
    v_mov_b32 v44, s32
    v_mov_b32 v45, s33
    v_mov_b32 v47, s46
    s_mov_b64 exec, 0xff
    buffer_store_dwordx4 v[44:47], v3, s[12:15], s73 offen sc1
    s_mov_b64 exec, -1
    s_sleep {E('XSL', 20)}""")
    k.c("================= final reduction: one job (row, 16-column block s18) per G workgroup =================")
    k(f"""r_start:
    s_lshl_b32 s62, s34, 1
    s_lshr_b32 s42, s34, 2
    s_add_u32 s62, s62, s42
    s_lshl_b32 s62, s62, 13
    s_add_u32 s62, s62, {WS_HM + HM_B}
    s_add_u32 s61, s62, 4096
    s_and_b32 s18, s34, 3
    s_lshl_b32 s18, s18, 4
    s_add_u32 s18, s18, s35
    v_mov_b32 v11, 0
    v_and_b32 v4, 3, v0
    v_lshrrev_b32 v7, 4, v2
    v_lshlrev_b32 v5, 3, v4
    v_lshl_add_u32 v5, v7, 1, v5
    v_lshlrev_b32 v6, 10, v4
    v_lshl_add_u32 v6, v7, 2, v6
    v_lshrrev_b32 v86, 1, v4
    v_lshlrev_b32 v86, 9, v86
    v_and_b32 v87, 1, v4
    v_lshl_add_u32 v85, v87, 10, v86
    v_lshl_add_u32 v85, v7, 2, v85
    s_and_b32 s30, s18, 1
    s_bfe_u32 s31, s18, 0x20001
    s_bfe_u32 s40, s18, 0x20003
    s_lshr_b32 s41, s18, 5
    s_lshl_b32 s45, s41, 11
    s_lshl_b32 s42, s30, 8
    s_add_u32 s45, s45, s42
    s_lshl_b32 s42, s40, 6
    s_add_u32 s45, s45, s42
    s_lshl_b32 s31, s31, 4
    s_add_u32 s45, s45, s31
    s_add_u32 s62, s62, s45
    s_lshl_b32 s30, s30, 9
    s_add_u32 s31, s31, s30
    s_lshl_b32 s40, s40, 7
    s_add_u32 s31, s31, s40
    s_lshl_b32 s41, s41, 6
    s_add_u32 s31, s31, s41
    s_add_u32 s31, s31, {WS_FIN + 6*4096}
    s_mov_b32 s83, 0
    r_ld:
    s_mov_b64 exec, 1
    buffer_load_dwordx4 v[32:35], v11, s[12:15], s61 offen sc1
    s_mov_b64 exec, -1
    buffer_load_dword v41, v85, s[12:15], s62 offen sc1
    buffer_load_dword v91, v6, s[12:15], s31 offen sc1
    s_bitcmp1_b32 s18, 1
    s_cselect_b32 s42, s33, s32
    v_lshlrev_b32 v88, 3, v7
    v_lshrrev_b32_e64 v88, v88, s42
    v_and_b32 v88, 0xff, v88
    v_lshlrev_b32 v89, 4, v7
    v_lshrrev_b64 v[82:83], v89, s[32:33]
    v_and_b32 v82, 0xffff, v82
    s_waitcnt vmcnt(0)
    v_readfirstlane_b32 s50, v32
    v_readfirstlane_b32 s51, v33
    v_readfirstlane_b32 s40, v34
    v_readfirstlane_b32 s46, v35
    v_xor_b32 v91, v88, v91
    v_xor_b32 v41, v82, v41
    v_or_b32 v19, v91, v41
    v_cmp_ne_u16 vcc, 0, v19
    s_xor_b64 s[50:51], s[50:51], s[32:33]
    s_or_b64 vcc, vcc, s[50:51]
    s_cbranch_vccz r_ldx""")
    spin(k, "r_ld", 2)
    k(f"""r_ldx:
    v_mul_f32 v80, s46, v91
    s_bfe_u32 s46, s40, 0x70005
    s_bfe_u32 s47, s40, 0x30002
    s_bfe_u32 s60, s40, 0x10001""")
    slot_of(63, 40)
    k(f"""s_add_u32 s63, s63, s45
    s_add_u32 s63, s63, {WS_SLOT}
    buffer_load_dword v44, v85, s[12:15], s63 offen sc1
    v_lshrrev_b32 v10, 2, v2
    v_lshlrev_b32 v10, 7, v10
    v_lshl_add_u32 v10, v4, 4, v10
    s_lshl_b32 s44, s18, 13
    s_and_b32 s42, s34, 4
    s_lshl_b32 s42, s42, 4
    s_add_u32 s44, s44, s42
    s_add_u32 s44, s44, {WS_PART}
    s_add_u32 s45, s44, 4096""")
    row_of(k, 41, 46, 47, 61)
    mirror_row(k, 61, 41)
    k("""s_cmp_eq_u32 s60, 1
    s_cselect_b32 s41, s61, s41
    s_lshl_b32 s41, s41, 11
    s_lshl_b32 s61, s18, 5
    s_add_u32 s41, s41, s61""")
    if E("OTOUCH", 1): k("s_mov_b64 exec, 1\nbuffer_load_dword v245, v5, s[24:27], s41 offen\ns_mov_b64 exec, -1\ns_waitcnt vmcnt(1)")
    else: k("s_waitcnt vmcnt(0)")
    k("""v_and_b32 v44, 0xffffff00, v44
    v_fmac_f32 v44, v91, v41""")
    stamp(k, 16)
    L = 16; U = 48
    for i in range(4): k(f"v_mov_b32 v{L+12+i}, v{216+i}")
    if E("SL4", 28): k(f"s_sleep {E('SL4', 28)}")
    k(f"""s_mov_b32 s83, 0
    s_mov_b64 s[64:65], -1
    s_mov_b64 s[66:67], -1
    s_mov_b64 s[68:69], -1
    s_mov_b32 s70, -1
    s_mov_b32 s71, 0
    r_p:""")
    for j in range(4):
        k(f"""s_mov_b64 exec, s[{64+2*j}:{65+2*j}]
        s_cbranch_execz r_q{j}
        buffer_load_dwordx4 v[{L+4*j}:{L+4*j+3}], v10, s[12:15], s{44 + (j >> 1)} offen offset:{(j&1)*2048} sc1
        r_q{j}:""")
    k("s_mov_b64 exec, -1\ns_waitcnt vmcnt(0)")
    for i in range(16): k(f"v_xor_b32 v{U+i}, v{216+(i&3)}, v{L+i}")
    for j in range(4):
        k(f"v_or3_b32 v{12+j}, v{U+4*j}, v{U+4*j+1}, v{U+4*j+2}")
    for j in range(4):
        k(f"v_or_b32 v{12+j}, v{12+j}, v{U+4*j+3}")
    for h in range(2):
        padd(k, U + 2*h, U + 2*h, U + 4 + 2*h); padd(k, U + 8 + 2*h, U + 8 + 2*h, U + 12 + 2*h)
    for j in range(4):
        k(f"v_cmp_ne_u16_sdwa s[{64+2*j}:{65+2*j}], v{12+j}, v11 src0_sel:BYTE_0 src1_sel:DWORD")
    for h in range(2): padd(k, U + 2*h, U + 2*h, U + 8 + 2*h)
    k("""s_or_b64 s[50:51], s[64:65], s[66:67]
    s_or_b64 s[52:53], s[68:69], s[70:71]
    s_or_b64 s[50:51], s[50:51], s[52:53]
    s_cbranch_scc1 r_r
    r_x:""")
    stamp(k, 17)
    k(f"v_permlane32_swap_b32 v{U}, v{U+2}\nv_permlane32_swap_b32 v{U+1}, v{U+3}")
    padd(k, U, U, U + 2)
    k(f"v_permlane16_swap_b32 v{U}, v{U+1}\nv_add_f32 v{U}, v{U}, v{U+1}")
    for sh in (4, 8): k(f"v_add_f32_dpp v{U}, v{U}, v{U} row_ror:{sh} {DPPM}")
    k(f"""v_fmac_f32 v44, v{U}, v80
    s_mov_b32 exec_lo, 0x000f000f
    s_mov_b32 exec_hi, 0x000f000f
    v_cvt_pk_bf16_f32 v44, v44, v44
    buffer_store_short v44, v5, s[24:27], s41 offen""")
    stamp_out(k, 0)
    k("s_endpgm\nx_pr:\ns_waitcnt vmcnt(0)")
    spin(k, "x_ph", 0)
    k("s_branch x_phx\nr_r:")
    spin(k, "r_p", E("RSL", 0))
    k("s_branch r_x")

def gen():
    k = K(NAME)
    stamp_init(k)
    k("""s_cmp_ge_u32 s2, 256
    s_cbranch_scc1 k_done""")
    stamp(k, 0)
    head(k)
    role_F(k)
    n0 = len(k.lines)
    role_G(k)
    g = k.lines[n0:]; f = k.lines[:n0]
    ix = lambda L, t: [x.strip() for x in L].index(t)
    a, b = ix(g, "@@L0@@"), ix(g, "@@L1@@")
    ld = g[a+1:b]; g = g[:a] + g[b+1:]
    a = ix(g, "@@L@@"); g = g[:a] + ld + g[a+1:]
    a = ix(f, "@@G@@"); k.lines = f[:a] + g + f[a+1:]
    k("k_done:\ns_endpgm")
    return k

HEADER = """; adaLN + FNet mixing + MoD block, gfx950.  Generated by gen/gen25.py (hand-written generator).
"""
def tables():
    import numpy as np
    def h2(a, b):
        return int(np.float16(a).view(np.uint16)) | (int(np.float16(b).view(np.uint16)) << 16)
    def f4(a): return int(np.float32(a).view(np.uint32))
    cs = lambda x: (math.cos(2 * math.pi * x), math.sin(2 * math.pi * x))
    w = []
    for var in range(2):
        for mt in range(2):
            for l in range(64):
                m, g = l & 15, l >> 4
                k1, p = 8 * mt + (m >> 1), m & 1
                for i in range(4):
                    j0 = 4 * g + (i ^ (2 * (g & 1)))
                    if var == 0:
                        c, s_ = cs((j0 * k1 % 16) / 16.0)
                        v = (h2(c, s_), h2(-s_, c))[p]
                    elif k1 == 0:
                        v = h2(1.0 if p == 0 else (-1.0) ** j0, 0)
                    elif k1 < 8:
                        c, s_ = cs((j0 * k1 % 16) / 16.0)
                        v = h2((c, -s_)[p], 0)
                    else:
                        c, s_ = cs(j0 * (8 + 16 * (k1 - 8)) / 256.0)
                        v = h2(0, (c, -s_)[p])
                    w.append(v)
    t = ".p2align 8\n.type tables,@object\ntables:\n"
    for i in range(0, len(w), 8):
        t += ".long " + ",".join("0x%x" % x for x in w[i:i+8]) + "\n"
    return t + f".size tables, {4*len(w)}\nall_end:\n"

def main(out):
    k = gen()
    t = HEADER + f"; @launch grid=(256,1,1) block=(512,1,1) lds={LDS}\n"
    t += '.amdgcn_target "amdgcn-amd-amdhsa--gfx950"\n.text\n' + k.text() + 'code_end:\n' + tables()
    t += '.section .rodata,"a"\n' + k.desc()
    open(out, "w").write(t)
if __name__ == "__main__":
    main(sys.argv[1] if len(sys.argv) > 1 else "adaLN_cond__spectral_fnet__moe_arch_mod__prompt.s")
```

```python
import math, sys, os
from asmgen import K, f32
from gen2 import (srd, P, padd, psub, pmul, pfma, pmul_s, pfma_s, psub_s, unpack_bf16, round_bf16, DPPM,
                  row_allreduce, wave_reduce_to63, pos16, stamp, stamp_init, stamp_out, chk_sent,
                  A_X, A_WR, A_WG, A_WU, A_WD, A_C, A_WM, A_OUT, A_DBG, A_WS, WS_SIZE)
from gen4 import E, SPIN, NAME

WS_Z    = 0x0100000
WS_STA  = 0x1000000
WS_STB  = 0x1008000
WS_GO   = 0x1010000
WS_REC  = 0x1012000
WS_FIN  = 0x1018000
FIN_T   = 4096
WS_HM   = 0x1080000
HM_B    = 0x20000
WS_MPA  = 0x1300000
WS_MPB  = 0x1380000
WS_PART = 0x1100000
WS_XA   = 0x1180000
WS_XB   = 0x11C0000
WS_KEY  = 0x1040000
WS_SLOT = 0x1200000
WS_SH   = 0x1060000
P_CS, P_SAS, P_GA, P_GAM, P_Q, P_QM, P_C1, P_C1M, P_SB, P_SBM, P_GB, P_GBM, P_END = (
    0, 2048, 4096, 8192, 12288, 16384, 20480, 24576, 28672, 32768, 36864, 40960, 45056)
L_C = 0; L_P = 16384; L_X = L_P + P_END; L_U = L_X + 32768; L_R = L_U + 32768; L_KEY = L_R + 32768
L_ST = L_KEY + 1024
LDS = 163840
XW = 64
assert L_KEY + 256 <= LDS
LOG2E = f32(-math.log2(math.e))
SL2 = E("SL2", 4)

class VM:
    def __init__(self, k): self.k = k; self.q = []
    def __call__(self, tag, text): self.k(text); self.q.append(tag)
    def wait(self, tag, extra=""):
        i = len(self.q) - 1 - self.q[::-1].index(tag)
        self.k(f"s_waitcnt vmcnt({len(self.q) - 1 - i}) {extra}")

def cmp_recs(k, base):
    k(f"v_cmp_ne_u64 vcc, s[32:33], v[{base}:{base+1}]")
def spin(k, lab, sl):
    k(f"""{f"s_sleep {sl}" if sl else ""}
    s_add_u32 s83, s83, 1
    s_cmp_lt_u32 s83, {SPIN}
    s_cbranch_scc1 {lab}""")
def poll_recs(k, lab, base, vaddr, soff, mask, sl=SL2):
    k(f"s_mov_b32 s83, 0\ns_mov_b64 exec, {mask}\n{lab}:")
    k(f"buffer_load_dwordx2 v[{base}:{base+1}], v{vaddr}, s[12:15], s{soff} offen sc1")
    k("s_waitcnt vmcnt(0)")
    cmp_recs(k, base)
    k(f"s_cbranch_vccz {lab}y")
    spin(k, lab, sl)
    k(f"{lab}y:\ns_mov_b64 exec, -1\n{lab}x:")
def poll_keys(k, lab, base, soff, tmp, sl=1):
    k(f"""v_lshlrev_b32 v{tmp}, 7, v2
    s_xor_b32 s42, s{soff}, 8192
    s_mov_b32 s83, 0
    s_mov_b64 vcc, -1
    s_mov_b64 s[40:41], -1
    {lab}:
    s_mov_b64 exec, vcc
    s_cbranch_execz {lab}a
    buffer_load_dwordx4 v[{base}:{base+3}], v{tmp}, s[12:15], s{soff} offen sc1
    {lab}a:
    s_mov_b64 exec, s[40:41]
    s_cbranch_execz {lab}b
    buffer_load_dwordx4 v[{base+4}:{base+7}], v{tmp}, s[12:15], s42 offen sc1
    {lab}b:
    s_mov_b64 exec, -1
    s_waitcnt vmcnt(0)
    {lab}c:
    v_cmp_ne_u32 vcc, s32, v{base+1}
    v_cmp_ne_u32 s[20:21], s33, v{base+3}
    v_cmp_ne_u32 s[40:41], s32, v{base+5}
    v_cmp_ne_u32 s[22:23], s33, v{base+7}
    v_max_u32 v{tmp+1}, v{base}, v{base+4}
    v_min_u32 v{tmp+2}, v{base}, v{base+4}
    s_or_b64 vcc, vcc, s[20:21]
    s_or_b64 s[40:41], s[40:41], s[22:23]
    s_or_b64 s[20:21], vcc, s[40:41]
    s_cbranch_scc0 {lab}x""")
    spin(k, lab, sl)
    k(f"{lab}x:")
def top2(k, base, tmp, skip=None):
    m1, m2, c = tmp + 1, tmp + 2, tmp + 3
    k(f"v_mov_b32 v{c}, v{m1}")
    k(f"v_max3_u32 v{m2}, v{m2}, v{base+2}, v{base+6}")
    wave_reduce_to63(k, [c], "v_max_u32")
    k(f"v_readlane_b32 s40, v{c}, 63")
    if skip: k(f"s_cmp_eq_u32 s65, 0\ns_cbranch_scc1 {skip}")
    k(f"v_cmp_eq_u32 vcc, s40, v{m1}")
    k(f"v_cndmask_b32 v{c}, v{m1}, v{m2}, vcc")
    wave_reduce_to63(k, [c], "v_max_u32")
    k(f"v_readlane_b32 s41, v{c}, 63")
def go_wait(k, lab, soff, vz, vd):
    poll_recs(k, lab, vd, vz, soff, "1", sl=E("SLG", 3))
    if E("SLG2", 1): k(f"s_sleep {E('SLG2', 1)}")
def nonce_issue(k, sp, off):
    k(f"s_load_dwordx2 s[32:33], s[{sp}:{sp+1}], {off}")
def nonce_finish(k, lab, sp, off, vt):
    k(f"""s_waitcnt lgkmcnt(0)
    s_cmp_lg_u32 s32, 0
    s_cbranch_scc1 {lab}x
    s_load_dwordx2 s[32:33], s[{sp}:{sp+1}], {off}
    s_mov_b32 s83, 0
    v_mov_b32 v{vt+2}, 0
    s_waitcnt lgkmcnt(0)
    {lab}:
    s_cmp_lg_u32 s32, 0
    s_cbranch_scc1 {lab}x
    global_load_dwordx2 v[{vt}:{vt+1}], v{vt+2}, s[{sp}:{sp+1}] sc1
    s_waitcnt vmcnt(0)
    v_readfirstlane_b32 s32, v{vt}
    v_readfirstlane_b32 s33, v{vt+1}""")
    spin(k, lab, 0)
    k(f"{lab}x:")
def rb2(k, v, t):
    k(f"v_cvt_pk_bf16_f32 v{t}, v{v}, v{v+1}")
    unpack_bf16(k, v, t)
def row_of(k, d, q, w, t1):
    k(f"""s_lshr_b32 s{t1}, s{q}, 4
    s_and_b32 s{d}, s{q}, 15
    s_lshl_b32 s{d}, s{d}, 4
    s_add_u32 s{d}, s{d}, s{t1}
    s_lshr_b32 s{t1}, s{q}, 3
    s_cmp_eq_u32 s{t1}, 1
    s_cselect_b32 s{t1}, 120, 0
    s_sub_u32 s{d}, s{d}, s{t1}
    s_lshl_b32 s{t1}, s{w}, 8
    s_add_u32 s{d}, s{d}, s{t1}
    s_cmp_ge_u32 s{w}, 4
    s_cselect_b32 s{t1}, 896, 0
    s_cmp_eq_u32 s{q}, 0
    s_cselect_b32 s{t1}, s{t1}, 0
    s_sub_u32 s{d}, s{d}, s{t1}""")
def mirror_row(k, d, t):
    k(f"""s_sub_u32 s{d}, 2048, s{t}
    s_cmp_eq_u32 s{t}, 0
    s_cselect_b32 s{d}, 1024, s{d}""")

def mtag(k, d, idx):
    k(f"""v_mov_b32 v{d}, s32
    v_mov_b32 v{d+1}, s33
    v_and_b32 v{d+2}, 7, v{idx}
    v_lshlrev_b32 v{d+2}, 3, v{d+2}
    v_lshrrev_b64 v[{d}:{d+1}], v{d+2}, v[{d}:{d+1}]""")
def mtag4(k, d):
    k(f"""v_mov_b32 v{d}, s32
    v_mov_b32 v{d+1}, s33
    v_and_b32 v{d+2}, 1, v0
    v_cmp_eq_u32 vcc, 1, v{d+2}
    v_cndmask_b32 v{d}, v{d}, v{d+1}, vcc
    v_bfe_u32 v{d+1}, v{d}, 8, 8
    v_bfe_u32 v{d+2}, v{d}, 16, 8
    v_lshrrev_b32 v{d+3}, 24, v{d}
    v_and_b32 v{d}, 0xff, v{d}""")
def htag(k, d):
    k(f"""s_and_b32 s{d}, s32, 0xffff
    s_lshr_b32 s{d+1}, s32, 16
    s_and_b32 s{d+2}, s33, 0xffff
    s_lshr_b32 s{d+3}, s33, 16""")
def btag(k, d):
    for i in range(8): k(f"s_bfe_u32 s{d+i}, s{32 + (i >> 2)}, {(8 << 16) | (8 * (i & 3))}")
def untag(k, regs, tg, acc, first=True):
    regs = list(regs)
    for i, r in enumerate(regs): k(f"v_xor_b32 v{r}, v{tg+(i&3)}, v{r}")
    for i in range(0, len(regs), 2):
        k(f"v_or3_b32 v{acc}, v{regs[i]}, v{regs[i+1]}, {'0' if first and i == 0 else f'v{acc}'}")
def tagchk(k, acc):
    k(f"v_and_b32 v{acc}, 0xff, v{acc}\nv_cmp_ne_u32 vcc, 0, v{acc}")

def stats(k, vm, pre, lastpre, extra=()):
    S = 108; R = 112
    k(f"s_mov_b32 s4, 0x3f803f80\ns_mov_b32 s5, {f32(1.0/1024)}")
    for h in range(2):
        for jj in range(2):
            vm.wait(f"x{h}{jj}")
            if h == 0 and jj == 0: nonce_issue(k, 20, 0)
            if 2*h + jj < len(extra): extra[2*h + jj]()
            for q in range(4):
                r = XW + 8*jj + 4*h + q
                first = (h == 0 and q == 0)
                k(f"v_dot2_f32_bf16 v{S+jj}, v{r}, s4, {'0' if first else f'v{S+jj}'}")
                k(f"v_dot2_f32_bf16 v{S+2+jj}, v{r}, v{r}, {'0' if first else f'v{S+2+jj}'}")
    k("s_nop 1")
    def red1(js):
        for j in js: k(f"v_permlane32_swap_b32 v{S+j}, v{S+j+1}")
        for j in js: k(f"v_add_f32 v{S+j}, v{S+j}, v{S+j+1}")
        regs = [S + j for j in js]
        row_allreduce(k, regs)
        for r in regs: k(f"v_add_f32_dpp v{r}, v{r}, v{r} row_bcast:15 row_mask:0xa bank_mask:0xf")
    red1((0, 2))
    k.c("lanes 31 / 63 hold the two rows")
    V = S + 2
    k(f"""v_mul_f32 v{S}, s5, v{S}
    v_mul_f32 v{V}, s5, v{V}
    v_mul_f32 v{R+4}, v{S}, v{S}
    v_cvt_pk_bf16_f32 v{R+5}, -v{S}, -v{S}
    v_sub_f32 v{V}, v{V}, v{R+4}
    v_mul_f32 v{R+6}, {f32(512.0)}, v{V}
    v_cmp_gt_f32 vcc, v{R+4}, v{R+6}
    v_readlane_b32 s40, v{R+5}, 31
    s_or_b32 s41, vcc_lo, vcc_hi
    s_bitcmp1_b32 s41, 31
    s_cbranch_scc1 {pre}_slowvar
    {pre}_var:""")
    round_bf16(k, V, V)
    k(f"v_add_f32 v{V}, {f32(1e-5)}, v{V}")
    round_bf16(k, V, V)
    k(f"v_sqrt_f32 v{V}, v{V}")
    k(f"s_and_b32 s40, s40, 0xffff\nv_mov_b32 v{R+2}, 0xffff0000")
    round_bf16(k, V, V)
    k(f"""v_mul_f32 v{V}, {f32(16.0)}, v{V}
    v_and_or_b32 v{R+2}, v{R+5}, v{R+2}, s40
    v_rcp_f32 v{R+1}, v{V}""")
    nonce_finish(k, f"{pre}_nn", 20, 64, 120)
    k(f"""v_mov_b32 v{R+3}, s32
    v_mov_b32_dpp v{R}, v{R+1} row_bcast:31 row_mask:0xc bank_mask:0xf
    v_mov_b32 v{R+4}, 0""")
    if lastpre: vm.wait(lastpre)
    k("s_mov_b32 exec_lo, 0\ns_mov_b32 exec_hi, 0x80000000")
    k(f"buffer_store_dwordx4 v[{R}:{R+3}], v{R+4}, s[12:15], s62 offen")
    k(f"v_lshlrev_b32 v{R+5}, 4, v1\nv_add_u32 v{R+5}, {L_ST}, v{R+5}\nds_write_b128 v{R+5}, v[{R}:{R+3}]")
    k("s_mov_b64 exec, -1")
    def slow():
        k.c("---- rare: |mean| >> std, recompute the variance in two passes ----")
        k(f"{pre}_slowvar:")
        U2 = 120
        k(f"v_lshlrev_b32 v{R+6}, 16, v{R+5}")
        k(f"v_readlane_b32 s44, v{R+6}, 31\nv_readlane_b32 s46, v{R+6}, 63")
        for jj in range(2):
            sr = 44 + 2 * jj
            for i in range(8):
                unpack_bf16(k, U2, XW + jj * 8 + i)
                k(f"v_pk_add_f32 {P(U2)}, {P(U2)}, s[{sr}:{sr+1}] op_sel_hi:[1,0]")
                if i == 0: pmul(k, U2 + 2, U2, U2)
                else: pfma(k, U2 + 2, U2, U2, U2 + 2)
            k(f"v_add_f32 v{S+2+jj}, v{U2+2}, v{U2+3}")
        k(f"v_add_f32 v{R+6}, v{R+6}, v{S}")
        red1((2,))
        k(f"""v_mul_f32 v{S+2}, s5, v{S+2}
        v_fma_f32 v{S+2}, -v{R+6}, v{R+6}, v{S+2}
        v_max_f32 v{S+2}, 0, v{S+2}
        s_branch {pre}_var""")
    return slow

def stats_b(k):
    k(f"""v_add_u32 v84, {L_ST}, v3
    s_mov_b64 exec, 0xff
    ds_read_b128 v[80:83], v84
    s_waitcnt lgkmcnt(0)
    buffer_store_dwordx4 v[80:83], v3, s[12:15], s63 offen sc1
    s_mov_b64 exec, -1""")

def head(k):
    k(f"""s_load_dwordx2 s[4:5], s[0:1], {A_X}
    s_load_dwordx4 s[24:27], s[0:1], {A_OUT}
    s_load_dwordx2 s[6:7], s[0:1], {A_WS}
    s_load_dwordx4 s[56:59], s[0:1], {A_C}
    s_load_dwordx4 s[48:51], s[0:1], {A_WR}
    s_load_dwordx4 s[52:55], s[0:1], {A_WU}
    s_memrealtime s[32:33]
    v_lshrrev_b32 v1, 6, v0
    v_and_b32 v2, 63, v0
    v_readfirstlane_b32 s16, v1
    v_lshlrev_b32 v3, 4, v2
    v_mov_b32 v4, 0
    s_getpc_b64 s[36:37]
    h_pc:
    s_and_b32 s34, s2, 7
    s_bfe_u32 s35, s2, 0x40003
    s_cmp_lg_u32 s16, 7
    s_cbranch_scc1 h_npf
    s_lshr_b32 s42, s2, 3
    s_lshl_b32 s42, s42, 11
    v_lshl_add_u32 v4, v2, 7, s42
    v_min_u32 v4, all_end-h_pc-4, v4
    s_mov_b64 exec, 0xffff
    global_load_dword v199, v4, s[36:37]
    s_mov_b64 exec, -1
    h_npf:
    s_mov_b32 s11, 0x00020000
    s_mov_b32 s14, {WS_SIZE}
    s_mov_b32 s15, 0x00020000
    s_bitcmp0_b32 s2, 7
    s_cbranch_scc1 g_start""")
HQ = ["x00", "x01", "x10", "x11", "touch"]

def role_F(k):
    vm = VM(k); vm.q = list(HQ)
    N16, G4, VO, TR, UW, XD, XDM, SLA, SLM, V70, FA, BP, A3 = 4, 5, 6, 8, 12, 13, 14, 15, 16, 17, 18, 19, 22
    ZL, W, D1R, D1I, BRE, BIM, TC, TS, XA2, XB2, GA, GAM, Q, QM, CS = 24, 40, 56, 72, 88, 104, 120, 136, 152, 168, 184, 200, 216, 232, 248
    AB, S, XB, AH, D0, D, UO, A2, UB = 216, 24, 40, 224, 228, 56, 184, 236, 152
    T = 248; TG = 244; FT = 8; PFD = 6; FLW = E("FLW", 4); XR = E("XR", 1)
    k(f"""s_lshl_b32 s60, s16, 19
    s_lshl_b32 s61, s35, 15
    s_add_u32 s60, s60, s61
    s_lshl_b32 s61, s34, 11
    s_add_u32 s60, s60, s61
    s_add_u32 s61, s60, 16384
    s_lshl_b32 s62, s34, 11
    s_lshl_b32 s63, s35, 7
    s_add_u32 s62, s62, s63
    s_add_u32 s63, s62, {WS_STB}
    s_lshl_b32 s42, s16, 4
    s_add_u32 s62, s62, s42
    s_add_u32 s62, s62, {WS_STA}
    v_mov_b32 v116, 0
    s_mov_b32 s10, {2048*1024*2}
    s_waitcnt lgkmcnt(0)
    s_mov_b32 s8, s4
    s_mov_b32 s9, s5
    s_mov_b32 s12, s6
    s_mov_b32 s13, s7""")
    stamp(k, 1)
    for h in range(2):
        for jj in range(2):
            k(f"buffer_load_dwordx4 v[{XW+8*jj+4*h}:{XW+8*jj+4*h+3}], v3, s[8:11], s{60+jj} offen offset:{h*1024}")
    k(f"""s_mov_b64 exec, 1
    buffer_load_dword v215, v116, s[12:15], s62 offen sc1
    s_mov_b64 exec, -1
    s_branch f_start
    @@G@@
    f_start:
    s_mov_b32 s20, s26
    s_mov_b32 s21, s27
    s_mov_b32 s26, 4194304
    s_mov_b32 s27, 0x00020000
    s_mov_b32 s22, s50
    s_mov_b32 s23, s51
    s_mov_b32 s28, s54
    s_mov_b32 s29, s55
    s_add_u32 s58, s36, tables-h_pc
    s_addc_u32 s59, s37, 0""")
    k.c("s36 = k0 slot of this wave in the second radix-16 step ; s37 = column-block pair read after the exchange")
    k(f"""s_lshr_b32 s36, s35, 1
    s_and_b32 s36, s36, 4
    s_xor_b32 s36, s36, s16
    s_and_b32 s37, s34, 4
    s_xor_b32 s37, s37, s16""")
    k(f"""s_lshl_b32 s3, s34, 4
    s_add_u32 s3, s3, s35
    v_and_b32 v{N16}, 15, v0
    v_bfe_u32 v{G4}, v0, 4, 2
    v_lshrrev_b32 v{T}, 3, v2
    v_lshlrev_b32 v{T}, 18, v{T}
    v_lshlrev_b32 v{T+1}, 1, v{G4}
    v_xor_b32 v{T+1}, v{T+1}, v0
    v_and_b32 v{T+1}, 7, v{T+1}
    v_lshl_add_u32 v{T+7}, v{T+1}, 4, v{T}
    v_lshlrev_b32 v{VO}, 16, v{G4}
    v_lshl_add_u32 v{VO}, v{N16}, 4, v{VO}
    s_lshl_b32 s60, s16, 15
    s_lshl_b32 s61, s34, 11
    s_add_u32 s60, s60, s61
    s_lshl_b32 s61, s35, 7
    s_add_u32 s60, s60, s61
    s_lshl_b32 s61, s16, 12
    s_add_u32 s61, s61, {L_X}
    s_lshl_b32 s64, s36, 19
    s_lshl_b32 s65, s35, 3
    s_and_b32 s66, s34, 1
    s_lshl_b32 s66, s66, 2
    s_add_u32 s65, s65, s66
    s_lshr_b32 s66, s34, 1
    s_add_u32 s65, s65, s66
    s_lshl_b32 s65, s65, 8
    s_add_u32 s64, s64, s65
    s_add_u32 s64, s64, {WS_Z}
    s_add_u32 s65, s64, 32768
    s_add_u32 s66, s64, {8*32768}
    s_add_u32 s67, s64, {9*32768}
""")
    def tile(i):
        k(f"s_mov_b32 m0, s61\ns_add_u32 s42, s60, {(i&1)*8*262144 + (i>>1)*16384}\ns_add_u32 s61, s61, 1024")
        vm("tile", f"buffer_load_dwordx4 v{T+7}, s[8:11], s42 offen lds")
    def tabs():
        k(f"""s_cmp_eq_u32 s36, 0
        s_cselect_b32 s42, 2048, 0
        v_add_u32 v{T}, s42, v3""")
        vm("tab", f"global_load_dwordx4 v[{A2}:{A2+3}], v{T}, s[58:59]")
        vm("tab", f"global_load_dwordx4 v[{A2+4}:{A2+7}], v{T}, s[58:59] offset:1024")
    def tabs2():
        k(f"s_lshl_b32 s42, s16, 11\ns_mov_b32 m0, s42\nv_add_u32 v{T}, s42, v3")
        vm("tab", f"global_load_lds_dwordx4 v{T}, s[58:59]")
        vm("tab", f"global_load_lds_dwordx4 v{T}, s[58:59] offset:1024")
    TL = E("TL", 2)
    k("s_barrier")
    tabs()
    if TL == 0:
        for i in range(4): tile(i)
    def rowaddr():
        row_of(k, 30, 3, 16, 42)
        mirror_row(k, 31, 30)
        k(f"""s_lshl_b32 s18, s30, 11
        s_lshl_b32 s19, s31, 11
        s_sub_u32 s75, s19, 2048
        s_lshl_b32 s68, s16, 12
        s_add_u32 s68, s68, {L_R}""")
    rowaddr()
    def vtab():
        k.c("tables of the 1024-point DFT: waves 0-3 one quarter of the 32-point matrix each, waves 4-7 of the twiddle factors")
        TB = 152
        k(f"""v_bfe_u32 v{T}, v0, 2, 1
        v_bfe_u32 v{T+1}, v0, 3, 2
        v_lshlrev_b32 v{T+1}, 2, v{T+1}
        v_lshl_add_u32 v{T}, v{T}, 4, v{T+1}
        v_and_or_b32 v{T}, v0, 3, v{T}
        v_bfe_u32 v{T+1}, v0, 5, 3
        v_cvt_f32_u32 v{T}, v{T}
        v_cvt_f32_u32 v{T+1}, v{T+1}
        s_cmp_lt_u32 s16, 4
        s_mov_b32 s42, {f32(1.0/32)}
        s_cselect_b32 s42, s42, {f32(1.0/1024)}
        v_mul_f32 v{T}, s42, v{T}
        v_mul_f32 v{T+1}, 4.0, v{T+1}
        v_mul_f32 v{TB}, v{T}, v{T+1}""")
        for i in range(1, 4): k(f"v_add_f32 v{TB+i}, v{TB+i-1}, v{T}")
        for i in range(4): k(f"v_sin_f32 v{TB+4+i}, v{TB+i}")
        for i in range(4): k(f"v_cos_f32 v{TB+i}, v{TB+i}")
        k("s_cbranch_scc0 f_tw")
        for i in range(4):
            k(f"v_cvt_pk_f16_f32 v{TB+8}, v{TB+i}, v{TB+4+i}")
            k(f"v_cvt_pk_f16_f32 v{TB+4+i}, -v{TB+4+i}, v{TB+i}")
            k(f"v_mov_b32 v{TB+i}, v{TB+8}")
        k(f"""f_tw:
        s_and_b32 s42, s16, 4
        s_add_u32 s42, s42, s16
        s_lshl_b32 s42, s42, 10
        v_add_u32 v{T}, s42, v3
        ds_write_b128 v{T}, v[{TB}:{TB+3}] offset:{L_C}
        ds_write_b128 v{T}, v[{TB+4}:{TB+7}] offset:{L_C+4096}""")
    VT = E("VT", 0)
    if VT == 0: vtab()
    k.c("first-step matrix: lane m = 2*k0+p, rows j1 = 4g+i, angle k0*(16*j1+j0)/256")
    k(f"""v_lshrrev_b32 v{T}, 1, v{N16}
    v_and_b32 v{T+1}, 1, v0
    v_cmp_eq_u32 vcc, 1, v{N16}
    v_cndmask_b32_e64 v{T+2}, v{T}, 0, vcc
    v_cndmask_b32_e64 v{T}, v{T}, 8, vcc
    v_cndmask_b32_e64 v{T+1}, v{T+1}, 0, vcc
    v_mad_u32_u24 v{T+3}, v{T}, v{G4}, v{T+1}
    v_lshlrev_b32 v{T+3}, 5, v{T+3}
    v_mad_u32_u24 v{T+3}, v{T+2}, v1, v{T+3}
    v_cvt_f32_u32 v{T}, v{T}
    v_cvt_f32_u32 v{T+2}, v{T+2}
    v_cvt_f32_u32 v{T+3}, v{T+3}
    v_mul_f32 v{T}, {f32(1.0/16)}, v{T}
    v_mul_f32 v{T+2}, {f32(1.0/256)}, v{T+2}
    v_mul_f32 v{AB}, {f32(1.0/128)}, v{T+3}""")
    for i in range(1, 4): k(f"v_add_f32 v{AB+i}, v{AB+i-1}, v{T}")
    for i in range(4): k(f"v_add_f32 v{AB+4+i}, v{AB+i}, v{T+2}")
    for i in range(8): k(f"v_cos_f32 v{AB+i}, v{AB+i}")
    UWA, URA = 212, 213
    k(f"""v_lshrrev_b32 v{T}, 2, v2
    v_lshlrev_b32 v{TR}, 7, v{T}
    v_bfe_u32 v{T}, v0, 3, 2
    v_lshl_add_u32 v{TR}, v{T}, 5, v{TR}
    v_and_b32 v{T}, 3, v0
    v_lshl_add_u32 v{TR}, v{T}, 3, v{TR}
    v_lshl_add_u32 v{TR}, v1, 12, v{TR}
    v_xor_b32 v{TR+1}, 32, v{TR}
    v_xor_b32 v{TR+2}, 64, v{TR}
    v_xor_b32 v{TR+3}, 96, v{TR}
    v_lshlrev_b32 v{UW}, 13, v{G4}
    v_lshl_add_u32 v{UW}, v{N16}, 4, v{UW}
    v_lshlrev_b32 v7, 5, v{G4}
    v_and_b32 v{T}, 1, v0
    v_lshl_add_u32 v7, v{T}, 10, v7
    v_and_b32 v{T}, 2, v0
    v_lshl_add_u32 v7, v{T}, 3, v7
    s_lshl_b32 s70, s34, 11
    s_lshl_b32 s71, s16, 7
    s_add_u32 s71, s71, s70
    s_add_u32 s71, s71, {WS_STA}
    s_lshl_b32 s42, s16, 7
    s_add_u32 s42, s42, {L_U}
    v_lshlrev_b32 v{URA}, 3, v{N16}
    v_lshl_add_u32 v{UWA}, v{G4}, 13, v{URA}
    v_add_u32 v{UWA}, s42, v{UWA}
    s_lshl_b32 s42, s36, 12
    s_add_u32 s42, s42, {L_U}
    v_lshl_add_u32 v{URA}, v{G4}, 8, v{URA}
    v_and_b32 v{URA+1}, 16, v0
    v_lshl_add_u32 v{URA}, v{URA+1}, 3, v{URA}
    v_add_u32 v{URA}, s42, v{URA}
    v_xor_b32 v{URA+1}, 128, v{URA}""")
    slow1 = stats(k, vm, "f", None, [(lambda i=i: tile(i)) for i in range(4)] if TL == 1 else ())
    vm.q.append("sta")
    if TL == 3: k("s_barrier")
    if TL >= 2:
        for i in range(4): tile(i)
    k.c("the first row is this wave's output row: keep it")
    k(f"v_add_u32 v{T}, s68, v3")
    for h in range(2): k(f"ds_write_b128 v{T}, v[{XW+4*h}:{XW+4*h+3}] offset:{h*1024}")
    if VT == 1: vtab()
    k.c("tag bits: 8 bits of the nonce per 16-byte piece, all 64 bits over eight neighbouring lanes")
    k(f"""v_mov_b32 v{TG}, s32
    v_mov_b32 v{TG+1}, s33
    v_and_b32 v{T}, 4, v0
    v_cmp_eq_u32 vcc, 4, v{T}
    v_and_b32 v{T}, 3, v0
    v_lshlrev_b32 v{T}, 2, v{T}
    v_cndmask_b32 v{TG}, v{TG}, v{TG+1}, vcc
    v_lshrrev_b32 v{TG}, v{T}, v{TG}
    s_mov_b32 s54, 0x00010001
    s_mov_b32 s55, 0xfffefffe
    s_mov_b32 s46, 0x05040100
    s_mov_b32 s47, 0x07060302""")
    for i in range(1, 4): k(f"v_lshrrev_b32 v{TG+i}, {i}, v{TG}")
    for i in range(4): k(f"v_and_b32 v{TG+i}, s54, v{TG+i}")
    k.c("---- LN1 statistics of this wave's 32 rows (same-die copy first, now and then the write-through copy) ----")
    stl = lambda so: f"""s_mov_b32 exec_lo, 0x000f000f
    s_mov_b32 exec_hi, 0x000f000f
    buffer_load_dwordx4 v[{S}:{S+3}], v7, s[12:15], s{so} offen sc1"""
    k(f"s_waitcnt vmcnt({E('STW', 2)})")
    k(stl(71) + "\ns_mov_b64 exec, -1\ns_mov_b32 s83, 0\ns_waitcnt vmcnt(1)")
    stamp(k, 2)
    for jj in range(2):
        for nt in range(4):
            b = XB + (jj*4 + nt)*2
            k(f"ds_read_b64_tr_b16 v[{b}:{b+1}], v{TR+nt} offset:{L_X + jj*2048}")
    k(f"""s_mov_b32 exec_lo, 0x000f000f
    s_mov_b32 exec_hi, 0x000f000f
    f_st:
    s_waitcnt vmcnt(0)
    v_cmp_ne_u32 vcc, s32, v{S+3}
    s_mov_b64 exec, -1
    s_cbranch_vccnz f_str
    f_stx:
    s_setprio 3""")
    def st_retry():
        k(f"""f_str:
        s_and_b32 s42, s83, 31
        s_cmp_lg_u32 s42, 24
        s_cbranch_scc1 f_sb1""")
        stats_b(k)
        k(f"""f_sb1:
        s_cmp_eq_u32 s42, 31
        s_cselect_b32 s42, {WS_STB - WS_STA}, 0
        s_add_u32 s42, s42, s71""")
        if E("SLS", 0): k(f"s_sleep {E('SLS', 0)}")
        k(stl(42))
        spin(k, "f_st", 0)
        k("s_waitcnt vmcnt(0)\ns_mov_b64 exec, -1\ns_branch f_stx")
    vm.q = []
    stamp(k, 3)
    BM = S + 4; MM = S + 8
    for i in range(4): k(f"v_mov_b32_dpp v{MM+i}, v{S+2} row_newbcast:{i} {DPPM}")
    for jj in range(2):
        for i in range(4):
            k(f"v_mul_f32_dpp v{AB+4*jj+i}, v{S+jj}, v{AB+4*jj+i} row_newbcast:{i} {DPPM}")
        for hh in range(2): k(f"v_perm_b32 v{BM+2*jj+hh}, v{MM+2*hh+1}, v{MM+2*hh}, s{46+jj}")
        for hh in range(2): k(f"v_cvt_pk_bf16_f32 v{AH+2*jj+hh}, v{AB+4*jj+2*hh}, v{AB+4*jj+2*hh+1}")
        k(f"v_mfma_f32_16x16x16_bf16 v[{D0+4*jj}:{D0+4*jj+3}], v[{AH+2*jj}:{AH+2*jj+1}], v[{BM+2*jj}:{BM+2*jj+1}], 0")
    k("s_waitcnt lgkmcnt(0)")
    def s1m(nt):
        for jj in range(2):
            d = D + (nt*2 + jj)*4; b = XB + (jj*4 + nt)*2
            k(f"v_mfma_f32_16x16x16_bf16 v[{d}:{d+3}], v[{AH+2*jj}:{AH+2*jj+1}], v[{b}:{b+1}], v[{D0+4*jj}:{D0+4*jj+3}]")
    def s1c(nt):
        for ii in range(2):
            for jj in range(2):
                d = D + (nt*2 + jj)*4
                k(f"v_cvt_pk_f16_f32 v{UO+(nt*2+ii)*2+jj}, v{d+2*ii}, v{d+2*ii+1}")
            u = UO + (nt*2 + ii)*2
            k(f"ds_write_b64 v{UWA}, v[{u}:{u+1}] offset:{ii*4096 + nt*1024}")
    def early():
        k("s_mov_b32 m0, s68\ns_cmp_eq_u32 s34, 0\ns_cbranch_scc1 f_r0\nf_nr:")
        if EP == 3: return
        for u in range(2): k(f"buffer_load_dwordx4 v3, s[8:11], s75 offen offset:{2048+u*1024} lds")
    EP = 0
    s1m(0); s1m(1)
    if EP in (0, 3): early()
    s1m(2); s1c(0); s1m(3); s1c(1); s1c(2); s1c(3)
    k("s_waitcnt lgkmcnt(0)\ns_barrier")
    for nt in range(4):
        for h in range(2): k(f"ds_read_b64 v[{UB+4*nt+2*h}:{UB+4*nt+2*h+1}], v{URA+h} offset:{nt*1024}")
    if EP == 1: early()
    for mt in range(2):
        for nt in range(4):
            if mt == 0: k(f"s_waitcnt lgkmcnt({6-2*nt})")
            d = D + (mt*4 + nt)*4
            k(f"v_mfma_f32_16x16x32_f16 v[{d}:{d+3}], v[{A2+4*mt}:{A2+4*mt+3}], v[{UB+4*nt}:{UB+4*nt+3}], 0")
    for mt in range(2):
        for ii in range(2):
            o = UO + (mt*2 + ii)*4
            for nt in range(4):
                d = D + (mt*4 + nt)*4
                k(f"v_cvt_pk_f16_f32 v{o+nt}, v{d+2*ii}, v{d+2*ii+1}")
            for nt in range(4): k(f"v_and_or_b32 v{o+nt}, v{o+nt}, s55, v{TG+nt}")
            vm("z", f"buffer_store_dwordx4 v[{o}:{o+3}], v{VO}, s[12:15], s{64+mt*2+ii} offen sc1")
    stamp(k, 4)
    XRA, XRB = 200, 208
    k("s_setprio 0")
    k.c("radix-8 matrix: lane m = 2*kk+p, inputs r = 2g, 2g+1, angle r*t/2048")
    k("s_mov_b32 s43, 0")
    row_of(k, 40, 3, 43, 42)
    k(f"""v_lshrrev_b32 v{T}, 1, v{N16}
    v_and_b32 v{T+1}, 1, v0
    v_lshlrev_b32 v{T+2}, 8, v{T}
    v_add_u32 v{T+2}, s40, v{T+2}
    s_cmp_lg_u32 s3, 0
    s_cbranch_scc1 f_a3n
    v_cmp_lt_u32 s[44:45], 3, v{T}
    v_subrev_u32 v{T+3}, 896, v{T+2}
    v_cndmask_b32 v{T+2}, v{T+2}, v{T+3}, s[44:45]
    v_cmp_eq_u32 vcc, 1, v{N16}
    v_mov_b32 v{T+3}, 1024
    v_cndmask_b32 v{T+2}, v{T+2}, v{T+3}, vcc
    v_cndmask_b32_e64 v{T+1}, v{T+1}, 0, vcc
    f_a3n:
    v_lshlrev_b32 v{T+3}, 1, v{G4}
    v_mul_u32_u24 v{T+3}, v{T+3}, v{T+2}
    v_lshl_add_u32 v{T+3}, v{T+1}, 9, v{T+3}
    v_add_u32 v{T+5}, v{T+3}, v{T+2}
    v_add_u32 v{T+4}, 1536, v{T+3}
    v_add_u32 v{T+6}, 1536, v{T+5}""")
    for i in range(3, 7): k(f"v_and_b32 v{T+i}, 2047, v{T+i}")
    for i in range(3, 7): k(f"v_cvt_f32_u32 v{T+i}, v{T+i}")
    for i in range(3, 7): k(f"v_mul_f32 v{T+i}, {f32(1.0/2048)}, v{T+i}")
    for i in range(3, 7): k(f"v_cos_f32 v{T+i}, v{T+i}")
    k(f"""s_cbranch_scc1 f_a3m
    v_cmp_gt_u32 vcc, 2, v{N16}
    v_cndmask_b32_e64 v{T+1}, 1.0, 0.5, vcc
    v_mul_f32 v{T+3}, v{T+3}, v{T+1}
    v_mul_f32 v{T+5}, v{T+5}, v{T+1}
    v_cndmask_b32 v{T+4}, 0, v{T+3}, s[44:45]
    v_cndmask_b32 v{T+6}, 0, v{T+5}, s[44:45]
    v_cndmask_b32 v{T+3}, v{T+3}, 0, s[44:45]
    v_cndmask_b32 v{T+5}, v{T+5}, 0, s[44:45]
    f_a3m:
    v_cvt_pk_f16_f32 v{A3}, v{T+3}, v{T+4}
    v_cvt_pk_f16_f32 v{A3+1}, v{T+5}, v{T+6}""")
    k(f"""v_and_b32 v{T}, 3, v0
    v_bfe_u32 v{T+1}, v0, 2, 1
    v_bfe_u32 v{T+2}, v0, 3, 2
    v_bfe_u32 v{T+3}, v0, 5, 1
    v_lshlrev_b32 v{XD}, 10, v{T+1}
    v_lshlrev_b32 v{SLA}, 11, v{T+1}
    v_lshl_add_u32 v{SLA}, v{T+3}, 8, v{SLA}
    v_lshl_add_u32 v{SLA}, v{T+2}, 6, v{SLA}
    v_lshl_add_u32 v{SLA}, v{T}, 4, v{SLA}
    v_lshl_add_u32 v{XD}, v{T+2}, 8, v{XD}
    v_lshl_add_u32 v{XD}, v{T}, 6, v{XD}
    v_lshl_add_u32 v{XD}, v{T+3}, 5, v{XD}
    v_xor_b32 v{XDM}, 2016, v{XD}
    v_add_u32 v{XD}, s68, v{XD}
    v_add_u32 v{XDM}, s68, v{XDM}""")
    def xr_read():
        for n in range(1 if EP == 3 else 2):
            for u in range(2):
                k(f"ds_read_b128 v[{XRA+8*n+4*u}:{XRA+8*n+4*u+3}], v{(XD, XDM)[n]} offset:{n*2048+u*16}")
    def xr_unpack():
        for i in range(8): unpack_bf16(k, XA2 + 2*i, XRA + i)
        if EP != 3: xb_unpack(XRB)
    def xb_unpack(XRB):
        for p in range(16):
            src = XRB + (p >> 1); dst = XB2 + ((16 - p) & 15)
            k(f"v_and_b32 v{dst}, 0xffff0000, v{src}" if p & 1 else f"v_lshlrev_b32 v{dst}, 16, v{src}")
    if EP == 2: early()
    else:
        k("s_waitcnt vmcnt(4)")
        xr_read()
    def setup_late():
        k(f"""v_xor_b32 v{SLM}, {2048+256+192+48}, v{SLA}
        v_subrev_u32 v{T}, s68, v{XD}
        v_add_u32 v{T}, 32, v{T}
        v_bfe_u32 v{BP}, v{T}, 5, 1
        v_lshlrev_b32 v{BP}, 5, v{BP}
        v_bfe_u32 v{T+1}, v{T}, 8, 2
        v_lshl_add_u32 v{BP}, v{T+1}, 3, v{BP}
        v_bfe_u32 v{T+1}, v{T}, 10, 1
        v_lshl_add_u32 v{BP}, v{T+1}, 2, v{BP}
        v_bfe_u32 v{T+1}, v{T}, 6, 2
        v_add_lshl_u32 v{BP}, v{T+1}, v{BP}, 2
        s_lshl_b32 s74, s34, 14
        s_add_u32 s74, s74, {WS_KEY}
        s_lshl_b32 s42, s37, 9
        s_add_u32 s42, s42, {L_X}
        v_add_u32 v{UW}, s42, v{UW}""")
        k.c("w_down tile [64 x 512] of cluster s17 (none: empty descriptor)")
        k(f"""s_mul_i32 s17, s34, 7
        s_lshr_b32 s42, s35, 1
        s_add_u32 s17, s17, s42
        s_lshl_b32 s42, s17, 6
        s_lshr_b32 s43, s16, 2
        s_lshl_b32 s43, s43, 5
        s_add_u32 s42, s42, s43
        s_and_b32 s43, s16, 1
        s_lshl_b32 s43, s43, 4
        s_add_u32 s42, s42, s43
        s_and_b32 s43, s16, 2
        s_lshl_b32 s43, s43, 1
        s_add_u32 s42, s42, s43
        s_lshl_b32 s38, s42, 11
        s_and_b32 s43, s35, 1
        s_lshl_b32 s43, s43, 10
        s_add_u32 s38, s38, s43
        s_lshl_b32 s39, s16, 13
        s_add_u32 s39, s39, {L_U}
        s_mov_b32 s48, s28
        s_mov_b32 s49, s29
        s_mov_b32 s50, {1024*3584*2}
        s_mov_b32 s51, 0x00020000""")
    def side():
        k(f"""s_lshl_b32 s80, s3, 7
        s_add_u32 s80, s80, {WS_KEY}
        v_lshrrev_b32 v{FA}, 3, v2
        v_lshlrev_b32 v{FA}, 14, v{FA}
        v_and_b32 v{T}, 0x70, v3
        v_add_u32 v{FA}, v{FA}, v{T}
        s_cmp_lg_u32 s16, 0
        s_cbranch_scc1 f_sb2""")
        stats_b(k)
        if E("KWARM", 1):
            k.c("the key lines are written once so that an early reader does not go to HBM")
            k(f"""v_not_b32 v{T+1}, s32
            buffer_store_dwordx4 v[{T}:{T+3}], v{FA}, s[12:15], s80 offen sc1""")
        k("f_sb2:")
    k(f"""s_lshl_b32 s72, s3, 15
    s_lshl_b32 s73, s37, 12
    s_add_u32 s72, s72, s73
    s_add_u32 s72, s72, {WS_Z}
""")
    k("s_waitcnt lgkmcnt(0)")
    for a_, base in enumerate((BRE, BIM, TC, TS)):
        for q in range(4):
            k(f"ds_read_b128 v[{base+4*q}:{base+4*q+3}], v3 offset:{L_C+a_*4096+q*1024}")
    if EP != 2: xr_unpack()
    else: setup_late()
    k(f"s_waitcnt vmcnt({E('ZW', 0) + (2 if EP == 2 else 0)})")
    stamp(k, 5)
    k("s_barrier")
    if E("ZDEL", 0): k(f"s_sleep {E('ZDEL', 0)}")
    for i in range(4):
        k(f"buffer_load_dwordx4 v[{ZL+4*i}:{ZL+4*i+3}], v3, s[12:15], s72 offen offset:{i*1024} sc1")
    if EP != 2: side()
    if EP != 2: setup_late()
    else:
        k("s_waitcnt vmcnt(4)")
        xr_read()
        k("s_waitcnt lgkmcnt(0)")
        xr_unpack()
        side()
    DN = [int(x) for x in os.environ.get("DN", "3,0,5").split(",")]
    assert XR != 2
    def down(site, t):
        d0 = sum(DN[:site])
        if DN[site] == 0 or E("NOW", 0) or E("NOD", 0): return
        k(f"s_cmp_ge_u32 s35, 14\ns_cbranch_scc1 f_nd{site}")
        for d in range(d0, d0 + DN[site]):
            rows = 8 * (d >> 2) + (d & 3)
            k(f"s_add_u32 s43, s39, {d*1024}\ns_mov_b32 m0, s43\ns_add_u32 s42, s38, {rows*2048}")
            if d: k(f"v_xor_b32 v{t}, {d*32}, v3")
            k(f"buffer_load_dwordx4 v{t if d else 3}, s[48:51], s42 offen nt lds")
        k(f"f_nd{site}:")
    if EP != 3: btag(k, 4)
    else:
        k(f"""s_lshl_b32 s42, s16, 11
        s_add_u32 s42, s42, {L_P + P_SB}
        s_mov_b32 m0, s42
        s_sub_u32 s42, s68, s42
        v_subrev_u32 v21, s42, v{XDM}""")
    E3 = 2 if EP == 3 else 0
    def mrow():
        if EP == 3:
            for u in range(2): k(f"buffer_load_dwordx4 v3, s[8:11], s19 offen offset:{u*1024} lds")
    k.c("wave a = w&3 handles columns 4a..4a+3 of every lane's block: natural, mirrored (two) and f16 positions")
    PN, PM0, PM1, PH, FV = 4, 5, 6, 235, 236
    k(f"""v_lshlrev_b32 v{V70}, 7, v{N16}
    s_and_b32 s40, s16, 3
    s_lshl_b32 s76, s40, 10
    v_subrev_u32 v{T}, s68, v{XD}
    v_lshrrev_b32 v{T}, 1, v{T}
    s_lshl_b32 s42, s40, 2
    v_add_u32 v{T}, s42, v{T}""")
    pos16(k, PH, T, T + 1)
    mtag4(k, FT)
    k(f"""s_add_u32 s76, s76, {WS_FIN}
    s_mov_b32 s77, {WS_REC}
    s_xor_b32 s79, s35, {E("GOMM", 1)}
    s_xor_b32 s43, s16, {E("GOW", 5)}
    s_or_b32 s79, s79, s43""")
    k.c("finished modulation vectors: waves 0-3 take the records, (sa,) q, 1+ca and ga")
    FL = GA
    k(f"""s_add_u32 s65, s76, 4096
    s_lshl_b32 s42, s16, 11
    v_add_u32 v4, s42, v3
    s_add_u32 s64, s42, {WS_FIN + FIN_T + P_GA}
    s_lshl_b32 s42, s16, 12
    s_add_u32 s42, s42, {L_X}
    v_add_u32 v7, s42, v3
    v_mov_b32 v20, {L_KEY + 64}
    s_cmp_eq_u32 s3, 0
    s_cselect_b64 s[52:53], -1, 1""")
    def fin1():
        k(f"""s_mov_b64 exec, 0xf0ff
        buffer_load_dwordx4 v[{FV}:{FV+3}], v{V70}, s[12:15], s77 offen sc1
        s_mov_b64 exec, s[52:53]
        buffer_load_dwordx4 v[{FL+12}:{FL+15}], v3, s[12:15], s76 offen sc1
        s_mov_b64 exec, -1""")
        k(f"buffer_load_dwordx4 v[{FL+8}:{FL+11}], v3, s[12:15], s65 offen sc1")
        finb()
    def finb():
        for i in range(2): k(f"buffer_load_dwordx4 v[{FL+4*i}:{FL+4*i+3}], v3, s[12:15], s64 offen offset:{i*1024} sc1")

    for i in range(4): k(f"v_mov_b32 v{FL+12+i}, v{FT+i}")
    def tab16(v, off):
        k(f"""v_cvt_pk_f16_f32 v{v}, v{v}, v{v+1}
        v_cvt_pk_f16_f32 v{v+2}, v{v+2}, v{v+3}
        ds_write_b16 v{PH}, v{v} offset:{L_P+off}
        ds_write_b16_d16_hi v{PH}, v{v} offset:{L_P+off+16}
        ds_write_b16 v{PH}, v{v+2} offset:{L_P+off+32}
        ds_write_b16_d16_hi v{PH}, v{v+2} offset:{L_P+off+48}""")
    def pread(off, base):
        return [f"ds_read_b128 v[{base+4*q}:{base+4*q+3}], v3 offset:{L_P+off+q*1024}" for q in range(4)]
    ZC = W; ZT = T
    def zx(cbi):
        for nt in range(4):
            for p in range(2):
                k(f"v_xor_b32 v{ZC+8*cbi+2*nt+p}, v{ZL+8*cbi+4*p+nt}, v{TG+nt}")
    def r8(cbi):
        for nt in (0, 2, 1, 3):
            b = ZC + 8*cbi + 2*nt; d = D1R + (cbi*4 + nt)*4
            k(f"v_mfma_f32_16x16x16_f16 v[{d}:{d+3}], v[{A3}:{A3+1}], v[{b}:{b+1}], 0")
            k(f"v_or3_b32 v{ZT}, v{b}, v{b+1}, {'0' if cbi + nt == 0 else f'v{ZT}'}")
    k(f"""s_mov_b32 s83, 0
    s_cmp_ge_u32 s16, 4
    s_cbranch_scc1 f_z1
    s_waitcnt vmcnt({E('F1W', 6)})""")
    stamp(k, 31)
    fin1()
    k.c("---- radix-8 over r ----")
    k("s_waitcnt vmcnt(7)")
    mrow()
    zx(0); r8(0)
    k(f"s_waitcnt vmcnt(5)\ns_branch f_z2\nf_z1:\ns_waitcnt vmcnt({E('F2W', 4)})")
    finb()
    k("s_waitcnt vmcnt(4)\nf_zc:")
    zx(0); r8(0)
    k("s_waitcnt vmcnt(2)\nf_z2:")
    stamp(k, 6)
    zx(1); r8(1)
    k(f"""v_and_b32 v{ZT}, s54, v{ZT}
    v_cmp_ne_u32 vcc, 0, v{ZT}
    s_cbranch_vccnz f_zr
    f_zx:""")
    stamp(k, 7)
    for bh in range(2):
        for ii in range(2):
            o = ZL + (bh*2 + ii)*4
            for cbi in range(2):
                for al in range(2):
                    d = D1R + (cbi*4 + 2*al + bh)*4
                    k(f"v_cvt_pk_f16_f32 v{o+2*cbi+al}, v{d+2*ii}, v{d+2*ii+1}")
            k(f"ds_write_b128 v{UW}, v[{o}:{o+3}] offset:{ii*4096 + bh*256}")
    wr = lambda u: k(f"ds_write_b128 v4, v[{FL+4*u}:{FL+4*u+3}] offset:{L_P+P_GA+u*1024}")
    k("s_mov_b32 s83, 0\ns_cmp_lt_u32 s16, 4\ns_cbranch_scc1 f_pv\nf_qv:")
    for u in range(2):
        k(f"s_waitcnt vmcnt({1-u})")
        untag(k, range(FL + 4*u, FL + 4*u + 4), FT, T, u == 0)
        wr(u)
    tagchk(k, T)
    k("s_cbranch_vccnz f_qr\ns_branch f_pvx\nf_pv:\ns_waitcnt vmcnt(3)")
    stamp(k, 30)
    k(f"""v_add_f32_dpp v{FV+3}, v{FV+2}, v{FV+2} quad_perm:[1,0,3,2] {DPPM}
    v_max_f32_dpp v{FV+2}, v{FV+2}, v{FV+2} quad_perm:[1,0,3,2] {DPPM}
    v_cmp_ne_u64 s[44:45], s[32:33], v[{FV}:{FV+1}]
    v_add_f32_dpp v{FV+3}, v{FV+3}, v{FV+3} quad_perm:[2,3,0,1] {DPPM}
    v_max_f32_dpp v{FV+2}, v{FV+2}, v{FV+2} quad_perm:[2,3,0,1] {DPPM}""")
    untag(k, range(FL + 12, FL + 16), FT, T)
    k(f"""v_max_f32_dpp v{FV+2}, v{FV+2}, v{FV+2} row_half_mirror {DPPM}
    s_mov_b64 exec, 0x1000
    ds_write_b32 v20, v{FV+3}
    s_mov_b64 exec, -1
    v_frexp_exp_i32_f32 v{FV+2}, v{FV+2}
    s_waitcnt vmcnt(2)""")
    untag(k, range(FL + 8, FL + 12), FT, T, False)
    k(f"""v_readfirstlane_b32 s42, v{FV+2}
    s_sub_u32 s43, -1, s42
    s_add_u32 s45, s42, 5
    s_and_b32 s44, s44, 0xf0ff""")
    for n in range(4): k(f"v_ldexp_f32 v{FL+8+n}, v{FL+8+n}, s43")
    tab16(FL + 8, P_CS)
    for u in range(2):
        k(f"s_waitcnt vmcnt({1-u})")
        untag(k, range(FL + 4*u, FL + 4*u + 4), FT, T, False)
        for n in range(4): k(f"v_ldexp_f32 v{FL+4*u+n}, v{FL+4*u+n}, s45")
        wr(u)
    k(f"""v_and_b32 v{T}, 0xff, v{T}
    v_cmp_ne_u32 vcc, 0, v{T}
    s_or_b32 vcc_lo, vcc_lo, s44
    s_cbranch_vccnz f_pr
    f_pw:
    s_cmp_eq_u32 s3, 0
    s_cbranch_scc1 f_ps
    f_pvx:""")
    def sas():
        k("f_ps:\ns_sub_u32 s45, 5, s42")
        for n in range(4): k(f"v_ldexp_f32 v{FL+12+n}, v{FL+12+n}, s45")
        k(f"""v_and_b32 v{T}, 0x3f0, v{PH}
        v_bfe_u32 v{T+1}, v{PH}, 10, 1
        v_lshl_add_u32 v{T}, v{T+1}, 11, v{T}
        v_bfe_u32 v{T+1}, v{PH}, 3, 1
        v_lshl_add_u32 v{T}, v{T+1}, 10, v{T}
        v_and_b32 v{T+1}, 6, v{PH}
        v_lshl_add_u32 v{T}, v{T+1}, 1, v{T}""")
        for n in range(4):
            k(f"v_cvt_f16_f32 v{FL+12+n}, v{FL+12+n}\nds_write_b32 v{T}, v{FL+12+n} offset:{L_C + 16*n}")
        k("s_branch f_pvx")
    if E("PRIO", 0):
        k("s_setprio 1\ns_cmp_ge_u32 s16, 4\ns_cbranch_scc1 f_pp\ns_setprio 2\nf_pp:")
    if EP == 3: k("v_mov_b32 v23, v21")
    k("s_waitcnt lgkmcnt(0)")
    stamp(k, 8)
    k("s_barrier")
    k.c("================= 1024-point DFT, LN2, router score =================")
    for j in range(2):
        k(f"ds_read_b128 v[{CS+4*j}:{CS+4*j+3}], v3 offset:{L_P+P_CS+j*1024}")
        k(f"ds_read_b128 v[{ZL+8*j}:{ZL+8*j+3}], v7 offset:{2*j*1024}")
        k(f"ds_read_b128 v[{ZL+8*j+4}:{ZL+8*j+7}], v7 offset:{(2*j+1)*1024}")
    def modul(j):
        for i in range(4*j, 4*j + 4):
            b = i & 1
            k(f"v_pk_mul_f16 v{W+i}, v{ZL+i}, v{CS+(i>>1)} op_sel:[0,{b}] op_sel_hi:[1,{b}]")
    def st1(j, part):
        Dd, B = (D1R, BRE) if part == 0 else (D1I, BIM)
        cc = "0" if j == 0 else f"v[{Dd}:{Dd+15}]"
        k(f"v_mfma_f32_32x32x16_f16 v[{Dd}:{Dd+15}], v[{W+4*j}:{W+4*j+3}], v[{B+4*j}:{B+4*j+3}], {cc}")
    k("s_cmp_eq_u32 s30, 0\ns_cbranch_scc1 f_sp")
    k("s_waitcnt lgkmcnt(4)"); modul(0); st1(0, 0)
    k("s_waitcnt lgkmcnt(3)"); modul(1); st1(0, 1)
    k("s_waitcnt lgkmcnt(1)"); modul(2); st1(1, 0)
    k("s_waitcnt lgkmcnt(0)"); modul(3); st1(1, 1)
    k("f_st1:")
    if EP == 3:
        k("s_waitcnt vmcnt(0)")
        for u in range(2): k(f"ds_read_b128 v[{CS+4*u}:{CS+4*u+3}], v23 offset:{u*16}")
    pr1 = pread(P_GA, GA) + pread(P_GAM, GAM) + pread(P_Q, Q) + pread(P_QM, QM)
    for j in range(2, 4):
        for part in range(2):
            st1(j, part)
            for _ in range(2): k(pr1.pop(0))
    if EP == 3:
        btag(k, 4)
        k("s_waitcnt lgkmcnt(8)")
        xb_unpack(CS)
    k(f"v_mov_b32 v22, {L_KEY + 64}\nds_read_b32 v22, v22")
    down(0, 7)
    stamp(k, 9)
    Y = BIM
    def twid(j):
        vr = ZL + 8 * (j & 1); vi = vr + 4
        for h in range(2):
            pmul(k, vr + 2*h, D1R + 4*j + 2*h, TC + 4*j + 2*h)
            pmul(k, vi + 2*h, D1I + 4*j + 2*h, TC + 4*j + 2*h)
        for h in range(2):
            pfma(k, vr + 2*h, D1I + 4*j + 2*h, TS + 4*j + 2*h, vr + 2*h)
            pfma(k, vi + 2*h, D1R + 4*j + 2*h, TS + 4*j + 2*h, vi + 2*h, nega=True)
        for i in range(4):
            k(f"v_cvt_pk_f16_f32 v{W+4*j+i}, v{vr+i}, v{vi+i}")
    def st2(j, Yd=Y, B=BRE):
        cr = "0" if j == 0 else f"v[{Yd}:{Yd+15}]"
        k(f"v_mfma_f32_32x32x16_f16 v[{Yd}:{Yd+15}], v[{W+4*j}:{W+4*j+3}], v[{B+4*j}:{B+4*j+3}], {cr}")
    k("s_cmp_eq_u32 s30, 0\ns_cbranch_scc1 f_sp2")
    for j in range(4):
        twid(j)
        if j > 0: st2(j - 1)
        if j < 2:
            for x in pr1[4*j:4*j+4]: k(x)
    st2(3)
    k.c("GO hint from one workgroup per replica")
    YS = 12
    def x1rows(YA, YB):
        k(f"ds_bpermute_b32 v{YS}, v{BP}, v{YB}")
        k("s_waitcnt lgkmcnt(1)")
        for i in range(8): pfma(k, XA2 + 2*i, GA + 2*i, YA + 2*i, XA2 + 2*i)
        for i in range(1, 8): pfma(k, XB2 + 2*i, GAM + 2*i, YB + 2*i, XB2 + 2*i)
        k(f"v_fmac_f32 v{XB2+1}, v{GAM+1}, v{YB+1}")
        k("s_waitcnt lgkmcnt(0)")
        k(f"v_fmac_f32 v{XB2}, v{GAM}, v{YS}")
    x1rows(Y, Y)
    k("f_join:")
    stamp(k, 10)
    C1, C1M, SBv, SBM, GBv, GBM = BRE, TC, TS, BIM, GA, GAM
    down(1, 7)
    RQ = ZL; TT_ = W
    KW, KR = 17, 7
    k(f"""v_lshrrev_b32 v{KW}, 3, v0
    v_and_b32 v{KW}, 60, v{KW}
    v_add_u32 v{KW}, {L_KEY}, v{KW}
    v_and_b32 v{KR}, 0xf0, v3
    v_lshrrev_b32 v{KR}, 2, v{KR}
    v_add_u32 v{KR}, {L_KEY}, v{KR}""")
    rows = ((XA2, Q, D1R, TT_, 56, C1, SBv, GBv), (XB2, QM, D1I, TT_ + 8, 58, C1M, SBM, GBM))
    def sums23(src):
        for i in range(7, -1, -1):
            for n, r_ in enumerate(rows):
                x = src[n] + 2*i; t = r_[3]
                if i == 7:
                    pmul(k, t + 2, x, x); pmul(k, t + 4, x, r_[1] + 2*i)
                else:
                    pfma(k, t + 2, x, x, t + 2); pfma(k, t + 4, x, r_[1] + 2*i, t + 4)
    for i in range(6, -1, -1):
        for r_ in rows: padd(k, r_[3], r_[0] + 14 if i == 6 else r_[3], r_[0] + 2*i)
    sums23((XA2, XB2))
    for n, r_ in enumerate(rows):
        for j in range(3): k(f"v_add_f32 v{RQ+4*n+j}, v{r_[3]+2*j}, v{r_[3]+2*j+1}")
    def red(js):
        for j in js: k(f"v_permlane32_swap_b32 v{RQ+j}, v{RQ+4+j}")
        for j in js: k(f"v_add_f32 v{RQ+j}, v{RQ+j}, v{RQ+4+j}")
        regs = [RQ + j for j in js]
        row_allreduce(k, regs)
        for r in regs: k(f"v_add_f32_dpp v{r}, v{r}, v{r} row_bcast:15 row_mask:0xa bank_mask:0xf")
    k("s_cmp_eq_u32 s79, 0\ns_cbranch_scc1 f_go\nf_ngo:")
    red((0, 1, 2))
    k.c("lanes 31 / 63 hold rows A / B")
    k(f"""v_mul_f32 v{RQ}, {f32(1.0/1024)}, v{RQ}
    v_mul_f32 v{RQ+1}, {f32(1.0/1024)}, v{RQ+1}
    v_mul_f32 v{RQ+4}, v{RQ}, v{RQ}
    v_fma_f32 v{RQ+2}, -v{RQ}, v22, v{RQ+2}
    v_sub_f32 v{RQ+1}, v{RQ+1}, v{RQ+4}
    v_mul_f32 v{RQ+5}, 4.0, v{RQ+1}
    v_cmp_gt_f32 vcc, v{RQ+4}, v{RQ+5}
    v_lshrrev_b32 v{RQ+6}, 4, v0
    s_lshl_b32 s43, s3, 5
    v_and_or_b32 v{RQ+6}, v{RQ+6}, 30, s43
    s_or_b32 s42, vcc_lo, vcc_hi
    s_bitcmp1_b32 s42, 31
    s_cbranch_scc1 f_slow2
    f_var2:""")
    round_bf16(k, RQ + 1, RQ + 1)
    k(f"v_add_f32 v{RQ+1}, {f32(1e-5)}, v{RQ+1}")
    round_bf16(k, RQ + 1, RQ + 1)
    k(f"v_sqrt_f32 v{RQ+1}, v{RQ+1}")
    round_bf16(k, RQ + 1, RQ + 1)
    k(f"""v_rcp_f32 v{RQ+1}, v{RQ+1}
    s_mov_b32 s42, 0x80000000
    s_movk_i32 s43, 0xf000
    s_mov_b32 exec_lo, s42
    s_mov_b32 exec_hi, s42
    v_mul_f32 v{RQ+2}, v{RQ+2}, v{RQ+1}
    v_ashrrev_i32 v{RQ+4}, 31, v{RQ+2}
    v_or_b32 v{RQ+4}, s42, v{RQ+4}
    v_xor_b32 v{RQ+2}, v{RQ+2}, v{RQ+4}
    v_and_or_b32 v{RQ+2}, v{RQ+2}, s43, v{RQ+6}
    ds_write_b32 v{KW}, v{RQ+2}
    v_mul_f32 v{RQ}, -v{RQ}, v{RQ+1}
    s_mov_b64 exec, -1""")
    for n in range(2):
        k(f"v_readlane_b32 s{60+n}, v{RQ+2}, {31+32*n}")
        k(f"v_readlane_b32 s{56+2*n}, v{RQ}, {31+32*n}")
        k(f"v_readlane_b32 s{57+2*n}, v{RQ+1}, {31+32*n}")
    k("s_waitcnt lgkmcnt(0)")
    stamp(k, 11)
    KV = RQ + 8
    k(f"""s_barrier
    ds_read_b32 v{KV}, v{KR}""")
    stamp(k, 12)
    HP = W; OA, OBB = Q, Q + 8
    def pk(dst, src, n):
        for i in range(8):
            a, b = (2*i, 2*i + 1) if n == 0 else ((16 - 2*i) & 15, 15 - 2*i)
            k(f"v_cvt_pk_bf16_f32 v{dst+i}, v{src+a}, v{src+b}")
    def norm(n):
        X2, _, Tt, _, sr = rows[n][:5]
        for i in range(8):
            k(f"v_pk_fma_f32 {P(Tt+2*i)}, {P(X2+2*i)}, s[{sr}:{sr+1}], s[{sr}:{sr+1}] op_sel:[0,1,0] op_sel_hi:[1,1,0]")
    k.c("1+cb, sb, gb tables for the output rows: 3 KB per wave")
    F2R = (CS, CS + 4, TS)
    fin2 = "\n".join(f"buffer_load_dwordx4 v[{r_}:{r_+3}], v3, s[12:15], s64 offen offset:{i*1024} sc1" for i, r_ in enumerate(F2R))
    k(f"""s_mul_i32 s42, s16, 3072
    v_add_u32 v4, s42, v3
    s_add_u32 s64, s42, {WS_FIN + FIN_T + P_C1}
    s_waitcnt lgkmcnt(0)""")
    k(f"""v_cmp_lt_u32 vcc, s60, v{KV}
    v_cmp_lt_u32 s[44:45], s61, v{KV}
    s_and_b32 s62, vcc_lo, 0xffff
    s_and_b32 s63, s44, 0xffff
    s_bcnt1_i32_b32 s62, s62
    s_bcnt1_i32_b32 s63, s63""")
    k.c("the wave that holds the best row writes the record")
    k(f"""s_min_u32 s42, s62, s63
    s_cmp_lg_u32 s42, 0
    s_cbranch_scc1 f_nkey
    s_setprio 3
    s_max_u32 s42, s60, s61
    v_cmp_ne_u32 vcc, s42, v{KV}
    v_mov_b32 v{KV+4}, s42
    v_mov_b32 v{KV+5}, s32
    v_cndmask_b32 v{KV+6}, 0, v{KV}, vcc
    v_mov_b32 v{KV+7}, s33""")
    row_allreduce(k, [KV + 6], "v_max_u32")
    stamp(k, 20)
    k(f"""v_or_b32 v{KV+6}, 1, v{KV+6}
    buffer_store_dwordx4 v[{KV+4}:{KV+7}], v{FA}, s[12:15], s80 offen sc1""")
    if E("STAMPS", 0) == 4:
        stamp(k, 21); k("s_waitcnt vmcnt(0)"); stamp(k, 22)
    k("f_nkey:")
    if True:
        for n in range(2):
            Tt = rows[n][2]; XO = (OA, OBB)[n]; SA_ = (SLA, SLM)[n]
            k(f"""s_cmp_ge_u32 s{62+n}, 2
            s_cbranch_scc1 f_nc{n}
            f_cand{n}:
            s_setprio 2""")
            k(f"""s_lshl_b32 s43, s3, 1
            s_add_u32 s42, s{62+n}, s43
            s_lshl_b32 s43, s42, 7
            s_lshl_b32 s42, s42, 12
            s_add_u32 s42, s42, {WS_SLOT}
            s_add_u32 s43, s43, {WS_SH}
            v_mov_b32 v{YS}, 0xffffff00""")
            for a in range(4):
                for i in range(4):
                    p = 4*a + i
                    k(f"v_and_or_b32 v{Tt+p}, v{rows[n][0] + (p if n == 0 else (16 - p) & 15)}, v{YS}, s{4 + 4*(a & 1) + i}")
                k(f"buffer_store_dwordx4 v[{Tt+4*a}:{Tt+4*a+3}], v{SA_}, s[12:15], s42 offen offset:{(a&1)*1024 + (a>>1)*512} sc1")
            k(f"""v_mov_b32 v{HP+4*n}, s32
            v_mov_b32 v{HP+4*n+1}, s33
            v_mov_b32 v{HP+4*n+2}, s{56+2*n}
            v_mov_b32 v{HP+4*n+3}, s{57+2*n}
            s_mov_b64 exec, 0xff
            buffer_store_dwordx4 v[{HP+4*n}:{HP+4*n+3}], v3, s[12:15], s43 offen sc1
            s_mov_b64 exec, -1""")
            k(f"s_setprio 0\nf_nc{n}:")
    stamp(k, 13)
    k(fin2)
    k("s_barrier")
    if E("DSL", 0): k(f"s_sleep {E('DSL', 0)}")
    down(2, 7)
    norm(0); norm(1)
    k(f"""v_subrev_u32 v{XD}, s68, v{XD}
    s_sub_u32 s68, s68, {L_R - L_X}
    v_bfe_u32 v{YS}, v0, 1, 2
    v_lshlrev_b32 v{YS}, 4, v{YS}
    v_xor_b32 v{XD}, v{XD}, v{YS}
    v_xor_b32 v{XDM}, {2016 ^ 48}, v{XD}
    v_add_u32 v{XD}, s68, v{XD}
    v_add_u32 v{XDM}, s68, v{XDM}
    v_xor_b32 v20, 16, v{XD}
    v_xor_b32 v21, 16, v{XDM}
    v_and_b32 v22, 8, v0
    v_lshlrev_b32 v22, 1, v22
    v_xor_b32 v22, v22, v3
    v_add_u32 v22, s68, v22
    v_xor_b32 v23, 32, v22
    s_mov_b32 s83, 0
    s_cmp_ge_u32 s35, 14
    s_cbranch_scc1 f_p2c
    s_waitcnt vmcnt({0 if E("NOW", 0) or E("NOD", 0) else DN[2]})
    f_p2e:""")
    untag(k, list(range(CS, CS + 8)) + list(range(TS, TS + 4)), FT, YS)
    tagchk(k, YS)
    k("s_cbranch_vccnz f_p2r\nf_p2w:")
    stamp(k, 42)
    for i, r_ in enumerate(F2R): k(f"ds_write_b128 v4, v[{r_}:{r_+3}] offset:{L_P+P_C1+i*1024}")
    k("s_waitcnt lgkmcnt(0)\ns_barrier")
    stamp(k, 43)
    if E("PW", 1):
        k.c("the lines of this wave's partial results are written once so that an early reader does not go to HBM")
        k(f"""v_not_b32 v24, v{FT}
        v_bfe_u32 v7, v0, 4, 2
        v_lshlrev_b32 v7, 13, v7
        v_and_b32 v25, 0x70, v3
        v_add_u32 v7, v7, v25
        s_and_b32 s42, s35, 1
        s_lshl_b32 s42, s42, 3
        s_add_u32 s42, s42, s16
        s_lshl_b32 s42, s42, 15
        s_lshl_b32 s43, s17, 7
        s_add_u32 s42, s42, s43
        s_add_u32 s42, s42, {WS_PART}
        s_cmp_ge_u32 s35, 14
        s_cbranch_scc1 f_npw
        s_mov_b32 exec_lo, 0x00ff00ff
        s_mov_b32 exec_hi, 0x00ff00ff
        buffer_store_dwordx4 v[24:27], v7, s[12:15], s42 offen sc1
        s_mov_b64 exec, -1
        f_npw:""")
    rd3 = lambda n: [k(x) for x in pread((P_C1, P_C1M)[n], rows[n][5]) + pread((P_SB, P_SBM)[n], rows[n][6]) + pread((P_GB, P_GBM)[n], rows[n][7])]
    rd3(0)
    for n in range(2):
        X2, _, Tt, _, sr, c1, sb, gb = rows[n]
        k(f"s_waitcnt lgkmcnt({4 + 2*n})")
        for i in range(8): pfma(k, Tt + 2*i, Tt + 2*i, c1 + 2*i, sb + 2*i)
        k(f"s_waitcnt lgkmcnt({2*n})")
        if n == 0: rd3(1)
        for i in range(8): pfma(k, X2 + 2*i, gb + 2*i, Tt + 2*i, X2 + 2*i)
        pk((OA, OBB)[n], X2, n)
        for u in range(2):
            XO = (OA, OBB)[n]
            k(f"ds_write_b128 v{((XD, 20), (XDM, 21))[n][u]}, v[{XO+4*u}:{XO+4*u+3}] offset:{n*2048}")
    stamp(k, 44)
    k.c("rows back to memory order through LDS; written once the selection is known (the reducers write the two selected rows)")
    k("s_waitcnt lgkmcnt(0)")
    for i in range(4):
        k(f"ds_read_b128 v[{QM+4*i}:{QM+4*i+3}], v{22 + (i & 1)} offset:{i*1024}")
    OUTP = E("OUTP", 1)
    assert OUTP in (1, 5)
    def outst(lab, cond, rows_=(0, 1)):
        for n in rows_:
            k(cond(n, f"{lab}{n}"))
            for j in range(0 if E("NOOUT", 0) else 2):
                k(f"buffer_store_dwordx4 v[{QM+8*n+4*j}:{QM+8*n+4*j+3}], v3, s[24:27], s{18+n} offen offset:{j*1024} {os.environ.get('OFL', 'sc1')}")
            k(f"{lab}{n}:")
    notsel = lambda n, l: f"s_cmp_eq_u32 s{60+n}, s40\ns_cbranch_scc1 {l}\ns_cmp_eq_u32 s{60+n}, s41\ns_cbranch_scc1 {l}"
    if OUTP == 0:
        k("s_waitcnt lgkmcnt(0)")
        outst("f_o", lambda n, l: f"s_cmp_lt_u32 s{62+n}, 2\ns_cbranch_scc1 {l}")
    if OUTP == 5:
        k("s_waitcnt lgkmcnt(0)")
        outst("f_o", lambda n, l: f"s_cmp_lt_u32 s{62+n}, 2\ns_cbranch_scc1 {l}", (0,))
    BD, HA, AG, R, AD = 88, 120, 128, 144, 148
    L_A = L_KEY + 128
    k.c("down projection: tr addr, act write / read, PART store")
    k(f"""v_lshrrev_b32 v{R}, 2, v2
    v_and_b32 v{R+1}, 7, v{R}
    v_and_b32 v{R+2}, 3, v0
    v_lshl_add_u32 v{AD}, v1, 2, v{R+2}
    v_xor_b32 v{AD}, v{AD}, v{R+1}
    v_lshlrev_b32 v{AD}, 5, v{AD}
    v_lshl_add_u32 v{AD}, v{R}, 10, v{AD}
    v_add_u32 v{AD}, {L_U}, v{AD}
    v_cmp_eq_u32 s[44:45], 1, v{R+2}
    v_cmp_eq_u32 s[46:47], 2, v{R+2}
    v_cmp_eq_u32 s[72:73], 3, v{R+2}
    v_bfe_u32 v{R+1}, v0, 4, 2
    v_and_b32 v{R}, 1, v{R}
    v_lshlrev_b32 v{AD+5}, 7, v{R}
    v_lshl_add_u32 v{AD+5}, v{R+1}, 4, v{AD+5}
    v_add_u32 v{AD+5}, {L_A}, v{AD+5}
    v_lshlrev_b32 v{AD+6}, 4, v{R+2}
    v_lshl_add_u32 v{AD+6}, v{R}, 6, v{AD+6}
    v_lshl_add_u32 v{AD+6}, v1, 15, v{AD+6}
    v_lshl_add_u32 v{AD+6}, v{R+1}, 13, v{AD+6}
    v_and_b32 v{R}, 15, v0
    v_lshlrev_b32 v{AD+4}, 1, v{R}
    v_lshl_add_u32 v{AD+4}, v1, 5, v{AD+4}
    v_lshl_add_u32 v{AD+4}, v{R+1}, 7, v{AD+4}
    v_add_u32 v{AD+4}, {L_A}, v{AD+4}
    s_and_b32 s76, s35, 1
    s_lshl_b32 s76, s76, 18
    s_lshl_b32 s77, s17, 7
    s_add_u32 s76, s76, s77
    s_add_u32 s76, s76, {WS_PART}
    s_movk_i32 s77, 0xff00
    s_lshl_b32 s81, s17, 2
    s_and_b32 s42, s16, 3
    s_add_u32 s81, s81, s42
    s_lshl_b32 s81, s81, 10
    s_add_u32 s82, s81, {WS_XB}
    s_add_u32 s81, s81, {WS_XA}
    v_mov_b32 v5, {L_KEY+104}""")
    stamp(k, 45)
    if OUTP == 0:
        k.c("the weight tile is older than the row stores")
        k("""s_max_u32 s42, s62, s63
        s_min_u32 s43, s62, s63
        s_cmp_lt_u32 s43, 2
        s_cbranch_scc1 f_w0
        s_waitcnt vmcnt(4)
        f_w1:""")
    elif OUTP == 5:
        k("s_cmp_lt_u32 s62, 2\ns_cbranch_scc1 f_w0\ns_waitcnt vmcnt(2)\nf_w1:")
    else: k("s_waitcnt vmcnt(0)")
    k("s_barrier")
    stamp(k, 14)
    for ks in range(2):
        for t in range(4):
            b_ = BD + (ks*4 + t)*4
            k(f"ds_read_b64_tr_b16 v[{b_}:{b_+1}], v{AD} offset:{ks*32768+t*8}")
            k(f"ds_read_b64_tr_b16 v[{b_+2}:{b_+3}], v{AD} offset:{ks*32768+16384+t*8}")
    if OUTP == 3:
        if E("OS3", 0): k(f"s_sleep {E('OS3', 0)}")
        k("s_waitcnt lgkmcnt(0)")
        outst("f_o", lambda n, l: f"s_cmp_lt_u32 s{62+n}, 2\ns_cbranch_scc1 {l}")
    if OUTP == 4:
        k("s_waitcnt lgkmcnt(0)\ns_cmp_lt_u32 s16, 4\ns_cbranch_scc1 f_o1")
        outst("f_o", lambda n, l: f"s_cmp_lt_u32 s{62+n}, 2\ns_cbranch_scc1 {l}")
    rec = """s_mov_b64 exec, 3
    buffer_load_dwordx4 v[32:35], v40, s[12:15], s74 offen sc1
    s_mov_b64 exec, -1"""
    k(f"""v_lshlrev_b32 v40, 13, v2
    s_lshl_b32 s74, s34, 14
    s_add_u32 s74, s74, {WS_HM + HM_B + 4096}
    s_min_u32 s75, s62, s63
    s_cmp_ge_u32 s35, 14
    s_cbranch_scc1 f_na
    s_cmp_ge_u32 s16, 4
    s_cbranch_scc1 f_na""")
    k(f"""s_mov_b32 s83, 0
    f_px:
    s_and_b32 s42, s83, 63
    s_cmp_eq_u32 s42, 63
    s_cselect_b32 s42, s82, s81
    buffer_load_dwordx4 v[{R}:{R+3}], v3, s[12:15], s42 offen sc1
    s_add_u32 s83, s83, 1
    s_cmp_ge_u32 s83, {SPIN}
    s_cbranch_scc1 f_pxx
    s_waitcnt vmcnt(0)
    v_cmp_ne_u16_sdwa vcc, v{R+3}, v{FT+3} src0_sel:BYTE_0 src1_sel:DWORD
    s_cbranch_vccnz f_px""")
    untag(k, range(R, R + 4), FT, 4)
    tagchk(k, 4)
    k("s_cbranch_vccnz f_px\nf_pxx:\ns_waitcnt vmcnt(0)")
    stamp(k, 16)
    k(f"v_permlane32_swap_b32 v{R}, v{R+2}")
    k(f"v_permlane32_swap_b32 v{R+1}, v{R+3}")
    padd(k, R, R, R + 2)
    k(f"v_permlane16_swap_b32 v{R}, v{R+1}")
    k(f"v_add_f32 v{R}, v{R}, v{R+1}")
    round_bf16(k, R, R)
    k(f"""v_mul_f32 v{R+1}, {LOG2E}, v{R}
    v_exp_f32 v{R+1}, v{R+1}
    v_mov_b32 v{R+2}, v{R}
    v_add_f32 v{R+1}, 1.0, v{R+1}
    v_rcp_f32 v{R+1}, v{R+1}
    v_mov_b32 v{R+3}, v{R}
    v_mul_f32 v{R+1}, v{R}, v{R+1}
    v_permlane32_swap_b32 v{R+2}, v{R+3}""")
    round_bf16(k, R + 1, R + 1)
    k(f"""v_mul_f32 v{R+1}, v{R+1}, v{R+3}
    v_cvt_pk_bf16_f32 v{R+1}, v{R+1}, v{R+1}
    ds_write_b16 v{AD+4}, v{R+1}
    f_na:
    s_waitcnt lgkmcnt(0)
    s_barrier
    s_cmp_ge_u32 s35, 14
    s_cbranch_scc1 f_fin""")
    for ks in range(2):
        k(f"ds_read_b128 v[{HA+4*ks}:{HA+4*ks+3}], v{AD+5} offset:{ks*64}")
    k(f"s_cmp_lt_u32 s75, 2\ns_cbranch_scc1 f_rq\nf_rqx:")
    for ks in range(2):
        k(f"s_waitcnt lgkmcnt({1-ks})")
        for t in range(4):
            a_ = AG + 4 * t
            cc = "0" if ks == 0 else f"v[{a_}:{a_+3}]"
            b_ = BD + (ks*4 + t)*4
            k(f"v_mfma_f32_16x16x32_bf16 v[{a_}:{a_+3}], v[{b_}:{b_+3}], v[{HA+4*ks}:{HA+4*ks+3}], {cc}")
    for t, m_ in ((1, "s[44:45]"), (2, "s[46:47]"), (3, "s[72:73]")):
        for i in range(4):
            k(f"v_cndmask_b32 v{AG+i}, v{AG+i}, v{AG+4*t+i}, {m_}")
    for i in range(4): k(f"v_and_or_b32 v{AG+i}, v{AG+i}, s77, v{FT+i}")
    k(f"""s_mov_b32 exec_lo, 0x00ff00ff
    s_mov_b32 exec_hi, 0x00ff00ff
    buffer_store_dwordx4 v[{AG}:{AG+3}], v{AD+6}, s[12:15], s76 offen sc1
    s_mov_b64 exec, -1""")
    stamp(k, 17)
    k("s_barrier\nf_fin:")
    if E("OSL", 0): k(f"s_sleep {E('OSL', 0)}")
    k("s_cmp_lt_u32 s75, 2\ns_cbranch_scc1 f_sel")
    outst("f_g", lambda n, l: "", (1,) if OUTP == 5 else (0, 1))
    k("f_end:")
    stamp_out(k, 0)
    k("s_endpgm")
    k(f"""f_rq:
    {rec}
    s_branch f_rqx
    f_sel:
    s_mov_b32 s83, 0
    s_cmp_ge_u32 s35, 14
    s_cbranch_scc1 f_sr
    s_waitcnt vmcnt(1)
    f_sc:
    v_cmp_ne_u64 vcc, s[32:33], v[32:33]
    v_readlane_b32 s40, v34, 0
    v_readlane_b32 s41, v34, 1
    s_and_b32 s42, vcc_lo, 3
    s_cbranch_scc0 f_sx
    s_sleep 4
    f_sr:
    {rec}
    s_waitcnt vmcnt(0)""")
    spin(k, "f_sc", 0)
    k("f_sx:\ns_andn2_b32 s40, s40, 1\ns_andn2_b32 s41, s41, 1")
    cand = lambda n, l: f"s_cmp_ge_u32 s{62+n}, 2\ns_cbranch_scc1 {l}\n" + notsel(n, l)
    outst("f_e", (lambda n, l: cand(n, l) if n == 0 else notsel(n, l)) if OUTP == 5 else notsel)
    k("s_branch f_end")
    if OUTP in (0, 5): k("f_w0:\ns_waitcnt vmcnt(0)\ns_branch f_w1")
    k(f"""f_p2r:
    s_add_u32 s83, s83, 1
    s_cmp_ge_u32 s83, {SPIN}
    s_cbranch_scc1 f_p2w
    s_sleep 12
    {fin2}
    f_p2c:
    s_waitcnt vmcnt(0)
    s_branch f_p2e
""")
    k.c("---- spectrum pieces that were not there yet: read them again ----")
    k("f_zr:")
    for i in range(4):
        z = ZC + 8*(i >> 1) + (i & 1)
        k(f"""v_or3_b32 v{ZT}, v{z}, v{z+2}, v{z+4}
        v_or_b32 v{ZT}, v{ZT}, v{z+6}
        v_and_b32 v{ZT}, s54, v{ZT}
        v_cmp_ne_u32 vcc, 0, v{ZT}""")
        k(f"""s_cbranch_vccz f_zr{i}
        buffer_load_dwordx4 v[{ZL+4*i}:{ZL+4*i+3}], v3, s[12:15], s72 offen offset:{i*1024} sc1
        f_zr{i}:""")
    k("s_waitcnt vmcnt(0)")
    spin(k, "f_zc", 0)
    k("s_branch f_zx")
    k.c("---- out-of-line pieces ----")
    k("f_r0:")
    for u in range(2): k(f"buffer_load_dwordx4 v3, s[8:11], s18 offen offset:{u*1024} lds")
    k("s_branch f_nr")
    st_retry()
    k(f"f_pr:\ns_sleep {E('SLX', 6)}")
    stamp(k, 32)
    for i in range(4): k(f"v_mov_b32 v{FL+12+i}, v{FT+i}")
    fin1()
    k("s_waitcnt vmcnt(0)")
    spin(k, "f_pv", 0)
    k("s_waitcnt vmcnt(0)\ns_branch f_pw")
    sas()
    k(f"f_qr:\ns_sleep {E('SLX', 6)}")
    finb()
    spin(k, "f_qv", 0)
    k("s_waitcnt vmcnt(0)\ns_branch f_pvx")
    k(f"""f_go:
    s_lshl_b32 s41, s34, 7
    s_add_u32 s41, s41, {WS_GO}
    v_mov_b32 v{D1R}, s32
    v_mov_b32 v{D1R+1}, s33
    s_mov_b64 exec, 0xff
    buffer_store_dwordx4 v[{D1R}:{D1R+3}], v3, s[12:15], s41 offen sc1
    s_mov_b64 exec, -1
    s_branch f_ngo""")
    k.c("---- rare: two-pass variance / router score for LN2 ----")
    k("f_slow2:")
    k.c("here the bf16 rounding of x and of the mean matters: follow the reference's rounding steps")
    for r_ in rows:
        X2, t = r_[0], r_[3]
        for i in range(8): rb2(k, X2 + 2*i, t)
        for i in range(1, 8): padd(k, t, X2 if i == 1 else t, X2 + 2*i)
    for n, r_ in enumerate(rows):
        k(f"v_add_f32 v{RQ+4*n}, v{r_[3]}, v{r_[3]+1}")
    red((0,))
    k(f"v_mul_f32 v{RQ+3}, {f32(1.0/1024)}, v{RQ}")
    round_bf16(k, RQ, RQ + 3)
    k(f"v_sub_f32 v{RQ+3}, v{RQ+3}, v{RQ}")
    for n in range(2): k(f"v_readlane_b32 s{56+2*n}, v{RQ}, {31+32*n}")
    for r_ in rows:
        for i in range(8): psub_s(k, r_[2] + 2*i, r_[0] + 2*i, r_[4])
    k(f"v_mov_b32 v{RQ+7}, v{RQ+6}")
    sums23((rows[0][2], rows[1][2]))
    for n, r_ in enumerate(rows):
        for j in (1, 2): k(f"v_add_f32 v{RQ+4*n+j}, v{r_[3]+2*j}, v{r_[3]+2*j+1}")
    red((1, 2))
    k(f"""v_mul_f32 v{RQ+1}, {f32(1.0/1024)}, v{RQ+1}
    v_fma_f32 v{RQ+1}, -v{RQ+3}, v{RQ+3}, v{RQ+1}
    v_max_f32 v{RQ+1}, 0, v{RQ+1}
    v_mov_b32 v{RQ+6}, v{RQ+7}
    s_branch f_var2""")
    slow1()
    k.c("---- rows 0 and 1024 travel as one complex row ----")
    k.c("both inputs are made even in d: the real and the imaginary part of the transform are then the two rows")
    k("f_sp:\ns_setprio 2")
    SAR = D1R; MR = D1I; SC_ = L_C + 4096
    for j in range(4):
        k(f"ds_read_b128 v[{SAR+4*j}:{SAR+4*j+3}], v3 offset:{L_C+j*1024}")
    k(f"""v_and_b32 v12, 31, v0
    v_lshlrev_b32 v12, 2, v12
    v_and_b32 v17, 32, v0
    v_lshl_add_u32 v12, v17, 4, v12
    v_sub_u32 v20, {SC_}, v12
    v_add_u32 v12, {SC_}, v12
    v_add_u32 v17, 128, v12
    v_add_u32 v21, 128, v20""")
    for j in range(4):
        k(f"s_waitcnt lgkmcnt({3 - j + 2*j})" if j else "s_waitcnt lgkmcnt(3)")
        for i in range(4*j, 4*j + 4):
            b = i & 1
            k(f"v_pk_fma_f16 v{W+i}, v{ZL+i}, v{CS+(i>>1)}, v{SAR+i} op_sel:[0,{b},0] op_sel_hi:[1,{b},1]")
        for i in range(2):
            k(f"ds_write2st64_b32 v{(12, 17)[i]}, v{W+4*j+i}, v{W+4*j+i+2} offset0:{4*j} offset1:{4*j+1}")
    k(f"s_mov_b64 exec, 1\nds_write_b32 v12, v{W} offset:4096\ns_mov_b64 exec, -1")
    for j in range(4):
        k(f"ds_read2st64_b32 v[{MR+4*j}:{MR+4*j+1}], v20 offset0:{16-4*j} offset1:{15-4*j}")
        k(f"ds_read2st64_b32 v[{MR+4*j+2}:{MR+4*j+3}], v21 offset0:{15-4*j} offset1:{14-4*j}")
    for j in range(4):
        k(f"s_waitcnt lgkmcnt({6-2*j})")
        for i in range(4):
            k(f"v_pk_add_f16 v{W+4*j+i}, v{W+4*j+i}, v{MR+4*j+(0, 2, 1, 3)[i]}")
    st1(0, 0); st1(0, 1); st1(1, 0); st1(1, 1)
    k("s_branch f_st1")
    k("f_sp2:")
    YA, YB = Q, QM
    for j in range(4):
        twid(j)
        if j > 0: st2(j - 1, YA, BRE); st2(j - 1, YB, BIM)
    st2(3, YB, BIM); st2(3, YA, BRE)
    x1rows(YA, YB)
    for x in pr1: k(x)
    k("s_waitcnt lgkmcnt(0)\ns_setprio 0\ns_branch f_join")

def role_G(k):
    L_GR = 131072 + 4096; L_SI = 131072 + 8192
    k.c("w_mod tiles: rows 64*mm.., 512 columns of sa|ca|ga|cb and 256 columns of sb|gb per group")
    k.c("nonce writer: first wave of workgroup 0")
    k(f"""h_non:
    s_mul_i32 s42, s32, 0x9e3779b1
    s_lshr_b32 s43, s42, 15
    s_xor_b32 s42, s42, s43
    s_mul_i32 s42, s42, 0x85ebca6b
    s_xor_b32 s33, s33, s42
    s_lshr_b32 s43, s42, 13
    s_xor_b32 s42, s42, s43
    s_mul_i32 s33, s33, 0xc2b2ae35
    s_add_u32 s33, s33, s32
    s_lshr_b32 s43, s33, 16
    s_xor_b32 s33, s33, s43
    s_mul_i32 s33, s33, 0x27d4eb2f
    s_or_b32 s32, s42, 1
    s_andn2_b32 s33, s33, 7
    v_mov_b32 v10, s32
    v_mov_b32 v11, s33
    v_lshlrev_b32 v12, 3, v2
    s_mov_b32 exec_hi, 0
    global_store_dwordx2 v12, v[10:11], s[26:27] sc1
    s_mov_b32 exec_hi, -1
    s_branch h_nonx""")
    k.c("the first four waves start earlier: they are the loaders (logical waves 4-7)")
    k(f"""g_start:
    s_or_b32 s40, s2, s16
    s_xor_b32 s16, s16, 4
    v_xor_b32 v1, 4, v1
    v_xor_b32 v0, 0x100, v0
    v_lshlrev_b32 v13, 2, v2
    v_mov_b32 v220, 0
    v_mov_b32 v221, 0
    v_mov_b32 v233, 0
    v_mov_b32 v234, 0
    v_mov_b32 v235, 0
    s_cmp_lt_u32 s16, 4
    s_cbranch_scc1 g_cons
    @@L@@
    g_cons:
    s_lshl_b32 s29, s34, 4
    s_add_u32 s29, s29, s35
    s_lshl_b32 s29, s29, 12
    s_add_u32 s29, s29, {WS_MPA}
    s_lshl_b32 s30, s16, 9
    s_add_u32 s30, s30, s29
    s_lshl_b32 s31, s16, 8
    s_add_u32 s31, s31, s29
    s_add_u32 s31, s31, 2048
    v_lshlrev_b32 v8, 1, v2
    v_lshlrev_b32 v9, 7, v2
    v_mov_b32 v104, -1
    v_mov_b32 v105, -1
    v_mov_b32 v106, -1
    v_mov_b32 v107, -1
    s_waitcnt lgkmcnt(0)
    s_mov_b32 s12, s6
    s_mov_b32 s13, s7""")
    stamp(k, 1)
    k("""
    s_cmp_eq_u32 s16, 1
    s_cselect_b64 exec, 0xffffff, 1
    buffer_load_dword v245, v9, s[12:15], s29 offen sc1
    s_mov_b64 exec, -1
    v_mov_b32 v14, 0""")
    srd(k, 8, 58, 1024 * 6144 * 2)
    def common():
        k.c("s64 = cluster (or X index) ; s65 = K half ; s66 = 1 for X")
        k(f"""s_mov_b32 s20, s26
        s_mov_b32 s21, s27
        s_mov_b32 s26, 4194304
        s_mov_b32 s27, 0x00020000
        s_and_b32 s65, s35, 1
        s_lshr_b32 s40, s35, 1
        s_mul_i32 s64, s34, 7
        s_add_u32 s64, s64, s40
        s_lshl_b32 s41, s34, 1
        s_add_u32 s41, s41, s65
        s_cmp_ge_u32 s35, 14
        s_cselect_b32 s66, 1, 0
        s_cselect_b32 s64, s41, s64""")
        k.c("v12 / v21: transposed reads of the gate / up tile")
        k(f"""v_lshrrev_b32 v10, 2, v2
        v_and_b32 v15, 3, v0
        v_bfe_u32 v11, v0, 3, 2
        v_xor_b32 v12, v11, v1
        v_and_b32 v12, 3, v12
        v_lshlrev_b32 v12, 5, v12
        v_lshl_add_u32 v12, v10, 7, v12
        v_lshl_add_u32 v12, v15, 3, v12
        v_lshrrev_b32 v16, 2, v1
        v_lshl_add_u32 v12, v16, 15, v12
        v_add_u32 v21, 65536, v12""")
    common()
    RA, RB = 200, 208
    k(f"""v_bfe_u32 v22, v0, 2, 3
    v_lshlrev_b32 v22, 5, v22
    v_lshl_add_u32 v22, v15, 3, v22
    v_bfe_u32 v23, v0, 2, 2
    v_bfe_u32 v24, v0, 4, 2
    v_lshl_add_u32 v23, v24, 3, v23
    v_lshl_add_u32 v{RA}, v23, 10, v22
    v_lshl_add_u32 v{RA}, v1, 8, v{RA}
    v_add_u32 v{RA}, 32768, v{RA}
    v_lshlrev_b32 v25, 7, v1
    v_xor_b32 v22, v22, v25
    v_lshl_add_u32 v{RB}, v23, 9, v22
    v_add_u32 v{RB}, 98304, v{RB}
    v_cmp_eq_u32 s[60:61], 1, v24
    v_cmp_eq_u32 s[62:63], 2, v24
    v_cmp_eq_u32 s[72:73], 3, v24
    v_add3_u32 v8, v8, v25, s36
    v_lshl_add_u32 v10, v24, 4, v25
    v_add_u32 v10, {L_SI}, v10""".replace("v_add3_u32 v8, v8, v25, s36", f"v_add_u32 v8, v8, v25\nv_add_u32 v8, {L_SI}, v8"))
    for t in range(1, 8): k(f"v_xor_b32 v{RA+t}, {32*t}, v{RA}")
    for t in range(1, 4): k(f"v_xor_b32 v{RB+t}, {32*t}, v{RB}")
    k(f"s_sleep {E('GNS', 8)}")
    nonce_issue(k, 20, 128)
    GA_, GB_, GD = 120, 128, 64
    nonce_finish(k, "g_nn", 20, 192, 112)
    mtag(k, 212, 0)
    k("v_and_b32 v212, 0xff, v212\ns_movk_i32 s74, 0xff00")
    k.c("X: v220 / v233 = place of a finished piece in round 1 / 2, v234 / v235 the piece of the mirrored table, v221 = place in the partial sums")
    k(f"""s_cmp_ge_u32 s16, s66
    s_cbranch_scc1 g_nw
    s_lshr_b32 s22, s64, 2
    s_cmp_eq_u32 s22, 3
    s_cselect_b32 s22, {(FIN_T + P_C1) // 4096}, s22
    s_lshl_b32 s22, s22, 12
    s_add_u32 s22, s22, {WS_FIN}
    s_lshr_b32 s23, s64, 3
    s_lshl_b32 s23, s23, 13
    s_add_u32 s23, s23, {WS_FIN + FIN_T + P_SB}
    s_mov_b32 s75, {WS_FIN + FIN_T + P_Q}
    v_bfe_u32 v24, v0, 2, 1
    v_bfe_u32 v25, v0, 3, 2
    v_bfe_u32 v26, v0, 5, 1
    v_lshlrev_b32 v220, 4, v15
    v_lshl_add_u32 v220, v24, 9, v220
    v_lshl_add_u32 v220, v25, 10, v220
    s_and_b32 s42, s64, 3
    s_lshl_b32 s42, s42, 7
    s_and_b32 s43, s64, 4
    s_lshl_b32 s43, s43, 4
    s_add_u32 s42, s42, s43
    v_add_u32 v233, s42, v220
    v_lshl_add_u32 v220, v26, 7, v220
    s_and_b32 s42, s64, 1
    s_lshl_b32 s42, s42, 8
    s_and_b32 s43, s64, 2
    s_lshl_b32 s43, s43, 5
    s_add_u32 s42, s42, s43
    v_add_u32 v220, s42, v220
    v_xor_b32 v234, {4096 + 4080}, v220
    v_xor_b32 v235, {4096 + 4080}, v233
    v_lshlrev_b32 v221, 7, v15
    v_lshl_add_u32 v221, v24, 6, v221
    v_lshl_add_u32 v221, v25, 4, v221
    v_lshl_add_u32 v221, v26, 9, v221
    v_add_u32 v232, 8, v2
    v_and_b32 v232, 31, v232
    v_lshl_add_u32 v232, v26, 5, v232
    v_lshlrev_b32 v232, 2, v232
    s_lshl_b32 s79, s64, 7
    s_add_u32 s79, s79, {WS_REC}
    v_xor_b32 v0, 1, v0""")
    mtag4(k, 228)
    k("v_xor_b32 v0, 1, v0")
    srd(k, 44, 48, 2048)
    k("""v_lshrrev_b32 v11, 1, v221
    s_and_b32 s42, s64, 3
    s_lshl_b32 s42, s42, 9
    buffer_load_dwordx2 v[52:53], v11, s[44:47], s42 offen""")
    mtag4(k, 216)
    k.c("the lines are written once early so that an early reader does not go to HBM")
    k(f"""v_not_b32 v24, v216
    v_not_b32 v25, v229
    buffer_store_dwordx4 v[24:27], v220, s[12:15], s22 offen sc1
    s_mov_b32 exec_hi, 0
    buffer_store_dwordx4 v[24:27], v233, s[12:15], s23 offen sc1
    buffer_store_dwordx4 v[24:27], v235, s[12:15], s23 offen sc1
    s_mov_b64 exec, 0xff
    buffer_store_dwordx4 v[104:107], v3, s[12:15], s79 offen sc1
    s_mov_b64 exec, -1
    s_cmp_lt_u32 s64, 8
    s_cbranch_scc1 g_nw
    buffer_store_dwordx4 v[24:27], v234, s[12:15], s22 offen sc1
    s_cmp_lt_u32 s64, 12
    s_cbranch_scc1 g_nw
    buffer_store_dwordx4 v[24:27], v220, s[12:15], s75 offen sc1
    buffer_store_dwordx4 v[24:27], v234, s[12:15], s75 offen sc1
    g_nw:
    s_barrier""")
    def xprep():
        mtag4(k, 216)
        k(f"""s_lshl_b32 s81, s34, 16
        s_lshl_b32 s42, s16, 13
        s_add_u32 s81, s81, s42
        s_add_u32 s81, s81, {WS_MPA}
        s_lshl_b32 s42, s65, 9
        s_add_u32 s80, s81, s42
        s_add_u32 s81, s80, s42
        v_lshlrev_b32 v222, 4, v0
        v_lshrrev_b32 v223, 5, v2
        v_and_b32 v24, 0x1f0, v3
        v_lshl_add_u32 v223, v223, 12, v24
        s_lshl_b32 s39, s34, 4
        s_add_u32 s39, s39, s35
        s_lshl_b32 s39, s39, 12
        s_add_u32 s39, s39, {WS_MPA}
        s_bitcmp1_b32 s64, 2
        s_cselect_b32 s28, 1.0, 0""")
    def gemv(u, st=True):
        def prm(j):
            if u < 2: return RA + j, u*32768, 4096, GD + 4*j, GA_ + 4*u, u == 0
            return RB + (j & 3), (j >> 2)*16384, 2048, GD + 4*(j & 3), GA_ + 4*(j >> 2), j < 4
        def rd(j):
            va, off, hs = prm(j)[:3]
            k(f"ds_read_b64_tr_b16 v[{GB_+4*j}:{GB_+4*j+1}], v{va} offset:{off}")
            k(f"ds_read_b64_tr_b16 v[{GB_+4*j+2}:{GB_+4*j+3}], v{va} offset:{off+hs}")
        for j in range(7): rd(j)
        for j in range(8):
            k(f"s_waitcnt lgkmcnt({12 if j == 0 else 2*(7 - j)})")
            d_, a_, z = prm(j)[3:]
            k(f"v_mfma_f32_16x16x32_bf16 v[{d_}:{d_+3}], v[{a_}:{a_+3}], v[{GB_+4*j}:{GB_+4*j+3}], {'0' if z else f'v[{d_}:{d_+3}]'}")
            if j == 0: rd(7)
        if u:
            for h in range(3 - u):
                d_ = GD + 16*h
                for t, m_ in ((1, "s[60:61]"), (2, "s[62:63]"), (3, "s[72:73]")):
                    k(f"v_cndmask_b32 v{d_}, v{d_}, v{d_+4*t}, {m_}")
                k(f"v_and_or_b32 v{PO + 2*(u-1) + h}, v{d_}, s74, v212")
    PO = 224
    def mp(u, cp):
        if cp: k(f"s_add_u32 s42, s{29+u}, {WS_MPB - WS_MPA}")
        for h in range(3 - u):
            k(f"buffer_store_dword v{PO+2*(u-1)+h}, v13, s[12:15], s{42 if cp else 29+u} offen offset:{h*256} {('', 'sc1')[cp]}")
    stamp(k, 2)
    k("ds_read_u16 v6, v8\ns_waitcnt lgkmcnt(0)")
    k(f"""v_lshlrev_b32 v6, 16, v6
    v_mul_f32 v24, {LOG2E}, v6
    v_exp_f32 v24, v24
    v_add_f32 v24, 1.0, v24
    v_rcp_f32 v24, v24
    v_mul_f32 v6, v6, v24
    v_cvt_pk_bf16_f32 v6, v6, v6
    ds_write_b16 v8, v6
    ds_read_b128 v[{GA_}:{GA_+3}], v10
    ds_read_b128 v[{GA_+4}:{GA_+7}], v10 offset:64""")
    gemv(0)
    xprep()
    k("s_barrier")
    stamp(k, 3)
    gemv(1)
    mp(1, 0)
    stamp(k, 4)
    k("s_cmp_eq_u32 s66, 1\ns_cbranch_scc1 x_start\ns_barrier")
    if E("XH", 0):
        k.c("wave 0: a share of the second tiles of the two X workgroups into L2")
        k(f"""s_cmp_lg_u32 s16, 0
        s_cbranch_scc1 m_nh
        s_mul_i32 s42, s35, 9
        s_add_u32 s42, s42, 896
        s_mul_i32 s42, s42, 12288
        s_lshl_b32 s43, s34, 9
        s_add_u32 s42, s42, s43
        s_and_b32 s43, s34, 4
        s_lshl_b32 s43, s43, 9
        s_add_u32 s42, s42, s43
        s_add_u32 s42, s42, {3*2048}
        v_lshrrev_b32 v24, 2, v2
        v_mul_u32_u24 v24, 12288, v24
        v_lshl_add_u32 v24, v15, 7, v24
        s_mov_b32 exec_hi, 15
        buffer_load_dword v245, v24, s[8:11], s42 offen
        s_mov_b32 exec_hi, -1
        m_nh:""")
    k("s_barrier")
    gemv(2)
    mp(2, 0)
    stamp(k, 5)
    k("s_barrier")
    HN = E("HN", 37)
    if HN:
        k.c("the gate / up columns whose lines stream slowly are pulled into L2 by all M workgroups of the die")
        k(f"""s_bitcmp1_b32 s16, 0
        {"s_cbranch_scc1 m_nh2" if E("XN", 0) else ""}
        s_cselect_b32 s8, s52, s50
        s_cselect_b32 s9, s53, s51
        s_mov_b32 s10, {1024*3584*2}
        s_lshr_b32 s42, s8, 7
        s_sub_u32 s42, 3, s42
        s_add_u32 s42, s42, s34
        s_and_b32 s42, s42, 7
        s_cmp_eq_u32 s42, 7
        s_cbranch_scc1 m_nh2
        s_mul_i32 s43, s34, 7
        s_add_u32 s42, s42, s43
        s_lshl_b32 s42, s42, 7
        s_lshl_b32 s43, s35, 1
        s_lshr_b32 s40, s16, 1
        s_add_u32 s43, s43, s40
        s_mul_i32 s43, s43, {37*7168}
        s_add_u32 s42, s42, s43
        v_mul_u32_u24 v24, 7168, v2
        s_mov_b32 exec_lo, {((1 << HN) - 1) & 0xffffffff}
        s_mov_b32 exec_hi, {((1 << HN) - 1) >> 32}
        buffer_load_dword v245, v24, s[8:11], s42 offen
        s_mov_b64 exec, -1
        m_nh2:""")
    BD, BG, BU = 32, 64, 96
    def rdw(base, va):
        for ks in range(8):
            k(f"ds_read_b64_tr_b16 v[{base+4*ks}:{base+4*ks+1}], v{va} offset:{ks*4096}")
            k(f"ds_read_b64_tr_b16 v[{base+4*ks+2}:{base+4*ks+3}], v{va} offset:{ks*4096+2048}")
    k("s_barrier")
    rdw(BG, 12)
    k("s_waitcnt vmcnt(0)\ns_barrier")
    k.c("write-through copy of the partial sums (read back through L2, one KB per wave)")
    def fwd(lab, w0=0):
        k(f"""s_sub_u32 s42, s16, {w0}
        s_cmp_ge_u32 s42, 3
        s_cbranch_scc1 {lab}
        s_lshl_b32 s42, s42, 10
        s_add_u32 s42, s42, s29
        s_add_u32 s43, s42, {WS_MPB - WS_MPA}
        buffer_load_dwordx4 v[44:47], v3, s[12:15], s42 offen sc1
        s_waitcnt vmcnt(0)
        buffer_store_dwordx4 v[44:47], v3, s[12:15], s43 offen sc1
        {lab}:""")
    fwd("m_nb", 1)
    k("@@L0@@")
    k.c("================= waves 4-7: the loaders (nine 32 KB units through four LDS slots) =================")
    k(f"""g_load:
    s_and_b32 s69, s16, 3
    s_and_b32 s42, s16, 1
    s_lshl_b32 s42, s42, 7
    v_xor_b32 v6, s42, v3
    v_xor_b32 v7, 32, v6
    v_xor_b32 v8, 64, v6
    v_xor_b32 v9, 96, v6
    s_lshl_b32 s41, s35, 3
    s_add_u32 s41, s41, s69
    s_mul_i32 s18, s41, {8*12288}
    s_lshl_b32 s41, s34, 10
    s_cmp_ge_u32 s34, 6
    s_cselect_b32 s42, 2048, 0
    s_add_u32 s18, s18, s41
    s_add_u32 s18, s18, s42
    s_lshl_b32 s68, s69, 13
    s_mov_b32 s10, {1024*6144*2}
    s_waitcnt lgkmcnt(0)
    s_mov_b32 s8, s58
    s_mov_b32 s9, s59
    s_mov_b32 s12, s6
    s_mov_b32 s13, s7
    s_cmp_eq_u32 s40, 0
    s_cbranch_scc1 h_non
    h_nonx:
    s_lshl_b32 s42, s69, 7
    s_add_u32 s42, s42, {L_SI}
    s_mov_b32 m0, s42
    s_lshl_b32 s42, s35, 7
    v_add_u32 v10, s42, v13
    s_mov_b32 exec_hi, 0
    global_load_lds_dword v10, s[56:57]
    s_mov_b32 exec_hi, -1""")
    stamp(k, 1)
    W0, W1, W2 = E("W0", 8), E("W1", 7), E("W2", 10)
    WU = [int(x) for x in os.environ.get("WU", "8,8,8,8,10,10,10").split(",")]
    win = lambda n: WU[n >> 3]
    def unit_load(n):
        u, i = n >> 3, n & 7
        slot = ((u + 1) & 3) * 32768
        if u < 2:
            va, srdb, sb, stride = 6 + (i & 3), 8, 18, 12288
            rows = 32 * u + i
        elif u == 2:
            va, srdb, sb, stride = 4, 8, 19, 12288
            rows = 2 * i
            k(f"v_xor_b32 v4, {64*(i&1) + 128*((i>>2)&1)}, v14")
        elif u < 7:
            va, srdb, sb, stride = 5, (56, 56, 44, 44)[u-3], 67, 7168
            rows = 256 * ((u + 1) & 1) + 32 * (i >> 2) + 16 * (i & 1) + 4 * ((i >> 1) & 1)
        k(f"s_add_u32 s43, s68, {slot + i*1024}\ns_mov_b32 m0, s43\ns_add_u32 s42, s{sb}, {rows*stride}")
        if E("NOW", 0) and u >= 3: return
        nt = "nt" if (E("NTU", 511) >> u) & 1 else ""
        k(f"buffer_load_dwordx4 v{va}, s[{srdb}:{srdb+3}], s42 offen {nt} lds")
    L1, L2 = E("L1", 4), E("L2", 6)
    def stream(n0, n1, total, landed):
        for n in range(n0, n1):
            w = min(win(n), n) if n else 1
            for u, la in ((1, L1), (2, L2)):
                if n == 8 * (u + 1) + la and landed <= u:
                    k(f"s_waitcnt vmcnt({la})")
                    while landed <= u:
                        event(landed); landed += 1
            if n >= win(n): k(f"s_waitcnt vmcnt({win(n)-1})")
            while 8 * (landed + 1) <= n - win(n) + 1 and landed < 5:
                event(landed); landed += 1
            unit_load(n)
        if n1 == total:
            while 8 * (landed + 1) <= total - 16:
                k(f"s_waitcnt vmcnt({total - 8*(landed+1)})")
                event(landed); landed += 1
        return landed
    def event(u):
        stamp(k, 40 + u)
        k("s_barrier")
        if u in (1, 2): k("s_barrier")
        if u == 4: rdw(BG, 12)
    def setup2():
        pass
    landed = stream(0, 8, 56, 0)
    k(f"""s_lshl_b32 s19, s35, 2
    s_add_u32 s19, s19, s69
    s_mul_i32 s19, s19, {16*12288}
    s_lshl_b32 s42, s34, 9
    s_add_u32 s19, s19, s42
    s_and_b32 s42, s34, 4
    s_lshl_b32 s42, s42, 9
    s_add_u32 s19, s19, s42
    s_add_u32 s19, s19, {3*2048}
    v_lshrrev_b32 v5, 5, v2
    v_and_b32 v14, 0x1f0, v3
    v_lshlrev_b32 v12, 5, v5
    v_xor_b32 v14, v14, v12
    s_movk_i32 s42, 12288
    v_mad_u32_u24 v14, v5, s42, v14
    v_bfe_u32 v5, v0, 5, 1
    v_lshlrev_b32 v5, 3, v5
    v_bfe_u32 v12, v0, 3, 2
    v_add_u32 v5, v5, v12
    v_bfe_u32 v12, v0, 4, 2
    v_lshlrev_b32 v12, 1, v12
    v_xor_b32 v12, v12, v0
    v_and_b32 v12, 7, v12
    v_lshlrev_b32 v12, 4, v12
    s_movk_i32 s42, 7168
    v_mad_u32_u24 v5, v5, s42, v12""")
    common()
    k(f"""s_lshl_b32 s67, s65, 3
    s_add_u32 s67, s67, s69
    s_mul_i32 s67, s67, {64*7168}
    s_lshl_b32 s42, s64, 7
    s_add_u32 s67, s67, s42
""")
    srd(k, 56, 50, 1024 * 3584 * 2)
    srd(k, 44, 52, 1024 * 3584 * 2)
    landed = stream(8, 10, 56, landed)
    nonce_issue(k, 20, 128)
    landed = stream(10, 16, 56, landed)
    nonce_finish(k, "g_n2", 20, 192, 120)
    k("s_cmp_eq_u32 s66, 0\ns_cbranch_scc1 m_load")
    xprep()
    k(f"s_waitcnt vmcnt(0)\ns_barrier\ns_branch x_start\nm_load:")
    stream(16, 56, 56, landed)
    k("s_branch m_join\n@@L1@@\nm_join:")
    L_H = 131072
    KB = 24; HA = 128; AG = 160
    k.c("v13 h2 write ; v17 A read")
    k(f"""v_bfe_u32 v7, v0, 4, 2
    v_and_b32 v6, 1, v0
    v_lshlrev_b32 v17, 10, v6
    v_lshl_add_u32 v17, v16, 9, v17
    v_lshl_add_u32 v17, v7, 4, v17
    v_add_u32 v17, {L_H}, v17
    v_and_b32 v6, 15, v0
    v_lshlrev_b32 v13, 6, v6
    v_bfe_u32 v22, v0, 4, 1
    v_lshl_add_u32 v13, v22, 5, v13
    v_bfe_u32 v22, v0, 5, 1
    v_lshl_add_u32 v13, v22, 4, v13
    v_add_u32 v13, {L_H}, v13
    v_lshl_add_u32 v13, v1, 10, v13
    s_lshl_b32 s70, s34, 1
    s_add_u32 s70, s70, s16
    s_lshl_b32 s70, s70, 13
    s_lshl_b32 s71, s65, 11
    s_add_u32 s70, s70, s71
    s_add_u32 s70, s70, {WS_HM}
    s_mov_b32 s71, 0x07060302
    s_lshl_b32 s69, s64, 2
    s_and_b32 s42, s16, 3
    s_add_u32 s69, s69, s42
    s_lshl_b32 s69, s69, 10
    s_lshl_b32 s76, s65, 1
    s_lshr_b32 s42, s16, 2
    s_add_u32 s76, s76, s42
    s_lshl_b32 s76, s76, 8
    s_add_u32 s76, s76, s69
    s_add_u32 s77, s76, {WS_XB}
    s_add_u32 s76, s76, {WS_XA}
    s_add_u32 s69, s69, {WS_XA}
""")
    k.c("waves 0, 1 wait for the two rows while the last units land; wave 2 brings the hand-off lines into L2")
    k(f"""s_cmp_lg_u32 s16, 2
    s_cbranch_scc1 m_n0
    v_lshlrev_b32 v4, 7, v2
    s_sub_u32 s69, s69, 2048
    s_mov_b32 exec_hi, 0
    buffer_load_dword v5, v4, s[12:15], s69 offen sc1
    s_mov_b32 exec_hi, -1
    m_n0:
    s_cmp_ge_u32 s16, 2
    s_cbranch_scc1 m_n1
    v_lshlrev_b32 v4, 7, v2
    s_mov_b64 exec, 0xffff
    buffer_load_dword v5, v4, s[12:15], s70 offen sc1
    s_mov_b64 exec, -1
    m_n1:""")
    mtag4(k, 216)
    htag(k, 60)
    hl = lambda so: f"""buffer_load_dwordx4 v[176:179], v3, s[12:15], s{so} offen sc1
    buffer_load_dwordx4 v[180:183], v3, s[12:15], s{so} offen offset:1024 sc1"""
    k("s_movk_i32 s74, 0xff00\ns_waitcnt vmcnt(0)")
    stamp(k, 6); stamp(k, 45)
    k(f"""s_barrier
    s_cmp_ge_u32 s16, 2
    s_cselect_b64 exec, 1, -1
    {hl(70)}
    s_mov_b64 exec, -1""")
    rdw(BU, 21)
    k(f"""s_cbranch_scc1 m_nk
    s_mov_b32 s83, 0
    s_branch m_ph
    m_pr:
    s_and_b32 s42, s83, 63
    s_cmp_eq_u32 s42, 63
    s_cselect_b32 s42, {HM_B}, 0
    s_add_u32 s42, s42, s70
    {hl(42)}
    s_add_u32 s83, s83, 1
    s_cmp_ge_u32 s83, {SPIN}
    s_cbranch_scc1 m_phx
    m_ph:
    s_waitcnt vmcnt(0)
    v_cmp_ne_u16 vcc, s63, v183
    s_cbranch_vccnz m_pr""")
    for i in range(4): k(f"v_perm_b32 v{184+i}, v{177+2*i}, v{176+2*i}, s71")
    k("ds_write_b128 v13, v[184:187]")
    for i in range(8): k(f"v_xor_b32 v{176+i}, s{60+(i&3)}, v{176+i}")
    for i in range(4): k(f"v_or3_b32 v4, v{176+2*i}, v{177+2*i}, {'0' if i == 0 else 'v4'}")
    k("v_cmp_ne_u16 vcc, 0, v4\ns_cbranch_vccnz m_pr\nm_phx:")
    stamp(k, 14)
    def slot_of(d, s_):
        k(f"""s_bfe_u32 s{d}, s{s_}, 0x70005
        s_lshl_b32 s{d}, s{d}, 13
        s_and_b32 s{s_}, s{s_}, 1
        s_lshl_b32 s{s_}, s{s_}, 12
        s_add_u32 s{d}, s{d}, s{s_}""")
    k("m_nk:\ns_waitcnt lgkmcnt(0)\ns_barrier")
    for ks in range(8):
        k(f"ds_read_b128 v[{HA+4*ks}:{HA+4*ks+3}], v17 offset:{ks*64}")
    mm_ = lambda a_, b_, ks: k(f"v_mfma_f32_16x16x32_bf16 v[{a_}:{a_+3}], v[{HA+4*ks}:{HA+4*ks+3}], v[{b_+4*ks}:{b_+4*ks+3}], {'0' if ks == 0 else f'v[{a_}:{a_+3}]'}")
    for ks in range(8):
        k(f"s_waitcnt lgkmcnt({7-ks})")
        mm_(AG, BG, ks); mm_(AG + 4, BU, ks)
    PB = 184
    for i, r_ in enumerate((AG, AG + 1, AG + 4, AG + 5)): k(f"v_and_or_b32 v{PB+i}, v{r_}, s74, v{216+i}")
    k(f"""s_mov_b64 exec, 0xffff
    buffer_store_dwordx4 v[{PB}:{PB+3}], v3, s[12:15], s76 offen
    buffer_store_dwordx4 v[{PB}:{PB+3}], v3, s[12:15], s77 offen sc1
    s_mov_b64 exec, -1""")
    stamp(k, 15)
    k("s_cmp_eq_u32 s16, 0\ns_cbranch_scc1 r_start\ng_end:")
    stamp_out(k, 0)
    k(f"""s_endpgm
""")
    k.c("================= X: modulation tables, then the final reduction =================")
    k("x_start:")
    stamp(k, 30)
    def gather(lab, rnd):
        k(f"""s_mov_b32 s83, 0
        {lab}:
        s_and_b32 s42, s83, 63
        s_cmp_eq_u32 s42, 63
        s_cselect_b32 s42, {WS_MPB - WS_MPA}, 0
        s_add_u32 s42, s42, s{81 - rnd}""")
        if rnd == 0:
            k("""s_add_u32 s43, s42, 4096
            buffer_load_dwordx4 v[32:35], v3, s[12:15], s42 offen sc1
            buffer_load_dwordx4 v[36:39], v3, s[12:15], s43 offen sc1""")
        else:
            k("buffer_load_dwordx4 v[32:35], v223, s[12:15], s42 offen offset:2048 sc1")
        k("s_waitcnt vmcnt(0)")
        untag(k, range(32, 40 - 4*rnd), 216, 17)
        tagchk(k, 17)
        k(f"""s_cbranch_vccz {lab}x
        s_and_b32 s42, s83, 63
        s_cmp_lg_u32 s42, 48
        s_cbranch_scc1 {lab}n""")
        own_b(rnd)
        k(f"{lab}n:")
        spin(k, lab, E("SLP", 0))
        k(f"{lab}x:")
        stamp(k, 31 + 3*rnd)
        if rnd == 0:
            for h in range(2): padd(k, 32 + 2*h, 32 + 2*h, 36 + 2*h)
        k(f"""ds_write_b128 v222, v[32:35] offset:{rnd*8192}
        s_waitcnt lgkmcnt(0)
        s_barrier
        s_cmp_lg_u32 s16, 0
        s_cbranch_scc1 {lab}e""")
        for i in range(8): k(f"ds_read_b128 v[{160+4*i}:{163+4*i}], v221 offset:{rnd*8192+i*1024}")
        for i in range(0, 8, 2):
            k(f"s_waitcnt lgkmcnt({6-i})")
            for h in range(2): padd(k, 160 + 4*i + 2*h, 160 + 4*i + 2*h, 164 + 4*i + 2*h)
        for h in range(2):
            padd(k, 160 + 2*h, 160 + 2*h, 168 + 2*h); padd(k, 176 + 2*h, 176 + 2*h, 184 + 2*h)
        for h in range(2): padd(k, 160 + 2*h, 160 + 2*h, 176 + 2*h)
    def own_b(rnd):
        k(f"s_add_u32 s43, s39, {WS_MPB - WS_MPA}")
        for i in range(2 + rnd):
            k(f"buffer_load_dwordx4 v[44:47], v3, s[12:15], s39 offen offset:{i*1024} sc1")
            k("s_waitcnt vmcnt(0)")
            k(f"buffer_store_dwordx4 v[44:47], v3, s[12:15], s43 offen offset:{i*1024} sc1")
            k("s_waitcnt vmcnt(0)")
    def fin_store(v, so, o, va, vm_=None):
        if vm_: k(f"ds_bpermute_b32 v{o+4}, v232, v{v}")
        for i in range(4): k(f"v_and_or_b32 v{o+i}, v{v+i}, s74, v{216+i}")
        k(f"buffer_store_dwordx4 v[{o}:{o+3}], v{va}, s[12:15], s{so} offen sc1")
        if vm_:
            for i in range(1, 4): k(f"v_and_or_b32 v{o+4+i}, v{v+4-i}, s74, v{228+i}")
            k(f"s_waitcnt lgkmcnt(0)\nv_and_or_b32 v{o+4}, v{o+4}, s74, v228")
            k(f"buffer_store_dwordx4 v[{o+4}:{o+7}], v{vm_}, s[12:15], s{so} offen sc1")
    gather("x_g0", 0)
    for h in range(2): rb2(k, 160 + 2*h, 17 + h)
    for n in range(4): k(f"v_add_f32 v{160+n}, s28, v{160+n}")
    for h in range(2): rb2(k, 160 + 2*h, 17 + h)
    k(f"""v_mov_b32 v48, s32
    v_mov_b32 v49, s33
    s_cmp_ge_u32 s64, 8
    s_cbranch_scc1 x_q""")
    fin_store(160, 22, 168, 220)
    k("""v_max3_f32 v50, abs(v160), abs(v161), abs(v162)
    v_max_f32_e64 v50, v50, abs(v163)""")
    wave_reduce_to63(k, [50], "v_max_f32")
    rec_ = """v_readlane_b32 s42, v50, 63
    v_mov_b32 v50, s42
    s_mov_b64 exec, 0xff
    buffer_store_dwordx4 v[48:51], v3, s[12:15], s79 offen sc1
    s_mov_b64 exec, -1"""
    k(rec_)
    k("s_branch x_g0e\nx_q:\ns_cmp_lt_u32 s64, 12\ns_cbranch_scc1 x_nq")
    for h in range(2): unpack_bf16(k, 164 + 2*h, 52 + h)
    for h in range(2): pmul(k, 164 + 2*h, 164 + 2*h, 160 + 2*h)
    fin_store(164, 75, 176, 220, 234)
    for i in range(4): k(f"v_and_b32 v{164+i}, s74, v{164+i}")
    padd(k, 164, 164, 166)
    k("v_add_f32 v50, v164, v165")
    wave_reduce_to63(k, [50], "v_add_f32")
    k(rec_)
    k("x_nq:")
    fin_store(160, 22, 168, 220, 234)
    k("""
    x_g0e:""")
    stamp(k, 32); stamp(k, 14)
    k("s_barrier\ns_cmp_lt_u32 s16, 4\ns_cbranch_scc1 x_t1")
    for n in range(16, 24):
        unit_load(n)
    k("s_waitcnt vmcnt(0)\ns_barrier\ns_branch x_t2\nx_t1:")
    k("s_barrier")
    gemv(2)
    mp(2, 0)
    k("x_t2:")
    stamp(k, 33)
    gather("x_g1", 1)
    for i in range(4): k(f"v_mov_b32 v{164+i}, v{160+i}")
    for i in range(4): k(f"v_permlane32_swap_b32 v{160+i}, v{164+i}")
    for h in range(2): padd(k, 160 + 2*h, 160 + 2*h, 164 + 2*h)
    for h in range(2): rb2(k, 160 + 2*h, 17 + h)
    k("s_mov_b32 exec_hi, 0")
    fin_store(160, 23, 168, 233, 235)
    k("s_mov_b32 exec_hi, -1\nx_g1e:")
    stamp(k, 6); stamp(k, 35)
    fwd("x_nb")
    XN = E("XN", 0)
    if XN:
        k.c("idle time: the slowly streaming up column of this die into L2")
        k(f"""s_barrier
        s_mov_b32 s8, s52
        s_mov_b32 s9, s53
        s_mov_b32 s10, {1024*3584*2}
        s_lshr_b32 s42, s8, 7
        s_sub_u32 s42, 3, s42
        s_add_u32 s42, s42, s34
        s_and_b32 s42, s42, 7
        s_cmp_eq_u32 s42, 7
        s_cbranch_scc1 x_nh
        s_mul_i32 s43, s34, 7
        s_add_u32 s42, s42, s43
        s_lshl_b32 s42, s42, 7
        s_lshl_b32 s43, s65, 3
        s_add_u32 s43, s43, s16
        s_mul_i32 s43, s43, {64*7168}
        s_add_u32 s42, s42, s43
        v_mul_u32_u24 v24, 7168, v2
        buffer_load_dword v245, v24, s[8:11], s42 offen
        x_nh:""")
    k(f"""s_cmp_lg_u32 s16, 0
    s_cbranch_scc1 g_end
    s_lshl_b32 s78, s34, 14
    s_add_u32 s78, s78, {WS_KEY}
    s_lshl_b32 s79, s34, 7
    s_add_u32 s79, s79, {WS_GO}
    v_mov_b32 v22, 0""")
    srd(k, 56, 48, 2048)
    htag(k, 60)
    btag(k, 44)
    k.c("w_r, sb and 1+cb in slot order")
    k(f"""v_and_b32 v9, 15, v0
    v_lshlrev_b32 v9, 6, v9
    v_bfe_u32 v19, v0, 4, 1
    v_lshl_add_u32 v9, v19, 5, v9
    v_lshlrev_b32 v18, 9, v19
    v_bfe_u32 v19, v0, 5, 1
    v_lshl_add_u32 v9, v19, 4, v9
    v_lshl_add_u32 v18, v19, 11, v18
    v_bfe_u32 v19, v0, 2, 2
    v_lshl_add_u32 v18, v19, 7, v18
    v_lshl_add_u32 v18, v15, 4, v18
    s_mov_b32 s43, {WS_FIN + FIN_T + P_SB}
    s_lshl_b32 s70, s64, 13
    s_add_u32 s70, s70, {WS_HM}
    s_add_u32 s71, s70, {HM_B}
    s_add_u32 s72, s70, 4096
    s_add_u32 s73, s71, 4096
    v_mov_b32 v21, 0xffff0000""")
    for j in range(2):
        k(f"buffer_load_dwordx4 v[{92+4*j}:{95+4*j}], v9, s[56:59], 0 offen offset:{j*1024}")
    k("s_mov_b32 s83, 0\nx_sb:")
    k(f"s_sleep {E('XSB', 12)}")
    for j in range(4):
        k(f"buffer_load_dwordx4 v[{100+4*j}:{103+4*j}], v18, s[12:15], s43 offen offset:{(j>>1)*64 + (j&1)*1024} sc1")
    k("s_sub_u32 s42, s43, 8192")
    for j in range(4):
        k(f"buffer_load_dwordx4 v[{116+4*j}:{119+4*j}], v18, s[12:15], s42 offen offset:{(j>>1)*64 + (j&1)*1024} sc1")
    k("s_waitcnt vmcnt(0)")
    untag(k, range(100, 132), 216, 19)
    tagchk(k, 19)
    k("s_cbranch_vccz x_sbx")
    spin(k, "x_sb", 0)
    k("x_sbx:")
    stamp(k, 22)
    for i in range(8): unpack_bf16(k, 48 + 2*i, 92 + i)
    poll_recs(k, "x_go", 28, 22, 79, "1", sl=E("SLG", 1))
    k.c("the two workgroups of a die start with different halves")
    k("s_lshl_b32 s42, s65, 13\ns_add_u32 s78, s78, s42")
    if E("XKS", 0): k(f"s_sleep {E('XKS', 0)}")
    stamp(k, 23)
    poll_keys(k, "x_pk", 24, 78, 32, sl=E("SLK", 0))
    stamp(k, 24); stamp(k, 13)
    top2(k, 24, 32, "x_t1st")
    k("s_mov_b32 s40, s41\nx_t1st:\nv_mov_b32 v46, s40")
    slot_of(42, 40)
    k(f"""s_lshr_b32 s43, s42, 5
    s_add_u32 s42, s42, {WS_SLOT}
    s_add_u32 s43, s43, {WS_SH}
    s_mov_b32 s83, 0
    x_ph:
    s_mov_b64 exec, 1
    buffer_load_dwordx4 v[28:31], v22, s[12:15], s43 offen sc1
    s_mov_b64 exec, -1""")
    for q in range(4): k(f"buffer_load_dwordx4 v[{64+4*q}:{67+4*q}], v3, s[12:15], s42 offen offset:{q*1024} sc1")
    k("""s_waitcnt vmcnt(4)
    v_readfirstlane_b32 s22, v28
    v_readfirstlane_b32 s23, v29
    v_readfirstlane_b32 s20, v30
    v_readfirstlane_b32 s21, v31
    s_xor_b64 s[22:23], s[22:23], s[32:33]""")
    k("s_cbranch_scc1 x_pr")
    for q in range(4):
        k(f"s_waitcnt vmcnt(3)")
        for i in range(4): k(f"v_xor_b32 v{64+4*q+i}, s{44 + 4*(q & 1) + i}, v{64+4*q+i}")
        k(f"v_or3_b32 v19, v{64+4*q}, v{65+4*q}, v{66+4*q}\nv_or_b32 v19, v19, v{67+4*q}")
        for i in range(2*q, 2*q + 2):
            k(f"v_pk_fma_f32 {P(64+2*i)}, {P(64+2*i)}, s[20:21], s[20:21] op_sel:[0,1,0] op_sel_hi:[1,1,0]")
        k(f"v_cmp_ne_u16_sdwa vcc, v19, v22 src0_sel:BYTE_0 src1_sel:DWORD")
        for i in range(2*q, 2*q + 2): pfma(k, 64 + 2*i, 64 + 2*i, 116 + 2*i, 100 + 2*i)
        for i in range(2*q, 2*q + 2): k(f"v_cvt_pk_bf16_f32 v{32+i}, v{64+2*i}, v{65+2*i}")
        k("s_cbranch_vccnz x_pr")
        for i in range(2*q, 2*q + 2):
            k(f"v_lshl_or_b32 v{64+2*i}, v{32+i}, 16, s{60+((2*i)&3)}")
            k(f"v_and_or_b32 v{65+2*i}, v{32+i}, v21, s{60+((2*i+1)&3)}")
        k(f"buffer_store_dwordx4 v[{64+4*q}:{67+4*q}], v3, s[12:15], s70 offen offset:{q*1024}")
    k("x_phx:")
    stamp(k, 15)
    for q in range(4):
        k(f"buffer_store_dwordx4 v[{64+4*q}:{67+4*q}], v3, s[12:15], s71 offen offset:{q*1024} sc1")
    for i in range(8): unpack_bf16(k, 100 + 2*i, 32 + i)
    pmul(k, 8, 48, 100)
    for i in range(1, 8): pfma(k, 8, 48 + 2*i, 100 + 2*i, 8)
    k("v_add_f32 v8, v8, v9")
    wave_reduce_to63(k, [8])
    round_bf16(k, 8, 8)
    k(f"""v_mul_f32 v8, {LOG2E}, v8
    v_exp_f32 v8, v8
    v_add_f32 v8, 1.0, v8
    v_rcp_f32 v8, v8""")
    round_bf16(k, 8, 8)
    k(f"""v_readlane_b32 s46, v8, 63
    v_mov_b32 v44, s32
    v_mov_b32 v45, s33
    v_mov_b32 v47, s46
    s_mov_b64 exec, 0xff
    buffer_store_dwordx4 v[44:47], v3, s[12:15], s73 offen sc1
    s_mov_b64 exec, -1
    s_sleep {E('XSL', 20)}""")
    k.c("================= final reduction: one job (row, 16-column block s18) per G workgroup =================")
    k(f"""r_start:
    s_lshl_b32 s62, s34, 1
    s_lshr_b32 s42, s34, 2
    s_add_u32 s62, s62, s42
    s_lshl_b32 s62, s62, 13
    s_add_u32 s62, s62, {WS_HM + HM_B}
    s_add_u32 s61, s62, 4096
    s_and_b32 s18, s34, 3
    s_lshl_b32 s18, s18, 4
    s_add_u32 s18, s18, s35
    v_mov_b32 v11, 0
    v_and_b32 v4, 3, v0
    v_lshrrev_b32 v7, 4, v2
    v_lshlrev_b32 v5, 3, v4
    v_lshl_add_u32 v5, v7, 1, v5
    v_lshlrev_b32 v6, 10, v4
    v_lshl_add_u32 v6, v7, 2, v6
    v_lshrrev_b32 v86, 1, v4
    v_lshlrev_b32 v86, 9, v86
    v_and_b32 v87, 1, v4
    v_lshl_add_u32 v85, v87, 10, v86
    v_lshl_add_u32 v85, v7, 2, v85
    s_and_b32 s30, s18, 1
    s_bfe_u32 s31, s18, 0x20001
    s_bfe_u32 s40, s18, 0x20003
    s_lshr_b32 s41, s18, 5
    s_lshl_b32 s45, s41, 11
    s_lshl_b32 s42, s30, 8
    s_add_u32 s45, s45, s42
    s_lshl_b32 s42, s40, 6
    s_add_u32 s45, s45, s42
    s_lshl_b32 s31, s31, 4
    s_add_u32 s45, s45, s31
    s_add_u32 s62, s62, s45
    s_lshl_b32 s30, s30, 9
    s_add_u32 s31, s31, s30
    s_lshl_b32 s40, s40, 7
    s_add_u32 s31, s31, s40
    s_lshl_b32 s41, s41, 6
    s_add_u32 s31, s31, s41
    s_add_u32 s31, s31, {WS_FIN + FIN_T + P_GB}
    s_mov_b32 s83, 0
    r_ld:
    s_mov_b64 exec, 1
    buffer_load_dwordx4 v[32:35], v11, s[12:15], s61 offen sc1
    s_mov_b64 exec, -1
    buffer_load_dword v41, v85, s[12:15], s62 offen sc1
    buffer_load_dword v91, v6, s[12:15], s31 offen sc1
    s_bitcmp1_b32 s18, 1
    s_cselect_b32 s42, s33, s32
    v_lshlrev_b32 v88, 3, v7
    v_lshrrev_b32_e64 v88, v88, s42
    v_and_b32 v88, 0xff, v88
    v_lshlrev_b32 v89, 4, v7
    v_lshrrev_b64 v[82:83], v89, s[32:33]
    v_and_b32 v82, 0xffff, v82
    s_waitcnt vmcnt(0)
    v_readfirstlane_b32 s50, v32
    v_readfirstlane_b32 s51, v33
    v_readfirstlane_b32 s40, v34
    v_readfirstlane_b32 s46, v35
    v_xor_b32 v91, v88, v91
    v_xor_b32 v41, v82, v41
    v_or_b32 v19, v91, v41
    v_cmp_ne_u16 vcc, 0, v19
    s_xor_b64 s[50:51], s[50:51], s[32:33]
    s_or_b64 vcc, vcc, s[50:51]
    s_cbranch_vccz r_ldx""")
    spin(k, "r_ld", 2)
    k(f"""r_ldx:
    v_mul_f32 v80, s46, v91
    s_bfe_u32 s46, s40, 0x70005
    s_bfe_u32 s47, s40, 0x30002
    s_bfe_u32 s60, s40, 0x10001""")
    slot_of(63, 40)
    k(f"""s_add_u32 s63, s63, s45
    s_add_u32 s63, s63, {WS_SLOT}
    buffer_load_dword v44, v85, s[12:15], s63 offen sc1
    v_lshrrev_b32 v10, 2, v2
    v_lshlrev_b32 v10, 7, v10
    v_lshl_add_u32 v10, v4, 4, v10
    s_lshl_b32 s44, s18, 13
    s_and_b32 s42, s34, 4
    s_lshl_b32 s42, s42, 4
    s_add_u32 s44, s44, s42
    s_add_u32 s44, s44, {WS_PART}
    s_add_u32 s45, s44, 4096""")
    row_of(k, 41, 46, 47, 61)
    mirror_row(k, 61, 41)
    k("""s_cmp_eq_u32 s60, 1
    s_cselect_b32 s41, s61, s41
    s_lshl_b32 s41, s41, 11
    s_lshl_b32 s61, s18, 5
    s_add_u32 s41, s41, s61""")
    if E("OTOUCH", 1): k("s_mov_b64 exec, 1\nbuffer_load_dword v245, v5, s[24:27], s41 offen\ns_mov_b64 exec, -1\ns_waitcnt vmcnt(1)")
    else: k("s_waitcnt vmcnt(0)")
    k("""v_and_b32 v44, 0xffffff00, v44
    v_fmac_f32 v44, v91, v41""")
    stamp(k, 16)
    L = 16; U = 48
    for i in range(4): k(f"v_mov_b32 v{L+12+i}, v{216+i}")
    if E("SL4", 24): k(f"s_sleep {E('SL4', 24)}")
    k(f"""s_mov_b32 s83, 0
    s_mov_b64 s[64:65], -1
    s_mov_b64 s[66:67], -1
    s_mov_b64 s[68:69], -1
    s_mov_b32 s70, -1
    s_mov_b32 s71, 0
    r_p:""")
    for j in range(4):
        k(f"""s_mov_b64 exec, s[{64+2*j}:{65+2*j}]
        s_cbranch_execz r_q{j}
        buffer_load_dwordx4 v[{L+4*j}:{L+4*j+3}], v10, s[12:15], s{44 + (j >> 1)} offen offset:{(j&1)*2048} sc1
        r_q{j}:""")
    k("s_mov_b64 exec, -1\ns_waitcnt vmcnt(0)")
    for i in range(16): k(f"v_xor_b32 v{U+i}, v{216+(i&3)}, v{L+i}")
    for j in range(4):
        k(f"v_or3_b32 v{12+j}, v{U+4*j}, v{U+4*j+1}, v{U+4*j+2}")
    for j in range(4):
        k(f"v_or_b32 v{12+j}, v{12+j}, v{U+4*j+3}")
    for h in range(2):
        padd(k, U + 2*h, U + 2*h, U + 4 + 2*h); padd(k, U + 8 + 2*h, U + 8 + 2*h, U + 12 + 2*h)
    for j in range(4):
        k(f"v_cmp_ne_u16_sdwa s[{64+2*j}:{65+2*j}], v{12+j}, v11 src0_sel:BYTE_0 src1_sel:DWORD")
    for h in range(2): padd(k, U + 2*h, U + 2*h, U + 8 + 2*h)
    k("""s_or_b64 s[50:51], s[64:65], s[66:67]
    s_or_b64 s[52:53], s[68:69], s[70:71]
    s_or_b64 s[50:51], s[50:51], s[52:53]
    s_cbranch_scc1 r_r
    r_x:""")
    stamp(k, 17)
    k(f"v_permlane32_swap_b32 v{U}, v{U+2}\nv_permlane32_swap_b32 v{U+1}, v{U+3}")
    padd(k, U, U, U + 2)
    k(f"v_permlane16_swap_b32 v{U}, v{U+1}\nv_add_f32 v{U}, v{U}, v{U+1}")
    for sh in (4, 8): k(f"v_add_f32_dpp v{U}, v{U}, v{U} row_ror:{sh} {DPPM}")
    k(f"""v_fmac_f32 v44, v{U}, v80
    s_mov_b32 exec_lo, 0x000f000f
    s_mov_b32 exec_hi, 0x000f000f
    v_cvt_pk_bf16_f32 v44, v44, v44
    buffer_store_short v44, v5, s[24:27], s41 offen""")
    stamp_out(k, 0)
    k("s_endpgm\nx_pr:\ns_waitcnt vmcnt(0)")
    spin(k, "x_ph", 0)
    k("s_branch x_phx\nr_r:")
    spin(k, "r_p", E("RSL", 0))
    k("s_branch r_x")

def gen():
    k = K(NAME)
    stamp_init(k)
    k("""s_cmp_ge_u32 s2, 256
    s_cbranch_scc1 k_done""")
    stamp(k, 0)
    head(k)
    role_F(k)
    n0 = len(k.lines)
    role_G(k)
    g = k.lines[n0:]; f = k.lines[:n0]
    ix = lambda L, t: [x.strip() for x in L].index(t)
    a, b = ix(g, "@@L0@@"), ix(g, "@@L1@@")
    ld = g[a+1:b]; g = g[:a] + g[b+1:]
    a = ix(g, "@@L@@"); g = g[:a] + ld + g[a+1:]
    a = ix(f, "@@G@@"); k.lines = f[:a] + g + f[a+1:]
    k("k_done:\ns_endpgm")
    return k

HEADER = """; adaLN + FNet mixing + MoD block, gfx950.  Generated by gen/gen28.py (hand-written generator).
"""
def tables():
    import numpy as np
    def h2(a, b):
        return int(np.float16(a).view(np.uint16)) | (int(np.float16(b).view(np.uint16)) << 16)
    def f4(a): return int(np.float32(a).view(np.uint32))
    cs = lambda x: (math.cos(2 * math.pi * x), math.sin(2 * math.pi * x))
    w = []
    for var in range(2):
        for mt in range(2):
            for l in range(64):
                m, g = l & 15, l >> 4
                k1, p = 8 * mt + (m >> 1), m & 1
                for i in range(4):
                    j0 = 4 * g + (i ^ (2 * (g & 1)))
                    if var == 0:
                        c, s_ = cs((j0 * k1 % 16) / 16.0)
                        v = (h2(c, s_), h2(-s_, c))[p]
                    elif k1 == 0:
                        v = h2(1.0 if p == 0 else (-1.0) ** j0, 0)
                    elif k1 < 8:
                        c, s_ = cs((j0 * k1 % 16) / 16.0)
                        v = h2((c, -s_)[p], 0)
                    else:
                        c, s_ = cs(j0 * (8 + 16 * (k1 - 8)) / 256.0)
                        v = h2(0, (c, -s_)[p])
                    w.append(v)
    t = ".p2align 8\n.type tables,@object\ntables:\n"
    for i in range(0, len(w), 8):
        t += ".long " + ",".join("0x%x" % x for x in w[i:i+8]) + "\n"
    return t + f".size tables, {4*len(w)}\nall_end:\n"

def main(out):
    k = gen()
    t = HEADER + f"; @launch grid=(256,1,1) block=(512,1,1) lds={LDS}\n"
    t += '.amdgcn_target "amdgcn-amd-amdhsa--gfx950"\n.text\n' + k.text() + 'code_end:\n' + tables()
    t += '.section .rodata,"a"\n' + k.desc()
    open(out, "w").write(t)
if __name__ == "__main__":
    main(sys.argv[1] if len(sys.argv) > 1 else "adaLN_cond__spectral_fnet__moe_arch_mod__prompt.s")
```

```python
import re

TRANS = ("v_exp_f32", "v_log_f32", "v_rcp_f32", "v_rsq_f32", "v_sqrt_f32", "v_sin_f32", "v_cos_f32",
         "v_rcp_iflag_f32")

def _regs(tok):
    tok = tok.strip()
    tok = tok.lstrip("-")
    m = re.match(r"^(?:abs\(|\|)(.*?)(?:\)|\|)$", tok)
    if m:
        tok = m.group(1)
    m = re.match(r"^([vsa])(\d+)$", tok)
    if m:
        return {m.group(1) + m.group(2)}
    m = re.match(r"^([vsa])\[(\d+):(\d+)\]$", tok)
    if m:
        return {m.group(1) + str(i) for i in range(int(m.group(2)), int(m.group(3)) + 1)}
    if tok in ("vcc", "vcc_lo", "vcc_hi"):
        return {"vcc"}
    if tok in ("exec", "exec_lo", "exec_hi"):
        return {"exec"}
    if tok == "m0":
        return {"m0"}
    return set()

class Ins:
    def __init__(self, text):
        self.text = text
        t = text.split(";")[0].strip()
        self.label = t.endswith(":")
        self.directive = t.startswith(".") or t == ""
        self.op = ""
        self.w = set(); self.r = set()
        self.kind = "other"
        self.states = 1
        if self.label or self.directive:
            self.states = 0
            return
        parts = t.split(None, 1)
        op = parts[0]; self.op = op
        rest = parts[1] if len(parts) > 1 else ""
        ops = []; depth = 0; cur = ""
        for ch in rest:
            if ch in "[(": depth += 1
            if ch in "])": depth -= 1
            if ch == "," and depth == 0:
                ops.append(cur); cur = ""
            else:
                cur += ch
        ops.append(cur)
        mods = ""
        if ops:
            last = ops[-1].strip().split(None, 1)
            if last:
                ops[-1] = last[0]
                mods = last[1] if len(last) > 1 else ""
        ops = [o.strip() for o in ops if o.strip() != ""]
        self.ops = ops; self.mods = mods
        R = [_regs(o) for o in ops]
        self.dpp = ("_dpp" in op) or any(k in mods for k in ("row_", "quad_perm", "wave_"))
        if op == "s_nop":
            self.states = int(ops[0], 0) + 1
            self.kind = "nop"
        elif op.startswith("v_smfmac"):
            self.kind = "mfma"
            self.w = R[0]; self.ra = R[1] | R[2] | R[3]; self.rc = R[0]; self.r = self.ra | self.rc
            self.passes = 8 if "32x32" in op else 4
        elif op.startswith("v_mfma"):
            self.kind = "mfma"
            self.w = R[0]; self.ra = R[1] | R[2]; self.rc = R[3]; self.r = self.ra | self.rc
            self.passes = 8 if "32x32" in op else 4
        elif op.startswith("v_"):
            self.kind = "valu"
            base = op.replace("_e32", "").replace("_e64", "").replace("_dpp", "").replace("_sdwa", "")
            self.base = base
            if base in ("v_swap_b32", "v_permlane16_swap_b32", "v_permlane32_swap_b32"):
                self.w = R[0] | R[1]; self.r = R[0] | R[1]
            elif base.startswith("v_cmpx"):
                self.w = R[0] | {"exec"}; self.r = set().union(*R[1:])
            elif base in ("v_add_co_u32", "v_sub_co_u32", "v_addc_co_u32", "v_subb_co_u32"):
                self.w = R[0] | R[1]; self.r = set().union(*R[2:])
            else:
                self.w = R[0]; self.r = set().union(*R[1:]) if len(R) > 1 else set()
                if base.startswith(("v_fmac", "v_dot2c", "v_fma_mixlo", "v_fma_mixhi", "v_writelane")) or self.dpp:
                    self.r |= R[0]
            self.trans = base in TRANS
            self.opsel_dst = base in ("v_fma_mixhi_f16", "v_fma_mixlo_f16") or "dst_sel:WORD" in mods or "dst_sel:BYTE" in mods
        elif op.startswith(("buffer_", "global_")):
            self.kind = "vmem"
            self.lds = (" lds" in (" " + mods)) or "_lds_" in op
            self.wide_store = False
            if "load" in op and not self.lds:
                self.w = R[0]; self.r = set().union(*R[1:])
            elif "atomic" in op:
                self.r = set().union(*R)
                if "sc0" in mods and op.startswith("buffer_"): self.w = R[0]
            else:
                self.r = set().union(*R) if R else set()
                if "store" in op and ("x4" in op or "x3" in op):
                    self.wide_store = True
                    self.sdata = R[0] if op.startswith("buffer_") else R[1]
            if self.lds: self.r |= {"m0"}
        elif op.startswith("ds_"):
            self.kind = "ds"
            if op.startswith(("ds_read", "ds_bpermute", "ds_permute", "ds_swizzle")):
                self.w = R[0]; self.r = set().union(*R[1:])
            else:
                self.r = set().union(*R)
        elif op.startswith("s_"):
            self.kind = "salu"
            if op.startswith(("s_cmp", "s_cbranch", "s_branch", "s_waitcnt", "s_barrier", "s_endpgm", "s_sleep", "s_setprio", "s_bitcmp")):
                self.r = set().union(*R) if R else set()
            else:
                self.w = R[0] if R else set(); self.r = set().union(*R[1:]) if len(R) > 1 else set()
                if "saveexec" in op: self.w |= {"exec"}

def _need(p, c):
    n = 0
    vw = {x for x in p.w if x[0] in "va" and x != "vcc"}
    sw = {x for x in p.w if x[0] == "s" or x == "vcc"}
    if p.kind == "valu":
        if c.kind == "mfma" and (vw & c.r): n = max(n, 2)
        if c.kind == "mfma" and "exec" in p.w: n = max(n, 4)
        if c.kind == "valu":
            if c.dpp and (vw & c.r): n = max(n, 2)
            if c.dpp and "exec" in p.w: n = max(n, 5)
            if c.base.startswith("v_permlane") and (vw & c.r): n = max(n, 2)
            if c.base.startswith("v_permlane") and "exec" in p.w: n = max(n, 4)
            if c.base in ("v_readlane_b32", "v_readfirstlane_b32") and (vw & c.r): n = max(n, 1)
            if c.base in ("v_readlane_b32", "v_readfirstlane_b32", "v_writelane_b32") and "exec" in p.w: n = max(n, 4)
            if sw & c.r:
                n = max(n, 4 if c.base in ("v_readlane_b32", "v_writelane_b32") else 2)
            if p.trans and (vw & c.r) : n = max(n, 1)
            if p.opsel_dst and (vw & (c.r | c.w)): n = max(n, 1)
        if c.kind == "vmem" and (sw & c.r): n = max(n, 5)
        if c.kind == "mfma" and p.trans and (vw & c.r): n = max(n, 2)
        if c.kind in ("vmem", "ds") and p.trans and (vw & c.r): n = max(n, 1)
    if p.kind == "mfma":
        big = {4: 8, 8: 12}[p.passes]
        if c.kind == "mfma":
            if p.w & c.ra: n = max(n, big)
            if p.w & c.rc:
                if not (p.w == c.rc and p.passes == c.passes): n = max(n, {4: 6, 8: 10}[p.passes])
            elif p.w & c.w: n = max(n, big)
        elif c.kind in ("valu", "vmem", "ds"):
            if p.w & (c.r | c.w): n = max(n, big)
        if c.kind == "valu" and (p.rc & c.w): n = max(n, {4: 3, 8: 7}[p.passes])
    if p.kind == "vmem" and p.wide_store:
        if p.sdata & c.w: n = max(n, 2 if c.kind in ("valu", "mfma") else 1)
    if p.kind == "salu" and "m0" in p.w and c.kind == "vmem" and c.lds: n = max(n, 1)
    return n

def fix_hazards(lines):
    out = []
    hist = []
    for ln in lines:
        ins = Ins(ln)
        if ins.label or ins.directive:
            out.append(ln)
            continue
        need = 0
        for p, dist in hist:
            k = _need(p, ins) - dist
            if k > need: need = k
        while need > 0:
            k = min(need, 16)
            out.append(f"    s_nop {k-1}")
            hist = [(p, d + k) for p, d in hist]
            need -= k
        out.append(ln)
        hist = [(p, d + ins.states) for p, d in hist if d + ins.states < 24]
        if ins.op == "s_endpgm":
            hist = []
        else:
            hist.append((ins, 0))
    return out

class K:
    def __init__(self, name):
        self.name = name
        self.lines = []
    def __call__(self, s):
        for ln in s.strip("\n").split("\n"):
            ln = ln.strip()
            if ln == "": continue
            if ln.endswith(":") and not ln.startswith(";"):
                self.lines.append(ln)
            else:
                self.lines.append("    " + ln)
    def c(self, s):
        self.lines.append("    ; " + s)
    def text(self):
        body = fix_hazards(self.lines)
        body = [l + "    ; poll back-off (reads of a line that is still being written slow its writers)" if l.strip().startswith("s_sleep") else l for l in body]
        return (f".globl {self.name}\n.p2align 8\n.type {self.name},@function\n{self.name}:\n" + "\n".join(body) + "\n")
    def maxreg(self, kind):
        mx = -1
        for ln in self.lines:
            t = ln.split(";")[0]
            for m in re.finditer(r"\b%s(\d+)\b" % kind, t): mx = max(mx, int(m.group(1)))
            for m in re.finditer(r"\b%s\[(\d+):(\d+)\]" % kind, t): mx = max(mx, int(m.group(2)))
        return mx
    def desc(self):
        nv = self.maxreg("v") + 1
        na = self.maxreg("a") + 1
        ns = self.maxreg("s") + 1
        acc = max(4, (nv + 3) // 4 * 4)
        nfv = acc + na if na else nv
        return f""".p2align 6
.amdhsa_kernel {self.name}
  .amdhsa_next_free_vgpr {nfv}
  .amdhsa_next_free_sgpr {max(ns, 16)}
  .amdhsa_accum_offset {acc}
  .amdhsa_group_segment_fixed_size 0
  .amdhsa_kernarg_size 120
  .amdhsa_user_sgpr_count 2
  .amdhsa_user_sgpr_kernarg_segment_ptr 1
  .amdhsa_system_sgpr_workgroup_id_x 1
  .amdhsa_float_denorm_mode_32 3
  .amdhsa_float_denorm_mode_16_64 3
.end_amdhsa_kernel
"""

def v(a, n=1):
    return f"v{a}" if n == 1 else f"v[{a}:{a+n-1}]"
def s(a, n=1):
    return f"s{a}" if n == 1 else f"s[{a}:{a+n-1}]"
import struct
def f32(x):
    return "0x%08x" % struct.unpack("<I", struct.pack("<f", x))[0]
```

```python
import math, sys, os
from asmgen import K, f32
from gen2 import (srd, P, padd, psub, pmul, pfma, pmul_s, pfma_s, psub_s, unpack_bf16, round_bf16, DPPM,
                  row_allreduce, wave_reduce_to63, pos16, stamp, stamp_init, stamp_out, chk_sent,
                  A_X, A_WR, A_WG, A_WU, A_WD, A_C, A_WM, A_OUT, A_DBG, A_WS, WS_SIZE)
from gen4 import E, SPIN, NAME

WS_Z    = 0x0100000
WS_STA  = 0x1000000
WS_STB  = 0x1008000
WS_GO   = 0x1010000
WS_REC  = 0x1012000
WS_FIN  = 0x1018000
FIN_T   = 4096
WS_HM   = 0x1080000
HM_B    = 0x20000
WS_MPA  = 0x1300000
WS_MPB  = 0x1380000
WS_PART = 0x1100000
WS_XA   = 0x1180000
WS_XB   = 0x11C0000
WS_KEY  = 0x1040000
WS_SLOT = 0x1200000
WS_SH   = 0x1060000
P_CS, P_SAS, P_GA, P_GAM, P_Q, P_QM, P_C1, P_C1M, P_SB, P_SBM, P_GB, P_GBM, P_END = (
    0, 2048, 4096, 8192, 12288, 16384, 20480, 24576, 28672, 32768, 36864, 40960, 45056)
L_C = 0; L_P = 16384; L_X = L_P + P_END; L_U = L_X + 32768; L_R = L_U + 32768; L_KEY = L_R + 32768
L_ST = L_KEY + 1024
LDS = 163840
XW = 64
assert L_KEY + 256 <= LDS
LOG2E = f32(-math.log2(math.e))
SL2 = E("SL2", 4)

class VM:
    def __init__(self, k): self.k = k; self.q = []
    def __call__(self, tag, text): self.k(text); self.q.append(tag)
    def wait(self, tag, extra=""):
        i = len(self.q) - 1 - self.q[::-1].index(tag)
        self.k(f"s_waitcnt vmcnt({len(self.q) - 1 - i}) {extra}")

def cmp_recs(k, base):
    k(f"v_cmp_ne_u64 vcc, s[32:33], v[{base}:{base+1}]")
def spin(k, lab, sl):
    k(f"""{f"s_sleep {sl}" if sl else ""}
    s_add_u32 s83, s83, 1
    s_cmp_lt_u32 s83, {SPIN}
    s_cbranch_scc1 {lab}""")
def poll_recs(k, lab, base, vaddr, soff, mask, sl=SL2):
    k(f"s_mov_b32 s83, 0\ns_mov_b64 exec, {mask}\n{lab}:")
    k(f"buffer_load_dwordx2 v[{base}:{base+1}], v{vaddr}, s[12:15], s{soff} offen sc1")
    k("s_waitcnt vmcnt(0)")
    cmp_recs(k, base)
    k(f"s_cbranch_vccz {lab}y")
    spin(k, lab, sl)
    k(f"{lab}y:\ns_mov_b64 exec, -1\n{lab}x:")
def poll_keys(k, lab, base, soff, tmp, sl=1):
    k(f"""v_lshlrev_b32 v{tmp}, 7, v2
    s_xor_b32 s42, s{soff}, 8192
    s_mov_b32 s83, 0
    s_mov_b64 vcc, -1
    s_mov_b64 s[40:41], -1
    {lab}:
    s_mov_b64 exec, vcc
    s_cbranch_execz {lab}a
    buffer_load_dwordx4 v[{base}:{base+3}], v{tmp}, s[12:15], s{soff} offen sc1
    {lab}a:
    s_mov_b64 exec, s[40:41]
    s_cbranch_execz {lab}b
    buffer_load_dwordx4 v[{base+4}:{base+7}], v{tmp}, s[12:15], s42 offen sc1
    {lab}b:
    s_mov_b64 exec, -1
    s_waitcnt vmcnt(0)
    {lab}c:
    v_cmp_ne_u32 vcc, s32, v{base+1}
    v_cmp_ne_u32 s[20:21], s33, v{base+3}
    v_cmp_ne_u32 s[40:41], s32, v{base+5}
    v_cmp_ne_u32 s[22:23], s33, v{base+7}
    v_max_u32 v{tmp+1}, v{base}, v{base+4}
    v_min_u32 v{tmp+2}, v{base}, v{base+4}
    s_or_b64 vcc, vcc, s[20:21]
    s_or_b64 s[40:41], s[40:41], s[22:23]
    s_or_b64 s[20:21], vcc, s[40:41]
    s_cbranch_scc0 {lab}x""")
    spin(k, lab, sl)
    k(f"{lab}x:")
def top2(k, base, tmp, skip=None):
    m1, m2, c = tmp + 1, tmp + 2, tmp + 3
    k(f"v_mov_b32 v{c}, v{m1}")
    k(f"v_max3_u32 v{m2}, v{m2}, v{base+2}, v{base+6}")
    wave_reduce_to63(k, [c], "v_max_u32")
    k(f"v_readlane_b32 s40, v{c}, 63")
    if skip: k(f"s_cmp_eq_u32 s65, 0\ns_cbranch_scc1 {skip}")
    k(f"v_cmp_eq_u32 vcc, s40, v{m1}")
    k(f"v_cndmask_b32 v{c}, v{m1}, v{m2}, vcc")
    wave_reduce_to63(k, [c], "v_max_u32")
    k(f"v_readlane_b32 s41, v{c}, 63")
def go_wait(k, lab, soff, vz, vd):
    poll_recs(k, lab, vd, vz, soff, "1", sl=E("SLG", 3))
    if E("SLG2", 1): k(f"s_sleep {E('SLG2', 1)}")
def nonce_issue(k, sp, off):
    k(f"s_load_dwordx2 s[32:33], s[{sp}:{sp+1}], {off}")
def nonce_finish(k, lab, sp, off, vt):
    k(f"""s_waitcnt lgkmcnt(0)
    s_cmp_lg_u32 s32, 0
    s_cbranch_scc1 {lab}x
    s_load_dwordx2 s[32:33], s[{sp}:{sp+1}], {off}
    s_mov_b32 s83, 0
    v_mov_b32 v{vt+2}, 0
    s_waitcnt lgkmcnt(0)
    {lab}:
    s_cmp_lg_u32 s32, 0
    s_cbranch_scc1 {lab}x
    global_load_dwordx2 v[{vt}:{vt+1}], v{vt+2}, s[{sp}:{sp+1}] sc1
    s_waitcnt vmcnt(0)
    v_readfirstlane_b32 s32, v{vt}
    v_readfirstlane_b32 s33, v{vt+1}""")
    spin(k, lab, 0)
    k(f"{lab}x:")
def rb2(k, v, t):
    k(f"v_cvt_pk_bf16_f32 v{t}, v{v}, v{v+1}")
    unpack_bf16(k, v, t)
def row_of(k, d, q, w, t1):
    k(f"""s_lshr_b32 s{t1}, s{q}, 4
    s_and_b32 s{d}, s{q}, 15
    s_lshl_b32 s{d}, s{d}, 4
    s_add_u32 s{d}, s{d}, s{t1}
    s_lshr_b32 s{t1}, s{q}, 3
    s_cmp_eq_u32 s{t1}, 1
    s_cselect_b32 s{t1}, 120, 0
    s_sub_u32 s{d}, s{d}, s{t1}
    s_lshl_b32 s{t1}, s{w}, 8
    s_add_u32 s{d}, s{d}, s{t1}
    s_cmp_ge_u32 s{w}, 4
    s_cselect_b32 s{t1}, 896, 0
    s_cmp_eq_u32 s{q}, 0
    s_cselect_b32 s{t1}, s{t1}, 0
    s_sub_u32 s{d}, s{d}, s{t1}""")
def mirror_row(k, d, t):
    k(f"""s_sub_u32 s{d}, 2048, s{t}
    s_cmp_eq_u32 s{t}, 0
    s_cselect_b32 s{d}, 1024, s{d}""")

def mtag(k, d, idx):
    k(f"""v_mov_b32 v{d}, s32
    v_mov_b32 v{d+1}, s33
    v_and_b32 v{d+2}, 7, v{idx}
    v_lshlrev_b32 v{d+2}, 3, v{d+2}
    v_lshrrev_b64 v[{d}:{d+1}], v{d+2}, v[{d}:{d+1}]""")
def mtag4(k, d):
    k(f"""v_mov_b32 v{d}, s32
    v_mov_b32 v{d+1}, s33
    v_and_b32 v{d+2}, 1, v0
    v_cmp_eq_u32 vcc, 1, v{d+2}
    v_cndmask_b32 v{d}, v{d}, v{d+1}, vcc
    v_bfe_u32 v{d+1}, v{d}, 8, 8
    v_bfe_u32 v{d+2}, v{d}, 16, 8
    v_lshrrev_b32 v{d+3}, 24, v{d}
    v_and_b32 v{d}, 0xff, v{d}""")
def htag(k, d):
    k(f"""s_and_b32 s{d}, s32, 0xffff
    s_lshr_b32 s{d+1}, s32, 16
    s_and_b32 s{d+2}, s33, 0xffff
    s_lshr_b32 s{d+3}, s33, 16""")
def btag(k, d):
    for i in range(8): k(f"s_bfe_u32 s{d+i}, s{32 + (i >> 2)}, {(8 << 16) | (8 * (i & 3))}")
def untag(k, regs, tg, acc, first=True):
    regs = list(regs)
    for i, r in enumerate(regs): k(f"v_xor_b32 v{r}, v{tg+(i&3)}, v{r}")
    for i in range(0, len(regs), 2):
        k(f"v_or3_b32 v{acc}, v{regs[i]}, v{regs[i+1]}, {'0' if first and i == 0 else f'v{acc}'}")
def tagchk(k, acc):
    k(f"v_and_b32 v{acc}, 0xff, v{acc}\nv_cmp_ne_u32 vcc, 0, v{acc}")

def stats(k, vm, pre, lastpre, extra=()):
    S = 108; R = 112
    k(f"s_mov_b32 s4, 0x3f803f80\ns_mov_b32 s5, {f32(1.0/1024)}")
    for h in range(2):
        for jj in range(2):
            vm.wait(f"x{h}{jj}")
            if h == 0 and jj == 0: nonce_issue(k, 20, 0)
            if 2*h + jj < len(extra): extra[2*h + jj]()
            for q in range(4):
                r = XW + 8*jj + 4*h + q
                first = (h == 0 and q == 0)
                k(f"v_dot2_f32_bf16 v{S+jj}, v{r}, s4, {'0' if first else f'v{S+jj}'}")
                k(f"v_dot2_f32_bf16 v{S+2+jj}, v{r}, v{r}, {'0' if first else f'v{S+2+jj}'}")
    k("s_nop 1")
    def red1(js):
        for j in js: k(f"v_permlane32_swap_b32 v{S+j}, v{S+j+1}")
        for j in js: k(f"v_add_f32 v{S+j}, v{S+j}, v{S+j+1}")
        regs = [S + j for j in js]
        row_allreduce(k, regs)
        for r in regs: k(f"v_add_f32_dpp v{r}, v{r}, v{r} row_bcast:15 row_mask:0xa bank_mask:0xf")
    red1((0, 2))
    k.c("lanes 31 / 63 hold the two rows")
    V = S + 2
    k(f"""v_mul_f32 v{S}, s5, v{S}
    v_mul_f32 v{V}, s5, v{V}
    v_mul_f32 v{R+4}, v{S}, v{S}
    v_cvt_pk_bf16_f32 v{R+5}, -v{S}, -v{S}
    v_sub_f32 v{V}, v{V}, v{R+4}
    v_mul_f32 v{R+6}, {f32(512.0)}, v{V}
    v_cmp_gt_f32 vcc, v{R+4}, v{R+6}
    v_readlane_b32 s40, v{R+5}, 31
    s_or_b32 s41, vcc_lo, vcc_hi
    s_bitcmp1_b32 s41, 31
    s_cbranch_scc1 {pre}_slowvar
    {pre}_var:""")
    round_bf16(k, V, V)
    k(f"v_add_f32 v{V}, {f32(1e-5)}, v{V}")
    round_bf16(k, V, V)
    k(f"v_sqrt_f32 v{V}, v{V}")
    k(f"s_and_b32 s40, s40, 0xffff\nv_mov_b32 v{R+2}, 0xffff0000")
    round_bf16(k, V, V)
    k(f"""v_mul_f32 v{V}, {f32(16.0)}, v{V}
    v_and_or_b32 v{R+2}, v{R+5}, v{R+2}, s40
    v_rcp_f32 v{R+1}, v{V}""")
    nonce_finish(k, f"{pre}_nn", 20, 64, 120)
    k(f"""v_mov_b32 v{R+3}, s32
    v_mov_b32_dpp v{R}, v{R+1} row_bcast:31 row_mask:0xc bank_mask:0xf
    v_mov_b32 v{R+4}, 0""")
    if lastpre: vm.wait(lastpre)
    k("s_mov_b32 exec_lo, 0\ns_mov_b32 exec_hi, 0x80000000")
    k(f"buffer_store_dwordx4 v[{R}:{R+3}], v{R+4}, s[12:15], s62 offen")
    k(f"v_lshlrev_b32 v{R+5}, 4, v1\nv_add_u32 v{R+5}, {L_ST}, v{R+5}\nds_write_b128 v{R+5}, v[{R}:{R+3}]")
    k("s_mov_b64 exec, -1")
    def slow():
        k.c("---- rare: |mean| >> std, recompute the variance in two passes ----")
        k(f"{pre}_slowvar:")
        U2 = 120
        k(f"v_lshlrev_b32 v{R+6}, 16, v{R+5}")
        k(f"v_readlane_b32 s44, v{R+6}, 31\nv_readlane_b32 s46, v{R+6}, 63")
        for jj in range(2):
            sr = 44 + 2 * jj
            for i in range(8):
                unpack_bf16(k, U2, XW + jj * 8 + i)
                k(f"v_pk_add_f32 {P(U2)}, {P(U2)}, s[{sr}:{sr+1}] op_sel_hi:[1,0]")
                if i == 0: pmul(k, U2 + 2, U2, U2)
                else: pfma(k, U2 + 2, U2, U2, U2 + 2)
            k(f"v_add_f32 v{S+2+jj}, v{U2+2}, v{U2+3}")
        k(f"v_add_f32 v{R+6}, v{R+6}, v{S}")
        red1((2,))
        k(f"""v_mul_f32 v{S+2}, s5, v{S+2}
        v_fma_f32 v{S+2}, -v{R+6}, v{R+6}, v{S+2}
        v_max_f32 v{S+2}, 0, v{S+2}
        s_branch {pre}_var""")
    return slow

def stats_b(k):
    k(f"""v_add_u32 v84, {L_ST}, v3
    s_mov_b64 exec, 0xff
    ds_read_b128 v[80:83], v84
    s_waitcnt lgkmcnt(0)
    buffer_store_dwordx4 v[80:83], v3, s[12:15], s63 offen sc1
    s_mov_b64 exec, -1""")

def head(k):
    k(f"""s_load_dwordx2 s[4:5], s[0:1], {A_X}
    s_load_dwordx4 s[24:27], s[0:1], {A_OUT}
    s_load_dwordx2 s[6:7], s[0:1], {A_WS}
    s_load_dwordx4 s[56:59], s[0:1], {A_C}
    s_load_dwordx4 s[48:51], s[0:1], {A_WR}
    s_load_dwordx4 s[52:55], s[0:1], {A_WU}
    s_memrealtime s[32:33]
    v_lshrrev_b32 v1, 6, v0
    v_and_b32 v2, 63, v0
    v_readfirstlane_b32 s16, v1
    v_lshlrev_b32 v3, 4, v2
    v_mov_b32 v4, 0
    s_getpc_b64 s[36:37]
    h_pc:
    s_and_b32 s34, s2, 7
    s_bfe_u32 s35, s2, 0x40003
    s_cmp_lg_u32 s16, 7
    s_cbranch_scc1 h_npf
    s_lshr_b32 s42, s2, 3
    s_lshl_b32 s42, s42, 11
    v_lshl_add_u32 v4, v2, 7, s42
    v_min_u32 v4, all_end-h_pc-4, v4
    s_mov_b64 exec, 0xffff
    global_load_dword v199, v4, s[36:37]
    s_mov_b64 exec, -1
    h_npf:
    s_mov_b32 s11, 0x00020000
    s_mov_b32 s14, {WS_SIZE}
    s_mov_b32 s15, 0x00020000
    s_bitcmp0_b32 s2, 7
    s_cbranch_scc1 g_start""")
HQ = ["x00", "x01", "x10", "x11", "touch"]

def role_F(k):
    vm = VM(k); vm.q = list(HQ)
    N16, G4, VO, TR, UW, XD, XDM, SLA, SLM, V70, FA, BP, A3 = 4, 5, 6, 8, 12, 13, 14, 15, 16, 17, 18, 19, 22
    ZL, W, D1R, D1I, BRE, BIM, TC, TS, XA2, XB2, GA, GAM, Q, QM, CS = 24, 40, 56, 72, 88, 104, 120, 136, 152, 168, 184, 200, 216, 232, 248
    AB, S, XB, AH, D0, D, UO, A2, UB = 216, 24, 40, 224, 228, 56, 184, 236, 152
    T = 248; TG = 244; FT = 8; PFD = 6; FLW = E("FLW", 4); XR = E("XR", 1)
    k(f"""s_lshl_b32 s60, s16, 19
    s_lshl_b32 s61, s35, 15
    s_add_u32 s60, s60, s61
    s_lshl_b32 s61, s34, 11
    s_add_u32 s60, s60, s61
    s_add_u32 s61, s60, 16384
    s_lshl_b32 s62, s34, 11
    s_lshl_b32 s63, s35, 7
    s_add_u32 s62, s62, s63
    s_add_u32 s63, s62, {WS_STB}
    s_lshl_b32 s42, s16, 4
    s_add_u32 s62, s62, s42
    s_add_u32 s62, s62, {WS_STA}
    v_mov_b32 v116, 0
    s_mov_b32 s10, {2048*1024*2}
    s_waitcnt lgkmcnt(0)
    s_mov_b32 s8, s4
    s_mov_b32 s9, s5
    s_mov_b32 s12, s6
    s_mov_b32 s13, s7""")
    stamp(k, 1)
    for h in range(2):
        for jj in range(2):
            k(f"buffer_load_dwordx4 v[{XW+8*jj+4*h}:{XW+8*jj+4*h+3}], v3, s[8:11], s{60+jj} offen offset:{h*1024}")
    k(f"""s_mov_b64 exec, 1
    buffer_load_dword v215, v116, s[12:15], s62 offen sc1
    s_mov_b64 exec, -1
    s_branch f_start
    @@G@@
    f_start:
    s_mov_b32 s20, s26
    s_mov_b32 s21, s27
    s_mov_b32 s26, 4194304
    s_mov_b32 s27, 0x00020000
    s_mov_b32 s22, s50
    s_mov_b32 s23, s51
    s_mov_b32 s28, s54
    s_mov_b32 s29, s55
    s_add_u32 s58, s36, tables-h_pc
    s_addc_u32 s59, s37, 0""")
    k.c("s36 = k0 slot of this wave in the second radix-16 step ; s37 = column-block pair read after the exchange")
    k(f"""s_lshr_b32 s36, s35, 1
    s_and_b32 s36, s36, 4
    s_xor_b32 s36, s36, s16
    s_and_b32 s37, s34, 4
    s_xor_b32 s37, s37, s16""")
    k(f"""s_lshl_b32 s3, s34, 4
    s_add_u32 s3, s3, s35
    v_and_b32 v{N16}, 15, v0
    v_bfe_u32 v{G4}, v0, 4, 2
    v_lshrrev_b32 v{T}, 3, v2
    v_lshlrev_b32 v{T}, 18, v{T}
    v_lshlrev_b32 v{T+1}, 1, v{G4}
    v_xor_b32 v{T+1}, v{T+1}, v0
    v_and_b32 v{T+1}, 7, v{T+1}
    v_lshl_add_u32 v{T+7}, v{T+1}, 4, v{T}
    v_lshlrev_b32 v{VO}, 16, v{G4}
    v_lshl_add_u32 v{VO}, v{N16}, 4, v{VO}
    s_lshl_b32 s60, s16, 15
    s_lshl_b32 s61, s34, 11
    s_add_u32 s60, s60, s61
    s_lshl_b32 s61, s35, 7
    s_add_u32 s60, s60, s61
    s_lshl_b32 s61, s16, 12
    s_add_u32 s61, s61, {L_X}
    s_lshl_b32 s64, s36, 19
    s_lshl_b32 s65, s35, 3
    s_and_b32 s66, s34, 1
    s_lshl_b32 s66, s66, 2
    s_add_u32 s65, s65, s66
    s_lshr_b32 s66, s34, 1
    s_add_u32 s65, s65, s66
    s_lshl_b32 s65, s65, 8
    s_add_u32 s64, s64, s65
    s_add_u32 s64, s64, {WS_Z}
    s_add_u32 s65, s64, 32768
    s_add_u32 s66, s64, {8*32768}
    s_add_u32 s67, s64, {9*32768}
""")
    def tile(i):
        k(f"s_mov_b32 m0, s61\ns_add_u32 s42, s60, {(i&1)*8*262144 + (i>>1)*16384}\ns_add_u32 s61, s61, 1024")
        vm("tile", f"buffer_load_dwordx4 v{T+7}, s[8:11], s42 offen lds")
    def tabs():
        k(f"""s_cmp_eq_u32 s36, 0
        s_cselect_b32 s42, 2048, 0
        v_add_u32 v{T}, s42, v3""")
        vm("tab", f"global_load_dwordx4 v[{A2}:{A2+3}], v{T}, s[58:59]")
        vm("tab", f"global_load_dwordx4 v[{A2+4}:{A2+7}], v{T}, s[58:59] offset:1024")
    def tabs2():
        k(f"s_lshl_b32 s42, s16, 11\ns_mov_b32 m0, s42\nv_add_u32 v{T}, s42, v3")
        vm("tab", f"global_load_lds_dwordx4 v{T}, s[58:59]")
        vm("tab", f"global_load_lds_dwordx4 v{T}, s[58:59] offset:1024")
    TL = E("TL", 2)
    k("s_barrier")
    tabs()
    if TL == 0:
        for i in range(4): tile(i)
    def rowaddr():
        row_of(k, 30, 3, 16, 42)
        mirror_row(k, 31, 30)
        k(f"""s_lshl_b32 s18, s30, 11
        s_lshl_b32 s19, s31, 11
        s_sub_u32 s75, s19, 2048
        s_lshl_b32 s68, s16, 12
        s_add_u32 s68, s68, {L_R}""")
    rowaddr()
    def vtab():
        k.c("tables of the 1024-point DFT: waves 0-3 one quarter of the 32-point matrix each, waves 4-7 of the twiddle factors")
        TB = 152
        k(f"""v_bfe_u32 v{T}, v0, 2, 1
        v_bfe_u32 v{T+1}, v0, 3, 2
        v_lshlrev_b32 v{T+1}, 2, v{T+1}
        v_lshl_add_u32 v{T}, v{T}, 4, v{T+1}
        v_and_or_b32 v{T}, v0, 3, v{T}
        v_bfe_u32 v{T+1}, v0, 5, 3
        v_cvt_f32_u32 v{T}, v{T}
        v_cvt_f32_u32 v{T+1}, v{T+1}
        s_cmp_lt_u32 s16, 4
        s_mov_b32 s42, {f32(1.0/32)}
        s_cselect_b32 s42, s42, {f32(1.0/1024)}
        v_mul_f32 v{T}, s42, v{T}
        v_mul_f32 v{T+1}, 4.0, v{T+1}
        v_mul_f32 v{TB}, v{T}, v{T+1}""")
        for i in range(1, 4): k(f"v_add_f32 v{TB+i}, v{TB+i-1}, v{T}")
        for i in range(4): k(f"v_sin_f32 v{TB+4+i}, v{TB+i}")
        for i in range(4): k(f"v_cos_f32 v{TB+i}, v{TB+i}")
        k("s_cbranch_scc0 f_tw")
        for i in range(4):
            k(f"v_cvt_pk_f16_f32 v{TB+8}, v{TB+i}, v{TB+4+i}")
            k(f"v_cvt_pk_f16_f32 v{TB+4+i}, -v{TB+4+i}, v{TB+i}")
            k(f"v_mov_b32 v{TB+i}, v{TB+8}")
        k(f"""f_tw:
        s_and_b32 s42, s16, 4
        s_add_u32 s42, s42, s16
        s_lshl_b32 s42, s42, 10
        v_add_u32 v{T}, s42, v3
        ds_write_b128 v{T}, v[{TB}:{TB+3}] offset:{L_C}
        ds_write_b128 v{T}, v[{TB+4}:{TB+7}] offset:{L_C+4096}""")
    VT = E("VT", 0)
    if VT == 0: vtab()
    k.c("first-step matrix: lane m = 2*k0+p, rows j1 = 4g+i, angle k0*(16*j1+j0)/256")
    k(f"""v_lshrrev_b32 v{T}, 1, v{N16}
    v_and_b32 v{T+1}, 1, v0
    v_cmp_eq_u32 vcc, 1, v{N16}
    v_cndmask_b32_e64 v{T+2}, v{T}, 0, vcc
    v_cndmask_b32_e64 v{T}, v{T}, 8, vcc
    v_cndmask_b32_e64 v{T+1}, v{T+1}, 0, vcc
    v_mad_u32_u24 v{T+3}, v{T}, v{G4}, v{T+1}
    v_lshlrev_b32 v{T+3}, 5, v{T+3}
    v_mad_u32_u24 v{T+3}, v{T+2}, v1, v{T+3}
    v_cvt_f32_u32 v{T}, v{T}
    v_cvt_f32_u32 v{T+2}, v{T+2}
    v_cvt_f32_u32 v{T+3}, v{T+3}
    v_mul_f32 v{T}, {f32(1.0/16)}, v{T}
    v_mul_f32 v{T+2}, {f32(1.0/256)}, v{T+2}
    v_mul_f32 v{AB}, {f32(1.0/128)}, v{T+3}""")
    for i in range(1, 4): k(f"v_add_f32 v{AB+i}, v{AB+i-1}, v{T}")
    for i in range(4): k(f"v_add_f32 v{AB+4+i}, v{AB+i}, v{T+2}")
    for i in range(8): k(f"v_cos_f32 v{AB+i}, v{AB+i}")
    UWA, URA = 212, 213
    k(f"""v_lshrrev_b32 v{T}, 2, v2
    v_lshlrev_b32 v{TR}, 7, v{T}
    v_bfe_u32 v{T}, v0, 3, 2
    v_lshl_add_u32 v{TR}, v{T}, 5, v{TR}
    v_and_b32 v{T}, 3, v0
    v_lshl_add_u32 v{TR}, v{T}, 3, v{TR}
    v_lshl_add_u32 v{TR}, v1, 12, v{TR}
    v_xor_b32 v{TR+1}, 32, v{TR}
    v_xor_b32 v{TR+2}, 64, v{TR}
    v_xor_b32 v{TR+3}, 96, v{TR}
    v_lshlrev_b32 v{UW}, 13, v{G4}
    v_lshl_add_u32 v{UW}, v{N16}, 4, v{UW}
    v_lshlrev_b32 v7, 5, v{G4}
    v_and_b32 v{T}, 1, v0
    v_lshl_add_u32 v7, v{T}, 10, v7
    v_and_b32 v{T}, 2, v0
    v_lshl_add_u32 v7, v{T}, 3, v7
    s_lshl_b32 s70, s34, 11
    s_lshl_b32 s71, s16, 7
    s_add_u32 s71, s71, s70
    s_add_u32 s71, s71, {WS_STA}
    s_lshl_b32 s42, s16, 7
    s_add_u32 s42, s42, {L_U}
    v_lshlrev_b32 v{URA}, 3, v{N16}
    v_lshl_add_u32 v{UWA}, v{G4}, 13, v{URA}
    v_add_u32 v{UWA}, s42, v{UWA}
    s_lshl_b32 s42, s36, 12
    s_add_u32 s42, s42, {L_U}
    v_lshl_add_u32 v{URA}, v{G4}, 8, v{URA}
    v_and_b32 v{URA+1}, 16, v0
    v_lshl_add_u32 v{URA}, v{URA+1}, 3, v{URA}
    v_add_u32 v{URA}, s42, v{URA}
    v_xor_b32 v{URA+1}, 128, v{URA}""")
    slow1 = stats(k, vm, "f", None, [(lambda i=i: tile(i)) for i in range(4)] if TL == 1 else ())
    vm.q.append("sta")
    if TL == 3: k("s_barrier")
    if TL >= 2:
        for i in range(4): tile(i)
    k.c("the first row is this wave's output row: keep it")
    k(f"v_add_u32 v{T}, s68, v3")
    for h in range(2): k(f"ds_write_b128 v{T}, v[{XW+4*h}:{XW+4*h+3}] offset:{h*1024}")
    if VT == 1: vtab()
    k.c("tag bits: 8 bits of the nonce per 16-byte piece, all 64 bits over eight neighbouring lanes")
    k(f"""v_mov_b32 v{TG}, s32
    v_mov_b32 v{TG+1}, s33
    v_and_b32 v{T}, 4, v0
    v_cmp_eq_u32 vcc, 4, v{T}
    v_and_b32 v{T}, 3, v0
    v_lshlrev_b32 v{T}, 2, v{T}
    v_cndmask_b32 v{TG}, v{TG}, v{TG+1}, vcc
    v_lshrrev_b32 v{TG}, v{T}, v{TG}
    s_mov_b32 s54, 0x00010001
    s_mov_b32 s55, 0xfffefffe
    s_mov_b32 s46, 0x05040100
    s_mov_b32 s47, 0x07060302""")
    for i in range(1, 4): k(f"v_lshrrev_b32 v{TG+i}, {i}, v{TG}")
    for i in range(4): k(f"v_and_b32 v{TG+i}, s54, v{TG+i}")
    k.c("---- LN1 statistics of this wave's 32 rows (same-die copy first, now and then the write-through copy) ----")
    stl = lambda so: f"""s_mov_b32 exec_lo, 0x000f000f
    s_mov_b32 exec_hi, 0x000f000f
    buffer_load_dwordx4 v[{S}:{S+3}], v7, s[12:15], s{so} offen sc1"""
    k(f"s_waitcnt vmcnt({E('STW', 2)})")
    k(stl(71) + "\ns_mov_b64 exec, -1\ns_mov_b32 s83, 0\ns_waitcnt vmcnt(1)")
    stamp(k, 2)
    for jj in range(2):
        for nt in range(4):
            b = XB + (jj*4 + nt)*2
            k(f"ds_read_b64_tr_b16 v[{b}:{b+1}], v{TR+nt} offset:{L_X + jj*2048}")
    k(f"""s_mov_b32 exec_lo, 0x000f000f
    s_mov_b32 exec_hi, 0x000f000f
    f_st:
    s_waitcnt vmcnt(0)
    v_cmp_ne_u32 vcc, s32, v{S+3}
    s_mov_b64 exec, -1
    s_cbranch_vccnz f_str
    f_stx:
    s_setprio 3""")
    def st_retry():
        k(f"""f_str:
        s_and_b32 s42, s83, 31
        s_cmp_lg_u32 s42, 24
        s_cbranch_scc1 f_sb1""")
        stats_b(k)
        k(f"""f_sb1:
        s_cmp_eq_u32 s42, 31
        s_cselect_b32 s42, {WS_STB - WS_STA}, 0
        s_add_u32 s42, s42, s71""")
        if E("SLS", 0): k(f"s_sleep {E('SLS', 0)}")
        k(stl(42))
        spin(k, "f_st", 0)
        k("s_waitcnt vmcnt(0)\ns_mov_b64 exec, -1\ns_branch f_stx")
    vm.q = []
    stamp(k, 3)
    BM = S + 4; MM = S + 8
    for i in range(4): k(f"v_mov_b32_dpp v{MM+i}, v{S+2} row_newbcast:{i} {DPPM}")
    for jj in range(2):
        for i in range(4):
            k(f"v_mul_f32_dpp v{AB+4*jj+i}, v{S+jj}, v{AB+4*jj+i} row_newbcast:{i} {DPPM}")
        for hh in range(2): k(f"v_perm_b32 v{BM+2*jj+hh}, v{MM+2*hh+1}, v{MM+2*hh}, s{46+jj}")
        for hh in range(2): k(f"v_cvt_pk_bf16_f32 v{AH+2*jj+hh}, v{AB+4*jj+2*hh}, v{AB+4*jj+2*hh+1}")
        k(f"v_mfma_f32_16x16x16_bf16 v[{D0+4*jj}:{D0+4*jj+3}], v[{AH+2*jj}:{AH+2*jj+1}], v[{BM+2*jj}:{BM+2*jj+1}], 0")
    k("s_waitcnt lgkmcnt(0)")
    def s1m(nt):
        for jj in range(2):
            d = D + (nt*2 + jj)*4; b = XB + (jj*4 + nt)*2
            k(f"v_mfma_f32_16x16x16_bf16 v[{d}:{d+3}], v[{AH+2*jj}:{AH+2*jj+1}], v[{b}:{b+1}], v[{D0+4*jj}:{D0+4*jj+3}]")
    def s1c(nt):
        for ii in range(2):
            for jj in range(2):
                d = D + (nt*2 + jj)*4
                k(f"v_cvt_pk_f16_f32 v{UO+(nt*2+ii)*2+jj}, v{d+2*ii}, v{d+2*ii+1}")
            u = UO + (nt*2 + ii)*2
            k(f"ds_write_b64 v{UWA}, v[{u}:{u+1}] offset:{ii*4096 + nt*1024}")
    def early():
        k("s_mov_b32 m0, s68\ns_cmp_eq_u32 s34, 0\ns_cbranch_scc1 f_r0\nf_nr:")
        if EP == 3: return
        for u in range(2): k(f"buffer_load_dwordx4 v3, s[8:11], s75 offen offset:{2048+u*1024} lds")
    EP = 0
    s1m(0); s1m(1)
    if EP in (0, 3): early()
    s1m(2); s1c(0); s1m(3); s1c(1); s1c(2); s1c(3)
    k("s_waitcnt lgkmcnt(0)\ns_barrier")
    for nt in range(4):
        for h in range(2): k(f"ds_read_b64 v[{UB+4*nt+2*h}:{UB+4*nt+2*h+1}], v{URA+h} offset:{nt*1024}")
    if EP == 1: early()
    for mt in range(2):
        for nt in range(4):
            if mt == 0: k(f"s_waitcnt lgkmcnt({6-2*nt})")
            d = D + (mt*4 + nt)*4
            k(f"v_mfma_f32_16x16x32_f16 v[{d}:{d+3}], v[{A2+4*mt}:{A2+4*mt+3}], v[{UB+4*nt}:{UB+4*nt+3}], 0")
    for mt in range(2):
        for ii in range(2):
            o = UO + (mt*2 + ii)*4
            for nt in range(4):
                d = D + (mt*4 + nt)*4
                k(f"v_cvt_pk_f16_f32 v{o+nt}, v{d+2*ii}, v{d+2*ii+1}")
            for nt in range(4): k(f"v_and_or_b32 v{o+nt}, v{o+nt}, s55, v{TG+nt}")
            vm("z", f"buffer_store_dwordx4 v[{o}:{o+3}], v{VO}, s[12:15], s{64+mt*2+ii} offen sc1")
    stamp(k, 4)
    XRA, XRB = 200, 208
    k("s_setprio 0")
    k.c("radix-8 matrix: lane m = 2*kk+p, inputs r = 2g, 2g+1, angle r*t/2048")
    k("s_mov_b32 s43, 0")
    row_of(k, 40, 3, 43, 42)
    k(f"""v_lshrrev_b32 v{T}, 1, v{N16}
    v_and_b32 v{T+1}, 1, v0
    v_lshlrev_b32 v{T+2}, 8, v{T}
    v_add_u32 v{T+2}, s40, v{T+2}
    s_cmp_lg_u32 s3, 0
    s_cbranch_scc1 f_a3n
    v_cmp_lt_u32 s[44:45], 3, v{T}
    v_subrev_u32 v{T+3}, 896, v{T+2}
    v_cndmask_b32 v{T+2}, v{T+2}, v{T+3}, s[44:45]
    v_cmp_eq_u32 vcc, 1, v{N16}
    v_mov_b32 v{T+3}, 1024
    v_cndmask_b32 v{T+2}, v{T+2}, v{T+3}, vcc
    v_cndmask_b32_e64 v{T+1}, v{T+1}, 0, vcc
    f_a3n:
    v_lshlrev_b32 v{T+3}, 1, v{G4}
    v_mul_u32_u24 v{T+3}, v{T+3}, v{T+2}
    v_lshl_add_u32 v{T+3}, v{T+1}, 9, v{T+3}
    v_add_u32 v{T+5}, v{T+3}, v{T+2}
    v_add_u32 v{T+4}, 1536, v{T+3}
    v_add_u32 v{T+6}, 1536, v{T+5}""")
    for i in range(3, 7): k(f"v_and_b32 v{T+i}, 2047, v{T+i}")
    for i in range(3, 7): k(f"v_cvt_f32_u32 v{T+i}, v{T+i}")
    for i in range(3, 7): k(f"v_mul_f32 v{T+i}, {f32(1.0/2048)}, v{T+i}")
    for i in range(3, 7): k(f"v_cos_f32 v{T+i}, v{T+i}")
    k(f"""s_cbranch_scc1 f_a3m
    v_cmp_gt_u32 vcc, 2, v{N16}
    v_cndmask_b32_e64 v{T+1}, 1.0, 0.5, vcc
    v_mul_f32 v{T+3}, v{T+3}, v{T+1}
    v_mul_f32 v{T+5}, v{T+5}, v{T+1}
    v_cndmask_b32 v{T+4}, 0, v{T+3}, s[44:45]
    v_cndmask_b32 v{T+6}, 0, v{T+5}, s[44:45]
    v_cndmask_b32 v{T+3}, v{T+3}, 0, s[44:45]
    v_cndmask_b32 v{T+5}, v{T+5}, 0, s[44:45]
    f_a3m:
    v_cvt_pk_f16_f32 v{A3}, v{T+3}, v{T+4}
    v_cvt_pk_f16_f32 v{A3+1}, v{T+5}, v{T+6}""")
    k(f"""v_and_b32 v{T}, 3, v0
    v_bfe_u32 v{T+1}, v0, 2, 1
    v_bfe_u32 v{T+2}, v0, 3, 2
    v_bfe_u32 v{T+3}, v0, 5, 1
    v_lshlrev_b32 v{XD}, 10, v{T+1}
    v_lshlrev_b32 v{SLA}, 11, v{T+1}
    v_lshl_add_u32 v{SLA}, v{T+3}, 8, v{SLA}
    v_lshl_add_u32 v{SLA}, v{T+2}, 6, v{SLA}
    v_lshl_add_u32 v{SLA}, v{T}, 4, v{SLA}
    v_lshl_add_u32 v{XD}, v{T+2}, 8, v{XD}
    v_lshl_add_u32 v{XD}, v{T}, 6, v{XD}
    v_lshl_add_u32 v{XD}, v{T+3}, 5, v{XD}
    v_xor_b32 v{XDM}, 2016, v{XD}
    v_add_u32 v{XD}, s68, v{XD}
    v_add_u32 v{XDM}, s68, v{XDM}""")
    def xr_read():
        for n in range(1 if EP == 3 else 2):
            for u in range(2):
                k(f"ds_read_b128 v[{XRA+8*n+4*u}:{XRA+8*n+4*u+3}], v{(XD, XDM)[n]} offset:{n*2048+u*16}")
    def xr_unpack():
        for i in range(8): unpack_bf16(k, XA2 + 2*i, XRA + i)
        if EP != 3: xb_unpack(XRB)
    def xb_unpack(XRB):
        for p in range(16):
            src = XRB + (p >> 1); dst = XB2 + ((16 - p) & 15)
            k(f"v_and_b32 v{dst}, 0xffff0000, v{src}" if p & 1 else f"v_lshlrev_b32 v{dst}, 16, v{src}")
    if EP == 2: early()
    else:
        k("s_waitcnt vmcnt(4)")
        xr_read()
    def setup_late():
        k(f"""v_xor_b32 v{SLM}, {2048+256+192+48}, v{SLA}
        v_subrev_u32 v{T}, s68, v{XD}
        v_add_u32 v{T}, 32, v{T}
        v_bfe_u32 v{BP}, v{T}, 5, 1
        v_lshlrev_b32 v{BP}, 5, v{BP}
        v_bfe_u32 v{T+1}, v{T}, 8, 2
        v_lshl_add_u32 v{BP}, v{T+1}, 3, v{BP}
        v_bfe_u32 v{T+1}, v{T}, 10, 1
        v_lshl_add_u32 v{BP}, v{T+1}, 2, v{BP}
        v_bfe_u32 v{T+1}, v{T}, 6, 2
        v_add_lshl_u32 v{BP}, v{T+1}, v{BP}, 2
        s_lshl_b32 s74, s34, 14
        s_add_u32 s74, s74, {WS_KEY}
        s_lshl_b32 s42, s37, 9
        s_add_u32 s42, s42, {L_X}
        v_add_u32 v{UW}, s42, v{UW}""")
        k.c("w_down tile [64 x 512] of cluster s17 (none: empty descriptor)")
        k(f"""s_mul_i32 s17, s34, 7
        s_lshr_b32 s42, s35, 1
        s_add_u32 s17, s17, s42
        s_lshl_b32 s42, s17, 6
        s_lshr_b32 s43, s16, 2
        s_lshl_b32 s43, s43, 5
        s_add_u32 s42, s42, s43
        s_and_b32 s43, s16, 1
        s_lshl_b32 s43, s43, 4
        s_add_u32 s42, s42, s43
        s_and_b32 s43, s16, 2
        s_lshl_b32 s43, s43, 1
        s_add_u32 s42, s42, s43
        s_lshl_b32 s38, s42, 11
        s_and_b32 s43, s35, 1
        s_lshl_b32 s43, s43, 10
        s_add_u32 s38, s38, s43
        s_lshl_b32 s39, s16, 13
        s_add_u32 s39, s39, {L_U}
        s_mov_b32 s48, s28
        s_mov_b32 s49, s29
        s_mov_b32 s50, {1024*3584*2}
        s_mov_b32 s51, 0x00020000""")
    def side():
        k(f"""s_lshl_b32 s80, s3, 7
        s_add_u32 s80, s80, {WS_KEY}
        v_lshrrev_b32 v{FA}, 3, v2
        v_lshlrev_b32 v{FA}, 14, v{FA}
        v_and_b32 v{T}, 0x70, v3
        v_add_u32 v{FA}, v{FA}, v{T}
        s_cmp_lg_u32 s16, 0
        s_cbranch_scc1 f_sb2""")
        stats_b(k)
        if E("KWARM", 1):
            k.c("the key lines are written once so that an early reader does not go to HBM")
            k(f"""v_not_b32 v{T+1}, s32
            buffer_store_dwordx4 v[{T}:{T+3}], v{FA}, s[12:15], s80 offen sc1""")
        k("f_sb2:")
    k(f"""s_lshl_b32 s72, s3, 15
    s_lshl_b32 s73, s37, 12
    s_add_u32 s72, s72, s73
    s_add_u32 s72, s72, {WS_Z}
""")
    k("s_waitcnt lgkmcnt(0)")
    for a_, base in enumerate((BRE, BIM, TC, TS)):
        for q in range(4):
            k(f"ds_read_b128 v[{base+4*q}:{base+4*q+3}], v3 offset:{L_C+a_*4096+q*1024}")
    if EP != 2: xr_unpack()
    else: setup_late()
    k(f"s_waitcnt vmcnt({E('ZW', 0) + (2 if EP == 2 else 0)}) lgkmcnt(0)")
    stamp(k, 5)
    if E("ZBAR", 1): k("s_barrier")
    if E("ZDEL", 0): k(f"s_sleep {E('ZDEL', 0)}")
    for i in range(4):
        k(f"buffer_load_dwordx4 v[{ZL+4*i}:{ZL+4*i+3}], v3, s[12:15], s72 offen offset:{i*1024} sc1")
    if not E("ZBAR", 1): k("s_barrier")
    if EP != 2: side()
    if EP != 2: setup_late()
    else:
        k("s_waitcnt vmcnt(4)")
        xr_read()
        k("s_waitcnt lgkmcnt(0)")
        xr_unpack()
        side()
    DN = [int(x) for x in os.environ.get("DN", "3,0,5").split(",")]
    assert XR != 2
    def down(site, t):
        d0 = sum(DN[:site])
        if DN[site] == 0 or E("NOW", 0) or E("NOD", 0): return
        k(f"s_cmp_ge_u32 s35, 14\ns_cbranch_scc1 f_nd{site}")
        for d in range(d0, d0 + DN[site]):
            rows = 8 * (d >> 2) + (d & 3)
            k(f"s_add_u32 s43, s39, {d*1024}\ns_mov_b32 m0, s43\ns_add_u32 s42, s38, {rows*2048}")
            if d: k(f"v_xor_b32 v{t}, {d*32}, v3")
            k(f"buffer_load_dwordx4 v{t if d else 3}, s[48:51], s42 offen nt lds")
        k(f"f_nd{site}:")
    if EP != 3: btag(k, 4)
    else:
        k(f"""s_lshl_b32 s42, s16, 11
        s_add_u32 s42, s42, {L_P + P_SB}
        s_mov_b32 m0, s42
        s_sub_u32 s42, s68, s42
        v_subrev_u32 v21, s42, v{XDM}""")
    E3 = 2 if EP == 3 else 0
    def mrow():
        if EP == 3:
            for u in range(2): k(f"buffer_load_dwordx4 v3, s[8:11], s19 offen offset:{u*1024} lds")
    k.c("wave a = w&3 handles columns 4a..4a+3 of every lane's block: natural, mirrored (two) and f16 positions")
    PN, PM0, PM1, PH, FV = 4, 5, 6, 235, 236
    k(f"""v_lshlrev_b32 v{V70}, 7, v{N16}
    s_and_b32 s40, s16, 3
    s_lshl_b32 s76, s40, 10
    v_subrev_u32 v{T}, s68, v{XD}
    v_lshrrev_b32 v{T}, 1, v{T}
    s_lshl_b32 s42, s40, 2
    v_add_u32 v{T}, s42, v{T}""")
    pos16(k, PH, T, T + 1)
    mtag4(k, FT)
    k(f"""s_add_u32 s76, s76, {WS_FIN}
    s_mov_b32 s77, {WS_REC}
    s_xor_b32 s79, s35, {E("GOMM", 1)}
    s_xor_b32 s43, s16, {E("GOW", 5)}
    s_or_b32 s79, s79, s43""")
    k.c("finished modulation vectors: waves 0-3 take the records, (sa,) q, 1+ca and ga")
    FL = GA
    k(f"""s_add_u32 s65, s76, 4096
    s_lshl_b32 s42, s16, 11
    v_add_u32 v4, s42, v3
    s_add_u32 s64, s42, {WS_FIN + FIN_T + P_GA}
    s_lshl_b32 s42, s16, 12
    s_add_u32 s42, s42, {L_X}
    v_add_u32 v7, s42, v3
    v_mov_b32 v20, {L_KEY + 64}
    s_cmp_eq_u32 s3, 0
    s_cselect_b64 s[52:53], -1, 1""")
    def fin1():
        k(f"""s_mov_b64 exec, 0xf0ff
        buffer_load_dwordx4 v[{FV}:{FV+3}], v{V70}, s[12:15], s77 offen sc1
        s_mov_b64 exec, s[52:53]
        buffer_load_dwordx4 v[{FL+12}:{FL+15}], v3, s[12:15], s76 offen sc1
        s_mov_b64 exec, -1""")
        k(f"buffer_load_dwordx4 v[{FL+8}:{FL+11}], v3, s[12:15], s65 offen sc1")
        finb()
    def finb():
        for i in range(2): k(f"buffer_load_dwordx4 v[{FL+4*i}:{FL+4*i+3}], v3, s[12:15], s64 offen offset:{i*1024} sc1")

    for i in range(4): k(f"v_mov_b32 v{FL+12+i}, v{FT+i}")
    def tab16(v, off):
        k(f"""v_cvt_pk_f16_f32 v{v}, v{v}, v{v+1}
        v_cvt_pk_f16_f32 v{v+2}, v{v+2}, v{v+3}
        ds_write_b16 v{PH}, v{v} offset:{L_P+off}
        ds_write_b16_d16_hi v{PH}, v{v} offset:{L_P+off+16}
        ds_write_b16 v{PH}, v{v+2} offset:{L_P+off+32}
        ds_write_b16_d16_hi v{PH}, v{v+2} offset:{L_P+off+48}""")
    def pread(off, base):
        return [f"ds_read_b128 v[{base+4*q}:{base+4*q+3}], v3 offset:{L_P+off+q*1024}" for q in range(4)]
    ZC = W; ZT = T
    def zx(cbi):
        for nt in range(4):
            for p in range(2):
                k(f"v_xor_b32 v{ZC+8*cbi+2*nt+p}, v{ZL+8*cbi+4*p+nt}, v{TG+nt}")
    def r8(cbi):
        for nt in (0, 2, 1, 3):
            b = ZC + 8*cbi + 2*nt; d = D1R + (cbi*4 + nt)*4
            k(f"v_mfma_f32_16x16x16_f16 v[{d}:{d+3}], v[{A3}:{A3+1}], v[{b}:{b+1}], 0")
            k(f"v_or3_b32 v{ZT}, v{b}, v{b+1}, {'0' if cbi + nt == 0 else f'v{ZT}'}")
    k(f"""s_mov_b32 s83, 0
    s_cmp_ge_u32 s16, 4
    s_cbranch_scc1 f_z1
    s_waitcnt vmcnt({E('F1W', 6)})""")
    stamp(k, 31)
    fin1()
    k.c("---- radix-8 over r ----")
    k("s_waitcnt vmcnt(7)")
    mrow()
    zx(0); r8(0)
    k(f"s_waitcnt vmcnt(5)\ns_branch f_z2\nf_z1:\ns_waitcnt vmcnt({E('F2W', 4)})")
    finb()
    k("s_waitcnt vmcnt(4)\nf_zc:")
    zx(0); r8(0)
    k("s_waitcnt vmcnt(2)\nf_z2:")
    stamp(k, 6)
    zx(1); r8(1)
    k(f"""v_and_b32 v{ZT}, s54, v{ZT}
    v_cmp_ne_u32 vcc, 0, v{ZT}
    s_cbranch_vccnz f_zr
    f_zx:""")
    stamp(k, 7)
    for bh in range(2):
        for ii in range(2):
            o = ZL + (bh*2 + ii)*4
            for cbi in range(2):
                for al in range(2):
                    d = D1R + (cbi*4 + 2*al + bh)*4
                    k(f"v_cvt_pk_f16_f32 v{o+2*cbi+al}, v{d+2*ii}, v{d+2*ii+1}")
            k(f"ds_write_b128 v{UW}, v[{o}:{o+3}] offset:{ii*4096 + bh*256}")
    wr = lambda u: k(f"ds_write_b128 v4, v[{FL+4*u}:{FL+4*u+3}] offset:{L_P+P_GA+u*1024}")
    k("s_mov_b32 s83, 0\ns_cmp_lt_u32 s16, 4\ns_cbranch_scc1 f_pv\nf_qv:")
    for u in range(2):
        k(f"s_waitcnt vmcnt({1-u})")
        untag(k, range(FL + 4*u, FL + 4*u + 4), FT, T, u == 0)
        wr(u)
    tagchk(k, T)
    k("s_cbranch_vccnz f_qr\ns_branch f_pvx\nf_pv:\ns_waitcnt vmcnt(3)")
    stamp(k, 30)
    k(f"""v_add_f32_dpp v{FV+3}, v{FV+2}, v{FV+2} quad_perm:[1,0,3,2] {DPPM}
    v_max_f32_dpp v{FV+2}, v{FV+2}, v{FV+2} quad_perm:[1,0,3,2] {DPPM}
    v_cmp_ne_u64 s[44:45], s[32:33], v[{FV}:{FV+1}]
    v_add_f32_dpp v{FV+3}, v{FV+3}, v{FV+3} quad_perm:[2,3,0,1] {DPPM}
    v_max_f32_dpp v{FV+2}, v{FV+2}, v{FV+2} quad_perm:[2,3,0,1] {DPPM}""")
    untag(k, range(FL + 12, FL + 16), FT, T)
    k(f"""v_max_f32_dpp v{FV+2}, v{FV+2}, v{FV+2} row_half_mirror {DPPM}
    s_mov_b64 exec, 0x1000
    ds_write_b32 v20, v{FV+3}
    s_mov_b64 exec, -1
    v_frexp_exp_i32_f32 v{FV+2}, v{FV+2}
    s_waitcnt vmcnt(2)""")
    untag(k, range(FL + 8, FL + 12), FT, T, False)
    k(f"""v_readfirstlane_b32 s42, v{FV+2}
    s_sub_u32 s43, -1, s42
    s_add_u32 s45, s42, 5
    s_and_b32 s44, s44, 0xf0ff""")
    for n in range(4): k(f"v_ldexp_f32 v{FL+8+n}, v{FL+8+n}, s43")
    tab16(FL + 8, P_CS)
    for u in range(2):
        k(f"s_waitcnt vmcnt({1-u})")
        untag(k, range(FL + 4*u, FL + 4*u + 4), FT, T, False)
        for n in range(4): k(f"v_ldexp_f32 v{FL+4*u+n}, v{FL+4*u+n}, s45")
        wr(u)
    k(f"""v_and_b32 v{T}, 0xff, v{T}
    v_cmp_ne_u32 vcc, 0, v{T}
    s_or_b32 vcc_lo, vcc_lo, s44
    s_cbranch_vccnz f_pr
    f_pw:
    s_cmp_eq_u32 s3, 0
    s_cbranch_scc1 f_ps
    f_pvx:""")
    def sas():
        k("f_ps:\ns_sub_u32 s45, 5, s42")
        for n in range(4): k(f"v_ldexp_f32 v{FL+12+n}, v{FL+12+n}, s45")
        k(f"""v_and_b32 v{T}, 0x3f0, v{PH}
        v_bfe_u32 v{T+1}, v{PH}, 10, 1
        v_lshl_add_u32 v{T}, v{T+1}, 11, v{T}
        v_bfe_u32 v{T+1}, v{PH}, 3, 1
        v_lshl_add_u32 v{T}, v{T+1}, 10, v{T}
        v_and_b32 v{T+1}, 6, v{PH}
        v_lshl_add_u32 v{T}, v{T+1}, 1, v{T}""")
        for n in range(4):
            k(f"v_cvt_f16_f32 v{FL+12+n}, v{FL+12+n}\nds_write_b32 v{T}, v{FL+12+n} offset:{L_C + 16*n}")
        k("s_branch f_pvx")
    PR = E("PR", 3)
    if PR: k("s_setprio 2")
    if EP == 3: k("v_mov_b32 v23, v21")
    k("s_waitcnt lgkmcnt(0)")
    stamp(k, 8)
    k("s_barrier")
    k.c("================= 1024-point DFT, LN2, router score =================")
    for j in range(2):
        k(f"ds_read_b128 v[{CS+4*j}:{CS+4*j+3}], v3 offset:{L_P+P_CS+j*1024}")
        k(f"ds_read_b128 v[{ZL+8*j}:{ZL+8*j+3}], v7 offset:{2*j*1024}")
        k(f"ds_read_b128 v[{ZL+8*j+4}:{ZL+8*j+7}], v7 offset:{(2*j+1)*1024}")
    def modul(j):
        for i in range(4*j, 4*j + 4):
            b = i & 1
            k(f"v_pk_mul_f16 v{W+i}, v{ZL+i}, v{CS+(i>>1)} op_sel:[0,{b}] op_sel_hi:[1,{b}]")
    def st1(j, part):
        Dd, B = (D1R, BRE) if part == 0 else (D1I, BIM)
        cc = "0" if j == 0 else f"v[{Dd}:{Dd+15}]"
        k(f"v_mfma_f32_32x32x16_f16 v[{Dd}:{Dd+15}], v[{W+4*j}:{W+4*j+3}], v[{B+4*j}:{B+4*j+3}], {cc}")
    k("s_cmp_eq_u32 s30, 0\ns_cbranch_scc1 f_sp")
    k("s_waitcnt lgkmcnt(4)"); modul(0); st1(0, 0)
    k("s_waitcnt lgkmcnt(3)"); modul(1); st1(0, 1)
    k("s_waitcnt lgkmcnt(1)"); modul(2); st1(1, 0)
    k("s_waitcnt lgkmcnt(0)"); modul(3); st1(1, 1)
    k("f_st1:")
    if EP == 3:
        k("s_waitcnt vmcnt(0)")
        for u in range(2): k(f"ds_read_b128 v[{CS+4*u}:{CS+4*u+3}], v23 offset:{u*16}")
    pr1 = pread(P_GA, GA) + pread(P_GAM, GAM) + pread(P_Q, Q) + pread(P_QM, QM)
    for j in range(2, 4):
        for part in range(2):
            st1(j, part)
            for _ in range(2): k(pr1.pop(0))
    if EP == 3:
        btag(k, 4)
        k("s_waitcnt lgkmcnt(8)")
        xb_unpack(CS)
    k(f"v_mov_b32 v22, {L_KEY + 64}\nds_read_b32 v22, v22")
    down(0, 7)
    stamp(k, 9)
    Y = BIM
    def twid(j):
        vr = ZL + 8 * (j & 1); vi = vr + 4
        for h in range(2):
            pmul(k, vr + 2*h, D1R + 4*j + 2*h, TC + 4*j + 2*h)
            pmul(k, vi + 2*h, D1I + 4*j + 2*h, TC + 4*j + 2*h)
        for h in range(2):
            pfma(k, vr + 2*h, D1I + 4*j + 2*h, TS + 4*j + 2*h, vr + 2*h)
            pfma(k, vi + 2*h, D1R + 4*j + 2*h, TS + 4*j + 2*h, vi + 2*h, nega=True)
        for i in range(4):
            k(f"v_cvt_pk_f16_f32 v{W+4*j+i}, v{vr+i}, v{vi+i}")
    def st2(j, Yd=Y, B=BRE):
        cr = "0" if j == 0 else f"v[{Yd}:{Yd+15}]"
        k(f"v_mfma_f32_32x32x16_f16 v[{Yd}:{Yd+15}], v[{W+4*j}:{W+4*j+3}], v[{B+4*j}:{B+4*j+3}], {cr}")
    k("s_cmp_eq_u32 s30, 0\ns_cbranch_scc1 f_sp2")
    for j in range(4):
        twid(j)
        if j > 0: st2(j - 1)
        if j < 2:
            for x in pr1[4*j:4*j+4]: k(x)
    st2(3)
    if PR & 4: k("s_setprio 1")
    k.c("GO hint from one workgroup per replica")
    YS = 12
    def x1rows(YA, YB):
        k(f"ds_bpermute_b32 v{YS}, v{BP}, v{YB}")
        k("s_waitcnt lgkmcnt(1)")
        for i in range(8): pfma(k, XA2 + 2*i, GA + 2*i, YA + 2*i, XA2 + 2*i)
        for i in range(1, 8): pfma(k, XB2 + 2*i, GAM + 2*i, YB + 2*i, XB2 + 2*i)
        k(f"v_fmac_f32 v{XB2+1}, v{GAM+1}, v{YB+1}")
        k("s_waitcnt lgkmcnt(0)")
        k(f"v_fmac_f32 v{XB2}, v{GAM}, v{YS}")
    x1rows(Y, Y)
    k("f_join:")
    if PR & 1: k("s_setprio 1")
    stamp(k, 10)
    C1, C1M, SBv, SBM, GBv, GBM = BRE, TC, TS, BIM, GA, GAM
    down(1, 7)
    RQ = ZL; TT_ = W
    KW, KR = 17, 7
    k(f"""v_lshrrev_b32 v{KW}, 3, v0
    v_and_b32 v{KW}, 60, v{KW}
    v_add_u32 v{KW}, {L_KEY}, v{KW}
    v_and_b32 v{KR}, 0xf0, v3
    v_lshrrev_b32 v{KR}, 2, v{KR}
    v_add_u32 v{KR}, {L_KEY}, v{KR}""")
    rows = ((XA2, Q, D1R, TT_, 56, C1, SBv, GBv), (XB2, QM, D1I, TT_ + 8, 58, C1M, SBM, GBM))
    def sums23(src):
        for i in range(7, -1, -1):
            for n, r_ in enumerate(rows):
                x = src[n] + 2*i; t = r_[3]
                if i == 7:
                    pmul(k, t + 2, x, x); pmul(k, t + 4, x, r_[1] + 2*i)
                else:
                    pfma(k, t + 2, x, x, t + 2); pfma(k, t + 4, x, r_[1] + 2*i, t + 4)
    for i in range(6, -1, -1):
        for r_ in rows: padd(k, r_[3], r_[0] + 14 if i == 6 else r_[3], r_[0] + 2*i)
    sums23((XA2, XB2))
    for n, r_ in enumerate(rows):
        for j in range(3): k(f"v_add_f32 v{RQ+4*n+j}, v{r_[3]+2*j}, v{r_[3]+2*j+1}")
    def red(js):
        for j in js: k(f"v_permlane32_swap_b32 v{RQ+j}, v{RQ+4+j}")
        for j in js: k(f"v_add_f32 v{RQ+j}, v{RQ+j}, v{RQ+4+j}")
        regs = [RQ + j for j in js]
        row_allreduce(k, regs)
        for r in regs: k(f"v_add_f32_dpp v{r}, v{r}, v{r} row_bcast:15 row_mask:0xa bank_mask:0xf")
    k("s_cmp_eq_u32 s79, 0\ns_cbranch_scc1 f_go\nf_ngo:")
    if PR & 2: k("s_setprio 0")
    red((0, 1, 2))
    k.c("lanes 31 / 63 hold rows A / B")
    k(f"""v_mul_f32 v{RQ}, {f32(1.0/1024)}, v{RQ}
    v_mul_f32 v{RQ+1}, {f32(1.0/1024)}, v{RQ+1}
    v_mul_f32 v{RQ+4}, v{RQ}, v{RQ}
    v_fma_f32 v{RQ+2}, -v{RQ}, v22, v{RQ+2}
    v_sub_f32 v{RQ+1}, v{RQ+1}, v{RQ+4}
    v_mul_f32 v{RQ+5}, 4.0, v{RQ+1}
    v_cmp_gt_f32 vcc, v{RQ+4}, v{RQ+5}
    v_lshrrev_b32 v{RQ+6}, 4, v0
    s_lshl_b32 s43, s3, 5
    v_and_or_b32 v{RQ+6}, v{RQ+6}, 30, s43
    s_or_b32 s42, vcc_lo, vcc_hi
    s_bitcmp1_b32 s42, 31
    s_cbranch_scc1 f_slow2
    f_var2:""")
    round_bf16(k, RQ + 1, RQ + 1)
    k(f"v_add_f32 v{RQ+1}, {f32(1e-5)}, v{RQ+1}")
    round_bf16(k, RQ + 1, RQ + 1)
    k(f"v_sqrt_f32 v{RQ+1}, v{RQ+1}")
    round_bf16(k, RQ + 1, RQ + 1)
    k(f"""v_rcp_f32 v{RQ+1}, v{RQ+1}
    s_mov_b32 s42, 0x80000000
    s_movk_i32 s43, 0xf000
    s_mov_b32 exec_lo, s42
    s_mov_b32 exec_hi, s42
    v_mul_f32 v{RQ+2}, v{RQ+2}, v{RQ+1}
    v_ashrrev_i32 v{RQ+4}, 31, v{RQ+2}
    v_or_b32 v{RQ+4}, s42, v{RQ+4}
    v_xor_b32 v{RQ+2}, v{RQ+2}, v{RQ+4}
    v_and_or_b32 v{RQ+2}, v{RQ+2}, s43, v{RQ+6}
    ds_write_b32 v{KW}, v{RQ+2}
    v_mul_f32 v{RQ}, -v{RQ}, v{RQ+1}
    s_mov_b64 exec, -1""")
    for n in range(2):
        k(f"v_readlane_b32 s{60+n}, v{RQ+2}, {31+32*n}")
        k(f"v_readlane_b32 s{56+2*n}, v{RQ}, {31+32*n}")
        k(f"v_readlane_b32 s{57+2*n}, v{RQ+1}, {31+32*n}")
    k("s_waitcnt lgkmcnt(0)")
    stamp(k, 11)
    if PR: k("s_setprio 0")
    KV = RQ + 8
    k(f"""s_barrier
    ds_read_b32 v{KV}, v{KR}""")
    stamp(k, 12)
    HP = W; OA, OBB = Q, Q + 8
    def pk(dst, src, n):
        for i in range(8):
            a, b = (2*i, 2*i + 1) if n == 0 else ((16 - 2*i) & 15, 15 - 2*i)
            k(f"v_cvt_pk_bf16_f32 v{dst+i}, v{src+a}, v{src+b}")
    def norm(n):
        X2, _, Tt, _, sr = rows[n][:5]
        for i in range(8):
            k(f"v_pk_fma_f32 {P(Tt+2*i)}, {P(X2+2*i)}, s[{sr}:{sr+1}], s[{sr}:{sr+1}] op_sel:[0,1,0] op_sel_hi:[1,1,0]")
    k.c("1+cb, sb, gb tables for the output rows: 3 KB per wave")
    F2R = (CS, CS + 4, TS)
    fin2 = "\n".join(f"buffer_load_dwordx4 v[{r_}:{r_+3}], v3, s[12:15], s64 offen offset:{i*1024} sc1" for i, r_ in enumerate(F2R))
    k(f"""s_mul_i32 s42, s16, 3072
    v_add_u32 v4, s42, v3
    s_add_u32 s64, s42, {WS_FIN + FIN_T + P_C1}
    s_waitcnt lgkmcnt(0)""")
    k(f"""v_cmp_lt_u32 vcc, s60, v{KV}
    v_cmp_lt_u32 s[44:45], s61, v{KV}
    s_and_b32 s62, vcc_lo, 0xffff
    s_and_b32 s63, s44, 0xffff
    s_bcnt1_i32_b32 s62, s62
    s_bcnt1_i32_b32 s63, s63""")
    k.c("the wave that holds the best row writes the record")
    k(f"""s_min_u32 s42, s62, s63
    s_cmp_lg_u32 s42, 0
    s_cbranch_scc1 f_nkey
    s_setprio 3
    s_max_u32 s42, s60, s61
    v_cmp_ne_u32 vcc, s42, v{KV}
    v_mov_b32 v{KV+4}, s42
    v_mov_b32 v{KV+5}, s32
    v_cndmask_b32 v{KV+6}, 0, v{KV}, vcc
    v_mov_b32 v{KV+7}, s33""")
    row_allreduce(k, [KV + 6], "v_max_u32")
    stamp(k, 20)
    k(f"""v_or_b32 v{KV+6}, 1, v{KV+6}
    buffer_store_dwordx4 v[{KV+4}:{KV+7}], v{FA}, s[12:15], s80 offen sc1""")
    if E("STAMPS", 0) == 4:
        stamp(k, 21); k("s_waitcnt vmcnt(0)"); stamp(k, 22)
    k("f_nkey:")
    if True:
        for n in range(2):
            Tt = rows[n][2]; XO = (OA, OBB)[n]; SA_ = (SLA, SLM)[n]
            k(f"""s_cmp_ge_u32 s{62+n}, 2
            s_cbranch_scc1 f_nc{n}
            f_cand{n}:
            s_setprio 2""")
            k(f"""s_lshl_b32 s43, s3, 1
            s_add_u32 s42, s{62+n}, s43
            s_lshl_b32 s43, s42, 7
            s_lshl_b32 s42, s42, 12
            s_add_u32 s42, s42, {WS_SLOT}
            s_add_u32 s43, s43, {WS_SH}
            v_mov_b32 v{YS}, 0xffffff00""")
            for a in range(4):
                for i in range(4):
                    p = 4*a + i
                    k(f"v_and_or_b32 v{Tt+p}, v{rows[n][0] + (p if n == 0 else (16 - p) & 15)}, v{YS}, s{4 + 4*(a & 1) + i}")
                k(f"buffer_store_dwordx4 v[{Tt+4*a}:{Tt+4*a+3}], v{SA_}, s[12:15], s42 offen offset:{(a&1)*1024 + (a>>1)*512} sc1")
            k(f"""v_mov_b32 v{HP+4*n}, s32
            v_mov_b32 v{HP+4*n+1}, s33
            v_mov_b32 v{HP+4*n+2}, s{56+2*n}
            v_mov_b32 v{HP+4*n+3}, s{57+2*n}
            s_mov_b64 exec, 0xff
            buffer_store_dwordx4 v[{HP+4*n}:{HP+4*n+3}], v3, s[12:15], s43 offen sc1
            s_mov_b64 exec, -1""")
            k(f"s_setprio 0\nf_nc{n}:")
    stamp(k, 13)
    k(fin2)
    k("s_barrier")
    if E("DSL", 0): k(f"s_sleep {E('DSL', 0)}")
    down(2, 7)
    norm(0); norm(1)
    k(f"""v_subrev_u32 v{XD}, s68, v{XD}
    s_sub_u32 s68, s68, {L_R - L_X}
    v_bfe_u32 v{YS}, v0, 1, 2
    v_lshlrev_b32 v{YS}, 4, v{YS}
    v_xor_b32 v{XD}, v{XD}, v{YS}
    v_xor_b32 v{XDM}, {2016 ^ 48}, v{XD}
    v_add_u32 v{XD}, s68, v{XD}
    v_add_u32 v{XDM}, s68, v{XDM}
    v_xor_b32 v20, 16, v{XD}
    v_xor_b32 v21, 16, v{XDM}
    v_and_b32 v22, 8, v0
    v_lshlrev_b32 v22, 1, v22
    v_xor_b32 v22, v22, v3
    v_add_u32 v22, s68, v22
    v_xor_b32 v23, 32, v22
    s_mov_b32 s83, 0
    s_cmp_ge_u32 s35, 14
    s_cbranch_scc1 f_p2c
    s_waitcnt vmcnt({0 if E("NOW", 0) or E("NOD", 0) else DN[2]})
    f_p2e:""")
    untag(k, list(range(CS, CS + 8)) + list(range(TS, TS + 4)), FT, YS)
    tagchk(k, YS)
    k("s_cbranch_vccnz f_p2r\nf_p2w:")
    stamp(k, 42)
    for i, r_ in enumerate(F2R): k(f"ds_write_b128 v4, v[{r_}:{r_+3}] offset:{L_P+P_C1+i*1024}")
    k("s_waitcnt lgkmcnt(0)\ns_barrier")
    stamp(k, 43)
    if E("PW", 1):
        k.c("the lines of this wave's partial results are written once so that an early reader does not go to HBM")
        k(f"""v_not_b32 v24, v{FT}
        v_bfe_u32 v7, v0, 4, 2
        v_lshlrev_b32 v7, 13, v7
        v_and_b32 v25, 0x70, v3
        v_add_u32 v7, v7, v25
        s_and_b32 s42, s35, 1
        s_lshl_b32 s42, s42, 3
        s_add_u32 s42, s42, s16
        s_lshl_b32 s42, s42, 15
        s_lshl_b32 s43, s17, 7
        s_add_u32 s42, s42, s43
        s_add_u32 s42, s42, {WS_PART}
        s_cmp_ge_u32 s35, 14
        s_cbranch_scc1 f_npw
        s_mov_b32 exec_lo, 0x00ff00ff
        s_mov_b32 exec_hi, 0x00ff00ff
        buffer_store_dwordx4 v[24:27], v7, s[12:15], s42 offen sc1
        s_mov_b64 exec, -1
        f_npw:""")
    rd3 = lambda n: [k(x) for x in pread((P_C1, P_C1M)[n], rows[n][5]) + pread((P_SB, P_SBM)[n], rows[n][6]) + pread((P_GB, P_GBM)[n], rows[n][7])]
    rd3(0)
    for n in range(2):
        X2, _, Tt, _, sr, c1, sb, gb = rows[n]
        k(f"s_waitcnt lgkmcnt({4 + 2*n})")
        for i in range(8): pfma(k, Tt + 2*i, Tt + 2*i, c1 + 2*i, sb + 2*i)
        k(f"s_waitcnt lgkmcnt({2*n})")
        if n == 0: rd3(1)
        for i in range(8): pfma(k, X2 + 2*i, gb + 2*i, Tt + 2*i, X2 + 2*i)
        pk((OA, OBB)[n], X2, n)
        for u in range(2):
            XO = (OA, OBB)[n]
            k(f"ds_write_b128 v{((XD, 20), (XDM, 21))[n][u]}, v[{XO+4*u}:{XO+4*u+3}] offset:{n*2048}")
    stamp(k, 44)
    k.c("rows back to memory order through LDS; written once the selection is known (the reducers write the two selected rows)")
    k("s_waitcnt lgkmcnt(0)")
    for i in range(4):
        k(f"ds_read_b128 v[{QM+4*i}:{QM+4*i+3}], v{22 + (i & 1)} offset:{i*1024}")
    OUTP = E("OUTP", 1)
    assert OUTP in (1, 5, 6, 7)
    def outst(lab, cond, rows_=(0, 1)):
        for n in rows_:
            k(cond(n, f"{lab}{n}"))
            for j in range(0 if E("NOOUT", 0) else 2):
                k(f"buffer_store_dwordx4 v[{QM+8*n+4*j}:{QM+8*n+4*j+3}], v3, s[24:27], s{18+n} offen offset:{j*1024} {os.environ.get('OFL', 'sc1')}")
            k(f"{lab}{n}:")
    notsel = lambda n, l: f"s_cmp_eq_u32 s{60+n}, s40\ns_cbranch_scc1 {l}\ns_cmp_eq_u32 s{60+n}, s41\ns_cbranch_scc1 {l}"
    if OUTP == 0:
        k("s_waitcnt lgkmcnt(0)")
        outst("f_o", lambda n, l: f"s_cmp_lt_u32 s{62+n}, 2\ns_cbranch_scc1 {l}")
    if OUTP == 5:
        k("s_waitcnt lgkmcnt(0)")
        outst("f_o", lambda n, l: f"s_cmp_lt_u32 s{62+n}, 2\ns_cbranch_scc1 {l}", (0,))
    BD, HA, AG, R, AD = 88, 120, 128, 144, 148
    L_A = L_KEY + 128
    k.c("down projection: tr addr, act write / read, PART store")
    k(f"""v_lshrrev_b32 v{R}, 2, v2
    v_and_b32 v{R+1}, 7, v{R}
    v_and_b32 v{R+2}, 3, v0
    v_lshl_add_u32 v{AD}, v1, 2, v{R+2}
    v_xor_b32 v{AD}, v{AD}, v{R+1}
    v_lshlrev_b32 v{AD}, 5, v{AD}
    v_lshl_add_u32 v{AD}, v{R}, 10, v{AD}
    v_add_u32 v{AD}, {L_U}, v{AD}
    v_cmp_eq_u32 s[44:45], 1, v{R+2}
    v_cmp_eq_u32 s[46:47], 2, v{R+2}
    v_cmp_eq_u32 s[72:73], 3, v{R+2}
    v_bfe_u32 v{R+1}, v0, 4, 2
    v_and_b32 v{R}, 1, v{R}
    v_lshlrev_b32 v{AD+5}, 7, v{R}
    v_lshl_add_u32 v{AD+5}, v{R+1}, 4, v{AD+5}
    v_add_u32 v{AD+5}, {L_A}, v{AD+5}
    v_lshlrev_b32 v{AD+6}, 4, v{R+2}
    v_lshl_add_u32 v{AD+6}, v{R}, 6, v{AD+6}
    v_lshl_add_u32 v{AD+6}, v1, 15, v{AD+6}
    v_lshl_add_u32 v{AD+6}, v{R+1}, 13, v{AD+6}
    v_and_b32 v{R}, 15, v0
    v_lshlrev_b32 v{AD+4}, 1, v{R}
    v_lshl_add_u32 v{AD+4}, v1, 5, v{AD+4}
    v_lshl_add_u32 v{AD+4}, v{R+1}, 7, v{AD+4}
    v_add_u32 v{AD+4}, {L_A}, v{AD+4}
    s_and_b32 s76, s35, 1
    s_lshl_b32 s76, s76, 18
    s_lshl_b32 s77, s17, 7
    s_add_u32 s76, s76, s77
    s_add_u32 s76, s76, {WS_PART}
    s_movk_i32 s77, 0xff00
    s_lshl_b32 s81, s17, 2
    s_and_b32 s42, s16, 3
    s_add_u32 s81, s81, s42
    s_lshl_b32 s81, s81, 10
    s_add_u32 s82, s81, {WS_XB}
    s_add_u32 s81, s81, {WS_XA}
    v_mov_b32 v5, {L_KEY+104}""")
    stamp(k, 45)
    if OUTP == 0:
        k.c("the weight tile is older than the row stores")
        k("""s_max_u32 s42, s62, s63
        s_min_u32 s43, s62, s63
        s_cmp_lt_u32 s43, 2
        s_cbranch_scc1 f_w0
        s_waitcnt vmcnt(4)
        f_w1:""")
    elif OUTP == 5:
        k("s_cmp_lt_u32 s62, 2\ns_cbranch_scc1 f_w0\ns_waitcnt vmcnt(2)\nf_w1:")
    else: k("s_waitcnt vmcnt(0)")
    k("s_barrier")
    stamp(k, 14)
    if OUTP in (6, 7):
        k("s_waitcnt lgkmcnt(0)")
        outst("f_o", lambda n, l: f"s_cmp_lt_u32 s{62+n}, 2\ns_cbranch_scc1 {l}", (0,) if OUTP == 6 else (0, 1))
    for ks in range(2):
        for t in range(4):
            b_ = BD + (ks*4 + t)*4
            k(f"ds_read_b64_tr_b16 v[{b_}:{b_+1}], v{AD} offset:{ks*32768+t*8}")
            k(f"ds_read_b64_tr_b16 v[{b_+2}:{b_+3}], v{AD} offset:{ks*32768+16384+t*8}")
    if OUTP == 3:
        if E("OS3", 0): k(f"s_sleep {E('OS3', 0)}")
        k("s_waitcnt lgkmcnt(0)")
        outst("f_o", lambda n, l: f"s_cmp_lt_u32 s{62+n}, 2\ns_cbranch_scc1 {l}")
    if OUTP == 4:
        k("s_waitcnt lgkmcnt(0)\ns_cmp_lt_u32 s16, 4\ns_cbranch_scc1 f_o1")
        outst("f_o", lambda n, l: f"s_cmp_lt_u32 s{62+n}, 2\ns_cbranch_scc1 {l}")
    rec = """s_mov_b64 exec, 3
    buffer_load_dwordx4 v[32:35], v40, s[12:15], s74 offen sc1
    s_mov_b64 exec, -1"""
    k(f"""v_lshlrev_b32 v40, 13, v2
    s_lshl_b32 s74, s34, 14
    s_add_u32 s74, s74, {WS_HM + HM_B + 4096}
    s_min_u32 s75, s62, s63
    s_cmp_ge_u32 s35, 14
    s_cbranch_scc1 f_na
    s_cmp_ge_u32 s16, 4
    s_cbranch_scc1 f_na""")
    k(f"""s_mov_b32 s83, 0
    f_px:
    s_and_b32 s42, s83, 63
    s_cmp_eq_u32 s42, 63
    s_cselect_b32 s42, s82, s81
    buffer_load_dwordx4 v[{R}:{R+3}], v3, s[12:15], s42 offen sc1
    s_add_u32 s83, s83, 1
    s_cmp_ge_u32 s83, {SPIN}
    s_cbranch_scc1 f_pxx
    s_waitcnt vmcnt(0)
    v_cmp_ne_u16_sdwa vcc, v{R+3}, v{FT+3} src0_sel:BYTE_0 src1_sel:DWORD
    s_cbranch_vccnz f_px""")
    untag(k, range(R, R + 4), FT, 4)
    tagchk(k, 4)
    k("s_cbranch_vccnz f_px\nf_pxx:\ns_waitcnt vmcnt(0)")
    stamp(k, 16)
    k(f"v_permlane32_swap_b32 v{R}, v{R+2}")
    k(f"v_permlane32_swap_b32 v{R+1}, v{R+3}")
    padd(k, R, R, R + 2)
    k(f"v_permlane16_swap_b32 v{R}, v{R+1}")
    k(f"v_add_f32 v{R}, v{R}, v{R+1}")
    round_bf16(k, R, R)
    k(f"""v_mul_f32 v{R+1}, {LOG2E}, v{R}
    v_exp_f32 v{R+1}, v{R+1}
    v_mov_b32 v{R+2}, v{R}
    v_add_f32 v{R+1}, 1.0, v{R+1}
    v_rcp_f32 v{R+1}, v{R+1}
    v_mov_b32 v{R+3}, v{R}
    v_mul_f32 v{R+1}, v{R}, v{R+1}
    v_permlane32_swap_b32 v{R+2}, v{R+3}""")
    round_bf16(k, R + 1, R + 1)
    k(f"""v_mul_f32 v{R+1}, v{R+1}, v{R+3}
    v_cvt_pk_bf16_f32 v{R+1}, v{R+1}, v{R+1}
    ds_write_b16 v{AD+4}, v{R+1}
    f_na:
    s_waitcnt lgkmcnt(0)
    s_barrier
    s_cmp_ge_u32 s35, 14
    s_cbranch_scc1 f_fin""")
    for ks in range(2):
        k(f"ds_read_b128 v[{HA+4*ks}:{HA+4*ks+3}], v{AD+5} offset:{ks*64}")
    k(f"s_cmp_lt_u32 s75, 2\ns_cbranch_scc1 f_rq\nf_rqx:")
    for ks in range(2):
        k(f"s_waitcnt lgkmcnt({1-ks})")
        for t in range(4):
            a_ = AG + 4 * t
            cc = "0" if ks == 0 else f"v[{a_}:{a_+3}]"
            b_ = BD + (ks*4 + t)*4
            k(f"v_mfma_f32_16x16x32_bf16 v[{a_}:{a_+3}], v[{b_}:{b_+3}], v[{HA+4*ks}:{HA+4*ks+3}], {cc}")
    for t, m_ in ((1, "s[44:45]"), (2, "s[46:47]"), (3, "s[72:73]")):
        for i in range(4):
            k(f"v_cndmask_b32 v{AG+i}, v{AG+i}, v{AG+4*t+i}, {m_}")
    for i in range(4): k(f"v_and_or_b32 v{AG+i}, v{AG+i}, s77, v{FT+i}")
    k(f"""s_mov_b32 exec_lo, 0x00ff00ff
    s_mov_b32 exec_hi, 0x00ff00ff
    buffer_store_dwordx4 v[{AG}:{AG+3}], v{AD+6}, s[12:15], s76 offen sc1
    s_mov_b64 exec, -1""")
    stamp(k, 17)
    k("s_barrier\nf_fin:")
    if E("OSL", 0): k(f"s_sleep {E('OSL', 0)}")
    k("s_cmp_lt_u32 s75, 2\ns_cbranch_scc1 f_sel")
    outst("f_g", lambda n, l: "", (1,) if OUTP in (5, 6) else () if OUTP == 7 else (0, 1))
    k("f_end:")
    stamp_out(k, 0)
    k("s_endpgm")
    k(f"""f_rq:
    {rec}
    s_branch f_rqx
    f_sel:
    s_mov_b32 s83, 0
    s_cmp_ge_u32 s35, 14
    s_cbranch_scc1 f_sr
    s_waitcnt vmcnt(1)
    f_sc:
    v_cmp_ne_u64 vcc, s[32:33], v[32:33]
    v_readlane_b32 s40, v34, 0
    v_readlane_b32 s41, v34, 1
    s_and_b32 s42, vcc_lo, 3
    s_cbranch_scc0 f_sx
    s_sleep 4
    f_sr:
    {rec}
    s_waitcnt vmcnt(0)""")
    spin(k, "f_sc", 0)
    k("f_sx:\ns_andn2_b32 s40, s40, 1\ns_andn2_b32 s41, s41, 1")
    cand = lambda n, l: f"s_cmp_ge_u32 s{62+n}, 2\ns_cbranch_scc1 {l}\n" + notsel(n, l)
    outst("f_e", (lambda n, l: cand(n, l) if n == 0 else notsel(n, l)) if OUTP in (5, 6) else cand if OUTP == 7 else notsel)
    k("s_branch f_end")
    if OUTP in (0, 5): k("f_w0:\ns_waitcnt vmcnt(0)\ns_branch f_w1")
    k(f"""f_p2r:
    s_add_u32 s83, s83, 1
    s_cmp_ge_u32 s83, {SPIN}
    s_cbranch_scc1 f_p2w
    s_sleep 12
    {fin2}
    f_p2c:
    s_waitcnt vmcnt(0)
    s_branch f_p2e
""")
    k.c("---- spectrum pieces that were not there yet: read them again ----")
    k("f_zr:")
    for i in range(4):
        z = ZC + 8*(i >> 1) + (i & 1)
        k(f"""v_or3_b32 v{ZT}, v{z}, v{z+2}, v{z+4}
        v_or_b32 v{ZT}, v{ZT}, v{z+6}
        v_and_b32 v{ZT}, s54, v{ZT}
        v_cmp_ne_u32 vcc, 0, v{ZT}""")
        k(f"""s_cbranch_vccz f_zr{i}
        buffer_load_dwordx4 v[{ZL+4*i}:{ZL+4*i+3}], v3, s[12:15], s72 offen offset:{i*1024} sc1
        f_zr{i}:""")
    k("s_waitcnt vmcnt(0)")
    spin(k, "f_zc", 0)
    k("s_branch f_zx")
    k.c("---- out-of-line pieces ----")
    k("f_r0:")
    for u in range(2): k(f"buffer_load_dwordx4 v3, s[8:11], s18 offen offset:{u*1024} lds")
    k("s_branch f_nr")
    st_retry()
    k(f"f_pr:\ns_sleep {E('SLX', 6)}")
    stamp(k, 32)
    for i in range(4): k(f"v_mov_b32 v{FL+12+i}, v{FT+i}")
    fin1()
    k("s_waitcnt vmcnt(0)")
    spin(k, "f_pv", 0)
    k("s_waitcnt vmcnt(0)\ns_branch f_pw")
    sas()
    k(f"f_qr:\ns_sleep {E('SLX', 6)}")
    finb()
    spin(k, "f_qv", 0)
    k("s_waitcnt vmcnt(0)\ns_branch f_pvx")
    k(f"""f_go:
    s_lshl_b32 s41, s34, 7
    s_add_u32 s41, s41, {WS_GO}
    v_mov_b32 v{D1R}, s32
    v_mov_b32 v{D1R+1}, s33
    s_mov_b64 exec, 0xff
    buffer_store_dwordx4 v[{D1R}:{D1R+3}], v3, s[12:15], s41 offen sc1
    s_mov_b64 exec, -1
    s_branch f_ngo""")
    k.c("---- rare: two-pass variance / router score for LN2 ----")
    k("f_slow2:")
    k.c("here the bf16 rounding of x and of the mean matters: follow the reference's rounding steps")
    for r_ in rows:
        X2, t = r_[0], r_[3]
        for i in range(8): rb2(k, X2 + 2*i, t)
        for i in range(1, 8): padd(k, t, X2 if i == 1 else t, X2 + 2*i)
    for n, r_ in enumerate(rows):
        k(f"v_add_f32 v{RQ+4*n}, v{r_[3]}, v{r_[3]+1}")
    red((0,))
    k(f"v_mul_f32 v{RQ+3}, {f32(1.0/1024)}, v{RQ}")
    round_bf16(k, RQ, RQ + 3)
    k(f"v_sub_f32 v{RQ+3}, v{RQ+3}, v{RQ}")
    for n in range(2): k(f"v_readlane_b32 s{56+2*n}, v{RQ}, {31+32*n}")
    for r_ in rows:
        for i in range(8): psub_s(k, r_[2] + 2*i, r_[0] + 2*i, r_[4])
    k(f"v_mov_b32 v{RQ+7}, v{RQ+6}")
    sums23((rows[0][2], rows[1][2]))
    for n, r_ in enumerate(rows):
        for j in (1, 2): k(f"v_add_f32 v{RQ+4*n+j}, v{r_[3]+2*j}, v{r_[3]+2*j+1}")
    red((1, 2))
    k(f"""v_mul_f32 v{RQ+1}, {f32(1.0/1024)}, v{RQ+1}
    v_fma_f32 v{RQ+1}, -v{RQ+3}, v{RQ+3}, v{RQ+1}
    v_max_f32 v{RQ+1}, 0, v{RQ+1}
    v_mov_b32 v{RQ+6}, v{RQ+7}
    s_branch f_var2""")
    slow1()
    k.c("---- rows 0 and 1024 travel as one complex row ----")
    k.c("both inputs are made even in d: the real and the imaginary part of the transform are then the two rows")
    k("f_sp:\ns_setprio 3")
    SAR = D1R; MR = D1I; SC_ = L_C + 4096
    for j in range(4):
        k(f"ds_read_b128 v[{SAR+4*j}:{SAR+4*j+3}], v3 offset:{L_C+j*1024}")
    k(f"""v_and_b32 v12, 31, v0
    v_lshlrev_b32 v12, 2, v12
    v_and_b32 v17, 32, v0
    v_lshl_add_u32 v12, v17, 4, v12
    v_sub_u32 v20, {SC_}, v12
    v_add_u32 v12, {SC_}, v12
    v_add_u32 v17, 128, v12
    v_add_u32 v21, 128, v20""")
    for j in range(4):
        k(f"s_waitcnt lgkmcnt({3 - j + 2*j})" if j else "s_waitcnt lgkmcnt(3)")
        for i in range(4*j, 4*j + 4):
            b = i & 1
            k(f"v_pk_fma_f16 v{W+i}, v{ZL+i}, v{CS+(i>>1)}, v{SAR+i} op_sel:[0,{b},0] op_sel_hi:[1,{b},1]")
        for i in range(2):
            k(f"ds_write2st64_b32 v{(12, 17)[i]}, v{W+4*j+i}, v{W+4*j+i+2} offset0:{4*j} offset1:{4*j+1}")
    k(f"s_mov_b64 exec, 1\nds_write_b32 v12, v{W} offset:4096\ns_mov_b64 exec, -1")
    for j in range(4):
        k(f"ds_read2st64_b32 v[{MR+4*j}:{MR+4*j+1}], v20 offset0:{16-4*j} offset1:{15-4*j}")
        k(f"ds_read2st64_b32 v[{MR+4*j+2}:{MR+4*j+3}], v21 offset0:{15-4*j} offset1:{14-4*j}")
    for j in range(4):
        k(f"s_waitcnt lgkmcnt({6-2*j})")
        for i in range(4):
            k(f"v_pk_add_f16 v{W+4*j+i}, v{W+4*j+i}, v{MR+4*j+(0, 2, 1, 3)[i]}")
    st1(0, 0); st1(0, 1); st1(1, 0); st1(1, 1)
    k("s_branch f_st1")
    k("f_sp2:")
    YA, YB = Q, QM
    for j in range(4):
        twid(j)
        if j > 0: st2(j - 1, YA, BRE); st2(j - 1, YB, BIM)
    st2(3, YB, BIM); st2(3, YA, BRE)
    x1rows(YA, YB)
    for x in pr1: k(x)
    k(f"s_waitcnt lgkmcnt(0)\ns_setprio {2 if PR else 0}\ns_branch f_join")

def role_G(k):
    L_GR = 131072 + 4096; L_SI = 131072 + 8192
    k.c("w_mod tiles: rows 64*mm.., 512 columns of sa|ca|ga|cb and 256 columns of sb|gb per group")
    k.c("nonce writer: first wave of workgroup 0")
    k(f"""h_non:
    s_mul_i32 s42, s32, 0x9e3779b1
    s_lshr_b32 s43, s42, 15
    s_xor_b32 s42, s42, s43
    s_mul_i32 s42, s42, 0x85ebca6b
    s_xor_b32 s33, s33, s42
    s_lshr_b32 s43, s42, 13
    s_xor_b32 s42, s42, s43
    s_mul_i32 s33, s33, 0xc2b2ae35
    s_add_u32 s33, s33, s32
    s_lshr_b32 s43, s33, 16
    s_xor_b32 s33, s33, s43
    s_mul_i32 s33, s33, 0x27d4eb2f
    s_or_b32 s32, s42, 1
    s_andn2_b32 s33, s33, 7
    v_mov_b32 v10, s32
    v_mov_b32 v11, s33
    v_lshlrev_b32 v12, 3, v2
    s_mov_b32 exec_hi, 0
    global_store_dwordx2 v12, v[10:11], s[26:27] sc1
    s_mov_b32 exec_hi, -1
    s_branch h_nonx""")
    k.c("the first four waves start earlier: they are the loaders (logical waves 4-7)")
    k(f"""g_start:
    s_or_b32 s40, s2, s16
    s_xor_b32 s16, s16, 4
    v_xor_b32 v1, 4, v1
    v_xor_b32 v0, 0x100, v0
    v_lshlrev_b32 v13, 2, v2
    v_mov_b32 v220, 0
    v_mov_b32 v221, 0
    v_mov_b32 v233, 0
    v_mov_b32 v234, 0
    v_mov_b32 v235, 0
    s_cmp_lt_u32 s16, 4
    s_cbranch_scc1 g_cons
    @@L@@
    g_cons:
    s_lshl_b32 s29, s34, 4
    s_add_u32 s29, s29, s35
    s_lshl_b32 s29, s29, 12
    s_add_u32 s29, s29, {WS_MPA}
    s_lshl_b32 s30, s16, 9
    s_add_u32 s30, s30, s29
    s_lshl_b32 s31, s16, 8
    s_add_u32 s31, s31, s29
    s_add_u32 s31, s31, 2048
    v_lshlrev_b32 v8, 1, v2
    v_lshlrev_b32 v9, 7, v2
    v_mov_b32 v104, -1
    v_mov_b32 v105, -1
    v_mov_b32 v106, -1
    v_mov_b32 v107, -1
    s_waitcnt lgkmcnt(0)
    s_mov_b32 s12, s6
    s_mov_b32 s13, s7""")
    stamp(k, 1)
    k("""
    s_cmp_eq_u32 s16, 1
    s_cselect_b64 exec, 0xffffff, 1
    buffer_load_dword v245, v9, s[12:15], s29 offen sc1
    s_mov_b64 exec, -1
    v_mov_b32 v14, 0""")
    srd(k, 8, 58, 1024 * 6144 * 2)
    def common():
        k.c("s64 = cluster (or X index) ; s65 = K half ; s66 = 1 for X")
        k(f"""s_mov_b32 s20, s26
        s_mov_b32 s21, s27
        s_mov_b32 s26, 4194304
        s_mov_b32 s27, 0x00020000
        s_and_b32 s65, s35, 1
        s_lshr_b32 s40, s35, 1
        s_mul_i32 s64, s34, 7
        s_add_u32 s64, s64, s40
        s_lshl_b32 s41, s34, 1
        s_add_u32 s41, s41, s65
        s_cmp_ge_u32 s35, 14
        s_cselect_b32 s66, 1, 0
        s_cselect_b32 s64, s41, s64""")
        k.c("v12 / v21: transposed reads of the gate / up tile")
        k(f"""v_lshrrev_b32 v10, 2, v2
        v_and_b32 v15, 3, v0
        v_bfe_u32 v11, v0, 3, 2
        v_xor_b32 v12, v11, v1
        v_and_b32 v12, 3, v12
        v_lshlrev_b32 v12, 5, v12
        v_lshl_add_u32 v12, v10, 7, v12
        v_lshl_add_u32 v12, v15, 3, v12
        v_lshrrev_b32 v16, 2, v1
        v_lshl_add_u32 v12, v16, 15, v12
        v_add_u32 v21, 65536, v12""")
    common()
    RA, RB = 200, 208
    k(f"""v_bfe_u32 v22, v0, 2, 3
    v_lshlrev_b32 v22, 5, v22
    v_lshl_add_u32 v22, v15, 3, v22
    v_bfe_u32 v23, v0, 2, 2
    v_bfe_u32 v24, v0, 4, 2
    v_lshl_add_u32 v23, v24, 3, v23
    v_lshl_add_u32 v{RA}, v23, 10, v22
    v_lshl_add_u32 v{RA}, v1, 8, v{RA}
    v_add_u32 v{RA}, 32768, v{RA}
    v_lshlrev_b32 v25, 7, v1
    v_xor_b32 v22, v22, v25
    v_lshl_add_u32 v{RB}, v23, 9, v22
    v_add_u32 v{RB}, 98304, v{RB}
    v_cmp_eq_u32 s[60:61], 1, v24
    v_cmp_eq_u32 s[62:63], 2, v24
    v_cmp_eq_u32 s[72:73], 3, v24
    v_add3_u32 v8, v8, v25, s36
    v_lshl_add_u32 v10, v24, 4, v25
    v_add_u32 v10, {L_SI}, v10""".replace("v_add3_u32 v8, v8, v25, s36", f"v_add_u32 v8, v8, v25\nv_add_u32 v8, {L_SI}, v8"))
    for t in range(1, 8): k(f"v_xor_b32 v{RA+t}, {32*t}, v{RA}")
    for t in range(1, 4): k(f"v_xor_b32 v{RB+t}, {32*t}, v{RB}")
    k(f"s_sleep {E('GNS', 8)}")
    nonce_issue(k, 20, 128)
    GA_, GB_, GD = 120, 128, 64
    nonce_finish(k, "g_nn", 20, 192, 112)
    mtag(k, 212, 0)
    k("v_and_b32 v212, 0xff, v212\ns_movk_i32 s74, 0xff00")
    k.c("X: v220 / v233 = place of a finished piece in round 1 / 2, v234 / v235 the piece of the mirrored table, v221 = place in the partial sums")
    k(f"""s_cmp_ge_u32 s16, s66
    s_cbranch_scc1 g_nw
    s_lshr_b32 s22, s64, 2
    s_cmp_eq_u32 s22, 3
    s_cselect_b32 s22, {(FIN_T + P_C1) // 4096}, s22
    s_lshl_b32 s22, s22, 12
    s_add_u32 s22, s22, {WS_FIN}
    s_lshr_b32 s23, s64, 3
    s_lshl_b32 s23, s23, 13
    s_add_u32 s23, s23, {WS_FIN + FIN_T + P_SB}
    s_mov_b32 s75, {WS_FIN + FIN_T + P_Q}
    v_bfe_u32 v24, v0, 2, 1
    v_bfe_u32 v25, v0, 3, 2
    v_bfe_u32 v26, v0, 5, 1
    v_lshlrev_b32 v220, 4, v15
    v_lshl_add_u32 v220, v24, 9, v220
    v_lshl_add_u32 v220, v25, 10, v220
    s_and_b32 s42, s64, 3
    s_lshl_b32 s42, s42, 7
    s_and_b32 s43, s64, 4
    s_lshl_b32 s43, s43, 4
    s_add_u32 s42, s42, s43
    v_add_u32 v233, s42, v220
    v_lshl_add_u32 v220, v26, 7, v220
    s_and_b32 s42, s64, 1
    s_lshl_b32 s42, s42, 8
    s_and_b32 s43, s64, 2
    s_lshl_b32 s43, s43, 5
    s_add_u32 s42, s42, s43
    v_add_u32 v220, s42, v220
    v_xor_b32 v234, {4096 + 4080}, v220
    v_xor_b32 v235, {4096 + 4080}, v233
    v_lshlrev_b32 v221, 7, v15
    v_lshl_add_u32 v221, v24, 6, v221
    v_lshl_add_u32 v221, v25, 4, v221
    v_lshl_add_u32 v221, v26, 9, v221
    v_add_u32 v232, 8, v2
    v_and_b32 v232, 31, v232
    v_lshl_add_u32 v232, v26, 5, v232
    v_lshlrev_b32 v232, 2, v232
    s_lshl_b32 s79, s64, 7
    s_add_u32 s79, s79, {WS_REC}
    v_xor_b32 v0, 1, v0""")
    mtag4(k, 228)
    k("v_xor_b32 v0, 1, v0")
    srd(k, 44, 48, 2048)
    k("""v_lshrrev_b32 v11, 1, v221
    s_and_b32 s42, s64, 3
    s_lshl_b32 s42, s42, 9
    buffer_load_dwordx2 v[52:53], v11, s[44:47], s42 offen""")
    mtag4(k, 216)
    k.c("the lines are written once early so that an early reader does not go to HBM")
    k(f"""v_not_b32 v24, v216
    v_not_b32 v25, v229
    buffer_store_dwordx4 v[24:27], v220, s[12:15], s22 offen sc1
    s_mov_b32 exec_hi, 0
    buffer_store_dwordx4 v[24:27], v233, s[12:15], s23 offen sc1
    buffer_store_dwordx4 v[24:27], v235, s[12:15], s23 offen sc1
    s_mov_b64 exec, 0xff
    buffer_store_dwordx4 v[104:107], v3, s[12:15], s79 offen sc1
    s_mov_b64 exec, -1
    s_cmp_lt_u32 s64, 8
    s_cbranch_scc1 g_nw
    buffer_store_dwordx4 v[24:27], v234, s[12:15], s22 offen sc1
    s_cmp_lt_u32 s64, 12
    s_cbranch_scc1 g_nw
    buffer_store_dwordx4 v[24:27], v220, s[12:15], s75 offen sc1
    buffer_store_dwordx4 v[24:27], v234, s[12:15], s75 offen sc1
    g_nw:
    s_barrier""")
    def xprep():
        mtag4(k, 216)
        k(f"""s_lshl_b32 s81, s34, 16
        s_lshl_b32 s42, s16, 13
        s_add_u32 s81, s81, s42
        s_add_u32 s81, s81, {WS_MPA}
        s_lshl_b32 s42, s65, 9
        s_add_u32 s80, s81, s42
        s_add_u32 s81, s80, s42
        v_lshlrev_b32 v222, 4, v0
        v_lshrrev_b32 v223, 5, v2
        v_and_b32 v24, 0x1f0, v3
        v_lshl_add_u32 v223, v223, 12, v24
        s_lshl_b32 s39, s34, 4
        s_add_u32 s39, s39, s35
        s_lshl_b32 s39, s39, 12
        s_add_u32 s39, s39, {WS_MPA}
        s_bitcmp1_b32 s64, 2
        s_cselect_b32 s28, 1.0, 0""")
    def gemv(u, st=True):
        def prm(j):
            if u < 2: return RA + j, u*32768, 4096, GD + 4*j, GA_ + 4*u, u == 0
            return RB + (j & 3), (j >> 2)*16384, 2048, GD + 4*(j & 3), GA_ + 4*(j >> 2), j < 4
        def rd(j):
            va, off, hs = prm(j)[:3]
            k(f"ds_read_b64_tr_b16 v[{GB_+4*j}:{GB_+4*j+1}], v{va} offset:{off}")
            k(f"ds_read_b64_tr_b16 v[{GB_+4*j+2}:{GB_+4*j+3}], v{va} offset:{off+hs}")
        for j in range(7): rd(j)
        for j in range(8):
            k(f"s_waitcnt lgkmcnt({12 if j == 0 else 2*(7 - j)})")
            d_, a_, z = prm(j)[3:]
            k(f"v_mfma_f32_16x16x32_bf16 v[{d_}:{d_+3}], v[{a_}:{a_+3}], v[{GB_+4*j}:{GB_+4*j+3}], {'0' if z else f'v[{d_}:{d_+3}]'}")
            if j == 0: rd(7)
        if u:
            for h in range(3 - u):
                d_ = GD + 16*h
                for t, m_ in ((1, "s[60:61]"), (2, "s[62:63]"), (3, "s[72:73]")):
                    k(f"v_cndmask_b32 v{d_}, v{d_}, v{d_+4*t}, {m_}")
                k(f"v_and_or_b32 v{PO + 2*(u-1) + h}, v{d_}, s74, v212")
    PO = 224
    def mp(u, cp):
        if cp: k(f"s_add_u32 s42, s{29+u}, {WS_MPB - WS_MPA}")
        for h in range(3 - u):
            k(f"buffer_store_dword v{PO+2*(u-1)+h}, v13, s[12:15], s{42 if cp else 29+u} offen offset:{h*256} {('', 'sc1')[cp]}")
    stamp(k, 2)
    k("ds_read_u16 v6, v8\ns_waitcnt lgkmcnt(0)")
    k(f"""v_lshlrev_b32 v6, 16, v6
    v_mul_f32 v24, {LOG2E}, v6
    v_exp_f32 v24, v24
    v_add_f32 v24, 1.0, v24
    v_rcp_f32 v24, v24
    v_mul_f32 v6, v6, v24
    v_cvt_pk_bf16_f32 v6, v6, v6
    ds_write_b16 v8, v6
    ds_read_b128 v[{GA_}:{GA_+3}], v10
    ds_read_b128 v[{GA_+4}:{GA_+7}], v10 offset:64""")
    gemv(0)
    xprep()
    k("s_barrier")
    stamp(k, 3)
    gemv(1)
    mp(1, 0)
    stamp(k, 4)
    k("s_cmp_eq_u32 s66, 1\ns_cbranch_scc1 x_start\ns_barrier")
    if E("XH", 0):
        k.c("wave 0: a share of the second tiles of the two X workgroups into L2")
        k(f"""s_cmp_lg_u32 s16, 0
        s_cbranch_scc1 m_nh
        s_mul_i32 s42, s35, 9
        s_add_u32 s42, s42, 896
        s_mul_i32 s42, s42, 12288
        s_lshl_b32 s43, s34, 9
        s_add_u32 s42, s42, s43
        s_and_b32 s43, s34, 4
        s_lshl_b32 s43, s43, 9
        s_add_u32 s42, s42, s43
        s_add_u32 s42, s42, {3*2048}
        v_lshrrev_b32 v24, 2, v2
        v_mul_u32_u24 v24, 12288, v24
        v_lshl_add_u32 v24, v15, 7, v24
        s_mov_b32 exec_hi, 15
        buffer_load_dword v245, v24, s[8:11], s42 offen
        s_mov_b32 exec_hi, -1
        m_nh:""")
    k("s_barrier")
    gemv(2)
    mp(2, 0)
    stamp(k, 5)
    k("s_barrier")
    HN = E("HN", 37)
    if HN:
        k.c("the gate / up columns whose lines stream slowly are pulled into L2 by all M workgroups of the die")
        k(f"""s_bitcmp1_b32 s16, 0
        {"s_cbranch_scc1 m_nh2" if E("XN", 0) else ""}
        s_cselect_b32 s8, s52, s50
        s_cselect_b32 s9, s53, s51
        s_mov_b32 s10, {1024*3584*2}
        s_lshr_b32 s42, s8, 7
        s_sub_u32 s42, 3, s42
        s_add_u32 s42, s42, s34
        s_and_b32 s42, s42, 7
        s_cmp_eq_u32 s42, 7
        s_cbranch_scc1 m_nh2
        s_mul_i32 s43, s34, 7
        s_add_u32 s42, s42, s43
        s_lshl_b32 s42, s42, 7
        s_lshl_b32 s43, s35, 1
        s_lshr_b32 s40, s16, 1
        s_add_u32 s43, s43, s40
        s_mul_i32 s43, s43, {37*7168}
        s_add_u32 s42, s42, s43
        v_mul_u32_u24 v24, 7168, v2
        s_mov_b32 exec_lo, {((1 << HN) - 1) & 0xffffffff}
        s_mov_b32 exec_hi, {((1 << HN) - 1) >> 32}
        buffer_load_dword v245, v24, s[8:11], s42 offen
        s_mov_b64 exec, -1
        m_nh2:""")
    BD, BG, BU = 32, 64, 96
    def rdw(base, va):
        for ks in range(8):
            k(f"ds_read_b64_tr_b16 v[{base+4*ks}:{base+4*ks+1}], v{va} offset:{ks*4096}")
            k(f"ds_read_b64_tr_b16 v[{base+4*ks+2}:{base+4*ks+3}], v{va} offset:{ks*4096+2048}")
    k("s_barrier")
    rdw(BG, 12)
    k("s_waitcnt vmcnt(0)\ns_barrier")
    k.c("write-through copy of the partial sums (read back through L2, one KB per wave)")
    def fwd(lab, w0=0):
        k(f"""s_sub_u32 s42, s16, {w0}
        s_cmp_ge_u32 s42, 3
        s_cbranch_scc1 {lab}
        s_lshl_b32 s42, s42, 10
        s_add_u32 s42, s42, s29
        s_add_u32 s43, s42, {WS_MPB - WS_MPA}
        buffer_load_dwordx4 v[44:47], v3, s[12:15], s42 offen sc1
        s_waitcnt vmcnt(0)
        buffer_store_dwordx4 v[44:47], v3, s[12:15], s43 offen sc1
        {lab}:""")
    fwd("m_nb", 1)
    k("@@L0@@")
    k.c("================= waves 4-7: the loaders (nine 32 KB units through four LDS slots) =================")
    k(f"""g_load:
    s_and_b32 s69, s16, 3
    s_and_b32 s42, s16, 1
    s_lshl_b32 s42, s42, 7
    v_xor_b32 v6, s42, v3
    v_xor_b32 v7, 32, v6
    v_xor_b32 v8, 64, v6
    v_xor_b32 v9, 96, v6
    s_lshl_b32 s41, s35, 3
    s_add_u32 s41, s41, s69
    s_mul_i32 s18, s41, {8*12288}
    s_lshl_b32 s41, s34, 10
    s_cmp_ge_u32 s34, 6
    s_cselect_b32 s42, 2048, 0
    s_add_u32 s18, s18, s41
    s_add_u32 s18, s18, s42
    s_lshl_b32 s68, s69, 13
    s_mov_b32 s10, {1024*6144*2}
    s_waitcnt lgkmcnt(0)
    s_mov_b32 s8, s58
    s_mov_b32 s9, s59
    s_mov_b32 s12, s6
    s_mov_b32 s13, s7
    s_cmp_eq_u32 s40, 0
    s_cbranch_scc1 h_non
    h_nonx:
    s_lshl_b32 s42, s69, 7
    s_add_u32 s42, s42, {L_SI}
    s_mov_b32 m0, s42
    s_lshl_b32 s42, s35, 7
    v_add_u32 v10, s42, v13
    s_mov_b32 exec_hi, 0
    global_load_lds_dword v10, s[56:57]
    s_mov_b32 exec_hi, -1""")
    stamp(k, 1)
    W0, W1, W2 = E("W0", 8), E("W1", 7), E("W2", 10)
    WU = [int(x) for x in os.environ.get("WU", "8,8,8,8,10,10,10").split(",")]
    win = lambda n: WU[n >> 3]
    def unit_load(n):
        u, i = n >> 3, n & 7
        slot = ((u + 1) & 3) * 32768
        if u < 2:
            va, srdb, sb, stride = 6 + (i & 3), 8, 18, 12288
            rows = 32 * u + i
        elif u == 2:
            va, srdb, sb, stride = 4, 8, 19, 12288
            rows = 2 * i
            k(f"v_xor_b32 v4, {64*(i&1) + 128*((i>>2)&1)}, v14")
        elif u < 7:
            va, srdb, sb, stride = 5, (56, 56, 44, 44)[u-3], 67, 7168
            rows = 256 * ((u + 1) & 1) + 32 * (i >> 2) + 16 * (i & 1) + 4 * ((i >> 1) & 1)
        k(f"s_add_u32 s43, s68, {slot + i*1024}\ns_mov_b32 m0, s43\ns_add_u32 s42, s{sb}, {rows*stride}")
        if E("NOW", 0) and u >= 3: return
        nt = "nt" if (E("NTU", 511) >> u) & 1 else ""
        k(f"buffer_load_dwordx4 v{va}, s[{srdb}:{srdb+3}], s42 offen {nt} lds")
    L1, L2 = E("L1", 4), E("L2", 6)
    def stream(n0, n1, total, landed):
        for n in range(n0, n1):
            w = min(win(n), n) if n else 1
            for u, la in ((1, L1), (2, L2)):
                if n == 8 * (u + 1) + la and landed <= u:
                    k(f"s_waitcnt vmcnt({la})")
                    while landed <= u:
                        event(landed); landed += 1
            if n >= win(n): k(f"s_waitcnt vmcnt({win(n)-1})")
            while 8 * (landed + 1) <= n - win(n) + 1 and landed < 5:
                event(landed); landed += 1
            unit_load(n)
        if n1 == total:
            while 8 * (landed + 1) <= total - 16:
                k(f"s_waitcnt vmcnt({total - 8*(landed+1)})")
                event(landed); landed += 1
        return landed
    def event(u):
        stamp(k, 40 + u)
        k("s_barrier")
        if u in (1, 2): k("s_barrier")
        if u == 4: rdw(BG, 12)
    def setup2():
        pass
    landed = stream(0, 8, 56, 0)
    k(f"""s_lshl_b32 s19, s35, 2
    s_add_u32 s19, s19, s69
    s_mul_i32 s19, s19, {16*12288}
    s_lshl_b32 s42, s34, 9
    s_add_u32 s19, s19, s42
    s_and_b32 s42, s34, 4
    s_lshl_b32 s42, s42, 9
    s_add_u32 s19, s19, s42
    s_add_u32 s19, s19, {3*2048}
    v_lshrrev_b32 v5, 5, v2
    v_and_b32 v14, 0x1f0, v3
    v_lshlrev_b32 v12, 5, v5
    v_xor_b32 v14, v14, v12
    s_movk_i32 s42, 12288
    v_mad_u32_u24 v14, v5, s42, v14
    v_bfe_u32 v5, v0, 5, 1
    v_lshlrev_b32 v5, 3, v5
    v_bfe_u32 v12, v0, 3, 2
    v_add_u32 v5, v5, v12
    v_bfe_u32 v12, v0, 4, 2
    v_lshlrev_b32 v12, 1, v12
    v_xor_b32 v12, v12, v0
    v_and_b32 v12, 7, v12
    v_lshlrev_b32 v12, 4, v12
    s_movk_i32 s42, 7168
    v_mad_u32_u24 v5, v5, s42, v12""")
    common()
    k(f"""s_lshl_b32 s67, s65, 3
    s_add_u32 s67, s67, s69
    s_mul_i32 s67, s67, {64*7168}
    s_lshl_b32 s42, s64, 7
    s_add_u32 s67, s67, s42
""")
    srd(k, 56, 50, 1024 * 3584 * 2)
    srd(k, 44, 52, 1024 * 3584 * 2)
    landed = stream(8, 10, 56, landed)
    nonce_issue(k, 20, 128)
    landed = stream(10, 16, 56, landed)
    nonce_finish(k, "g_n2", 20, 192, 120)
    k("s_cmp_eq_u32 s66, 0\ns_cbranch_scc1 m_load")
    xprep()
    k(f"s_waitcnt vmcnt(0)\ns_barrier\ns_branch x_start\nm_load:")
    stream(16, 56, 56, landed)
    k("s_branch m_join\n@@L1@@\nm_join:")
    L_H = 131072
    KB = 24; HA = 128; AG = 160
    k.c("h2 as 2:4-sparse operand: row m = (row, half of every group of four); v13 write, v17 read, v19 positions")
    k(f"""v_bfe_u32 v7, v0, 4, 2
    v_and_b32 v6, 3, v0
    v_mul_u32_u24 v17, {512 + 64}, v6
    v_lshl_add_u32 v17, v16, 8, v17
    v_lshl_add_u32 v17, v7, 4, v17
    v_add_u32 v17, {L_H}, v17
    v_cmp_lt_u32 vcc, 1, v6
    v_mov_b32 v19, 0x44444444
    v_mov_b32 v22, 0xeeeeeeee
    v_cndmask_b32 v19, v19, v22, vcc
    v_and_b32 v6, 15, v0
    v_lshlrev_b32 v13, 5, v6
    v_bfe_u32 v22, v0, 4, 1
    v_lshl_add_u32 v13, v22, 4, v13
    v_bfe_u32 v22, v0, 5, 1
    v_lshl_add_u32 v13, v22, 3, v13
    v_mul_u32_u24 v22, {512 + 64}, v1
    v_add_u32 v13, v13, v22
    v_add_u32 v13, {L_H}, v13
    s_lshl_b32 s70, s34, 1
    s_add_u32 s70, s70, s16
    s_lshl_b32 s70, s70, 13
    s_lshl_b32 s71, s65, 11
    s_add_u32 s70, s70, s71
    s_add_u32 s70, s70, {WS_HM}
    s_mov_b32 s71, 0x07060302
    s_lshl_b32 s69, s64, 2
    s_and_b32 s42, s16, 3
    s_add_u32 s69, s69, s42
    s_lshl_b32 s69, s69, 10
    s_lshl_b32 s76, s65, 1
    s_lshr_b32 s42, s16, 2
    s_add_u32 s76, s76, s42
    s_lshl_b32 s76, s76, 8
    s_add_u32 s76, s76, s69
    s_add_u32 s77, s76, {WS_XB}
    s_add_u32 s76, s76, {WS_XA}
    s_add_u32 s69, s69, {WS_XA}
""")
    k.c("waves 0, 1 wait for the two rows while the last units land; wave 2 brings the hand-off lines into L2")
    k(f"""s_cmp_lg_u32 s16, 2
    s_cbranch_scc1 m_n0
    v_lshlrev_b32 v4, 7, v2
    s_sub_u32 s69, s69, 2048
    s_mov_b32 exec_hi, 0
    buffer_load_dword v5, v4, s[12:15], s69 offen sc1
    s_mov_b32 exec_hi, -1
    m_n0:
    s_cmp_ge_u32 s16, 2
    s_cbranch_scc1 m_n1
    v_lshlrev_b32 v4, 7, v2
    s_mov_b64 exec, 0xffff
    buffer_load_dword v5, v4, s[12:15], s70 offen sc1
    s_mov_b64 exec, -1
    m_n1:""")
    mtag4(k, 216)
    htag(k, 60)
    hl = lambda so: f"""buffer_load_dwordx4 v[176:179], v3, s[12:15], s{so} offen sc1
    buffer_load_dwordx4 v[180:183], v3, s[12:15], s{so} offen offset:1024 sc1"""
    k("s_movk_i32 s74, 0xff00\ns_waitcnt vmcnt(0)")
    stamp(k, 6); stamp(k, 45)
    k(f"""s_barrier
    s_cmp_ge_u32 s16, 2
    s_cselect_b64 exec, 1, -1
    {hl(70)}
    s_mov_b64 exec, -1""")
    rdw(BU, 21)
    for i in range(8): k(f"v_mov_b32 v{AG+i}, 0")
    k(f"""s_cbranch_scc1 m_nk
    s_mov_b32 s83, 0
    s_branch m_ph
    m_pr:
    s_and_b32 s42, s83, 63
    s_cmp_eq_u32 s42, 63
    s_cselect_b32 s42, {HM_B}, 0
    s_add_u32 s42, s42, s70
    {hl(42)}
    s_add_u32 s83, s83, 1
    s_cmp_ge_u32 s83, {SPIN}
    s_cbranch_scc1 m_phx
    m_ph:
    s_waitcnt vmcnt(0)
    v_cmp_ne_u16 vcc, s63, v183
    s_cbranch_vccnz m_pr""")
    for i in range(4): k(f"v_perm_b32 v{184+(0, 2, 1, 3)[i]}, v{177+2*i}, v{176+2*i}, s71")
    k(f"ds_write2_b64 v13, v[184:185], v[186:187] offset0:0 offset1:{2*(512+64)//8}")
    for i in range(8): k(f"v_xor_b32 v{176+i}, s{60+(i&3)}, v{176+i}")
    for i in range(4): k(f"v_or3_b32 v4, v{176+2*i}, v{177+2*i}, {'0' if i == 0 else 'v4'}")
    k("v_cmp_ne_u16 vcc, 0, v4\ns_cbranch_vccnz m_pr\nm_phx:")
    stamp(k, 14)
    def slot_of(d, s_):
        k(f"""s_bfe_u32 s{d}, s{s_}, 0x70005
        s_lshl_b32 s{d}, s{d}, 13
        s_and_b32 s{s_}, s{s_}, 1
        s_lshl_b32 s{s_}, s{s_}, 12
        s_add_u32 s{d}, s{d}, s{s_}""")
    k("m_nk:\ns_waitcnt lgkmcnt(0)\ns_barrier")
    for ks in range(4):
        k(f"ds_read_b128 v[{HA+4*ks}:{HA+4*ks+3}], v17 offset:{ks*64}")
    for ks in range(4):
        k(f"s_waitcnt lgkmcnt({3-ks})")
        for a_, b_ in ((AG, BG), (AG + 4, BU)):
            k(f"v_smfmac_f32_16x16x64_bf16 v[{a_}:{a_+3}], v[{HA+4*ks}:{HA+4*ks+3}], v[{b_+8*ks}:{b_+8*ks+7}], v19")
    padd(k, AG, AG, AG + 2); padd(k, AG + 4, AG + 4, AG + 6)
    PB = 184
    for i, r_ in enumerate((AG, AG + 1, AG + 4, AG + 5)): k(f"v_and_or_b32 v{PB+i}, v{r_}, s74, v{216+i}")
    k(f"""s_mov_b64 exec, 0xffff
    buffer_store_dwordx4 v[{PB}:{PB+3}], v3, s[12:15], s76 offen
    buffer_store_dwordx4 v[{PB}:{PB+3}], v3, s[12:15], s77 offen sc1
    s_mov_b64 exec, -1""")
    stamp(k, 15)
    k("s_cmp_eq_u32 s16, 0\ns_cbranch_scc1 r_start\ng_end:")
    stamp_out(k, 0)
    k(f"""s_endpgm
""")
    k.c("================= X: modulation tables, then the final reduction =================")
    k("x_start:")
    stamp(k, 30)
    def gather(lab, rnd):
        k(f"""s_mov_b32 s83, 0
        {lab}:
        s_and_b32 s42, s83, 63
        s_cmp_eq_u32 s42, 63
        s_cselect_b32 s42, {WS_MPB - WS_MPA}, 0
        s_add_u32 s42, s42, s{81 - rnd}""")
        if rnd == 0:
            k("""s_add_u32 s43, s42, 4096
            buffer_load_dwordx4 v[32:35], v3, s[12:15], s42 offen sc1
            buffer_load_dwordx4 v[36:39], v3, s[12:15], s43 offen sc1""")
        else:
            k("buffer_load_dwordx4 v[32:35], v223, s[12:15], s42 offen offset:2048 sc1")
        k("s_waitcnt vmcnt(0)")
        untag(k, range(32, 40 - 4*rnd), 216, 17)
        tagchk(k, 17)
        k(f"""s_cbranch_vccz {lab}x
        s_and_b32 s42, s83, 63
        s_cmp_lg_u32 s42, 48
        s_cbranch_scc1 {lab}n""")
        own_b(rnd)
        k(f"{lab}n:")
        spin(k, lab, E("SLP", 0))
        k(f"{lab}x:")
        stamp(k, 31 + 3*rnd)
        if rnd == 0:
            for h in range(2): padd(k, 32 + 2*h, 32 + 2*h, 36 + 2*h)
        k(f"""ds_write_b128 v222, v[32:35] offset:{rnd*8192}
        s_waitcnt lgkmcnt(0)
        s_barrier
        s_cmp_lg_u32 s16, 0
        s_cbranch_scc1 {lab}e""")
        for i in range(8): k(f"ds_read_b128 v[{160+4*i}:{163+4*i}], v221 offset:{rnd*8192+i*1024}")
        for i in range(0, 8, 2):
            k(f"s_waitcnt lgkmcnt({6-i})")
            for h in range(2): padd(k, 160 + 4*i + 2*h, 160 + 4*i + 2*h, 164 + 4*i + 2*h)
        for h in range(2):
            padd(k, 160 + 2*h, 160 + 2*h, 168 + 2*h); padd(k, 176 + 2*h, 176 + 2*h, 184 + 2*h)
        for h in range(2): padd(k, 160 + 2*h, 160 + 2*h, 176 + 2*h)
    def own_b(rnd):
        k(f"s_add_u32 s43, s39, {WS_MPB - WS_MPA}")
        for i in range(2 + rnd):
            k(f"buffer_load_dwordx4 v[44:47], v3, s[12:15], s39 offen offset:{i*1024} sc1")
            k("s_waitcnt vmcnt(0)")
            k(f"buffer_store_dwordx4 v[44:47], v3, s[12:15], s43 offen offset:{i*1024} sc1")
            k("s_waitcnt vmcnt(0)")
    def fin_store(v, so, o, va, vm_=None):
        if vm_: k(f"ds_bpermute_b32 v{o+4}, v232, v{v}")
        for i in range(4): k(f"v_and_or_b32 v{o+i}, v{v+i}, s74, v{216+i}")
        k(f"buffer_store_dwordx4 v[{o}:{o+3}], v{va}, s[12:15], s{so} offen sc1")
        if vm_:
            for i in range(1, 4): k(f"v_and_or_b32 v{o+4+i}, v{v+4-i}, s74, v{228+i}")
            k(f"s_waitcnt lgkmcnt(0)\nv_and_or_b32 v{o+4}, v{o+4}, s74, v228")
            k(f"buffer_store_dwordx4 v[{o+4}:{o+7}], v{vm_}, s[12:15], s{so} offen sc1")
    gather("x_g0", 0)
    for h in range(2): rb2(k, 160 + 2*h, 17 + h)
    for n in range(4): k(f"v_add_f32 v{160+n}, s28, v{160+n}")
    for h in range(2): rb2(k, 160 + 2*h, 17 + h)
    k(f"""v_mov_b32 v48, s32
    v_mov_b32 v49, s33
    s_cmp_ge_u32 s64, 8
    s_cbranch_scc1 x_q""")
    fin_store(160, 22, 168, 220)
    k("""v_max3_f32 v50, abs(v160), abs(v161), abs(v162)
    v_max_f32_e64 v50, v50, abs(v163)""")
    wave_reduce_to63(k, [50], "v_max_f32")
    rec_ = """v_readlane_b32 s42, v50, 63
    v_mov_b32 v50, s42
    s_mov_b64 exec, 0xff
    buffer_store_dwordx4 v[48:51], v3, s[12:15], s79 offen sc1
    s_mov_b64 exec, -1"""
    k(rec_)
    k("s_branch x_g0e\nx_q:\ns_cmp_lt_u32 s64, 12\ns_cbranch_scc1 x_nq")
    for h in range(2): unpack_bf16(k, 164 + 2*h, 52 + h)
    for h in range(2): pmul(k, 164 + 2*h, 164 + 2*h, 160 + 2*h)
    fin_store(164, 75, 176, 220, 234)
    for i in range(4): k(f"v_and_b32 v{164+i}, s74, v{164+i}")
    padd(k, 164, 164, 166)
    k("v_add_f32 v50, v164, v165")
    wave_reduce_to63(k, [50], "v_add_f32")
    k(rec_)
    k("x_nq:")
    fin_store(160, 22, 168, 220, 234)
    k("""
    x_g0e:""")
    stamp(k, 32); stamp(k, 14)
    k("s_barrier\ns_cmp_lt_u32 s16, 4\ns_cbranch_scc1 x_t1")
    for n in range(16, 24):
        unit_load(n)
    k("s_waitcnt vmcnt(0)\ns_barrier\ns_branch x_t2\nx_t1:")
    k("s_barrier")
    gemv(2)
    mp(2, 0)
    k("x_t2:")
    stamp(k, 33)
    gather("x_g1", 1)
    for i in range(4): k(f"v_mov_b32 v{164+i}, v{160+i}")
    for i in range(4): k(f"v_permlane32_swap_b32 v{160+i}, v{164+i}")
    for h in range(2): padd(k, 160 + 2*h, 160 + 2*h, 164 + 2*h)
    for h in range(2): rb2(k, 160 + 2*h, 17 + h)
    k("s_mov_b32 exec_hi, 0")
    fin_store(160, 23, 168, 233, 235)
    k("s_mov_b32 exec_hi, -1\nx_g1e:")
    stamp(k, 6); stamp(k, 35)
    fwd("x_nb")
    XN = E("XN", 0)
    if XN:
        k.c("idle time: the slowly streaming up column of this die into L2")
        k(f"""s_barrier
        s_mov_b32 s8, s52
        s_mov_b32 s9, s53
        s_mov_b32 s10, {1024*3584*2}
        s_lshr_b32 s42, s8, 7
        s_sub_u32 s42, 3, s42
        s_add_u32 s42, s42, s34
        s_and_b32 s42, s42, 7
        s_cmp_eq_u32 s42, 7
        s_cbranch_scc1 x_nh
        s_mul_i32 s43, s34, 7
        s_add_u32 s42, s42, s43
        s_lshl_b32 s42, s42, 7
        s_lshl_b32 s43, s65, 3
        s_add_u32 s43, s43, s16
        s_mul_i32 s43, s43, {64*7168}
        s_add_u32 s42, s42, s43
        v_mul_u32_u24 v24, 7168, v2
        buffer_load_dword v245, v24, s[8:11], s42 offen
        x_nh:""")
    k(f"""s_cmp_lg_u32 s16, 0
    s_cbranch_scc1 g_end
    s_lshl_b32 s78, s34, 14
    s_add_u32 s78, s78, {WS_KEY}
    s_lshl_b32 s79, s34, 7
    s_add_u32 s79, s79, {WS_GO}
    v_mov_b32 v22, 0""")
    srd(k, 56, 48, 2048)
    htag(k, 60)
    btag(k, 44)
    k.c("w_r, sb and 1+cb in slot order")
    k(f"""v_and_b32 v9, 15, v0
    v_lshlrev_b32 v9, 6, v9
    v_bfe_u32 v19, v0, 4, 1
    v_lshl_add_u32 v9, v19, 5, v9
    v_lshlrev_b32 v18, 9, v19
    v_bfe_u32 v19, v0, 5, 1
    v_lshl_add_u32 v9, v19, 4, v9
    v_lshl_add_u32 v18, v19, 11, v18
    v_bfe_u32 v19, v0, 2, 2
    v_lshl_add_u32 v18, v19, 7, v18
    v_lshl_add_u32 v18, v15, 4, v18
    s_mov_b32 s43, {WS_FIN + FIN_T + P_SB}
    s_lshl_b32 s70, s64, 13
    s_add_u32 s70, s70, {WS_HM}
    s_add_u32 s71, s70, {HM_B}
    s_add_u32 s72, s70, 4096
    s_add_u32 s73, s71, 4096
    v_mov_b32 v21, 0xffff0000""")
    for j in range(2):
        k(f"buffer_load_dwordx4 v[{92+4*j}:{95+4*j}], v9, s[56:59], 0 offen offset:{j*1024}")
    def vec(r, so):
        for j in range(4):
            k(f"buffer_load_dwordx4 v[{r+4*j}:{r+4*j+3}], v18, s[12:15], s{so} offen offset:{(j>>1)*64 + (j&1)*1024} sc1")
    k("s_mov_b32 s76, s43\ns_sub_u32 s42, s43, 8192\ns_mov_b32 s83, 0\nx_cb:")
    vec(116, 42)
    k("s_waitcnt vmcnt(0)")
    untag(k, range(116, 132), 216, 19)
    tagchk(k, 19)
    k("s_cbranch_vccz x_cbx")
    spin(k, "x_cb", 8)
    k("x_cbx:")
    for i in range(8): unpack_bf16(k, 48 + 2*i, 92 + i)
    poll_recs(k, "x_go", 28, 22, 79, "1", sl=E("SLG", 1))
    stamp(k, 22)
    k.c("the two workgroups of a die start with different halves")
    k("s_lshl_b32 s42, s65, 13\ns_add_u32 s78, s78, s42")
    if E("XKS", 0): k(f"s_sleep {E('XKS', 0)}")
    stamp(k, 23)
    vec(100, 76)
    poll_keys(k, "x_pk", 24, 78, 32, sl=E("SLK", 0))
    stamp(k, 24); stamp(k, 13)
    top2(k, 24, 32, "x_t1st")
    k("s_mov_b32 s40, s41\nx_t1st:\nv_mov_b32 v46, s40")
    slot_of(42, 40)
    k(f"""s_lshr_b32 s43, s42, 5
    s_add_u32 s42, s42, {WS_SLOT}
    s_add_u32 s43, s43, {WS_SH}
    s_mov_b32 s83, 0
    x_ph:
    s_mov_b64 exec, 1
    buffer_load_dwordx4 v[28:31], v22, s[12:15], s43 offen sc1
    s_mov_b64 exec, -1""")
    for q in range(4): k(f"buffer_load_dwordx4 v[{64+4*q}:{67+4*q}], v3, s[12:15], s42 offen offset:{q*1024} sc1")
    k("s_cmp_lg_u32 s83, 0\ns_cbranch_scc1 x_sbx\nx_sb:")
    untag(k, range(100, 116), 216, 19)
    tagchk(k, 19)
    k("s_cbranch_vccnz x_sr\nx_sbx:")
    k("""s_waitcnt vmcnt(4)
    v_readfirstlane_b32 s22, v28
    v_readfirstlane_b32 s23, v29
    v_readfirstlane_b32 s20, v30
    v_readfirstlane_b32 s21, v31
    s_xor_b64 s[22:23], s[22:23], s[32:33]""")
    k("s_cbranch_scc1 x_pr")
    for q in range(4):
        k(f"s_waitcnt vmcnt(3)")
        for i in range(4): k(f"v_xor_b32 v{64+4*q+i}, s{44 + 4*(q & 1) + i}, v{64+4*q+i}")
        k(f"v_or3_b32 v19, v{64+4*q}, v{65+4*q}, v{66+4*q}\nv_or_b32 v19, v19, v{67+4*q}")
        for i in range(2*q, 2*q + 2):
            k(f"v_pk_fma_f32 {P(64+2*i)}, {P(64+2*i)}, s[20:21], s[20:21] op_sel:[0,1,0] op_sel_hi:[1,1,0]")
        k(f"v_cmp_ne_u16_sdwa vcc, v19, v22 src0_sel:BYTE_0 src1_sel:DWORD")
        for i in range(2*q, 2*q + 2): pfma(k, 64 + 2*i, 64 + 2*i, 116 + 2*i, 100 + 2*i)
        for i in range(2*q, 2*q + 2): k(f"v_cvt_pk_bf16_f32 v{32+i}, v{64+2*i}, v{65+2*i}")
        k("s_cbranch_vccnz x_pr")
        for i in range(2*q, 2*q + 2):
            k(f"v_lshl_or_b32 v{64+2*i}, v{32+i}, 16, s{60+((2*i)&3)}")
            k(f"v_and_or_b32 v{65+2*i}, v{32+i}, v21, s{60+((2*i+1)&3)}")
        k(f"buffer_store_dwordx4 v[{64+4*q}:{67+4*q}], v3, s[12:15], s70 offen offset:{q*1024}")
    k("x_phx:")
    stamp(k, 15)
    for q in range(4):
        k(f"buffer_store_dwordx4 v[{64+4*q}:{67+4*q}], v3, s[12:15], s71 offen offset:{q*1024} sc1")
    for i in range(8): unpack_bf16(k, 100 + 2*i, 32 + i)
    pmul(k, 8, 48, 100)
    for i in range(1, 8): pfma(k, 8, 48 + 2*i, 100 + 2*i, 8)
    k("v_add_f32 v8, v8, v9")
    wave_reduce_to63(k, [8])
    round_bf16(k, 8, 8)
    k(f"""v_mul_f32 v8, {LOG2E}, v8
    v_exp_f32 v8, v8
    v_add_f32 v8, 1.0, v8
    v_rcp_f32 v8, v8""")
    round_bf16(k, 8, 8)
    k(f"""v_readlane_b32 s46, v8, 63
    v_mov_b32 v44, s32
    v_mov_b32 v45, s33
    v_mov_b32 v47, s46
    s_mov_b64 exec, 0xff
    buffer_store_dwordx4 v[44:47], v3, s[12:15], s73 offen sc1
    s_mov_b64 exec, -1
    s_sleep {E('XSL', 16)}""")
    k.c("================= final reduction: one job (row, 16-column block s18) per G workgroup =================")
    k(f"""r_start:
    s_lshl_b32 s62, s34, 1
    s_lshr_b32 s42, s34, 2
    s_add_u32 s62, s62, s42
    s_lshl_b32 s62, s62, 13
    s_add_u32 s62, s62, {WS_HM + HM_B}
    s_add_u32 s61, s62, 4096
    s_and_b32 s18, s34, 3
    s_lshl_b32 s18, s18, 4
    s_add_u32 s18, s18, s35
    v_mov_b32 v11, 0
    v_and_b32 v4, 3, v0
    v_lshrrev_b32 v7, 4, v2
    v_lshlrev_b32 v5, 3, v4
    v_lshl_add_u32 v5, v7, 1, v5
    v_lshlrev_b32 v6, 10, v4
    v_lshl_add_u32 v6, v7, 2, v6
    v_lshrrev_b32 v86, 1, v4
    v_lshlrev_b32 v86, 9, v86
    v_and_b32 v87, 1, v4
    v_lshl_add_u32 v85, v87, 10, v86
    v_lshl_add_u32 v85, v7, 2, v85
    s_and_b32 s30, s18, 1
    s_bfe_u32 s31, s18, 0x20001
    s_bfe_u32 s40, s18, 0x20003
    s_lshr_b32 s41, s18, 5
    s_lshl_b32 s45, s41, 11
    s_lshl_b32 s42, s30, 8
    s_add_u32 s45, s45, s42
    s_lshl_b32 s42, s40, 6
    s_add_u32 s45, s45, s42
    s_lshl_b32 s31, s31, 4
    s_add_u32 s45, s45, s31
    s_add_u32 s62, s62, s45
    s_lshl_b32 s30, s30, 9
    s_add_u32 s31, s31, s30
    s_lshl_b32 s40, s40, 7
    s_add_u32 s31, s31, s40
    s_lshl_b32 s41, s41, 6
    s_add_u32 s31, s31, s41
    s_add_u32 s31, s31, {WS_FIN + FIN_T + P_GB}
    s_mov_b32 s83, 0
    r_ld:
    s_mov_b64 exec, 1
    buffer_load_dwordx4 v[32:35], v11, s[12:15], s61 offen sc1
    s_mov_b64 exec, -1
    buffer_load_dword v41, v85, s[12:15], s62 offen sc1
    buffer_load_dword v91, v6, s[12:15], s31 offen sc1
    s_bitcmp1_b32 s18, 1
    s_cselect_b32 s42, s33, s32
    v_lshlrev_b32 v88, 3, v7
    v_lshrrev_b32_e64 v88, v88, s42
    v_and_b32 v88, 0xff, v88
    v_lshlrev_b32 v89, 4, v7
    v_lshrrev_b64 v[82:83], v89, s[32:33]
    v_and_b32 v82, 0xffff, v82
    s_waitcnt vmcnt(0)
    v_readfirstlane_b32 s50, v32
    v_readfirstlane_b32 s51, v33
    v_readfirstlane_b32 s40, v34
    v_readfirstlane_b32 s46, v35
    v_xor_b32 v91, v88, v91
    v_xor_b32 v41, v82, v41
    v_or_b32 v19, v91, v41
    v_cmp_ne_u16 vcc, 0, v19
    s_xor_b64 s[50:51], s[50:51], s[32:33]
    s_or_b64 vcc, vcc, s[50:51]
    s_cbranch_vccz r_ldx""")
    spin(k, "r_ld", 2)
    k(f"""r_ldx:
    v_mul_f32 v80, s46, v91
    s_bfe_u32 s46, s40, 0x70005
    s_bfe_u32 s47, s40, 0x30002
    s_bfe_u32 s60, s40, 0x10001""")
    slot_of(63, 40)
    k(f"""s_add_u32 s63, s63, s45
    s_add_u32 s63, s63, {WS_SLOT}
    buffer_load_dword v44, v85, s[12:15], s63 offen sc1
    v_lshrrev_b32 v10, 2, v2
    v_lshlrev_b32 v10, 7, v10
    v_lshl_add_u32 v10, v4, 4, v10
    s_lshl_b32 s44, s18, 13
    s_and_b32 s42, s34, 4
    s_lshl_b32 s42, s42, 4
    s_add_u32 s44, s44, s42
    s_add_u32 s44, s44, {WS_PART}
    s_add_u32 s45, s44, 4096""")
    row_of(k, 41, 46, 47, 61)
    mirror_row(k, 61, 41)
    k("""s_cmp_eq_u32 s60, 1
    s_cselect_b32 s41, s61, s41
    s_lshl_b32 s41, s41, 11
    s_lshl_b32 s61, s18, 5
    s_add_u32 s41, s41, s61""")
    if E("OTOUCH", 0): k("s_mov_b64 exec, 1\nbuffer_load_dword v245, v5, s[24:27], s41 offen\ns_mov_b64 exec, -1\ns_waitcnt vmcnt(1)")
    else: k("s_waitcnt vmcnt(0)")
    k("""v_and_b32 v44, 0xffffff00, v44
    v_fmac_f32 v44, v91, v41""")
    stamp(k, 16)
    L = 16; U = 48
    for i in range(4): k(f"v_mov_b32 v{L+12+i}, v{216+i}")
    if E("SL4", 24): k(f"s_sleep {E('SL4', 24)}")
    k(f"""s_mov_b32 s83, 0
    s_mov_b64 s[64:65], -1
    s_mov_b64 s[66:67], -1
    s_mov_b64 s[68:69], -1
    s_mov_b32 s70, -1
    s_mov_b32 s71, 0
    r_p:""")
    for j in range(4):
        k(f"""s_mov_b64 exec, s[{64+2*j}:{65+2*j}]
        s_cbranch_execz r_q{j}
        buffer_load_dwordx4 v[{L+4*j}:{L+4*j+3}], v10, s[12:15], s{44 + (j >> 1)} offen offset:{(j&1)*2048} sc1
        r_q{j}:""")
    k("s_mov_b64 exec, -1\ns_waitcnt vmcnt(0)")
    for i in range(16): k(f"v_xor_b32 v{U+i}, v{216+(i&3)}, v{L+i}")
    for j in range(4):
        k(f"v_or3_b32 v{12+j}, v{U+4*j}, v{U+4*j+1}, v{U+4*j+2}")
    for j in range(4):
        k(f"v_or_b32 v{12+j}, v{12+j}, v{U+4*j+3}")
    for h in range(2):
        padd(k, U + 2*h, U + 2*h, U + 4 + 2*h); padd(k, U + 8 + 2*h, U + 8 + 2*h, U + 12 + 2*h)
    for j in range(4):
        k(f"v_cmp_ne_u16_sdwa s[{64+2*j}:{65+2*j}], v{12+j}, v11 src0_sel:BYTE_0 src1_sel:DWORD")
    for h in range(2): padd(k, U + 2*h, U + 2*h, U + 8 + 2*h)
    k("""s_or_b64 s[50:51], s[64:65], s[66:67]
    s_or_b64 s[52:53], s[68:69], s[70:71]
    s_or_b64 s[50:51], s[50:51], s[52:53]
    s_cbranch_scc1 r_r
    r_x:""")
    stamp(k, 17)
    k(f"v_permlane32_swap_b32 v{U}, v{U+2}\nv_permlane32_swap_b32 v{U+1}, v{U+3}")
    padd(k, U, U, U + 2)
    k(f"v_permlane16_swap_b32 v{U}, v{U+1}\nv_add_f32 v{U}, v{U}, v{U+1}")
    for sh in (4, 8): k(f"v_add_f32_dpp v{U}, v{U}, v{U} row_ror:{sh} {DPPM}")
    k(f"""v_fmac_f32 v44, v{U}, v80
    s_mov_b32 exec_lo, 0x000f000f
    s_mov_b32 exec_hi, 0x000f000f
    v_cvt_pk_bf16_f32 v44, v44, v44
    buffer_store_short v44, v5, s[24:27], s41 offen {os.environ.get("FST", "")}""")
    stamp_out(k, 0)
    k("s_endpgm\nx_pr:\ns_waitcnt vmcnt(0)")
    spin(k, "x_ph", 0)
    k("s_branch x_phx\nx_sr:")
    vec(100, 76)
    k("s_waitcnt vmcnt(0)")
    spin(k, "x_sb", 2)
    k("s_branch x_sbx\nr_r:")
    spin(k, "r_p", E("RSL", 0))
    k("s_branch r_x")

def gen():
    k = K(NAME)
    stamp_init(k)
    k("""s_cmp_ge_u32 s2, 256
    s_cbranch_scc1 k_done""")
    stamp(k, 0)
    head(k)
    role_F(k)
    n0 = len(k.lines)
    role_G(k)
    g = k.lines[n0:]; f = k.lines[:n0]
    ix = lambda L, t: [x.strip() for x in L].index(t)
    a, b = ix(g, "@@L0@@"), ix(g, "@@L1@@")
    ld = g[a+1:b]; g = g[:a] + g[b+1:]
    a = ix(g, "@@L@@"); g = g[:a] + ld + g[a+1:]
    a = ix(f, "@@G@@"); k.lines = f[:a] + g + f[a+1:]
    k("k_done:\ns_endpgm")
    return k

HEADER = """; adaLN + FNet mixing + MoD block, gfx950.  Generated by gen/gen28.py (hand-written generator).
"""
def tables():
    import numpy as np
    def h2(a, b):
        return int(np.float16(a).view(np.uint16)) | (int(np.float16(b).view(np.uint16)) << 16)
    def f4(a): return int(np.float32(a).view(np.uint32))
    cs = lambda x: (math.cos(2 * math.pi * x), math.sin(2 * math.pi * x))
    w = []
    for var in range(2):
        for mt in range(2):
            for l in range(64):
                m, g = l & 15, l >> 4
                k1, p = 8 * mt + (m >> 1), m & 1
                for i in range(4):
                    j0 = 4 * g + (i ^ (2 * (g & 1)))
                    if var == 0:
                        c, s_ = cs((j0 * k1 % 16) / 16.0)
                        v = (h2(c, s_), h2(-s_, c))[p]
                    elif k1 == 0:
                        v = h2(1.0 if p == 0 else (-1.0) ** j0, 0)
                    elif k1 < 8:
                        c, s_ = cs((j0 * k1 % 16) / 16.0)
                        v = h2((c, -s_)[p], 0)
                    else:
                        c, s_ = cs(j0 * (8 + 16 * (k1 - 8)) / 256.0)
                        v = h2(0, (c, -s_)[p])
                    w.append(v)
    t = ".p2align 8\n.type tables,@object\ntables:\n"
    for i in range(0, len(w), 8):
        t += ".long " + ",".join("0x%x" % x for x in w[i:i+8]) + "\n"
    return t + f".size tables, {4*len(w)}\nall_end:\n"

def main(out):
    k = gen()
    t = HEADER + f"; @launch grid=(256,1,1) block=(512,1,1) lds={LDS}\n"
    t += '.amdgcn_target "amdgcn-amd-amdhsa--gfx950"\n.text\n' + k.text() + 'code_end:\n' + tables()
    t += '.section .rodata,"a"\n' + k.desc()
    open(out, "w").write(t)
if __name__ == "__main__":
    main(sys.argv[1] if len(sys.argv) > 1 else "adaLN_cond__spectral_fnet__moe_arch_mod__prompt.s")
```

```python
import math, sys, os
from asmgen import K, f32
from gen2 import (srd, P, padd, psub, pmul, pfma, pmul_s, pfma_s, psub_s, unpack_bf16, round_bf16, DPPM,
                  row_allreduce, wave_reduce_to63, pos16, stamp, stamp_init, stamp_out, chk_sent,
                  A_X, A_WR, A_WG, A_WU, A_WD, A_C, A_WM, A_OUT, A_DBG, A_WS, WS_SIZE)
from gen4 import E, SPIN, NAME

WS_Z    = 0x0200000
WS_STA  = 0x1000000
WS_STB  = 0x1008000
WS_REC  = 0x1012000
WS_FIN  = 0x1018000
FIN_T   = 4096
WS_HM   = 0x1080000
HM_B    = 0x20000
WS_MPA  = 0x1300000
WS_MPB  = 0x1380000
WS_PART = 0x1100000
WS_XA   = 0x1180000
WS_XB   = 0x11C0000
WS_KEY  = 0x1040000
WS_SLOT = 0x1200000
WS_SH   = 0x1060000
P_CS, P_SAS, P_GA, P_GAM, P_Q, P_QM, P_C1, P_C1M, P_SB, P_SBM, P_GB, P_GBM, P_END = (
    0, 2048, 4096, 8192, 12288, 16384, 20480, 24576, 28672, 32768, 36864, 40960, 45056)
L_C = 0; L_P = 16384; L_X = L_P + P_END; L_U = L_X + 32768; L_R = L_U + 32768; L_KEY = L_R + 32768
L_ST = L_KEY + 1024
LDS = 163840
XW = 64
assert L_KEY + 256 <= LDS
LOG2E = f32(-math.log2(math.e))
SL2 = E("SL2", 4)

class VM:
    def __init__(self, k): self.k = k; self.q = []
    def __call__(self, tag, text): self.k(text); self.q.append(tag)
    def wait(self, tag, extra=""):
        i = len(self.q) - 1 - self.q[::-1].index(tag)
        self.k(f"s_waitcnt vmcnt({len(self.q) - 1 - i}) {extra}")

def cmp_recs(k, base):
    k(f"v_cmp_ne_u64 vcc, s[32:33], v[{base}:{base+1}]")
def spin(k, lab, sl):
    k(f"""{f"s_sleep {sl}" if sl else ""}
    s_add_u32 s83, s83, 1
    s_cmp_lt_u32 s83, {SPIN}
    s_cbranch_scc1 {lab}""")
def poll_recs(k, lab, base, vaddr, soff, mask, sl=SL2):
    k(f"s_mov_b32 s83, 0\ns_mov_b64 exec, {mask}\n{lab}:")
    k(f"buffer_load_dwordx2 v[{base}:{base+1}], v{vaddr}, s[12:15], s{soff} offen sc1")
    k("s_waitcnt vmcnt(0)")
    cmp_recs(k, base)
    k(f"s_cbranch_vccz {lab}y")
    spin(k, lab, sl)
    k(f"{lab}y:\ns_mov_b64 exec, -1\n{lab}x:")
def go_wait(k, lab, soff, vz, vd):
    poll_recs(k, lab, vd, vz, soff, "1", sl=E("SLG", 3))
    if E("SLG2", 1): k(f"s_sleep {E('SLG2', 1)}")
def nonce_issue(k, sp, off):
    k(f"s_load_dwordx2 s[32:33], s[{sp}:{sp+1}], {off}")
def nonce_finish(k, lab, sp, off, vt):
    k(f"""s_waitcnt lgkmcnt(0)
    s_cmp_lg_u32 s32, 0
    s_cbranch_scc1 {lab}x
    s_load_dwordx2 s[32:33], s[{sp}:{sp+1}], {off}
    s_mov_b32 s83, 0
    v_mov_b32 v{vt+2}, 0
    s_waitcnt lgkmcnt(0)
    {lab}:
    s_cmp_lg_u32 s32, 0
    s_cbranch_scc1 {lab}x
    global_load_dwordx2 v[{vt}:{vt+1}], v{vt+2}, s[{sp}:{sp+1}] sc1
    s_waitcnt vmcnt(0)
    v_readfirstlane_b32 s32, v{vt}
    v_readfirstlane_b32 s33, v{vt+1}""")
    spin(k, lab, 0)
    k(f"{lab}x:")
def rb2(k, v, t):
    k(f"v_cvt_pk_bf16_f32 v{t}, v{v}, v{v+1}")
    unpack_bf16(k, v, t)
def row_of(k, d, q, w, t1):
    k(f"""s_lshr_b32 s{t1}, s{q}, 4
    s_and_b32 s{d}, s{q}, 15
    s_lshl_b32 s{d}, s{d}, 4
    s_add_u32 s{d}, s{d}, s{t1}
    s_lshr_b32 s{t1}, s{q}, 3
    s_cmp_eq_u32 s{t1}, 1
    s_cselect_b32 s{t1}, 8, 0
    s_add_u32 s{d}, s{d}, s{t1}
    s_lshl_b32 s{t1}, s{w}, 8
    s_add_u32 s{d}, s{d}, s{t1}
    s_cmp_ge_u32 s{w}, 4
    s_cselect_b32 s{t1}, 896, 0
    s_cmp_eq_u32 s{q}, 0
    s_cselect_b32 s{t1}, s{t1}, 0
    s_sub_u32 s{d}, s{d}, s{t1}""")
def mirror_row(k, d, t):
    k(f"""s_sub_u32 s{d}, 2048, s{t}
    s_cmp_eq_u32 s{t}, 0
    s_cselect_b32 s{d}, 1024, s{d}""")

def mtag(k, d, idx):
    k(f"""v_mov_b32 v{d}, s32
    v_mov_b32 v{d+1}, s33
    v_and_b32 v{d+2}, 7, v{idx}
    v_lshlrev_b32 v{d+2}, 3, v{d+2}
    v_lshrrev_b64 v[{d}:{d+1}], v{d+2}, v[{d}:{d+1}]""")
def mtag4(k, d):
    k(f"""v_mov_b32 v{d}, s32
    v_mov_b32 v{d+1}, s33
    v_and_b32 v{d+2}, 1, v0
    v_cmp_eq_u32 vcc, 1, v{d+2}
    v_cndmask_b32 v{d}, v{d}, v{d+1}, vcc
    v_bfe_u32 v{d+1}, v{d}, 8, 8
    v_bfe_u32 v{d+2}, v{d}, 16, 8
    v_lshrrev_b32 v{d+3}, 24, v{d}
    v_and_b32 v{d}, 0xff, v{d}""")
def htag(k, d):
    k(f"""s_and_b32 s{d}, s32, 0xffff
    s_lshr_b32 s{d+1}, s32, 16
    s_and_b32 s{d+2}, s33, 0xffff
    s_lshr_b32 s{d+3}, s33, 16""")
def btag(k, d):
    for i in range(8): k(f"s_bfe_u32 s{d+i}, s{32 + (i >> 2)}, {(8 << 16) | (8 * (i & 3))}")
def untag(k, regs, tg, acc, first=True):
    regs = list(regs)
    for i, r in enumerate(regs): k(f"v_xor_b32 v{r}, v{tg+(i&3)}, v{r}")
    for i in range(0, len(regs), 2):
        k(f"v_or3_b32 v{acc}, v{regs[i]}, v{regs[i+1]}, {'0' if first and i == 0 else f'v{acc}'}")
def tagchk(k, acc):
    k(f"v_and_b32 v{acc}, 0xff, v{acc}\nv_cmp_ne_u32 vcc, 0, v{acc}")

def stats(k, vm, pre, lastpre, extra=()):
    S = 108; R = 112
    k(f"s_mov_b32 s4, 0x3f803f80\ns_mov_b32 s5, {f32(1.0/1024)}")
    stamp(k, 33)
    for h in range(2):
        for jj in range(2):
            vm.wait(f"x{h}{jj}")
            if h == 1 and jj == 1: stamp(k, 34)
            if h == 0 and jj == 0: nonce_issue(k, 20, 0)
            if 2*h + jj < len(extra): extra[2*h + jj]()
            for q in range(4):
                r = XW + 8*jj + 4*h + q
                first = (h == 0 and q == 0)
                k(f"v_dot2_f32_bf16 v{S+jj}, v{r}, s4, {'0' if first else f'v{S+jj}'}")
                k(f"v_dot2_f32_bf16 v{S+2+jj}, v{r}, v{r}, {'0' if first else f'v{S+2+jj}'}")
    k("s_nop 1")
    def red1(js):
        for j in js: k(f"v_permlane32_swap_b32 v{S+j}, v{S+j+1}")
        for j in js: k(f"v_add_f32 v{S+j}, v{S+j}, v{S+j+1}")
        regs = [S + j for j in js]
        row_allreduce(k, regs)
        for r in regs: k(f"v_add_f32_dpp v{r}, v{r}, v{r} row_bcast:15 row_mask:0xa bank_mask:0xf")
    red1((0, 2))
    k.c("lanes 31 / 63 hold the two rows")
    V = S + 2
    k(f"""v_mul_f32 v{S}, s5, v{S}
    v_mul_f32 v{V}, s5, v{V}
    v_mul_f32 v{R+4}, v{S}, v{S}
    v_cvt_pk_bf16_f32 v{R+5}, -v{S}, -v{S}
    v_sub_f32 v{V}, v{V}, v{R+4}
    v_mul_f32 v{R+6}, {f32(512.0)}, v{V}
    v_cmp_gt_f32 vcc, v{R+4}, v{R+6}
    v_readlane_b32 s40, v{R+5}, 31
    s_or_b32 s41, vcc_lo, vcc_hi
    s_bitcmp1_b32 s41, 31
    s_cbranch_scc1 {pre}_slowvar
    {pre}_var:""")
    round_bf16(k, V, V)
    k(f"v_add_f32 v{V}, {f32(1e-5)}, v{V}")
    round_bf16(k, V, V)
    k(f"v_sqrt_f32 v{V}, v{V}")
    k(f"s_and_b32 s40, s40, 0xffff\nv_mov_b32 v{R+2}, 0xffff0000")
    round_bf16(k, V, V)
    k(f"""v_mul_f32 v{V}, {f32(16.0)}, v{V}
    v_and_or_b32 v{R+2}, v{R+5}, v{R+2}, s40
    v_rcp_f32 v{R+1}, v{V}""")
    nonce_finish(k, f"{pre}_nn", 20, 64, 120)
    k(f"""v_mov_b32 v{R+3}, s32
    v_mov_b32_dpp v{R}, v{R+1} row_bcast:31 row_mask:0xc bank_mask:0xf
    v_mov_b32 v{R+4}, 0""")
    if lastpre: vm.wait(lastpre)
    k("s_mov_b32 exec_lo, 0\ns_mov_b32 exec_hi, 0x80000000")
    k(f"buffer_store_dwordx4 v[{R}:{R+3}], v{R+4}, s[12:15], s62 offen")
    k(f"v_lshlrev_b32 v{R+5}, 4, v1\nv_add_u32 v{R+5}, {L_ST}, v{R+5}\nds_write_b128 v{R+5}, v[{R}:{R+3}]")
    k("s_mov_b64 exec, -1")
    def slow():
        k.c("---- rare: |mean| >> std, recompute the variance in two passes ----")
        k(f"{pre}_slowvar:")
        U2 = 120
        k(f"v_lshlrev_b32 v{R+6}, 16, v{R+5}")
        k(f"v_readlane_b32 s44, v{R+6}, 31\nv_readlane_b32 s46, v{R+6}, 63")
        for jj in range(2):
            sr = 44 + 2 * jj
            for i in range(8):
                unpack_bf16(k, U2, XW + jj * 8 + i)
                k(f"v_pk_add_f32 {P(U2)}, {P(U2)}, s[{sr}:{sr+1}] op_sel_hi:[1,0]")
                if i == 0: pmul(k, U2 + 2, U2, U2)
                else: pfma(k, U2 + 2, U2, U2, U2 + 2)
            k(f"v_add_f32 v{S+2+jj}, v{U2+2}, v{U2+3}")
        k(f"v_add_f32 v{R+6}, v{R+6}, v{S}")
        red1((2,))
        k(f"""v_mul_f32 v{S+2}, s5, v{S+2}
        v_fma_f32 v{S+2}, -v{R+6}, v{R+6}, v{S+2}
        v_max_f32 v{S+2}, 0, v{S+2}
        s_branch {pre}_var""")
    return slow

def stats_b(k):
    k(f"""v_add_u32 v84, {L_ST}, v3
    s_mov_b64 exec, 0xff
    ds_read_b128 v[80:83], v84
    s_waitcnt lgkmcnt(0)
    buffer_store_dwordx4 v[80:83], v3, s[12:15], s63 offen sc1
    s_mov_b64 exec, -1""")

def head(k):
    k(f"""s_load_dwordx2 s[8:9], s[0:1], {A_X}
    s_load_dwordx4 s[56:59], s[0:1], {A_C}
    s_load_dwordx4 s[24:27], s[0:1], {A_OUT}
    s_load_dwordx2 s[12:13], s[0:1], {A_WS}
    s_load_dwordx8 s[48:55], s[0:1], {A_WR}
    s_memrealtime s[32:33]
    v_lshrrev_b32 v1, 6, v0
    v_and_b32 v2, 63, v0
    v_readfirstlane_b32 s16, v1
    v_lshlrev_b32 v3, 4, v2
    s_and_b32 s34, s2, 7
    s_bfe_u32 s35, s2, 0x40003
    s_mov_b32 s11, 0x00020000
    s_lshl_b32 s60, s35, 4
    s_add_u32 s60, s60, s34
    s_lshl_b32 s60, s60, 11
    s_bitcmp0_b32 s2, 7
    s_cbranch_scc1 g_start""")
HQ = ["x00", "x01", "x10", "x11", "touch"]

def role_F(k):
    vm = VM(k); vm.q = list(HQ)
    N16, G4, VO, TR, UW, XD, XDM, SLA, SLM, V70, FA, BP, A3 = 4, 5, 6, 8, 12, 13, 14, 15, 16, 17, 18, 19, 22
    ZL, W, D1R, D1I, BRE, BIM, TC, TS, XA2, XB2, GA, GAM, Q, QM, CS = 24, 40, 56, 72, 88, 104, 120, 136, 152, 168, 184, 200, 216, 232, 248
    AB, S, XB, AH, D0, D, UO, A2, UB = 216, 24, 40, 224, 228, 56, 184, 236, 152
    ZP = E("ZP", -1); T = 248; TG = 244; FT = 8; PFD = 6; FLW = E("FLW", 4); XR = E("XR", 1)
    k(f"""s_lshl_b32 s61, s16, 19
    s_add_u32 s60, s60, s61
    s_add_u32 s61, s60, 16384
    s_lshl_b32 s10, 1, 22
    s_waitcnt lgkmcnt(0)""")
    stamp(k, 1)
    for h in range(2):
        for jj in range(2):
            k(f"buffer_load_dwordx4 v[{XW+8*jj+4*h}:{XW+8*jj+4*h+3}], v3, s[8:11], s{60+jj} offen offset:{h*1024}")
    k("s_branch f_start\n@@G@@\nf_start:")
    k(f"""s_lshl_b32 s62, s34, 11
    s_lshl_b32 s63, s35, 7
    s_add_u32 s62, s62, s63
    s_add_u32 s63, s62, {WS_STB}
    s_lshl_b32 s42, s16, 4
    s_add_u32 s62, s62, s42
    s_add_u32 s62, s62, {WS_STA}
    v_mov_b32 v116, 0
    s_getpc_b64 s[36:37]
    h_pc:
    s_mov_b32 s14, {WS_SIZE}
    s_mov_b32 s15, s11
    s_mov_b64 exec, 1
    buffer_load_dword v215, v116, s[12:15], s62 offen sc1
    s_mov_b64 exec, -1
    s_mov_b32 s20, s26
    s_mov_b32 s21, s27
    s_mov_b32 s26, 4194304
    s_mov_b32 s27, 0x00020000
    s_mov_b32 s22, s50
    s_mov_b32 s23, s51
    s_mov_b32 s28, s54
    s_mov_b32 s29, s55
    s_add_u32 s58, s36, tables-h_pc
    s_addc_u32 s59, s37, 0""")
    k.c("s36 = k0 slot of this wave in the second radix-16 step ; s37 = column-block pair read after the exchange")
    k(f"""s_lshr_b32 s36, s35, 1
    s_and_b32 s36, s36, 4
    s_xor_b32 s36, s36, s16
    s_and_b32 s37, s34, 4
    s_xor_b32 s37, s37, s16""")
    k(f"""s_lshl_b32 s3, s34, 4
    s_add_u32 s3, s3, s35
    v_and_b32 v{N16}, 15, v0
    v_bfe_u32 v{G4}, v0, 4, 2
    v_lshrrev_b32 v{T}, 3, v2
    v_lshlrev_b32 v{T}, 18, v{T}
    v_lshlrev_b32 v{T+1}, 1, v{G4}
    v_xor_b32 v{T+1}, v{T+1}, v0
    v_and_b32 v{T+1}, 7, v{T+1}
    v_lshl_add_u32 v{T+7}, v{T+1}, 4, v{T}
    v_lshlrev_b32 v{VO}, {17 if ZP >= 0 else 16}, v{G4}
    v_lshl_add_u32 v{VO}, v{N16}, 4, v{VO}
    s_lshl_b32 s60, s16, 15
    s_lshl_b32 s61, s34, 11
    s_add_u32 s60, s60, s61
    s_lshl_b32 s61, s35, 7
    s_add_u32 s60, s60, s61
    s_lshl_b32 s61, s16, 12
    s_add_u32 s61, s61, {L_X}
    s_lshl_b32 s64, s36, 19
    s_lshl_b32 s65, s35, 3
    s_and_b32 s66, s34, 1
    s_lshl_b32 s66, s66, 2
    s_add_u32 s65, s65, s66
    s_lshr_b32 s66, s34, 1
    s_add_u32 s65, s65, s66
    s_lshl_b32 s65, s65, 8
    s_add_u32 s64, s64, s65
""")
    if ZP >= 0:
        k(f"""s_and_b32 s64, s36, 3
        s_lshl_b32 s64, s64, 20
        s_and_b32 s66, s65, 0x6000
        s_add_u32 s65, s65, s66
        s_add_u32 s64, s64, s65
        s_lshr_b32 s65, s36, 1
        s_lshr_b32 s66, s36, 2
        s_xor_b32 s65, s65, s66
        s_xor_b32 s65, s65, {ZP}
        s_and_b32 s65, s65, 1
        s_lshl_b32 s65, s65, 13
        s_add_u32 s64, s64, s65""")
    QS_ = 65536 if ZP >= 0 else 32768
    k(f"""s_add_u32 s64, s64, {WS_Z}
    s_add_u32 s65, s64, {QS_}
    s_add_u32 s66, s64, {8*QS_}
    s_add_u32 s67, s64, {9*QS_}
""")
    def tile(i):
        k(f"s_mov_b32 m0, s61\ns_add_u32 s42, s60, {(i&1)*8*262144 + (i>>1)*16384}\ns_add_u32 s61, s61, 1024")
        vm("tile", f"buffer_load_dwordx4 v{T+7}, s[8:11], s42 offen lds")
    def tabs():
        k(f"""s_cmp_eq_u32 s36, 0
        s_cselect_b32 s42, 2048, 0
        v_add_u32 v{T}, s42, v3""")
        vm("tab", f"global_load_dwordx4 v[{A2}:{A2+3}], v{T}, s[58:59]")
        vm("tab", f"global_load_dwordx4 v[{A2+4}:{A2+7}], v{T}, s[58:59] offset:1024")
    def tabs2():
        k(f"s_lshl_b32 s42, s16, 11\ns_mov_b32 m0, s42\nv_add_u32 v{T}, s42, v3")
        vm("tab", f"global_load_lds_dwordx4 v{T}, s[58:59]")
        vm("tab", f"global_load_lds_dwordx4 v{T}, s[58:59] offset:1024")
    TL = E("TL", 2)
    k("s_barrier")
    tabs()
    if TL == 0:
        for i in range(4): tile(i)
    def rowaddr():
        row_of(k, 30, 3, 16, 42)
        mirror_row(k, 31, 30)
        k(f"""s_lshl_b32 s18, s30, 11
        s_lshl_b32 s19, s31, 11
        s_sub_u32 s75, s19, 2048
        s_lshl_b32 s68, s16, 12
        s_add_u32 s68, s68, {L_R}""")
    rowaddr()
    def vtab():
        k.c("tables of the 1024-point DFT: waves 0-3 one quarter of the 32-point matrix each, waves 4-7 of the twiddle factors")
        TB = 152
        k(f"""v_bfe_u32 v{T}, v0, 2, 1
        v_bfe_u32 v{T+1}, v0, 3, 2
        v_lshlrev_b32 v{T+1}, 2, v{T+1}
        v_lshl_add_u32 v{T}, v{T}, 4, v{T+1}
        v_and_or_b32 v{T}, v0, 3, v{T}
        v_bfe_u32 v{T+1}, v0, 5, 3
        v_cvt_f32_u32 v{T}, v{T}
        v_cvt_f32_u32 v{T+1}, v{T+1}
        s_cmp_lt_u32 s16, 4
        s_mov_b32 s42, {f32(1.0/32)}
        s_cselect_b32 s42, s42, {f32(1.0/1024)}
        v_mul_f32 v{T}, s42, v{T}
        v_mul_f32 v{T+1}, 4.0, v{T+1}
        v_mul_f32 v{TB}, v{T}, v{T+1}""")
        for i in range(1, 4): k(f"v_add_f32 v{TB+i}, v{TB+i-1}, v{T}")
        for i in range(4): k(f"v_sin_f32 v{TB+4+i}, v{TB+i}")
        for i in range(4): k(f"v_cos_f32 v{TB+i}, v{TB+i}")
        k("s_cbranch_scc0 f_tw")
        for i in range(4):
            k(f"v_cvt_pk_f16_f32 v{TB+8}, v{TB+i}, v{TB+4+i}")
            k(f"v_cvt_pk_f16_f32 v{TB+4+i}, -v{TB+4+i}, v{TB+i}")
            k(f"v_mov_b32 v{TB+i}, v{TB+8}")
        k(f"""f_tw:
        s_and_b32 s42, s16, 4
        s_add_u32 s42, s42, s16
        s_lshl_b32 s42, s42, 10
        v_add_u32 v{T}, s42, v3
        ds_write_b128 v{T}, v[{TB}:{TB+3}] offset:{L_C}
        ds_write_b128 v{T}, v[{TB+4}:{TB+7}] offset:{L_C+4096}""")
    VT = E("VT", 0)
    if VT == 0: vtab()
    k.c("first-step matrix: lane m = 2*k0+p, rows j1 = 4g+i, angle k0*(16*j1+j0)/256")
    k(f"""v_lshrrev_b32 v{T}, 1, v{N16}
    v_and_b32 v{T+1}, 1, v0
    v_cmp_eq_u32 vcc, 1, v{N16}
    v_cndmask_b32_e64 v{T+2}, v{T}, 0, vcc
    v_cndmask_b32_e64 v{T}, v{T}, 8, vcc
    v_cndmask_b32_e64 v{T+1}, v{T+1}, 0, vcc
    v_mad_u32_u24 v{T+3}, v{T}, v{G4}, v{T+1}
    v_lshlrev_b32 v{T+3}, 5, v{T+3}
    v_mad_u32_u24 v{T+3}, v{T+2}, v1, v{T+3}
    v_cvt_f32_u32 v{T}, v{T}
    v_cvt_f32_u32 v{T+2}, v{T+2}
    v_cvt_f32_u32 v{T+3}, v{T+3}
    v_mul_f32 v{T}, {f32(1.0/16)}, v{T}
    v_mul_f32 v{T+2}, {f32(1.0/256)}, v{T+2}
    v_mul_f32 v{AB}, {f32(1.0/128)}, v{T+3}""")
    for i in range(1, 4): k(f"v_add_f32 v{AB+i}, v{AB+i-1}, v{T}")
    for i in range(4): k(f"v_add_f32 v{AB+4+i}, v{AB+i}, v{T+2}")
    for i in range(8): k(f"v_cos_f32 v{AB+i}, v{AB+i}")
    UWA, URA = 212, 213
    k(f"""v_lshrrev_b32 v{T}, 2, v2
    v_lshlrev_b32 v{TR}, 7, v{T}
    v_bfe_u32 v{T}, v0, 3, 2
    v_lshl_add_u32 v{TR}, v{T}, 5, v{TR}
    v_and_b32 v{T}, 3, v0
    v_lshl_add_u32 v{TR}, v{T}, 3, v{TR}
    v_lshl_add_u32 v{TR}, v1, 12, v{TR}
    v_xor_b32 v{TR+1}, 32, v{TR}
    v_xor_b32 v{TR+2}, 64, v{TR}
    v_xor_b32 v{TR+3}, 96, v{TR}
    v_lshlrev_b32 v{UW}, 13, v{G4}
    v_lshl_add_u32 v{UW}, v{N16}, 4, v{UW}
    v_lshlrev_b32 v7, 5, v{G4}
    v_and_b32 v{T}, 1, v0
    v_lshl_add_u32 v7, v{T}, 10, v7
    v_and_b32 v{T}, 2, v0
    v_lshl_add_u32 v7, v{T}, 3, v7
    s_lshl_b32 s70, s34, 11
    s_lshl_b32 s71, s16, 7
    s_add_u32 s71, s71, s70
    s_add_u32 s71, s71, {WS_STA}
    s_lshl_b32 s42, s16, 7
    s_add_u32 s42, s42, {L_U}
    v_lshlrev_b32 v{URA}, 3, v{N16}
    v_lshl_add_u32 v{UWA}, v{G4}, 13, v{URA}
    v_add_u32 v{UWA}, s42, v{UWA}
    s_lshl_b32 s42, s36, 12
    s_add_u32 s42, s42, {L_U}
    v_lshl_add_u32 v{URA}, v{G4}, 8, v{URA}
    v_and_b32 v{URA+1}, 16, v0
    v_lshl_add_u32 v{URA}, v{URA+1}, 3, v{URA}
    v_add_u32 v{URA}, s42, v{URA}
    v_xor_b32 v{URA+1}, 128, v{URA}""")
    if E("PS", 0): k("s_setprio 2")
    slow1 = stats(k, vm, "f", None, [(lambda i=i: tile(i)) for i in range(4)] if TL == 1 else ())
    stamp(k, 35)
    vm.q.append("sta")
    if TL == 3: k("s_barrier")
    if TL >= 2:
        for i in range(4): tile(i)
    if E("PS", 0): k("s_setprio 0")
    k.c("the first row is this wave's output row: keep it")
    k(f"v_add_u32 v{T}, s68, v3")
    k("s_cmp_lt_u32 s3, 16\ns_cbranch_scc1 f_r0\nf_ra:")
    for h in range(2): k(f"ds_write_b128 v{T}, v[{XW+4*h}:{XW+4*h+3}] offset:{h*1024}")
    k("f_nr:")
    if VT == 1: vtab()
    k.c("tag bits: 8 bits of the nonce per 16-byte piece, all 64 bits over eight neighbouring lanes")
    k(f"""v_mov_b32 v{TG}, s32
    v_mov_b32 v{TG+1}, s33
    v_and_b32 v{T}, 4, v0
    v_cmp_eq_u32 vcc, 4, v{T}
    v_and_b32 v{T}, 3, v0
    v_lshlrev_b32 v{T}, 2, v{T}
    v_cndmask_b32 v{TG}, v{TG}, v{TG+1}, vcc
    v_lshrrev_b32 v{TG}, v{T}, v{TG}
    s_mov_b32 s54, 0x00010001
    s_mov_b32 s55, 0xfffefffe
    s_mov_b32 s46, 0x05040100
    s_mov_b32 s47, 0x07060302""")
    for i in range(1, 4): k(f"v_lshrrev_b32 v{TG+i}, {i}, v{TG}")
    for i in range(4): k(f"v_and_b32 v{TG+i}, s54, v{TG+i}")
    k.c("---- LN1 statistics of this wave's 32 rows (same-die copy first, now and then the write-through copy) ----")
    stl = lambda so: f"""s_mov_b32 exec_lo, 0x000f000f
    s_mov_b32 exec_hi, 0x000f000f
    buffer_load_dwordx4 v[{S}:{S+3}], v7, s[12:15], s{so} offen sc1"""
    k(f"s_waitcnt vmcnt({E('STW', 2)})")
    k(stl(71) + "\ns_mov_b64 exec, -1\ns_mov_b32 s83, 0\ns_waitcnt vmcnt(1)")
    stamp(k, 2)
    for jj in range(2):
        for nt in range(4):
            b = XB + (jj*4 + nt)*2
            k(f"ds_read_b64_tr_b16 v[{b}:{b+1}], v{TR+nt} offset:{L_X + jj*2048}")
    k(f"""s_mov_b32 exec_lo, 0x000f000f
    s_mov_b32 exec_hi, 0x000f000f
    s_branch f_st
    f_str:
    s_add_u32 s83, s83, 1
    s_and_b32 s42, s83, 31
    s_cbranch_scc0 f_sb1
    {stl(71)}
    f_st:
    s_waitcnt vmcnt(0)
    v_cmp_ne_u32 vcc, s32, v{S+3}
    s_mov_b64 exec, -1
    s_cbranch_vccnz f_str
    f_stx:
    s_setprio 3""")
    def st_retry():
        k(f"f_sb1:\ns_cmp_ge_u32 s83, {SPIN}\ns_cbranch_scc1 f_stx")
        stats_b(k)
        k(f"s_add_u32 s42, s71, {WS_STB - WS_STA}\n{stl(42)}\ns_branch f_st")
    vm.q = []
    stamp(k, 3)
    BM = S + 4; MM = S + 8
    for i in range(4): k(f"v_mov_b32_dpp v{MM+i}, v{S+2} row_newbcast:{i} {DPPM}")
    for jj in range(2):
        for i in range(4):
            k(f"v_mul_f32_dpp v{AB+4*jj+i}, v{S+jj}, v{AB+4*jj+i} row_newbcast:{i} {DPPM}")
        for hh in range(2): k(f"v_perm_b32 v{BM+2*jj+hh}, v{MM+2*hh+1}, v{MM+2*hh}, s{46+jj}")
        for hh in range(2): k(f"v_cvt_pk_bf16_f32 v{AH+2*jj+hh}, v{AB+4*jj+2*hh}, v{AB+4*jj+2*hh+1}")
        k(f"v_mfma_f32_16x16x16_bf16 v[{D0+4*jj}:{D0+4*jj+3}], v[{AH+2*jj}:{AH+2*jj+1}], v[{BM+2*jj}:{BM+2*jj+1}], 0")
    k("s_waitcnt lgkmcnt(0)")
    def s1m(nt):
        for jj in range(2):
            d = D + (nt*2 + jj)*4; b = XB + (jj*4 + nt)*2
            k(f"v_mfma_f32_16x16x16_bf16 v[{d}:{d+3}], v[{AH+2*jj}:{AH+2*jj+1}], v[{b}:{b+1}], v[{D0+4*jj}:{D0+4*jj+3}]")
    def s1c(nt):
        for ii in range(2):
            for jj in range(2):
                d = D + (nt*2 + jj)*4
                k(f"v_cvt_pk_f16_f32 v{UO+(nt*2+ii)*2+jj}, v{d+2*ii}, v{d+2*ii+1}")
            u = UO + (nt*2 + ii)*2
            k(f"ds_write_b64 v{UWA}, v[{u}:{u+1}] offset:{ii*4096 + nt*1024}")
    def early():
        k("s_mov_b32 m0, s68")
        if EP == 3: return
        for u in range(2): k(f"buffer_load_dwordx4 v3, s[8:11], s75 offen offset:{2048+u*1024} lds")
    EP = 0
    s1m(0); s1m(1)
    if EP in (0, 3): early()
    s1m(2); s1c(0); s1m(3); s1c(1); s1c(2); s1c(3)
    k("s_waitcnt lgkmcnt(0)\ns_barrier")
    for nt in range(4):
        for h in range(2): k(f"ds_read_b64 v[{UB+4*nt+2*h}:{UB+4*nt+2*h+1}], v{URA+h} offset:{nt*1024}")
    if EP == 1: early()
    for mt in range(2):
        for nt in range(4):
            if mt == 0: k(f"s_waitcnt lgkmcnt({6-2*nt})")
            d = D + (mt*4 + nt)*4
            k(f"v_mfma_f32_16x16x32_f16 v[{d}:{d+3}], v[{A2+4*mt}:{A2+4*mt+3}], v[{UB+4*nt}:{UB+4*nt+3}], 0")
    for mt in range(2):
        for ii in range(2):
            o = UO + (mt*2 + ii)*4
            for nt in range(4):
                d = D + (mt*4 + nt)*4
                k(f"v_cvt_pk_f16_f32 v{o+nt}, v{d+2*ii}, v{d+2*ii+1}")
            for nt in range(4): k(f"v_and_or_b32 v{o+nt}, v{o+nt}, s55, v{TG+nt}")
            vm("z", f"buffer_store_dwordx4 v[{o}:{o+3}], v{VO}, s[12:15], s{64+mt*2+ii} offen sc1")
            if E("PZ", 0) and mt*2 + ii < 3: k(f"s_setprio {2 - mt*2 - ii}")
    stamp(k, 4)
    XRA, XRB = 200, 208
    k("s_setprio 0")
    k.c("radix-8 matrix: lane m = 2*kk+p, inputs r = 2g, 2g+1, angle r*t/2048")
    k("s_mov_b32 s43, 0")
    row_of(k, 40, 3, 43, 42)
    k(f"""v_lshrrev_b32 v{T}, 1, v{N16}
    v_and_b32 v{T+1}, 1, v0
    v_lshlrev_b32 v{T+2}, 8, v{T}
    v_add_u32 v{T+2}, s40, v{T+2}
    s_cmp_lg_u32 s3, 0
    s_cbranch_scc1 f_a3n
    v_cmp_lt_u32 s[44:45], 3, v{T}
    v_subrev_u32 v{T+3}, 896, v{T+2}
    v_cndmask_b32 v{T+2}, v{T+2}, v{T+3}, s[44:45]
    v_cmp_eq_u32 vcc, 1, v{N16}
    v_mov_b32 v{T+3}, 1024
    v_cndmask_b32 v{T+2}, v{T+2}, v{T+3}, vcc
    v_cndmask_b32_e64 v{T+1}, v{T+1}, 0, vcc
    f_a3n:
    v_lshlrev_b32 v{T+3}, 1, v{G4}
    v_mul_u32_u24 v{T+3}, v{T+3}, v{T+2}
    v_lshl_add_u32 v{T+3}, v{T+1}, 9, v{T+3}
    v_add_u32 v{T+5}, v{T+3}, v{T+2}
    v_add_u32 v{T+4}, 1536, v{T+3}
    v_add_u32 v{T+6}, 1536, v{T+5}""")
    for i in range(3, 7): k(f"v_and_b32 v{T+i}, 2047, v{T+i}")
    for i in range(3, 7): k(f"v_cvt_f32_u32 v{T+i}, v{T+i}")
    for i in range(3, 7): k(f"v_mul_f32 v{T+i}, {f32(1.0/2048)}, v{T+i}")
    for i in range(3, 7): k(f"v_cos_f32 v{T+i}, v{T+i}")
    k(f"""s_cbranch_scc1 f_a3m
    v_cmp_gt_u32 vcc, 2, v{N16}
    v_cndmask_b32_e64 v{T+1}, 1.0, 0.5, vcc
    v_mul_f32 v{T+3}, v{T+3}, v{T+1}
    v_mul_f32 v{T+5}, v{T+5}, v{T+1}
    v_cndmask_b32 v{T+4}, 0, v{T+3}, s[44:45]
    v_cndmask_b32 v{T+6}, 0, v{T+5}, s[44:45]
    v_cndmask_b32 v{T+3}, v{T+3}, 0, s[44:45]
    v_cndmask_b32 v{T+5}, v{T+5}, 0, s[44:45]
    f_a3m:
    v_cvt_pk_f16_f32 v{A3}, v{T+3}, v{T+4}
    v_cvt_pk_f16_f32 v{A3+1}, v{T+5}, v{T+6}""")
    k(f"""v_and_b32 v{T}, 3, v0
    v_bfe_u32 v{T+1}, v0, 2, 1
    v_bfe_u32 v{T+2}, v0, 3, 2
    v_bfe_u32 v{T+3}, v0, 5, 1
    v_lshlrev_b32 v{XD}, 10, v{T+1}
    v_lshlrev_b32 v{SLA}, 11, v{T+1}
    v_lshl_add_u32 v{SLA}, v{T+3}, 8, v{SLA}
    v_lshl_add_u32 v{SLA}, v{T+2}, 6, v{SLA}
    v_lshl_add_u32 v{SLA}, v{T}, 4, v{SLA}
    v_lshl_add_u32 v{XD}, v{T+2}, 8, v{XD}
    v_lshl_add_u32 v{XD}, v{T}, 6, v{XD}
    v_lshl_add_u32 v{XD}, v{T+3}, 5, v{XD}
    v_xor_b32 v{XDM}, 2016, v{XD}
    v_add_u32 v{XD}, s68, v{XD}
    v_add_u32 v{XDM}, s68, v{XDM}""")
    def xr_read():
        for n in range(1 if EP == 3 else 2):
            for u in range(2):
                k(f"ds_read_b128 v[{XRA+8*n+4*u}:{XRA+8*n+4*u+3}], v{(XD, XDM)[n]} offset:{n*2048+u*16}")
    def xr_unpack():
        for i in range(8): unpack_bf16(k, XA2 + 2*i, XRA + i)
        if EP != 3: xb_unpack(XRB)
    def xb_unpack(XRB):
        for p in range(16):
            src = XRB + (p >> 1); dst = XB2 + ((16 - p) & 15)
            k(f"v_and_b32 v{dst}, 0xffff0000, v{src}" if p & 1 else f"v_lshlrev_b32 v{dst}, 16, v{src}")
    if EP == 2: early()
    else:
        k("s_waitcnt vmcnt(4)")
        xr_read()
    def setup_late():
        k(f"""v_xor_b32 v{SLM}, {2048+256+192+48}, v{SLA}
        v_subrev_u32 v{T}, s68, v{XD}
        v_add_u32 v{T}, 32, v{T}
        v_bfe_u32 v{BP}, v{T}, 5, 1
        v_lshlrev_b32 v{BP}, 5, v{BP}
        v_bfe_u32 v{T+1}, v{T}, 8, 2
        v_lshl_add_u32 v{BP}, v{T+1}, 3, v{BP}
        v_bfe_u32 v{T+1}, v{T}, 10, 1
        v_lshl_add_u32 v{BP}, v{T+1}, 2, v{BP}
        v_bfe_u32 v{T+1}, v{T}, 6, 2
        v_add_lshl_u32 v{BP}, v{T+1}, v{BP}, 2
        s_lshl_b32 s74, s34, 14
        s_add_u32 s74, s74, {WS_KEY}
        s_lshl_b32 s42, s37, 9
        s_add_u32 s42, s42, {L_X}
        v_add_u32 v{UW}, s42, v{UW}""")
        k.c("w_down tile [64 x 512] of cluster s17 (none: empty descriptor)")
        k.c("from here on s35 = 15 - mm: workgroup 0, which has the extra work of rows 0 / 1024, gets no tile")
        k(f"""s_xor_b32 s35, s35, 15
        s_mul_i32 s17, s34, 7
        s_lshr_b32 s42, s35, 1
        s_add_u32 s17, s17, s42
        s_lshl_b32 s42, s17, 6
        s_lshr_b32 s43, s16, 2
        s_lshl_b32 s43, s43, 5
        s_add_u32 s42, s42, s43
        s_and_b32 s43, s16, 1
        s_lshl_b32 s43, s43, 4
        s_add_u32 s42, s42, s43
        s_and_b32 s43, s16, 2
        s_lshl_b32 s43, s43, 1
        s_add_u32 s42, s42, s43
        s_lshl_b32 s38, s42, 11
        s_and_b32 s43, s35, 1
        s_lshl_b32 s43, s43, 10
        s_add_u32 s38, s38, s43
        s_lshl_b32 s39, s16, 13
        s_add_u32 s39, s39, {L_U}
        s_mov_b32 s48, s28
        s_mov_b32 s49, s29
        s_mov_b32 s50, {1024*3584*2}
        s_mov_b32 s51, 0x00020000""")
    def side():
        k(f"""s_lshl_b32 s80, s3, 7
        s_add_u32 s80, s80, {WS_KEY}
        v_lshrrev_b32 v{FA}, 3, v2
        v_lshlrev_b32 v{FA}, 14, v{FA}
        v_and_b32 v{T}, 0x70, v3
        v_add_u32 v{FA}, v{FA}, v{T}
        s_cmp_lg_u32 s16, 0
        s_cbranch_scc1 f_sb2""")
        stats_b(k)
        if E("KWARM", 1):
            k.c("the key lines are written once so that an early reader does not go to HBM")
            k(f"""v_not_b32 v{T+2}, s32
            buffer_store_dwordx4 v[{T}:{T+3}], v{FA}, s[12:15], s80 offen sc1""")
        k("f_sb2:")
    k(f"""s_lshl_b32 s72, s3, 15
    s_lshl_b32 s73, s37, 12
    s_add_u32 s72, s72, s73
""")
    if ZP >= 0:
        k(f"""s_and_b32 s72, s3, 63
        s_lshl_b32 s72, s72, 16
        s_add_u32 s72, s72, s73
        s_and_b32 s73, s73, 0x6000
        s_add_u32 s72, s72, s73
        s_lshr_b32 s73, s34, 1
        s_lshr_b32 s42, s34, 2
        s_xor_b32 s73, s73, s42
        s_xor_b32 s73, s73, {ZP}
        s_and_b32 s73, s73, 1
        s_lshl_b32 s73, s73, 13
        s_add_u32 s72, s72, s73""")
    k(f"""s_add_u32 s72, s72, {WS_Z}
""")
    k("s_waitcnt lgkmcnt(0)")
    for a_, base in enumerate((BRE, BIM, TC, TS)):
        for q in range(4):
            k(f"ds_read_b128 v[{base+4*q}:{base+4*q+3}], v3 offset:{L_C+a_*4096+q*1024}")
    if EP != 2: xr_unpack()
    else: setup_late()
    k(f"s_waitcnt vmcnt({E('ZW', 0) + (2 if EP == 2 else 0)}) lgkmcnt(0)")
    stamp(k, 5)
    if E("ZBAR", 1): k("s_barrier")
    if E("ZDEL", 0): k(f"s_sleep {E('ZDEL', 0)}")
    for i in range(4):
        k(f"buffer_load_dwordx4 v[{ZL+4*i}:{ZL+4*i+3}], v3, s[12:15], s72 offen offset:{i*1024} sc1")
    if not E("ZBAR", 1): k("s_barrier")
    if EP != 2: side()
    if EP != 2: setup_late()
    else:
        k("s_waitcnt vmcnt(4)")
        xr_read()
        k("s_waitcnt lgkmcnt(0)")
        xr_unpack()
        side()
    DN = [int(x) for x in os.environ.get("DN", "3,0,5").split(",")]
    assert XR != 2
    def down(site, t):
        d0 = sum(DN[:site])
        if DN[site] == 0 or E("NOW", 0) or E("NOD", 0): return
        k(f"s_cmp_ge_u32 s35, 14\ns_cbranch_scc1 f_nd{site}")
        for d in range(d0, d0 + DN[site]):
            rows = 8 * (d >> 2) + (d & 3)
            k(f"s_add_u32 s43, s39, {d*1024}\ns_mov_b32 m0, s43\ns_add_u32 s42, s38, {rows*2048}")
            if d: k(f"v_xor_b32 v{t}, {d*32}, v3")
            k(f"buffer_load_dwordx4 v{t if d else 3}, s[48:51], s42 offen nt lds")
        k(f"f_nd{site}:")
    if EP != 3: btag(k, 4)
    else:
        k(f"""s_lshl_b32 s42, s16, 11
        s_add_u32 s42, s42, {L_P + P_SB}
        s_mov_b32 m0, s42
        s_sub_u32 s42, s68, s42
        v_subrev_u32 v21, s42, v{XDM}""")
    E3 = 2 if EP == 3 else 0
    def mrow():
        if EP == 3:
            for u in range(2): k(f"buffer_load_dwordx4 v3, s[8:11], s19 offen offset:{u*1024} lds")
    k.c("wave a = w&3 handles columns 4a..4a+3 of every lane's block: natural, mirrored (two) and f16 positions")
    PN, PM0, PM1, PH, FV = 4, 5, 6, 235, 236
    k(f"""v_lshlrev_b32 v{V70}, 7, v{N16}
    s_and_b32 s40, s16, 3
    s_lshl_b32 s76, s40, 10
    v_subrev_u32 v{T}, s68, v{XD}
    v_lshrrev_b32 v{T}, 1, v{T}
    s_lshl_b32 s42, s40, 2
    v_add_u32 v{T}, s42, v{T}""")
    pos16(k, PH, T, T + 1)
    mtag4(k, FT)
    k(f"""s_add_u32 s76, s76, {WS_FIN}
    s_mov_b32 s77, {WS_REC}
""")
    WARM = os.environ.get("WARM", "").split(",")
    if WARM != [""]:
        k.c("workgroup 0: visit the out-of-line blocks now so that their first lines are in the instruction cache")
        k("s_cmp_lg_u32 s30, 256\ns_cbranch_scc1 f_wx")
    for l in WARM:
        if l: k(f"s_branch {l}_w\n{l}_b:")
    k("f_wx:")
    k.c("finished modulation vectors: waves 0-3 take the records, (sa,) q, 1+ca and ga")
    FL = GA
    k(f"""s_add_u32 s65, s76, 4096
    s_lshl_b32 s42, s16, 11
    v_add_u32 v4, s42, v3
    s_add_u32 s64, s42, {WS_FIN + FIN_T + P_GA}
    s_lshl_b32 s42, s16, 12
    s_add_u32 s42, s42, {L_X}
    v_add_u32 v7, s42, v3
    v_mov_b32 v20, {L_KEY + 64}
    s_cmp_eq_u32 s3, 0
    s_cselect_b64 s[52:53], -1, 1""")
    def fin1():
        k(f"""s_mov_b64 exec, 0xf0ff
        buffer_load_dwordx4 v[{FV}:{FV+3}], v{V70}, s[12:15], s77 offen sc1
        s_mov_b64 exec, s[52:53]
        buffer_load_dwordx4 v[{FL+12}:{FL+15}], v3, s[12:15], s76 offen sc1
        s_mov_b64 exec, -1""")
        k(f"buffer_load_dwordx4 v[{FL+8}:{FL+11}], v3, s[12:15], s65 offen sc1")
        finb()
    def finb():
        for i in range(2): k(f"buffer_load_dwordx4 v[{FL+4*i}:{FL+4*i+3}], v3, s[12:15], s64 offen offset:{i*1024} sc1")

    for i in range(4): k(f"v_mov_b32 v{FL+12+i}, v{FT+i}")
    def tab16(v, off):
        k(f"""v_cvt_pk_f16_f32 v{v}, v{v}, v{v+1}
        v_cvt_pk_f16_f32 v{v+2}, v{v+2}, v{v+3}
        ds_write_b16 v{PH}, v{v} offset:{L_P+off}
        ds_write_b16_d16_hi v{PH}, v{v} offset:{L_P+off+16}
        ds_write_b16 v{PH}, v{v+2} offset:{L_P+off+32}
        ds_write_b16_d16_hi v{PH}, v{v+2} offset:{L_P+off+48}""")
    def pread(off, base):
        return [f"ds_read_b128 v[{base+4*q}:{base+4*q+3}], v3 offset:{L_P+off+q*1024}" for q in range(4)]
    ZC = W; ZT = T
    def zx(cbi):
        for nt in range(4):
            for p in range(2):
                k(f"v_xor_b32 v{ZC+8*cbi+2*nt+p}, v{ZL+8*cbi+4*p+nt}, v{TG+nt}")
    def r8(cbi):
        for nt in (0, 2, 1, 3):
            b = ZC + 8*cbi + 2*nt; d = D1R + (cbi*4 + nt)*4
            k(f"v_mfma_f32_16x16x16_f16 v[{d}:{d+3}], v[{A3}:{A3+1}], v[{b}:{b+1}], 0")
            k(f"v_or3_b32 v{ZT}, v{b}, v{b+1}, {'0' if cbi + nt == 0 else f'v{ZT}'}")
    k(f"""s_mov_b32 s83, 0
    s_cmp_ge_u32 s16, 4
    s_cbranch_scc1 f_z1
    s_waitcnt vmcnt({E('F1W', 6)})""")
    stamp(k, 31)
    fin1()
    k.c("---- radix-8 over r ----")
    k("s_waitcnt vmcnt(7)")
    mrow()
    zx(0); r8(0)
    k(f"s_waitcnt vmcnt(5)\ns_branch f_z2\nf_z1:\ns_waitcnt vmcnt({E('F2W', 4)})")
    finb()
    k("s_waitcnt vmcnt(4)\nf_zc:")
    zx(0); r8(0)
    k("s_waitcnt vmcnt(2)\nf_z2:")
    stamp(k, 6)
    zx(1); r8(1)
    k(f"""v_and_b32 v{ZT}, s54, v{ZT}
    v_cmp_ne_u32 vcc, 0, v{ZT}
    s_cbranch_vccnz f_zr
    f_zx:""")
    stamp(k, 7)
    for bh in range(2):
        for ii in range(2):
            o = ZL + (bh*2 + ii)*4
            for cbi in range(2):
                for al in range(2):
                    d = D1R + (cbi*4 + 2*al + bh)*4
                    k(f"v_cvt_pk_f16_f32 v{o+2*cbi+al}, v{d+2*ii}, v{d+2*ii+1}")
            k(f"ds_write_b128 v{UW}, v[{o}:{o+3}] offset:{ii*4096 + bh*256}")
    wr = lambda u: k(f"ds_write_b128 v4, v[{FL+4*u}:{FL+4*u+3}] offset:{L_P+P_GA+u*1024}")
    k("s_mov_b32 s83, 0\ns_cmp_lt_u32 s16, 4\ns_cbranch_scc1 f_pv\nf_qv:")
    for u in range(2):
        k(f"s_waitcnt vmcnt({1-u})")
        untag(k, range(FL + 4*u, FL + 4*u + 4), FT, T, u == 0)
        wr(u)
    tagchk(k, T)
    k("s_cbranch_vccnz f_qr\ns_branch f_pvx\nf_pv:\ns_waitcnt vmcnt(3)")
    stamp(k, 30)
    k(f"""v_add_f32_dpp v{FV+3}, v{FV+2}, v{FV+2} quad_perm:[1,0,3,2] {DPPM}
    v_max_f32_dpp v{FV+2}, v{FV+2}, v{FV+2} quad_perm:[1,0,3,2] {DPPM}
    v_cmp_ne_u64 s[44:45], s[32:33], v[{FV}:{FV+1}]
    v_add_f32_dpp v{FV+3}, v{FV+3}, v{FV+3} quad_perm:[2,3,0,1] {DPPM}
    v_max_f32_dpp v{FV+2}, v{FV+2}, v{FV+2} quad_perm:[2,3,0,1] {DPPM}""")
    untag(k, range(FL + 12, FL + 16), FT, T)
    k(f"""v_max_f32_dpp v{FV+2}, v{FV+2}, v{FV+2} row_half_mirror {DPPM}
    s_mov_b64 exec, 0x1000
    ds_write_b32 v20, v{FV+3}
    s_mov_b64 exec, -1
    v_frexp_exp_i32_f32 v{FV+2}, v{FV+2}
    s_waitcnt vmcnt(2)""")
    untag(k, range(FL + 8, FL + 12), FT, T, False)
    k(f"""v_readfirstlane_b32 s42, v{FV+2}
    s_sub_u32 s43, -1, s42
    s_add_u32 s45, s42, 5
    s_and_b32 s44, s44, 0xf0ff""")
    for n in range(4): k(f"v_ldexp_f32 v{FL+8+n}, v{FL+8+n}, s43")
    tab16(FL + 8, P_CS)
    for u in range(2):
        k(f"s_waitcnt vmcnt({1-u})")
        untag(k, range(FL + 4*u, FL + 4*u + 4), FT, T, False)
        for n in range(4): k(f"v_ldexp_f32 v{FL+4*u+n}, v{FL+4*u+n}, s45")
        wr(u)
    k(f"""v_and_b32 v{T}, 0xff, v{T}
    v_cmp_ne_u32 vcc, 0, v{T}
    s_or_b32 vcc_lo, vcc_lo, s44
    s_cbranch_vccnz f_pr
    f_pw:
    s_cmp_eq_u32 s3, 0
    s_cbranch_scc1 f_ps
    f_pvx:""")
    def sas():
        k("f_ps:\ns_sub_u32 s45, 5, s42")
        for n in range(4): k(f"v_ldexp_f32 v{FL+12+n}, v{FL+12+n}, s45")
        k(f"""v_and_b32 v{T}, 0x3f0, v{PH}
        v_bfe_u32 v{T+1}, v{PH}, 10, 1
        v_lshl_add_u32 v{T}, v{T+1}, 11, v{T}
        v_bfe_u32 v{T+1}, v{PH}, 3, 1
        v_lshl_add_u32 v{T}, v{T+1}, 10, v{T}
        v_and_b32 v{T+1}, 6, v{PH}
        v_lshl_add_u32 v{T}, v{T+1}, 1, v{T}""")
        for n in range(4):
            k(f"v_cvt_f16_f32 v{FL+12+n}, v{FL+12+n}\nds_write_b32 v{T}, v{FL+12+n} offset:{L_C + 16*n}")
        k("s_branch f_pvx")
    PR = E("PR", 3)
    if PR: k("s_setprio 2")
    if EP == 3: k("v_mov_b32 v23, v21")
    k("s_waitcnt lgkmcnt(0)")
    stamp(k, 8)
    k("s_barrier")
    k.c("================= 1024-point DFT, LN2, router score =================")
    for j in range(2):
        k(f"ds_read_b128 v[{CS+4*j}:{CS+4*j+3}], v3 offset:{L_P+P_CS+j*1024}")
        k(f"ds_read_b128 v[{ZL+8*j}:{ZL+8*j+3}], v7 offset:{2*j*1024}")
        k(f"ds_read_b128 v[{ZL+8*j+4}:{ZL+8*j+7}], v7 offset:{(2*j+1)*1024}")
    def modul(j):
        for i in range(4*j, 4*j + 4):
            b = i & 1
            k(f"v_pk_mul_f16 v{W+i}, v{ZL+i}, v{CS+(i>>1)} op_sel:[0,{b}] op_sel_hi:[1,{b}]")
    def st1(j, part):
        Dd, B = (D1R, BRE) if part == 0 else (D1I, BIM)
        cc = "0" if j == 0 else f"v[{Dd}:{Dd+15}]"
        k(f"v_mfma_f32_32x32x16_f16 v[{Dd}:{Dd+15}], v[{W+4*j}:{W+4*j+3}], v[{B+4*j}:{B+4*j+3}], {cc}")
    k("s_cmp_eq_u32 s30, 0\ns_cbranch_scc1 f_sp")
    k("s_waitcnt lgkmcnt(4)"); modul(0); st1(0, 0)
    k("s_waitcnt lgkmcnt(3)"); modul(1); st1(0, 1)
    k("s_waitcnt lgkmcnt(1)"); modul(2); st1(1, 0)
    k("s_waitcnt lgkmcnt(0)"); modul(3); st1(1, 1)
    k("f_st1:")
    if EP == 3:
        k("s_waitcnt vmcnt(0)")
        for u in range(2): k(f"ds_read_b128 v[{CS+4*u}:{CS+4*u+3}], v23 offset:{u*16}")
    pr1 = pread(P_GA, GA) + pread(P_GAM, GAM) + pread(P_Q, Q) + pread(P_QM, QM)
    for j in range(2, 4):
        for part in range(2):
            st1(j, part)
            for _ in range(2): k(pr1.pop(0))
    if EP == 3:
        btag(k, 4)
        k("s_waitcnt lgkmcnt(8)")
        xb_unpack(CS)
    k(f"v_mov_b32 v22, {L_KEY + 64}\nds_read_b32 v22, v22")
    down(0, 7)
    stamp(k, 9)
    Y = BIM
    def twid(j):
        vr = ZL + 8 * (j & 1); vi = vr + 4
        for h in range(2):
            pmul(k, vr + 2*h, D1R + 4*j + 2*h, TC + 4*j + 2*h)
            pmul(k, vi + 2*h, D1I + 4*j + 2*h, TC + 4*j + 2*h)
        for h in range(2):
            pfma(k, vr + 2*h, D1I + 4*j + 2*h, TS + 4*j + 2*h, vr + 2*h)
            pfma(k, vi + 2*h, D1R + 4*j + 2*h, TS + 4*j + 2*h, vi + 2*h, nega=True)
        for i in range(4):
            k(f"v_cvt_pk_f16_f32 v{W+4*j+i}, v{vr+i}, v{vi+i}")
    def st2(j, Yd=Y, B=BRE):
        cr = "0" if j == 0 else f"v[{Yd}:{Yd+15}]"
        k(f"v_mfma_f32_32x32x16_f16 v[{Yd}:{Yd+15}], v[{W+4*j}:{W+4*j+3}], v[{B+4*j}:{B+4*j+3}], {cr}")
    k("s_cmp_eq_u32 s30, 0\ns_cbranch_scc1 f_sp2")
    for j in range(4):
        twid(j)
        if j > 0: st2(j - 1)
        if j < 2:
            for x in pr1[4*j:4*j+4]: k(x)
    st2(3)
    if PR & 4: k("s_setprio 1")
    k.c("GO hint from one workgroup per replica")
    YS = 12
    def x1rows(YA, YB):
        k(f"ds_bpermute_b32 v{YS}, v{BP}, v{YB}")
        k("s_waitcnt lgkmcnt(1)")
        for i in range(8): pfma(k, XA2 + 2*i, GA + 2*i, YA + 2*i, XA2 + 2*i)
        for i in range(1, 8): pfma(k, XB2 + 2*i, GAM + 2*i, YB + 2*i, XB2 + 2*i)
        k(f"v_fmac_f32 v{XB2+1}, v{GAM+1}, v{YB+1}")
        k("s_waitcnt lgkmcnt(0)")
        k(f"v_fmac_f32 v{XB2}, v{GAM}, v{YS}")
    x1rows(Y, Y)
    k("f_join:")
    if PR & 1: k("s_setprio 1")
    stamp(k, 10)
    C1, C1M, SBv, SBM, GBv, GBM = BRE, TC, TS, BIM, GA, GAM
    down(1, 7)
    RQ = ZL; TT_ = W
    KW, KR = 17, 7
    k(f"""v_lshrrev_b32 v{KW}, 3, v0
    v_and_b32 v{KW}, 60, v{KW}
    v_add_u32 v{KW}, {L_KEY}, v{KW}
    v_and_b32 v{KR}, 0xf0, v3
    v_lshrrev_b32 v{KR}, 2, v{KR}
    v_add_u32 v{KR}, {L_KEY}, v{KR}""")
    rows = ((XA2, Q, D1R, TT_, 56, C1, SBv, GBv), (XB2, QM, D1I, TT_ + 8, 58, C1M, SBM, GBM))
    def sums23(src):
        for i in range(7, -1, -1):
            for n, r_ in enumerate(rows):
                x = src[n] + 2*i; t = r_[3]
                if i == 7:
                    pmul(k, t + 2, x, x); pmul(k, t + 4, x, r_[1] + 2*i)
                else:
                    pfma(k, t + 2, x, x, t + 2); pfma(k, t + 4, x, r_[1] + 2*i, t + 4)
    for i in range(6, -1, -1):
        for r_ in rows: padd(k, r_[3], r_[0] + 14 if i == 6 else r_[3], r_[0] + 2*i)
    sums23((XA2, XB2))
    for n, r_ in enumerate(rows):
        for j in range(3): k(f"v_add_f32 v{RQ+4*n+j}, v{r_[3]+2*j}, v{r_[3]+2*j+1}")
    def red(js):
        for j in js: k(f"v_permlane32_swap_b32 v{RQ+j}, v{RQ+4+j}")
        for j in js: k(f"v_add_f32 v{RQ+j}, v{RQ+j}, v{RQ+4+j}")
        regs = [RQ + j for j in js]
        row_allreduce(k, regs)
        for r in regs: k(f"v_add_f32_dpp v{r}, v{r}, v{r} row_bcast:15 row_mask:0xa bank_mask:0xf")
    if PR & 2: k("s_setprio 0")
    red((0, 1, 2))
    k.c("lanes 31 / 63 hold rows A / B")
    k(f"""v_mul_f32 v{RQ}, {f32(1.0/1024)}, v{RQ}
    v_mul_f32 v{RQ+1}, {f32(1.0/1024)}, v{RQ+1}
    v_mul_f32 v{RQ+4}, v{RQ}, v{RQ}
    v_fma_f32 v{RQ+2}, -v{RQ}, v22, v{RQ+2}
    v_sub_f32 v{RQ+1}, v{RQ+1}, v{RQ+4}
    v_mul_f32 v{RQ+5}, 4.0, v{RQ+1}
    v_cmp_gt_f32 vcc, v{RQ+4}, v{RQ+5}
    v_lshrrev_b32 v{RQ+6}, 4, v0
    s_lshl_b32 s43, s3, 5
    v_and_or_b32 v{RQ+6}, v{RQ+6}, 30, s43
    s_or_b32 s42, vcc_lo, vcc_hi
    s_bitcmp1_b32 s42, 31
    s_cbranch_scc1 f_slow2
    f_var2:""")
    round_bf16(k, RQ + 1, RQ + 1)
    k(f"v_add_f32 v{RQ+1}, {f32(1e-5)}, v{RQ+1}")
    round_bf16(k, RQ + 1, RQ + 1)
    k(f"v_sqrt_f32 v{RQ+1}, v{RQ+1}")
    round_bf16(k, RQ + 1, RQ + 1)
    k(f"""v_rcp_f32 v{RQ+1}, v{RQ+1}
    s_mov_b32 s42, 0x80000000
    s_movk_i32 s43, 0xf000
    s_mov_b32 exec_lo, s42
    s_mov_b32 exec_hi, s42
    v_mul_f32 v{RQ+2}, v{RQ+2}, v{RQ+1}
    v_ashrrev_i32 v{RQ+4}, 31, v{RQ+2}
    v_or_b32 v{RQ+4}, s42, v{RQ+4}
    v_xor_b32 v{RQ+2}, v{RQ+2}, v{RQ+4}
    v_and_or_b32 v{RQ+2}, v{RQ+2}, s43, v{RQ+6}
    ds_write_b32 v{KW}, v{RQ+2}
    v_mul_f32 v{RQ}, -v{RQ}, v{RQ+1}
    s_mov_b64 exec, -1""")
    for n in range(2):
        k(f"v_readlane_b32 s{60+n}, v{RQ+2}, {31+32*n}")
        k(f"v_readlane_b32 s{56+2*n}, v{RQ}, {31+32*n}")
        k(f"v_readlane_b32 s{57+2*n}, v{RQ+1}, {31+32*n}")
    k("s_waitcnt lgkmcnt(0)")
    stamp(k, 11)
    if PR: k("s_setprio 0")
    KV = RQ + 8
    k(f"""s_barrier
    ds_read_b32 v{KV}, v{KR}""")
    stamp(k, 12)
    HP = W; OA, OBB = Q, Q + 8
    def pk(dst, src, n):
        for i in range(8):
            a, b = (2*i, 2*i + 1) if n == 0 else ((16 - 2*i) & 15, 15 - 2*i)
            k(f"v_cvt_pk_bf16_f32 v{dst+i}, v{src+a}, v{src+b}")
    def norm(n):
        X2, _, Tt, _, sr = rows[n][:5]
        for i in range(8):
            k(f"v_pk_fma_f32 {P(Tt+2*i)}, {P(X2+2*i)}, s[{sr}:{sr+1}], s[{sr}:{sr+1}] op_sel:[0,1,0] op_sel_hi:[1,1,0]")
    k.c("1+cb, sb, gb tables for the output rows: 3 KB per wave")
    F2R = (CS, CS + 4, TS)
    fin2 = "\n".join(f"buffer_load_dwordx4 v[{r_}:{r_+3}], v3, s[12:15], s64 offen offset:{i*1024} sc1" for i, r_ in enumerate(F2R))
    k(f"""s_mul_i32 s42, s16, 3072
    v_add_u32 v4, s42, v3
    s_add_u32 s64, s42, {WS_FIN + FIN_T + P_C1}
    s_waitcnt lgkmcnt(0)""")
    k(f"""v_cmp_lt_u32 vcc, s60, v{KV}
    v_cmp_lt_u32 s[44:45], s61, v{KV}
    s_and_b32 s62, vcc_lo, 0xffff
    s_and_b32 s63, s44, 0xffff
    s_bcnt1_i32_b32 s62, s62
    s_bcnt1_i32_b32 s63, s63""")
    k.c("the wave that holds the best row writes the record")
    k(f"""s_min_u32 s42, s62, s63
    s_cmp_lg_u32 s42, 0
    s_cbranch_scc1 f_nkey
    s_setprio 3
    s_max_u32 s42, s60, s61
    v_cmp_ne_u32 vcc, s42, v{KV}
    v_mov_b32 v{KV+4}, s42
    v_mov_b32 v{KV+6}, s32
    v_cndmask_b32 v{KV+5}, 0, v{KV}, vcc
    v_mov_b32 v{KV+7}, s33""")
    row_allreduce(k, [KV + 5], "v_max_u32")
    stamp(k, 20)
    k(f"""v_or_b32 v{KV+5}, 1, v{KV+5}
    buffer_store_dwordx4 v[{KV+4}:{KV+7}], v{FA}, s[12:15], s80 offen sc1""")
    if E("STAMPS", 0) == 4:
        stamp(k, 21); k("s_waitcnt vmcnt(0)"); stamp(k, 22)
    k("f_nkey:")
    if True:
        for n in range(2):
            Tt = rows[n][2]; XO = (OA, OBB)[n]; SA_ = (SLA, SLM)[n]
            k(f"""s_cmp_ge_u32 s{62+n}, 2
            s_cbranch_scc1 f_nc{n}
            f_cand{n}:
            s_setprio 2""")
            k(f"""s_lshl_b32 s43, s3, 1
            s_add_u32 s42, s{62+n}, s43
            s_lshl_b32 s43, s42, 7
            s_lshl_b32 s42, s42, 12
            s_add_u32 s42, s42, {WS_SLOT}
            s_add_u32 s43, s43, {WS_SH}
            v_mov_b32 v{YS}, 0xffffff00""")
            for a in range(4):
                for i in range(4):
                    p = 4*a + i
                    k(f"v_and_or_b32 v{Tt+p}, v{rows[n][0] + (p if n == 0 else (16 - p) & 15)}, v{YS}, s{4 + 4*(a & 1) + i}")
                k(f"buffer_store_dwordx4 v[{Tt+4*a}:{Tt+4*a+3}], v{SA_}, s[12:15], s42 offen offset:{(a&1)*1024 + (a>>1)*512} sc1")
            k(f"""v_mov_b32 v{HP+4*n}, s32
            v_mov_b32 v{HP+4*n+1}, s33
            v_mov_b32 v{HP+4*n+2}, s{56+2*n}
            v_mov_b32 v{HP+4*n+3}, s{57+2*n}
            s_mov_b64 exec, 0xff
            buffer_store_dwordx4 v[{HP+4*n}:{HP+4*n+3}], v3, s[12:15], s43 offen sc1
            s_mov_b64 exec, -1""")
            k(f"s_setprio 0\nf_nc{n}:")
    stamp(k, 13)
    k(fin2)
    k("s_barrier")
    if E("DSL", 0): k(f"s_sleep {E('DSL', 0)}")
    down(2, 7)
    norm(0); norm(1)
    k(f"""v_subrev_u32 v{XD}, s68, v{XD}
    s_sub_u32 s68, s68, {L_R - L_X}
    v_bfe_u32 v{YS}, v0, 1, 2
    v_lshlrev_b32 v{YS}, 4, v{YS}
    v_xor_b32 v{XD}, v{XD}, v{YS}
    v_xor_b32 v{XDM}, {2016 ^ 48}, v{XD}
    v_add_u32 v{XD}, s68, v{XD}
    v_add_u32 v{XDM}, s68, v{XDM}
    v_xor_b32 v20, 16, v{XD}
    v_xor_b32 v21, 16, v{XDM}
    v_and_b32 v22, 8, v0
    v_lshlrev_b32 v22, 1, v22
    v_xor_b32 v22, v22, v3
    v_add_u32 v22, s68, v22
    v_xor_b32 v23, 32, v22
    s_mov_b32 s83, 0
    s_cmp_ge_u32 s35, 14
    s_cbranch_scc1 f_p2c
    s_waitcnt vmcnt({0 if E("NOW", 0) or E("NOD", 0) else DN[2]})
    f_p2e:""")
    untag(k, list(range(CS, CS + 8)) + list(range(TS, TS + 4)), FT, YS)
    tagchk(k, YS)
    k("s_cbranch_vccnz f_p2r\nf_p2w:")
    stamp(k, 42)
    for i, r_ in enumerate(F2R): k(f"ds_write_b128 v4, v[{r_}:{r_+3}] offset:{L_P+P_C1+i*1024}")
    k("s_waitcnt lgkmcnt(0)\ns_barrier")
    stamp(k, 43)
    if E("PW", 1):
        k.c("the lines of this wave's partial results are written once so that an early reader does not go to HBM")
        k(f"""v_not_b32 v24, v{FT}
        v_bfe_u32 v7, v0, 4, 2
        v_lshlrev_b32 v7, 13, v7
        v_and_b32 v25, 0x70, v3
        v_add_u32 v7, v7, v25
        s_and_b32 s42, s35, 1
        s_lshl_b32 s42, s42, 3
        s_add_u32 s42, s42, s16
        s_lshl_b32 s42, s42, 15
        s_lshl_b32 s43, s17, 7
        s_add_u32 s42, s42, s43
        s_add_u32 s42, s42, {WS_PART}
        s_cmp_ge_u32 s35, 14
        s_cbranch_scc1 f_npw
        s_mov_b32 exec_lo, 0x00ff00ff
        s_mov_b32 exec_hi, 0x00ff00ff
        buffer_store_dwordx4 v[24:27], v7, s[12:15], s42 offen sc1
        s_mov_b64 exec, -1
        f_npw:""")
    rd3 = lambda n: [k(x) for x in pread((P_C1, P_C1M)[n], rows[n][5]) + pread((P_SB, P_SBM)[n], rows[n][6]) + pread((P_GB, P_GBM)[n], rows[n][7])]
    rd3(0)
    for n in range(2):
        X2, _, Tt, _, sr, c1, sb, gb = rows[n]
        k(f"s_waitcnt lgkmcnt({4 + 2*n})")
        for i in range(8): pfma(k, Tt + 2*i, Tt + 2*i, c1 + 2*i, sb + 2*i)
        k(f"s_waitcnt lgkmcnt({2*n})")
        if n == 0: rd3(1)
        for i in range(8): pfma(k, X2 + 2*i, gb + 2*i, Tt + 2*i, X2 + 2*i)
        pk((OA, OBB)[n], X2, n)
        for u in range(2):
            XO = (OA, OBB)[n]
            k(f"ds_write_b128 v{((XD, 20), (XDM, 21))[n][u]}, v[{XO+4*u}:{XO+4*u+3}] offset:{n*2048}")
    stamp(k, 44)
    k.c("rows back to memory order through LDS; written once the selection is known (the reducers write the two selected rows)")
    k("s_waitcnt lgkmcnt(0)")
    for i in range(4):
        k(f"ds_read_b128 v[{QM+4*i}:{QM+4*i+3}], v{22 + (i & 1)} offset:{i*1024}")
    OUTP = E("OUTP", 1)
    assert OUTP in (1, 5, 6, 7)
    def outst(lab, cond, rows_=(0, 1)):
        for n in rows_:
            k(cond(n, f"{lab}{n}"))
            for j in range(0 if E("NOOUT", 0) else 2):
                k(f"buffer_store_dwordx4 v[{QM+8*n+4*j}:{QM+8*n+4*j+3}], v3, s[24:27], s{18+n} offen offset:{j*1024} {os.environ.get('OFL', 'sc1')}")
            k(f"{lab}{n}:")
    notsel = lambda n, l: f"s_cmp_eq_u32 s{60+n}, s40\ns_cbranch_scc1 {l}\ns_cmp_eq_u32 s{60+n}, s41\ns_cbranch_scc1 {l}"
    if OUTP == 0:
        k("s_waitcnt lgkmcnt(0)")
        outst("f_o", lambda n, l: f"s_cmp_lt_u32 s{62+n}, 2\ns_cbranch_scc1 {l}")
    if OUTP == 5:
        k("s_waitcnt lgkmcnt(0)")
        outst("f_o", lambda n, l: f"s_cmp_lt_u32 s{62+n}, 2\ns_cbranch_scc1 {l}", (0,))
    BD, HA, AG, R, AD = 88, 120, 128, 144, 148
    L_A = L_KEY + 128
    k.c("down projection: tr addr, act write / read, PART store")
    k(f"""v_lshrrev_b32 v{R}, 2, v2
    v_and_b32 v{R+1}, 7, v{R}
    v_and_b32 v{R+2}, 3, v0
    v_lshl_add_u32 v{AD}, v1, 2, v{R+2}
    v_xor_b32 v{AD}, v{AD}, v{R+1}
    v_lshlrev_b32 v{AD}, 5, v{AD}
    v_lshl_add_u32 v{AD}, v{R}, 10, v{AD}
    v_add_u32 v{AD}, {L_U}, v{AD}
    v_cmp_eq_u32 s[44:45], 1, v{R+2}
    v_cmp_eq_u32 s[46:47], 2, v{R+2}
    v_cmp_eq_u32 s[72:73], 3, v{R+2}
    v_bfe_u32 v{R+1}, v0, 4, 2
    v_and_b32 v{R}, 1, v{R}
    v_lshlrev_b32 v{AD+5}, 7, v{R}
    v_lshl_add_u32 v{AD+5}, v{R+1}, 4, v{AD+5}
    v_add_u32 v{AD+5}, {L_A}, v{AD+5}
    v_lshlrev_b32 v{AD+6}, 4, v{R+2}
    v_lshl_add_u32 v{AD+6}, v{R}, 6, v{AD+6}
    v_lshl_add_u32 v{AD+6}, v1, 15, v{AD+6}
    v_lshl_add_u32 v{AD+6}, v{R+1}, 13, v{AD+6}
    v_and_b32 v{R}, 15, v0
    v_lshlrev_b32 v{AD+4}, 1, v{R}
    v_lshl_add_u32 v{AD+4}, v1, 5, v{AD+4}
    v_lshl_add_u32 v{AD+4}, v{R+1}, 7, v{AD+4}
    v_add_u32 v{AD+4}, {L_A}, v{AD+4}
    s_and_b32 s76, s35, 1
    s_lshl_b32 s76, s76, 18
    s_lshl_b32 s77, s17, 7
    s_add_u32 s76, s76, s77
    s_add_u32 s76, s76, {WS_PART}
    s_movk_i32 s77, 0xff00
    s_lshl_b32 s81, s17, 2
    s_and_b32 s42, s16, 3
    s_add_u32 s81, s81, s42
    s_lshl_b32 s81, s81, 10
    s_add_u32 s82, s81, {WS_XB}
    s_add_u32 s81, s81, {WS_XA}
    v_mov_b32 v5, {L_KEY+104}""")
    stamp(k, 45)
    if OUTP == 0:
        k.c("the weight tile is older than the row stores")
        k("""s_max_u32 s42, s62, s63
        s_min_u32 s43, s62, s63
        s_cmp_lt_u32 s43, 2
        s_cbranch_scc1 f_w0
        s_waitcnt vmcnt(4)
        f_w1:""")
    elif OUTP == 5:
        k("s_cmp_lt_u32 s62, 2\ns_cbranch_scc1 f_w0\ns_waitcnt vmcnt(2)\nf_w1:")
    else: k("s_waitcnt vmcnt(0)")
    k("s_barrier")
    stamp(k, 14)
    if OUTP in (6, 7):
        k("s_waitcnt lgkmcnt(0)")
        outst("f_o", lambda n, l: f"s_cmp_lt_u32 s{62+n}, 2\ns_cbranch_scc1 {l}", (0,) if OUTP == 6 else (0, 1))
    for ks in range(2):
        for t in range(4):
            b_ = BD + (ks*4 + t)*4
            k(f"ds_read_b64_tr_b16 v[{b_}:{b_+1}], v{AD} offset:{ks*32768+t*8}")
            k(f"ds_read_b64_tr_b16 v[{b_+2}:{b_+3}], v{AD} offset:{ks*32768+16384+t*8}")
    if OUTP == 3:
        if E("OS3", 0): k(f"s_sleep {E('OS3', 0)}")
        k("s_waitcnt lgkmcnt(0)")
        outst("f_o", lambda n, l: f"s_cmp_lt_u32 s{62+n}, 2\ns_cbranch_scc1 {l}")
    if OUTP == 4:
        k("s_waitcnt lgkmcnt(0)\ns_cmp_lt_u32 s16, 4\ns_cbranch_scc1 f_o1")
        outst("f_o", lambda n, l: f"s_cmp_lt_u32 s{62+n}, 2\ns_cbranch_scc1 {l}")
    rec = """s_mov_b64 exec, 3
    buffer_load_dwordx4 v[32:35], v40, s[12:15], s74 offen sc1
    s_mov_b64 exec, -1"""
    k(f"""v_lshlrev_b32 v40, 13, v2
    s_lshl_b32 s74, s34, 14
    s_add_u32 s74, s74, {WS_HM + HM_B + 4096}
    s_min_u32 s75, s62, s63
    s_cmp_ge_u32 s35, 14
    s_cbranch_scc1 f_na
    s_cmp_ge_u32 s16, 4
    s_cbranch_scc1 f_na""")
    k(f"""s_mov_b32 s83, 0
    f_px:
    s_and_b32 s42, s83, 63
    s_cmp_eq_u32 s42, 63
    s_cselect_b32 s42, s82, s81
    buffer_load_dwordx4 v[{R}:{R+3}], v3, s[12:15], s42 offen sc1
    s_add_u32 s83, s83, 1
    s_cmp_ge_u32 s83, {SPIN}
    s_cselect_b32 s43, 0, 0xff
    s_waitcnt vmcnt(0)
    s_cbranch_scc1 f_pxx
    v_cmp_ne_u16_sdwa vcc, v{R+3}, v{FT+3} src0_sel:BYTE_0 src1_sel:DWORD
    s_cbranch_vccnz f_px""")
    k("f_pxx:")
    stamp(k, 16)
    for i in range(4): k(f"v_xor_b32 v{R+i}, v{FT+i}, v{R+i}")
    k(f"""v_or3_b32 v4, v{R}, v{R+1}, v{R+2}
    v_or_b32 v4, v4, v{R+3}
    v_permlane32_swap_b32 v{R}, v{R+2}
    v_permlane32_swap_b32 v{R+1}, v{R+3}""")
    padd(k, R, R, R + 2)
    k(f"""v_and_b32 v4, s43, v4
    v_cmp_ne_u32 vcc, 0, v4
    v_permlane16_swap_b32 v{R}, v{R+1}
    s_cbranch_vccnz f_px
    v_add_f32 v{R}, v{R}, v{R+1}""")
    round_bf16(k, R, R)
    k(f"""v_mul_f32 v{R+1}, {LOG2E}, v{R}
    v_exp_f32 v{R+1}, v{R+1}
    v_mov_b32 v{R+2}, v{R}
    v_add_f32 v{R+1}, 1.0, v{R+1}
    v_rcp_f32 v{R+1}, v{R+1}
    v_mov_b32 v{R+3}, v{R}
    v_mul_f32 v{R+1}, v{R}, v{R+1}
    v_permlane32_swap_b32 v{R+2}, v{R+3}""")
    round_bf16(k, R + 1, R + 1)
    k(f"""v_mul_f32 v{R+1}, v{R+1}, v{R+3}
    v_cvt_pk_bf16_f32 v{R+1}, v{R+1}, v{R+1}
    ds_write_b16 v{AD+4}, v{R+1}
    f_na:
    s_waitcnt lgkmcnt(0)
    s_barrier
    s_cmp_ge_u32 s35, 14
    s_cbranch_scc1 f_fin""")
    for ks in range(2):
        k(f"ds_read_b128 v[{HA+4*ks}:{HA+4*ks+3}], v{AD+5} offset:{ks*64}")
    k(rec)
    def dm(t, ks):
        a_ = AG + 4 * t; b_ = BD + (ks*4 + t)*4
        k(f"v_mfma_f32_16x16x32_bf16 v[{a_}:{a_+3}], v[{b_}:{b_+3}], v[{HA+4*ks}:{HA+4*ks+3}], {'0' if ks == 0 else f'v[{a_}:{a_+3}]'}")
    def sel(d, a_, b_, m_):
        for i in range(4): k(f"v_cndmask_b32 v{d+i}, v{a_+i}, v{b_+i}, {m_}")
    k("s_waitcnt lgkmcnt(1)")
    dm(0, 0); dm(1, 0)
    k("s_waitcnt lgkmcnt(0)")
    dm(0, 1); dm(1, 1); dm(2, 0); dm(3, 0); dm(2, 1); dm(3, 1)
    k("s_mov_b32 exec_lo, 0x00ff00ff\ns_mov_b32 exec_hi, 0x00ff00ff")
    sel(AG, AG, AG + 4, "s[44:45]")
    sel(AG, AG, AG + 8, "s[46:47]")
    sel(AG, AG, AG + 12, "s[72:73]")
    for i in range(4): k(f"v_and_or_b32 v{AG+i}, v{AG+i}, s77, v{FT+i}")
    k(f"""buffer_store_dwordx4 v[{AG}:{AG+3}], v{AD+6}, s[12:15], s76 offen sc1
    s_mov_b64 exec, -1""")
    stamp(k, 17)
    k("s_barrier\nf_fin:")
    if E("OSL", 0): k(f"s_sleep {E('OSL', 0)}")
    k("s_cmp_lt_u32 s75, 2\ns_cbranch_scc1 f_sel")
    outst("f_g", lambda n, l: "", (1,) if OUTP in (5, 6) else () if OUTP == 7 else (0, 1))
    k("f_end:")
    stamp_out(k, 0)
    k("s_endpgm")
    k(f"""
    f_sel:
    s_mov_b32 s83, 0
    s_cmp_ge_u32 s35, 14
    s_cbranch_scc1 f_sr
    s_waitcnt vmcnt(1)
    f_sc:
    v_cmp_ne_u64 vcc, s[32:33], v[32:33]
    v_readlane_b32 s40, v34, 0
    v_readlane_b32 s41, v34, 1
    s_and_b32 s42, vcc_lo, 3
    s_cbranch_scc0 f_sx
    s_sleep 4
    f_sr:
    {rec}
    s_waitcnt vmcnt(0)""")
    spin(k, "f_sc", 0)
    k("f_sx:\ns_andn2_b32 s40, s40, 1\ns_andn2_b32 s41, s41, 1")
    cand = lambda n, l: f"s_cmp_ge_u32 s{62+n}, 2\ns_cbranch_scc1 {l}\n" + notsel(n, l)
    outst("f_e", (lambda n, l: cand(n, l) if n == 0 else notsel(n, l)) if OUTP in (5, 6) else cand if OUTP == 7 else notsel)
    k("s_branch f_end")
    if OUTP in (0, 5): k("f_w0:\ns_waitcnt vmcnt(0)\ns_branch f_w1")
    k(f"""f_p2r:
    s_add_u32 s83, s83, 1
    s_cmp_ge_u32 s83, {SPIN}
    s_cbranch_scc1 f_p2w
    s_sleep 12
    {fin2}
    f_p2c:
    s_waitcnt vmcnt(0)
    s_branch f_p2e
""")
    k.c("---- spectrum pieces that were not there yet: read them again ----")
    k("f_zr:")
    for i in range(4):
        z = ZC + 8*(i >> 1) + (i & 1)
        k(f"""v_or3_b32 v{ZT}, v{z}, v{z+2}, v{z+4}
        v_or_b32 v{ZT}, v{ZT}, v{z+6}
        v_and_b32 v{ZT}, s54, v{ZT}
        v_cmp_ne_u32 vcc, 0, v{ZT}""")
        k(f"""s_cbranch_vccz f_zr{i}
        buffer_load_dwordx4 v[{ZL+4*i}:{ZL+4*i+3}], v3, s[12:15], s72 offen offset:{i*1024} sc1
        f_zr{i}:""")
    k("s_waitcnt vmcnt(0)")
    spin(k, "f_zc", 0)
    k("s_branch f_zx")
    k.c("---- out-of-line pieces ----")
    k.c("group 0: the output row is the second one for mm >= 8; four waves of workgroup 0 have to fetch theirs")
    k("f_r0:\ns_cmp_ge_u32 s3, 8\ns_cbranch_scc1 f_rb\ns_bitcmp0_b32 s30, 7\ns_cbranch_scc1 f_ra\ns_mov_b32 m0, s68")
    for u in range(2): k(f"buffer_load_dwordx4 v3, s[8:11], s18 offen offset:{u*1024} lds")
    k("s_branch f_nr\nf_rb:")
    for h in range(2): k(f"ds_write_b128 v{T}, v[{XW+8+4*h}:{XW+8+4*h+3}] offset:{h*1024}")
    k("s_branch f_nr")
    st_retry()
    k(f"f_pr:\ns_sleep {E('SLX', 6)}")
    stamp(k, 32)
    for i in range(4): k(f"v_mov_b32 v{FL+12+i}, v{FT+i}")
    fin1()
    k("s_waitcnt vmcnt(0)")
    spin(k, "f_pv", 0)
    k("s_waitcnt vmcnt(0)\ns_branch f_pw")
    sas()
    k(f"f_qr:\ns_sleep {E('SLX', 6)}")
    finb()
    spin(k, "f_qv", 0)
    k("s_waitcnt vmcnt(0)\ns_branch f_pvx")
    k.c("---- rare: two-pass variance / router score for LN2 ----")
    k("f_slow2:")
    k.c("here the bf16 rounding of x and of the mean matters: follow the reference's rounding steps")
    for r_ in rows:
        X2, t = r_[0], r_[3]
        for i in range(8): rb2(k, X2 + 2*i, t)
        for i in range(1, 8): padd(k, t, X2 if i == 1 else t, X2 + 2*i)
    for n, r_ in enumerate(rows):
        k(f"v_add_f32 v{RQ+4*n}, v{r_[3]}, v{r_[3]+1}")
    red((0,))
    k(f"v_mul_f32 v{RQ+3}, {f32(1.0/1024)}, v{RQ}")
    round_bf16(k, RQ, RQ + 3)
    k(f"v_sub_f32 v{RQ+3}, v{RQ+3}, v{RQ}")
    for n in range(2): k(f"v_readlane_b32 s{56+2*n}, v{RQ}, {31+32*n}")
    for r_ in rows:
        for i in range(8): psub_s(k, r_[2] + 2*i, r_[0] + 2*i, r_[4])
    k(f"v_mov_b32 v{RQ+7}, v{RQ+6}")
    sums23((rows[0][2], rows[1][2]))
    for n, r_ in enumerate(rows):
        for j in (1, 2): k(f"v_add_f32 v{RQ+4*n+j}, v{r_[3]+2*j}, v{r_[3]+2*j+1}")
    red((1, 2))
    k(f"""v_mul_f32 v{RQ+1}, {f32(1.0/1024)}, v{RQ+1}
    v_fma_f32 v{RQ+1}, -v{RQ+3}, v{RQ+3}, v{RQ+1}
    v_max_f32 v{RQ+1}, 0, v{RQ+1}
    v_mov_b32 v{RQ+6}, v{RQ+7}
    s_branch f_var2""")
    slow1()
    k.c("---- rows 0 and 1024 travel as one complex row ----")
    k.c("both inputs are made even in d: the real and the imaginary part of the transform are then the two rows")
    k("f_sp:\ns_setprio 3")
    SAR = D1R; MR = D1I; SC_ = L_C + 4096
    for j in range(4):
        k(f"ds_read_b128 v[{SAR+4*j}:{SAR+4*j+3}], v3 offset:{L_C+j*1024}")
    k(f"""v_and_b32 v12, 31, v0
    v_lshlrev_b32 v12, 2, v12
    v_and_b32 v17, 32, v0
    v_lshl_add_u32 v12, v17, 4, v12
    v_sub_u32 v20, {SC_}, v12
    v_add_u32 v12, {SC_}, v12
    v_add_u32 v17, 128, v12
    v_add_u32 v21, 128, v20""")
    for j in range(4):
        k(f"s_waitcnt lgkmcnt({3 - j + 2*j})" if j else "s_waitcnt lgkmcnt(3)")
        for i in range(4*j, 4*j + 4):
            b = i & 1
            k(f"v_pk_fma_f16 v{W+i}, v{ZL+i}, v{CS+(i>>1)}, v{SAR+i} op_sel:[0,{b},0] op_sel_hi:[1,{b},1]")
        for i in range(2):
            k(f"ds_write2st64_b32 v{(12, 17)[i]}, v{W+4*j+i}, v{W+4*j+i+2} offset0:{4*j} offset1:{4*j+1}")
    k(f"s_mov_b64 exec, 1\nds_write_b32 v12, v{W} offset:4096\ns_mov_b64 exec, -1")
    for j in range(4):
        k(f"ds_read2st64_b32 v[{MR+4*j}:{MR+4*j+1}], v20 offset0:{16-4*j} offset1:{15-4*j}")
        k(f"ds_read2st64_b32 v[{MR+4*j+2}:{MR+4*j+3}], v21 offset0:{15-4*j} offset1:{14-4*j}")
    for j in range(4):
        k(f"s_waitcnt lgkmcnt({6-2*j})")
        for i in range(4):
            k(f"v_pk_add_f16 v{W+4*j+i}, v{W+4*j+i}, v{MR+4*j+(0, 2, 1, 3)[i]}")
    st1(0, 0); st1(0, 1); st1(1, 0); st1(1, 1)
    k("s_branch f_st1")
    k("f_sp2:\ns_nop 7")
    YA, YB = Q, QM
    for j in range(4):
        twid(j)
        if j > 0: st2(j - 1, YA, BRE); st2(j - 1, YB, BIM)
    st2(3, YB, BIM); st2(3, YA, BRE)
    x1rows(YA, YB)
    for x in pr1: k(x)
    k(f"s_waitcnt lgkmcnt(0)\ns_setprio {2 if PR else 0}\ns_branch f_join")

    for l in WARM:
        if l:
            i = k.lines.index(l + ":")
            k.lines[i:i] = [l + "_w:", f"    s_branch {l}_b"]

def role_G(k):
    L_GR = 131072 + 4096; L_SI = 131072 + 8192
    k.c("w_mod tiles: rows 64*mm.., 512 columns of sa|ca|ga|cb and 256 columns of sb|gb per group")
    k.c("the first four waves start earlier: they are the loaders (logical waves 4-7)")
    swap = """s_xor_b32 s16, s16, 4
    v_xor_b32 v1, 4, v1
    v_xor_b32 v0, 0x100, v0
    v_lshlrev_b32 v13, 2, v2
    v_mov_b32 v220, 0
    v_mov_b32 v221, 0
    v_mov_b32 v233, 0
    v_mov_b32 v234, 0
    v_mov_b32 v235, 0"""
    k(f"""g_start:
    s_cmp_lt_u32 s16, 4
    s_cbranch_scc1 g_load
    s_getpc_b64 s[36:37]
    g_pc:
    s_lshl_b32 s42, s35, 2
    s_add_u32 s42, s42, s16
    s_sub_u32 s42, s42, 4
    s_lshl_b32 s42, s42, 10
    v_lshl_add_u32 v4, v2, 7, s42
    v_min_u32 v4, all_end-g_pc-4, v4
    s_mov_b64 exec, 0xff
    global_load_dword v199, v4, s[36:37]
    s_mov_b64 exec, -1
    s_branch g_cons""")
    k.c("nonce writer: first wave of workgroup 0")
    k(f"""h_non:
    s_mul_i32 s44, s32, 0x9e3779b1
    s_lshr_b32 s45, s44, 15
    s_xor_b32 s44, s44, s45
    s_mul_i32 s44, s44, 0x85ebca6b
    s_xor_b32 s33, s33, s44
    s_lshr_b32 s45, s44, 13
    s_xor_b32 s44, s44, s45
    s_mul_i32 s33, s33, 0xc2b2ae35
    s_add_u32 s33, s33, s32
    s_lshr_b32 s45, s33, 16
    s_xor_b32 s33, s33, s45
    s_mul_i32 s33, s33, 0x27d4eb2f
    s_or_b32 s32, s44, 1
    s_andn2_b32 s33, s33, 7
    v_mov_b32 v24, s32
    v_mov_b32 v25, s33
    v_lshlrev_b32 v26, 3, v2
    s_mov_b32 exec_hi, 0
    global_store_dwordx2 v26, v[24:25], s[26:27] sc1
    s_mov_b32 exec_hi, -1
    s_branch h_nonx""")
    k("@@L@@")
    k(f"""g_cons:
    {swap}""")
    k(f"""s_mov_b32 s14, {WS_SIZE}
    s_mov_b32 s15, s11
    s_lshl_b32 s29, s34, 4
    s_add_u32 s29, s29, s35
    s_lshl_b32 s29, s29, 12
    s_add_u32 s29, s29, {WS_MPA}
    s_lshl_b32 s30, s16, 9
    s_add_u32 s30, s30, s29
    s_lshl_b32 s31, s16, 8
    s_add_u32 s31, s31, s29
    s_add_u32 s31, s31, 2048
    v_lshlrev_b32 v8, 1, v2
    v_lshlrev_b32 v9, 7, v2
    v_mov_b32 v104, -1
    v_mov_b32 v105, -1
    v_mov_b32 v106, -1
    v_mov_b32 v107, -1
    s_waitcnt lgkmcnt(0)""")
    k("""
    s_cmp_eq_u32 s16, 1
    s_cselect_b64 exec, 0xffffff, 1
    buffer_load_dword v245, v9, s[12:15], s29 offen sc1
    s_mov_b64 exec, -1
    v_mov_b32 v14, 0""")
    srd(k, 8, 58, 1024 * 6144 * 2)
    def common():
        k.c("s64 = cluster (or X index) ; s65 = K half ; s66 = 1 for X")
        k(f"""s_mov_b32 s20, s26
        s_mov_b32 s21, s27
        s_mov_b32 s26, 4194304
        s_mov_b32 s27, 0x00020000
        s_and_b32 s65, s35, 1
        s_lshr_b32 s40, s35, 1
        s_mul_i32 s64, s34, 7
        s_add_u32 s64, s64, s40
        s_lshl_b32 s41, s34, 1
        s_add_u32 s41, s41, s65
        s_cmp_ge_u32 s35, 14
        s_cselect_b32 s66, 1, 0
        s_cselect_b32 s64, s41, s64""")
        k.c("v12 / v21: transposed reads of the gate / up tile")
        k(f"""v_lshrrev_b32 v10, 2, v2
        v_and_b32 v15, 3, v0
        v_bfe_u32 v11, v0, 3, 2
        v_xor_b32 v12, v11, v1
        v_and_b32 v12, 3, v12
        v_lshlrev_b32 v12, 5, v12
        v_lshl_add_u32 v12, v10, 7, v12
        v_lshl_add_u32 v12, v15, 3, v12
        v_lshrrev_b32 v16, 2, v1
        v_lshl_add_u32 v12, v16, 15, v12
        v_add_u32 v21, 65536, v12""")
    common()
    RA, RB = 200, 208
    k(f"""v_bfe_u32 v22, v0, 2, 3
    v_lshlrev_b32 v22, 5, v22
    v_lshl_add_u32 v22, v15, 3, v22
    v_bfe_u32 v23, v0, 2, 2
    v_bfe_u32 v24, v0, 4, 2
    v_lshl_add_u32 v23, v24, 3, v23
    v_lshl_add_u32 v{RA}, v23, 10, v22
    v_lshl_add_u32 v{RA}, v1, 8, v{RA}
    v_add_u32 v{RA}, 32768, v{RA}
    v_lshlrev_b32 v25, 7, v1
    v_xor_b32 v22, v22, v25
    v_lshl_add_u32 v{RB}, v23, 9, v22
    v_add_u32 v{RB}, 98304, v{RB}
    v_cmp_eq_u32 s[60:61], 1, v24
    v_cmp_eq_u32 s[62:63], 2, v24
    v_cmp_eq_u32 s[72:73], 3, v24
    v_add3_u32 v8, v8, v25, s36
    v_lshl_add_u32 v10, v24, 4, v25
    v_add_u32 v10, {L_SI}, v10""".replace("v_add3_u32 v8, v8, v25, s36", f"v_add_u32 v8, v8, v25\nv_add_u32 v8, {L_SI}, v8"))
    for t in range(1, 8): k(f"v_xor_b32 v{RA+t}, {32*t}, v{RA}")
    for t in range(1, 4): k(f"v_xor_b32 v{RB+t}, {32*t}, v{RB}")
    k(f"s_sleep {E('GNS', 8)}")
    nonce_issue(k, 20, 128)
    GA_, GB_, GD = 120, 128, 64
    nonce_finish(k, "g_nn", 20, 192, 112)
    mtag(k, 212, 0)
    k("v_and_b32 v212, 0xff, v212\ns_movk_i32 s74, 0xff00")
    k.c("X: v220 / v233 = place of a finished piece in round 1 / 2, v234 / v235 the piece of the mirrored table, v221 = place in the partial sums")
    k(f"""s_cmp_ge_u32 s16, s66
    s_cbranch_scc1 g_nw
    s_lshr_b32 s22, s64, 2
    s_cmp_eq_u32 s22, 3
    s_cselect_b32 s22, {(FIN_T + P_C1) // 4096}, s22
    s_lshl_b32 s22, s22, 12
    s_add_u32 s22, s22, {WS_FIN}
    s_lshr_b32 s23, s64, 3
    s_lshl_b32 s23, s23, 13
    s_add_u32 s23, s23, {WS_FIN + FIN_T + P_SB}
    s_mov_b32 s75, {WS_FIN + FIN_T + P_Q}
    v_bfe_u32 v24, v0, 2, 1
    v_bfe_u32 v25, v0, 3, 2
    v_bfe_u32 v26, v0, 5, 1
    v_lshlrev_b32 v220, 4, v15
    v_lshl_add_u32 v220, v24, 9, v220
    v_lshl_add_u32 v220, v25, 10, v220
    s_and_b32 s42, s64, 3
    s_lshl_b32 s42, s42, 7
    s_and_b32 s43, s64, 4
    s_lshl_b32 s43, s43, 4
    s_add_u32 s42, s42, s43
    v_add_u32 v233, s42, v220
    v_lshl_add_u32 v220, v26, 7, v220
    s_and_b32 s42, s64, 1
    s_lshl_b32 s42, s42, 8
    s_and_b32 s43, s64, 2
    s_lshl_b32 s43, s43, 5
    s_add_u32 s42, s42, s43
    v_add_u32 v220, s42, v220
    v_xor_b32 v234, {4096 + 4080}, v220
    v_xor_b32 v235, {4096 + 4080}, v233
    v_lshlrev_b32 v221, 7, v15
    v_lshl_add_u32 v221, v24, 6, v221
    v_lshl_add_u32 v221, v25, 4, v221
    v_lshl_add_u32 v221, v26, 9, v221
    v_add_u32 v232, 8, v2
    v_and_b32 v232, 31, v232
    v_lshl_add_u32 v232, v26, 5, v232
    v_lshlrev_b32 v232, 2, v232
    s_lshl_b32 s79, s64, 7
    s_add_u32 s79, s79, {WS_REC}
    v_xor_b32 v0, 1, v0""")
    mtag4(k, 228)
    k("v_xor_b32 v0, 1, v0")
    srd(k, 44, 48, 2048)
    k("""v_lshrrev_b32 v11, 1, v221
    s_and_b32 s42, s64, 3
    s_lshl_b32 s42, s42, 9
    buffer_load_dwordx2 v[52:53], v11, s[44:47], s42 offen""")
    mtag4(k, 216)
    k.c("the lines are written once early so that an early reader does not go to HBM")
    k(f"""v_not_b32 v24, v216
    v_not_b32 v25, v229
    buffer_store_dwordx4 v[24:27], v220, s[12:15], s22 offen sc1
    s_mov_b32 exec_hi, 0
    buffer_store_dwordx4 v[24:27], v233, s[12:15], s23 offen sc1
    buffer_store_dwordx4 v[24:27], v235, s[12:15], s23 offen sc1
    s_mov_b64 exec, 0xff
    buffer_store_dwordx4 v[104:107], v3, s[12:15], s79 offen sc1
    s_mov_b64 exec, -1
    s_cmp_lt_u32 s64, 8
    s_cbranch_scc1 g_nw
    buffer_store_dwordx4 v[24:27], v234, s[12:15], s22 offen sc1
    s_cmp_lt_u32 s64, 12
    s_cbranch_scc1 g_nw
    buffer_store_dwordx4 v[24:27], v220, s[12:15], s75 offen sc1
    buffer_store_dwordx4 v[24:27], v234, s[12:15], s75 offen sc1
    g_nw:
    s_barrier""")
    def xprep():
        mtag4(k, 216)
        k(f"""s_lshl_b32 s81, s34, 16
        s_lshl_b32 s42, s16, 13
        s_add_u32 s81, s81, s42
        s_add_u32 s81, s81, {WS_MPA}
        s_lshl_b32 s42, s65, 9
        s_add_u32 s80, s81, s42
        s_add_u32 s81, s80, s42
        v_lshlrev_b32 v222, 4, v0
        v_lshrrev_b32 v223, 5, v2
        v_and_b32 v24, 0x1f0, v3
        v_lshl_add_u32 v223, v223, 12, v24
        s_lshl_b32 s39, s34, 4
        s_add_u32 s39, s39, s35
        s_lshl_b32 s39, s39, 12
        s_add_u32 s39, s39, {WS_MPA}
        s_bitcmp1_b32 s64, 2
        s_cselect_b32 s28, 1.0, 0""")
    def gemv(u, st=True):
        def prm(j):
            if u < 2: return RA + j, u*32768, 4096, GD + 4*j, GA_ + 4*u, u == 0
            return RB + (j & 3), (j >> 2)*16384, 2048, GD + 4*(j & 3), GA_ + 4*(j >> 2), j < 4
        def rd(j):
            va, off, hs = prm(j)[:3]
            k(f"ds_read_b64_tr_b16 v[{GB_+4*j}:{GB_+4*j+1}], v{va} offset:{off}")
            k(f"ds_read_b64_tr_b16 v[{GB_+4*j+2}:{GB_+4*j+3}], v{va} offset:{off+hs}")
        for j in range(7): rd(j)
        for j in range(8):
            k(f"s_waitcnt lgkmcnt({12 if j == 0 else 2*(7 - j)})")
            d_, a_, z = prm(j)[3:]
            k(f"v_mfma_f32_16x16x32_bf16 v[{d_}:{d_+3}], v[{a_}:{a_+3}], v[{GB_+4*j}:{GB_+4*j+3}], {'0' if z else f'v[{d_}:{d_+3}]'}")
            if j == 0: rd(7)
        if u:
            for h in range(3 - u):
                d_ = GD + 16*h
                for t, m_ in ((1, "s[60:61]"), (2, "s[62:63]"), (3, "s[72:73]")):
                    k(f"v_cndmask_b32 v{d_}, v{d_}, v{d_+4*t}, {m_}")
                k(f"v_and_or_b32 v{PO + 2*(u-1) + h}, v{d_}, s74, v212")
    PO = 224
    def mp(u, cp):
        if cp: k(f"s_add_u32 s42, s{29+u}, {WS_MPB - WS_MPA}")
        for h in range(3 - u):
            k(f"buffer_store_dword v{PO+2*(u-1)+h}, v13, s[12:15], s{42 if cp else 29+u} offen offset:{h*256} {('', 'sc1')[cp]}")
    stamp(k, 2)
    k("ds_read_u16 v6, v8\ns_waitcnt lgkmcnt(0)")
    k(f"""v_lshlrev_b32 v6, 16, v6
    v_mul_f32 v24, {LOG2E}, v6
    v_exp_f32 v24, v24
    v_add_f32 v24, 1.0, v24
    v_rcp_f32 v24, v24
    v_mul_f32 v6, v6, v24
    v_cvt_pk_bf16_f32 v6, v6, v6
    ds_write_b16 v8, v6
    ds_read_b128 v[{GA_}:{GA_+3}], v10
    ds_read_b128 v[{GA_+4}:{GA_+7}], v10 offset:64""")
    gemv(0)
    xprep()
    k("s_barrier")
    stamp(k, 3)
    gemv(1)
    mp(1, 0)
    stamp(k, 4)
    k("s_cmp_eq_u32 s66, 1\ns_cbranch_scc1 x_start\ns_barrier")
    if E("XH", 0):
        k.c("wave 0: a share of the second tiles of the two X workgroups into L2")
        k(f"""s_cmp_lg_u32 s16, 0
        s_cbranch_scc1 m_nh
        s_mul_i32 s42, s35, 9
        s_add_u32 s42, s42, 896
        s_mul_i32 s42, s42, 12288
        s_lshl_b32 s43, s34, 9
        s_add_u32 s42, s42, s43
        s_and_b32 s43, s34, 4
        s_lshl_b32 s43, s43, 9
        s_add_u32 s42, s42, s43
        s_add_u32 s42, s42, {3*2048}
        v_lshrrev_b32 v24, 2, v2
        v_mul_u32_u24 v24, 12288, v24
        v_lshl_add_u32 v24, v15, 7, v24
        s_mov_b32 exec_hi, 15
        buffer_load_dword v245, v24, s[8:11], s42 offen
        s_mov_b32 exec_hi, -1
        m_nh:""")
    k("s_barrier")
    gemv(2)
    mp(2, 0)
    stamp(k, 5)
    k("s_barrier")
    HN = E("HN", 37)
    if HN:
        k.c("the gate / up columns whose lines stream slowly are pulled into L2 by all M workgroups of the die")
        k(f"""s_bitcmp1_b32 s16, 0
        {"s_cbranch_scc1 m_nh2" if E("XN", 0) else ""}
        s_cselect_b32 s8, s52, s50
        s_cselect_b32 s9, s53, s51
        s_mov_b32 s10, {1024*3584*2}
        s_lshr_b32 s42, s8, 7
        s_sub_u32 s42, 3, s42
        s_add_u32 s42, s42, s34
        s_and_b32 s42, s42, 7
        s_cmp_eq_u32 s42, 7
        s_cbranch_scc1 m_nh2
        s_mul_i32 s43, s34, 7
        s_add_u32 s42, s42, s43
        s_lshl_b32 s42, s42, 7
        s_lshl_b32 s43, s35, 1
        s_lshr_b32 s40, s16, 1
        s_add_u32 s43, s43, s40
        s_mul_i32 s43, s43, {37*7168}
        s_add_u32 s42, s42, s43
        v_mul_u32_u24 v24, 7168, v2
        s_mov_b32 exec_lo, {((1 << HN) - 1) & 0xffffffff}
        s_mov_b32 exec_hi, {((1 << HN) - 1) >> 32}
        buffer_load_dword v245, v24, s[8:11], s42 offen
        s_mov_b64 exec, -1
        m_nh2:""")
    BD, BG, BU = 32, 64, 96
    def rdw(base, va):
        for ks in range(8):
            k(f"ds_read_b64_tr_b16 v[{base+4*ks}:{base+4*ks+1}], v{va} offset:{ks*4096}")
            k(f"ds_read_b64_tr_b16 v[{base+4*ks+2}:{base+4*ks+3}], v{va} offset:{ks*4096+2048}")
    k("s_barrier")
    rdw(BG, 12)
    k("s_waitcnt vmcnt(0)\ns_barrier")
    k.c("write-through copy of the partial sums (read back through L2, one KB per wave)")
    def fwd(lab, w0=0):
        k(f"""s_sub_u32 s42, s16, {w0}
        s_cmp_ge_u32 s42, 3
        s_cbranch_scc1 {lab}
        s_lshl_b32 s42, s42, 10
        s_add_u32 s42, s42, s29
        s_add_u32 s43, s42, {WS_MPB - WS_MPA}
        buffer_load_dwordx4 v[44:47], v3, s[12:15], s42 offen sc1
        s_waitcnt vmcnt(0)
        buffer_store_dwordx4 v[44:47], v3, s[12:15], s43 offen sc1
        {lab}:""")
    fwd("m_nb", 1)
    k("@@L0@@")
    k.c("================= waves 4-7: the loaders (nine 32 KB units through four LDS slots) =================")
    AS = E("AS", 0)
    k(f"""g_load:
    s_lshl_b32 s42, s16, 7
    s_and_b32 s42, s42, 128
    v_xor_b32 v6, s42, v3
    v_xor_b32 v7, 32, v6
    v_xor_b32 v8, 64, v6
    v_xor_b32 v9, 32, v8
    s_lshl_b32 s41, s35, 3
    s_add_u32 s41, s41, s16
    s_mul_i32 s18, s41, 96
    s_add_u32 s18, s18, s34
    s_cmp_ge_u32 s34, 6
    s_cselect_b32 s42, 2, 0
    s_add_u32 s18, s18, s42
    s_lshl_b32 s18, s18, 10
    s_lshl_b32 s68, s16, 13
    s_or_b32 m0, s68, 32768
    s_movk_i32 s43, 12288
    s_lshl_b32 s62, s43, 10
    s_mov_b32 s63, s11
    s_mov_b32 s42, s18
    s_or_b32 s40, s2, s16
    s_waitcnt lgkmcnt(0)
    s_cbranch_scc0 h_non
    h_nonx:
    s_mov_b32 s60, s58
    s_mov_b32 s61, s59""".replace("s60", "s64").replace("s61", "s65").replace("s62", "s66").replace("s63", "s67"))
    stamp(k, 1)
    def first(lo, hi):
        for i in range(lo, hi):
            k(f"buffer_load_dwordx4 v{6+(i&3)}, s[64:67], s42 offen nt lds")
            k("s_addk_i32 m0, 1024\ns_add_u32 s42, s42, s43")
    A0 = E("A0", 2)
    first(0, A0)
    if AS:
        k.c("the rows of x that the neighbour gets last are requested from here as well")
        k(f"""s_cmp_ge_u32 s16, {AS}
        s_cbranch_scc1 g_nas
        {"s_cmp_ge_u32 s35, 14" if E("ASX", 0) else "s_cmp_ge_u32 s35, 16"}
        s_cbranch_scc1 g_nas
        s_lshl_b32 s41, s16, 20
        s_sub_u32 s41, s60, s41
        s_add_u32 s41, s41, {6 << 19}
        v_and_b32 v11, 15, v0
        v_lshlrev_b32 v11, 7, v11
        v_and_b32 v12, 16, v0
        v_lshl_add_u32 v11, v12, 10, v11
        v_and_b32 v12, 32, v0
        v_lshl_add_u32 v11, v12, 14, v11
        v_add_u32 v11, s41, v11
        global_load_dword v244, v11, s[8:9]
        g_nas:""")
    first(A0, 8)
    k(f"""s_mov_b32 s69, s16
    {swap}
    s_mov_b32 s8, s58
    s_mov_b32 s9, s59
    s_mov_b32 s10, s66
    s_mov_b32 s14, {WS_SIZE}
    s_mov_b32 s15, s11
    v_mov_b32 v4, 0
    s_lshl_b32 s42, s69, 7
    s_add_u32 s42, s42, {L_SI}
    s_mov_b32 m0, s42
    s_lshl_b32 s42, s35, 7
    v_add_u32 v10, s42, v13
    s_mov_b32 exec_hi, 0
    global_load_lds_dword v10, s[56:57]
    s_mov_b32 exec_hi, -1""")
    W0, W1, W2 = E("W0", 8), E("W1", 7), E("W2", 10)
    WU = [int(x) for x in os.environ.get("WU", "8,8,8,8,10,10,10").split(",")]
    win = lambda n: WU[n >> 3]
    def unit_load(n):
        u, i = n >> 3, n & 7
        slot = ((u + 1) & 3) * 32768
        if u < 2:
            va, srdb, sb, stride = 6 + (i & 3), 8, 18, 12288
            rows = 32 * u + i
        elif u == 2:
            va, srdb, sb, stride = 4, 8, 19, 12288
            rows = 2 * i
            k(f"v_xor_b32 v4, {64*(i&1) + 128*((i>>2)&1)}, v14")
        elif u < 7:
            va, srdb, sb, stride = 5, (56, 56, 44, 44)[u-3], 67, 7168
            rows = 256 * ((u + 1) & 1) + 32 * (i >> 2) + 16 * (i & 1) + 4 * ((i >> 1) & 1)
        k(f"s_add_u32 s43, s68, {slot + i*1024}\ns_mov_b32 m0, s43\ns_add_u32 s42, s{sb}, {rows*stride}")
        if E("NOW", 0) and u >= 3: return
        nt = "nt" if (E("NTU", 511) >> u) & 1 else ""
        k(f"buffer_load_dwordx4 v{va}, s[{srdb}:{srdb+3}], s42 offen {nt} lds")
    L1, L2 = E("L1", 4), E("L2", 6)
    def stream(n0, n1, total, landed):
        for n in range(n0, n1):
            w = min(win(n), n) if n else 1
            for u, la in ((1, L1), (2, L2)):
                if n == 8 * (u + 1) + la and landed <= u:
                    k(f"s_waitcnt vmcnt({la})")
                    while landed <= u:
                        event(landed); landed += 1
            if n >= win(n): k(f"s_waitcnt vmcnt({win(n)-1})")
            while 8 * (landed + 1) <= n - win(n) + 1 and landed < 5:
                event(landed); landed += 1
            unit_load(n)
        if n1 == total:
            while 8 * (landed + 1) <= total - 16:
                k(f"s_waitcnt vmcnt({total - 8*(landed+1)})")
                event(landed); landed += 1
        return landed
    def event(u):
        stamp(k, 40 + u)
        k("s_barrier")
        if u in (1, 2): k("s_barrier")
        if u == 4: rdw(BG, 12)
    def setup2():
        pass
    landed = 0
    k(f"""s_lshl_b32 s19, s35, 2
    s_add_u32 s19, s19, s69
    s_mul_i32 s19, s19, {16*12288}
    s_lshl_b32 s42, s34, 9
    s_add_u32 s19, s19, s42
    s_and_b32 s42, s34, 4
    s_lshl_b32 s42, s42, 9
    s_add_u32 s19, s19, s42
    s_add_u32 s19, s19, {3*2048}
    v_lshrrev_b32 v5, 5, v2
    v_and_b32 v14, 0x1f0, v3
    v_lshlrev_b32 v12, 5, v5
    v_xor_b32 v14, v14, v12
    s_movk_i32 s42, 12288
    v_mad_u32_u24 v14, v5, s42, v14
    v_bfe_u32 v5, v0, 5, 1
    v_lshlrev_b32 v5, 3, v5
    v_bfe_u32 v12, v0, 3, 2
    v_add_u32 v5, v5, v12
    v_bfe_u32 v12, v0, 4, 2
    v_lshlrev_b32 v12, 1, v12
    v_xor_b32 v12, v12, v0
    v_and_b32 v12, 7, v12
    v_lshlrev_b32 v12, 4, v12
    s_movk_i32 s42, 7168
    v_mad_u32_u24 v5, v5, s42, v12""")
    common()
    k(f"""s_lshl_b32 s67, s65, 3
    s_add_u32 s67, s67, s69
    s_mul_i32 s67, s67, {64*7168}
    s_lshl_b32 s42, s64, 7
    s_add_u32 s67, s67, s42
""")
    srd(k, 56, 50, 1024 * 3584 * 2)
    srd(k, 44, 52, 1024 * 3584 * 2)
    landed = stream(8, 10, 56, landed)
    nonce_issue(k, 20, 128)
    landed = stream(10, 16, 56, landed)
    nonce_finish(k, "g_n2", 20, 192, 120)
    k("s_cmp_eq_u32 s66, 0\ns_cbranch_scc1 m_load")
    xprep()
    k(f"s_waitcnt vmcnt(0)\ns_barrier\ns_branch x_start\nm_load:")
    stream(16, 56, 56, landed)
    k("s_branch m_join\n@@L1@@\nm_join:")
    L_H = 131072
    KB = 24; HA = 128; AG = 160
    k.c("h2 as 2:4-sparse operand: row m = (row, half of every group of four); v13 write, v17 read, v19 positions")
    k(f"""v_bfe_u32 v7, v0, 4, 2
    v_and_b32 v6, 3, v0
    v_mul_u32_u24 v17, {512 + 64}, v6
    v_lshl_add_u32 v17, v16, 8, v17
    v_lshl_add_u32 v17, v7, 4, v17
    v_add_u32 v17, {L_H}, v17
    v_cmp_lt_u32 vcc, 1, v6
    v_mov_b32 v19, 0x44444444
    v_mov_b32 v22, 0xeeeeeeee
    v_cndmask_b32 v19, v19, v22, vcc
    v_and_b32 v6, 15, v0
    v_lshlrev_b32 v13, 5, v6
    v_bfe_u32 v22, v0, 4, 1
    v_lshl_add_u32 v13, v22, 4, v13
    v_bfe_u32 v22, v0, 5, 1
    v_lshl_add_u32 v13, v22, 3, v13
    v_mul_u32_u24 v22, {512 + 64}, v1
    v_add_u32 v13, v13, v22
    v_add_u32 v13, {L_H}, v13
    s_lshl_b32 s70, s34, 1
    s_add_u32 s70, s70, s16
    s_lshl_b32 s70, s70, 13
    s_lshl_b32 s71, s65, 11
    s_add_u32 s70, s70, s71
    s_add_u32 s70, s70, {WS_HM}
    s_mov_b32 s71, 0x07060302
    s_lshl_b32 s69, s64, 2
    s_and_b32 s42, s16, 3
    s_add_u32 s69, s69, s42
    s_lshl_b32 s69, s69, 10
    s_lshl_b32 s76, s65, 1
    s_lshr_b32 s42, s16, 2
    s_add_u32 s76, s76, s42
    s_lshl_b32 s76, s76, 8
    s_add_u32 s76, s76, s69
    s_add_u32 s77, s76, {WS_XB}
    s_add_u32 s76, s76, {WS_XA}
    s_add_u32 s69, s69, {WS_XA}
""")
    k.c("waves 0, 1 wait for the two rows while the last units land; wave 2 brings the hand-off lines into L2")
    k(f"""s_cmp_lg_u32 s16, 2
    s_cbranch_scc1 m_n0
    v_lshlrev_b32 v4, 7, v2
    s_sub_u32 s69, s69, 2048
    s_mov_b32 exec_hi, 0
    buffer_load_dword v5, v4, s[12:15], s69 offen sc1
    s_mov_b32 exec_hi, -1
    m_n0:
    s_cmp_ge_u32 s16, 2
    s_cbranch_scc1 m_n1
    v_lshlrev_b32 v4, 7, v2
    s_mov_b64 exec, 0xffff
    buffer_load_dword v5, v4, s[12:15], s70 offen sc1
    s_mov_b64 exec, -1
    m_n1:""")
    mtag4(k, 216)
    htag(k, 60)
    hl = lambda so: f"""buffer_load_dwordx4 v[176:179], v3, s[12:15], s{so} offen sc1
    buffer_load_dwordx4 v[180:183], v3, s[12:15], s{so} offen offset:1024 sc1"""
    k("s_movk_i32 s74, 0xff00\ns_waitcnt vmcnt(0)")
    stamp(k, 6); stamp(k, 45)
    k(f"""s_barrier
    s_cmp_ge_u32 s16, 2
    s_cselect_b64 exec, 1, -1
    {hl(70)}
    s_mov_b64 exec, -1""")
    rdw(BU, 21)
    for i in range(8): k(f"v_mov_b32 v{AG+i}, 0")
    k(f"""s_cbranch_scc1 m_nk
    s_mov_b32 s83, 0
    s_branch m_ph
    m_pr:
    s_and_b32 s42, s83, 63
    s_cmp_eq_u32 s42, 63
    s_cselect_b32 s42, {HM_B}, 0
    s_add_u32 s42, s42, s70
    {hl(42)}
    s_add_u32 s83, s83, 1
    s_cmp_ge_u32 s83, {SPIN}
    s_cbranch_scc1 m_phx
    m_ph:
    s_waitcnt vmcnt(0)
    v_cmp_ne_u16 vcc, s63, v183
    s_cbranch_vccnz m_pr""")
    for i in range(4): k(f"v_perm_b32 v{184+(0, 2, 1, 3)[i]}, v{177+2*i}, v{176+2*i}, s71")
    k(f"ds_write2_b64 v13, v[184:185], v[186:187] offset0:0 offset1:{2*(512+64)//8}")
    for i in range(8): k(f"v_xor_b32 v{176+i}, s{60+(i&3)}, v{176+i}")
    for i in range(4): k(f"v_or3_b32 v4, v{176+2*i}, v{177+2*i}, {'0' if i == 0 else 'v4'}")
    k("v_cmp_ne_u16 vcc, 0, v4\ns_cbranch_vccnz m_pr\nm_phx:")
    stamp(k, 14)
    def slot_of(d, s_):
        k(f"""s_bfe_u32 s{d}, s{s_}, 0x70005
        s_lshl_b32 s{d}, s{d}, 13
        s_and_b32 s{s_}, s{s_}, 1
        s_lshl_b32 s{s_}, s{s_}, 12
        s_add_u32 s{d}, s{d}, s{s_}""")
    k("m_nk:\ns_waitcnt lgkmcnt(0)\ns_barrier")
    for ks in range(4):
        k(f"ds_read_b128 v[{HA+4*ks}:{HA+4*ks+3}], v17 offset:{ks*64}")
    for ks in range(4):
        k(f"s_waitcnt lgkmcnt({3-ks})")
        for a_, b_ in ((AG, BG), (AG + 4, BU)):
            k(f"v_smfmac_f32_16x16x64_bf16 v[{a_}:{a_+3}], v[{HA+4*ks}:{HA+4*ks+3}], v[{b_+8*ks}:{b_+8*ks+7}], v19")
    padd(k, AG, AG, AG + 2); padd(k, AG + 4, AG + 4, AG + 6)
    PB = 184
    for i, r_ in enumerate((AG, AG + 1, AG + 4, AG + 5)): k(f"v_and_or_b32 v{PB+i}, v{r_}, s74, v{216+i}")
    k(f"""s_mov_b64 exec, 0xffff
    buffer_store_dwordx4 v[{PB}:{PB+3}], v3, s[12:15], s76 offen
    buffer_store_dwordx4 v[{PB}:{PB+3}], v3, s[12:15], s77 offen sc1
    s_mov_b64 exec, -1""")
    stamp(k, 15)
    k("s_cmp_eq_u32 s16, 0\ns_cbranch_scc1 r_start\ng_end:")
    stamp_out(k, 0)
    k(f"""s_endpgm
""")
    k.c("================= X: modulation tables, then the final reduction =================")
    k("x_start:")
    stamp(k, 30)
    def gather(lab, rnd):
        k(f"""s_mov_b32 s83, 0
        {lab}:
        s_and_b32 s42, s83, 63
        s_cmp_eq_u32 s42, 63
        s_cselect_b32 s42, {WS_MPB - WS_MPA}, 0
        s_add_u32 s42, s42, s{81 - rnd}""")
        if rnd == 0:
            k("""s_add_u32 s43, s42, 4096
            buffer_load_dwordx4 v[32:35], v3, s[12:15], s42 offen sc1
            buffer_load_dwordx4 v[36:39], v3, s[12:15], s43 offen sc1""")
        else:
            k("buffer_load_dwordx4 v[32:35], v223, s[12:15], s42 offen offset:2048 sc1")
        k("s_waitcnt vmcnt(0)")
        untag(k, range(32, 40 - 4*rnd), 216, 17)
        tagchk(k, 17)
        k(f"""s_cbranch_vccz {lab}x
        s_and_b32 s42, s83, 63
        s_cmp_lg_u32 s42, 48
        s_cbranch_scc1 {lab}n""")
        own_b(rnd)
        k(f"{lab}n:")
        spin(k, lab, E("SLP", 0))
        k(f"{lab}x:")
        stamp(k, 31 + 3*rnd)
        if rnd == 0:
            for h in range(2): padd(k, 32 + 2*h, 32 + 2*h, 36 + 2*h)
        k(f"""ds_write_b128 v222, v[32:35] offset:{rnd*8192}
        s_waitcnt lgkmcnt(0)
        s_barrier
        s_cmp_lg_u32 s16, 0
        s_cbranch_scc1 {lab}e""")
        for i in range(8): k(f"ds_read_b128 v[{160+4*i}:{163+4*i}], v221 offset:{rnd*8192+i*1024}")
        for i in range(0, 8, 2):
            k(f"s_waitcnt lgkmcnt({6-i})")
            for h in range(2): padd(k, 160 + 4*i + 2*h, 160 + 4*i + 2*h, 164 + 4*i + 2*h)
        for h in range(2):
            padd(k, 160 + 2*h, 160 + 2*h, 168 + 2*h); padd(k, 176 + 2*h, 176 + 2*h, 184 + 2*h)
        for h in range(2): padd(k, 160 + 2*h, 160 + 2*h, 176 + 2*h)
    def own_b(rnd):
        k(f"s_add_u32 s43, s39, {WS_MPB - WS_MPA}")
        for i in range(2 + rnd):
            k(f"buffer_load_dwordx4 v[44:47], v3, s[12:15], s39 offen offset:{i*1024} sc1")
            k("s_waitcnt vmcnt(0)")
            k(f"buffer_store_dwordx4 v[44:47], v3, s[12:15], s43 offen offset:{i*1024} sc1")
            k("s_waitcnt vmcnt(0)")
    def fin_store(v, so, o, va, vm_=None):
        if vm_: k(f"ds_bpermute_b32 v{o+4}, v232, v{v}")
        for i in range(4): k(f"v_and_or_b32 v{o+i}, v{v+i}, s74, v{216+i}")
        k(f"buffer_store_dwordx4 v[{o}:{o+3}], v{va}, s[12:15], s{so} offen sc1")
        if vm_:
            for i in range(1, 4): k(f"v_and_or_b32 v{o+4+i}, v{v+4-i}, s74, v{228+i}")
            k(f"s_waitcnt lgkmcnt(0)\nv_and_or_b32 v{o+4}, v{o+4}, s74, v228")
            k(f"buffer_store_dwordx4 v[{o+4}:{o+7}], v{vm_}, s[12:15], s{so} offen sc1")
    gather("x_g0", 0)
    for h in range(2): rb2(k, 160 + 2*h, 17 + h)
    for n in range(4): k(f"v_add_f32 v{160+n}, s28, v{160+n}")
    for h in range(2): rb2(k, 160 + 2*h, 17 + h)
    k(f"""v_mov_b32 v48, s32
    v_mov_b32 v49, s33
    s_cmp_ge_u32 s64, 8
    s_cbranch_scc1 x_q""")
    fin_store(160, 22, 168, 220)
    k("""v_max3_f32 v50, abs(v160), abs(v161), abs(v162)
    v_max_f32_e64 v50, v50, abs(v163)""")
    wave_reduce_to63(k, [50], "v_max_f32")
    rec_ = """v_readlane_b32 s42, v50, 63
    v_mov_b32 v50, s42
    s_mov_b64 exec, 0xff
    buffer_store_dwordx4 v[48:51], v3, s[12:15], s79 offen sc1
    s_mov_b64 exec, -1"""
    k(rec_)
    k("s_branch x_g0e\nx_q:\ns_cmp_lt_u32 s64, 12\ns_cbranch_scc1 x_nq")
    for h in range(2): unpack_bf16(k, 164 + 2*h, 52 + h)
    for h in range(2): pmul(k, 164 + 2*h, 164 + 2*h, 160 + 2*h)
    fin_store(164, 75, 176, 220, 234)
    for i in range(4): k(f"v_and_b32 v{164+i}, s74, v{164+i}")
    padd(k, 164, 164, 166)
    k("v_add_f32 v50, v164, v165")
    wave_reduce_to63(k, [50], "v_add_f32")
    k(rec_)
    k("x_nq:")
    fin_store(160, 22, 168, 220, 234)
    k("""
    x_g0e:""")
    stamp(k, 32); stamp(k, 14)
    k("s_barrier\ns_cmp_lt_u32 s16, 4\ns_cbranch_scc1 x_t1")
    for n in range(16, 24):
        unit_load(n)
    k("s_waitcnt vmcnt(0)\ns_barrier\ns_branch x_t2\nx_t1:")
    k("s_barrier")
    gemv(2)
    mp(2, 0)
    k("x_t2:")
    stamp(k, 33)
    gather("x_g1", 1)
    for i in range(4): k(f"v_mov_b32 v{164+i}, v{160+i}")
    for i in range(4): k(f"v_permlane32_swap_b32 v{160+i}, v{164+i}")
    for h in range(2): padd(k, 160 + 2*h, 160 + 2*h, 164 + 2*h)
    for h in range(2): rb2(k, 160 + 2*h, 17 + h)
    k("s_mov_b32 exec_hi, 0")
    fin_store(160, 23, 168, 233, 235)
    k("s_mov_b32 exec_hi, -1\nx_g1e:")
    stamp(k, 6); stamp(k, 35)
    fwd("x_nb", 1)
    XN = E("XN", 0)
    if XN:
        k.c("idle time: the slowly streaming up column of this die into L2")
        k(f"""s_barrier
        s_mov_b32 s8, s52
        s_mov_b32 s9, s53
        s_mov_b32 s10, {1024*3584*2}
        s_lshr_b32 s42, s8, 7
        s_sub_u32 s42, 3, s42
        s_add_u32 s42, s42, s34
        s_and_b32 s42, s42, 7
        s_cmp_eq_u32 s42, 7
        s_cbranch_scc1 x_nh
        s_mul_i32 s43, s34, 7
        s_add_u32 s42, s42, s43
        s_lshl_b32 s42, s42, 7
        s_lshl_b32 s43, s65, 3
        s_add_u32 s43, s43, s16
        s_mul_i32 s43, s43, {64*7168}
        s_add_u32 s42, s42, s43
        v_mul_u32_u24 v24, 7168, v2
        buffer_load_dword v245, v24, s[8:11], s42 offen
        x_nh:""")
    k(f"""s_cmp_lg_u32 s16, 0
    s_cbranch_scc1 g_end
    s_lshl_b32 s78, s34, 14
    s_add_u32 s78, s78, {WS_KEY}
    s_lshl_b32 s79, s34, 11
    s_add_u32 s79, s79, s78
    s_add_u32 s79, s79, {E("GOMM", 1)*128 + 8}
    v_mov_b32 v22, 0""")
    srd(k, 56, 48, 2048)
    htag(k, 60)
    btag(k, 44)
    k.c("w_r, sb and 1+cb in slot order")
    k(f"""v_and_b32 v9, 15, v0
    v_lshlrev_b32 v9, 6, v9
    v_bfe_u32 v19, v0, 4, 1
    v_lshl_add_u32 v9, v19, 5, v9
    v_lshlrev_b32 v18, 9, v19
    v_bfe_u32 v19, v0, 5, 1
    v_lshl_add_u32 v9, v19, 4, v9
    v_lshl_add_u32 v18, v19, 11, v18
    v_bfe_u32 v19, v0, 2, 2
    v_lshl_add_u32 v18, v19, 7, v18
    v_lshl_add_u32 v18, v15, 4, v18
    s_mov_b32 s43, {WS_FIN + FIN_T + P_SB}
    s_lshl_b32 s70, s64, 13
    s_add_u32 s70, s70, {WS_HM}
    s_add_u32 s71, s70, {HM_B}
    s_add_u32 s72, s70, 4096
    s_add_u32 s73, s71, 4096
    v_mov_b32 v21, 0xffff0000""")
    for j in range(2):
        k(f"buffer_load_dwordx4 v[{92+4*j}:{95+4*j}], v9, s[56:59], 0 offen offset:{j*1024}")
    def vec(r, so):
        for j in range(4):
            k(f"buffer_load_dwordx4 v[{r+4*j}:{r+4*j+3}], v18, s[12:15], s{so} offen offset:{(j>>1)*64 + (j&1)*1024} sc1")
    k("s_mov_b32 s76, s43\ns_sub_u32 s42, s43, 8192\ns_mov_b32 s83, 0\nx_cb:")
    vec(116, 42)
    k("s_mov_b64 exec, 1\nbuffer_load_dwordx2 v[28:29], v22, s[12:15], s79 offen sc1\ns_mov_b64 exec, -1")
    k("s_waitcnt vmcnt(0)")
    untag(k, range(116, 132), 216, 19)
    tagchk(k, 19)
    k("s_cbranch_vccz x_cbx")
    spin(k, "x_cb", 8)
    k("x_cbx:")
    for i in range(8): unpack_bf16(k, 48 + 2*i, 92 + i)
    k("s_mov_b64 exec, 1")
    cmp_recs(k, 28)
    k("s_cbranch_vccz x_goy")
    poll_recs(k, "x_go", 28, 22, 79, "1", sl=E("SLG", 1))
    stamp(k, 22)
    k.c("the two workgroups of a die start with different halves")
    k("s_lshl_b32 s42, s65, 13\ns_add_u32 s78, s78, s42")
    if E("XKS", 0): k(f"s_sleep {E('XKS', 0)}")
    stamp(k, 23)
    vec(100, 76)
    KB_, HD, PKD = 24, 132, 136
    def repoll(lab):
        k(f"""s_mov_b64 exec, s[52:53]
        s_cbranch_execz {lab}a
        buffer_load_dwordx4 v[{KB_}:{KB_+3}], v32, s[12:15], s78 offen sc1
        {lab}a:
        s_mov_b64 exec, s[54:55]
        s_cbranch_execz {lab}b
        buffer_load_dwordx4 v[{KB_+4}:{KB_+7}], v32, s[12:15], s77 offen sc1
        {lab}b:
        s_mov_b64 exec, -1""")
    chk = f"""v_cmp_ne_u64 s[52:53], s[32:33], v[{KB_+2}:{KB_+3}]
    v_cmp_ne_u64 s[54:55], s[32:33], v[{KB_+6}:{KB_+7}]"""
    def best(lab, a, b, c, d):
        k(f"v_max_u32 v33, v{a}, v{c}\nv_min_u32 v34, v{a}, v{c}\nv_mov_b32 v35, v33\nv_max3_u32 v34, v34, v{b}, v{d}")
        wave_reduce_to63(k, [35], "v_max_u32")
        k(f"""v_readlane_b32 s40, v35, 63
        s_cmp_eq_u32 s65, 0
        s_cbranch_scc1 {lab}
        v_cmp_eq_u32 vcc, s40, v33
        v_cndmask_b32 v35, v33, v34, vcc""")
        wave_reduce_to63(k, [35], "v_max_u32")
        k(f"""v_readlane_b32 s40, v35, 63
        {lab}:
        s_bfe_u32 s42, s40, 0x70005
        s_bitcmp1_b32 s40, 0
        s_addc_u32 s42, s42, s42
        s_lshl_b32 s43, s42, 7
        s_lshl_b32 s42, s42, 12
        s_add_u32 s42, s42, {WS_SLOT}
        s_add_u32 s43, s43, {WS_SH}""")
    def fetch():
        k(f"""s_mov_b64 exec, 1
        buffer_load_dwordx4 v[{HD}:{HD+3}], v22, s[12:15], s43 offen sc1
        s_mov_b64 exec, -1""")
        for q in range(4): k(f"buffer_load_dwordx4 v[{64+4*q}:{67+4*q}], v3, s[12:15], s42 offen offset:{q*1024} sc1")
    mb = lambda q: k(f"buffer_store_dwordx4 v[{64+4*q}:{67+4*q}], v3, s[12:15], s70 offen offset:{q*1024}")
    def process(fail, store):
        k(f"""s_waitcnt vmcnt(4)
        v_readfirstlane_b32 s22, v{HD}
        v_readfirstlane_b32 s23, v{HD+1}
        v_readfirstlane_b32 s20, v{HD+2}
        v_readfirstlane_b32 s21, v{HD+3}
        s_xor_b64 s[22:23], s[22:23], s[32:33]
        s_cbranch_scc1 {fail}""")
        for q in range(4):
            k(f"s_waitcnt vmcnt({3 if store else 3 - q})")
            for i in range(4): k(f"v_xor_b32 v{64+4*q+i}, s{44 + 4*(q & 1) + i}, v{64+4*q+i}")
            k(f"v_or3_b32 v19, v{64+4*q}, v{65+4*q}, v{66+4*q}\nv_or_b32 v19, v19, v{67+4*q}")
            for i in range(2*q, 2*q + 2):
                k(f"v_pk_fma_f32 {P(64+2*i)}, {P(64+2*i)}, s[20:21], s[20:21] op_sel:[0,1,0] op_sel_hi:[1,1,0]")
            k(f"v_cmp_ne_u16_sdwa vcc, v19, v22 src0_sel:BYTE_0 src1_sel:DWORD")
            for i in range(2*q, 2*q + 2): pfma(k, 64 + 2*i, 64 + 2*i, 116 + 2*i, 100 + 2*i)
            for i in range(2*q, 2*q + 2): k(f"v_cvt_pk_bf16_f32 v{PKD+i}, v{64+2*i}, v{65+2*i}")
            k(f"s_cbranch_vccnz {fail}")
            for i in range(2*q, 2*q + 2):
                k(f"v_lshl_or_b32 v{64+2*i}, v{PKD+i}, 16, s{60+((2*i)&3)}")
                k(f"v_and_or_b32 v{65+2*i}, v{PKD+i}, v21, s{60+((2*i+1)&3)}")
            if store: mb(q)
    k(f"""v_lshlrev_b32 v32, 7, v2
    s_xor_b32 s77, s78, 8192
    buffer_load_dwordx4 v[{KB_}:{KB_+3}], v32, s[12:15], s78 offen sc1
    buffer_load_dwordx4 v[{KB_+4}:{KB_+7}], v32, s[12:15], s77 offen sc1
    s_mov_b32 s83, 0
    s_waitcnt vmcnt(2)
    x_sb:""")
    untag(k, range(100, 116), 216, 19)
    tagchk(k, 19)
    k(f"""s_cbranch_vccnz x_sr
    x_sbx:
    s_mov_b32 s41, 0
    s_mov_b32 s83, 0
    s_waitcnt vmcnt(0)
    {chk}
    s_or_b64 s[20:21], s[52:53], s[54:55]
    s_cbranch_scc0 x_all""")
    if E("SPEC", 0):
        k.c("records are missing: prepare the row that leads so far while waiting for them")
        for i, (r_, m_) in enumerate(((0, 52), (1, 52), (4, 54), (5, 54))):
            k(f"v_cndmask_b32_e64 v{36+i}, v{KB_+r_}, 0, s[{m_}:{m_+1}]")
        repoll("x_p1")
        best("x_b1", 36, 37, 38, 39)
        fetch()
        stamp(k, 25)
        process("x_pc", False)
        k("s_mov_b32 s41, s40\ns_branch x_pc")
    k("x_pk:")
    repoll("x_p2")
    k(f"""x_pc:
    s_waitcnt vmcnt(0)
    {chk}""")
    for i, r_ in enumerate((0, 1, 4, 5)):
        k(f"v_cmp_lt_u32 s[{4+2*i}:{5+2*i}], s41, v{KB_+r_}")
    k("s_or_b64 s[20:21], s[52:53], s[54:55]\ns_cbranch_scc0 x_pkx")
    spin(k, "x_pk", E("SLK", 0))
    k("x_pkx:")
    for i in range(4): k(f"s_bcnt1_i32_b64 s{4+2*i}, s[{4+2*i}:{5+2*i}]")
    k("""s_add_u32 s4, s4, s6
    s_add_u32 s8, s8, s10
    s_add_u32 s4, s4, s8
    s_cmp_lg_u32 s4, s65
    s_cbranch_scc1 x_all""")
    stamp(k, 24); stamp(k, 13)
    for q in range(4): mb(q)
    k("s_branch x_phx\nx_all:")
    stamp(k, 24); stamp(k, 13)
    best("x_b2", KB_, KB_ + 1, KB_ + 4, KB_ + 5)
    k("s_mov_b32 s83, 0\nx_ph:")
    fetch()
    process("x_pr", True)
    k("x_phx:\nv_mov_b32 v46, s40")
    stamp(k, 15)
    for q in range(4):
        k(f"buffer_store_dwordx4 v[{64+4*q}:{67+4*q}], v3, s[12:15], s71 offen offset:{q*1024} sc1")
    for i in range(8): unpack_bf16(k, 100 + 2*i, PKD + i)
    pmul(k, 8, 48, 100)
    for i in range(1, 8): pfma(k, 8, 48 + 2*i, 100 + 2*i, 8)
    k("v_add_f32 v8, v8, v9")
    wave_reduce_to63(k, [8])
    round_bf16(k, 8, 8)
    k(f"""v_mul_f32 v8, {LOG2E}, v8
    v_exp_f32 v8, v8
    v_add_f32 v8, 1.0, v8
    v_rcp_f32 v8, v8""")
    round_bf16(k, 8, 8)
    k(f"""v_readlane_b32 s46, v8, 63
    v_mov_b32 v44, s32
    v_mov_b32 v45, s33
    v_mov_b32 v47, s46
    s_mov_b64 exec, 0xff
    buffer_store_dwordx4 v[44:47], v3, s[12:15], s73 offen sc1
    s_mov_b64 exec, -1
    s_sleep {E('XSL', 16)}""")
    k.c("================= final reduction: one job (row, 16-column block s18) per G workgroup =================")
    k(f"""r_start:
    s_lshl_b32 s62, s34, 1
    s_lshr_b32 s42, s34, 2
    s_add_u32 s62, s62, s42
    s_lshl_b32 s62, s62, 13
    s_add_u32 s62, s62, {WS_HM + HM_B}
    s_add_u32 s61, s62, 4096
    s_and_b32 s18, s34, 3
    s_lshl_b32 s18, s18, 4
    s_add_u32 s18, s18, s35
    v_mov_b32 v11, 0
    v_and_b32 v4, 3, v0
    v_lshrrev_b32 v7, 4, v2
    v_lshlrev_b32 v5, 3, v4
    v_lshl_add_u32 v5, v7, 1, v5
    v_lshlrev_b32 v6, 10, v4
    v_lshl_add_u32 v6, v7, 2, v6
    v_lshrrev_b32 v86, 1, v4
    v_lshlrev_b32 v86, 9, v86
    v_and_b32 v87, 1, v4
    v_lshl_add_u32 v85, v87, 10, v86
    v_lshl_add_u32 v85, v7, 2, v85
    s_and_b32 s30, s18, 1
    s_bfe_u32 s31, s18, 0x20001
    s_bfe_u32 s40, s18, 0x20003
    s_lshr_b32 s41, s18, 5
    s_lshl_b32 s45, s41, 11
    s_lshl_b32 s42, s30, 8
    s_add_u32 s45, s45, s42
    s_lshl_b32 s42, s40, 6
    s_add_u32 s45, s45, s42
    s_lshl_b32 s31, s31, 4
    s_add_u32 s45, s45, s31
    s_add_u32 s62, s62, s45
    s_lshl_b32 s30, s30, 9
    s_add_u32 s31, s31, s30
    s_lshl_b32 s40, s40, 7
    s_add_u32 s31, s31, s40
    s_lshl_b32 s41, s41, 6
    s_add_u32 s31, s31, s41
    s_add_u32 s31, s31, {WS_FIN + FIN_T + P_GB}
    s_mov_b32 s83, 0
    r_ld:
    s_mov_b64 exec, 1
    buffer_load_dwordx4 v[32:35], v11, s[12:15], s61 offen sc1
    s_mov_b64 exec, -1
    buffer_load_dword v41, v85, s[12:15], s62 offen sc1
    buffer_load_dword v91, v6, s[12:15], s31 offen sc1
    s_bitcmp1_b32 s18, 1
    s_cselect_b32 s42, s33, s32
    v_lshlrev_b32 v88, 3, v7
    v_lshrrev_b32_e64 v88, v88, s42
    v_and_b32 v88, 0xff, v88
    v_lshlrev_b32 v89, 4, v7
    v_lshrrev_b64 v[82:83], v89, s[32:33]
    v_and_b32 v82, 0xffff, v82
    s_waitcnt vmcnt(0)
    v_readfirstlane_b32 s50, v32
    v_readfirstlane_b32 s51, v33
    v_readfirstlane_b32 s40, v34
    v_readfirstlane_b32 s46, v35
    v_xor_b32 v91, v88, v91
    v_xor_b32 v41, v82, v41
    v_or_b32 v19, v91, v41
    v_cmp_ne_u16 vcc, 0, v19
    s_xor_b64 s[50:51], s[50:51], s[32:33]
    s_or_b64 vcc, vcc, s[50:51]
    s_cbranch_vccz r_ldx""")
    spin(k, "r_ld", 2)
    k(f"""r_ldx:
    v_mul_f32 v80, s46, v91
    s_bfe_u32 s46, s40, 0x70005
    s_bfe_u32 s47, s40, 0x30002
    s_bfe_u32 s60, s40, 0x10001""")
    slot_of(63, 40)
    k(f"""s_add_u32 s63, s63, s45
    s_add_u32 s63, s63, {WS_SLOT}
    buffer_load_dword v44, v85, s[12:15], s63 offen sc1
    v_lshrrev_b32 v10, 2, v2
    v_lshlrev_b32 v10, 7, v10
    v_lshl_add_u32 v10, v4, 4, v10
    s_lshl_b32 s44, s18, 13
    s_and_b32 s42, s34, 4
    s_lshl_b32 s42, s42, 4
    s_add_u32 s44, s44, s42
    s_add_u32 s44, s44, {WS_PART}
    s_add_u32 s45, s44, 4096""")
    row_of(k, 41, 46, 47, 61)
    mirror_row(k, 61, 41)
    k("""s_cmp_eq_u32 s60, 1
    s_cselect_b32 s41, s61, s41
    s_lshl_b32 s41, s41, 11
    s_lshl_b32 s61, s18, 5
    s_add_u32 s41, s41, s61""")
    if E("OTOUCH", 0): k("s_mov_b64 exec, 1\nbuffer_load_dword v245, v5, s[24:27], s41 offen\ns_mov_b64 exec, -1\ns_waitcnt vmcnt(1)")
    else: k("s_waitcnt vmcnt(0)")
    k("""v_and_b32 v44, 0xffffff00, v44
    v_fmac_f32 v44, v91, v41""")
    stamp(k, 16)
    L = 16; U = 48
    for i in range(4): k(f"v_mov_b32 v{L+12+i}, v{216+i}")
    if E("SL4", 24): k(f"s_sleep {E('SL4', 24)}")
    k(f"""s_mov_b32 s83, 0
    s_mov_b64 s[64:65], -1
    s_mov_b64 s[66:67], -1
    s_mov_b64 s[68:69], -1
    s_mov_b32 s70, -1
    s_mov_b32 s71, 0
    r_p:""")
    for j in range(4):
        k(f"""s_mov_b64 exec, s[{64+2*j}:{65+2*j}]
        s_cbranch_execz r_q{j}
        buffer_load_dwordx4 v[{L+4*j}:{L+4*j+3}], v10, s[12:15], s{44 + (j >> 1)} offen offset:{(j&1)*2048} sc1
        r_q{j}:""")
    k("s_mov_b64 exec, -1\ns_waitcnt vmcnt(0)")
    for i in range(16): k(f"v_xor_b32 v{U+i}, v{216+(i&3)}, v{L+i}")
    for j in range(4):
        k(f"v_or3_b32 v{12+j}, v{U+4*j}, v{U+4*j+1}, v{U+4*j+2}")
    for j in range(4):
        k(f"v_or_b32 v{12+j}, v{12+j}, v{U+4*j+3}")
    for h in range(2):
        padd(k, U + 2*h, U + 2*h, U + 4 + 2*h); padd(k, U + 8 + 2*h, U + 8 + 2*h, U + 12 + 2*h)
    for j in range(4):
        k(f"v_cmp_ne_u16_sdwa s[{64+2*j}:{65+2*j}], v{12+j}, v11 src0_sel:BYTE_0 src1_sel:DWORD")
    for h in range(2): padd(k, U + 2*h, U + 2*h, U + 8 + 2*h)
    k("""s_or_b64 s[50:51], s[64:65], s[66:67]
    s_or_b64 s[52:53], s[68:69], s[70:71]
    s_or_b64 s[50:51], s[50:51], s[52:53]
    s_cbranch_scc1 r_r
    r_x:""")
    stamp(k, 17)
    k(f"v_permlane32_swap_b32 v{U}, v{U+2}\nv_permlane32_swap_b32 v{U+1}, v{U+3}")
    padd(k, U, U, U + 2)
    k(f"v_permlane16_swap_b32 v{U}, v{U+1}\nv_add_f32 v{U}, v{U}, v{U+1}")
    for sh in (4, 8): k(f"v_add_f32_dpp v{U}, v{U}, v{U} row_ror:{sh} {DPPM}")
    k(f"""v_fmac_f32 v44, v{U}, v80
    s_mov_b32 exec_lo, 0x000f000f
    s_mov_b32 exec_hi, 0x000f000f
    v_cvt_pk_bf16_f32 v44, v44, v44
    buffer_store_short v44, v5, s[24:27], s41 offen {os.environ.get("FST", "")}""")
    stamp_out(k, 0)
    k("s_endpgm\nx_pr:\ns_waitcnt vmcnt(0)")
    spin(k, "x_ph", 0)
    k("s_branch x_phx\nx_sr:")
    vec(100, 76)
    k("s_waitcnt vmcnt(0)")
    spin(k, "x_sb", 2)
    k("s_branch x_sbx\nr_r:")
    spin(k, "r_p", E("RSL", 0))
    k("s_branch r_x")

def gen():
    k = K(NAME)
    stamp_init(k)
    k("""s_cmp_ge_u32 s2, 256
    s_cbranch_scc1 k_done""")
    stamp(k, 0)
    head(k)
    role_F(k)
    n0 = len(k.lines)
    role_G(k)
    g = k.lines[n0:]; f = k.lines[:n0]
    ix = lambda L, t: [x.strip() for x in L].index(t)
    a, b = ix(g, "@@L0@@"), ix(g, "@@L1@@")
    ld = g[a+1:b]; g = g[:a] + g[b+1:]
    a = ix(g, "@@L@@"); g = g[:a] + ld + g[a+1:]
    a = ix(f, "@@G@@"); k.lines = f[:a] + g + f[a+1:]
    k("k_done:\ns_endpgm")
    return k

HEADER = """; adaLN + FNet mixing + MoD block, gfx950.  Generated by gen/gen29.py (hand-written generator).
"""
def tables():
    import numpy as np
    def h2(a, b):
        return int(np.float16(a).view(np.uint16)) | (int(np.float16(b).view(np.uint16)) << 16)
    def f4(a): return int(np.float32(a).view(np.uint32))
    cs = lambda x: (math.cos(2 * math.pi * x), math.sin(2 * math.pi * x))
    w = []
    for var in range(2):
        for mt in range(2):
            for l in range(64):
                m, g = l & 15, l >> 4
                k1, p = 8 * mt + (m >> 1), m & 1
                for i in range(4):
                    j0 = 4 * g + (i ^ (2 * (g & 1)))
                    if var == 0:
                        c, s_ = cs((j0 * k1 % 16) / 16.0)
                        v = (h2(c, s_), h2(-s_, c))[p]
                    elif k1 == 0:
                        v = h2(1.0 if p == 0 else (-1.0) ** j0, 0)
                    elif k1 < 8:
                        c, s_ = cs((j0 * k1 % 16) / 16.0)
                        v = h2((c, -s_)[p], 0)
                    else:
                        c, s_ = cs(j0 * (8 + 16 * k1) / 256.0)
                        v = h2(0, (c, -s_)[p])
                    w.append(v)
    t = ".p2align 8\n.type tables,@object\ntables:\n"
    for i in range(0, len(w), 8):
        t += ".long " + ",".join("0x%x" % x for x in w[i:i+8]) + "\n"
    return t + f".size tables, {4*len(w)}\nall_end:\n"

def main(out):
    k = gen()
    t = HEADER + f"; @launch grid=(256,1,1) block=(512,1,1) lds={LDS}\n"
    t += '.amdgcn_target "amdgcn-amd-amdhsa--gfx950"\n.text\n' + k.text() + 'code_end:\n' + tables()
    t += '.section .rodata,"a"\n' + k.desc()
    open(out, "w").write(t)
if __name__ == "__main__":
    main(sys.argv[1] if len(sys.argv) > 1 else "adaLN_cond__spectral_fnet__moe_arch_mod__prompt.s")
```
